```python
import torch

def _softmax(x, axis=-1):
    return torch.softmax(x, dim=axis)
def _gelu(x):
    return torch.nn.functional.gelu(x, approximate="tanh")
def _silu(x):
    return torch.nn.functional.silu(x)
def _sigmoid(x):
    return torch.sigmoid(x)
def _layernorm(x, axis=-1, eps=1e-5):
    m = x.mean(dim=axis, keepdim=True)
    v = x.var(dim=axis, keepdim=True, unbiased=False)
    return (x - m) / torch.sqrt(v + eps)
def _scatter_add(tgt, idx, src, axis=0):
    return tgt.clone().index_add_(axis, idx, src)
def _segment_sum(src, seg, n):
    out = torch.zeros((n,) + src.shape[1:], dtype=src.dtype)
    return out.index_add_(0, seg, src)
def _pad(x, pw):
    flat = tuple(v for pair in reversed(pw) for v in pair)
    return torch.nn.functional.pad(x, flat)

kernel_name = 'gated_mix__ssm_conv_s4__moe_arch_mod__prompt'

def setup_inputs():

    _w = (lambda a: (lambda t: t.to(torch.bfloat16) if t.is_floating_point() else t)(torch.as_tensor(a)))
    def _A_setup():
        B, L, D, N = 1, 2048, 576, 128
        A_re = -(lambda _x: torch.exp(torch.as_tensor(_x)))((lambda *s: torch.randn(*s, dtype=torch.bfloat16) * 3.2)(D, N))
        A_im = torch.pi * (lambda *s: torch.randn(*s, dtype=torch.bfloat16) * 0.05)(D, N)
        B_re = (lambda *s: torch.randn(*s, dtype=torch.bfloat16) * 0.2)(D, N)
        B_im = (lambda *s: torch.randn(*s, dtype=torch.bfloat16) * 0.2)(D, N)
        C_re = (lambda *s: torch.randn(*s, dtype=torch.bfloat16) * 0.2)(D, N)
        C_im = (lambda *s: torch.randn(*s, dtype=torch.bfloat16) * 0.2)(D, N)
        log_dt = (lambda *s: torch.randn(*s, dtype=torch.bfloat16) * 0.05)(D) * 0.5 - 4.0
        Dskip = (lambda *s: torch.randn(*s, dtype=torch.bfloat16) * 0.1)(D)
        return {
            "u": _w((lambda *s: torch.randn(*s, dtype=torch.bfloat16) * 0.05)(B, L, D)),
            "A_re": _w(A_re),
            "A_im": _w(A_im),
            "B_re": _w(B_re),
            "B_im": _w(B_im),
            "C_re": _w(C_re),
            "C_im": _w(C_im),
            "log_dt": _w(log_dt),
            "Dskip": _w(Dskip),
        }
    _A_in = _A_setup()

    def _B_setup():
        B, S, D, F, C = 1, 2048, 576, 4608, 8
        return {
            "x": _w((lambda *s: torch.randn(*s, dtype=torch.bfloat16) * 0.05)(B, S, D)),
            "w_r": _w((lambda *s: torch.randn(*s, dtype=torch.bfloat16) * 3.2)(D)),
            "w_gate": _w((lambda *s: torch.randn(*s, dtype=torch.bfloat16) * 0.1)(D, F)),
            "w_up": _w((lambda *s: torch.randn(*s, dtype=torch.bfloat16) * 0.1)(D, F)),
            "w_down": _w((lambda *s: torch.randn(*s, dtype=torch.bfloat16) * 0.1)(F, D)),
        }
    _B_in = _B_setup()

    return {
        "A_u": _A_in["u"],
        "A_A_re": _A_in["A_re"],
        "A_A_im": _A_in["A_im"],
        "A_B_re": _A_in["B_re"],
        "A_B_im": _A_in["B_im"],
        "A_C_re": _A_in["C_re"],
        "A_C_im": _A_in["C_im"],
        "A_log_dt": _A_in["log_dt"],
        "A_Dskip": _A_in["Dskip"],
        "B_x": _B_in["x"],
        "B_w_r": _B_in["w_r"],
        "B_w_gate": _B_in["w_gate"],
        "B_w_up": _B_in["w_up"],
        "B_w_down": _B_in["w_down"],
        "gate_w": _w((lambda *s: torch.randn(*s, dtype=torch.bfloat16) * 0.05)(576) * 16.0),
    }

def reference(A_u, A_A_re, A_A_im, A_B_re, A_B_im, A_C_re, A_C_im, A_log_dt, A_Dskip, B_x, B_w_r, B_w_gate, B_w_up, B_w_down, gate_w):
    def _A_ref(u, A_re, A_im, B_re, B_im, C_re, C_im, log_dt, Dskip):
        Bsz, L, D = u.shape
        dt = torch.exp(log_dt)[:, None]
        A = A_re + 1j * A_im
        Bc = B_re + 1j * B_im
        Cc = C_re + 1j * C_im
        logdA = dt * A
        dB = dt * Bc
        l = (lambda x, dt: x.to(dt))(torch.arange(L), A_re.dtype)
        P = torch.exp(logdA[:, :, None] * l[None, None, :])
        K = torch.einsum("dn,dnl,dn->dl", Cc, P, dB).real
        L2 = 2 * L
        Kp = _pad(K, ((0, 0), (0, L)))
        up = (lambda x, *d: x.permute(*d))(u, 0, 2, 1)
        up = _pad(up, ((0, 0), (0, 0), (0, L)))
        Kf = (lambda x, axes=(-2,-1): torch.fft.rfft2(x.float(), dim=axes))(Kp[:, None, :], axes=(-2, -1))
        Uf = (lambda x, axes=(-2,-1): torch.fft.rfft2(x.float(), dim=axes))(up[:, :, None, :], axes=(-2, -1))
        Yf = Uf * Kf[None, :, :, :]
        y = (lambda x, s, axes=(-2,-1): torch.fft.irfft2(x, s=s, dim=axes).to(torch.bfloat16))(Yf, (1, L2), axes=(-2, -1))[:, :, 0, :L]
        y = (lambda x, *d: x.permute(*d))(y, 0, 2, 1) + u * Dskip[None, None, :]
        return y

    def _B_ref(x, w_r, w_gate, w_up, w_down):
        B, S, D = x.shape
        C = 8
        r = x @ w_r
        idx = torch.argsort(-r, axis=-1)[:, :C]
        idx_e = (lambda x, n, axis: torch.repeat_interleave(x, n, dim=axis))(idx.reshape(B, C, 1), D, axis=2)
        x_sel = (lambda x, i, axis: torch.take_along_dim(x, i, dim=axis))(x, idx_e, axis=1)
        g = _silu(x_sel @ w_gate)
        u = x_sel @ w_up
        y = (g * u) @ w_down
        r_sel = _sigmoid((lambda x, i, axis: torch.take_along_dim(x, i, dim=axis))(r, idx, axis=1))
        y = y * r_sel.reshape(B, C, 1)
        b_off = (torch.arange(B) * S).reshape(B, 1)
        flat_idx = (idx + b_off).reshape(B * C)
        zero = (x * 0.0).reshape(B * S, D)
        upd = _scatter_add(zero, flat_idx, y.reshape(B * C, D), axis=0)
        return x + upd.reshape(B, S, D)

    x = A_u
    g = _sigmoid((x * gate_w).sum(-1, keepdims=True))
    a = _A_ref(x, A_A_re, A_A_im, A_B_re, A_B_im, A_C_re, A_C_im, A_log_dt, A_Dskip)
    b = _B_ref(x, B_w_r, B_w_gate, B_w_up, B_w_down)
    return g * a + (1 - g) * b
```

```python
import re, struct


def fbits(x):
    return struct.unpack("<I", struct.pack("<f", float(x)))[0]


def vr(i, n):
    return f"v[{i}:{i+n-1}]" if n > 1 else f"v{i}"


def sr(i, n):
    return f"s[{i}:{i+n-1}]" if n > 1 else f"s{i}"


_RV = re.compile(r"^-?\|?(?:abs\()?v(\d+)\)?\|?$")
_RVR = re.compile(r"^-?v\[(\d+):(\d+)\]$")
_RS = re.compile(r"^-?s(\d+)$")
_RSR = re.compile(r"^s\[(\d+):(\d+)\]$")
TRANS = ("v_exp_f32", "v_log_f32", "v_rcp_f32", "v_rsq_f32", "v_sqrt_f32", "v_sin_f32", "v_cos_f32")


def regs(tok):
    tok = tok.strip()
    m = _RV.match(tok)
    if m:
        return {("v", int(m.group(1)))}
    m = _RVR.match(tok)
    if m:
        return {("v", i) for i in range(int(m.group(1)), int(m.group(2)) + 1)}
    m = _RS.match(tok)
    if m:
        return {("s", int(m.group(1)))}
    m = _RSR.match(tok)
    if m:
        return {("s", i) for i in range(int(m.group(1)), int(m.group(2)) + 1)}
    if tok == "vcc":
        return {("s", 106), ("s", 107)}
    if tok == "m0":
        return {("s", 124)}
    if tok == "exec":
        return {("s", 126), ("s", 127)}
    return set()


class Ins:
    def __init__(s, text):
        s.text = text
        t = text.split(";")[0].strip()
        p = t.split(None, 1)
        s.op = p[0]
        rest = p[1] if len(p) > 1 else ""
        ops, cur, d = [], "", 0
        for ch in rest:
            if ch in "[(":
                d += 1
            if ch in "])":
                d -= 1
            if ch == "," and d == 0:
                ops.append(cur.strip()); cur = ""
            else:
                cur += ch
        if cur.strip():
            ops.append(cur.strip())
        mods = ""
        if ops:
            q = ops[-1].split(None, 1)
            ops[-1] = q[0]
            mods = q[1] if len(q) > 1 else ""
        s.ops, s.mods = ops, mods
        op = s.op
        s.valu = op.startswith("v_")
        s.mfma = op.startswith("v_mfma")
        s.trans = op.replace("_e32", "").replace("_e64", "") in TRANS
        s.dot = op.startswith("v_dot")
        s.dpp = op.endswith("_dpp")
        s.perml = op.startswith("v_permlane")
        s.rdlane = op in ("v_readlane_b32", "v_readfirstlane_b32")
        s.ds = op.startswith("ds_")
        s.vmem = op.startswith("buffer_") or op.startswith("global_")
        s.smem = op.startswith("s_load") or op.startswith("s_mem") or op.startswith("s_buffer_load")
        s.lds_dma = s.vmem and (" lds" in " " + mods or "_lds_" in op)
        R = [regs(o) for o in ops]
        W, Rd = set(), set()
        if s.vmem:
            isload = "_load" in op and not s.lds_dma
            ret = "atomic" in op and "sc0" in mods
            if isload or ret:
                W = R[0]
                for r in R[1:]:
                    Rd |= r
                if "d16" in op:
                    Rd |= R[0]
            else:
                for r in R:
                    Rd |= r
            if s.lds_dma:
                Rd |= {("s", 124)}
        elif s.ds:
            if "read" in op or "_rtn" in op or "permute" in op or "swizzle" in op:
                W = R[0]
                for r in R[1:]:
                    Rd |= r
                if "d16" in op:
                    Rd |= R[0]
            else:
                for r in R:
                    Rd |= r
            if "addtid" in op:
                Rd |= {("s", 124)}
        elif s.valu:
            if s.perml:
                W = R[0] | R[1]; Rd = set(W)
            elif op.startswith("v_nop"):
                pass
            else:
                W = set(R[0])
                k = 1
                if "_co_" in op:
                    W |= R[1]; k = 2
                for r in R[k:]:
                    Rd |= r
                if op.startswith(("v_fmac", "v_dot2c", "v_writelane", "v_fma_mixlo", "v_fma_mixhi")) or s.dpp:
                    Rd |= R[0]
        elif op.startswith("s_"):
            if op.startswith(("s_cmp", "s_bitcmp", "s_waitcnt", "s_nop", "s_barrier", "s_branch", "s_cbranch", "s_endpgm", "s_sleep", "s_setprio")):
                for r in R:
                    Rd |= r
            else:
                W = set(R[0]) if R else set()
                for r in R[1:]:
                    Rd |= r
                if "saveexec" in op:
                    W |= {("s", 126), ("s", 127)}
        s.W, s.R = W, Rd
        if s.mfma:
            s.D, s.A, s.B, s.C = R[0], R[1], R[2], R[3]
            s.passes = 8 if "32x32" in op else 4
        s.states = int(ops[0], 0) + 1 if op == "s_nop" else 1
        s.wide_store = s.vmem and "store" in op and ("x3" in op or "x4" in op)


def need(p, c):
    n = 0
    pv = {r for r in p.W if r[0] == "v"}
    ps = {r for r in p.W if r[0] == "s"}
    if p.mfma:
        big = {4: 8, 8: 12}[p.passes]
        if c.mfma:
            if p.D & (c.A | c.B):
                n = max(n, big)
            if p.D & c.C and p.D != c.C:
                n = max(n, big - 2)
            if p.D & c.D and p.D != c.C:
                n = max(n, big)
        elif (c.valu or c.ds or c.vmem) and p.D & (c.R | c.W):
            n = max(n, big)
        if c.valu and not c.mfma and p.C & c.W:
            n = max(n, {4: 3, 8: 7}[p.passes])
        return n
    if p.valu:
        if pv & c.R:
            if c.dpp or c.perml or c.mfma:
                n = max(n, 2)
            if c.rdlane:
                n = max(n, 1)
            if p.trans and c.valu:
                n = max(n, 1)
            if ("mixhi" in p.op or "mixlo" in p.op or "sdwa" in p.op) and c.valu:
                n = max(n, 1)
        if p.dot and c.valu and pv & (c.R | c.W):
            same = c.op == p.op
            if same:
                srcab = set()
                for o in c.ops[1:3]:
                    srcab |= regs(o)
                if pv & srcab:
                    n = max(n, 3)
            else:
                n = max(n, 3)
        if p.dot and (c.ds or c.vmem) and pv & c.R:
            n = max(n, 3)
        if ps & c.R:
            if c.valu:
                n = max(n, 2)
                if c.op in ("v_readlane_b32", "v_writelane_b32") and ps & regs(c.ops[2]):
                    n = max(n, 4)
            if c.vmem:
                n = max(n, 5)
        if c.valu and c.op.startswith("v_cndmask") and len(c.ops) == 4 and ps & regs(c.ops[3]):
            n = max(n, 2)
    if p.op.startswith("s_") and ("s", 124) in p.W and (c.lds_dma or "addtid" in c.op):
        n = max(n, 1)
    if p.wide_store and c.valu and not c.mfma:
        data = regs(p.ops[0]) if p.op.startswith("buffer") else regs(p.ops[1])
        if data & c.W:
            n = max(n, 2)
    return n


class Asm:
    def __init__(s):
        s.L = []

    def __call__(s, x):
        s.L.append("    " + x)

    def lab(s, x):
        s.L.append(x + ":")

    def raw(s, x):
        s.L.append(x)

    def c(s, x):
        s.L.append("    ; " + x)

    def nop(s, n):
        while n > 0:
            k = min(n, 16)
            s(f"s_nop {k-1}")
            n -= k

    def auto(s, on):
        s.L.append("@auto_on" if on else "@auto_off")

    def finish(s):
        out = []
        hist = []
        auto = False
        lq, vq = [], []
        for line in s.L:
            if line == "@auto_on":
                auto, lq, vq = True, [], []
                continue
            if line == "@auto_off":
                auto = False
                continue
            t = line.strip()
            if not line.startswith("    ") or t.startswith(";") or t.startswith("."):
                if auto and t.endswith(":") and not t.startswith("KEEP_"):
                    raise Exception("label inside auto region: " + t)
                out.append(line)
                continue
            isneed = t.startswith("@need")
            ins = Ins("s_cmp_need " + t[5:]) if isneed else Ins(t)

            def push(i, text):
                nonlocal hist
                out.append("    " + text)
                hist = [(h, d + i.states) for h, d in hist if d + i.states < 14]
                hist.append((i, 0))

            if auto:
                touch = ins.R | ins.W
                wl = wv = None
                for k, dst in enumerate(lq):
                    if dst & touch:
                        wl = len(lq) - 1 - k
                for k, dst in enumerate(vq):
                    if dst & touch:
                        wv = len(vq) - 1 - k
                if ins.op == "s_waitcnt":
                    m = re.search(r"lgkmcnt\((\d+)\)", t)
                    if m:
                        n = int(m.group(1)); lq = lq[len(lq) - n:] if n < len(lq) else lq
                        if n == 0:
                            lq = []
                    m = re.search(r"vmcnt\((\d+)\)", t)
                    if m:
                        n = int(m.group(1)); vq = vq[len(vq) - n:] if n < len(vq) else vq
                        if n == 0:
                            vq = []
                w = []
                if wv is not None:
                    wv = min(wv, 63)
                    w.append(f"vmcnt({wv})"); vq = vq[len(vq) - wv:] if wv else []
                if wl is not None:
                    wl = min(wl, 15)
                    w.append(f"lgkmcnt({wl})"); lq = lq[len(lq) - wl:] if wl else []
                if w:
                    tx = "s_waitcnt " + " ".join(w)
                    push(Ins(tx), tx)
                if isneed:
                    continue
                assert not ins.smem or ins.op.startswith("s_mem"), "smem in auto region"
            gap = 0
            for h, d in hist:
                gap = max(gap, need(h, ins) - d)
            if gap > 0:
                tx = f"s_nop {gap-1}"
                push(Ins(tx), tx)
            push(ins, t)
            if auto:
                if ins.ds:
                    lq.append({r for r in ins.W})
                elif ins.vmem:
                    vq.append({r for r in ins.W})
                elif ins.smem:
                    tx = "s_waitcnt lgkmcnt(0)"
                    push(Ins(tx), tx)
                    lq = []
        return out


def interleave(main, fill, per=1, skip=0):
    out = []
    fill = list(fill)
    n = 0
    for m in main:
        out.append(m)
        if m.startswith("v_mfma"):
            n += 1
            if n > skip:
                for _ in range(per):
                    if fill:
                        out.append(fill.pop(0))
    return out + fill
```

```python
import sys, os
from asmlib import *

NAME = "gated_mix__ssm_conv_s4__moe_arch_mod__prompt"
HERE = os.path.dirname(os.path.abspath(__file__))
E = lambda k, d=0: int(os.environ.get(k, d))
STAMP = E("STAMP")
CODEPF = E("CODEPF", 1)
SELD = E("SELD", 0)
UD = E("UD", 0)
PFN = E("PFN", 0)
PFS = E("PFS", 8)
PFW = E("PFW", 1)
HPN = E("HPN", 4)
HPS = E("HPS", 167)
HPW = E("HPW", 4)
WIN_U = E("WIN_U", 4)
WIN_F = E("WIN_F", 10)
HELP = E("HELP", 1)
DUMP = E("DUMP")
HOLD = E("HOLD")
FINE = E("FINE")
NOU = E("NOU")
NOW = E("NOW")

WS_KEY, WS_G, WS_SEL, WS_BASE, WS_MB = 0, 8192, 16384, 16640, 32768
WS_UT = 8 << 20
WS_STAMP = 4 << 20
WS_SIZE = 0x10000000

LDS = 163840
F_NONCE, F_PAIR, F_O, F_ST, F_MAX, F_ISA = 0, 16, 32, 40, 48, 64
F_A, F_B, F_AC = 16, 20, 24
KT = 256
KTS = 4608
TS = 288
OS = 4160
OP, GA = KT, KT + 4 * OS
KC = KT + 8 * KTS
CS = 2240
UP = KC + 16 * CS
US = 4640
RAW = UP + 4 * US
assert RAW + 32768 <= LDS and RAW % 16 == 0
WA = 256
WB = WA + 73728
XB = WB + 73728
HB = XB + 9216
HS = 144
GW = HB + 8 * HS
assert GW + 2048 <= LDS and GW % 16 == 0
F_X, F_GD = 8, 12

L2E = 0x3fb8aa3b
L2E_LO = 0x32a57060
LN2 = 0x3f317218
INV2PI = 0x3e22f983

P_U, P_ARE, P_AIM, P_BRE, P_BIM, P_CRE, P_CIM, P_LDT = 16, 18, 20, 22, 24, 26, 28, 30
P_DSK, P_BX, P_WR, P_WG, P_WU, P_WD, P_GW, P_OUT = 32, 34, 36, 38, 40, 42, 44, 46
P_DBG, P_WS = 48, 50
NJF, NJH = 9, 14
SPIN = 0x20000

DPPF = "row_mask:0xf bank_mask:0xf"


class G(Asm):
    nlab = 0

    def stamp(s, i):
        if STAMP and not (FINE and i >= 6):
            s(f"s_memrealtime s[{80+2*i}:{81+2*i}]")

    def fine(s, i):
        if STAMP and FINE:
            s(f"s_memrealtime s[{80+2*i}:{81+2*i}]")

    def end(s):
        s("s_branch STAMP_OUT" if STAMP else "s_endpgm")

    def uid(s, p):
        G.nlab += 1
        return f"{p}_{G.nlab}"

    def spin(s, off, target, tv, sleep=0, op="ge"):
        l = s.uid("SP")
        s("s_mov_b32 s9, 0")
        s.lab(l)
        s(f"ds_read_b32 v{tv}, v1 offset:{off}") if isinstance(off, int) else s(f"ds_read_b32 v{tv}, {off}")
        s("s_waitcnt lgkmcnt(0)")
        s(f"v_readfirstlane_b32 s8, v{tv}")
        s("s_add_u32 s9, s9, 1")
        s(f"s_cmp_{op}_u32 s8, {target}")
        s(f"s_cbranch_scc1 {l}_D")
        if sleep:
            s(f"s_sleep {sleep}")
        s(f"s_cmp_lt_u32 s9, {SPIN*4}")
        s(f"s_cbranch_scc1 {l}")
        s.lab(l + "_D")

    def signal(s, off, tv):
        s(f"v_mov_b32 v{tv}, 1")
        s("s_mov_b64 exec, 1")
        s(f"ds_add_u32 v1, v{tv} offset:{off}") if isinstance(off, int) else s(f"ds_add_u32 {off}, v{tv}")
        s("s_mov_b64 exec, -1")


def srd(a, d, p, size):
    a(f"s_mov_b32 s{d}, s{p}")
    a(f"s_mov_b32 s{d+1}, s{p+1}")
    a(f"s_mov_b32 s{d+2}, {size}")
    a(f"s_mov_b32 s{d+3}, 0x20000")


def wave_max_steps(vv):
    return [f"v_max_u32_dpp v{vv}, v{vv}, v{vv} row_shr:1 {DPPF}",
            f"v_max_u32_dpp v{vv}, v{vv}, v{vv} row_shr:2 {DPPF}",
            f"v_max_u32_dpp v{vv}, v{vv}, v{vv} row_shr:4 {DPPF}",
            f"v_max_u32_dpp v{vv}, v{vv}, v{vv} row_shr:8 {DPPF}",
            f"v_max_u32_dpp v{vv}, v{vv}, v{vv} row_bcast:15 row_mask:0xa bank_mask:0xf",
            f"v_max_u32_dpp v{vv}, v{vv}, v{vv} row_bcast:31 row_mask:0xc bank_mask:0xf"]


def sigmoid_f32(a, dst, src, t):
    a(f"v_mul_f32 v{t}, 0xbfb8aa3b, v{src}")
    a(f"v_exp_f32 v{t}, v{t}")
    a(f"v_add_f32 v{t}, 1.0, v{t}")
    a(f"v_rcp_f32 v{dst}, v{t}")


def rb(a, r):
    a(f"v_cvt_pk_bf16_f32 v{r}, v{r}, v{r}")
    a(f"v_and_b32 v{r}, 0xffff0000, v{r}")


def router(a):
    a.lab("ROUTER")
    a("s_setprio 3")
    X, W = 16, 52
    a("v_lshrrev_b32 v5, 3, v2")
    a("v_and_b32 v6, 7, v2")
    a("v_lshlrev_b32 v9, 4, v6")
    a("v_mul_u32_u24 v8, 1152, v5")
    a("s_mul_i32 s8, s2, 9216")
    a("v_add3_u32 v8, v8, v9, s8")
    a("v_lshlrev_b32 v7, 4, v2")
    a("v_min_u32 v10, 7, v2")
    a("v_lshlrev_b32 v10, 4, v10")
    a(f"s_mov_b32 m0, {XB}")
    a("s_waitcnt lgkmcnt(0)")
    a.fine(7)
    a(f"s_load_dword s10, {sr(P_WS,2)}, {WS_BASE}")
    for i in range(9):
        if i:
            a(f"s_mov_b32 m0, {XB+896*i}")
        a(f"global_load_lds_dwordx4 v8, {sr(P_U,2)} offset:{128*i}")
    a(f"s_mov_b32 m0, {GW}")
    a(f"global_load_lds_dwordx4 v7, {sr(P_GW,2)}")
    a(f"global_load_lds_dwordx4 v10, {sr(P_GW,2)} offset:1024")
    for i in range(9):
        a(f"global_load_dwordx4 {vr(W+4*i,4)}, v9, {sr(P_WR,2)} offset:{128*i}")
    a("s_barrier")
    a(f"v_add_u32 v7, {XB}, v7")
    a("s_lshl_b32 s8, s2, 5")
    a("v_lshl_add_u32 v15, v4, 3, s8")
    a("s_mov_b32 s11, 0xffff")
    for j in range(4):
        a(f"v_mov_b32 v{8+j}, 0")
    a("s_waitcnt lgkmcnt(0)")
    a.fine(8)
    a("s_add_u32 s10, s10, 1")
    a("s_addc_u32 s10, s10, 0")
    a("v_mov_b32 v14, s10")
    a("v_mov_b32 v13, s10")
    a("s_waitcnt vmcnt(9)")
    a.stamp(1)
    if STAMP:
        a("s_waitcnt lgkmcnt(0)")
    for i in range(9):
        a(f"ds_read_b128 {vr(X+4*i,4)}, v7 offset:{1024*i}")
    a(f"ds_write_b32 v1, v14 offset:{F_X}")
    for i in range(9):
        a(f"s_waitcnt vmcnt({8-i}) lgkmcnt({9-i})")
        for j in range(4):
            a(f"v_dot2c_f32_bf16 v{8+j}, v{X+4*i+j}, v{W+4*i+j}")
    a("v_add_f32 v8, v8, v9")
    a("v_add_f32 v10, v10, v11")
    a("v_add_f32 v8, v8, v10")
    a(f"v_add_f32_dpp v8, v8, v8 quad_perm:[1,0,3,2] {DPPF}")
    a(f"v_add_f32_dpp v8, v8, v8 quad_perm:[2,3,0,1] {DPPF}")
    a(f"v_add_f32_dpp v8, v8, v8 row_half_mirror {DPPF}")
    a("v_cvt_pk_bf16_f32 v8, v8, v8")
    a("v_ashrrev_i32 v9, 31, v8")
    a("v_or_b32 v9, 0x80008000, v9")
    a("v_xor_b32 v8, v8, v9")
    a(f"v_mov_b32_dpp v9, v8 row_ror:8 {DPPF}")
    a("s_mov_b32 exec_lo, 0x00010001")
    a("s_mov_b32 exec_hi, 0x00010001")
    a("v_bfi_b32 v12, s11, v8, v9")
    a(f"global_store_dwordx2 v15, v[12:13], {sr(P_WS,2)} sc1")
    a("s_mov_b64 exec, -1")
    a(f"ds_write_b32 v1, v14 offset:{F_NONCE}")
    a.stamp(2)
    a(f"s_cmp_ge_u32 s5, {NJH}")
    a("s_cbranch_scc1 C_IO")
    a(f"s_cmp_lt_u32 s5, {NJF}")
    a("s_cbranch_scc1 SELECT")
    a.end()


def gate(a):
    a.lab("GATE")
    X, W = 16, 34
    a("v_lshlrev_b32 v6, 3, v2")
    a("s_lshl_b32 s8, s12, 9")
    a(f"s_add_u32 s8, s8, {XB}")
    a("v_add_u32 v5, s8, v6")
    a("v_lshlrev_b32 v6, 3, v3")
    a(f"v_add_u32 v6, {GW}, v6")
    a("s_lshl_b32 s8, s2, 1")
    a("s_add_u32 s8, s8, s12")
    a("v_mov_b32 v8, 0")
    a("v_mov_b32 v9, 0")
    a("v_mov_b32 v10, 0x3f803f80")
    a("s_lshl_b32 s8, s8, 4")
    a(f"s_add_u32 s8, s8, {WS_G}")
    a("v_lshrrev_b32 v7, 5, v2")
    a("v_lshl_add_u32 v7, v7, 3, s8")
    a("s_barrier")
    a.spin(F_X, 0, 13, op="lg", sleep=1)
    a.auto(True)
    for i in range(9):
        a(f"ds_read_b64 {vr(X+2*i,2)}, v5 offset:{1024*i}")
        a(f"ds_read_b64 {vr(W+2*i,2)}, v6 offset:{128*i}")
    for i in range(9):
        for j in range(2):
            x, w, t = X + 2 * i + j, W + 2 * i + j, 52 + 4 * j
            a(f"v_lshlrev_b32 v{t}, 16, v{x}")
            a(f"v_and_b32 v{t+1}, 0xffff0000, v{x}")
            a(f"v_lshlrev_b32 v{t+2}, 16, v{w}")
            a(f"v_and_b32 v{t+3}, 0xffff0000, v{w}")
            a(f"v_mul_f32 v{t}, v{t}, v{t+2}")
            a(f"v_mul_f32 v{t+1}, v{t+1}, v{t+3}")
            a(f"v_cvt_pk_bf16_f32 v{t}, v{t}, v{t+1}")
            a(f"v_dot2c_f32_bf16 v{8+j}, v{t}, v10")
    a.auto(False)
    a.signal(F_GD, 11)
    a("v_add_f32 v8, v8, v9")
    for r in (8, 4, 2, 1):
        a(f"v_add_f32_dpp v8, v8, v8 row_ror:{r} {DPPF}")
    rb(a, 8)
    sigmoid_f32(a, 8, 8, 9)
    a("v_cvt_pk_bf16_f32 v8, v8, v8")
    a("s_mov_b32 s11, 0xffff")
    a("v_mov_b32_dpp v9, v8 row_bcast:15 row_mask:0xa bank_mask:0xf")
    a("v_bfi_b32 v12, s11, v9, v8")
    a("s_mov_b32 exec_lo, 0x00010000")
    a("s_mov_b32 exec_hi, 0x00010000")
    a(f"global_store_dwordx2 v7, v[12:13], {sr(P_WS,2)} sc1")
    a("s_mov_b64 exec, -1")
    a.stamp(1)
    a(f"s_cmp_lt_u32 s5, {NJF}")
    a("s_cbranch_scc1 F_COMP2")
    a(f"s_cmp_ge_u32 s5, {NJH}")
    a("s_cbranch_scc1 C_IO")
    a.end()


def prefetch(a, n, stride, hold):
    a("v_mul_u32_u24 v5, 57, v2")
    a("v_lshrrev_b32 v5, 9, v5")
    a("v_mul_u32_u24 v6, 9, v5")
    a("v_sub_u32 v6, v2, v6")
    a("v_mul_u32_u24 v5, 9216, v5")
    a("v_lshl_add_u32 v5, v6, 7, v5")
    a("s_mul_i32 s8, s4, 1152")
    a("v_add_u32 v5, s8, v5")
    a("s_mul_i32 s8, s4, 663552")
    a(f"s_sub_u32 s8, s8, {166*8192}")
    a("v_lshl_add_u32 v6, v2, 7, s8")
    a("s_waitcnt lgkmcnt(0)")
    a("s_bitcmp1_b32 s12, 0")
    a(f"s_cselect_b32 s52, s{P_WU}, s{P_WG}")
    a(f"s_cselect_b32 s53, s{P_WU+1}, s{P_WG+1}")
    a("s_mov_b32 s54, 5308416")
    a("s_mov_b32 s55, 0x20000")
    srd(a, 56, P_WD, 5308416)
    a("s_barrier")
    if hold:
        a.spin(F_NONCE, 0, 13, op="lg", sleep=1)
    assert stride % 2 == 0
    for k in range(n):
        l = a.uid("PF")
        if k >= PFW:
            a(f"s_waitcnt vmcnt({PFW-1})")
        a("s_cmp_ge_u32 s12, 166")
        a(f"s_cbranch_scc1 {l}")
        a("s_lshr_b32 s8, s12, 1")
        a("s_mul_i32 s8, s8, 64512")
        a("buffer_load_dword v8, v5, s[52:55], s8 offen")
        a(f"s_branch {l}_D")
        a.lab(l)
        a("s_min_u32 s8, s12, 246")
        a("s_lshl_b32 s8, s8, 13")
        a("v_add_u32 v7, s8, v6")
        a("buffer_load_dword v8, v7, s[56:59], 0 offen")
        a.lab(l + "_D")
        a(f"s_add_u32 s12, s12, {stride}")


def bulk_gate(a, tv):
    a("s_barrier")
    if HOLD:
        a.spin(F_NONCE, 0, tv, op="lg", sleep=1)


def select(a):
    a.lab("SELECT")
    SX = 52
    srd(a, SX, P_U, 2359296)
    KD, IX, KY = 16, 48, 80
    M1, M2, T1, T2, VO, VK, CH = 8, 9, 10, 11, 12, 6, 5
    a("v_lshlrev_b32 v7, 4, v2")
    a("v_add_u32 v15, 0x1000, v7")

    def polls():
        for i in range(8):
            a(f"global_load_dwordx4 {vr(KD+4*i,4)}, v{7 if i < 4 else 15}, {sr(P_WS,2)} offset:{1024*(i&3)} sc1")
    assert WS_KEY == 0
    a("v_lshlrev_b32 v8, 2, v2")
    a("v_sub_u32 v8, 2047, v8")
    for i in range(8):
        for e in range(4):
            a(f"v_subrev_u32 v{IX+4*i+e}, {256*i+e}, v8")
    a("v_lshrrev_b32 v9, 3, v2")
    a("v_and_b32 v9, 6, v9")
    a("v_xor_b32 v9, v9, v2")
    a("v_and_b32 v9, 7, v9")
    a(f"v_lshlrev_b32 v{CH}, 4, v9")
    a(f"v_mov_b32 v{VO}, 0")
    a(f"v_mov_b32 v{VK}, 0")
    a("s_mov_b32 s11, 0xffff0000")
    a.spin(F_GD, 2, 13)
    a("s_mov_b32 s9, 0")
    a("s_waitcnt vmcnt(0)")
    if SELD:
        a(f"s_sleep {SELD}")
    a.lab("SEL_POLL")
    polls()
    for i in range(8):
        a(f"s_waitcnt vmcnt({7-i})")
        if i == 0:
            a(f"v_xor_b32 v13, v{KD+1}, v14")
        else:
            a(f"v_bitop3_b32 v13, v13, v{KD+4*i+1}, v14 bitop3:0xf6")
        a(f"v_bitop3_b32 v13, v13, v{KD+4*i+3}, v14 bitop3:0xf6")
    a("v_cmp_ne_u32 vcc, 0, v13")
    a("s_add_u32 s9, s9, 1")
    a("s_cmp_eq_u64 vcc, 0")
    a("s_cbranch_scc1 SEL_GOT")
    a(f"s_cmp_lt_u32 s9, {SPIN}")
    a("s_cbranch_scc1 SEL_POLL")
    a.lab("SEL_GOT")
    if STAMP:
        a("s_mov_b32 s94, s9")
    a.stamp(6)
    for i in range(8):
        for h in range(2):
            a(f"v_lshl_or_b32 v{KY+4*i+2*h}, v{KD+4*i+2*h}, 16, v{IX+4*i+2*h}")
            a(f"v_and_or_b32 v{KY+4*i+2*h+1}, v{KD+4*i+2*h}, s11, v{IX+4*i+2*h+1}")
        ks = [KY + 4 * i + e for e in range(4)]
        if i == 0:
            a(f"v_min_u32 v{M2}, v{ks[0]}, v{ks[1]}")
            a(f"v_max_u32 v{M1}, v{ks[0]}, v{ks[1]}")
            ks = ks[2:]
        for k in ks:
            a(f"v_med3_u32 v{M2}, v{M1}, v{M2}, v{k}")
            a(f"v_max_u32 v{M1}, v{M1}, v{k}")
    a.stamp(3)

    def place(r):
        lo, hi = ((0xff << (8 * r)) & 0xffffffff, (0xff << (8 * r)) >> 32)
        return ["s_and_b32 s13, s12, 0x7ff", "s_sub_u32 s13, 2047, s13", "s_mul_i32 s13, s13, 1152",
                [f"s_mov_b32 exec_lo, {lo:#x}", f"s_mov_b32 exec_hi, {hi:#x}",
                 f"v_add_u32 v{VO}, s13, v{CH}", f"v_mov_b32 v{VK}, s12", "s_mov_b64 exec, -1"]]
    for r in range(8):
        if r == 0:
            a(f"v_mov_b32 v{T1}, v{M1}")
            fill = []
        else:
            a(f"v_subrev_u32 v{T1}, s12, v{M1}")
            a(f"v_subrev_u32 v{T2}, s12, v{M2}")
            a(f"v_max_u32 v{T1}, v{T1}, v{T2}")
            p = place(r - 1)
            fill = [p[0:2], [p[2]], p[3]]
        for st in wave_max_steps(T1):
            for x in (fill.pop(0) if fill else []):
                a(x)
            a(st)
        a(f"v_readlane_b32 s8, v{T1}, 63")
        a("s_add_u32 s12, s12, s8" if r else "s_mov_b32 s12, s8")
    p = place(7)
    for x in p[:3] + p[3]:
        a(x)
    a("s_mov_b32 s14, 0")
    a.lab("SEL_GATHER")
    for b in range(9):
        a(f"s_mov_b32 m0, {XB + 896*b}")
        a(f"buffer_load_dwordx4 v{VO}, {sr(SX,4)}, 0 offen offset:{128*b} lds")
    a.stamp(4)
    a("s_cmp_lg_u32 s14, 0")
    a("s_cbranch_scc1 SEL_OK")
    TK = KD
    for k in range(32):
        a(f"v_sub_u32 v{TK+k}, v{KY+k}, v{M2}")

    def tree():
        for j in range(10):
            a(f"v_max3_u32 v{TK+3*j}, v{TK+3*j}, v{TK+3*j+1}, v{TK+3*j+2}")
        a(f"v_max3_u32 v{TK}, v{TK}, v{TK+3}, v{TK+6}")
        a(f"v_max3_u32 v{TK+9}, v{TK+9}, v{TK+12}, v{TK+15}")
        a(f"v_max3_u32 v{TK+18}, v{TK+18}, v{TK+21}, v{TK+24}")
        a(f"v_max3_u32 v{TK+27}, v{TK+27}, v{TK+30}, v{TK+31}")
        a(f"v_max3_u32 v{TK}, v{TK}, v{TK+9}, v{TK+18}")
        a(f"v_max_u32 v{TK}, v{TK}, v{TK+27}")
    tree()
    a(f"v_add_u32 v{TK}, v{TK}, v{M2}")
    a(f"v_cmp_lt_u32 vcc, s12, v{TK}")
    if E("FORCESLOW"):
        a("s_mov_b64 vcc, 1")
    a("s_cmp_eq_u64 vcc, 0")
    a("s_cbranch_scc1 SEL_OK")
    a("s_waitcnt vmcnt(0)")
    a("s_mov_b32 s12, 0")
    a("s_mov_b64 s[56:57], 0xff")
    a.lab("SEL_SLOW")
    for k in range(32):
        a(f"v_subrev_u32 v{TK+k}, s12, v{KY+k}")
    tree()
    for st in wave_max_steps(TK):
        a(st)
    a(f"v_readlane_b32 s8, v{TK}, 63")
    a("s_add_u32 s12, s12, s8")
    for x in place(0)[:3]:
        a(x)
    a("s_mov_b64 exec, s[56:57]")
    a(f"v_add_u32 v{VO}, s13, v{CH}")
    a(f"v_mov_b32 v{VK}, s12")
    a("s_mov_b64 exec, -1")
    a("s_lshl_b64 s[56:57], s[56:57], 8")
    a("s_add_u32 s14, s14, 1")
    a("s_cmp_lt_u32 s14, 8")
    a("s_cbranch_scc1 SEL_SLOW")
    a("s_branch SEL_GATHER")
    a.lab("SEL_OK")
    a("s_cmp_lg_u32 s2, 0")
    a("s_cbranch_scc1 SEL_NOPUB")
    a(f"v_mov_b32 v{VK+1}, v14")
    a(f"v_add_u32 v8, {WS_SEL}, v2")
    a("s_mov_b32 exec_lo, 0x01010101")
    a("s_mov_b32 exec_hi, 0x01010101")
    a(f"global_store_dwordx2 v8, {vr(VK,2)}, {sr(P_WS,2)} sc1")
    a("s_mov_b64 exec, 1")
    a(f"global_store_dword v8, v14, {sr(P_WS,2)} offset:{WS_BASE-WS_SEL} sc1")
    a("s_mov_b64 exec, -1")
    a("s_waitcnt vmcnt(2)")
    a("s_branch SEL_END")
    a.lab("SEL_NOPUB")
    a("s_waitcnt vmcnt(0)")
    a.lab("SEL_END")
    a.stamp(5)
    a("s_barrier")
    a.end()


def ffn_loader(a):
    a.lab("F_LOAD")
    SG, SU, SD = 52, 56, 60
    a("s_sub_u32 s12, s3, 9")
    a("v_lshrrev_b32 v5, 3, v2")
    a("v_bfe_u32 v6, v2, 4, 1")
    a("v_xor_b32 v6, v6, v2")
    a("v_and_b32 v6, 7, v6")
    a("s_movk_i32 s8, 9216")
    a("v_mul_lo_u32 v7, v5, s8")
    a("v_lshl_add_u32 v8, v6, 4, v7")
    a("v_xor_b32 v9, 32, v8")
    a("v_xor_b32 v10, 64, v8")
    a("v_xor_b32 v11, 96, v8")
    a("v_bfe_u32 v6, v2, 4, 1")
    a("v_lshlrev_b32 v6, 1, v6")
    a("v_xor_b32 v6, v6, v2")
    a("v_and_b32 v6, 7, v6")
    a("v_mul_u32_u24 v7, 1152, v5")
    a("v_lshl_add_u32 v12, v6, 4, v7")
    a("v_xor_b32 v13, 64, v12")
    a("s_mul_i32 s13, s12, 147456")
    a("s_lshl_b32 s8, s7, 7")
    a("s_add_u32 s13, s13, s8")
    a("s_mul_i32 s14, s12, 24576")
    a(f"s_add_u32 s14, s14, {WA}")
    a("s_lshl_b32 s15, s12, 12")
    a(f"s_add_u32 s15, s15, {WA}")
    a("s_waitcnt lgkmcnt(0)")
    srd(a, SG, P_WG, 5308416)
    srd(a, SU, P_WU, 5308416)
    srd(a, SD, P_WD, 5308416)
    bulk_gate(a, 14)
    n = 0
    for reg in range(2):
        for R in range(12):
            for mu in range(2):
                if n >= WIN_F:
                    a(f"s_waitcnt vmcnt({WIN_F-1})")
                if n == WIN_F:
                    a.stamp(6)
                if n == 12 + WIN_F - 1:
                    a.stamp(7)
                if n == 36 + WIN_F - 1:
                    a.stamp(8)
                if n == 24 + WIN_F - 1:
                    a.signal(F_A, 14)
                    a.stamp(1)
                a(f"s_add_u32 m0, s15, {reg*73728 + ((R>>1)*6 + (R&1))*2048 + mu*1024}")
                if not NOW:
                    a(f"buffer_load_dwordx4 v{8+2*mu+(R&1)}, {sr(SU if mu else SG,4)}, s13 offen lds")
                n += 1
            a(f"s_add_u32 s13, s13, {73728*5 if R&1 else 73728}")
    a("s_mul_i32 s13, s7, 73728")
    a("s_mul_i32 s8, s12, 384")
    a("s_add_u32 s13, s13, s8")
    a.spin(F_AC, 8, 14)
    a.stamp(2)
    for b in range(3):
        for R in range(8):
            a(f"s_waitcnt vmcnt({WIN_F-1})")
            if n == 48 + WIN_F - 1:
                a.signal(F_B, 14)
                a.stamp(3)
            a(f"s_add_u32 m0, s14, {b*8192 + R*1024}")
            if not NOW:
                a(f"buffer_load_dwordx4 v{12+(R&1)}, {sr(SD,4)}, s13 offen lds")
            a(f"s_add_u32 s13, s13, {9216 if R < 7 else (128 - 7*9216) & 0xffffffff}")
            n += 1
    a.stamp(4)
    a("s_barrier")
    a("s_waitcnt vmcnt(0)")
    a.stamp(5)
    a("s_barrier")
    a.end()


def ffn_comp(a):
    a.lab("F_COMP")
    a("s_barrier")
    a.lab("F_COMP2")
    WF, XF, DF, AC = 16, 88, 16, 120
    a("v_lshrrev_b32 v5, 2, v3")
    a("v_bfe_u32 v6, v3, 1, 1")
    a("v_bfe_u32 v7, v3, 3, 1")
    a("v_and_b32 v8, 1, v4")
    a("v_lshl_or_b32 v7, v8, 1, v7")
    a("v_lshl_or_b32 v9, v6, 2, v7")
    a("v_xor_b32 v9, s3, v9")
    a("v_lshlrev_b32 v9, 4, v9")
    a("v_lshl_add_u32 v9, v5, 7, v9")
    a("v_lshl_add_u32 v9, v6, 10, v9")
    a("v_lshl_add_u32 v9, v4, 11, v9")
    a("v_and_b32 v8, 1, v3")
    a("v_lshl_add_u32 v9, v8, 3, v9")
    a(f"v_add_u32 v10, {WA+32768}, v9")
    a(f"v_add_u32 v11, {WB}, v9")
    a(f"v_add_u32 v12, {WB+32768}, v9")
    a("s_and_b32 s12, s3, 3")
    a("v_xor_b32 v13, s12, v7")
    a("v_lshlrev_b32 v13, 5, v13")
    a("v_lshl_add_u32 v13, v5, 7, v13")
    a("v_lshl_add_u32 v13, v4, 10, v13")
    a("v_and_b32 v8, 3, v3")
    a("v_lshl_add_u32 v13, v8, 3, v13")
    a("s_lshr_b32 s13, s3, 2")
    a("s_lshl_b32 s13, s13, 13")
    a("v_add_u32 v13, s13, v13")
    a(f"v_add_u32 v14, {WA+32768}, v13")
    a("v_and_b32 v5, 7, v3")
    a("v_and_b32 v6, 6, v3")
    a("v_xor_b32 v6, v6, v4")
    a("v_lshlrev_b32 v6, 4, v6")
    a("v_lshl_add_u32 v6, v5, 7, v6")
    a(f"v_add_u32 v15, {XB}, v6")
    a("v_xor_b32 v140, 64, v15")
    a("v_and_b32 v6, 1, v4")
    a("v_lshlrev_b32 v6, 2, v6")
    a("v_lshrrev_b32 v7, 1, v4")
    a("v_add_u32 v6, v6, v7")
    a("v_bfe_u32 v7, v3, 3, 1")
    a("v_lshl_add_u32 v6, v7, 1, v6")
    a("s_lshl_b32 s12, s3, 3")
    a("v_add_lshl_u32 v6, v6, s12, 1")
    a(f"v_mul_u32_u24 v7, {HS}, v5")
    a(f"v_add_u32 v7, {HB}, v7")
    a("v_add_u32 v141, v6, v7")
    a("v_lshl_add_u32 v142, v4, 4, v7")
    a("s_lshl_b32 s12, s3, 2")
    a("v_add_u32 v6, s12, v4")
    a("v_mul_u32_u24 v6, 9216, v6")
    a("s_lshl_b32 s12, s7, 7")
    a(f"s_add_u32 s12, s12, {WS_MB}")
    a("v_lshl_add_u32 v7, v3, 4, s12")
    a("v_add_u32 v143, v6, v7")
    a("s_waitcnt lgkmcnt(0)")
    srd(a, 52, P_WS, WS_SIZE)
    for reg in range(2):
        a.spin(F_A if reg == 0 else F_B, 3, 8, sleep=E("CSL", 1))
        a.stamp(2 + reg)
        for s in range(9):
            base = 9 + 2 * reg + (1 if s >= 4 else 0)
            off = (s - 4 if s >= 4 else s) * 8192 + (WA if base == 9 else 0)
            r = WF + 4 * (9 * reg + s)
            a(f"ds_read_b64_tr_b16 {vr(r,2)}, v{base} offset:{off}")
            a(f"ds_read_b64_tr_b16 {vr(r+2,2)}, v{base} offset:{off+512}")
        if reg == 0:
            a("s_waitcnt lgkmcnt(0)")
            a.signal(F_AC, 8)
    a("s_mov_b32 s56, 0xff00ff00")
    a("s_mov_b32 s57, 0xff00ff00")
    for j in range(4):
        a(f"s_mov_b32 s{60+j}, {0x07060500+j:#x}")
    a("s_waitcnt lgkmcnt(0)")
    a("s_barrier")
    a.stamp(4)
    a.auto(True)
    def xrd(s):
        a(f"ds_read_b128 {vr(XF+4*(s&7),4)}, v{140 if s&1 else 15} offset:{1024*(s>>1)}")
    for s in range(8):
        xrd(s)
    a(f"ds_read_b32 v144, v1 offset:{F_NONCE}")
    for s in range(18):
        a(f"v_mfma_f32_16x16x32_bf16 {vr(AC,4)}, {vr(WF+4*s,4)}, {vr(XF+4*(s&7),4)}, {vr(AC,4) if s else 0}")
        if s + 8 < 18:
            xrd(s + 8)
    a(f"v_permlane32_swap_b32 v{AC}, v{AC+1}")
    a(f"v_permlane32_swap_b32 v{AC+2}, v{AC+3}")
    a(f"v_cndmask_b32 v{AC}, v{AC}, v{AC+2}, s[56:57]")
    a(f"v_cndmask_b32 v{AC+1}, v{AC+1}, v{AC+3}, s[56:57]")
    a(f"v_cvt_pk_bf16_f32 v{AC+1}, v{AC}, v{AC+1}")
    a(f"v_lshlrev_b32 v{AC}, 16, v{AC+1}")
    a(f"v_mul_f32 v{AC+2}, 0xbfb8aa3b, v{AC}")
    a(f"v_exp_f32 v{AC+2}, v{AC+2}")
    a(f"v_and_b32 v{AC+1}, 0xffff0000, v{AC+1}")
    a(f"v_add_f32 v{AC+2}, 1.0, v{AC+2}")
    a(f"v_rcp_f32 v{AC+2}, v{AC+2}")
    a(f"v_mul_f32 v{AC}, v{AC}, v{AC+2}")
    rb(a, AC)
    a(f"v_mul_f32 v{AC}, v{AC}, v{AC+1}")
    a(f"v_cvt_pk_bf16_f32 v{AC}, v{AC}, v{AC}")
    a(f"ds_write_b16 v141, v{AC}")
    a("s_waitcnt lgkmcnt(0)")
    a.auto(False)
    a.stamp(5)
    a("s_barrier")
    a.auto(True)
    HF = XF
    for q in range(2):
        a(f"ds_read_b128 {vr(HF+4*q,4)}, v142 offset:{64*q}")

    def drd(j):
        for q in range(2):
            base, off = (13, WA + j * 16384 + q * 4096) if j < 4 else (14, 32768 + q * 4096)
            r = DF + 8 * j + 4 * q
            a(f"ds_read_b64_tr_b16 {vr(r,2)}, v{base} offset:{off}")
            a(f"ds_read_b64_tr_b16 {vr(r+2,2)}, v{base} offset:{off+512}")

    def dmm(j):
        for q in range(2):
            a(f"v_mfma_f32_16x16x32_bf16 {vr(AC+4*j,4)}, {vr(DF+8*j+4*q,4)}, {vr(HF+4*q,4)}, {vr(AC+4*j,4) if q else 0}")

    def dst(j):
        for r in range(4):
            a(f"v_perm_b32 v{AC+4*j+r}, v{AC+4*j+r}, v144, s{60+r}")
        a(f"s_mov_b32 s12, {294912*j}")
        a(f"buffer_store_dwordx4 {vr(AC+4*j,4)}, v143, s[52:55], s12 offen sc1")
    for j in range(5):
        drd(j)
    for j in range(5):
        dmm(j)
    a("s_not_b64 exec, s[56:57]")
    for j in range(4):
        dst(j)
    a.auto(False)
    a("s_cmp_ge_u32 s3, 4")
    a("s_cbranch_scc1 F_DONE")
    dst(4)
    a.lab("F_DONE")
    a("s_mov_b64 exec, -1")
    a.stamp(6)
    a.end()


def helper(a):
    a.lab("HELPER")
    if not HPN:
        a.end()
        return
    a(f"s_cmp_ge_u32 s3, {2+HPW}")
    a("s_cbranch_scc1 K_END")
    a(f"s_sub_u32 s8, s5, {NJF}")
    a(f"s_mul_i32 s8, s8, {HPW}")
    a("s_add_u32 s12, s3, s8")
    a(f"s_add_u32 s12, s12, {HPS-2}")
    prefetch(a, HPN, 5*HPW, HOLD)
    if STAMP:
        a("s_waitcnt vmcnt(0)")
        a.stamp(1)
    a.end()


DSK, EXPN = 166, 167
PA, PB, EF = 142, 146, 150


def cmul(a, d, x, y):
    a(f"v_pk_mul_f32 {vr(d,2)}, {vr(x,2)}, {vr(y,2)} op_sel:[0,0] op_sel_hi:[0,1]")
    a(f"v_pk_fma_f32 {vr(d,2)}, {vr(x,2)}, {vr(y,2)}, {vr(d,2)} op_sel:[1,1,0] op_sel_hi:[1,0,1] neg_lo:[0,1,0]")


def kgen(a):
    a.lab("C_KGEN")
    a.fine(6)
    PR = 16
    a("s_and_b32 s12, s3, 3")
    a("s_lshr_b32 s13, s3, 2")
    a("s_lshl_b32 s14, s7, 2")
    a("s_add_u32 s14, s14, s12")
    a("s_lshl_b32 s8, s14, 8")
    a("v_lshl_add_u32 v5, v2, 2, s8")
    a("s_lshl_b32 s55, s7, 3")
    a("s_setprio 2")
    a(f"s_mul_i32 s15, s3, {KTS}")
    a(f"s_add_u32 s15, s15, {KT}")
    a(f"s_mul_i32 s52, s12, {4*CS}")
    a(f"s_add_u32 s52, s52, {KC}")
    a(f"s_mul_i32 s53, s12, {US}")
    a(f"s_add_u32 s53, s53, {UP}")
    a(f"v_mul_u32_u24 v7, {TS}, v3")
    a("v_lshl_add_u32 v7, v4, 4, v7")
    a("v_add_u32 v7, s15, v7")
    a("s_mov_b32 m0, s15")
    a("s_lshl_b32 s11, s13, 4")
    a("s_sub_u32 s11, 16, s11")
    a("s_waitcnt lgkmcnt(0)")
    a.fine(7)
    a(f"s_load_dwordx2 s[58:59], {sr(P_LDT,2)}, s55")
    for k, p in enumerate([P_ARE, P_AIM, P_BRE, P_BIM, P_CRE, P_CIM]):
        a(f"global_load_dword v{PR+k}, v5, {sr(p,2)}")
    a("s_barrier")
    a("s_cmp_eq_u32 s13, 0")
    a("s_cbranch_scc1 C_SETA")
    for j in range(4):
        a(f"v_mov_b32 v{24+j}, 0")
    a("v_bfe_u32 v8, v2, 2, 2")
    a(f"v_mul_u32_u24 v8, {CS}, v8")
    a("v_and_b32 v9, 3, v2")
    a("v_lshl_add_u32 v10, v9, 4, v8")
    a("v_add_u32 v10, s52, v10")
    a("ds_write_b128 v10, v[24:27] offset:2096")
    a("v_and_b32 v9, 1, v2")
    a("v_lshl_add_u32 v10, v9, 4, v8")
    a("v_add_u32 v10, s52, v10")
    a("ds_write_b128 v10, v[24:27]")
    a("v_min_u32 v9, 29, v2")
    a("v_lshl_add_u32 v10, v9, 4, s53")
    a("ds_write_b128 v10, v[24:27] offset:4096")
    a("s_branch C_SETD")
    a.lab("C_SETA")
    a("v_lshl_add_u32 v8, v4, 3, v3")
    a("v_sub_u32 v8, 39, v8")
    a("s_mov_b32 s8, 0x3c000000")
    for P, bits, sh in ((PA, 0x7f, 19), (PB, 0x1ff, 20)):
        a(f"v_mov_b32 v10, {bits}")
        a("v_mov_b32 v11, 0")
        a("v_lshlrev_b64 v[10:11], v8, v[10:11]")
        a(f"v_alignbit_b32 v10, v11, v10, {sh}")
        for p in range(4):
            a(f"v_bfe_i32 v11, v10, {2*p}, 1")
            a(f"v_bfe_i32 v12, v10, {2*p+1}, 1")
            a("v_and_b32 v11, 0x3c00, v11")
            a(f"v_and_or_b32 v{P+p}, v12, s8, v11")
    a.lab("C_SETD")
    a.fine(8)
    a("s_waitcnt lgkmcnt(0)")
    a.auto(True)
    a("s_lshl_b32 s8, s12, 4")
    a("s_lshr_b64 s[58:59], s[58:59], s8")
    a("s_lshl_b32 s8, s58, 16")
    a("v_mov_b32 v44, s8")
    a(f"v_mul_f32 v45, {L2E:#x}, v44")
    a(f"v_mov_b32 v46, {L2E:#x}")
    a("v_fma_f32 v46, v44, v46, -v45")
    a(f"v_mov_b32 v47, {L2E_LO:#x}")
    a("v_fma_f32 v46, v44, v47, v46")
    a("v_exp_f32 v45, v45")
    a(f"v_mul_f32 v46, {LN2:#x}, v46")
    a("v_fma_f32 v45, v45, v46, v45")
    a("v_cvt_pk_bf16_f32 v45, v45, v45")
    DT, DTL, DTR = 36, 37, 38
    a(f"v_and_b32 v{DT}, 0xffff0000, v45")
    a("s_waitcnt vmcnt(0)")
    a.stamp(1)
    a("s_mov_b32 s8, 0x7fff7fff")
    for k in range(2, 6):
        a(f"v_and_b32 v{44+k}, s8, v{PR+k}")
    a("v_pk_max_u16 v46, v46, v47")
    a("v_pk_max_u16 v48, v48, v49")
    a("v_lshlrev_b32 v44, 16, v46")
    a("v_and_b32 v45, 0xffff0000, v46")
    a("v_lshlrev_b32 v46, 16, v48")
    a("v_and_b32 v47, 0xffff0000, v48")
    a("v_mul_f32 v44, v44, v46")
    a("v_mul_f32 v45, v45, v47")
    a("v_max_f32 v44, v44, v45")
    a(f"v_mul_f32 v44, v44, v{DT}")
    ZR, ZI, WR = 40, 41, 42
    fill = [f"v_lshlrev_b32 v{PR+k}, s11, v{PR+k}" for k in range(6)] + [f"v_and_b32 v{PR+k}, 0xffff0000, v{PR+k}" for k in range(6)]
    for st in wave_max_steps(44):
        a(fill.pop(0)); a(fill.pop(0))
        a(st)
    a(f"v_mul_f32 v{DTL}, {L2E:#x}, v{DT}")
    a("v_readlane_b32 s8, v44, 63")
    a(f"v_mul_f32 v{DTR}, {INV2PI:#x}, v{DT}")
    a(f"v_mul_f32 v{ZR}, v{PR}, v{DTL}")
    a(f"v_mul_f32 v{ZI}, v{PR+1}, v{DTR}")
    a("s_lshr_b32 s8, s8, 23")
    a("s_sub_u32 s8, 258, s8")
    a("s_min_u32 s8, s8, 253")
    a("s_sub_u32 s54, 127, s8")
    a("s_lshl_b32 s8, s8, 23")
    T0 = 24

    def direct(dst, c):
        if c != 1:
            a(f"v_mul_f32 v{dst}, {fbits(c):#x}, v{ZR}")
            a(f"v_mul_f32 v{dst+1}, {fbits(c):#x}, v{ZI}")
        a(f"v_exp_f32 v{T0}, v{dst if c != 1 else ZR}")
        a(f"v_fract_f32 v{dst+1}, v{dst+1 if c != 1 else ZI}")
        a(f"v_cos_f32 v{dst}, v{dst+1}")
        a(f"v_sin_f32 v{dst+1}, v{dst+1}")
        a(f"v_mul_f32 v{dst}, v{T0}, v{dst}")
        a(f"v_mul_f32 v{dst+1}, v{T0}, v{dst+1}")
    PW, R1 = 46, 44
    pc = lambda c: PW + 2 * (c - 1)
    direct(pc(1), 1)
    a(f"v_mul_f32 v{PR+2}, v{PR+2}, v{DT}")
    a(f"v_mul_f32 v{PR+3}, v{PR+3}, v{DT}")
    cmul(a, WR, PR + 4, PR + 2)
    a(f"v_mul_f32 v{WR}, s8, v{WR}")
    a(f"v_mul_f32 v{WR+1}, s8, v{WR+1}")
    OT = [26, 27, 28, 29]
    cnt = [0]

    def emit(row, x):
        o = OT[cnt[0] % 4]
        cnt[0] += 1
        a(f"v_cvt_pk_f16_f32 v{o}, v{x}, v{x+1}")
        a(f"ds_write_addtid_b32 v{o} offset:{row*TS}")
    cmul(a, pc(2), pc(1), pc(1))
    cmul(a, pc(4), pc(2), pc(2))
    Q1, QA, QB = 60, 62, 64
    cmul(a, Q1, pc(4), pc(4))
    a(f"v_mov_b32 v30, 0x3c00")
    a(f"v_xor_b32 v{Q1+1}, 0x80000000, v{Q1+1}")
    a("ds_write_addtid_b32 v30")
    emit(1, Q1)
    cur, nxt = Q1, QA
    for b in range(2, 16):
        cmul(a, nxt, cur, Q1)
        emit(b, nxt)
        cur, nxt = nxt, (QB if nxt == QA else QA)
    QF, PF, KA = 72, 88, 104
    for ks in range(4):
        a(f"ds_read_b128 {vr(QF+4*ks,4)}, v7 offset:{64*ks}")
    direct(R1, 128)
    cmul(a, pc(3), pc(2), pc(1)); cmul(a, pc(5), pc(4), pc(1)); cmul(a, pc(6), pc(3), pc(3)); cmul(a, pc(7), pc(6), pc(1))
    CH = [66, 68]
    YC = [60, 62]
    state = {"cur": WR, "k": 0, "y": 0}

    def adv():
        n = CH[state["k"] & 1]
        cmul(a, n, state["cur"], R1)
        state["cur"] = n; state["k"] += 1

    def row(r, c):
        if c == 0:
            emit(r, state["cur"])
        else:
            y = YC[state["y"] & 1]; state["y"] += 1
            cmul(a, y, state["cur"], pc(c))
            emit(r, y)

    def rd():
        for ks in range(4):
            a(f"ds_read_b128 {vr(PF+4*ks,4)}, v7 offset:{64*ks}")

    def mm(t, ks):
        a(f"v_mfma_f32_16x16x32_f16 {vr(KA+4*t,4)}, {vr(PF+4*ks,4)}, {vr(QF+4*ks,4)}, {vr(KA+4*t,4) if ks else 0}")
    for h in range(2):
        for c in range(8):
            row(8 * h + c, c)
        adv()
    rd()
    for h in range(2):
        for c in range(4):
            row(4 * h + c, 2 * c)
            if h == 1:
                mm(0, c)
        adv()
    for q in range(4):
        row(8 + 2 * q, 0); row(9 + 2 * q, 4)
        adv()
    rd()
    for q in range(9):
        row(q, 0)
        if q < 8:
            adv()
        if 4 <= q < 8:
            mm(1, q - 4)
    rd()
    a("v_lshl_add_u32 v8, v2, 4, s15")
    for ks in range(4):
        mm(2, ks)
    a.auto(False)
    a.stamp(2)
    a("s_lshl_b32 s8, s12, 2")
    a(f"s_add_u32 s8, s8, {F_PAIR}")
    a("v_mov_b32 v9, s8")
    a("s_cmp_eq_u32 s13, 0")
    a("s_cbranch_scc1 C_KA")
    for t in range(3):
        a(f"ds_write_b128 v8, {vr(KA+4*t,4)} offset:{1024*t}")
    a("s_waitcnt lgkmcnt(0)")
    a.signal("v9", 10)
    a("s_branch C_KDONE")
    a.lab("C_KA")
    a("v_lshrrev_b32 v10, 1, v4")
    a("v_and_b32 v11, 1, v4")
    a("v_lshlrev_b32 v10, 8, v10")
    a("v_lshl_add_u32 v10, v11, 3, v10")
    a("v_lshl_add_u32 v10, v3, 4, v10")
    a("v_add_u32 v10, s15, v10")
    a("v_cmp_gt_u32 vcc, 2, v4")
    a("v_lshlrev_b32 v11, 2, v3")
    a("v_lshlrev_b32 v12, 3, v3")
    a("v_cndmask_b32 v11, v11, v12, vcc")
    a("v_lshl_add_u32 v11, v4, 7, v11")
    a("v_add_u32 v11, s15, v11")
    a("v_mov_b32 v12, 64")
    a("v_cndmask_b32 v12, v12, 4, vcc")
    a("v_add_u32 v12, v12, v11")
    a("v_lshlrev_b32 v13, 1, v3")
    a("v_lshl_add_u32 v13, v4, 7, v13")
    a("v_add_u32 v13, s15, v13")
    a("v_lshlrev_b32 v14, 5, v2")
    a("v_lshlrev_b32 v15, 4, v2")
    a("v_add_u32 v15, 256, v15")
    a("v_min_u32 v14, v14, v15")
    a("v_lshlrev_b32 v15, 3, v2")
    a("v_add_u32 v15, 512, v15")
    a("v_min_u32 v14, v14, v15")
    a("v_add_u32 v14, s15, v14")
    EB = 2048
    a("v_min_u32 v15, 15, v2")
    a("v_lshl_add_u32 v15, v15, 2, s15")
    a("v_lshlrev_b32 v16, 2, v4")
    a("v_sub_u32 v16, v3, v16")
    a("v_lshl_add_u32 v16, v16, 2, s15")
    a(f"v_add_u32 v16, {EB+52}, v16")
    a("v_lshl_add_u32 v17, v2, 5, s52")
    a("s_mov_b32 s56, 0x01000100")
    a("s_mov_b32 s57, 0x03020302")
    a.spin("v9", 1, 18)
    a.auto(True)
    for t in range(3):
        a(f"ds_read_b128 {vr(PF+4*t,4)}, v8 offset:{4*KTS+1024*t}")
    for t in range(3):
        for p in range(2):
            r = 4 * t + 2 * p
            a(f"v_pk_add_f32 {vr(KA+r,2)}, {vr(KA+r,2)}, {vr(PF+r,2)}")
            a(f"v_cvt_pk_f16_f32 v{20+2*t+p}, v{KA+r}, v{KA+r+1}")
        if t == 0:
            a("ds_write_b64 v10, v[20:21]")
        elif t == 1:
            a("ds_write_b32 v11, v22 offset:512")
            a("ds_write_b32 v12, v23 offset:512")
    a("ds_write_b16 v13, v24 offset:1024")
    S = 32
    for p in range(4):
        a(f"ds_read_b64 {vr(S+2*p,2)}, v14 offset:{8*p}")
    for r in range(4):
        a(f"ds_write_b16{'_d16_hi' if r&1 else ''} v13, v{24+(r>>1)} offset:{EB+62+32*r}")
    a(f"ds_write_b32 v15, v1 offset:{EB}")
    for D in range(4):
        a(f"ds_read2_b32 {vr(EF+4*D,2)}, v16 offset0:{16*D+3} offset1:{16*D+2}")
        a(f"ds_read2_b32 {vr(EF+4*D+2,2)}, v16 offset0:{16*D+1} offset1:{16*D}")
    a("s_mov_b32 exec_lo, 0xffff0000")
    a("s_mov_b32 exec_hi, 0")
    for p in range(7, -1, -1):
        if p & 1:
            a(f"v_alignbit_b32 v{S+p}, v{S+p//2+1}, v{S+p//2}, 16")
        else:
            a(f"v_perm_b32 v{S+p}, v{S+p//2}, v{S+p//2}, s56")
    a("s_mov_b32 exec_lo, 0")
    a("s_mov_b32 exec_hi, -1")
    for p, (src, kind) in reversed(list(enumerate([(0, "l"), (0, "m"), (0, "h"), (1, "l"), (1, "l"), (1, "m"), (1, "h"), (2, "l")]))):
        if kind == "m":
            a(f"v_mov_b32 v{S+p}, v{S+src}")
        else:
            a(f"v_perm_b32 v{S+p}, v{S+src}, v{S+src}, s{56 if kind == 'l' else 57}")
    a("s_mov_b64 exec, -1")
    a(f"ds_write_b128 v17, {vr(S,4)} offset:32")
    a(f"ds_write_b128 v17, {vr(S+4,4)} offset:48")
    a(f"v_mov_b32_dpp v{S-2}, v{S+6} wave_shr:1 {DPPF} bound_ctrl:0")
    a(f"v_mov_b32_dpp v{S-1}, v{S+7} wave_shr:1 {DPPF} bound_ctrl:0")
    C1, C2, C3 = 44, 52, 60
    for p in range(8):
        a(f"v_alignbit_b32 v{C1+p}, v{S+p}, v{S+p-1}, 16")
        if p & 3 == 3:
            a(f"ds_write_b128 v17, {vr(C1+p-3,4)} offset:{CS+32+4*(p-3)}")
    for p in range(4):
        a(f"v_pk_mov_b32 {vr(C2+2*p,2)}, {vr(S+2*p-2,2)}, {vr(S+2*p,2)} op_sel:[1,0]")
        if p & 1:
            a(f"ds_write_b128 v17, {vr(C2+2*p-2,4)} offset:{2*CS+32+8*(p-1)}")
    for p in range(8):
        a(f"v_alignbit_b32 v{C3+p}, v{S+p-1}, v{S+p-2}, 16")
        if p & 3 == 3:
            a(f"ds_write_b128 v17, {vr(C3+p-3,4)} offset:{3*CS+32+4*(p-3)}")
    TL = 72
    a(f"v_alignbit_b32 v{TL}, v{S+7}, v{S+6}, 16")
    for r in (1, 2, 3, 6, 7, 8, 10, 11, 12):
        a(f"v_mov_b32 v{TL+r}, v{S+7}")
    a(f"v_and_b32 v{TL+4}, 0xffff, v{S+7}")
    a(f"v_and_b32 v{TL+9}, 0xffff, v{S+7}")
    a(f"v_mov_b32 v{TL+5}, 0")
    a(f"v_mov_b32 v{TL+13}, 0")
    a("s_mov_b32 exec_lo, 0")
    a("s_mov_b32 exec_hi, 0x80000000")
    a(f"ds_write_b128 v17, {vr(TL,4)} offset:{3*CS+64}")
    a(f"ds_write_b128 v17, {vr(TL+2,4)} offset:64")
    a(f"ds_write_b128 v17, {vr(TL+6,4)} offset:{2*CS+64}")
    a(f"ds_write_b128 v17, {vr(TL+10,4)} offset:{CS+64}")
    a("s_mov_b64 exec, -1")
    a.auto(False)
    a.lab("C_KDONE")
    a.stamp(3)
    a("s_setprio 0")
    a("v_bfe_u32 v8, v2, 2, 2")
    a("v_and_b32 v9, 3, v2")
    a("v_lshlrev_b32 v10, 2, v9")
    a("v_sub_u32 v10, v10, v8")
    a("v_lshl_add_u32 v10, v4, 4, v10")
    a("s_lshl_b32 s8, s3, 12")
    a("s_and_b32 s9, s55, 8")
    a("s_add_u32 s8, s8, s9")
    a(f"s_add_u32 s8, s8, {RAW+48}")
    a("v_lshl_add_u32 v10, v10, 4, s8")
    a("v_lshrrev_b32 v11, 2, v2")
    a("v_lshlrev_b32 v11, 3, v11")
    a("s_lshl_b32 s8, s3, 9")
    a(f"s_sub_u32 s8, {UP+4088-384}, s8")
    a("v_sub_u32 v11, s8, v11")
    a(f"v_mul_u32_u24 v12, {US}, v9")
    a("v_add_u32 v12, v12, v11")
    a("v_lshlrev_b32 v9, 2, v9")
    a("s_lshl_b32 s8, s12, 2")
    a("v_mov_b32 v14, s8")
    a("s_mov_b32 s56, 0x7fff7fff")
    a("v_and_b32 v8, 3, v3")
    a("v_sub_u32 v8, 3, v8")
    a(f"v_mul_u32_u24 v8, {CS}, v8")
    a("v_lshrrev_b32 v13, 2, v3")
    a("v_lshl_add_u32 v13, v4, 1, v13")
    a("v_lshl_add_u32 v8, v13, 3, v8")
    a("v_add3_u32 v5, v8, s52, 8")
    a("v_lshlrev_b32 v8, 1, v3")
    a("v_sub_u32 v8, v4, v8")
    a("v_lshlrev_b32 v8, 4, v8")
    a(f"s_add_u32 s8, s53, {4064-512*7}")
    a("v_add_u32 v6, s8, v8")
    a("v_lshl_add_u32 v8, v3, 2, v4")
    a(f"s_mul_i32 s8, s12, {OS}")
    a("v_lshl_add_u32 v7, v8, 3, s8")
    a("s_waitcnt lgkmcnt(0)")
    a("s_barrier")
    a.stamp(4)
    a.auto(True)
    for q in range(4):
        a(f"ds_read_b64_tr_b16 {vr(16+2*q,2)}, v10 offset:{1024*q}")
    for k in range(8):
        a(f"v_and_b32 v{24+k}, s56, v{16+k}")
        if k == 1:
            a("v_pk_max_u16 v15, v24, v25")
        elif k > 1:
            a(f"v_pk_max_u16 v15, v15, v{24+k}")
    a("v_lshlrev_b32 v13, 16, v15")
    a("v_max_u32 v15, v15, v13")
    a(f"v_max_u32_dpp v15, v15, v15 row_ror:4 {DPPF}")
    a(f"v_max_u32_dpp v15, v15, v15 row_ror:8 {DPPF}")
    a("s_mov_b32 exec_lo, 0x000f000f")
    a("s_mov_b32 exec_hi, 0x000f000f")
    a(f"ds_max_u32 v9, v15 offset:{F_MAX}")
    a("s_mov_b64 exec, -1")
    a("s_waitcnt lgkmcnt(0)")
    a("s_barrier")
    a(f"ds_read_b32 v15, v9 offset:{F_MAX}")
    a(f"ds_read_b32 v14, v14 offset:{F_MAX}")
    a("v_and_b32 v15, 0x7f800000, v15")
    a(f"v_subrev_u32 v15, {26<<23}, v15")
    a("v_max_i32 v15, 0, v15")
    a("v_alignbit_b32 v13, v15, v15, 16")
    a("v_or_b32 v15, v15, v13")
    for q in range(4):
        for p in range(2):
            x, o = 16 + 2 * q + p, 24 + 2 * q + p
            a(f"v_pk_sub_u16 v{o}, v{o}, v15 clamp")
            a(f"v_pk_lshlrev_b16 v{o}, 3, v{o} op_sel_hi:[0,1]")
            a(f"v_bfi_b32 v{o}, s56, v{o}, v{x}")
        a(f"ds_write_b64 v12, {vr(24+2*q,2)} offset:{128*(3-q)}")
    a("v_bfe_u32 v14, v14, 23, 8")
    a("v_subrev_u32 v14, 26, v14")
    a("v_max_i32 v14, 0, v14")
    a("s_sub_u32 s54, s54, 112")
    a(f"v_add_u32 v{EXPN}, s54, v14")
    a("s_waitcnt lgkmcnt(0)")
    a.auto(False)
    a("s_barrier")
    a.stamp(5)
    a("s_cmp_eq_u32 s13, 0")
    a("s_cbranch_scc1 C_G1")
    gphase(a, 0)
    a.lab("C_G1")
    gphase(a, 1)


def gphase(a, hi):
    AC = 16
    SET = [32, 76]
    t0 = 4 * hi
    a(f"s_setprio {1 if hi else 2}")
    a.auto(True)
    acc = lambda t: vr(AC + 4 * (t - t0), 4)
    afr = lambda aa, rho: SET[rho & 1] + 4 * aa
    bfr = lambda b, rho: SET[rho & 1] + 16 + 4 * (b - hi)

    def rdA(aa, rho, dst=None):
        d = afr(aa, rho) if dst is None else dst
        return [f"ds_read_b64 {vr(d,2)}, v5 offset:{64*rho+512*aa}", f"ds_read_b64 {vr(d+2,2)}, v5 offset:{64*rho+512*aa+8}"]

    def rdB(b, rho, dst=None, extra=0):
        return [f"ds_read_b128 {vr(bfr(b, rho) if dst is None else dst,4)}, v6 offset:{512*(7-b)+64*rho+extra}"]
    started = set()

    def mf(t, A, B):
        c = acc(t) if t in started else "0"
        started.add(t)
        return f"v_mfma_f32_16x16x32_f16 {acc(t)}, {vr(A,4)}, {vr(B,4)}, {c}"

    def reads(rho):
        r = rdA(0, rho)
        for b in range(t0 + 3, t0 - 1, -1):
            r += rdB(b, rho)
        for aa in range(1, 4):
            r += rdA(aa, rho)
            if t0 - aa >= 0:
                r += rdB(t0 - aa, rho)
        return r
    if hi:
        UA, UB, ZA, ZB, A32 = 76, 92, 108, 124, 8
        for b in range(4):
            for x in rdB(b, 0, UA + 4 * b) + rdB(b, 0, UB + 4 * b, 16):
                a(x)
        for x in rdA(4, 0, A32):
            a(x)
        main = []
        for b in range(4):
            main.append(f"v_mfma_f32_16x16x32_f16 {vr(ZA+4*b,4)}, {vr(UA+4*b,4)}, {vr(PA,4)}, 0")
            main.append(f"v_mfma_f32_16x16x32_f16 {vr(ZB+4*b,4)}, {vr(UB+4*b,4)}, {vr(PB,4)}, 0")
        for b in range(4):
            main.append(mf(4 + b, A32, UA + 4 * b))
            for r in range(4):
                main.append(f"v_cvt_pk_f16_f32 v{ZA+4*b+r}, v{ZA+4*b+r}, v{ZB+4*b+r}")
        for b in range(4):
            for t in range(7, 3 + b, -1):
                main.append(mf(t, ZA + 4 * b, EF + 4 * (t - b - 4)))
        for x in interleave(main, reads(0), per=1, skip=4):
            a(x)
    else:
        for x in reads(0):
            a(x)
    for rho in range(8):
        main = []
        for aa in range(4):
            ts = [t for t in range(t0 + 3, t0 - 1, -1) if t - aa >= 0]
            if rho or hi:
                main.append("@need " + ", ".join([vr(afr(aa, rho), 4)] + [vr(bfr(t - aa, rho), 4) for t in ts]))
            for t in ts:
                main.append(mf(t, afr(aa, rho), bfr(t - aa, rho)))
        nxt = reads(rho + 1) if rho < 7 else []
        if not hi and nxt:
            a(nxt.pop(0)); a(nxt.pop(0))
        for x in interleave(main, nxt, per=1):
            a(x)
    a.stamp(6)
    for k in ((3, 2, 1, 0) if hi else (0, 1, 2, 3)):
        R = AC + 4 * k
        for r in range(4):
            a(f"v_ldexp_f32 v{R+r}, v{R+r}, v{EXPN}")
        for p in range(2):
            a(f"v_cvt_pk_bf16_f32 v{R+p}, v{R+2*p}, v{R+2*p+1}")
        a(f"ds_write_b64 v7, {vr(R,2)} offset:{OP+512*(t0+k)}")
    a("s_waitcnt lgkmcnt(0)")
    a.auto(False)
    a.signal(F_O + 4 * hi, 8)
    a.stamp(7)
    if hi:
        a.end()
        return
    a("s_setprio 3")
    a("s_lshl_b32 s14, s12, 1")
    a("s_add_u32 s14, s14, 24")
    a(f"ds_read_b32 v10, v1 offset:{F_NONCE}")
    epi_setup(a)
    epi_prep(a, 2, 0, "B")
    epi_fin(a, 2, 0, 1)
    a("s_waitcnt vmcnt(0)")
    a.signal(F_ST, 8)
    a.end()


EG = 40


def epi_setup(a):
    a(f"s_load_dwordx2 s[58:59], {sr(P_DSK,2)}, s55")
    srd(a, 60, P_OUT, 2359296)
    a("v_and_b32 v11, 1, v2")
    a("v_lshlrev_b32 v11, 4, v11")
    a("v_sub_u32 v11, 16, v11")
    a("s_waitcnt lgkmcnt(0)")
    a("s_lshl_b32 s64, s58, 16")
    a("s_and_b32 s65, s58, 0xffff0000")
    a("s_lshl_b32 s66, s59, 16")
    a("s_and_b32 s67, s59, 0xffff0000")


def epi_prep(a, n, slot0, name):
    a("s_lshl_b32 s8, s14, 6")
    a("v_add_u32 v12, s8, v2")
    a("v_lshrrev_b32 v13, 1, v12")
    a("v_lshlrev_b32 v13, 3, v13")
    a(f"v_add_u32 v13, {WS_G}, v13")
    a("s_and_b32 s8, s55, 8")
    a(f"s_add_u32 s8, s8, {RAW}")
    a("v_lshl_add_u32 v12, v12, 4, s8")
    GD, XD = 16, 24
    for k in range(n):
        a(f"ds_read_b64 {vr(XD+2*k,2)}, v12 offset:{1024*k}")
    a("s_mov_b32 s9, 0")
    l = a.uid("GP" + name)
    a.lab(l)
    for k in range(n):
        a(f"global_load_dwordx2 {vr(GD+2*k,2)}, v13, {sr(P_WS,2)} offset:{256*k} sc1")
    a("s_waitcnt vmcnt(0) lgkmcnt(0)")
    a(f"v_xor_b32 v14, v{GD+1}, v10")
    for k in range(1, n):
        a(f"v_bitop3_b32 v14, v14, v{GD+2*k+1}, v10 bitop3:0xf6")
    a("v_cmp_ne_u32 vcc, 0, v14")
    a("s_add_u32 s9, s9, 1")
    a("s_cmp_eq_u64 vcc, 0")
    a(f"s_cbranch_scc1 {l}_D")
    a("s_sleep 2")
    a(f"s_cmp_lt_u32 s9, {SPIN}")
    a(f"s_cbranch_scc1 {l}")
    a.lab(l + "_D")
    for k in range(n):
        B = EG + 10 * (slot0 + k)
        X, O = 32, 36
        a(f"v_lshlrev_b32 v{B+8}, v11, v{GD+2*k}")
        a(f"v_and_b32 v{B+8}, 0xffff0000, v{B+8}")
        a(f"v_sub_f32 v{O}, 1.0, v{B+8}")
        rb(a, O)
        for p in range(2):
            a(f"v_lshlrev_b32 v{X+2*p}, 16, v{XD+2*k+p}")
            a(f"v_and_b32 v{X+2*p+1}, 0xffff0000, v{XD+2*k+p}")
        for p in range(2):
            a(f"v_pk_mul_f32 {vr(B+2*p,2)}, {vr(X+2*p,2)}, s[{64+2*p}:{65+2*p}]")
            a(f"v_pk_mul_f32 {vr(B+4+2*p,2)}, {vr(X+2*p,2)}, {vr(O,2)} op_sel_hi:[1,0]")
        for p in range(4):
            a(f"v_cvt_pk_bf16_f32 v{B+2*p+1}, v{B+2*p}, v{B+2*p+1}")
            a(f"v_lshlrev_b32 v{B+2*p}, 16, v{B+2*p+1}")
            a(f"v_and_b32 v{B+2*p+1}, 0xffff0000, v{B+2*p+1}")


def epi_fin(a, n, slot0, half):
    a("v_bfe_u32 v12, v2, 2, 2")
    a(f"v_mul_u32_u24 v12, {OS}, v12")
    a("v_and_b32 v13, 3, v2")
    a("v_lshl_add_u32 v13, v4, 2, v13")
    a("v_lshl_add_u32 v12, v13, 3, v12")
    a("s_lshl_b32 s8, s14, 7")
    a("v_add_u32 v12, s8, v12")
    a("s_lshl_b32 s8, s14, 9")
    a("v_lshl_add_u32 v13, v2, 3, s8")
    a("v_mul_u32_u24 v14, 1152, v2")
    a("v_add_u32 v14, s55, v14")
    a("s_mul_i32 s15, s14, 73728")
    a.spin(F_O + 4 * half, 4, 15, sleep=0 if half else 1)
    a.auto(True)
    Y = 16
    for k in range(n):
        a(f"ds_read_b64_tr_b16 {vr(Y+2*k,2)}, v12 offset:{OP+128*k}")
    for k in range(n):
        B = EG + 10 * (slot0 + k)
        R, y = 32, Y + 2 * k

        def unp():
            for p in range(2):
                a(f"v_lshlrev_b32 v{R+2*p}, 16, v{y+p}")
                a(f"v_and_b32 v{R+2*p+1}, 0xffff0000, v{y+p}")

        def pack(d):
            for p in range(2):
                a(f"v_cvt_pk_bf16_f32 v{d+p}, v{R+2*p}, v{R+2*p+1}")
        unp()
        for p in range(2):
            a(f"v_pk_add_f32 {vr(R+2*p,2)}, {vr(R+2*p,2)}, {vr(B+2*p,2)}")
        pack(y); unp()
        for p in range(2):
            a(f"v_pk_mul_f32 {vr(R+2*p,2)}, {vr(R+2*p,2)}, {vr(B+8,2)} op_sel_hi:[1,0]")
        pack(y); unp()
        for p in range(2):
            a(f"v_pk_add_f32 {vr(R+2*p,2)}, {vr(R+2*p,2)}, {vr(B+4+2*p,2)}")
        pack(B)
        a(f"buffer_store_dwordx2 {vr(B,2)}, v14, s[60:63], s15 offen")
        a("s_add_u32 s15, s15, 73728")
    for k in range(n):
        a(f"ds_write_b64 v13, {vr(Y+2*k,2)} offset:{GA+512*k}")
    a("s_waitcnt lgkmcnt(0)")
    a.auto(False)


def uloader(a):
    a.lab("C_LOAD")
    a("s_setprio 3")
    a(f"s_sub_u32 s12, s5, {NJH}")
    a("s_mul_i32 s12, s12, 57")
    a("s_lshr_b32 s12, s12, 5")
    a("v_mul_u32_u24 v5, 1152, v2")
    a("s_lshl_b32 s13, s7, 3")
    a("s_andn2_b32 s8, s13, 15")
    a("v_add_u32 v6, s8, v5")
    a("s_lshr_b32 s8, s13, 7")
    a("s_lshl_b32 s9, s4, 1")
    a("s_add_u32 s9, s9, 1")
    a("s_sub_u32 s8, s9, s8")
    a("s_lshl_b32 s8, s8, 7")
    a("v_add_u32 v5, s8, v5")
    a("s_waitcnt lgkmcnt(0)")
    srd(a, 52, P_U, 2359296)
    bulk_gate(a, 12)
    for i in range(32):
        if i >= WIN_U:
            a(f"s_waitcnt vmcnt({WIN_U-1})")
        if i == 16 + WIN_U - 1:
            a.stamp(2)
        a("s_mul_i32 s15, s12, 73728")
        a("s_lshl_b32 s14, s12, 10")
        a(f"s_add_u32 m0, s14, {RAW}")
        a("s_add_u32 s12, s12, 1")
        if not NOU:
            a("buffer_load_dwordx4 v6, s[52:55], s15 offen lds")
            if i < 2:
                a(f"buffer_load_dword v{8+i}, v5, s[52:55], s15 offen")
        a("s_and_b32 s12, s12, 31")
    a.lab("C_IO")
    a("s_setprio 3")
    a("s_mul_i32 s7, s4, 18")
    a("s_add_u32 s7, s7, s5")
    a(f"s_sub_u32 s7, s7, {NJH}")
    a("s_lshl_b32 s55, s7, 3")
    a("s_sub_u32 s12, s3, 8")
    epi_setup(a)
    a.spin(F_X, 0, 10, op="lg")
    a("s_waitcnt vmcnt(0)")
    if STAMP:
        a("s_cmp_lg_u32 s3, 11")
        a("s_cbranch_scc1 C_ULD2")
        a.stamp(1)
        a.lab("C_ULD2")
    a("s_barrier")
    a("s_barrier")
    a("s_barrier")
    a.stamp(3)
    a("s_lshl_b32 s14, s12, 2")
    epi_prep(a, 4, 0, "I")
    a.stamp(4)
    a("s_lshl_b32 s14, s12, 2")
    epi_fin(a, 4, 0, 0)
    a.stamp(5)
    a("s_lshl_b32 s14, s12, 1")
    a("s_add_u32 s14, s14, 16")
    epi_prep(a, 2, 4, "J")
    a("s_cmp_eq_u32 s3, 11")
    a("s_cbranch_scc1 C_FIN")
    epi_fin(a, 2, 4, 1)
    a.stamp(6)
    a("s_waitcnt vmcnt(0)")
    a.signal(F_ST, 8)
    a.end()
    a.lab("C_FIN")
    Z = 104
    a("v_and_b32 v5, 7, v2")
    a("v_lshlrev_b32 v5, 3, v5")
    a(f"v_add_u32 v5, {WS_SEL}, v5")
    a("s_mov_b32 s9, 0")
    a.lab("C_SPOLL")
    a(f"global_load_dwordx2 v[16:17], v5, {sr(P_WS,2)} sc1")
    a("s_waitcnt vmcnt(0)")
    a("v_cmp_ne_u32 vcc, v17, v10")
    a("s_add_u32 s9, s9, 1")
    a("s_cmp_eq_u64 vcc, 0")
    a("s_cbranch_scc1 C_SOK")
    a("s_sleep 4")
    a(f"s_cmp_lt_u32 s9, {SPIN}")
    a("s_cbranch_scc1 C_SPOLL")
    a.lab("C_SOK")
    a("v_and_b32 v18, 0x7ff, v16")
    a("v_sub_u32 v18, 2047, v18")
    a("v_lshrrev_b32 v19, 1, v18")
    a("v_lshlrev_b32 v19, 3, v19")
    a(f"v_add_u32 v19, {WS_G}, v19")
    a("s_mov_b32 s9, 0")
    a.lab("C_G2POLL")
    a(f"global_load_dwordx2 v[22:23], v19, {sr(P_WS,2)} sc1")
    a("s_waitcnt vmcnt(0)")
    a("v_cmp_ne_u32 vcc, v23, v10")
    a("s_add_u32 s9, s9, 1")
    a("s_cmp_eq_u64 vcc, 0")
    a("s_cbranch_scc1 C_G2OK")
    a(f"s_cmp_lt_u32 s9, {SPIN}")
    a("s_cbranch_scc1 C_G2POLL")
    a.lab("C_G2OK")
    a("v_and_b32 v19, 1, v4")
    a("v_lshrrev_b32 v20, 1, v4")
    a("v_lshl_or_b32 v19, v19, 1, v20")
    a("v_lshlrev_b32 v19, 1, v19")
    a("s_and_b32 s8, s55, 8")
    a(f"s_add_u32 s8, s8, {RAW}")
    a("v_lshl_add_u32 v23, v18, 4, v19")
    a("v_add_u32 v23, s8, v23")
    a(f"ds_read_u16 v{Z+1}, v23")
    a("v_and_b32 v20, 0xffff0000, v16")
    a("v_ashrrev_i32 v21, 31, v20")
    a("v_not_b32 v21, v21")
    a("v_or_b32 v21, 0x80000000, v21")
    a("v_and_b32 v21, 0xffff0000, v21")
    a("v_xor_b32 v20, v20, v21")
    sigmoid_f32(a, Z, 20, 21)
    rb(a, Z)
    a("v_and_b32 v21, 1, v18")
    a("v_lshlrev_b32 v21, 4, v21")
    a("v_sub_u32 v21, 16, v21")
    a("v_lshlrev_b32 v22, v21, v22")
    a("v_and_b32 v22, 0xffff0000, v22")
    a(f"v_sub_f32 v{Z+2}, 1.0, v22")
    rb(a, Z + 2)
    a(f"v_lshl_add_u32 v{Z+3}, v18, 3, v19")
    a(f"v_mul_u32_u24 v{Z+4}, 1152, v18")
    a(f"v_add3_u32 v{Z+4}, v{Z+4}, v19, s55")
    a("s_mul_i32 s8, s7, 9216")
    a(f"s_add_u32 s8, s8, {WS_MB}")
    a("v_lshl_add_u32 v5, v2, 4, s8")
    a("v_add_u32 v6, 0x1000, v5")
    a("v_add_u32 v7, 0x2000, v5")
    for j in range(4):
        a(f"v_lshrrev_b32 v{Z+6+j}, {8*j}, v10")
    a("s_waitcnt lgkmcnt(0)")
    a(f"v_lshlrev_b32 v{Z+1}, 16, v{Z+1}")
    epi_fin(a, 2, 4, 1)
    a.stamp(6)
    MB = 120
    a("s_mov_b32 s9, 0")
    a.lab("C_MPOLL")
    for i in range(9):
        a(f"global_load_dwordx4 {vr(MB+4*i,4)}, v{5+(i>>2)}, {sr(P_WS,2)} offset:{1024*(i&3)} sc1")
    for i in range(9):
        a(f"s_waitcnt vmcnt({8-i})")
        for j in range(4):
            if i == 0 and j == 0:
                a(f"v_xor_b32 v26, v{MB}, v10")
            else:
                a(f"v_bitop3_b32 v26, v26, v{MB+4*i+j}, v{Z+6+j} bitop3:0xf6")
        if i:
            for p in range(2):
                a(f"v_pk_add_f32 {vr(28+2*p,2)}, {vr(28+2*p if i > 1 else MB+2*p,2)}, {vr(MB+4*i+2*p,2)}")
    a("v_and_b32 v26, 0xff, v26")
    a("v_cmp_ne_u32 vcc, 0, v26")
    a("s_add_u32 s9, s9, 1")
    a("s_cmp_eq_u64 vcc, 0")
    a("s_cbranch_scc1 C_MOK")
    a(f"s_cmp_lt_u32 s9, {SPIN}")
    a("s_cbranch_scc1 C_MPOLL")
    a.lab("C_MOK")
    a.stamp(7)
    a("v_permlane32_swap_b32 v28, v29")
    a("v_permlane32_swap_b32 v30, v31")
    a("v_add_f32 v28, v28, v29")
    a("v_add_f32 v30, v30, v31")
    a("v_permlane16_swap_b32 v28, v30")
    a("v_add_f32 v28, v28, v30")
    a(f"v_add_f32_dpp v28, v28, v28 row_ror:8 {DPPF}")
    rb(a, 28)
    a(f"v_mul_f32 v28, v28, v{Z}")
    rb(a, 28)
    a(f"v_add_f32 v28, v28, v{Z+1}")
    rb(a, 28)
    a(f"v_mul_f32 v28, v28, v{Z+2}")
    rb(a, 28)
    a.spin(F_ST, 7, 27)
    a(f"ds_read_u16 v24, v{Z+3} offset:{GA}")
    a("s_waitcnt lgkmcnt(0)")
    a("v_lshlrev_b32 v24, 16, v24")
    a("v_add_f32 v28, v28, v24")
    a("v_cvt_pk_bf16_f32 v28, v28, v28")
    a("s_mov_b32 exec_lo, 0x00ff00ff")
    a("s_mov_b32 exec_hi, 0x00ff00ff")
    a(f"global_store_short v{Z+4}, v28, {sr(P_OUT,2)}")
    a("s_mov_b64 exec, -1")
    a.stamp(8)
    a.end()


def kernel(a):
    a.raw(".p2align 8")
    a.raw(".globl k1_kernel")
    a.raw(".type k1_kernel,@function")
    a.lab("k1_kernel")
    a("s_cmp_ge_u32 s2, 256")
    a("s_cbranch_scc1 K_END")
    a("v_lshrrev_b32 v1, 6, v0")
    a("v_and_b32 v2, 63, v0")
    a("v_readfirstlane_b32 s3, v1")
    a("v_mov_b32 v1, 0")
    a("s_cmp_lg_u32 s3, 7")
    a("s_cbranch_scc1 K_NOZ")
    a("v_lshlrev_b32 v3, 2, v2")
    a("ds_write_b32 v3, v1")
    a("s_waitcnt lgkmcnt(0)")
    a.lab("K_NOZ")
    a("s_load_dwordx16 s[16:31], s[0:1], 0")
    a("s_load_dwordx16 s[32:47], s[0:1], 64")
    a("s_load_dwordx4 s[48:51], s[0:1], 128")
    if STAMP:
        for i in range(1, 10):
            a(f"s_mov_b32 s{80+2*i}, 0")
    a.stamp(0)
    a("v_and_b32 v3, 15, v2")
    a("v_lshrrev_b32 v4, 4, v2")
    a("s_and_b32 s4, s2, 7")
    a("s_lshr_b32 s5, s2, 3")
    a("s_cmp_eq_u32 s3, 8")
    a("s_cbranch_scc1 ROUTER")
    if CODEPF:
        a("s_cmp_lg_u32 s3, 10")
        a("s_cbranch_scc1 K_NOCPF")
        a(f"s_cmp_lg_u32 s5, {NJF}")
        a("s_cbranch_scc1 K_NOCPF")
        a("s_getpc_b64 s[8:9]")
        a("s_and_b32 s8, s8, 0xffffff00")
        a("v_lshlrev_b32 v8, 7, v2")
        for k in range(4):
            a(f"v_add_u32 v9, {8192*k}, v8")
            a(f"v_min_u32 v9, CODE_END-k1_kernel-4, v9")
            a(f"global_load_dword v{160+k}, v9, s[8:9]")
        a.lab("K_NOCPF")
    a(f"s_cmp_ge_u32 s5, {NJH}")
    a("s_cbranch_scc1 K_CONV")
    a("s_mul_i32 s7, s4, 9")
    a("s_add_u32 s7, s7, s5")
    a("s_mov_b32 s12, s3")
    a("s_cmp_lt_u32 s3, 2")
    a("s_cbranch_scc1 GATE")
    a(f"s_cmp_ge_u32 s5, {NJF}")
    a("s_cbranch_scc1 HELPER")
    a("s_cmp_lt_u32 s3, 8")
    a("s_cbranch_scc1 F_COMP")
    a("s_branch F_LOAD")
    a.lab("K_CONV")
    a("s_mul_i32 s7, s4, 18")
    a("s_add_u32 s7, s7, s5")
    a(f"s_sub_u32 s7, s7, {NJH}")
    a("s_cmp_lt_u32 s3, 8")
    a("s_cbranch_scc1 C_KGEN")
    a("s_sub_u32 s12, s3, 9")
    a("s_cmp_lt_u32 s3, 11")
    a("s_cbranch_scc1 GATE")
    uloader(a)
    router(a)
    gate(a)
    select(a)
    ffn_loader(a)
    ffn_comp(a)
    helper(a)
    kgen(a)
    if STAMP:
        a.lab("STAMP_OUT")
        a("s_memrealtime s[98:99]")
        a("s_waitcnt lgkmcnt(0)")
        a("s_lshl_b32 s8, s2, 4")
        a("s_add_u32 s8, s8, s3")
        a("s_lshl_b32 s8, s8, 6")
        a(f"s_add_u32 s8, s8, {WS_STAMP}")
        a("v_mov_b32 v5, s8")
        for i in range(10):
            a(f"v_mov_b32 v6, s{80+2*i}")
            a(f"global_store_dword v5, v6, {sr(P_WS,2)} offset:{4*i}")
    a.lab("K_END")
    a("s_endpgm")
    a.lab("CODE_END")


def main():
    ref = open(os.path.join(HERE, NAME + ".s.ref")).read().splitlines()
    head = [l for l in ref if l.startswith(";") and "@launch" not in l and "Override" not in l and "grid=ceil" not in l]
    a = G()
    kernel(a)
    out = head + [
        f"; @launch kernel=k1_kernel grid=(256,1,1) block=(768,1,1) lds={LDS}",
        '.amdgcn_target "amdgcn-amd-amdhsa--gfx950"',
        ".text",
    ] + a.finish() + [
        '.section .rodata,"a"',
        ".p2align 6",
        ".amdhsa_kernel k1_kernel",
        "  .amdhsa_next_free_vgpr 168",
        "  .amdhsa_next_free_sgpr 102",
        "  .amdhsa_accum_offset 168",
        "  .amdhsa_group_segment_fixed_size 0",
        "  .amdhsa_kernarg_size 144",
        "  .amdhsa_user_sgpr_count 2",
        "  .amdhsa_user_sgpr_kernarg_segment_ptr 1",
        "  .amdhsa_system_sgpr_workgroup_id_x 1",
        ".end_amdhsa_kernel",
    ]
    path = sys.argv[1] if len(sys.argv) > 1 else os.path.join(HERE, NAME + ".s")
    open(path, "w").write("\n".join(out) + "\n")


if __name__ == "__main__":
    main()
```

```python
import sys, os
from asmlib import *

NAME = "gated_mix__ssm_conv_s4__moe_arch_mod__prompt"
HERE = os.path.dirname(os.path.abspath(__file__))
E = lambda k, d=0: int(os.environ.get(k, d))
STAMP = E("STAMP")
PROBE = os.environ.get("PROBE", "")
CODEPF = E("CODEPF", 1)
SELD = E("SELD", 18)
UD = E("UD", 0)
SPB = E("SPB", 0)
SPW = E("SPW", 4)
C3 = E("C3", 28)
HSB = E("HSB", 0)
WNT = os.environ.get("WNT", "")
POLLF = os.environ.get("POLLF", "sc1").replace("_", " ")
PUBF = os.environ.get("PUBF", "sc1").replace("_", " ")
PFN = E("PFN", 0)
PFS = E("PFS", 8)
PFW = E("PFW", 1)
HPN = E("HPN", 4)
HPS = E("HPS", 43)
HPW = E("HPW", 4)
PSTEP = 5 * HPW // 2
BST = E("BST", 31)
BSN = E("BSN", 5)
BSS = E("BSS", 0)
WIN_U = E("WIN_U", 5)
WIN_F = E("WIN_F", 10)
HELP = E("HELP", 1)
DUMP = E("DUMP")
HOLD = E("HOLD")
FINE = E("FINE")
NOU = E("NOU")
NOW = E("NOW")

WS_KEY, WS_G, WS_SEL, WS_BASE, WS_MB = 0, 8192, 16384, 16640, 32768
WS_UT = 8 << 20
WS_STAMP = 4 << 20
WS_SIZE = 0x10000000

LDS = 163840
F_NONCE, F_PAIR, F_ST, F_I, F_K, F_H, F_O = 0, 16, 40, 48, 64, 80, 96
F_L, F_D, F_AC, F_XR, F_HR = 16, 40, 48, 84, 88
KT = 256
KTS = 4608
TS = 288
OS = 4160
KC = KT + 8 * KTS
CS = 2240
UP = KC + 16 * CS
US = 4672
OM = UP + 4 * US
OP = OM + 8192
assert OP + 4 * OS <= 147712 and OP % 16 == 0
WA = 256
WB = WA + 73728
XB = WB + 73728
HB = XB + 9216
HS = 144
GW = HB + 8 * HS
assert GW + 2048 <= LDS and GW % 16 == 0
F_X, F_GD, F_RI = 8, 12, 4

L2E = 0x3fb8aa3b
L2E_LO = 0x32a57060
LN2 = 0x3f317218
INV2PI = 0x3e22f983

P_U, P_ARE, P_AIM, P_BRE, P_BIM, P_CRE, P_CIM, P_LDT = 16, 18, 20, 22, 24, 26, 28, 30
P_DSK, P_BX, P_WR, P_WG, P_WU, P_WD, P_GW, P_OUT = 32, 34, 36, 38, 40, 42, 44, 46
P_DBG, P_WS = 48, 50
NJF, NJH = 9, 14
SPIN = 0x20000

DPPF = "row_mask:0xf bank_mask:0xf"


class G(Asm):
    nlab = 0

    def stamp(s, i):
        if PROBE:
            import inspect
            fn = inspect.stack()[1].function
            if fn == "pre":
                fn = "ffn_loader"
            if f"{fn}:{i}" == PROBE:
                s("s_memrealtime s[98:99]")
        if STAMP and not (FINE and i >= 6):
            s(f"s_memrealtime s[{80+2*i}:{81+2*i}]")

    def fine(s, i):
        if STAMP and FINE:
            s(f"s_memrealtime s[{80+2*i}:{81+2*i}]")

    def b0(s, wait=None):
        if E("OLDB0"):
            s("s_barrier")
        elif wait is not None:
            s.spin(F_RI, 1, wait)

    def end(s):
        s("s_branch STAMP_OUT" if STAMP else "s_branch PADTAIL" if PROBE else "s_endpgm")

    def uid(s, p):
        G.nlab += 1
        return f"{p}_{G.nlab}"

    def spin(s, off, target, tv, sleep=0, op="ge", prio=None):
        l = s.uid("SP")
        if prio is not None:
            s(f"s_setprio {E('SPP', 3) if sleep else 0}")
        s("s_mov_b32 s9, 0")
        s.lab(l)
        s(f"ds_read_b32 v{tv}, v1 offset:{off}") if isinstance(off, int) else s(f"ds_read_b32 v{tv}, {off}")
        s("s_waitcnt lgkmcnt(0)")
        s(f"v_readfirstlane_b32 s8, v{tv}")
        s("s_add_u32 s9, s9, 1")
        s(f"s_cmp_{op}_u32 s8, {target}")
        s(f"s_cbranch_scc1 {l}_D")
        if sleep:
            s(f"s_sleep {sleep}")
        s(f"s_cmp_lt_u32 s9, {SPIN*4}")
        s(f"s_cbranch_scc1 {l}")
        s.lab(l + "_D")
        if prio is not None:
            s(f"s_setprio {prio}")

    def signal(s, off, tv):
        s(f"v_mov_b32 v{tv}, 1")
        s("s_mov_b64 exec, 1")
        s(f"ds_add_u32 v1, v{tv} offset:{off}") if isinstance(off, int) else s(f"ds_add_u32 {off}, v{tv}")
        s("s_mov_b64 exec, -1")


def srd(a, d, p, size):
    a(f"s_mov_b32 s{d}, s{p}")
    a(f"s_mov_b32 s{d+1}, s{p+1}")
    a(f"s_mov_b32 s{d+2}, {size}")
    a(f"s_mov_b32 s{d+3}, 0x20000")


def wave_max_steps(vv):
    return [f"v_max_u32_dpp v{vv}, v{vv}, v{vv} row_shr:1 {DPPF}",
            f"v_max_u32_dpp v{vv}, v{vv}, v{vv} row_shr:2 {DPPF}",
            f"v_max_u32_dpp v{vv}, v{vv}, v{vv} row_shr:4 {DPPF}",
            f"v_max_u32_dpp v{vv}, v{vv}, v{vv} row_shr:8 {DPPF}",
            f"v_max_u32_dpp v{vv}, v{vv}, v{vv} row_bcast:15 row_mask:0xa bank_mask:0xf",
            f"v_max_u32_dpp v{vv}, v{vv}, v{vv} row_bcast:31 row_mask:0xc bank_mask:0xf"]


def sigmoid_f32(a, dst, src, t):
    a(f"v_mul_f32 v{t}, 0xbfb8aa3b, v{src}")
    a(f"v_exp_f32 v{t}, v{t}")
    a(f"v_add_f32 v{t}, 1.0, v{t}")
    a(f"v_rcp_f32 v{dst}, v{t}")


def rb(a, r):
    a(f"v_cvt_pk_bf16_f32 v{r}, v{r}, v{r}")
    a(f"v_and_b32 v{r}, 0xffff0000, v{r}")


def router(a):
    a.lab("ROUTER")
    a("s_setprio 3")
    X, W = 16, 52
    a("v_lshrrev_b32 v5, 3, v2")
    a("v_and_b32 v6, 7, v2")
    a("v_lshlrev_b32 v9, 4, v6")
    a("v_mul_u32_u24 v8, 1152, v5")
    a("s_mul_i32 s8, s2, 9216")
    a("v_add3_u32 v8, v8, v9, s8")
    a("v_lshlrev_b32 v7, 4, v2")
    a("v_min_u32 v10, 7, v2")
    a("v_lshlrev_b32 v10, 4, v10")
    a(f"s_mov_b32 m0, {XB}")
    a("s_waitcnt lgkmcnt(0)")
    a.fine(7)
    a(f"s_load_dword s10, {sr(P_WS,2)}, {WS_BASE}")
    for i in range(9):
        if i:
            a(f"s_mov_b32 m0, {XB+896*i}")
        a(f"global_load_lds_dwordx4 v8, {sr(P_U,2)} offset:{128*i}")
    a(f"s_mov_b32 m0, {GW}")
    a(f"global_load_lds_dwordx4 v7, {sr(P_GW,2)}")
    a(f"global_load_lds_dwordx4 v10, {sr(P_GW,2)} offset:1024")
    for i in range(9):
        a(f"global_load_dwordx4 {vr(W+4*i,4)}, v9, {sr(P_WR,2)} offset:{128*i}")
    a.fine(6)
    a.b0()
    a("v_mov_b32 v11, 1")
    a(f"ds_write_b32 v1, v11 offset:{F_RI}")
    a(f"v_add_u32 v7, {XB}, v7")
    a("s_lshl_b32 s8, s2, 5")
    a("v_lshl_add_u32 v15, v4, 3, s8")
    a("s_mov_b32 s11, 0xffff")
    for j in range(4):
        a(f"v_mov_b32 v{8+j}, 0")
    a("s_waitcnt lgkmcnt(0)")
    a.fine(8)
    a("s_add_u32 s10, s10, 1")
    a("s_addc_u32 s10, s10, 0")
    a("v_mov_b32 v14, s10")
    a("v_mov_b32 v13, s10")
    a("s_waitcnt vmcnt(9)")
    a.stamp(1)
    if STAMP or PROBE:
        a("s_waitcnt lgkmcnt(0)")
    for i in range(9):
        a(f"ds_read_b128 {vr(X+4*i,4)}, v7 offset:{1024*i}")
    a(f"ds_write_b32 v1, v14 offset:{F_X}")
    for i in range(9):
        a(f"s_waitcnt vmcnt({8-i}) lgkmcnt({9-i})")
        for j in range(4):
            a(f"v_dot2c_f32_bf16 v{8+j}, v{X+4*i+j}, v{W+4*i+j}")
    a("v_add_f32 v8, v8, v9")
    a("v_add_f32 v10, v10, v11")
    a("v_add_f32 v8, v8, v10")
    a(f"v_add_f32_dpp v8, v8, v8 quad_perm:[1,0,3,2] {DPPF}")
    a(f"v_add_f32_dpp v8, v8, v8 quad_perm:[2,3,0,1] {DPPF}")
    a(f"v_add_f32_dpp v8, v8, v8 row_half_mirror {DPPF}")
    a("v_cvt_pk_bf16_f32 v8, v8, v8")
    a("v_ashrrev_i32 v9, 31, v8")
    a("v_or_b32 v9, 0x80008000, v9")
    a("v_xor_b32 v8, v8, v9")
    a(f"v_mov_b32_dpp v9, v8 row_ror:8 {DPPF}")
    a("s_mov_b32 exec_lo, 0x00010001")
    a("s_mov_b32 exec_hi, 0x00010001")
    a("v_bfi_b32 v12, s11, v8, v9")
    a(f"global_store_dwordx2 v15, v[12:13], {sr(P_WS,2)} {PUBF}")
    a("s_mov_b64 exec, -1")
    a(f"ds_write_b32 v1, v14 offset:{F_NONCE}")
    a.stamp(2)
    a(f"s_cmp_ge_u32 s5, {NJH}")
    a("s_cbranch_scc1 C_IO")
    a(f"s_cmp_lt_u32 s5, {NJF}")
    a("s_cbranch_scc1 SELECT")
    a.end()


def gate(a):
    a.lab("GATE")
    X, W, WL = 16, 34, 44
    a("s_lshl_b32 s8, s12, 9")
    a(f"s_add_u32 s8, s8, {XB}")
    a("v_lshl_add_u32 v5, v2, 2, s8")
    a("v_and_b32 v6, 31, v2")
    a("v_lshlrev_b32 v6, 2, v6")
    a(f"v_add_u32 v6, {GW}, v6")
    a("s_lshl_b32 s8, s2, 1")
    a("s_add_u32 s8, s8, s12")
    a("v_mov_b32 v8, 0")
    a("v_mov_b32 v9, 0")
    a("v_mov_b32 v10, 0x3f803f80")
    a("s_lshl_b32 s8, s8, 4")
    a(f"s_add_u32 s8, s8, {WS_G}")
    a("v_lshrrev_b32 v7, 5, v2")
    a("v_lshl_add_u32 v7, v7, 3, s8")
    a.b0()
    if E("GATED"):
        a(f"s_sleep {E('GATED')}")
    a.spin(F_X, 0, 13, op="lg", sleep=E("GSL", 1))
    a.auto(True)
    for i in range(5):
        a(f"ds_read2_b32 {vr(W+2*i,2)}, v6 offset0:{64*(i&3)} offset1:{64*(i&3)+32}" if i < 4 else f"ds_read_b32 v{W+8}, v6 offset:1024")
    for i in range(9):
        a(f"ds_read2st64_b32 {vr(X+2*i,2)}, v5 offset0:{4*i} offset1:{4*i+1}")
    for i in range(9):
        a(f"v_and_b32 v{WL+i}, 0xffff, v{W+i}")
        a(f"v_and_b32 v{W+i}, 0xffff0000, v{W+i}")
    for i in range(10):
        t = 56 + 4 * (i & 1)
        u = 56 + 4 * ((i - 1) & 1)
        for j in range(2):
            if i < 9:
                a(f"v_dot2_f32_bf16 v{t+2*j}, v{X+2*i+j}, v{WL+i}, 0")
                a(f"v_dot2_f32_bf16 v{t+2*j+1}, v{X+2*i+j}, v{W+i}, 0")
        if i:
            for j in range(2):
                a(f"v_cvt_pk_bf16_f32 v{u+2*j}, v{u+2*j}, v{u+2*j+1}")
            for j in range(2):
                a(f"v_dot2c_f32_bf16 v{8+j}, v{u+2*j}, v10")
    a.auto(False)
    a.signal(F_GD, 11)
    a("v_permlane16_swap_b32 v8, v9")
    a("v_add_f32 v8, v8, v9")
    for r in (8, 4, 2, 1):
        a(f"v_add_f32_dpp v8, v8, v8 row_ror:{r} {DPPF}")
    rb(a, 8)
    sigmoid_f32(a, 8, 8, 9)
    a("v_cvt_pk_bf16_f32 v8, v8, v8")
    a("s_mov_b32 s11, 0xffff")
    a("v_mov_b32 v9, v8")
    a("v_lshl_add_u32 v7, v4, 3, v7")
    a("v_permlane32_swap_b32 v8, v9")
    a("v_bfi_b32 v12, s11, v8, v9")
    a("s_mov_b64 exec, 0x00010001")
    a(f"global_store_dwordx2 v7, v[12:13], {sr(P_WS,2)} sc1")
    a("s_mov_b64 exec, -1")
    a.stamp(1)
    a(f"s_cmp_lt_u32 s5, {NJF}")
    a("s_cbranch_scc1 F_COMP2")
    a(f"s_cmp_ge_u32 s5, {NJH}")
    a("s_cbranch_scc1 C_IO")
    a.end()


def stripe_pf(a):
    a("s_mul_i32 s8, s13, 73728")
    a("s_lshl_b32 s9, s4, 7")
    a("s_add_u32 s8, s8, s9")
    a("v_mul_u32_u24 v9, 1152, v2")
    a("v_add_u32 v9, s8, v9")
    a("s_add_u32 s8, s13, 18")
    a("s_min_u32 s8, s8, 31")
    a("s_sub_u32 s8, s8, s13")
    a("s_mul_i32 s8, s8, 73728")
    a("v_add_u32 v8, s8, v9")
    return [f"global_load_dword v10, v9, {sr(P_U,2)}", f"global_load_dword v11, v9, {sr(P_U,2)} offset:128",
            f"global_load_dword v10, v8, {sr(P_U,2)}", f"global_load_dword v11, v8, {sr(P_U,2)} offset:128"]


def prefetch(a, n, hold):
    a("v_mul_u32_u24 v5, 57, v2")
    a("v_lshrrev_b32 v5, 9, v5")
    a("v_mul_u32_u24 v6, 9, v5")
    a("v_sub_u32 v6, v2, v6")
    a("s_waitcnt lgkmcnt(0)")
    a("s_cmp_eq_u32 s12, 1")
    a(f"s_cselect_b32 s52, s{P_WU}, s{P_WG}")
    a(f"s_cselect_b32 s53, s{P_WU+1}, s{P_WG+1}")
    a("s_mov_b32 s54, 5308416")
    a("s_mov_b32 s55, 0x20000")
    a("v_mul_u32_u24 v5, 9216, v5")
    a("v_lshl_add_u32 v5, v6, 7, v5")
    a("s_mul_i32 s8, s4, 1152")
    if C3:
        a(f"s_sub_u32 s14, s13, {HPS}")
        a("s_lshr_b32 s9, s52, 7")
        a("s_add_u32 s9, s9, s4")
        a("s_sub_u32 s9, 3, s9")
        a("s_and_b32 s9, s9, 7")
        a("s_lshl_b32 s15, s9, 7")
        a("s_add_u32 s15, s15, s8")
        a(f"s_mul_i32 s14, s14, {9216*C3}")
        a("s_add_u32 s15, s15, s14")
        a(f"s_add_u32 s15, s15, {9216*(7*HPS - C3*PSTEP)}")
        a("s_cmp_eq_u32 s9, 0")
        a("s_cselect_b32 s9, 1024, 0")
        a("v_and_b32 v7, 31, v2")
        a(f"v_min_u32 v7, {C3-1}, v7")
        a("v_mul_u32_u24 v7, 9216, v7")
        a("v_lshrrev_b32 v9, 5, v2")
        a("v_mul_u32_u24 v9, s9, v9")
        a("v_add_u32 v7, v7, v9")
    a("s_mul_i32 s13, s13, 64512")
    a("s_add_u32 s13, s13, s8")
    a.b0(13)
    if hold:
        a.spin(F_NONCE, 0, 13, op="lg", sleep=1)
    if C3:
        a("buffer_load_dword v8, v7, s[52:55], s15 offen")
    for k in range(n):
        if k >= PFW or (C3 and E("C3W", 1)):
            a(f"s_waitcnt vmcnt({PFW-1})")
        a("buffer_load_dword v8, v5, s[52:55], s13 offen")
        a(f"s_add_u32 s13, s13, {64512*PSTEP}")
    if E("HD"):
        a(f"s_sub_u32 s8, s5, {NJF}")
        a(f"s_mul_i32 s8, s8, {HPW}")
        a("s_add_u32 s8, s8, s3")
        a("s_sub_u32 s8, s8, 2")
        a("s_lshl_b32 s8, s8, 6")
        a("s_mul_i32 s9, s4, 663552")
        for k in range(E("HD")):
            a(f"v_add_u32 v9, s8, v2")
            a("v_min_u32 v9, 2591, v9")
            a("v_lshrrev_b32 v10, 5, v9")
            a("v_mul_u32_u24 v10, 57, v10")
            a("v_lshrrev_b32 v10, 9, v10")
            a("v_mul_u32_u24 v10, 288, v10")
            a("v_add_u32 v9, v9, v10")
            a("v_lshl_add_u32 v9, v9, 7, s9")
            a(f"s_waitcnt vmcnt({PFW-1})")
            a(f"global_load_dword v8, v9, {sr(P_WD,2)}")
            a(f"s_add_u32 s8, s8, {64*5*HPW}")


def bulk_gate(a, tv):
    a.b0(tv)
    if HOLD:
        a.spin(F_NONCE, 0, tv, op="lg", sleep=1)


def select(a):
    a.lab("SELECT")
    SX = 52
    srd(a, SX, P_U, 2359296)
    KD, IX, KY = 16, 48, 80
    M1, M2, T1, T2, VO, VK, CH = 8, 9, 10, 11, 12, 6, 5
    a("v_lshlrev_b32 v7, 4, v2")
    a("v_add_u32 v15, 0x1000, v7")

    def polls():
        for i in range(8):
            a(f"global_load_dwordx4 {vr(KD+4*i,4)}, v{7 if i < 4 else 15}, {sr(P_WS,2)} offset:{1024*(i&3)} {POLLF}")
    assert WS_KEY == 0
    a("v_lshlrev_b32 v8, 2, v2")
    a("v_sub_u32 v8, 2047, v8")
    for i in range(8):
        for e in range(4):
            a(f"v_subrev_u32 v{IX+4*i+e}, {256*i+e}, v8")
    a("v_lshrrev_b32 v9, 3, v2")
    a("v_and_b32 v9, 6, v9")
    a("v_xor_b32 v9, v9, v2")
    a("v_and_b32 v9, 7, v9")
    a(f"v_lshlrev_b32 v{CH}, 4, v9")
    a(f"v_mov_b32 v{VO}, 0")
    a(f"v_mov_b32 v{VK}, 0")
    a("s_mov_b32 s11, 0xffff0000")
    a.spin(F_GD, 2, 13)
    a("s_mov_b32 s9, 0")
    a("s_waitcnt vmcnt(0)")
    if SELD:
        a(f"s_sleep {SELD}")
    a.stamp(8)
    a.lab("SEL_POLL")
    polls()
    for i in range(8):
        a(f"s_waitcnt vmcnt({7-i})")
        if i == 0:
            a(f"v_xor_b32 v13, v{KD+1}, v14")
        else:
            a(f"v_bitop3_b32 v13, v13, v{KD+4*i+1}, v14 bitop3:0xf6")
        a(f"v_bitop3_b32 v13, v13, v{KD+4*i+3}, v14 bitop3:0xf6")
    a("v_cmp_ne_u32 vcc, 0, v13")
    a("s_add_u32 s9, s9, 1")
    a("s_cmp_eq_u64 vcc, 0")
    a("s_cbranch_scc1 SEL_GOT")
    a(f"s_cmp_lt_u32 s9, {SPIN}")
    a("s_cbranch_scc1 SEL_POLL")
    a.lab("SEL_GOT")
    if STAMP:
        a("s_mov_b32 s94, s9")
    a.stamp(6)
    for i in range(8):
        for h in range(2):
            a(f"v_lshl_or_b32 v{KY+4*i+2*h}, v{KD+4*i+2*h}, 16, v{IX+4*i+2*h}")
            a(f"v_and_or_b32 v{KY+4*i+2*h+1}, v{KD+4*i+2*h}, s11, v{IX+4*i+2*h+1}")
        ks = [KY + 4 * i + e for e in range(4)]
        if i == 0:
            a(f"v_min_u32 v{M2}, v{ks[0]}, v{ks[1]}")
            a(f"v_max_u32 v{M1}, v{ks[0]}, v{ks[1]}")
            ks = ks[2:]
        for k in ks:
            a(f"v_med3_u32 v{M2}, v{M1}, v{M2}, v{k}")
            a(f"v_max_u32 v{M1}, v{M1}, v{k}")
    a.stamp(3)

    def place(r):
        lo, hi = ((0xff << (8 * r)) & 0xffffffff, (0xff << (8 * r)) >> 32)
        return ["s_and_b32 s13, s12, 0x7ff", "s_sub_u32 s13, 2047, s13", "s_mul_i32 s13, s13, 1152",
                [f"s_mov_b32 exec_lo, {lo:#x}", f"s_mov_b32 exec_hi, {hi:#x}",
                 f"v_add_u32 v{VO}, s13, v{CH}", f"v_mov_b32 v{VK}, s12", "s_mov_b64 exec, -1"]]
    for r in range(8):
        if r == 0:
            a(f"v_mov_b32 v{T1}, v{M1}")
            fill = []
        else:
            a(f"v_subrev_u32 v{T1}, s12, v{M1}")
            a(f"v_subrev_u32 v{T2}, s12, v{M2}")
            a(f"v_max_u32 v{T1}, v{T1}, v{T2}")
            p = place(r - 1)
            fill = [p[0:2], [p[2]], p[3]]
        for st in wave_max_steps(T1):
            for x in (fill.pop(0) if fill else []):
                a(x)
            a(st)
        a(f"v_readlane_b32 s8, v{T1}, 63")
        a("s_add_u32 s12, s12, s8" if r else "s_mov_b32 s12, s8")
    p = place(7)
    for x in p[:3] + p[3]:
        a(x)
    a("s_mov_b32 s14, 0")
    a.lab("SEL_GATHER")
    for b in range(9):
        a(f"s_mov_b32 m0, {XB + 896*b}")
        a(f"buffer_load_dwordx4 v{VO}, {sr(SX,4)}, 0 offen offset:{128*b} lds")
    a.stamp(4)
    a("s_cmp_lg_u32 s14, 0")
    a("s_cbranch_scc1 SEL_OK")
    TK = KD
    for k in range(32):
        a(f"v_sub_u32 v{TK+k}, v{KY+k}, v{M2}")

    def tree():
        for j in range(10):
            a(f"v_max3_u32 v{TK+3*j}, v{TK+3*j}, v{TK+3*j+1}, v{TK+3*j+2}")
        a(f"v_max3_u32 v{TK}, v{TK}, v{TK+3}, v{TK+6}")
        a(f"v_max3_u32 v{TK+9}, v{TK+9}, v{TK+12}, v{TK+15}")
        a(f"v_max3_u32 v{TK+18}, v{TK+18}, v{TK+21}, v{TK+24}")
        a(f"v_max3_u32 v{TK+27}, v{TK+27}, v{TK+30}, v{TK+31}")
        a(f"v_max3_u32 v{TK}, v{TK}, v{TK+9}, v{TK+18}")
        a(f"v_max_u32 v{TK}, v{TK}, v{TK+27}")
    tree()
    a(f"v_add_u32 v{TK}, v{TK}, v{M2}")
    a(f"v_cmp_lt_u32 vcc, s12, v{TK}")
    if E("FORCESLOW"):
        a("s_mov_b64 vcc, 1")
    a("s_cmp_eq_u64 vcc, 0")
    a("s_cbranch_scc1 SEL_OK")
    a("s_waitcnt vmcnt(0)")
    a("s_mov_b32 s12, 0")
    a("s_mov_b64 s[56:57], 0xff")
    a.lab("SEL_SLOW")
    for k in range(32):
        a(f"v_subrev_u32 v{TK+k}, s12, v{KY+k}")
    tree()
    for st in wave_max_steps(TK):
        a(st)
    a(f"v_readlane_b32 s8, v{TK}, 63")
    a("s_add_u32 s12, s12, s8")
    for x in place(0)[:3]:
        a(x)
    a("s_mov_b64 exec, s[56:57]")
    a(f"v_add_u32 v{VO}, s13, v{CH}")
    a(f"v_mov_b32 v{VK}, s12")
    a("s_mov_b64 exec, -1")
    a("s_lshl_b64 s[56:57], s[56:57], 8")
    a("s_add_u32 s14, s14, 1")
    a("s_cmp_lt_u32 s14, 8")
    a("s_cbranch_scc1 SEL_SLOW")
    a("s_branch SEL_GATHER")
    a.lab("SEL_OK")
    a("s_cmp_lg_u32 s2, 0")
    a("s_cbranch_scc1 SEL_NOPUB")
    a(f"v_mov_b32 v{VK+1}, v14")
    a(f"v_add_u32 v8, {WS_SEL}, v2")
    a("s_mov_b32 exec_lo, 0x01010101")
    a("s_mov_b32 exec_hi, 0x01010101")
    a(f"global_store_dwordx2 v8, {vr(VK,2)}, {sr(P_WS,2)} sc1")
    a("s_mov_b64 exec, 1")
    a(f"global_store_dword v8, v14, {sr(P_WS,2)} offset:{WS_BASE-WS_SEL} sc1")
    a("s_mov_b64 exec, -1")
    a("s_waitcnt vmcnt(2)")
    a("s_branch SEL_END")
    a.lab("SEL_NOPUB")
    a("s_waitcnt vmcnt(0)")
    a.lab("SEL_END")
    a("v_mov_b32 v8, 3")
    a(f"ds_write_b32 v1, v8 offset:{F_XR}")
    a.stamp(5)
    a.end()


def ffn_loader(a):
    a.lab("F_LOAD")
    a("s_setprio 3")
    SG, SU, SD = 52, 56, 60
    a("s_sub_u32 s12, s3, 9")
    a("v_lshrrev_b32 v5, 3, v2")
    a("v_bfe_u32 v6, v2, 4, 1")
    a("v_xor_b32 v6, v6, v2")
    a("v_and_b32 v6, 7, v6")
    a("s_movk_i32 s8, 9216")
    a("v_mul_lo_u32 v7, v5, s8")
    a("v_lshl_add_u32 v8, v6, 4, v7")
    a("v_xor_b32 v9, 32, v8")
    a("v_xor_b32 v10, 64, v8")
    a("v_xor_b32 v11, 96, v8")
    a("v_bfe_u32 v6, v2, 4, 1")
    a("v_lshlrev_b32 v6, 1, v6")
    a("v_xor_b32 v6, v6, v2")
    a("v_and_b32 v6, 7, v6")
    a("v_mul_u32_u24 v7, 1152, v5")
    a("v_lshl_add_u32 v12, v6, 4, v7")
    a("v_xor_b32 v13, 64, v12")
    a("s_mul_i32 s13, s12, 294912")
    a("s_lshl_b32 s8, s7, 7")
    a("s_add_u32 s13, s13, s8")
    a("s_lshl_b32 s15, s12, 13")
    a(f"s_add_u32 s15, s15, {WA}")
    a("s_mul_i32 s14, s12, 24576")
    a(f"s_add_u32 s14, s14, {WB}")
    a("s_mul_i32 s11, s7, 73728")
    a("s_mul_i32 s8, s12, 384")
    a("s_add_u32 s11, s11, s8")
    a("s_waitcnt lgkmcnt(0)")
    srd(a, SG, P_WG, 5308416)
    srd(a, SU, P_WU, 5308416)
    srd(a, SD, P_WD, 5308416)
    bulk_gate(a, 14)
    n = 0
    sig = 0

    def pre():
        nonlocal sig
        if n >= WIN_F:
            a(f"s_waitcnt vmcnt({WIN_F-1})")
        if sig < 6 and n - WIN_F + 1 >= 8 * (sig + 1):
            a.signal(F_L + 4 * sig, 14)
            if sig in (0, 2, 5):
                a.stamp(1 + sig // 2)
            sig += 1
    for c in range(6):
        if c >= 3:
            a.spin(F_AC + 4 * (c - 3), 4, 14)
        for R in range(4):
            for mu in range(2):
                pre()
                a(f"s_add_u32 m0, s15, {(c%3)*24576 + R*2048 + mu*1024}")
                if not NOW:
                    a(f"buffer_load_dwordx4 v{8+2*mu+(R&1)}, {sr(SU if mu else SG,4)}, s13 offen {WNT} lds")
                n += 1
            a(f"s_add_u32 s13, s13, {73728 if R < 3 else 73728*9}")
    for q in range(2):
        for b in range(3):
            for R in range(4):
                pre()
                if n - WIN_F + 1 == 60:
                    a.signal(F_D, 14)
                a(f"s_add_u32 m0, s14, {b*8192 + q*4096 + R*1024}")
                if not NOW:
                    a(f"buffer_load_dwordx4 v{12+(R&1)}, {sr(SD,4)}, s11 offen {WNT} lds")
                step = 9216 if R < 3 else (128 - 3 * 9216 if b < 2 else 9216 - 256)
                a(f"s_add_u32 s11, s11, {step & 0xffffffff}")
                n += 1
    assert sig == 6 and WIN_F <= 12
    a.stamp(4)
    a("s_waitcnt vmcnt(0)")
    a.signal(F_D + 4, 14)
    a.stamp(5)
    a.end()


def ffn_comp(a):
    a.lab("F_COMP")
    a.b0()
    a.lab("F_COMP2")
    a("s_and_b32 s12, s3, 3")
    a("v_lshrrev_b32 v5, 2, v3")
    a("v_bfe_u32 v7, v3, 3, 1")
    a("v_and_b32 v13, 1, v4")
    a("v_lshl_or_b32 v14, v13, 1, v7")
    a("v_and_b32 v15, 7, v3")
    a(f"v_mul_u32_u24 v16, {HS}, v15")
    a(f"v_add_u32 v16, {HB}, v16")
    a("s_mov_b32 s56, 0xff00ff00")
    a("s_mov_b32 s57, 0xff00ff00")
    a("s_cmp_lt_u32 s3, 4")
    a("s_cbranch_scc1 F_DOWN")
    WF, AG = 24, 8
    a("v_bfe_u32 v6, v3, 1, 1")
    a("v_lshl_or_b32 v8, v6, 2, v14")
    a("v_xor_b32 v8, s12, v8")
    a("v_lshlrev_b32 v8, 4, v8")
    a("v_lshl_add_u32 v8, v5, 7, v8")
    a("v_lshl_add_u32 v8, v6, 10, v8")
    a("v_lshl_add_u32 v8, v4, 11, v8")
    a("v_and_b32 v9, 1, v3")
    a("v_lshl_add_u32 v8, v9, 3, v8")
    a("v_xor_b32 v9, 64, v8")
    a(f"v_add_u32 v10, {WA+49152}, v8")
    a(f"v_add_u32 v11, {WA+49152}, v9")
    a("v_lshlrev_b32 v6, 2, v13")
    a("v_lshrrev_b32 v5, 1, v4")
    a("v_add_u32 v6, v6, v5")
    a("v_lshl_add_u32 v6, v7, 5, v6")
    a("s_lshl_b32 s8, s12, 3")
    a("v_add_lshl_u32 v6, v6, s8, 1")
    a("v_add_u32 v5, v6, v16")
    a("v_and_b32 v6, 6, v3")
    a("v_xor_b32 v6, v6, v4")
    a("v_lshlrev_b32 v6, 4, v6")
    a("v_lshl_add_u32 v6, v15, 7, v6")
    a(f"v_add_u32 v6, {XB}, v6")
    a("v_xor_b32 v7, 64, v6")
    for c in range(6):
        a.spin(F_L + 4 * c, 3, 12, sleep=E("CSL", 1))
        if c in (2, 5):
            a.stamp(2 + c // 3)
        for s in range(3):
            for t in range(2):
                base, off = (8 + t, WA + (c % 3) * 24576 + s * 8192) if c % 3 < 2 else (10 + t, s * 8192)
                r = WF + 8 * (3 * c + s) + 4 * t
                a(f"ds_read_b64_tr_b16 {vr(r,2)}, v{base} offset:{off}")
                a(f"ds_read_b64_tr_b16 {vr(r+2,2)}, v{base} offset:{off+512}")
        if c < 3:
            a("s_waitcnt lgkmcnt(0)")
            a.signal(F_AC + 4 * c, 12)
    a("s_setprio 3")
    a.spin(F_XR, 1, 12)
    a.stamp(4)
    a.auto(True)
    xs = lambda s: 16 + 4 * s
    def xrd(s):
        a(f"ds_read_b128 {vr(xs(s),4)}, v{7 if s&1 else 6} offset:{1024*(s>>1)}")
    xrd(0); xrd(1)
    nx = 2
    for s in range(18):
        for t in range(2):
            a(f"v_mfma_f32_16x16x32_bf16 {vr(AG+4*t,4)}, {vr(WF+8*s+4*t,4)}, {vr(xs(s),4)}, {vr(AG+4*t,4) if s else 0}")
            if nx < 18 and xs(nx) + 4 <= WF + 8 * s + 4 * t + 4:
                xrd(nx); nx += 1
    a.auto(False)
    a.stamp(8)
    for r in range(4):
        a(f"v_cndmask_b32 v{AG+r}, v{AG+r}, v{AG+4+r}, s[56:57]")
    a(f"v_permlane32_swap_b32 v{AG}, v{AG+1}")
    a(f"v_permlane32_swap_b32 v{AG+2}, v{AG+3}")
    for op in ("v_cvt_pk_bf16_f32 v{u}, v{g}, v{u}", "v_lshlrev_b32 v{g}, 16, v{u}", "v_mul_f32 v{t}, 0xbfb8aa3b, v{g}", "v_exp_f32 v{t}, v{t}",
               "v_and_b32 v{u}, 0xffff0000, v{u}", "v_add_f32 v{t}, 1.0, v{t}", "v_rcp_f32 v{t}, v{t}", "v_mul_f32 v{g}, v{g}, v{t}",
               "v_cvt_pk_bf16_f32 v{g}, v{g}, v{g}", "v_and_b32 v{g}, 0xffff0000, v{g}", "v_mul_f32 v{g}, v{g}, v{u}"):
        for p in range(2):
            a(op.format(g=AG + 2 * p, u=AG + 2 * p + 1, t=AG + 4 + p))
    a(f"v_cvt_pk_bf16_f32 v{AG}, v{AG}, v{AG+2}")
    a(f"ds_write_b16 v5, v{AG}")
    a(f"ds_write_b16_d16_hi v5, v{AG} offset:4")
    a("s_waitcnt lgkmcnt(0)")
    a.stamp(5)
    a("s_barrier")
    a.end()
    a.lab("F_DOWN")
    DF, AC, HF = 24, 96, 132
    a("v_xor_b32 v8, s12, v14")
    a("v_lshlrev_b32 v8, 5, v8")
    a("v_lshl_add_u32 v8, v5, 7, v8")
    a("v_lshl_add_u32 v8, v4, 10, v8")
    a("v_and_b32 v9, 3, v3")
    a("v_lshl_add_u32 v8, v9, 3, v8")
    a(f"v_add_u32 v8, {WB}, v8")
    a("v_add_u32 v9, 32768, v8")
    a("v_lshl_add_u32 v10, v4, 4, v16")
    a("s_lshl_b32 s8, s12, 2")
    a("v_add_u32 v6, s8, v4")
    a("v_lshl_add_u32 v6, v7, 4, v6")
    a("v_mul_u32_u24 v6, 9216, v6")
    a("s_lshl_b32 s8, s7, 7")
    a(f"s_add_u32 s8, s8, {WS_MB}")
    a("v_lshl_add_u32 v11, v15, 4, s8")
    a("v_add_u32 v11, v6, v11")
    for j in range(4):
        a(f"s_mov_b32 s{60+j}, {0x07060500+j:#x}")
    a("s_waitcnt lgkmcnt(0)")
    srd(a, 52, P_WS, WS_SIZE)
    a.spin(F_X, 0, 17, op="lg", sleep=2)
    for q in range(2):
        a.spin(F_D + 4 * q, 3, 12, sleep=2 - q)
        for j in range(9):
            base, off = (8, j * 8192 + q * 4096) if j < 4 else (9, (j - 4) * 8192 + q * 4096)
            r = DF + 8 * j + 4 * q
            a(f"ds_read_b64_tr_b16 {vr(r,2)}, v{base} offset:{off}")
            a(f"ds_read_b64_tr_b16 {vr(r+2,2)}, v{base} offset:{off+512}")
    a.stamp(4)
    a("s_barrier")
    a.stamp(3)
    for q in range(2):
        a(f"ds_read_b128 {vr(HF+4*q,4)}, v10 offset:{64*q}")
    a("s_waitcnt lgkmcnt(0)")
    a.stamp(7)

    def dmm(j):
        return [f"v_mfma_f32_16x16x32_bf16 {vr(AC+4*j,4)}, {vr(DF+8*j+4*q,4)}, {vr(HF+4*q,4)}, {vr(AC+4*j,4) if q else 0}" for q in range(2)]

    def dst(j):
        o = []
        if j < 8:
            o += [f"v_cndmask_b32 v{AC+4*j+r}, v{AC+4*j+r}, v{AC+4*j+4+r}, s[56:57]" for r in range(4)]
        else:
            o += ["s_not_b64 exec, s[56:57]"]
        o += [f"v_perm_b32 v{AC+4*j+r}, v{AC+4*j+r}, v17, s{60+r}" for r in range(4)]
        o += [f"s_mov_b32 s12, {147456*j}", f"buffer_store_dwordx4 {vr(AC+4*j,4)}, v11, s[52:55], s12 offen sc1"]
        return o
    main = sum([dmm(j) for j in range(9)], [])
    for x in interleave(main, dst(0) + dst(2) + dst(4), per=3, skip=7) + dst(6) + dst(8):
        a(x)
    a("s_mov_b64 exec, -1")
    a.stamp(6)
    a.end()


def helper(a):
    a.lab("HELPER")
    if not HPN:
        a.end()
        return
    a(f"s_cmp_ge_u32 s3, {2+HPW}")
    a("s_cbranch_scc1 K_END")
    a("s_and_b32 s12, s3, 1")
    a("s_sub_u32 s13, s3, 2")
    a("s_lshr_b32 s13, s13, 1")
    a("s_mul_i32 s13, s13, 5")
    a("s_add_u32 s13, s13, s5")
    a(f"s_add_u32 s13, s13, {(HPS-NJF) & 0xffffffff}")
    prefetch(a, HPN, E("HH", 0))
    if STAMP:
        a("s_waitcnt vmcnt(0)")
        a.stamp(1)
    a.end()


DSK, EXPN = 166, 167
PA, PB, EF = 142, 146, 150


def cmul(a, d, x, y):
    a(f"v_pk_mul_f32 {vr(d,2)}, {vr(x,2)}, {vr(y,2)} op_sel:[0,0] op_sel_hi:[0,1]")
    a(f"v_pk_fma_f32 {vr(d,2)}, {vr(x,2)}, {vr(y,2)}, {vr(d,2)} op_sel:[1,1,0] op_sel_hi:[1,0,1] neg_lo:[0,1,0]")


def kgen_head(a):
    a.lab("C_KGEN")
    a.fine(6)
    PR = 16
    a("s_and_b32 s12, s3, 3")
    a("s_lshr_b32 s13, s3, 2")
    a("s_lshl_b32 s14, s7, 2")
    a("s_add_u32 s14, s14, s12")
    a("s_lshl_b32 s8, s14, 8")
    a("s_lshl_b32 s9, s13, 7")
    a("s_add_u32 s8, s8, s9")
    a("v_lshl_add_u32 v5, v2, 1, s8")
    for k in range(6):
        a(f"v_mov_b32 v{PR+k}, 0")
    a("s_lshl_b32 s55, s7, 3")
    a("s_setprio 2")
    a(f"s_mul_i32 s15, s3, {KTS}")
    a(f"s_add_u32 s15, s15, {KT}")
    a(f"s_mul_i32 s52, s12, {4*CS}")
    a(f"s_add_u32 s52, s52, {KC}")
    a(f"s_mul_i32 s53, s12, {US}")
    a(f"s_add_u32 s53, s53, {UP}")
    a(f"v_mul_u32_u24 v7, {TS}, v3")
    a("v_lshl_add_u32 v7, v4, 4, v7")
    a("v_add_u32 v7, s15, v7")
    a("s_mov_b32 m0, s15")
    a("s_waitcnt lgkmcnt(0)")
    a.fine(7)
    a(f"s_load_dwordx2 s[58:59], {sr(P_LDT,2)}, s55")
    for k, p in enumerate([P_ARE, P_AIM, P_BRE, P_BIM, P_CRE, P_CIM]):
        a(f"global_load_short_d16_hi v{PR+k}, v5, {sr(p,2)}")
    a(f"s_load_dwordx2 s[68:69], {sr(P_DSK,2)}, s55")
    a.b0()
    a("s_branch C_KBODY")


def kgen(a):
    a.lab("C_KBODY")
    PR = 16
    a.lab("C_SETD")
    a.fine(8)
    a("s_waitcnt lgkmcnt(0)")
    a.auto(True)
    a("s_lshl_b32 s8, s12, 4")
    a("s_lshr_b64 s[58:59], s[58:59], s8")
    a("s_lshl_b32 s8, s58, 16")
    a("v_mov_b32 v44, s8")
    a(f"v_mul_f32 v45, {L2E:#x}, v44")
    a(f"v_mov_b32 v46, {L2E:#x}")
    a("v_fma_f32 v46, v44, v46, -v45")
    a(f"v_mov_b32 v47, {L2E_LO:#x}")
    a("v_fma_f32 v46, v44, v47, v46")
    a("v_exp_f32 v45, v45")
    a(f"v_mul_f32 v46, {LN2:#x}, v46")
    a("v_fma_f32 v45, v45, v46, v45")
    a("v_cvt_pk_bf16_f32 v45, v45, v45")
    DT, DTL, DTR = 36, 37, 38
    a(f"v_and_b32 v{DT}, 0xffff0000, v45")
    a(f"v_mul_f32 v{DTL}, {L2E:#x}, v{DT}")
    a(f"v_mul_f32 v{DTR}, {INV2PI:#x}, v{DT}")
    a("s_waitcnt vmcnt(0)")
    a.stamp(1)
    if STAMP and E("CLK2"):
        a("s_memtime s[90:91]")
    ZR, ZI, WR = 40, 41, 42
    a(f"v_mul_f32 v{ZR}, v{PR}, v{DTL}")
    a(f"v_mul_f32 v{ZI}, v{PR+1}, v{DTR}")
    T0 = 24

    def direct(dst, c):
        if c != 1:
            a(f"v_mul_f32 v{dst}, {fbits(c):#x}, v{ZR}")
            a(f"v_mul_f32 v{dst+1}, {fbits(c):#x}, v{ZI}")
        a(f"v_exp_f32 v{T0}, v{dst if c != 1 else ZR}")
        a(f"v_fract_f32 v{dst+1}, v{dst+1 if c != 1 else ZI}")
        a(f"v_cos_f32 v{dst}, v{dst+1}")
        a(f"v_sin_f32 v{dst+1}, v{dst+1}")
        a(f"v_mul_f32 v{dst}, v{T0}, v{dst}")
        a(f"v_mul_f32 v{dst+1}, v{T0}, v{dst+1}")
    PW, R1 = 46, 44
    pc = lambda c: PW + 2 * (c - 1)
    direct(pc(1), 1)
    a(f"v_mul_f32 v{PR+2}, v{PR+2}, v{DT}")
    a(f"v_mul_f32 v{PR+3}, v{PR+3}, v{DT}")
    cmul(a, WR, PR + 4, PR + 2)
    a(f"v_max_f32 v39, |v{WR}|, |v{WR+1}|")
    side = wave_max_steps(39) + ["v_readlane_b32 s8, v39, 63"]
    OT = [26, 27, 28, 29]
    cnt = [0]

    pend = []

    def flush():
        while pend:
            a(pend.pop(0))

    def emit(row, x):
        o = OT[cnt[0] % 4]
        cnt[0] += 1
        flush()
        a(f"v_cvt_pk_f16_f32 v{o}, v{x}, v{x+1}")
        pend.append(f"ds_write_addtid_b32 v{o} offset:{row*TS}")
    cmul(a, pc(2), pc(1), pc(1))
    cmul(a, pc(4), pc(2), pc(2))
    Q1, QA, QB = 60, 62, 64
    cmul(a, Q1, pc(4), pc(4))
    a(f"v_mov_b32 v30, 0x3c00")
    a(f"v_xor_b32 v{Q1+1}, 0x80000000, v{Q1+1}")
    a("ds_write_addtid_b32 v30")
    emit(1, Q1)
    cur, nxt = Q1, QA
    for b in range(2, 16):
        cmul(a, nxt, cur, Q1)
        if side:
            a(side.pop(0))
        emit(b, nxt)
        cur, nxt = nxt, (QB if nxt == QA else QA)
    a("s_lshr_b32 s8, s8, 23")
    a("s_sub_u32 s8, 258, s8")
    a("s_min_u32 s54, s8, 253")
    a("s_lshl_b32 s8, s54, 23")
    a(f"v_mul_f32 v{WR}, s8, v{WR}")
    a(f"v_mul_f32 v{WR+1}, s8, v{WR+1}")
    QF, PF, KA = 72, 88, 104
    flush()
    for ks in range(4):
        a(f"ds_read_b128 {vr(QF+4*ks,4)}, v7 offset:{64*ks}")
    direct(R1, 128)
    cmul(a, pc(3), pc(2), pc(1)); cmul(a, pc(5), pc(4), pc(1)); cmul(a, pc(6), pc(3), pc(3)); cmul(a, pc(7), pc(6), pc(1))
    CH = [66, 68]
    YC = [60, 62]
    state = {"cur": WR, "k": 0, "y": 0}

    def adv():
        n = CH[state["k"] & 1]
        cmul(a, n, state["cur"], R1)
        state["cur"] = n; state["k"] += 1

    def row(r, c):
        if c == 0:
            emit(r, state["cur"])
        else:
            y = YC[state["y"] & 1]; state["y"] += 1
            cmul(a, y, state["cur"], pc(c))
            emit(r, y)

    def rd():
        flush()
        for ks in range(4):
            a(f"ds_read_b128 {vr(PF+4*ks,4)}, v7 offset:{64*ks}")

    def mm(t, ks):
        a(f"v_mfma_f32_16x16x32_f16 {vr(KA+4*t,4)}, {vr(PF+4*ks,4)}, {vr(QF+4*ks,4)}, {vr(KA+4*t,4) if ks else 0}")
    for h in range(2):
        for c in range(8):
            row(8 * h + c, c)
        adv()
    rd()
    for h in range(2):
        for c in range(4):
            row(4 * h + c, 2 * c)
            if h == 1:
                mm(0, c)
        adv()
    for q in range(4):
        row(8 + 2 * q, 0); row(9 + 2 * q, 4)
        adv()
    rd()
    for q in range(9):
        row(q, 0)
        if q < 8:
            adv()
        if 4 <= q < 8:
            mm(1, q - 4)
    rd()
    a("v_lshl_add_u32 v8, v2, 4, s15")
    for ks in range(4):
        mm(2, ks)
    a.auto(False)
    a.stamp(2)
    if STAMP and E("CLK2"):
        a("s_memtime s[96:97]")
    a("s_lshl_b32 s8, s12, 2")
    a(f"s_add_u32 s8, s8, {F_PAIR}")
    a("v_mov_b32 v9, s8")
    a("s_cmp_eq_u32 s13, 0")
    a("s_cbranch_scc1 C_KA")
    for t in range(3):
        a(f"ds_write_b128 v8, {vr(KA+4*t,4)} offset:{1024*t}")
    a("v_mov_b32 v10, s54")
    a("ds_write_b32 v9, v10")
    a.stamp(3)
    a("s_setprio 0")
    a("v_and_b32 v14, 3, v3")
    a("v_sub_u32 v14, 3, v14")
    a(f"v_mul_u32_u24 v14, {CS}, v14")
    a("v_lshrrev_b32 v13, 2, v3")
    a("v_lshl_add_u32 v13, v4, 1, v13")
    a("v_lshl_add_u32 v14, v13, 3, v14")
    a("v_add3_u32 v5, v14, s52, 8")
    a("v_lshlrev_b32 v14, 1, v3")
    a("v_sub_u32 v14, v4, v14")
    a("v_lshlrev_b32 v14, 4, v14")
    a(f"s_add_u32 s8, s53, {4064-512*7}")
    a("v_add_u32 v6, s8, v14")
    a("v_lshl_add_u32 v14, v3, 2, v4")
    a(f"s_mul_i32 s8, s12, {OS}")
    a(f"s_add_u32 s8, s8, {OP+4088-512*7}")
    a("v_lshlrev_b32 v14, 3, v14")
    a("v_sub_u32 v140, s8, v14")
    a.spin(F_H, 1, 10, prio=0, sleep=1)
    a.spin(f"v9 offset:{F_K-F_PAIR}", 0, 10, op="lg")
    a.stamp(4)
    if STAMP and E("CLK"):
        a("s_memtime s[82:83]")
    gphase(a, 0)
    a.lab("C_KA")
    a("s_setprio 1")
    a("v_lshrrev_b32 v116, 1, v4")
    a("v_and_b32 v117, 1, v4")
    a("v_lshlrev_b32 v116, 8, v116")
    a("v_lshl_add_u32 v116, v117, 3, v116")
    a("v_lshl_add_u32 v116, v3, 4, v116")
    a("v_add_u32 v116, s15, v116")
    a("v_cmp_gt_u32 vcc, 2, v4")
    a("v_lshlrev_b32 v117, 2, v3")
    a("v_lshlrev_b32 v118, 3, v3")
    a("v_cndmask_b32 v117, v117, v118, vcc")
    a("v_lshl_add_u32 v117, v4, 7, v117")
    a("v_add_u32 v117, s15, v117")
    a("v_mov_b32 v118, 64")
    a("v_cndmask_b32 v118, v118, 4, vcc")
    a("v_add_u32 v118, v118, v117")
    a("v_lshlrev_b32 v119, 1, v3")
    a("v_lshl_add_u32 v119, v4, 7, v119")
    a("v_add_u32 v119, s15, v119")
    a("v_lshlrev_b32 v120, 5, v2")
    a("v_lshlrev_b32 v121, 4, v2")
    a("v_add_u32 v121, 256, v121")
    a("v_min_u32 v120, v120, v121")
    a("v_lshlrev_b32 v121, 3, v2")
    a("v_add_u32 v121, 512, v121")
    a("v_min_u32 v120, v120, v121")
    a("v_add_u32 v120, s15, v120")
    EB = 2048
    a("v_min_u32 v121, 15, v2")
    a("v_lshl_add_u32 v121, v121, 2, s15")
    a("v_lshlrev_b32 v122, 2, v4")
    a("v_sub_u32 v122, v3, v122")
    a("v_lshl_add_u32 v122, v122, 2, s15")
    a(f"v_add_u32 v122, {EB+52}, v122")
    a("v_lshl_add_u32 v123, v2, 5, s52")
    a("s_mov_b32 s56, 0x01000100")
    a("s_mov_b32 s57, 0x03020302")
    a("v_and_b32 v14, 3, v3")
    a("v_sub_u32 v14, 3, v14")
    a(f"v_mul_u32_u24 v14, {CS}, v14")
    a("v_lshrrev_b32 v13, 2, v3")
    a("v_lshl_add_u32 v13, v4, 1, v13")
    a("v_lshl_add_u32 v14, v13, 3, v14")
    a("v_add3_u32 v5, v14, s52, 8")
    a("v_lshlrev_b32 v14, 1, v3")
    a("v_sub_u32 v14, v4, v14")
    a("v_lshlrev_b32 v14, 4, v14")
    a(f"s_add_u32 s8, s53, {4064-512*7}")
    a("v_add_u32 v6, s8, v14")
    a("v_lshl_add_u32 v14, v3, 2, v4")
    a(f"s_mul_i32 s8, s12, {OS}")
    a(f"s_add_u32 s8, s8, {OP+4088-512*7}")
    a("v_lshlrev_b32 v14, 3, v14")
    a("v_sub_u32 v140, s8, v14")
    if E("APR", 2) != 2:
        a(f"s_setprio {E('APR', 2)}")
    a("v_lshl_add_u32 v14, v4, 3, v3")
    a("v_sub_u32 v14, 39, v14")
    a("s_mov_b32 s8, 0x3f800000")
    for P, bits, sh in ((PA, 0x7f, 19), (PB, 0x1ff, 20)):
        a(f"v_mov_b32 v10, {bits}")
        a("v_mov_b32 v11, 0")
        a("v_lshlrev_b64 v[10:11], v14, v[10:11]")
        a(f"v_alignbit_b32 v10, v11, v10, {sh}")
        for p in range(4):
            a(f"v_bfe_i32 v11, v10, {2*p}, 1")
            a(f"v_bfe_i32 v12, v10, {2*p+1}, 1")
            a("v_and_b32 v11, 0x3f80, v11")
            a(f"v_and_or_b32 v{P+p}, v12, s8, v11")
    a("s_lshl_b32 s8, s12, 4")
    a("s_lshr_b64 s[68:69], s[68:69], s8")
    a("s_lshl_b32 s68, s68, 16")
    a("s_sub_u32 s58, 254, s54")
    a("s_lshl_b32 s58, s58, 23")
    for r in range(12):
        a(f"v_mul_f32 v{KA+r}, s58, v{KA+r}")
    a("s_mov_b64 exec, 1")
    a(f"v_add_f32 v{KA}, s68, v{KA}")
    a("s_mov_b64 exec, -1")
    a.spin("v9", 0, 18, prio=2, op="lg")
    a("s_sub_u32 s60, 254, s8")
    a("s_lshl_b32 s60, s60, 23")
    a.auto(True)
    for t in range(3):
        a(f"ds_read_b128 {vr(PF+4*t,4)}, v8 offset:{4*KTS+1024*t}")
    for t in range(3):
        for p in range(2):
            r = 4 * t + 2 * p
            a(f"v_pk_fma_f32 {vr(KA+r,2)}, {vr(PF+r,2)}, s[60:61], {vr(KA+r,2)} op_sel_hi:[1,0,1]")
            a(f"v_cvt_pk_bf16_f32 v{20+2*t+p}, v{KA+r}, v{KA+r+1}")
        if t == 0:
            a("ds_write_b64 v116, v[20:21]")
        elif t == 1:
            a("ds_write_b32 v117, v22 offset:512")
            a("ds_write_b32 v118, v23 offset:512")
    a("ds_write_b16 v119, v24 offset:1024")
    S = 32
    for p in range(4):
        a(f"ds_read_b64 {vr(S+2*p,2)}, v120 offset:{8*p}")
    a("s_mov_b32 exec_lo, 0xffff0000")
    a("s_mov_b32 exec_hi, 0")
    for p in range(7, -1, -1):
        if p & 1:
            a(f"v_alignbit_b32 v{S+p}, v{S+p//2+1}, v{S+p//2}, 16")
        else:
            a(f"v_perm_b32 v{S+p}, v{S+p//2}, v{S+p//2}, s56")
    a("s_mov_b32 exec_lo, 0")
    a("s_mov_b32 exec_hi, -1")
    for p, (src, kind) in reversed(list(enumerate([(0, "l"), (0, "m"), (0, "h"), (1, "l"), (1, "l"), (1, "m"), (1, "h"), (2, "l")]))):
        if kind == "m":
            a(f"v_mov_b32 v{S+p}, v{S+src}")
        else:
            a(f"v_perm_b32 v{S+p}, v{S+src}, v{S+src}, s{56 if kind == 'l' else 57}")
    a("s_mov_b64 exec, -1")
    a(f"ds_write_b128 v123, {vr(S,4)} offset:32")
    a(f"ds_write_b128 v123, {vr(S+4,4)} offset:48")
    a(f"v_mov_b32_dpp v{S-2}, v{S+6} wave_shr:1 {DPPF} bound_ctrl:0")
    a(f"v_mov_b32_dpp v{S-1}, v{S+7} wave_shr:1 {DPPF} bound_ctrl:0")
    C1, C2, C3 = 44, 52, 60
    for p in range(8):
        a(f"v_alignbit_b32 v{C1+p}, v{S+p}, v{S+p-1}, 16")
        if p & 3 == 3:
            a(f"ds_write_b128 v123, {vr(C1+p-3,4)} offset:{CS+32+4*(p-3)}")
    for p in range(4):
        a(f"v_pk_mov_b32 {vr(C2+2*p,2)}, {vr(S+2*p-2,2)}, {vr(S+2*p,2)} op_sel:[1,0]")
        if p & 1:
            a(f"ds_write_b128 v123, {vr(C2+2*p-2,4)} offset:{2*CS+32+8*(p-1)}")
    for p in range(8):
        a(f"v_alignbit_b32 v{C3+p}, v{S+p-1}, v{S+p-2}, 16")
        if p & 3 == 3:
            a(f"ds_write_b128 v123, {vr(C3+p-3,4)} offset:{3*CS+32+4*(p-3)}")
    a("v_mov_b32 v10, 1")
    a(f"ds_write_b32 v9, v10 offset:{F_K-F_PAIR}")
    a.stamp(3)
    a(f"s_setprio {E('GPL', 3)}")
    for r in range(4):
        a(f"ds_write_b16{'_d16_hi' if r&1 else ''} v119, v{24+(r>>1)} offset:{EB+62+32*r}")
    a(f"ds_write_b32 v121, v1 offset:{EB}")
    for D in range(4):
        a(f"ds_read2_b32 {vr(EF+4*D,2)}, v122 offset0:{16*D+3} offset1:{16*D+2}")
        a(f"ds_read2_b32 {vr(EF+4*D+2,2)}, v122 offset0:{16*D+1} offset1:{16*D}")
    TL = 72
    a(f"v_alignbit_b32 v{TL}, v{S+7}, v{S+6}, 16")
    for r in (1, 2, 3, 6, 7, 8, 10, 11, 12):
        a(f"v_mov_b32 v{TL+r}, v{S+7}")
    a(f"v_and_b32 v{TL+4}, 0xffff, v{S+7}")
    a(f"v_and_b32 v{TL+9}, 0xffff, v{S+7}")
    a(f"v_mov_b32 v{TL+5}, 0")
    a(f"v_mov_b32 v{TL+13}, 0")
    a("s_mov_b32 exec_lo, 0")
    a("s_mov_b32 exec_hi, 0x80000000")
    a(f"ds_write_b128 v123, {vr(TL,4)} offset:{3*CS+64}")
    a(f"ds_write_b128 v123, {vr(TL+2,4)} offset:64")
    a(f"ds_write_b128 v123, {vr(TL+6,4)} offset:{2*CS+64}")
    a(f"ds_write_b128 v123, {vr(TL+10,4)} offset:{CS+64}")
    a("s_mov_b64 exec, -1")
    a.auto(False)
    a.spin(F_H, 1, 10, sleep=1)
    a.stamp(4)
    gphase(a, 1)


def bias_of(a, d, m):
    a(f"v_lshrrev_b32 v{d}, 7, v{m}")
    a(f"v_subrev_u32 v{d}, 26, v{d}")
    a(f"v_max_i32 v{d}, 0, v{d}")


def gphase(a, isA):
    AC = 16
    SET = [32, 76]
    a(f"s_setprio {E('GPL', 3) if isA else E('GP0', 2)}")
    acc = lambda t: vr(AC + 4 * (t & 3), 4)
    afr = lambda aa, rho: SET[rho & 1] + 4 * aa
    bfr = lambda b, rho: SET[rho & 1] + 16 + 4 * (b % 7)

    def rdA(aa, rho, dst=None):
        d = afr(aa, rho) if dst is None else dst
        return [f"ds_read_b64 {vr(d,2)}, v5 offset:{64*rho+512*aa}", f"ds_read_b64 {vr(d+2,2)}, v5 offset:{64*rho+512*aa+8}"]

    def rdB(b, rho, dst=None, extra=0):
        return [f"ds_read_b128 {vr(bfr(b, rho) if dst is None else dst,4)}, v6 offset:{512*(7-b)+64*rho+extra}"]
    started = set()

    def mf(t, A, B):
        c = acc(t) if t in started else "0"
        started.add(t)
        return f"v_mfma_f32_16x16x32_bf16 {acc(t)}, {vr(A,4)}, {vr(B,4)}, {c}"

    def reads(pairs, rho):
        r, sa, sb = [], set(), set()
        for t, aa in pairs:
            if aa not in sa:
                sa.add(aa); r += rdA(aa, rho)
            if t - aa not in sb:
                sb.add(t - aa); r += rdB(t - aa, rho)
        return r

    def sweep(pairs):
        for x in reads(pairs, 0):
            a(x)
        for rho in range(8):
            nxt = reads(pairs, rho + 1) if rho < 7 else []
            n, done = len(nxt), 0
            for k, (t, aa) in enumerate(pairs):
                if rho and k in (0, len(pairs) // 2):
                    rest = pairs[k:len(pairs) // 2] if k == 0 else pairs[k:]
                    a("@need " + ", ".join([vr(afr(a2, rho), 4) for t2, a2 in rest] + [vr(bfr(t2 - a2, rho), 4) for t2, a2 in rest]))
                a(mf(t, afr(aa, rho), bfr(t - aa, rho)))
                upto = -(-n * (k + 1) // len(pairs))
                while done < upto:
                    a(nxt[done]); done += 1

    def yout(tiles, fl):
        for k, t in enumerate(tiles):
            R = AC + 4 * (t & 3)
            a(f"v_cvt_pk_bf16_f32 v{124+2*k}, v{R+3}, v{R+2}")
            a(f"v_cvt_pk_bf16_f32 v{125+2*k}, v{R+1}, v{R}")
            a(f"ds_write_b64 v140, {vr(124+2*k,2)} offset:{512*(7-t)}")
        a.auto(False)
        a.signal(F_O + 4 * fl, 12)
    a.auto(True)
    if isA:
        UA, UB, ZA, ZB, A32 = 32, 48, 64, 80, 96
        for b in range(4):
            for x in rdB(b, 0, UA + 4 * b) + rdB(b, 0, UB + 4 * b, 16):
                a(x)
        for x in rdA(4, 0, A32):
            a(x)
        for b in range(4):
            a(f"v_mfma_f32_16x16x32_bf16 {vr(ZA+4*b,4)}, {vr(UA+4*b,4)}, {vr(PA,4)}, 0")
            a(f"v_mfma_f32_16x16x32_bf16 {vr(ZB+4*b,4)}, {vr(UB+4*b,4)}, {vr(PB,4)}, 0")
        for b in range(4):
            a(mf(4 + b, A32, UA + 4 * b))
            for r in range(4):
                a(f"v_cvt_pk_bf16_f32 v{ZA+4*b+r}, v{ZA+4*b+r}, v{ZB+4*b+r}")
        for t in range(4, 8):
            for b in range(t - 3):
                a(mf(t, ZA + 4 * b, EF + 4 * (t - b - 4)))
        a.auto(False)
        a.stamp(5)
        a.spin(F_H + 4, 1, 10, prio=E('GP1', 1), sleep=1)
        if STAMP and E("CLK"):
            a("s_memtime s[82:83]")
            a.stamp(4)
        a.auto(True)
        sweep([(t, aa) for aa in range(4) for t in (7, 6, 5, 4)])
        a.stamp(6)
        if STAMP and E("CLK"):
            a("s_memtime s[84:85]")
        yout((7, 6, 5, 4), 1)
        a.stamp(7)
        a.end()
        return
    sweep([(t, aa) for aa in range(4) for t in range(3, aa - 1, -1)])
    a.stamp(6)
    if STAMP and E("CLK"):
        a("s_memtime s[84:85]")
    yout((0, 1, 2, 3), 0)
    a.stamp(7)
    a(f"ds_read_b32 v10, v1 offset:{F_X}")
    a("s_cmp_eq_u32 s3, 4")
    a("s_cbranch_scc1 C_FIN")
    a.end()


EG, ES = 40, 6


def epi_setup(a):
    srd(a, 60, P_OUT, 2359296)


def epi_gaddr(a, d):
    a("s_lshl_b32 s8, s14, 8")
    a(f"s_add_u32 s8, s8, {WS_G}")
    a(f"v_xor_b32 v{d}, 63, v2")
    a(f"v_lshrrev_b32 v{d}, 1, v{d}")
    a(f"v_lshl_add_u32 v{d}, v{d}, 3, s8")


def tr_addr(a, d, base, stride, n):
    a(f"v_bfe_u32 v{d}, v2, 2, 2")
    a(f"v_mul_u32_u24 v{d}, {stride}, v{d}")
    a("v_and_b32 v13, 3, v2")
    a("v_lshl_add_u32 v13, v4, 2, v13")
    a(f"v_lshl_add_u32 v{d}, v13, 3, v{d}")
    a("s_lshl_b32 s8, s14, 7")
    a(f"s_sub_u32 s8, {base+3968-128*(n-1)}, s8")
    a(f"v_add_u32 v{d}, s8, v{d}")


def epi_x(a, n, slot0):
    tr_addr(a, 12, UP, US, n)
    for k in range(n):
        a(f"ds_read_b64_tr_b16 {vr(EG+ES*(slot0+k)+4,2)}, v12 offset:{128*(n-1-k)}")


def epi_t1(a, n, slot0):
    a("s_waitcnt lgkmcnt(0)")
    for k in range(n):
        B = EG + ES * (slot0 + k)
        for p in range(2):
            a(f"v_lshlrev_b32 v{B+2*p}, 16, v{B+4+p}")
            a(f"v_and_b32 v{B+1+2*p}, 0xffff0000, v{B+4+p}")


def epi_g(a, sets, GD):
    n = sum(c for _, c in sets)
    l = a.uid("GP")
    a("s_mov_b32 s9, 0")
    a.lab(l)
    a("s_waitcnt vmcnt(0)")
    a(f"v_xor_b32 v14, v{GD+1}, v10")
    for k in range(1, n):
        a(f"v_bitop3_b32 v14, v14, v{GD+2*k+1}, v10 bitop3:0xf6")
    a("v_cmp_ne_u32 vcc, 0, v14")
    a("s_add_u32 s9, s9, 1")
    a("s_cmp_eq_u64 vcc, 0")
    a(f"s_cbranch_scc1 {l}_D")
    a(f"s_cmp_ge_u32 s9, {SPIN}")
    a(f"s_cbranch_scc1 {l}_D")
    epi_gl(a, sets, GD)
    a(f"s_branch {l}")
    a.lab(l + "_D")


def epi_gl(a, sets, GD):
    k = 0
    for ad, c in sets:
        for i in range(c):
            a(f"global_load_dwordx2 {vr(GD+2*k,2)}, v{ad}, {sr(P_WS,2)} offset:{256*i} sc1")
            k += 1


def epi_t2(a, n, slot0, GD):
    a("v_and_b32 v11, 1, v2")
    a("v_lshlrev_b32 v11, 4, v11")
    a("s_lshl_b32 s8, s14, 8")
    a(f"s_add_u32 s8, s8, {OM}")
    a("v_xor_b32 v12, 63, v2")
    a("v_lshl_add_u32 v12, v12, 2, s8")
    Bs = [EG + ES * (slot0 + k) for k in range(n)]
    for k, B in enumerate(Bs):
        a(f"v_lshlrev_b32 v{B+4}, v11, v{GD+2*k}")
    for B in Bs:
        a(f"v_and_b32 v{B+4}, 0xffff0000, v{B+4}")
    for B in Bs:
        a(f"v_sub_f32 v{B+5}, 1.0, v{B+4}")
    for B in Bs:
        a(f"v_cvt_pk_bf16_f32 v{B+5}, v{B+5}, v{B+5}")
    for B in Bs:
        a(f"v_and_b32 v{B+5}, 0xffff0000, v{B+5}")
    for k, B in enumerate(Bs):
        if E("PK1"):
            for p in range(2):
                a(f"v_pk_mul_f32 {vr(B+2*p,2)}, {vr(B+2*p,2)}, {vr(B+4,2)} op_sel:[0,1] op_sel_hi:[1,1]")
        else:
            for r in range(4):
                a(f"v_mul_f32 v{B+r}, v{B+r}, v{B+5}")
        a(f"ds_write_b32 v12, v{B+4} offset:{256*k}")


def epi_fin(a, n, slot0, half):
    tr_addr(a, 12, OP, OS, n)
    a("v_xor_b32 v14, 63, v2")
    a("v_mul_u32_u24 v14, 1152, v14")
    a("v_add_u32 v14, s55, v14")
    a("s_mul_i32 s15, s14, 73728")
    a.spin(F_O + 4 * half, 4, 15, sleep=E("OSL", 1), prio=3)
    a.auto(True)
    Y = 16
    for k in range(n):
        a(f"ds_read_b64_tr_b16 {vr(Y+2*k,2)}, v12 offset:{128*(n-1-k)}")
    for k in range(n):
        B = EG + ES * (slot0 + k)
        R, y = 24 + 4 * k, Y + 2 * k
        for p in range(2):
            a(f"v_lshlrev_b32 v{R+2*p}, 16, v{y+p}")
            a(f"v_and_b32 v{R+2*p+1}, 0xffff0000, v{y+p}")
        if E("PK2"):
            for p in range(2):
                a(f"v_pk_fma_f32 {vr(B+2*p,2)}, {vr(R+2*p,2)}, {vr(B+4,2)}, {vr(B+2*p,2)} op_sel_hi:[1,0,1]")
        else:
            for r in range(4):
                a(f"v_fmac_f32 v{B+r}, v{R+r}, v{B+4}")
        for p in range(2):
            a(f"v_cvt_pk_bf16_f32 v{B+p}, v{B+2*p}, v{B+2*p+1}")
        a(f"buffer_store_dwordx2 {vr(B,2)}, v14, s[60:63], s15 offen")
        a("s_add_u32 s15, s15, 73728")
    a.auto(False)


def io_common(a):
    a("s_mul_i32 s7, s4, 18")
    a("s_add_u32 s7, s7, s5")
    a(f"s_sub_u32 s7, s7, {NJH}")
    a("s_lshl_b32 s55, s7, 3")
    a("s_sub_u32 s12, s3, 8")
    epi_setup(a)


def uloader(a):
    a.lab("C_LOAD")
    a("s_setprio 3")
    a(f"s_sub_u32 s13, s5, {NJH}")
    pf = stripe_pf(a)
    a("v_mul_u32_u24 v6, 4608, v2")
    a("s_lshl_b32 s8, s7, 3")
    a("v_add_u32 v6, s8, v6")
    a("v_lshlrev_b32 v7, 3, v2")
    a(f"v_sub_u32 v7, {UP+4088-512*7}, v7")
    a("s_mov_b32 s56, 0x05040100")
    a("s_mov_b32 s58, 0x07060302")
    a("s_mul_i32 s8, s4, 663552")
    if E("BH"):
        a("s_lshr_b32 s9, s13, 1")
        a("s_mul_i32 s9, s9, 73728")
        a("s_add_u32 s8, s8, s9")
        a("s_and_b32 s9, s13, 1")
        a("s_mul_i32 s9, s9, 18432")
        a(f"s_add_u32 s9, s9, {36864-18432}")
    else:
        a("s_mul_i32 s9, s13, 36864")
    a("s_add_u32 s8, s8, s9")
    a("v_lshl_add_u32 v14, v2, 7, s8")
    a("v_min_u32 v15, 31, v2")
    a("v_lshl_add_u32 v15, v15, 7, s8")
    a("s_mov_b32 s57, s13")
    a("s_waitcnt lgkmcnt(0)")
    if E("PFE", 0):
        for x in pf:
            a(x)
    srd(a, 72, P_U, 2359296)
    a.b0(12)
    if E("PFX"):
        a.spin(F_X, 0, 12, op="lg")
    if not E("PFE", 0):
        for k, x in enumerate(pf):
            if k == 2 and E("PF2"):
                a("s_waitcnt vmcnt(0)")
            a(x)
    io_common(a)
    for j in range(4):
        a(f"v_mov_b32 v{24+j}, 0")
    a("v_lshrrev_b32 v28, 2, v2")
    a(f"v_mul_u32_u24 v28, {CS}, v28")
    a(f"v_add_u32 v28, {KC}, v28")
    a("v_and_b32 v29, 3, v2")
    a("v_lshl_add_u32 v30, v29, 4, v28")
    a("ds_write_b128 v30, v[24:27] offset:2096")
    a("v_and_b32 v29, 1, v2")
    a("v_lshl_add_u32 v30, v29, 4, v28")
    a("ds_write_b128 v30, v[24:27]")
    a("v_lshrrev_b32 v28, 5, v2")
    a(f"v_mul_u32_u24 v28, {US}, v28")
    a("v_and_b32 v29, 31, v2")
    a("v_lshl_add_u32 v30, v29, 4, v28")
    a(f"v_add_u32 v30, {UP+4096}, v30")
    a("ds_write_b128 v30, v[24:27]")
    a(f"ds_write_b128 v30, v[24:27] offset:{2*US}")
    a("s_mov_b32 s15, 0")
    a("v_mov_b32 v12, 1")
    a(f"s_waitcnt vmcnt({E('UW', 2)})")
    a.stamp(7)
    U = 104

    def issue(i):
        if not NOU:
            a(f"buffer_load_dwordx2 {vr(U+2*i,2)}, v6, s[72:75], s15 offen offset:{1152*(i&3)}")
        if i & 3 == 3:
            a("s_add_u32 s15, s15, 294912")
        if BSN and i == BST:
            for k in range(5 - BSN, 5):
                a(f"v_add_u32 v{88+k}, {8192*k}, v{14 if k < 4 else 15}")
                a(f"global_load_dword v{96+k}, v{88+k}, {sr(P_WD,2)}")
    a.auto(True)
    nis = 0
    for i in range(32):
        while nis < min(32, i + WIN_U):
            issue(nis); nis += 1
        a(f"@need {vr(U+2*i,2)}")
        if i & 3 == 3:
            while nis < min(32, i + 1 + WIN_U):
                issue(nis); nis += 1
            t, u, o = i >> 2, U + 2 * (i - 3), 16 + 8 * ((i >> 2) & 1)
            for ch in range(4):
                sel = "s58" if ch & 1 else "s56"
                a(f"v_perm_b32 v{o+2*ch}, v{u+4+(ch>>1)}, v{u+6+(ch>>1)}, {sel}")
                a(f"v_perm_b32 v{o+2*ch+1}, v{u+(ch>>1)}, v{u+2+(ch>>1)}, {sel}")
                a(f"ds_write_b64 v7, {vr(o+2*ch,2)} offset:{ch*US+512*(7-t)}")
        if i == 3:
            a.stamp(8)
        if i & 15 == 15:
            a(f"ds_write_b32 v1, v12 offset:{F_H+4*(i>>4)}")
            a.stamp(2 - (i >> 4))
    a.auto(False)
    a("s_branch C_IO2")
    a.lab("C_IO")
    io_common(a)
    a.lab("C_IO2")
    a("s_lshl_b32 s14, s12, 2")
    epi_gaddr(a, 5)
    a("v_add_u32 v6, 4096, v5")
    GD = 104
    GS = [(5, 4), (6, 4)]
    a.spin(F_X, 0, 10, op="lg")
    a.spin(F_H, 1, 12, prio=3, sleep=2)
    epi_gl(a, GS, GD)
    epi_x(a, 4, 0)
    epi_t1(a, 4, 0)
    epi_g(a, GS, GD)
    epi_t2(a, 4, 0, GD)
    a.stamp(3)
    epi_fin(a, 4, 0, 0)
    a.stamp(4)
    a.spin(F_H + 4, 1, 12, prio=3, sleep=2)
    a("s_add_u32 s14, s14, 16")
    epi_x(a, 4, 4)
    epi_t1(a, 4, 4)
    epi_t2(a, 4, 4, GD + 8)
    a.stamp(5)
    epi_fin(a, 4, 4, 1)
    a.stamp(6)
    a("s_waitcnt vmcnt(0)")
    a.signal(F_ST, 8)
    a.end()
    a.lab("C_FIN")
    Z = 104
    a("s_setprio 0")
    a("v_and_b32 v8, 7, v2")
    a("v_lshlrev_b32 v8, 3, v8")
    a(f"v_add_u32 v8, {WS_SEL}, v8")
    a("s_mul_i32 s8, s7, 9216")
    a(f"s_add_u32 s8, s8, {WS_MB}")
    a("v_lshl_add_u32 v5, v2, 4, s8")
    a("v_add_u32 v6, 0x1000, v5")
    a("v_add_u32 v7, 0x2000, v5")
    a("s_waitcnt lgkmcnt(0)")
    for j in range(4):
        a(f"v_lshrrev_b32 v{Z+6+j}, {8*j}, v10")
    a("s_mov_b32 s9, 0")
    a.lab("C_SPOLL")
    a(f"global_load_dwordx2 v[16:17], v8, {sr(P_WS,2)} sc1")
    a("s_waitcnt vmcnt(0)")
    a("v_cmp_ne_u32 vcc, v17, v10")
    a("s_add_u32 s9, s9, 1")
    a("s_cmp_eq_u64 vcc, 0")
    a("s_cbranch_scc1 C_SOK")
    a("s_sleep 4")
    a(f"s_cmp_lt_u32 s9, {SPIN}")
    a("s_cbranch_scc1 C_SPOLL")
    a.lab("C_SOK")
    a.spin(F_H + 4, 1, 12, prio=3, sleep=2)
    a("v_and_b32 v18, 0x7ff, v16")
    a("v_sub_u32 v18, 2047, v18")
    a("v_and_b32 v19, 1, v4")
    a("v_lshrrev_b32 v20, 1, v4")
    a("v_lshl_or_b32 v19, v19, 1, v20")
    a("v_lshlrev_b32 v19, 1, v19")
    a("v_and_b32 v22, 0x7ff, v16")
    a(f"v_mul_u32_u24 v23, {US//2}, v19")
    a("v_lshl_add_u32 v23, v22, 1, v23")
    a(f"v_add_u32 v23, {UP}, v23")
    a(f"ds_read_u16 v{Z+1}, v23")
    a("v_and_b32 v20, 0xffff0000, v16")
    a("v_ashrrev_i32 v21, 31, v20")
    a("v_not_b32 v21, v21")
    a("v_or_b32 v21, 0x80000000, v21")
    a("v_and_b32 v21, 0xffff0000, v21")
    a("v_xor_b32 v20, v20, v21")
    sigmoid_f32(a, Z, 20, 21)
    rb(a, Z)
    a(f"v_lshlrev_b32 v{Z+2}, 2, v18")
    a(f"v_add_u32 v{Z+2}, {OM}, v{Z+2}")
    a(f"v_mul_u32_u24 v{Z+3}, {OS//2}, v19")
    a(f"v_lshl_add_u32 v{Z+3}, v22, 1, v{Z+3}")
    a(f"v_add_u32 v{Z+3}, {OP}, v{Z+3}")
    a(f"v_mul_u32_u24 v{Z+4}, 1152, v18")
    a(f"v_add3_u32 v{Z+4}, v{Z+4}, v19, s55")
    a("s_waitcnt lgkmcnt(0)")
    a(f"v_lshlrev_b32 v{Z+1}, 16, v{Z+1}")
    MB = 120
    a("s_mov_b32 s9, 0")
    a("s_setprio 0")
    a("s_mov_b64 exec, 1")
    a.lab("C_M1")
    a(f"global_load_dword v26, v5, {sr(P_WS,2)} sc1")
    a("s_waitcnt vmcnt(0)")
    a("v_xor_b32 v26, v26, v10")
    a("v_and_b32 v26, 0xff, v26")
    a("v_cmp_ne_u32 vcc, 0, v26")
    a("s_add_u32 s9, s9, 1")
    a("s_cmp_eq_u64 vcc, 0")
    a("s_cbranch_scc1 C_M1D")
    a(f"s_cmp_lt_u32 s9, {SPIN}")
    a("s_cbranch_scc1 C_M1")
    a.lab("C_M1D")
    a("s_mov_b64 exec, -1")
    a("s_setprio 3")
    a("s_mov_b32 s9, 0")
    a.lab("C_MPOLL")
    for i in range(9):
        a(f"global_load_dwordx4 {vr(MB+4*i,4)}, v{5+(i>>2)}, {sr(P_WS,2)} offset:{1024*(i&3)} sc1")
    for i in range(9):
        a(f"s_waitcnt vmcnt({8-i})")
        for j in range(4):
            if i == 0 and j == 0:
                a(f"v_xor_b32 v26, v{MB}, v10")
            else:
                a(f"v_bitop3_b32 v26, v26, v{MB+4*i+j}, v{Z+6+j} bitop3:0xf6")
        if i:
            for p in range(2):
                a(f"v_pk_add_f32 {vr(28+2*p,2)}, {vr(28+2*p if i > 1 else MB+2*p,2)}, {vr(MB+4*i+2*p,2)}")
    a("v_and_b32 v26, 0xff, v26")
    a("v_cmp_ne_u32 vcc, 0, v26")
    a("s_add_u32 s9, s9, 1")
    a("s_cmp_eq_u64 vcc, 0")
    a("s_cbranch_scc1 C_MOK")
    if E("MSL", 2):
        a(f"s_sleep {E('MSL', 2)}")
    a(f"s_cmp_lt_u32 s9, {SPIN}")
    a("s_cbranch_scc1 C_MPOLL")
    a.lab("C_MOK")
    a.stamp(8)
    a("v_permlane32_swap_b32 v28, v29")
    a("v_permlane32_swap_b32 v30, v31")
    a("v_add_f32 v28, v28, v29")
    a("v_add_f32 v30, v30, v31")
    a("v_permlane16_swap_b32 v28, v30")
    a("v_add_f32 v28, v28, v30")
    a(f"v_add_f32_dpp v28, v28, v28 row_ror:8 {DPPF}")
    rb(a, 28)
    a(f"v_mul_f32 v28, v28, v{Z}")
    rb(a, 28)
    a(f"v_add_f32 v28, v28, v{Z+1}")
    rb(a, 28)
    a.spin(F_ST, 4, 27, prio=3)
    a(f"ds_read_b32 v25, v{Z+2}")
    a(f"ds_read_u16 v24, v{Z+3}")
    a("s_waitcnt lgkmcnt(0)")
    a("v_sub_f32 v26, 1.0, v25")
    a("v_lshlrev_b32 v24, 16, v24")
    rb(a, 26)
    a("v_mul_f32 v28, v28, v26")
    a("v_fmac_f32 v28, v24, v25")
    a("v_cvt_pk_bf16_f32 v28, v28, v28")
    a("s_mov_b32 exec_lo, 0x00ff00ff")
    a("s_mov_b32 exec_hi, 0x00ff00ff")
    a(f"global_store_short v{Z+4}, v28, {sr(P_OUT,2)}")
    a("s_mov_b64 exec, -1")
    a.end()


def kernel(a):
    a.raw(".p2align 8")
    a.raw(".globl k1_kernel")
    a.raw(".type k1_kernel,@function")
    a.lab("k1_kernel")
    a("v_lshrrev_b32 v1, 6, v0")
    a("s_cmp_ge_u32 s2, 256")
    a("v_readfirstlane_b32 s3, v1")
    a("s_cbranch_scc1 K_END")
    a("v_and_b32 v2, 63, v0")
    a("v_mov_b32 v1, 0")
    a("s_cmp_lg_u32 s3, 1")
    a("s_cbranch_scc1 K_NOZ")
    a("v_lshlrev_b32 v3, 2, v2")
    a("ds_write_b32 v3, v1")
    a("s_waitcnt lgkmcnt(0)")
    a.lab("K_NOZ")
    a("s_load_dwordx16 s[16:31], s[0:1], 0")
    a("s_load_dwordx16 s[32:47], s[0:1], 64")
    a("s_load_dwordx4 s[48:51], s[0:1], 128")
    a("s_lshr_b32 s5, s2, 3")
    if CODEPF:
        a("s_lshl_b32 s8, s3, 8")
        a("s_add_u32 s8, s8, s5")
        a(f"s_cmp_lg_u32 s8, {NJF}")
        a("s_cbranch_scc1 K_NOCPF")
        a("s_getpc_b64 s[8:9]")
        a("s_and_b32 s8, s8, 0xffffff00")
        a("v_lshlrev_b32 v8, 7, v2")
        for k in range(4):
            a(f"v_min_u32 v9, CODE_END-k1_kernel-4, v8")
            a(f"global_load_dword v{160+k}, v9, s[8:9]")
            a(f"v_add_u32 v8, 8192, v8")
        a.lab("K_NOCPF")
    if STAMP:
        for i in range(1, 10):
            a(f"s_mov_b32 s{80+2*i}, 0")
    if PROBE:
        a("s_mov_b32 s98, 0")
    a.stamp(0)
    a("v_and_b32 v3, 15, v2")
    a("v_lshrrev_b32 v4, 4, v2")
    a("s_and_b32 s4, s2, 7")
    if not E("OLDB0"):
        a("s_barrier")
    a("s_cmp_eq_u32 s3, 8")
    a("s_cbranch_scc1 ROUTER")
    a(f"s_cmp_lt_u32 s5, {NJH}")
    a("s_cbranch_scc1 K_OTHER")
    a("s_mul_i32 s7, s4, 18")
    a("s_add_u32 s7, s7, s5")
    a(f"s_sub_u32 s7, s7, {NJH}")
    a("s_cmp_ge_u32 s3, 8")
    a("s_cbranch_scc1 K_CIO")
    kgen_head(a)
    router(a)
    a.lab("K_OTHER")
    a("s_mul_i32 s7, s4, 9")
    a("s_add_u32 s7, s7, s5")
    a("s_mov_b32 s12, s3")
    a("s_cmp_lt_u32 s3, 2")
    a("s_cbranch_scc1 GATE")
    a(f"s_cmp_ge_u32 s5, {NJF}")
    a("s_cbranch_scc1 HELPER")
    a("s_cmp_lt_u32 s3, 8")
    a("s_cbranch_scc1 F_COMP")
    ffn_loader(a)
    a.lab("K_CIO")
    a("s_sub_u32 s12, s3, 9")
    a("s_cmp_eq_u32 s3, 11")
    a("s_cbranch_scc1 C_LOAD")
    a("s_branch GATE")
    uloader(a)
    helper(a)
    gate(a)
    kgen(a)
    select(a)
    ffn_comp(a)
    if STAMP:
        a.lab("STAMP_OUT")
        a("s_memrealtime s[98:99]")
        a("s_waitcnt lgkmcnt(0)")
        a("s_lshl_b32 s8, s2, 4")
        a("s_add_u32 s8, s8, s3")
        a("s_lshl_b32 s8, s8, 6")
        a(f"s_add_u32 s8, s8, {WS_STAMP}")
        a("v_mov_b32 v5, s8")
        for i in range(10):
            a(f"v_mov_b32 v6, s{80+2*i}")
            a(f"global_store_dword v5, v6, {sr(P_WS,2)} offset:{4*i}")
    if PROBE:
        a.lab("PADTAIL")
        a("s_waitcnt vmcnt(0) lgkmcnt(0)")
        a("s_cmp_eq_u32 s98, 0")
        a("s_cbranch_scc1 K_END")
        a("s_setprio 0")
        a.lab("PADL")
        a("s_sleep 8")
        a("s_memrealtime s[96:97]")
        a("s_waitcnt lgkmcnt(0)")
        a("s_sub_u32 s96, s96, s98")
        a("s_cmp_lt_u32 s96, 2000")
        a("s_cbranch_scc1 PADL")
    a.lab("K_END")
    a("s_endpgm")
    a.lab("CODE_END")


def main():
    ref = open(os.path.join(HERE, NAME + ".s.ref")).read().splitlines()
    head = [l for l in ref if l.startswith(";") and "@launch" not in l and "Override" not in l and "grid=ceil" not in l]
    a = G()
    kernel(a)
    out = head + [
        f"; @launch kernel=k1_kernel grid=(256,1,1) block=(768,1,1) lds={LDS}",
        '.amdgcn_target "amdgcn-amd-amdhsa--gfx950"',
        ".text",
    ] + a.finish() + [
        '.section .rodata,"a"',
        ".p2align 6",
        ".amdhsa_kernel k1_kernel",
        "  .amdhsa_next_free_vgpr 168",
        "  .amdhsa_next_free_sgpr 102",
        "  .amdhsa_accum_offset 168",
        "  .amdhsa_group_segment_fixed_size 0",
        "  .amdhsa_kernarg_size 144",
        "  .amdhsa_user_sgpr_count 2",
        "  .amdhsa_user_sgpr_kernarg_segment_ptr 1",
        "  .amdhsa_system_sgpr_workgroup_id_x 1",
        ".end_amdhsa_kernel",
    ]
    path = sys.argv[1] if len(sys.argv) > 1 else os.path.join(HERE, NAME + ".s")
    open(path, "w").write("\n".join(out) + "\n")


if __name__ == "__main__":
    main()
```

```python
import sys, os
from asmlib import *

NAME = "gated_mix__ssm_conv_s4__moe_arch_mod__prompt"
HERE = os.path.dirname(os.path.abspath(__file__))
E = lambda k, d=0: int(os.environ.get(k, d))
STAMP = E("STAMP")
PROBE = os.environ.get("PROBE", "")
CODEPF = E("CODEPF", 1)
SELD = E("SELD", 18)
UD = E("UD", 0)
R3 = E("R3", 6)
ROT = E("ROT", 1)
SPB = E("SPB", 0)
SPW = E("SPW", 4)
C3 = E("C3", 28)
HSB = E("HSB", 0)
WNT = os.environ.get("WNT", "")
POLLF = os.environ.get("POLLF", "sc1").replace("_", " ")
PUBF = os.environ.get("PUBF", "sc1").replace("_", " ")
PFN = E("PFN", 0)
PFS = E("PFS", 8)
PFW = E("PFW", 1)
HPN = E("HPN", 3)
HPS = E("HPS", 53)
HPW = E("HPW", 4)
PSTEP = 5 * HPW // 2
BST = E("BST", 31)
BSN = E("BSN", 5)
BSS = E("BSS", 0)
WIN_U = E("WIN_U", 5)
WIN_F = E("WIN_F", 10)
HELP = E("HELP", 1)
DUMP = E("DUMP")
HOLD = E("HOLD")
FINE = E("FINE")
NOU = E("NOU")
NOW = E("NOW")

WS_KEY, WS_G, WS_SEL, WS_BASE, WS_MB = 0, 8192, 16384, 16640, 32768
WS_UT = 8 << 20
WS_STAMP = 4 << 20
WS_SIZE = 0x10000000

LDS = 163840
F_NONCE, F_PAIR, F_ST, F_I, F_K, F_H, F_O = 0, 16, 40, 48, 64, 80, 96
F_L, F_D, F_AC, F_XR, F_HR = 16, 40, 48, 84, 88
KT = 256
KTS = 4608
TS = 288
OS = 4160
KC = KT + 8 * KTS
CS = 2240
UP = KC + 16 * CS
US = 4672
OM = UP + 4 * US
OP = OM + 8192
assert OP + 4 * OS <= 147712 and OP % 16 == 0
WA = 256
WB = WA + 73728
XB = WB + 73728
HB = XB + 9216
HS = 144
GW = HB + 8 * HS
assert GW + 2048 <= LDS and GW % 16 == 0
F_X, F_GD, F_RI, F_SI, F_UI = 8, 12, 4, 44, 88

L2E = 0x3fb8aa3b
L2E_LO = 0x32a57060
LN2 = 0x3f317218
INV2PI = 0x3e22f983

P_U, P_ARE, P_AIM, P_BRE, P_BIM, P_CRE, P_CIM, P_LDT = 16, 18, 20, 22, 24, 26, 28, 30
P_DSK, P_BX, P_WR, P_WG, P_WU, P_WD, P_GW, P_OUT = 32, 34, 36, 38, 40, 42, 44, 46
P_DBG, P_WS = 48, 50
NJF, NJH = 9, 14
SPIN = 0x20000

DPPF = "row_mask:0xf bank_mask:0xf"


class G(Asm):
    nlab = 0

    def stamp(s, i):
        if PROBE:
            import inspect
            fn = inspect.stack()[1].function
            if fn == "pre":
                fn = "ffn_loader"
            if f"{fn}:{i}" == PROBE:
                s("s_memrealtime s[98:99]")
        if STAMP and not (FINE and i >= 6):
            s(f"s_memrealtime s[{80+2*i}:{81+2*i}]")

    def fine(s, i):
        if STAMP and FINE:
            s(f"s_memrealtime s[{80+2*i}:{81+2*i}]")

    def b0(s, wait=None):
        if E("OLDB0"):
            s("s_barrier")
        elif wait is not None:
            s.spin(F_RI, 1, wait)

    def end(s):
        s("s_branch STAMP_OUT" if STAMP else "s_branch PADTAIL" if PROBE else "s_endpgm")

    def uid(s, p):
        G.nlab += 1
        return f"{p}_{G.nlab}"

    def spin(s, off, target, tv, sleep=0, op="ge", prio=None):
        l = s.uid("SP")
        if prio is not None:
            s(f"s_setprio {E('SPP', 3) if sleep else 0}")
        s("s_mov_b32 s9, 0")
        s.lab(l)
        s(f"ds_read_b32 v{tv}, v1 offset:{off}") if isinstance(off, int) else s(f"ds_read_b32 v{tv}, {off}")
        s("s_waitcnt lgkmcnt(0)")
        s(f"v_readfirstlane_b32 s8, v{tv}")
        s("s_add_u32 s9, s9, 1")
        s(f"s_cmp_{op}_u32 s8, {target}")
        s(f"s_cbranch_scc1 {l}_D")
        if sleep:
            s(f"s_sleep {sleep}")
        s(f"s_cmp_lt_u32 s9, {SPIN*4}")
        s(f"s_cbranch_scc1 {l}")
        s.lab(l + "_D")
        if prio is not None:
            s(f"s_setprio {prio}")

    def signal(s, off, tv):
        s(f"v_mov_b32 v{tv}, 1")
        s("s_mov_b64 exec, 1")
        s(f"ds_add_u32 v1, v{tv} offset:{off}") if isinstance(off, int) else s(f"ds_add_u32 {off}, v{tv}")
        s("s_mov_b64 exec, -1")


def srd(a, d, p, size):
    a(f"s_mov_b32 s{d}, s{p}")
    a(f"s_mov_b32 s{d+1}, s{p+1}")
    a(f"s_mov_b32 s{d+2}, {size}")
    a(f"s_mov_b32 s{d+3}, 0x20000")


def wave_max_steps(vv):
    return [f"v_max_u32_dpp v{vv}, v{vv}, v{vv} row_shr:1 {DPPF}",
            f"v_max_u32_dpp v{vv}, v{vv}, v{vv} row_shr:2 {DPPF}",
            f"v_max_u32_dpp v{vv}, v{vv}, v{vv} row_shr:4 {DPPF}",
            f"v_max_u32_dpp v{vv}, v{vv}, v{vv} row_shr:8 {DPPF}",
            f"v_max_u32_dpp v{vv}, v{vv}, v{vv} row_bcast:15 row_mask:0xa bank_mask:0xf",
            f"v_max_u32_dpp v{vv}, v{vv}, v{vv} row_bcast:31 row_mask:0xc bank_mask:0xf"]


def sigmoid_f32(a, dst, src, t):
    a(f"v_mul_f32 v{t}, 0xbfb8aa3b, v{src}")
    a(f"v_exp_f32 v{t}, v{t}")
    a(f"v_add_f32 v{t}, 1.0, v{t}")
    a(f"v_rcp_f32 v{dst}, v{t}")


def rb(a, r):
    a(f"v_cvt_pk_bf16_f32 v{r}, v{r}, v{r}")
    a(f"v_and_b32 v{r}, 0xffff0000, v{r}")


def router(a):
    a.lab("ROUTER")
    a("s_setprio 3")
    X, W = 16, 52
    a("v_lshrrev_b32 v5, 3, v2")
    a("v_and_b32 v6, 7, v2")
    a("v_lshlrev_b32 v9, 4, v6")
    a("v_mul_u32_u24 v8, 1152, v5")
    a("s_mul_i32 s8, s2, 9216")
    a("v_add3_u32 v8, v8, v9, s8")
    a("v_lshlrev_b32 v7, 4, v2")
    a("v_min_u32 v10, 7, v2")
    a("v_lshlrev_b32 v10, 4, v10")
    a(f"s_mov_b32 m0, {XB}")
    a("s_waitcnt lgkmcnt(0)")
    a.fine(7)
    a(f"s_load_dword s10, {sr(P_WS,2)}, {WS_BASE}")
    for i in range(9):
        if i:
            a(f"s_mov_b32 m0, {XB+896*i}")
        a(f"global_load_lds_dwordx4 v8, {sr(P_U,2)} offset:{128*i}")
    a(f"s_mov_b32 m0, {GW}")
    a(f"global_load_lds_dwordx4 v7, {sr(P_GW,2)}")
    a(f"global_load_lds_dwordx4 v10, {sr(P_GW,2)} offset:1024")
    for i in range(9):
        a(f"global_load_dwordx4 {vr(W+4*i,4)}, v9, {sr(P_WR,2)} offset:{128*i}")
    a.fine(6)
    a.b0()
    a("v_mov_b32 v11, 1")
    a(f"ds_write_b32 v1, v11 offset:{F_RI}")
    a(f"v_add_u32 v7, {XB}, v7")
    a("s_lshl_b32 s8, s2, 5")
    a("v_lshl_add_u32 v15, v4, 3, s8")
    a("s_mov_b32 s11, 0xffff")
    for j in range(4):
        a(f"v_mov_b32 v{8+j}, 0")
    a("s_waitcnt lgkmcnt(0)")
    a.fine(8)
    a("s_add_u32 s10, s10, 1")
    a("s_addc_u32 s10, s10, 0")
    a("v_mov_b32 v14, s10")
    a("v_mov_b32 v13, s10")
    a("s_waitcnt vmcnt(9)")
    a.stamp(1)
    if STAMP or PROBE:
        a("s_waitcnt lgkmcnt(0)")
    for i in range(9):
        a(f"ds_read_b128 {vr(X+4*i,4)}, v7 offset:{1024*i}")
    a(f"ds_write_b32 v1, v14 offset:{F_X}")
    for i in range(9):
        a(f"s_waitcnt vmcnt({8-i}) lgkmcnt({9-i})")
        for j in range(4):
            a(f"v_dot2c_f32_bf16 v{8+j}, v{X+4*i+j}, v{W+4*i+j}")
    a("v_add_f32 v8, v8, v9")
    a("v_add_f32 v10, v10, v11")
    a("v_add_f32 v8, v8, v10")
    a(f"v_add_f32_dpp v8, v8, v8 quad_perm:[1,0,3,2] {DPPF}")
    a(f"v_add_f32_dpp v8, v8, v8 quad_perm:[2,3,0,1] {DPPF}")
    a(f"v_add_f32_dpp v8, v8, v8 row_half_mirror {DPPF}")
    a("v_cvt_pk_bf16_f32 v8, v8, v8")
    a("v_ashrrev_i32 v9, 31, v8")
    a("v_or_b32 v9, 0x80008000, v9")
    a("v_xor_b32 v8, v8, v9")
    a(f"v_mov_b32_dpp v9, v8 row_ror:8 {DPPF}")
    a("s_mov_b32 exec_lo, 0x00010001")
    a("s_mov_b32 exec_hi, 0x00010001")
    a("v_bfi_b32 v12, s11, v8, v9")
    a(f"global_store_dwordx2 v15, v[12:13], {sr(P_WS,2)} {PUBF}")
    a("s_mov_b64 exec, -1")
    a(f"ds_write_b32 v1, v14 offset:{F_NONCE}")
    a.stamp(2)
    a(f"s_cmp_ge_u32 s5, {NJH}")
    a("s_cbranch_scc1 C_IO")
    a(f"s_cmp_lt_u32 s5, {NJF}")
    a("s_cbranch_scc1 SELECT")
    a.end()


def gate(a):
    a.lab("GATE")
    X, W, WL = 16, 34, 44
    a("s_lshl_b32 s8, s12, 9")
    a(f"s_add_u32 s8, s8, {XB}")
    a("v_lshl_add_u32 v5, v2, 2, s8")
    a("v_and_b32 v6, 31, v2")
    a("v_lshlrev_b32 v6, 2, v6")
    a(f"v_add_u32 v6, {GW}, v6")
    a("s_lshl_b32 s8, s2, 1")
    a("s_add_u32 s8, s8, s12")
    a("v_mov_b32 v8, 0")
    a("v_mov_b32 v9, 0")
    a("v_mov_b32 v10, 0x3f803f80")
    a("s_lshl_b32 s8, s8, 4")
    a(f"s_add_u32 s8, s8, {WS_G}")
    a("v_lshrrev_b32 v7, 5, v2")
    a("v_lshl_add_u32 v7, v7, 3, s8")
    a.b0()
    if E("GATED"):
        a(f"s_sleep {E('GATED')}")
    a.spin(F_X, 0, 13, op="lg", sleep=E("GSL", 1))
    a.auto(True)
    for i in range(5):
        a(f"ds_read2_b32 {vr(W+2*i,2)}, v6 offset0:{64*(i&3)} offset1:{64*(i&3)+32}" if i < 4 else f"ds_read_b32 v{W+8}, v6 offset:1024")
    for i in range(9):
        a(f"ds_read2st64_b32 {vr(X+2*i,2)}, v5 offset0:{4*i} offset1:{4*i+1}")
    for i in range(9):
        a(f"v_and_b32 v{WL+i}, 0xffff, v{W+i}")
        a(f"v_and_b32 v{W+i}, 0xffff0000, v{W+i}")
    for i in range(10):
        t = 56 + 4 * (i & 1)
        u = 56 + 4 * ((i - 1) & 1)
        for j in range(2):
            if i < 9:
                a(f"v_dot2_f32_bf16 v{t+2*j}, v{X+2*i+j}, v{WL+i}, 0")
                a(f"v_dot2_f32_bf16 v{t+2*j+1}, v{X+2*i+j}, v{W+i}, 0")
        if i:
            for j in range(2):
                a(f"v_cvt_pk_bf16_f32 v{u+2*j}, v{u+2*j}, v{u+2*j+1}")
            for j in range(2):
                a(f"v_dot2c_f32_bf16 v{8+j}, v{u+2*j}, v10")
    a.auto(False)
    a.signal(F_GD, 11)
    a("v_permlane16_swap_b32 v8, v9")
    a("v_add_f32 v8, v8, v9")
    for r in (8, 4, 2, 1):
        a(f"v_add_f32_dpp v8, v8, v8 row_ror:{r} {DPPF}")
    rb(a, 8)
    sigmoid_f32(a, 8, 8, 9)
    a("v_cvt_pk_bf16_f32 v8, v8, v8")
    a("s_mov_b32 s11, 0xffff")
    a("v_mov_b32 v9, v8")
    a("v_lshl_add_u32 v7, v4, 3, v7")
    a("v_permlane32_swap_b32 v8, v9")
    a("v_bfi_b32 v12, s11, v8, v9")
    a("s_mov_b64 exec, 0x00010001")
    a(f"global_store_dwordx2 v7, v[12:13], {sr(P_WS,2)} sc1")
    a("s_mov_b64 exec, -1")
    a.stamp(1)
    a(f"s_cmp_lt_u32 s5, {NJF}")
    a("s_cbranch_scc1 F_COMP2")
    a(f"s_cmp_ge_u32 s5, {NJH}")
    a("s_cbranch_scc1 C_IO")
    a.end()


def stripe_pf(a):
    a("s_mul_i32 s8, s13, 73728")
    a("s_lshl_b32 s9, s4, 7")
    a("s_add_u32 s8, s8, s9")
    a("v_mul_u32_u24 v9, 1152, v2")
    a("v_add_u32 v9, s8, v9")
    a("s_add_u32 s8, s13, 18")
    a("s_min_u32 s8, s8, 31")
    a("s_sub_u32 s8, s8, s13")
    a("s_mul_i32 s8, s8, 73728")
    a("v_add_u32 v8, s8, v9")
    return [f"global_load_dword v10, v9, {sr(P_U,2)}", f"global_load_dword v11, v9, {sr(P_U,2)} offset:128",
            f"global_load_dword v10, v8, {sr(P_U,2)}", f"global_load_dword v11, v8, {sr(P_U,2)} offset:128"]


def prefetch(a, n, hold):
    a("v_mul_u32_u24 v5, 57, v2")
    a("v_lshrrev_b32 v5, 9, v5")
    a("v_mul_u32_u24 v6, 9, v5")
    a("v_sub_u32 v6, v2, v6")
    a("s_waitcnt lgkmcnt(0)")
    a("s_cmp_eq_u32 s12, 1")
    a(f"s_cselect_b32 s52, s{P_WU}, s{P_WG}")
    a(f"s_cselect_b32 s53, s{P_WU+1}, s{P_WG+1}")
    a("s_mov_b32 s54, 5308416")
    a("s_mov_b32 s55, 0x20000")
    a("v_mul_u32_u24 v5, 9216, v5")
    a("v_lshl_add_u32 v5, v6, 7, v5")
    a("s_mul_i32 s8, s4, 1152")
    if C3:
        a(f"s_sub_u32 s14, s13, {HPS}")
        a("s_lshr_b32 s9, s52, 7")
        a("s_add_u32 s9, s9, s4")
        a("s_sub_u32 s9, 3, s9")
        a("s_and_b32 s9, s9, 7")
        a("s_lshl_b32 s15, s9, 7")
        a("s_add_u32 s15, s15, s8")
        a(f"s_mul_i32 s14, s14, {9216*C3}")
        a("s_add_u32 s15, s15, s14")
        a(f"s_add_u32 s15, s15, {9216*(7*HPS - C3*PSTEP)}")
        a("s_cmp_eq_u32 s9, 0")
        a("s_cselect_b32 s9, 1024, 0")
        a("v_and_b32 v7, 31, v2")
        a(f"v_min_u32 v7, {C3-1}, v7")
        a("v_mul_u32_u24 v7, 9216, v7")
        a("v_lshrrev_b32 v9, 5, v2")
        a("v_mul_u32_u24 v9, s9, v9")
        a("v_add_u32 v7, v7, v9")
    a("s_mul_i32 s13, s13, 64512")
    a("s_add_u32 s13, s13, s8")
    a.b0(13)
    if hold:
        a.spin(F_NONCE, 0, 13, op="lg", sleep=1)
    if C3:
        a("buffer_load_dword v8, v7, s[52:55], s15 offen")
    for k in range(n):
        if k >= PFW or (C3 and E("C3W", 1)):
            a(f"s_waitcnt vmcnt({PFW-1})")
        a("buffer_load_dword v8, v5, s[52:55], s13 offen")
        a(f"s_add_u32 s13, s13, {64512*PSTEP}")
    if E("HD"):
        a(f"s_sub_u32 s8, s5, {NJF}")
        a(f"s_mul_i32 s8, s8, {HPW}")
        a("s_add_u32 s8, s8, s3")
        a("s_sub_u32 s8, s8, 2")
        a("s_lshl_b32 s8, s8, 6")
        a("s_mul_i32 s9, s4, 663552")
        for k in range(E("HD")):
            a(f"v_add_u32 v9, s8, v2")
            a("v_min_u32 v9, 2591, v9")
            a("v_lshrrev_b32 v10, 5, v9")
            a("v_mul_u32_u24 v10, 57, v10")
            a("v_lshrrev_b32 v10, 9, v10")
            a("v_mul_u32_u24 v10, 288, v10")
            a("v_add_u32 v9, v9, v10")
            a("v_lshl_add_u32 v9, v9, 7, s9")
            a(f"s_waitcnt vmcnt({PFW-1})")
            a(f"global_load_dword v8, v9, {sr(P_WD,2)}")
            a(f"s_add_u32 s8, s8, {64*5*HPW}")


def bulk_gate(a, tv):
    a.b0(tv)
    if HOLD:
        a.spin(F_NONCE, 0, tv, op="lg", sleep=1)


def select(a):
    a.lab("SELECT")
    SX = 52
    srd(a, SX, P_U, 2359296)
    KD, IX, KY = 16, 48, 80
    M1, M2, T1, T2, VO, VK, CH = 8, 9, 10, 11, 12, 6, 5
    a("v_lshlrev_b32 v7, 4, v2")
    a("v_add_u32 v15, 0x1000, v7")

    def polls():
        for i in range(8):
            a(f"global_load_dwordx4 {vr(KD+4*i,4)}, v{7 if i < 4 else 15}, {sr(P_WS,2)} offset:{1024*(i&3)} {POLLF}")
    assert WS_KEY == 0
    a("v_lshlrev_b32 v8, 2, v2")
    a("v_sub_u32 v8, 2047, v8")
    for i in range(8):
        for e in range(4):
            a(f"v_subrev_u32 v{IX+4*i+e}, {256*i+e}, v8")
    a("v_lshrrev_b32 v9, 3, v2")
    a("v_and_b32 v9, 6, v9")
    a("v_xor_b32 v9, v9, v2")
    a("v_and_b32 v9, 7, v9")
    a(f"v_lshlrev_b32 v{CH}, 4, v9")
    a(f"v_mov_b32 v{VO}, 0")
    a(f"v_mov_b32 v{VK}, 0")
    a("s_mov_b32 s11, 0xffff0000")
    a.spin(F_GD, 2, 13)
    a("s_mov_b32 s9, 0")
    a("s_waitcnt vmcnt(0)")
    if SELD:
        a(f"s_sleep {SELD}")
    a.stamp(8)
    a.lab("SEL_POLL")
    polls()
    for i in range(8):
        a(f"s_waitcnt vmcnt({7-i})")
        if i == 0:
            a(f"v_xor_b32 v13, v{KD+1}, v14")
        else:
            a(f"v_bitop3_b32 v13, v13, v{KD+4*i+1}, v14 bitop3:0xf6")
        a(f"v_bitop3_b32 v13, v13, v{KD+4*i+3}, v14 bitop3:0xf6")
    a("v_cmp_ne_u32 vcc, 0, v13")
    a("s_add_u32 s9, s9, 1")
    a("s_cmp_eq_u64 vcc, 0")
    a("s_cbranch_scc1 SEL_GOT")
    a(f"s_cmp_lt_u32 s9, {SPIN}")
    a("s_cbranch_scc1 SEL_POLL")
    a.lab("SEL_GOT")
    if STAMP:
        a("s_mov_b32 s94, s9")
    a.stamp(6)
    for i in range(8):
        for h in range(2):
            a(f"v_lshl_or_b32 v{KY+4*i+2*h}, v{KD+4*i+2*h}, 16, v{IX+4*i+2*h}")
            a(f"v_and_or_b32 v{KY+4*i+2*h+1}, v{KD+4*i+2*h}, s11, v{IX+4*i+2*h+1}")
        ks = [KY + 4 * i + e for e in range(4)]
        if i == 0:
            a(f"v_min_u32 v{M2}, v{ks[0]}, v{ks[1]}")
            a(f"v_max_u32 v{M1}, v{ks[0]}, v{ks[1]}")
            ks = ks[2:]
        for k in ks:
            a(f"v_med3_u32 v{M2}, v{M1}, v{M2}, v{k}")
            a(f"v_max_u32 v{M1}, v{M1}, v{k}")
    a.stamp(3)

    def place(r):
        lo, hi = ((0xff << (8 * r)) & 0xffffffff, (0xff << (8 * r)) >> 32)
        return ["s_and_b32 s13, s12, 0x7ff", "s_sub_u32 s13, 2047, s13", "s_mul_i32 s13, s13, 1152",
                [f"s_mov_b32 exec_lo, {lo:#x}", f"s_mov_b32 exec_hi, {hi:#x}",
                 f"v_add_u32 v{VO}, s13, v{CH}", f"v_mov_b32 v{VK}, s12", "s_mov_b64 exec, -1"]]
    for r in range(8):
        if r == 0:
            a(f"v_mov_b32 v{T1}, v{M1}")
            fill = []
        else:
            a(f"v_subrev_u32 v{T1}, s12, v{M1}")
            a(f"v_subrev_u32 v{T2}, s12, v{M2}")
            a(f"v_max_u32 v{T1}, v{T1}, v{T2}")
            p = place(r - 1)
            fill = [p[0:2], [p[2]], p[3]]
        for st in wave_max_steps(T1):
            for x in (fill.pop(0) if fill else []):
                a(x)
            a(st)
        a(f"v_readlane_b32 s8, v{T1}, 63")
        a("s_add_u32 s12, s12, s8" if r else "s_mov_b32 s12, s8")
    p = place(7)
    for x in p[:3] + p[3]:
        a(x)
    a("s_mov_b32 s14, 0")
    a.lab("SEL_GATHER")
    for b in range(9):
        a(f"s_mov_b32 m0, {XB + 896*b}")
        a(f"buffer_load_dwordx4 v{VO}, {sr(SX,4)}, 0 offen offset:{128*b} lds")
    a.signal(F_D, 13)
    a.stamp(4)
    a("s_cmp_lg_u32 s14, 0")
    a("s_cbranch_scc1 SEL_OK")
    TK = KD
    for k in range(32):
        a(f"v_sub_u32 v{TK+k}, v{KY+k}, v{M2}")

    def tree():
        for j in range(10):
            a(f"v_max3_u32 v{TK+3*j}, v{TK+3*j}, v{TK+3*j+1}, v{TK+3*j+2}")
        a(f"v_max3_u32 v{TK}, v{TK}, v{TK+3}, v{TK+6}")
        a(f"v_max3_u32 v{TK+9}, v{TK+9}, v{TK+12}, v{TK+15}")
        a(f"v_max3_u32 v{TK+18}, v{TK+18}, v{TK+21}, v{TK+24}")
        a(f"v_max3_u32 v{TK+27}, v{TK+27}, v{TK+30}, v{TK+31}")
        a(f"v_max3_u32 v{TK}, v{TK}, v{TK+9}, v{TK+18}")
        a(f"v_max_u32 v{TK}, v{TK}, v{TK+27}")
    tree()
    a(f"v_add_u32 v{TK}, v{TK}, v{M2}")
    a(f"v_cmp_lt_u32 vcc, s12, v{TK}")
    if E("FORCESLOW"):
        a("s_mov_b64 vcc, 1")
    a("s_cmp_eq_u64 vcc, 0")
    a("s_cbranch_scc1 SEL_OK")
    a("s_waitcnt vmcnt(0)")
    a("s_mov_b32 s12, 0")
    a("s_mov_b64 s[56:57], 0xff")
    a.lab("SEL_SLOW")
    for k in range(32):
        a(f"v_subrev_u32 v{TK+k}, s12, v{KY+k}")
    tree()
    for st in wave_max_steps(TK):
        a(st)
    a(f"v_readlane_b32 s8, v{TK}, 63")
    a("s_add_u32 s12, s12, s8")
    for x in place(0)[:3]:
        a(x)
    a("s_mov_b64 exec, s[56:57]")
    a(f"v_add_u32 v{VO}, s13, v{CH}")
    a(f"v_mov_b32 v{VK}, s12")
    a("s_mov_b64 exec, -1")
    a("s_lshl_b64 s[56:57], s[56:57], 8")
    a("s_add_u32 s14, s14, 1")
    a("s_cmp_lt_u32 s14, 8")
    a("s_cbranch_scc1 SEL_SLOW")
    a("s_branch SEL_GATHER")
    a.lab("SEL_OK")
    a("s_cmp_lg_u32 s2, 0")
    a("s_cbranch_scc1 SEL_NOPUB")
    a(f"v_mov_b32 v{VK+1}, v14")
    a(f"v_add_u32 v8, {WS_SEL}, v2")
    a("s_mov_b32 exec_lo, 0x01010101")
    a("s_mov_b32 exec_hi, 0x01010101")
    a(f"global_store_dwordx2 v8, {vr(VK,2)}, {sr(P_WS,2)} sc1")
    a("s_mov_b64 exec, 1")
    a(f"global_store_dword v8, v14, {sr(P_WS,2)} offset:{WS_BASE-WS_SEL} sc1")
    a("s_mov_b64 exec, -1")
    a("s_waitcnt vmcnt(2)")
    a("s_branch SEL_END")
    a.lab("SEL_NOPUB")
    a("s_waitcnt vmcnt(0)")
    a.lab("SEL_END")
    a("v_mov_b32 v8, 3")
    a(f"ds_write_b32 v1, v8 offset:{F_XR}")
    a.stamp(5)
    a.end()


def ffn_loader(a):
    a.lab("F_LOAD")
    a("s_setprio 3")
    SG, SU, SD = 52, 56, 60
    a("s_sub_u32 s12, s3, 9")
    a("v_lshrrev_b32 v5, 3, v2")
    a("v_bfe_u32 v6, v2, 4, 1")
    a("v_xor_b32 v6, v6, v2")
    a("v_and_b32 v6, 7, v6")
    a("s_movk_i32 s8, 9216")
    a("v_mul_lo_u32 v7, v5, s8")
    a("v_lshl_add_u32 v8, v6, 4, v7")
    a("v_xor_b32 v9, 32, v8")
    a("v_xor_b32 v10, 64, v8")
    a("v_xor_b32 v11, 96, v8")
    a("v_bfe_u32 v6, v2, 4, 1")
    a("v_lshlrev_b32 v6, 1, v6")
    a("v_xor_b32 v6, v6, v2")
    a("v_and_b32 v6, 7, v6")
    a("v_mul_u32_u24 v7, 1152, v5")
    a("v_lshl_add_u32 v12, v6, 4, v7")
    a("v_xor_b32 v13, 64, v12")
    a("s_mul_i32 s13, s12, 294912")
    a("s_lshl_b32 s8, s7, 7")
    a("s_add_u32 s13, s13, s8")
    a("s_lshl_b32 s15, s12, 13")
    a(f"s_add_u32 s15, s15, {WA}")
    a("s_mul_i32 s14, s12, 24576")
    a(f"s_add_u32 s14, s14, {WB}")
    a("s_mul_i32 s11, s7, 73728")
    a("s_mul_i32 s8, s12, 384")
    a("s_add_u32 s11, s11, s8")
    a("s_waitcnt lgkmcnt(0)")
    srd(a, SG, P_WG, 5308416)
    srd(a, SU, P_WU, 5308416)
    srd(a, SD, P_WD, 5308416)
    bulk_gate(a, 14)
    n = 0
    sig = 0

    def pre():
        nonlocal sig
        if n >= WIN_F:
            a(f"s_waitcnt vmcnt({WIN_F-1})")
        if sig < 6 and n - WIN_F + 1 >= 8 * (sig + 1):
            a.signal(F_L + 4 * sig, 14)
            if sig in (0, 2, 5):
                a.stamp(1 + sig // 2)
            sig += 1
    for c in range(6):
        if c >= 3:
            a.spin(F_AC + 4 * (c - 3), 4, 14)
        for R in range(4):
            for mu in range(2):
                pre()
                a(f"s_add_u32 m0, s15, {(c%3)*24576 + R*2048 + mu*1024}")
                if not NOW:
                    a(f"buffer_load_dwordx4 v{8+2*mu+(R&1)}, {sr(SU if mu else SG,4)}, s13 offen {WNT} lds")
                n += 1
            a(f"s_add_u32 s13, s13, {73728 if R < 3 else 73728*9}")
    a.signal(F_D, 14)
    a.stamp(4)
    while sig < 6:
        a(f"s_waitcnt vmcnt({48 - 8*(sig+1)})")
        a.signal(F_L + 4 * sig, 14)
        sig += 1
    a.stamp(3)
    a("s_cmp_eq_u32 s3, 9")
    a("s_cbranch_scc1 F_COMP2")
    a.end()


def ffn_comp(a):
    a.lab("F_COMP")
    a.b0()
    a.lab("F_COMP2")
    a("s_and_b32 s12, s3, 3")
    a("v_lshrrev_b32 v5, 2, v3")
    a("v_bfe_u32 v7, v3, 3, 1")
    a("v_and_b32 v13, 1, v4")
    a("v_lshl_or_b32 v14, v13, 1, v7")
    a("v_and_b32 v15, 7, v3")
    a(f"v_mul_u32_u24 v16, {HS}, v15")
    a(f"v_add_u32 v16, {HB}, v16")
    a("s_mov_b32 s56, 0xff00ff00")
    a("s_mov_b32 s57, 0xff00ff00")
    a("s_lshr_b32 s8, s3, 2")
    a("s_cmp_lg_u32 s8, 1")
    a("s_cbranch_scc1 F_DOWN")
    WF, AG = 24, 8
    a("v_bfe_u32 v6, v3, 1, 1")
    a("v_lshl_or_b32 v8, v6, 2, v14")
    a("v_xor_b32 v8, s12, v8")
    a("v_lshlrev_b32 v8, 4, v8")
    a("v_lshl_add_u32 v8, v5, 7, v8")
    a("v_lshl_add_u32 v8, v6, 10, v8")
    a("v_lshl_add_u32 v8, v4, 11, v8")
    a("v_and_b32 v9, 1, v3")
    a("v_lshl_add_u32 v8, v9, 3, v8")
    a("v_xor_b32 v9, 64, v8")
    a(f"v_add_u32 v10, {WA+49152}, v8")
    a(f"v_add_u32 v11, {WA+49152}, v9")
    a("v_lshlrev_b32 v6, 2, v13")
    a("v_lshrrev_b32 v5, 1, v4")
    a("v_add_u32 v6, v6, v5")
    a("v_lshl_add_u32 v6, v7, 5, v6")
    a("s_lshl_b32 s8, s12, 3")
    a("v_add_lshl_u32 v6, v6, s8, 1")
    a("v_add_u32 v5, v6, v16")
    a("v_and_b32 v6, 6, v3")
    a("v_xor_b32 v6, v6, v4")
    a("v_lshlrev_b32 v6, 4, v6")
    a("v_lshl_add_u32 v6, v15, 7, v6")
    a(f"v_add_u32 v6, {XB}, v6")
    a("v_xor_b32 v7, 64, v6")
    for c in range(6):
        a.spin(F_L + 4 * c, 3, 12, sleep=E("CSL", 1))
        if c in (2, 5):
            a.stamp(2 + c // 3)
        for s in range(3):
            for t in range(2):
                base, off = (8 + t, WA + (c % 3) * 24576 + s * 8192) if c % 3 < 2 else (10 + t, s * 8192)
                r = WF + 8 * (3 * c + s) + 4 * t
                a(f"ds_read_b64_tr_b16 {vr(r,2)}, v{base} offset:{off}")
                a(f"ds_read_b64_tr_b16 {vr(r+2,2)}, v{base} offset:{off+512}")
        if c < 3:
            a("s_waitcnt lgkmcnt(0)")
            a.signal(F_AC + 4 * c, 12)
    a("s_setprio 3")
    a.spin(F_XR, 1, 12)
    a.stamp(4)
    a.auto(True)
    xs = lambda s: 16 + 4 * s
    def xrd(s):
        a(f"ds_read_b128 {vr(xs(s),4)}, v{7 if s&1 else 6} offset:{1024*(s>>1)}")
    xrd(0); xrd(1)
    nx = 2
    for s in range(18):
        for t in range(2):
            a(f"v_mfma_f32_16x16x32_bf16 {vr(AG+4*t,4)}, {vr(WF+8*s+4*t,4)}, {vr(xs(s),4)}, {vr(AG+4*t,4) if s else 0}")
            if nx < 18 and xs(nx) + 4 <= WF + 8 * s + 4 * t + 4:
                xrd(nx); nx += 1
    a.auto(False)
    a.stamp(8)
    for r in range(4):
        a(f"v_cndmask_b32 v{AG+r}, v{AG+r}, v{AG+4+r}, s[56:57]")
    a(f"v_permlane32_swap_b32 v{AG}, v{AG+1}")
    a(f"v_permlane32_swap_b32 v{AG+2}, v{AG+3}")
    for op in ("v_cvt_pk_bf16_f32 v{u}, v{g}, v{u}", "v_lshlrev_b32 v{g}, 16, v{u}", "v_mul_f32 v{t}, 0xbfb8aa3b, v{g}", "v_exp_f32 v{t}, v{t}",
               "v_and_b32 v{u}, 0xffff0000, v{u}", "v_add_f32 v{t}, 1.0, v{t}", "v_rcp_f32 v{t}, v{t}", "v_mul_f32 v{g}, v{g}, v{t}",
               "v_cvt_pk_bf16_f32 v{g}, v{g}, v{g}", "v_and_b32 v{g}, 0xffff0000, v{g}", "v_mul_f32 v{g}, v{g}, v{u}"):
        for p in range(2):
            a(op.format(g=AG + 2 * p, u=AG + 2 * p + 1, t=AG + 4 + p))
    a(f"v_cvt_pk_bf16_f32 v{AG}, v{AG}, v{AG+2}")
    a(f"ds_write_b16 v5, v{AG}")
    a(f"ds_write_b16_d16_hi v5, v{AG} offset:4")
    a("s_waitcnt lgkmcnt(0)")
    a.stamp(5)
    a("s_barrier")
    a.end()
    a.lab("F_DOWN")
    RW, DF, AC, HF = 24, 56, 120, 152
    a("v_lshl_add_u32 v10, v4, 4, v16")
    a("v_mul_u32_u24 v8, 9216, v4")
    a("s_mul_i32 s13, s7, 73728")
    for j in range(4):
        a(f"s_mov_b32 s{60+j}, {0x07060500+j:#x}")
    a("s_mov_b32 s64, 0x05040100")
    a("s_mov_b32 s65, 0x07060302")
    a("s_lshl_b32 s14, s7, 7")
    a(f"s_add_u32 s14, s14, {WS_MB}")
    a("v_lshl_add_u32 v11, v15, 4, s14")
    a("s_waitcnt lgkmcnt(0)")
    srd(a, 52, P_WS, WS_SIZE)
    srd(a, 68, P_WD, 5308416)
    a("s_cmp_eq_u32 s3, 9")
    a("s_cbranch_scc1 F_DN2")

    def down(nd):
        nf = 2 * nd
        raw = lambda q, e: (RW if q == 0 else 88) + nd * e
        frg = lambda q, j: (DF if q == 0 else RW) + 4 * j
        for q in range(2):
            for e in range(8):
                if nd == 4 and E("DE", 4) and 8 * q + e == E("DE", 4):
                    a.spin(F_D, 4, 12, sleep=1)
                if not NOW:
                    a(f"buffer_load_dword{'x4' if nd == 4 else 'x2'} {vr(raw(q,e),nd)}, v8, s[68:71], s13 offen offset:{1152*(e&3)}")
                if e & 3 == 3:
                    a(f"s_add_u32 s13, s13, {4608 if e == 3 else 36864-4608}")
        for q in range(2):
            for p in range(4):
                a(f"s_waitcnt vmcnt({14 - 8*q - 2*p})")
                for j in range(nf):
                    a(f"v_perm_b32 v{frg(q,j)+p}, v{raw(q,2*p+1)+(j>>1)}, v{raw(q,2*p)+(j>>1)}, s{64+(j&1)}")
        a.stamp(4)
        a("s_barrier")
        a.stamp(5)
        for q in range(2):
            a(f"ds_read_b128 {vr(HF+4*q,4)}, v10 offset:{64*q}")
        a("s_waitcnt lgkmcnt(0)")
        for j in range(nf):
            for q in range(2):
                a(f"v_mfma_f32_16x16x32_bf16 {vr(AC+4*j,4)}, {vr(frg(q,j),4)}, {vr(HF+4*q,4)}, {vr(AC+4*j,4) if q else 0}")
        O = 88
        for r in range(nd):
            for j in range(4):
                x, y = (AC + 4 * j + r, AC + 16 + 4 * j + r) if nd == 4 else (AC + 4 * j + 2 * r, AC + 4 * j + 2 * r + 1)
                a(f"v_cndmask_b32 v{O+4*r+j}, v{x}, v{y}, s[56:57]")
            for j in range(4):
                a(f"v_perm_b32 v{O+4*r+j}, v{O+4*r+j}, v17, s{60+j}")
            a(f"s_mov_b32 s12, {18432*r}")
            a(f"buffer_store_dwordx4 {vr(O+4*r,4)}, v11, s[52:55], s12 offen sc1")
        a.stamp(6)
        a.end()
    a("v_lshl_add_u32 v8, v3, 4, v8")
    a("s_lshl_b32 s8, s3, 8")
    a("s_add_u32 s13, s13, s8")
    a("s_lshl_b32 s8, s3, 5")
    a("v_lshl_add_u32 v6, v4, 3, v7")
    a("v_add_u32 v6, s8, v6")
    a("v_mul_u32_u24 v6, 9216, v6")
    a("v_add_u32 v11, v6, v11")
    a.spin(F_X, 0, 17, op="lg", sleep=2)
    a.spin(F_D, 3 if E("DE", 4) else 4, 12, sleep=1)
    a("s_setprio 2")
    down(4)
    a.lab("F_DN2")
    a("v_lshl_add_u32 v8, v3, 3, v8")
    a("s_add_u32 s13, s13, 1024")
    a("v_lshl_add_u32 v6, v4, 2, v7")
    a("v_add_u32 v6, 128, v6")
    a("v_mul_u32_u24 v6, 9216, v6")
    a("v_add_u32 v11, v6, v11")
    a.spin(F_X, 0, 17, op="lg")
    down(2)


def helper(a):
    a.lab("HELPER")
    if not HPN:
        a.end()
        return
    a(f"s_cmp_ge_u32 s3, {2+HPW}")
    a("s_cbranch_scc1 K_END")
    a("s_and_b32 s12, s3, 1")
    a("s_sub_u32 s13, s3, 2")
    a("s_lshr_b32 s13, s13, 1")
    a("s_mul_i32 s13, s13, 5")
    a("s_add_u32 s13, s13, s5")
    a(f"s_add_u32 s13, s13, {(HPS-NJF) & 0xffffffff}")
    prefetch(a, HPN, E("HH", 0))
    if STAMP:
        a("s_waitcnt vmcnt(0)")
        a.stamp(1)
    a.end()


DSK, EXPN = 166, 167
PA, PB, EF = 142, 146, 150


def cmul(a, d, x, y):
    a(f"v_pk_mul_f32 {vr(d,2)}, {vr(x,2)}, {vr(y,2)} op_sel:[0,0] op_sel_hi:[0,1]")
    a(f"v_pk_fma_f32 {vr(d,2)}, {vr(x,2)}, {vr(y,2)}, {vr(d,2)} op_sel:[1,1,0] op_sel_hi:[1,0,1] neg_lo:[0,1,0]")


def kgen_head(a):
    a.lab("C_KGEN")
    a.fine(6)
    PR = 16
    a("s_and_b32 s12, s3, 3")
    a("s_lshr_b32 s13, s3, 2")
    a("s_lshl_b32 s14, s7, 2")
    a("s_add_u32 s14, s14, s12")
    a("s_lshl_b32 s8, s14, 8")
    a("s_lshl_b32 s9, s13, 7")
    a("s_add_u32 s8, s8, s9")
    a("v_lshl_add_u32 v5, v2, 1, s8")
    for k in range(6):
        a(f"v_mov_b32 v{PR+k}, 0")
    a("s_lshl_b32 s55, s7, 3")
    a("s_setprio 2")
    a(f"s_mul_i32 s15, s3, {KTS}")
    a(f"s_add_u32 s15, s15, {KT}")
    a(f"s_mul_i32 s52, s12, {4*CS}")
    a(f"s_add_u32 s52, s52, {KC}")
    a(f"s_mul_i32 s53, s12, {US}")
    a(f"s_add_u32 s53, s53, {UP}")
    a(f"v_mul_u32_u24 v7, {TS}, v3")
    a("v_lshl_add_u32 v7, v4, 4, v7")
    a("v_add_u32 v7, s15, v7")
    a("s_mov_b32 m0, s15")
    a("s_waitcnt lgkmcnt(0)")
    a.fine(7)
    a(f"s_load_dwordx2 s[58:59], {sr(P_LDT,2)}, s55")
    for k, p in enumerate([P_ARE, P_AIM, P_BRE, P_BIM, P_CRE, P_CIM]):
        a(f"global_load_short_d16_hi v{PR+k}, v5, {sr(p,2)}")
    a(f"s_load_dwordx2 s[68:69], {sr(P_DSK,2)}, s55")
    a.b0()
    a("s_branch C_KBODY")


def kgen(a):
    a.lab("C_KBODY")
    PR = 16
    a.lab("C_SETD")
    a.fine(8)
    a("s_waitcnt lgkmcnt(0)")
    a.auto(True)
    a("s_lshl_b32 s8, s12, 4")
    a("s_lshr_b64 s[58:59], s[58:59], s8")
    a("s_lshl_b32 s8, s58, 16")
    a("v_mov_b32 v44, s8")
    a(f"v_mul_f32 v45, {L2E:#x}, v44")
    a(f"v_mov_b32 v46, {L2E:#x}")
    a("v_fma_f32 v46, v44, v46, -v45")
    a(f"v_mov_b32 v47, {L2E_LO:#x}")
    a("v_fma_f32 v46, v44, v47, v46")
    a("v_exp_f32 v45, v45")
    a(f"v_mul_f32 v46, {LN2:#x}, v46")
    a("v_fma_f32 v45, v45, v46, v45")
    a("v_cvt_pk_bf16_f32 v45, v45, v45")
    DT, DTL, DTR = 36, 37, 38
    a(f"v_and_b32 v{DT}, 0xffff0000, v45")
    a(f"v_mul_f32 v{DTL}, {L2E:#x}, v{DT}")
    a(f"v_mul_f32 v{DTR}, {INV2PI:#x}, v{DT}")
    a("s_waitcnt vmcnt(0)")
    a.stamp(1)
    if STAMP and E("CLK2"):
        a("s_memtime s[90:91]")
    ZR, ZI, WR = 40, 41, 42
    a(f"v_mul_f32 v{ZR}, v{PR}, v{DTL}")
    a(f"v_mul_f32 v{ZI}, v{PR+1}, v{DTR}")
    T0 = 24

    def direct(dst, c):
        if c != 1:
            a(f"v_mul_f32 v{dst}, {fbits(c):#x}, v{ZR}")
            a(f"v_mul_f32 v{dst+1}, {fbits(c):#x}, v{ZI}")
        a(f"v_exp_f32 v{T0}, v{dst if c != 1 else ZR}")
        a(f"v_fract_f32 v{dst+1}, v{dst+1 if c != 1 else ZI}")
        a(f"v_cos_f32 v{dst}, v{dst+1}")
        a(f"v_sin_f32 v{dst+1}, v{dst+1}")
        a(f"v_mul_f32 v{dst}, v{T0}, v{dst}")
        a(f"v_mul_f32 v{dst+1}, v{T0}, v{dst+1}")
    PW, R1 = 46, 44
    pc = lambda c: PW + 2 * (c - 1)
    direct(pc(1), 1)
    a(f"v_mul_f32 v{PR+2}, v{PR+2}, v{DT}")
    a(f"v_mul_f32 v{PR+3}, v{PR+3}, v{DT}")
    cmul(a, WR, PR + 4, PR + 2)
    a(f"v_max_f32 v39, |v{WR}|, |v{WR+1}|")
    side = wave_max_steps(39) + ["v_readlane_b32 s8, v39, 63"]
    OT = [26, 27, 28, 29]
    cnt = [0]

    pend = []

    def flush():
        while pend:
            a(pend.pop(0))

    def emit(row, x):
        o = OT[cnt[0] % 4]
        cnt[0] += 1
        flush()
        a(f"v_cvt_pk_f16_f32 v{o}, v{x}, v{x+1}")
        pend.append(f"ds_write_addtid_b32 v{o} offset:{row*TS}")
    cmul(a, pc(2), pc(1), pc(1))
    cmul(a, pc(4), pc(2), pc(2))
    Q1, QA, QB = 60, 62, 64
    cmul(a, Q1, pc(4), pc(4))
    a(f"v_mov_b32 v30, 0x3c00")
    a(f"v_xor_b32 v{Q1+1}, 0x80000000, v{Q1+1}")
    a("ds_write_addtid_b32 v30")
    emit(1, Q1)
    cur, nxt = Q1, QA
    for b in range(2, 16):
        cmul(a, nxt, cur, Q1)
        if side:
            a(side.pop(0))
        emit(b, nxt)
        cur, nxt = nxt, (QB if nxt == QA else QA)
    a("s_lshr_b32 s8, s8, 23")
    a("s_sub_u32 s8, 258, s8")
    a("s_min_u32 s54, s8, 253")
    a("s_lshl_b32 s8, s54, 23")
    a(f"v_mul_f32 v{WR}, s8, v{WR}")
    a(f"v_mul_f32 v{WR+1}, s8, v{WR+1}")
    QF, PF, KA = 72, 88, 104
    flush()
    for ks in range(4):
        a(f"ds_read_b128 {vr(QF+4*ks,4)}, v7 offset:{64*ks}")
    direct(R1, 128)
    cmul(a, pc(3), pc(2), pc(1)); cmul(a, pc(5), pc(4), pc(1)); cmul(a, pc(6), pc(3), pc(3)); cmul(a, pc(7), pc(6), pc(1))
    CH = [66, 68]
    YC = [60, 62]
    state = {"cur": WR, "k": 0, "y": 0}

    def adv():
        n = CH[state["k"] & 1]
        cmul(a, n, state["cur"], R1)
        state["cur"] = n; state["k"] += 1

    def row(r, c):
        if c == 0:
            emit(r, state["cur"])
        else:
            y = YC[state["y"] & 1]; state["y"] += 1
            cmul(a, y, state["cur"], pc(c))
            emit(r, y)

    def rd():
        flush()
        for ks in range(4):
            a(f"ds_read_b128 {vr(PF+4*ks,4)}, v7 offset:{64*ks}")

    def mm(t, ks):
        a(f"v_mfma_f32_16x16x32_f16 {vr(KA+4*t,4)}, {vr(PF+4*ks,4)}, {vr(QF+4*ks,4)}, {vr(KA+4*t,4) if ks else 0}")
    for h in range(2):
        for c in range(8):
            row(8 * h + c, c)
        adv()
    rd()
    for h in range(2):
        for c in range(4):
            row(4 * h + c, 2 * c)
            if h == 1:
                mm(0, c)
        adv()
    for q in range(4):
        row(8 + 2 * q, 0); row(9 + 2 * q, 4)
        adv()
    rd()
    for q in range(9):
        row(q, 0)
        if q < 8:
            adv()
        if 4 <= q < 8:
            mm(1, q - 4)
    rd()
    a("v_lshl_add_u32 v8, v2, 4, s15")
    for ks in range(4):
        mm(2, ks)
    a.auto(False)
    a.stamp(2)
    if STAMP and E("CLK2"):
        a("s_memtime s[96:97]")
    a("s_lshl_b32 s8, s12, 2")
    a(f"s_add_u32 s8, s8, {F_PAIR}")
    a("v_mov_b32 v9, s8")
    a("s_cmp_eq_u32 s13, 0")
    a("s_cbranch_scc1 C_KA")
    for t in range(3):
        a(f"ds_write_b128 v8, {vr(KA+4*t,4)} offset:{1024*t}")
    a("v_mov_b32 v10, s54")
    a("ds_write_b32 v9, v10")
    a.stamp(3)
    a("s_setprio 0")
    a("v_and_b32 v14, 3, v3")
    a("v_sub_u32 v14, 3, v14")
    a(f"v_mul_u32_u24 v14, {CS}, v14")
    a("v_lshrrev_b32 v13, 2, v3")
    a("v_lshl_add_u32 v13, v4, 1, v13")
    a("v_lshl_add_u32 v14, v13, 3, v14")
    a("v_add3_u32 v5, v14, s52, 8")
    a("v_lshlrev_b32 v14, 1, v3")
    a("v_sub_u32 v14, v4, v14")
    a("v_lshlrev_b32 v14, 4, v14")
    a(f"s_add_u32 s8, s53, {4064-512*7}")
    a("v_add_u32 v6, s8, v14")
    a("v_lshl_add_u32 v14, v3, 2, v4")
    a(f"s_mul_i32 s8, s12, {OS}")
    a(f"s_add_u32 s8, s8, {OP+4088-512*7}")
    a("v_lshlrev_b32 v14, 3, v14")
    a("v_sub_u32 v140, s8, v14")
    a.spin(F_H, 1, 10, prio=0, sleep=1)
    a.spin(f"v9 offset:{F_K-F_PAIR}", 0, 10, op="lg")
    a.stamp(4)
    if STAMP and E("CLK"):
        a("s_memtime s[82:83]")
    gphase(a, 0)
    a.lab("C_KA")
    a("s_setprio 1")
    a("v_lshrrev_b32 v116, 1, v4")
    a("v_and_b32 v117, 1, v4")
    a("v_lshlrev_b32 v116, 8, v116")
    a("v_lshl_add_u32 v116, v117, 3, v116")
    a("v_lshl_add_u32 v116, v3, 4, v116")
    a("v_add_u32 v116, s15, v116")
    a("v_cmp_gt_u32 vcc, 2, v4")
    a("v_lshlrev_b32 v117, 2, v3")
    a("v_lshlrev_b32 v118, 3, v3")
    a("v_cndmask_b32 v117, v117, v118, vcc")
    a("v_lshl_add_u32 v117, v4, 7, v117")
    a("v_add_u32 v117, s15, v117")
    a("v_mov_b32 v118, 64")
    a("v_cndmask_b32 v118, v118, 4, vcc")
    a("v_add_u32 v118, v118, v117")
    a("v_lshlrev_b32 v119, 1, v3")
    a("v_lshl_add_u32 v119, v4, 7, v119")
    a("v_add_u32 v119, s15, v119")
    a("v_lshlrev_b32 v120, 5, v2")
    a("v_lshlrev_b32 v121, 4, v2")
    a("v_add_u32 v121, 256, v121")
    a("v_min_u32 v120, v120, v121")
    a("v_lshlrev_b32 v121, 3, v2")
    a("v_add_u32 v121, 512, v121")
    a("v_min_u32 v120, v120, v121")
    a("v_add_u32 v120, s15, v120")
    EB = 2048
    a("v_min_u32 v121, 15, v2")
    a("v_lshl_add_u32 v121, v121, 2, s15")
    a("v_lshlrev_b32 v122, 2, v4")
    a("v_sub_u32 v122, v3, v122")
    a("v_lshl_add_u32 v122, v122, 2, s15")
    a(f"v_add_u32 v122, {EB+52}, v122")
    a("v_lshl_add_u32 v123, v2, 5, s52")
    a("s_mov_b32 s56, 0x01000100")
    a("s_mov_b32 s57, 0x03020302")
    a("v_and_b32 v14, 3, v3")
    a("v_sub_u32 v14, 3, v14")
    a(f"v_mul_u32_u24 v14, {CS}, v14")
    a("v_lshrrev_b32 v13, 2, v3")
    a("v_lshl_add_u32 v13, v4, 1, v13")
    a("v_lshl_add_u32 v14, v13, 3, v14")
    a("v_add3_u32 v5, v14, s52, 8")
    a("v_lshlrev_b32 v14, 1, v3")
    a("v_sub_u32 v14, v4, v14")
    a("v_lshlrev_b32 v14, 4, v14")
    a(f"s_add_u32 s8, s53, {4064-512*7}")
    a("v_add_u32 v6, s8, v14")
    a("v_lshl_add_u32 v14, v3, 2, v4")
    a(f"s_mul_i32 s8, s12, {OS}")
    a(f"s_add_u32 s8, s8, {OP+4088-512*7}")
    a("v_lshlrev_b32 v14, 3, v14")
    a("v_sub_u32 v140, s8, v14")
    if E("APR", 2) != 2:
        a(f"s_setprio {E('APR', 2)}")
    a("v_lshl_add_u32 v14, v4, 3, v3")
    a("v_sub_u32 v14, 39, v14")
    a("s_mov_b32 s8, 0x3f800000")
    for P, bits, sh in ((PA, 0x7f, 19), (PB, 0x1ff, 20)):
        a(f"v_mov_b32 v10, {bits}")
        a("v_mov_b32 v11, 0")
        a("v_lshlrev_b64 v[10:11], v14, v[10:11]")
        a(f"v_alignbit_b32 v10, v11, v10, {sh}")
        for p in range(4):
            a(f"v_bfe_i32 v11, v10, {2*p}, 1")
            a(f"v_bfe_i32 v12, v10, {2*p+1}, 1")
            a("v_and_b32 v11, 0x3f80, v11")
            a(f"v_and_or_b32 v{P+p}, v12, s8, v11")
    a("s_lshl_b32 s8, s12, 4")
    a("s_lshr_b64 s[68:69], s[68:69], s8")
    a("s_lshl_b32 s68, s68, 16")
    a("s_sub_u32 s58, 254, s54")
    a("s_lshl_b32 s58, s58, 23")
    for r in range(12):
        a(f"v_mul_f32 v{KA+r}, s58, v{KA+r}")
    a("s_mov_b64 exec, 1")
    a(f"v_add_f32 v{KA}, s68, v{KA}")
    a("s_mov_b64 exec, -1")
    a.spin("v9", 0, 18, prio=2, op="lg")
    a("s_sub_u32 s60, 254, s8")
    a("s_lshl_b32 s60, s60, 23")
    a.auto(True)
    for t in range(3):
        a(f"ds_read_b128 {vr(PF+4*t,4)}, v8 offset:{4*KTS+1024*t}")
    for t in range(3):
        for p in range(2):
            r = 4 * t + 2 * p
            a(f"v_pk_fma_f32 {vr(KA+r,2)}, {vr(PF+r,2)}, s[60:61], {vr(KA+r,2)} op_sel_hi:[1,0,1]")
            a(f"v_cvt_pk_bf16_f32 v{20+2*t+p}, v{KA+r}, v{KA+r+1}")
        if t == 0:
            a("ds_write_b64 v116, v[20:21]")
        elif t == 1:
            a("ds_write_b32 v117, v22 offset:512")
            a("ds_write_b32 v118, v23 offset:512")
    a("ds_write_b16 v119, v24 offset:1024")
    S = 32
    for p in range(4):
        a(f"ds_read_b64 {vr(S+2*p,2)}, v120 offset:{8*p}")
    a("s_mov_b32 exec_lo, 0xffff0000")
    a("s_mov_b32 exec_hi, 0")
    for p in range(7, -1, -1):
        if p & 1:
            a(f"v_alignbit_b32 v{S+p}, v{S+p//2+1}, v{S+p//2}, 16")
        else:
            a(f"v_perm_b32 v{S+p}, v{S+p//2}, v{S+p//2}, s56")
    a("s_mov_b32 exec_lo, 0")
    a("s_mov_b32 exec_hi, -1")
    for p, (src, kind) in reversed(list(enumerate([(0, "l"), (0, "m"), (0, "h"), (1, "l"), (1, "l"), (1, "m"), (1, "h"), (2, "l")]))):
        if kind == "m":
            a(f"v_mov_b32 v{S+p}, v{S+src}")
        else:
            a(f"v_perm_b32 v{S+p}, v{S+src}, v{S+src}, s{56 if kind == 'l' else 57}")
    a("s_mov_b64 exec, -1")
    a(f"ds_write_b128 v123, {vr(S,4)} offset:32")
    a(f"ds_write_b128 v123, {vr(S+4,4)} offset:48")
    a(f"v_mov_b32_dpp v{S-2}, v{S+6} wave_shr:1 {DPPF} bound_ctrl:0")
    a(f"v_mov_b32_dpp v{S-1}, v{S+7} wave_shr:1 {DPPF} bound_ctrl:0")
    C1, C2, C3 = 44, 52, 60
    for p in range(8):
        a(f"v_alignbit_b32 v{C1+p}, v{S+p}, v{S+p-1}, 16")
        if p & 3 == 3:
            a(f"ds_write_b128 v123, {vr(C1+p-3,4)} offset:{CS+32+4*(p-3)}")
    for p in range(4):
        a(f"v_pk_mov_b32 {vr(C2+2*p,2)}, {vr(S+2*p-2,2)}, {vr(S+2*p,2)} op_sel:[1,0]")
        if p & 1:
            a(f"ds_write_b128 v123, {vr(C2+2*p-2,4)} offset:{2*CS+32+8*(p-1)}")
    for p in range(8):
        a(f"v_alignbit_b32 v{C3+p}, v{S+p-1}, v{S+p-2}, 16")
        if p & 3 == 3:
            a(f"ds_write_b128 v123, {vr(C3+p-3,4)} offset:{3*CS+32+4*(p-3)}")
    a("v_mov_b32 v10, 1")
    a(f"ds_write_b32 v9, v10 offset:{F_K-F_PAIR}")
    a.stamp(3)
    a(f"s_setprio {E('GPL', 3)}")
    for r in range(4):
        a(f"ds_write_b16{'_d16_hi' if r&1 else ''} v119, v{24+(r>>1)} offset:{EB+62+32*r}")
    a(f"ds_write_b32 v121, v1 offset:{EB}")
    for D in range(4):
        a(f"ds_read2_b32 {vr(EF+4*D,2)}, v122 offset0:{16*D+3} offset1:{16*D+2}")
        a(f"ds_read2_b32 {vr(EF+4*D+2,2)}, v122 offset0:{16*D+1} offset1:{16*D}")
    TL = 72
    a(f"v_alignbit_b32 v{TL}, v{S+7}, v{S+6}, 16")
    for r in (1, 2, 3, 6, 7, 8, 10, 11, 12):
        a(f"v_mov_b32 v{TL+r}, v{S+7}")
    a(f"v_and_b32 v{TL+4}, 0xffff, v{S+7}")
    a(f"v_and_b32 v{TL+9}, 0xffff, v{S+7}")
    a(f"v_mov_b32 v{TL+5}, 0")
    a(f"v_mov_b32 v{TL+13}, 0")
    a("s_mov_b32 exec_lo, 0")
    a("s_mov_b32 exec_hi, 0x80000000")
    a(f"ds_write_b128 v123, {vr(TL,4)} offset:{3*CS+64}")
    a(f"ds_write_b128 v123, {vr(TL+2,4)} offset:64")
    a(f"ds_write_b128 v123, {vr(TL+6,4)} offset:{2*CS+64}")
    a(f"ds_write_b128 v123, {vr(TL+10,4)} offset:{CS+64}")
    a("s_mov_b64 exec, -1")
    a.auto(False)
    a.spin(F_H, 1, 10, sleep=1)
    a.stamp(4)
    gphase(a, 1)


def bias_of(a, d, m):
    a(f"v_lshrrev_b32 v{d}, 7, v{m}")
    a(f"v_subrev_u32 v{d}, 26, v{d}")
    a(f"v_max_i32 v{d}, 0, v{d}")


def gphase(a, isA):
    AC = 16
    SET = [32, 76]
    a(f"s_setprio {E('GPL', 3) if isA else E('GP0', 2)}")
    acc = lambda t: vr(AC + 4 * (t & 3), 4)
    afr = lambda aa, rho: SET[rho & 1] + 4 * aa
    bfr = lambda b, rho: SET[rho & 1] + 16 + 4 * (b % 7)

    def rdA(aa, rho, dst=None):
        d = afr(aa, rho) if dst is None else dst
        return [f"ds_read_b64 {vr(d,2)}, v5 offset:{64*rho+512*aa}", f"ds_read_b64 {vr(d+2,2)}, v5 offset:{64*rho+512*aa+8}"]

    def rdB(b, rho, dst=None, extra=0):
        return [f"ds_read_b128 {vr(bfr(b, rho) if dst is None else dst,4)}, v6 offset:{512*(7-b)+64*rho+extra}"]
    started = set()

    def mf(t, A, B):
        c = acc(t) if t in started else "0"
        started.add(t)
        return f"v_mfma_f32_16x16x32_bf16 {acc(t)}, {vr(A,4)}, {vr(B,4)}, {c}"

    def reads(pairs, rho):
        r, sa, sb = [], set(), set()
        for t, aa in pairs:
            if aa not in sa:
                sa.add(aa); r += rdA(aa, rho)
            if t - aa not in sb:
                sb.add(t - aa); r += rdB(t - aa, rho)
        return r

    def sweep(pairs, plan=None, hook=None):
        plan = plan or [(pairs, rho) for rho in range(8)]
        for x in reads(*plan[0]):
            a(x)
        for i, (pairs, rho) in enumerate(plan):
            nxt = reads(*plan[i + 1]) if i + 1 < len(plan) else []
            if hook:
                nxt = nxt + hook(i)
            n, done = len(nxt), 0
            for k, (t, aa) in enumerate(pairs):
                if i and k in (0, len(pairs) // 2):
                    rest = pairs[k:len(pairs) // 2] if k == 0 else pairs[k:]
                    a("@need " + ", ".join([vr(afr(a2, rho), 4) for t2, a2 in rest] + [vr(bfr(t2 - a2, rho), 4) for t2, a2 in rest]))
                a(mf(t, afr(aa, rho), bfr(t - aa, rho)))
                upto = -(-n * (k + 1) // len(pairs))
                while done < upto:
                    a(nxt[done]); done += 1

    def yout(tiles, fl):
        for k, t in enumerate(tiles):
            R = AC + 4 * (t & 3)
            a(f"v_cvt_pk_bf16_f32 v{124+2*k}, v{R+3}, v{R+2}")
            a(f"v_cvt_pk_bf16_f32 v{125+2*k}, v{R+1}, v{R}")
            a(f"ds_write_b64 v140, {vr(124+2*k,2)} offset:{512*(7-t)}")
        a.auto(False)
        a.signal(F_O + 4 * fl, 12)
    a.auto(True)
    if isA:
        UA, UB, ZA, ZB, A32 = 32, 48, 64, 80, 96
        for b in range(4):
            for x in rdB(b, 0, UA + 4 * b) + rdB(b, 0, UB + 4 * b, 16):
                a(x)
        for x in rdA(4, 0, A32):
            a(x)
        for b in range(4):
            a(f"v_mfma_f32_16x16x32_bf16 {vr(ZA+4*b,4)}, {vr(UA+4*b,4)}, {vr(PA,4)}, 0")
            a(f"v_mfma_f32_16x16x32_bf16 {vr(ZB+4*b,4)}, {vr(UB+4*b,4)}, {vr(PB,4)}, 0")
        for b in range(4):
            a(mf(4 + b, A32, UA + 4 * b))
            for r in range(4):
                a(f"v_cvt_pk_bf16_f32 v{ZA+4*b+r}, v{ZA+4*b+r}, v{ZB+4*b+r}")
        for t in range(4, 8):
            for b in range(t - 3):
                a(mf(t, ZA + 4 * b, EF + 4 * (t - b - 4)))
        a.auto(False)
        a.stamp(5)
        a.spin(F_H + 4, 1, 10, prio=E('GP1', 1), sleep=1)
        if STAMP and E("CLK"):
            a("s_memtime s[82:83]")
            a.stamp(4)
        a.auto(True)
        P = lambda ts: [(t, aa) for aa in range(4) for t in ts]
        plan = [(P((7, 6, 5, 4)), r) for r in range(R3)] + [(P((5, 4)), r) for r in range(R3, 8)] + [(P((7, 6)), r) for r in range(R3, 8)]

        def hook(i):
            if i != 8:
                return []
            o = []
            for k, t in enumerate((5, 4)):
                R = AC + 4 * (t & 3)
                o += [f"v_cvt_pk_bf16_f32 v{124+2*k}, v{R+3}, v{R+2}", f"v_cvt_pk_bf16_f32 v{125+2*k}, v{R+1}, v{R}",
                      f"ds_write_b64 v140, {vr(124+2*k,2)} offset:{512*(7-t)}"]
            return o + [f"ds_add_u32 v13, v12"]
        a("v_cmp_eq_u32 vcc, 0, v2")
        a(f"v_mov_b32 v13, {F_O+4}")
        a("v_cndmask_b32 v12, 0, 1, vcc")
        a("v_lshl_add_u32 v14, v2, 2, s15")
        a("v_cndmask_b32 v13, v14, v13, vcc")
        sweep(None, plan, hook)
        a.stamp(6)
        if STAMP and E("CLK"):
            a("s_memtime s[84:85]")
        yout((7, 6), 2)
        a.stamp(7)
        a.end()
        return
    sweep([(t, aa) for aa in range(4) for t in range(3, aa - 1, -1)])
    a.stamp(6)
    if STAMP and E("CLK"):
        a("s_memtime s[84:85]")
    yout((0, 1, 2, 3), 0)
    a.stamp(7)
    a(f"ds_read_b32 v10, v1 offset:{F_X}")
    a("s_cmp_eq_u32 s3, 4")
    a("s_cbranch_scc1 C_FIN")
    a.end()


EG, ES = 40, 6


def epi_setup(a):
    srd(a, 60, P_OUT, 2359296)


def epi_gaddr(a, d):
    a("s_lshl_b32 s8, s14, 8")
    a(f"s_add_u32 s8, s8, {WS_G}")
    a(f"v_xor_b32 v{d}, 63, v2")
    a(f"v_lshrrev_b32 v{d}, 1, v{d}")
    a(f"v_lshl_add_u32 v{d}, v{d}, 3, s8")


def tr_addr(a, d, base, stride, n):
    a(f"v_bfe_u32 v{d}, v2, 2, 2")
    a(f"v_mul_u32_u24 v{d}, {stride}, v{d}")
    a("v_and_b32 v13, 3, v2")
    a("v_lshl_add_u32 v13, v4, 2, v13")
    a(f"v_lshl_add_u32 v{d}, v13, 3, v{d}")
    a("s_lshl_b32 s8, s14, 7")
    a(f"s_sub_u32 s8, {base+3968-128*(n-1)}, s8")
    a(f"v_add_u32 v{d}, s8, v{d}")


def epi_x(a, n, slot0):
    tr_addr(a, 12, UP, US, n)
    for k in range(n):
        a(f"ds_read_b64_tr_b16 {vr(EG+ES*(slot0+k)+4,2)}, v12 offset:{128*(n-1-k)}")


def epi_t1(a, n, slot0):
    a("s_waitcnt lgkmcnt(0)")
    for k in range(n):
        B = EG + ES * (slot0 + k)
        for p in range(2):
            a(f"v_lshlrev_b32 v{B+2*p}, 16, v{B+4+p}")
            a(f"v_and_b32 v{B+1+2*p}, 0xffff0000, v{B+4+p}")


def epi_g(a, sets, GD):
    n = sum(c for _, c in sets)
    l = a.uid("GP")
    a("s_mov_b32 s9, 0")
    a.lab(l)
    a(f"v_xor_b32 v14, v{GD+1}, v10")
    for k in range(1, n):
        a(f"v_bitop3_b32 v14, v14, v{GD+2*k+1}, v10 bitop3:0xf6")
    a("v_cmp_ne_u32 vcc, 0, v14")
    a("s_add_u32 s9, s9, 1")
    a("s_cmp_eq_u64 vcc, 0")
    a(f"s_cbranch_scc1 {l}_D")
    a(f"s_cmp_ge_u32 s9, {SPIN}")
    a(f"s_cbranch_scc1 {l}_D")
    epi_gl(a, sets, GD)
    a("s_waitcnt vmcnt(0)")
    a(f"s_branch {l}")
    a.lab(l + "_D")


def epi_gl(a, sets, GD):
    k = 0
    for ad, c in sets:
        for i in range(c):
            a(f"global_load_dwordx2 {vr(GD+2*k,2)}, v{ad}, {sr(P_WS,2)} offset:{256*i} sc1")
            k += 1


def epi_t2(a, n, slot0, GD):
    a("v_and_b32 v11, 1, v2")
    a("v_lshlrev_b32 v11, 4, v11")
    a("s_lshl_b32 s8, s14, 8")
    a(f"s_add_u32 s8, s8, {OM}")
    a("v_xor_b32 v12, 63, v2")
    a("v_lshl_add_u32 v12, v12, 2, s8")
    Bs = [EG + ES * (slot0 + k) for k in range(n)]
    for k, B in enumerate(Bs):
        a(f"v_lshlrev_b32 v{B+4}, v11, v{GD+2*k}")
    for B in Bs:
        a(f"v_and_b32 v{B+4}, 0xffff0000, v{B+4}")
    for B in Bs:
        a(f"v_sub_f32 v{B+5}, 1.0, v{B+4}")
    for B in Bs:
        a(f"v_cvt_pk_bf16_f32 v{B+5}, v{B+5}, v{B+5}")
    for B in Bs:
        a(f"v_and_b32 v{B+5}, 0xffff0000, v{B+5}")
    for k, B in enumerate(Bs):
        if E("PK1"):
            for p in range(2):
                a(f"v_pk_mul_f32 {vr(B+2*p,2)}, {vr(B+2*p,2)}, {vr(B+4,2)} op_sel:[0,1] op_sel_hi:[1,1]")
        else:
            for r in range(4):
                a(f"v_mul_f32 v{B+r}, v{B+r}, v{B+5}")
        a(f"ds_write_b32 v12, v{B+4} offset:{256*k}")


def epi_fin(a, n, slot0, half):
    tr_addr(a, 12, OP, OS, n)
    a("v_xor_b32 v14, 63, v2")
    a("v_mul_u32_u24 v14, 1152, v14")
    a("v_add_u32 v14, s55, v14")
    a("s_mul_i32 s15, s14, 73728")
    a.spin(F_O + 4 * half, 4, 15, sleep=E("OSL", 1), prio=3)
    a.auto(True)
    Y = 16
    for k in range(n):
        a(f"ds_read_b64_tr_b16 {vr(Y+2*k,2)}, v12 offset:{128*(n-1-k)}")
    for k in range(n):
        B = EG + ES * (slot0 + k)
        R, y = 24 + 4 * k, Y + 2 * k
        for p in range(2):
            a(f"v_lshlrev_b32 v{R+2*p}, 16, v{y+p}")
            a(f"v_and_b32 v{R+2*p+1}, 0xffff0000, v{y+p}")
        if E("PK2"):
            for p in range(2):
                a(f"v_pk_fma_f32 {vr(B+2*p,2)}, {vr(R+2*p,2)}, {vr(B+4,2)}, {vr(B+2*p,2)} op_sel_hi:[1,0,1]")
        else:
            for r in range(4):
                a(f"v_fmac_f32 v{B+r}, v{R+r}, v{B+4}")
        for p in range(2):
            a(f"v_cvt_pk_bf16_f32 v{B+p}, v{B+2*p}, v{B+2*p+1}")
        if E("STW", -1) >= 0 and k:
            a(f"s_waitcnt vmcnt({E('STW')})")
        a(f"buffer_store_dwordx2 {vr(B,2)}, v14, s[60:63], s15 offen")
        a("s_add_u32 s15, s15, 73728")
    a.auto(False)


def gsets(a, mid):
    a("s_lshl_b32 s14, s12, 1")
    a("s_add_u32 s14, s14, 16")
    epi_gaddr(a, mid)
    a(f"v_add_u32 v9, 2048, v{mid}")
    a("s_lshl_b32 s14, s12, 2")
    epi_gaddr(a, 5)


def burst_addr(a):
    a(f"s_sub_u32 s9, s5, {NJH}")
    a("s_lshl_b32 s9, s9, 2")
    a("s_add_u32 s9, s9, s12")
    a("s_mul_i32 s9, s9, 9216")
    a("s_mul_i32 s8, s4, 663552")
    a("s_add_u32 s8, s8, s9")
    a("v_lshl_add_u32 v88, v2, 7, s8")
    a("v_min_u32 v89, 7, v2")
    a("v_lshl_add_u32 v89, v89, 7, s8")
    a("v_add_u32 v89, 8192, v89")


def burst(a):
    if BSN:
        for k in range(2):
            a(f"global_load_dword v{96+k}, v{88+k}, {sr(P_WD,2)}")


def io_common(a):
    a("s_mul_i32 s7, s4, 18")
    a("s_add_u32 s7, s7, s5")
    a(f"s_sub_u32 s7, s7, {NJH}")
    a("s_lshl_b32 s55, s7, 3")
    a("s_sub_u32 s12, s3, 8")
    epi_setup(a)
    burst_addr(a)


def uloader(a):
    a.lab("C_LOAD")
    a("s_setprio 3")
    a(f"s_sub_u32 s13, s5, {NJH}")
    pf = stripe_pf(a)
    a("v_mul_u32_u24 v6, 4608, v2")
    a("s_lshl_b32 s8, s7, 3")
    a("v_add_u32 v6, s8, v6")
    a("v_lshlrev_b32 v7, 3, v2")
    a(f"v_sub_u32 v7, {UP+4088-512*7}, v7")
    a("s_mov_b32 s56, 0x05040100")
    a("s_mov_b32 s58, 0x07060302")
    a("s_mov_b32 s57, s13")
    a("s_waitcnt lgkmcnt(0)")
    if E("PFE", 0):
        for x in pf:
            a(x)
    srd(a, 72, P_U, 2359296)
    a.b0(12)
    if E("PFX"):
        a.spin(F_X, 0, 12, op="lg")
    if not E("PFE", 0):
        for k, x in enumerate(pf):
            if k == 2 and E("PF2"):
                a("s_waitcnt vmcnt(0)")
            a(x)
    io_common(a)
    for j in range(4):
        a(f"v_mov_b32 v{24+j}, 0")
    a("v_lshrrev_b32 v28, 2, v2")
    a(f"v_mul_u32_u24 v28, {CS}, v28")
    a(f"v_add_u32 v28, {KC}, v28")
    a("v_and_b32 v29, 3, v2")
    a("v_lshl_add_u32 v30, v29, 4, v28")
    a("ds_write_b128 v30, v[24:27] offset:2096")
    a("v_and_b32 v29, 1, v2")
    a("v_lshl_add_u32 v30, v29, 4, v28")
    a("ds_write_b128 v30, v[24:27]")
    a("v_lshrrev_b32 v28, 5, v2")
    a(f"v_mul_u32_u24 v28, {US}, v28")
    a("v_and_b32 v29, 31, v2")
    a("v_lshl_add_u32 v30, v29, 4, v28")
    a(f"v_add_u32 v30, {UP+4096}, v30")
    a("ds_write_b128 v30, v[24:27]")
    a(f"ds_write_b128 v30, v[24:27] offset:{2*US}")
    gsets(a, 13)
    a("s_mov_b32 s15, 0")
    if ROT:
        for k in range(4):
            a(f"s_add_u32 s8, s57, {k}")
            a("s_and_b32 s8, s8, 3")
            a(f"s_mul_i32 s{76+k}, s8, 294912")
            a(f"s_add_u32 s{64+k}, s{76+k}, {4*294912}")
            a("s_lshl_b32 s8, s8, 9")
            a(f"v_subrev_u32 v{32+k}, s8, v7")
    a("v_mov_b32 v12, 1")
    a(f"s_waitcnt vmcnt({E('UW', 2)})")
    a.stamp(7)
    U = 104

    def issue(i):
        if not NOU:
            so = f"s{(76 if i < 16 else 64) + ((i >> 2) & 3)}" if ROT else "s15"
            a(f"buffer_load_dwordx2 {vr(U+2*i,2)}, v6, s[72:75], {so} offen offset:{1152*(i&3)}")
        if i & 3 == 3:
            a("s_add_u32 s15, s15, 294912")
        if i == BST:
            a(f"ds_write_b32 v1, v12 offset:{F_UI}")
            epi_gl(a, [(5, 4), (13, 2), (9, 2)], 104)
            burst(a)
    a.auto(True)
    nis = 0
    for i in range(32):
        while nis < min(32, i + WIN_U):
            issue(nis); nis += 1
        a(f"@need {vr(U+2*i,2)}")
        if i & 3 == 3:
            while nis < min(32, i + 1 + WIN_U):
                issue(nis); nis += 1
            t, u, o = i >> 2, U + 2 * (i - 3), 16 + 8 * ((i >> 2) & 1)
            for ch in range(4):
                sel = "s58" if ch & 1 else "s56"
                a(f"v_perm_b32 v{o+2*ch}, v{u+4+(ch>>1)}, v{u+6+(ch>>1)}, {sel}")
                a(f"v_perm_b32 v{o+2*ch+1}, v{u+(ch>>1)}, v{u+2+(ch>>1)}, {sel}")
                if ROT:
                    a(f"ds_write_b64 v{32+(t&3)}, {vr(o+2*ch,2)} offset:{ch*US+512*(7-(t&4))}")
                else:
                    a(f"ds_write_b64 v7, {vr(o+2*ch,2)} offset:{ch*US+512*(7-t)}")
        if i == 3:
            a.stamp(8)
        if i & 15 == 15:
            a(f"ds_write_b32 v1, v12 offset:{F_H+4*(i>>4)}")
            a.stamp(2 - (i >> 4))
    a.auto(False)
    a("v_mov_b32 v6, v13")
    a.spin(F_X, 0, 10, op="lg")
    epi_x(a, 4, 0)
    epi_t1(a, 4, 0)
    a("s_branch C_IO3")
    a.lab("C_IO")
    io_common(a)
    gsets(a, 6)
    GD = 104
    GS = [(5, 4), (6, 2), (9, 2)]
    a.spin(F_X, 0, 10, op="lg")
    a.spin(F_H, 1, 12, prio=3, sleep=2)
    epi_x(a, 4, 0)
    epi_t1(a, 4, 0)
    a.spin(F_UI, 1, 12, prio=3, sleep=1)
    epi_gl(a, GS, GD)
    burst(a)
    a.lab("C_IO3")
    a(f"s_waitcnt vmcnt({2 if BSN else 0})")
    epi_g(a, GS, GD)
    epi_t2(a, 4, 0, GD)
    a.stamp(3)
    epi_fin(a, 4, 0, 0)
    a.stamp(4)
    a.spin(F_H + 4, 1, 12, prio=3, sleep=2)
    def hi(base):
        a("s_lshl_b32 s14, s12, 1")
        a(f"s_add_u32 s14, s14, {base}")
    hi(24); epi_x(a, 2, 6)
    hi(16); epi_x(a, 2, 4)
    epi_t1(a, 4, 4)
    hi(24); epi_t2(a, 2, 6, GD + 12)
    hi(16); epi_t2(a, 2, 4, GD + 8)
    epi_fin(a, 2, 4, 1)
    a.stamp(5)
    hi(24); epi_fin(a, 2, 6, 2)
    a.signal(F_SI, 8)
    a.stamp(6)
    a("s_waitcnt vmcnt(0)")
    a.signal(F_ST, 8)
    a.end()
    a.lab("C_FIN")
    Z = 104
    a("s_setprio 0")
    a("v_and_b32 v8, 7, v2")
    a("v_lshlrev_b32 v8, 3, v8")
    a(f"v_add_u32 v8, {WS_SEL}, v8")
    a("s_mul_i32 s8, s7, 9216")
    a(f"s_add_u32 s8, s8, {WS_MB}")
    a("v_lshl_add_u32 v5, v2, 4, s8")
    a("v_add_u32 v6, 0x1000, v5")
    a("v_add_u32 v7, 0x2000, v5")
    a("s_waitcnt lgkmcnt(0)")
    for j in range(4):
        a(f"v_lshrrev_b32 v{Z+6+j}, {8*j}, v10")
    a("s_mov_b32 s9, 0")
    a.lab("C_SPOLL")
    a(f"global_load_dwordx2 v[16:17], v8, {sr(P_WS,2)} sc1")
    a("s_waitcnt vmcnt(0)")
    a("v_cmp_ne_u32 vcc, v17, v10")
    a("s_add_u32 s9, s9, 1")
    a("s_cmp_eq_u64 vcc, 0")
    a("s_cbranch_scc1 C_SOK")
    a("s_sleep 4")
    a(f"s_cmp_lt_u32 s9, {SPIN}")
    a("s_cbranch_scc1 C_SPOLL")
    a.lab("C_SOK")
    a.spin(F_H + 4, 1, 12, prio=3, sleep=2)
    a("v_and_b32 v18, 0x7ff, v16")
    a("v_sub_u32 v18, 2047, v18")
    a("v_and_b32 v19, 1, v4")
    a("v_lshrrev_b32 v20, 1, v4")
    a("v_lshl_or_b32 v19, v19, 1, v20")
    a("v_lshlrev_b32 v19, 1, v19")
    a("v_and_b32 v22, 0x7ff, v16")
    a(f"v_mul_u32_u24 v23, {US//2}, v19")
    a("v_lshl_add_u32 v23, v22, 1, v23")
    a(f"v_add_u32 v23, {UP}, v23")
    a(f"ds_read_u16 v{Z+1}, v23")
    a("v_and_b32 v20, 0xffff0000, v16")
    a("v_ashrrev_i32 v21, 31, v20")
    a("v_not_b32 v21, v21")
    a("v_or_b32 v21, 0x80000000, v21")
    a("v_and_b32 v21, 0xffff0000, v21")
    a("v_xor_b32 v20, v20, v21")
    sigmoid_f32(a, Z, 20, 21)
    rb(a, Z)
    a(f"v_lshlrev_b32 v{Z+2}, 2, v18")
    a(f"v_add_u32 v{Z+2}, {OM}, v{Z+2}")
    a(f"v_mul_u32_u24 v{Z+3}, {OS//2}, v19")
    a(f"v_lshl_add_u32 v{Z+3}, v22, 1, v{Z+3}")
    a(f"v_add_u32 v{Z+3}, {OP}, v{Z+3}")
    a(f"v_mul_u32_u24 v{Z+4}, 1152, v18")
    a(f"v_add3_u32 v{Z+4}, v{Z+4}, v19, s55")
    a("s_waitcnt lgkmcnt(0)")
    a(f"v_lshlrev_b32 v{Z+1}, 16, v{Z+1}")
    MB = 120
    a("s_mov_b32 s9, 0")
    a("s_setprio 0")
    a("s_mov_b64 exec, 1")
    if E("SENT"):
        a(f"v_add_u32 v27, {128*E('SENT')}, v5")
    a.lab("C_M1")
    a(f"ds_read_b32 v26, v1 offset:{F_O+4}")
    a("s_waitcnt lgkmcnt(0)")
    a("v_readfirstlane_b32 s8, v26")
    a(f"s_cmp_ge_u32 s8, {E('MF', 1)}")
    a("s_cbranch_scc1 C_M1S")
    a(f"global_load_dword v26, v{27 if E('SENT') else 5}, {sr(P_WS,2)} sc1")
    a("s_waitcnt vmcnt(0)")
    a("v_xor_b32 v26, v26, v10")
    a("v_and_b32 v26, 0xff, v26")
    a("v_cmp_ne_u32 vcc, 0, v26")
    a("s_add_u32 s9, s9, 1")
    a("s_cmp_eq_u64 vcc, 0")
    a("s_cbranch_scc1 C_M1D")
    a(f"s_cmp_lt_u32 s9, {SPIN}")
    a("s_cbranch_scc1 C_M1")
    a.lab("C_M1S")
    a.spin(F_SI, E("SI", 4), 26, sleep=1)
    a.lab("C_M1D")
    a.stamp(5)
    a("s_mov_b64 exec, -1")
    a("s_setprio 3")
    a("s_mov_b32 s9, 0")
    a.lab("C_MPOLL")
    for i in range(9):
        a(f"global_load_dwordx4 {vr(MB+4*i,4)}, v{5+(i>>2)}, {sr(P_WS,2)} offset:{1024*(i&3)} sc1")
    for i in range(9):
        a(f"s_waitcnt vmcnt({8-i})")
        for j in range(4):
            if i == 0 and j == 0:
                a(f"v_xor_b32 v26, v{MB}, v10")
            else:
                a(f"v_bitop3_b32 v26, v26, v{MB+4*i+j}, v{Z+6+j} bitop3:0xf6")
        if i:
            for p in range(2):
                a(f"v_pk_add_f32 {vr(28+2*p,2)}, {vr(28+2*p if i > 1 else MB+2*p,2)}, {vr(MB+4*i+2*p,2)}")
    a("v_and_b32 v26, 0xff, v26")
    a("v_cmp_ne_u32 vcc, 0, v26")
    a("s_add_u32 s9, s9, 1")
    a("s_cmp_eq_u64 vcc, 0")
    a("s_cbranch_scc1 C_MOK")
    if E("MSL", 2):
        a(f"s_sleep {E('MSL', 2)}")
    a(f"s_cmp_lt_u32 s9, {SPIN}")
    a("s_cbranch_scc1 C_MPOLL")
    a.lab("C_MOK")
    if STAMP:
        a("s_mov_b32 s82, s9")
    a.stamp(8)
    a("v_permlane32_swap_b32 v28, v29")
    a("v_permlane32_swap_b32 v30, v31")
    a("v_add_f32 v28, v28, v29")
    a("v_add_f32 v30, v30, v31")
    a("v_permlane16_swap_b32 v28, v30")
    a("v_add_f32 v28, v28, v30")
    a(f"v_add_f32_dpp v28, v28, v28 row_ror:8 {DPPF}")
    rb(a, 28)
    a(f"v_mul_f32 v28, v28, v{Z}")
    rb(a, 28)
    a(f"v_add_f32 v28, v28, v{Z+1}")
    rb(a, 28)
    a.spin(F_ST, 4, 27, prio=3)
    a(f"ds_read_b32 v25, v{Z+2}")
    a(f"ds_read_u16 v24, v{Z+3}")
    a("s_waitcnt lgkmcnt(0)")
    a("v_sub_f32 v26, 1.0, v25")
    a("v_lshlrev_b32 v24, 16, v24")
    rb(a, 26)
    a("v_mul_f32 v28, v28, v26")
    a("v_fmac_f32 v28, v24, v25")
    a("v_cvt_pk_bf16_f32 v28, v28, v28")
    a("s_mov_b32 exec_lo, 0x00ff00ff")
    a("s_mov_b32 exec_hi, 0x00ff00ff")
    a(f"global_store_short v{Z+4}, v28, {sr(P_OUT,2)}")
    a("s_mov_b64 exec, -1")
    a.end()


def kernel(a):
    a.raw(".p2align 8")
    a.raw(".globl k1_kernel")
    a.raw(".type k1_kernel,@function")
    a.lab("k1_kernel")
    a("v_lshrrev_b32 v1, 6, v0")
    a("s_cmp_ge_u32 s2, 256")
    a("v_readfirstlane_b32 s3, v1")
    a("s_cbranch_scc1 K_END")
    a("v_and_b32 v2, 63, v0")
    a("v_mov_b32 v1, 0")
    a("s_cmp_lg_u32 s3, 1")
    a("s_cbranch_scc1 K_NOZ")
    a("v_lshlrev_b32 v3, 2, v2")
    a("ds_write_b32 v3, v1")
    a("s_waitcnt lgkmcnt(0)")
    a.lab("K_NOZ")
    a("s_load_dwordx16 s[16:31], s[0:1], 0")
    a("s_load_dwordx16 s[32:47], s[0:1], 64")
    a("s_load_dwordx4 s[48:51], s[0:1], 128")
    a("s_lshr_b32 s5, s2, 3")
    if CODEPF:
        a("s_lshl_b32 s8, s3, 8")
        a("s_add_u32 s8, s8, s5")
        a(f"s_cmp_lg_u32 s8, {NJF}")
        a("s_cbranch_scc1 K_NOCPF")
        a("s_getpc_b64 s[8:9]")
        a("s_and_b32 s8, s8, 0xffffff00")
        a("v_lshlrev_b32 v8, 7, v2")
        for k in range(4):
            a(f"v_min_u32 v9, CODE_END-k1_kernel-4, v8")
            a(f"global_load_dword v{160+k}, v9, s[8:9]")
            a(f"v_add_u32 v8, 8192, v8")
        a.lab("K_NOCPF")
    if STAMP:
        for i in range(1, 10):
            a(f"s_mov_b32 s{80+2*i}, 0")
    if PROBE:
        a("s_mov_b32 s98, 0")
    a.stamp(0)
    a("v_and_b32 v3, 15, v2")
    a("v_lshrrev_b32 v4, 4, v2")
    a("s_and_b32 s4, s2, 7")
    if not E("OLDB0"):
        a("s_barrier")
    a("s_cmp_eq_u32 s3, 8")
    a("s_cbranch_scc1 ROUTER")
    a(f"s_cmp_lt_u32 s5, {NJH}")
    a("s_cbranch_scc1 K_OTHER")
    a("s_mul_i32 s7, s4, 18")
    a("s_add_u32 s7, s7, s5")
    a(f"s_sub_u32 s7, s7, {NJH}")
    a("s_cmp_ge_u32 s3, 8")
    a("s_cbranch_scc1 K_CIO")
    kgen_head(a)
    router(a)
    a.lab("K_OTHER")
    a("s_mul_i32 s7, s4, 9")
    a("s_add_u32 s7, s7, s5")
    a("s_mov_b32 s12, s3")
    a("s_cmp_lt_u32 s3, 2")
    a("s_cbranch_scc1 GATE")
    a(f"s_cmp_ge_u32 s5, {NJF}")
    a("s_cbranch_scc1 HELPER")
    a("s_cmp_lt_u32 s3, 8")
    a("s_cbranch_scc1 F_COMP")
    ffn_loader(a)
    a.lab("K_CIO")
    a("s_sub_u32 s12, s3, 9")
    a("s_cmp_eq_u32 s3, 11")
    a("s_cbranch_scc1 C_LOAD")
    a("s_branch GATE")
    uloader(a)
    helper(a)
    gate(a)
    kgen(a)
    select(a)
    ffn_comp(a)
    if STAMP:
        a.lab("STAMP_OUT")
        a("s_memrealtime s[98:99]")
        a("s_waitcnt lgkmcnt(0)")
        a("s_lshl_b32 s8, s2, 4")
        a("s_add_u32 s8, s8, s3")
        a("s_lshl_b32 s8, s8, 6")
        a(f"s_add_u32 s8, s8, {WS_STAMP}")
        a("v_mov_b32 v5, s8")
        for i in range(10):
            a(f"v_mov_b32 v6, s{80+2*i}")
            a(f"global_store_dword v5, v6, {sr(P_WS,2)} offset:{4*i}")
    if PROBE:
        a.lab("PADTAIL")
        a("s_waitcnt vmcnt(0) lgkmcnt(0)")
        a("s_cmp_eq_u32 s98, 0")
        a("s_cbranch_scc1 K_END")
        a("s_setprio 0")
        a.lab("PADL")
        a("s_sleep 8")
        a("s_memrealtime s[96:97]")
        a("s_waitcnt lgkmcnt(0)")
        a("s_sub_u32 s96, s96, s98")
        a("s_cmp_lt_u32 s96, 2000")
        a("s_cbranch_scc1 PADL")
    a.lab("K_END")
    a("s_endpgm")
    a.lab("CODE_END")


def main():
    ref = open(os.path.join(HERE, NAME + ".s.ref")).read().splitlines()
    head = [l for l in ref if l.startswith(";") and "@launch" not in l and "Override" not in l and "grid=ceil" not in l]
    a = G()
    kernel(a)
    out = head + [
        f"; @launch kernel=k1_kernel grid=(256,1,1) block=(768,1,1) lds={LDS}",
        '.amdgcn_target "amdgcn-amd-amdhsa--gfx950"',
        ".text",
    ] + a.finish() + [
        '.section .rodata,"a"',
        ".p2align 6",
        ".amdhsa_kernel k1_kernel",
        "  .amdhsa_next_free_vgpr 168",
        "  .amdhsa_next_free_sgpr 102",
        "  .amdhsa_accum_offset 168",
        "  .amdhsa_group_segment_fixed_size 0",
        "  .amdhsa_kernarg_size 144",
        "  .amdhsa_user_sgpr_count 2",
        "  .amdhsa_user_sgpr_kernarg_segment_ptr 1",
        "  .amdhsa_system_sgpr_workgroup_id_x 1",
        ".end_amdhsa_kernel",
    ]
    path = sys.argv[1] if len(sys.argv) > 1 else os.path.join(HERE, NAME + ".s")
    open(path, "w").write("\n".join(out) + "\n")


if __name__ == "__main__":
    main()
```

```python
import sys, os
from asmlib import *

NAME = "gated_mix__ssm_conv_s4__moe_arch_mod__prompt"
HERE = os.path.dirname(os.path.abspath(__file__))
E = lambda k, d=0: int(os.environ.get(k, d))
STAMP = E("STAMP")
PROBE = os.environ.get("PROBE", "")
CODEPF = E("CODEPF", 1)
SELD = E("SELD", 18)
UD = E("UD", 0)
KS = E("KS", 32)
WS_KEY2 = 2 << 20
PF2AT = E("PF2AT", -1)
R3 = E("R3", 6)
ROT = E("ROT", 1)
SPB = E("SPB", 0)
SPW = E("SPW", 4)
C3 = E("C3", 28)
HSB = E("HSB", 0)
WNT = os.environ.get("WNT", "")
POLLF = os.environ.get("POLLF", "sc1").replace("_", " ")
PUBF = os.environ.get("PUBF", "sc1").replace("_", " ")
PFN = E("PFN", 0)
PFS = E("PFS", 8)
PFW = E("PFW", 1)
HPN = E("HPN", 3)
HPS = E("HPS", 53)
HPW = E("HPW", 4)
PSTEP = 5 * HPW // 2
BST = E("BST", 31)
BSN = E("BSN", 5)
BSS = E("BSS", 0)
WIN_U = E("WIN_U", 5)
WIN_F = E("WIN_F", 10)
HELP = E("HELP", 1)
DUMP = E("DUMP")
HOLD = E("HOLD")
FINE = E("FINE")
NOU = E("NOU")
NOW = E("NOW")

WS_KEY, WS_G, WS_SEL, WS_BASE, WS_MB = 0, 8192, 16384, 16640, 32768
WS_UT = 8 << 20
WS_STAMP = 4 << 20
WS_SIZE = 0x10000000

LDS = 163840
F_NONCE, F_PAIR, F_ST, F_I, F_K, F_H, F_O = 0, 16, 40, 48, 64, 80, 96
F_L, F_D, F_AC, F_XR, F_HR = 16, 40, 48, 84, 88
KT = 256
KTS = 4608
TS = 288
OS = 4160
KC = KT + 8 * KTS
CS = 2240
UP = KC + 16 * CS
US = 4672
OM = UP + 4 * US
OP = OM + 8192
assert OP + 4 * OS <= 147712 and OP % 16 == 0
WA = 256
WB = WA + 73728
XB = WB + 73728
HB = XB + 9216
HS = 144
GW = HB + 8 * HS
assert GW + 2048 <= LDS and GW % 16 == 0
F_X, F_GD, F_RI, F_SI, F_UI = 8, 12, 4, 44, 88

L2E = 0x3fb8aa3b
L2E_LO = 0x32a57060
LN2 = 0x3f317218
INV2PI = 0x3e22f983

P_U, P_ARE, P_AIM, P_BRE, P_BIM, P_CRE, P_CIM, P_LDT = 16, 18, 20, 22, 24, 26, 28, 30
P_DSK, P_BX, P_WR, P_WG, P_WU, P_WD, P_GW, P_OUT = 32, 34, 36, 38, 40, 42, 44, 46
P_DBG, P_WS = 48, 50
NJF, NJH = 9, 14
SPIN = 0x20000

DPPF = "row_mask:0xf bank_mask:0xf"


class G(Asm):
    nlab = 0

    def stamp(s, i):
        if PROBE:
            import inspect
            fn = inspect.stack()[1].function
            if fn == "pre":
                fn = "ffn_loader"
            if f"{fn}:{i}" == PROBE:
                s("s_memrealtime s[98:99]")
        if STAMP and not (FINE and i >= 6):
            s(f"s_memrealtime s[{80+2*i}:{81+2*i}]")

    def fine(s, i):
        if STAMP and FINE:
            s(f"s_memrealtime s[{80+2*i}:{81+2*i}]")

    def b0(s, wait=None):
        if E("OLDB0"):
            s("s_barrier")
        elif wait is not None:
            s.spin(F_RI, 1, wait)

    def end(s):
        s("s_branch STAMP_OUT" if STAMP else "s_branch PADTAIL" if PROBE else "s_endpgm")

    def uid(s, p):
        G.nlab += 1
        return f"{p}_{G.nlab}"

    def spin(s, off, target, tv, sleep=0, op="ge", prio=None):
        l = s.uid("SP")
        if prio is not None:
            s(f"s_setprio {E('SPP', 3) if sleep else 0}")
        s("s_mov_b32 s9, 0")
        s.lab(l)
        s(f"ds_read_b32 v{tv}, v1 offset:{off}") if isinstance(off, int) else s(f"ds_read_b32 v{tv}, {off}")
        s("s_waitcnt lgkmcnt(0)")
        s(f"v_readfirstlane_b32 s8, v{tv}")
        s("s_add_u32 s9, s9, 1")
        s(f"s_cmp_{op}_u32 s8, {target}")
        s(f"s_cbranch_scc1 {l}_D")
        if sleep:
            s(f"s_sleep {sleep}")
        s(f"s_cmp_lt_u32 s9, {SPIN*4}")
        s(f"s_cbranch_scc1 {l}")
        s.lab(l + "_D")
        if prio is not None:
            s(f"s_setprio {prio}")

    def signal(s, off, tv):
        s(f"v_mov_b32 v{tv}, 1")
        s("s_mov_b64 exec, 1")
        s(f"ds_add_u32 v1, v{tv} offset:{off}") if isinstance(off, int) else s(f"ds_add_u32 {off}, v{tv}")
        s("s_mov_b64 exec, -1")


def srd(a, d, p, size):
    a(f"s_mov_b32 s{d}, s{p}")
    a(f"s_mov_b32 s{d+1}, s{p+1}")
    a(f"s_mov_b32 s{d+2}, {size}")
    a(f"s_mov_b32 s{d+3}, 0x20000")


def wave_max_steps(vv):
    return [f"v_max_u32_dpp v{vv}, v{vv}, v{vv} row_shr:1 {DPPF}",
            f"v_max_u32_dpp v{vv}, v{vv}, v{vv} row_shr:2 {DPPF}",
            f"v_max_u32_dpp v{vv}, v{vv}, v{vv} row_shr:4 {DPPF}",
            f"v_max_u32_dpp v{vv}, v{vv}, v{vv} row_shr:8 {DPPF}",
            f"v_max_u32_dpp v{vv}, v{vv}, v{vv} row_bcast:15 row_mask:0xa bank_mask:0xf",
            f"v_max_u32_dpp v{vv}, v{vv}, v{vv} row_bcast:31 row_mask:0xc bank_mask:0xf"]


def sigmoid_f32(a, dst, src, t):
    a(f"v_mul_f32 v{t}, 0xbfb8aa3b, v{src}")
    a(f"v_exp_f32 v{t}, v{t}")
    a(f"v_add_f32 v{t}, 1.0, v{t}")
    a(f"v_rcp_f32 v{dst}, v{t}")


def rb(a, r):
    a(f"v_cvt_pk_bf16_f32 v{r}, v{r}, v{r}")
    a(f"v_and_b32 v{r}, 0xffff0000, v{r}")


def router(a):
    a.lab("ROUTER")
    a("s_setprio 3")
    X, W = 16, 52
    a("v_lshrrev_b32 v5, 3, v2")
    a("v_and_b32 v6, 7, v2")
    a("v_lshlrev_b32 v9, 4, v6")
    a("v_mul_u32_u24 v8, 1152, v5")
    a("s_mul_i32 s8, s2, 9216")
    a("v_add3_u32 v8, v8, v9, s8")
    a("v_lshlrev_b32 v7, 4, v2")
    a("v_min_u32 v10, 7, v2")
    a("v_lshlrev_b32 v10, 4, v10")
    a(f"s_mov_b32 m0, {XB}")
    a("s_waitcnt lgkmcnt(0)")
    a.fine(7)
    a(f"s_load_dword s10, {sr(P_WS,2)}, {WS_BASE}")
    for i in range(9):
        if i:
            a(f"s_mov_b32 m0, {XB+896*i}")
        a(f"global_load_lds_dwordx4 v8, {sr(P_U,2)} offset:{128*i}")
    a(f"s_mov_b32 m0, {GW}")
    a(f"global_load_lds_dwordx4 v7, {sr(P_GW,2)}")
    a(f"global_load_lds_dwordx4 v10, {sr(P_GW,2)} offset:1024")
    for i in range(9):
        a(f"global_load_dwordx4 {vr(W+4*i,4)}, v9, {sr(P_WR,2)} offset:{128*i}")
    a.fine(6)
    a.b0()
    a("v_mov_b32 v11, 1")
    a(f"ds_write_b32 v1, v11 offset:{F_RI}")
    a(f"v_add_u32 v7, {XB}, v7")
    if KS == 32:
        a("s_lshl_b32 s8, s2, 5")
        a("v_lshl_add_u32 v15, v4, 3, s8")
    else:
        a(f"s_mul_i32 s8, s2, {KS}")
        a(f"s_add_u32 s8, s8, {WS_KEY2}")
        a("v_lshl_add_u32 v15, v4, 3, s8")
        a("v_lshl_add_u32 v15, v3, 5, v15")
    a("s_mov_b32 s11, 0xffff")
    for j in range(4):
        a(f"v_mov_b32 v{8+j}, 0")
    a("s_waitcnt lgkmcnt(0)")
    a.fine(8)
    a("s_add_u32 s10, s10, 1")
    a("s_addc_u32 s10, s10, 0")
    a("v_mov_b32 v14, s10")
    a("v_mov_b32 v13, s10")
    a("s_waitcnt vmcnt(9)")
    a.stamp(1)
    if STAMP or PROBE:
        a("s_waitcnt lgkmcnt(0)")
    for i in range(9):
        a(f"ds_read_b128 {vr(X+4*i,4)}, v7 offset:{1024*i}")
    a(f"ds_write_b32 v1, v14 offset:{F_X}")
    for i in range(9):
        a(f"s_waitcnt vmcnt({8-i}) lgkmcnt({9-i})")
        for j in range(4):
            a(f"v_dot2c_f32_bf16 v{8+j}, v{X+4*i+j}, v{W+4*i+j}")
    a("v_add_f32 v8, v8, v9")
    a("v_add_f32 v10, v10, v11")
    a("v_add_f32 v8, v8, v10")
    a(f"v_add_f32_dpp v8, v8, v8 quad_perm:[1,0,3,2] {DPPF}")
    a(f"v_add_f32_dpp v8, v8, v8 quad_perm:[2,3,0,1] {DPPF}")
    a(f"v_add_f32_dpp v8, v8, v8 row_half_mirror {DPPF}")
    a("v_cvt_pk_bf16_f32 v8, v8, v8")
    a("v_ashrrev_i32 v9, 31, v8")
    a("v_or_b32 v9, 0x80008000, v9")
    a("v_xor_b32 v8, v8, v9")
    a(f"v_mov_b32_dpp v9, v8 row_ror:8 {DPPF}")
    km = {32: 0x00010001, 64: 0x00030003, 128: 0x000f000f}[KS]
    a(f"s_mov_b32 exec_lo, {km:#x}")
    a(f"s_mov_b32 exec_hi, {km:#x}")
    a("v_bfi_b32 v12, s11, v8, v9")
    a(f"global_store_dwordx2 v15, v[12:13], {sr(P_WS,2)} {PUBF}")
    a("s_mov_b64 exec, -1")
    a(f"ds_write_b32 v1, v14 offset:{F_NONCE}")
    a.stamp(2)
    a(f"s_cmp_ge_u32 s5, {NJH}")
    a("s_cbranch_scc1 C_IO")
    a(f"s_cmp_lt_u32 s5, {NJF}")
    a("s_cbranch_scc1 SELECT")
    a.end()


def gate(a):
    a.lab("GATE")
    X, W, WL = 16, 34, 44
    a("s_lshl_b32 s8, s12, 9")
    a(f"s_add_u32 s8, s8, {XB}")
    a("v_lshl_add_u32 v5, v2, 2, s8")
    a("v_and_b32 v6, 31, v2")
    a("v_lshlrev_b32 v6, 2, v6")
    a(f"v_add_u32 v6, {GW}, v6")
    a("s_lshl_b32 s8, s2, 1")
    a("s_add_u32 s8, s8, s12")
    a("v_mov_b32 v8, 0")
    a("v_mov_b32 v9, 0")
    a("v_mov_b32 v10, 0x3f803f80")
    a("s_lshl_b32 s8, s8, 4")
    a(f"s_add_u32 s8, s8, {WS_G}")
    a("v_lshrrev_b32 v7, 5, v2")
    a("v_lshl_add_u32 v7, v7, 3, s8")
    a.b0()
    if E("GATED"):
        a(f"s_sleep {E('GATED')}")
    a.spin(F_X, 0, 13, op="lg", sleep=E("GSL", 1))
    a.auto(True)
    for i in range(5):
        a(f"ds_read2_b32 {vr(W+2*i,2)}, v6 offset0:{64*(i&3)} offset1:{64*(i&3)+32}" if i < 4 else f"ds_read_b32 v{W+8}, v6 offset:1024")
    for i in range(9):
        a(f"ds_read2st64_b32 {vr(X+2*i,2)}, v5 offset0:{4*i} offset1:{4*i+1}")
    for i in range(9):
        a(f"v_and_b32 v{WL+i}, 0xffff, v{W+i}")
        a(f"v_and_b32 v{W+i}, 0xffff0000, v{W+i}")
    for i in range(10):
        t = 56 + 4 * (i & 1)
        u = 56 + 4 * ((i - 1) & 1)
        for j in range(2):
            if i < 9:
                a(f"v_dot2_f32_bf16 v{t+2*j}, v{X+2*i+j}, v{WL+i}, 0")
                a(f"v_dot2_f32_bf16 v{t+2*j+1}, v{X+2*i+j}, v{W+i}, 0")
        if i:
            for j in range(2):
                a(f"v_cvt_pk_bf16_f32 v{u+2*j}, v{u+2*j}, v{u+2*j+1}")
            for j in range(2):
                a(f"v_dot2c_f32_bf16 v{8+j}, v{u+2*j}, v10")
    a.auto(False)
    a.signal(F_GD, 11)
    a("v_permlane16_swap_b32 v8, v9")
    a("v_add_f32 v8, v8, v9")
    for r in (8, 4, 2, 1):
        a(f"v_add_f32_dpp v8, v8, v8 row_ror:{r} {DPPF}")
    rb(a, 8)
    sigmoid_f32(a, 8, 8, 9)
    a("v_cvt_pk_bf16_f32 v8, v8, v8")
    a("s_mov_b32 s11, 0xffff")
    a("v_mov_b32 v9, v8")
    a("v_lshl_add_u32 v7, v4, 3, v7")
    a("v_permlane32_swap_b32 v8, v9")
    a("v_bfi_b32 v12, s11, v8, v9")
    a("s_mov_b64 exec, 0x00010001")
    a(f"global_store_dwordx2 v7, v[12:13], {sr(P_WS,2)} sc1")
    a("s_mov_b64 exec, -1")
    a.stamp(1)
    a(f"s_cmp_lt_u32 s5, {NJF}")
    a("s_cbranch_scc1 F_COMP2")
    a(f"s_cmp_ge_u32 s5, {NJH}")
    a("s_cbranch_scc1 C_IO")
    a.end()


def stripe_pf(a):
    a("s_and_b32 s8, s13, 15" if PF2AT >= 0 else "s_mov_b32 s8, s13")
    a("s_mul_i32 s8, s8, 73728")
    a("s_lshl_b32 s9, s4, 7")
    a("s_add_u32 s8, s8, s9")
    a("v_mul_u32_u24 v9, 1152, v2")
    a("v_add_u32 v9, s8, v9")
    a("s_add_u32 s8, s13, 18")
    a("s_min_u32 s8, s8, 31")
    a("s_sub_u32 s8, s8, s13")
    a("s_mul_i32 s8, s8, 73728")
    a("v_add_u32 v8, s8, v9" if PF2AT < 0 else f"v_add_u32 v8, {16*73728}, v9")
    return [f"global_load_dword v10, v9, {sr(P_U,2)}", f"global_load_dword v11, v9, {sr(P_U,2)} offset:128",
            f"global_load_dword v10, v8, {sr(P_U,2)}", f"global_load_dword v11, v8, {sr(P_U,2)} offset:128"]


def prefetch(a, n, hold):
    a("v_mul_u32_u24 v5, 57, v2")
    a("v_lshrrev_b32 v5, 9, v5")
    a("v_mul_u32_u24 v6, 9, v5")
    a("v_sub_u32 v6, v2, v6")
    a("s_waitcnt lgkmcnt(0)")
    a("s_cmp_eq_u32 s12, 1")
    a(f"s_cselect_b32 s52, s{P_WU}, s{P_WG}")
    a(f"s_cselect_b32 s53, s{P_WU+1}, s{P_WG+1}")
    a("s_mov_b32 s54, 5308416")
    a("s_mov_b32 s55, 0x20000")
    a("v_mul_u32_u24 v5, 9216, v5")
    a("v_lshl_add_u32 v5, v6, 7, v5")
    a("s_mul_i32 s8, s4, 1152")
    if C3:
        a(f"s_sub_u32 s14, s13, {HPS}")
        a("s_lshr_b32 s9, s52, 7")
        a("s_add_u32 s9, s9, s4")
        a("s_sub_u32 s9, 3, s9")
        a("s_and_b32 s9, s9, 7")
        a("s_lshl_b32 s15, s9, 7")
        a("s_add_u32 s15, s15, s8")
        a(f"s_mul_i32 s14, s14, {9216*C3}")
        a("s_add_u32 s15, s15, s14")
        a(f"s_add_u32 s15, s15, {9216*(7*HPS - C3*PSTEP)}")
        a("s_cmp_eq_u32 s9, 0")
        a("s_cselect_b32 s9, 1024, 0")
        a("v_and_b32 v7, 31, v2")
        a(f"v_min_u32 v7, {C3-1}, v7")
        a("v_mul_u32_u24 v7, 9216, v7")
        a("v_lshrrev_b32 v9, 5, v2")
        a("v_mul_u32_u24 v9, s9, v9")
        a("v_add_u32 v7, v7, v9")
    a("s_mul_i32 s13, s13, 64512")
    a("s_add_u32 s13, s13, s8")
    a.b0(13)
    if hold:
        a.spin(F_NONCE, 0, 13, op="lg", sleep=1)
    if C3:
        a("buffer_load_dword v8, v7, s[52:55], s15 offen")
    for k in range(n):
        if k >= PFW or (C3 and E("C3W", 1)):
            a(f"s_waitcnt vmcnt({PFW-1})")
        a("buffer_load_dword v8, v5, s[52:55], s13 offen")
        a(f"s_add_u32 s13, s13, {64512*PSTEP}")
    if E("HD"):
        a(f"s_sub_u32 s8, s5, {NJF}")
        a(f"s_mul_i32 s8, s8, {HPW}")
        a("s_add_u32 s8, s8, s3")
        a("s_sub_u32 s8, s8, 2")
        a("s_lshl_b32 s8, s8, 6")
        a("s_mul_i32 s9, s4, 663552")
        for k in range(E("HD")):
            a(f"v_add_u32 v9, s8, v2")
            a("v_min_u32 v9, 2591, v9")
            a("v_lshrrev_b32 v10, 5, v9")
            a("v_mul_u32_u24 v10, 57, v10")
            a("v_lshrrev_b32 v10, 9, v10")
            a("v_mul_u32_u24 v10, 288, v10")
            a("v_add_u32 v9, v9, v10")
            a("v_lshl_add_u32 v9, v9, 7, s9")
            a(f"s_waitcnt vmcnt({PFW-1})")
            a(f"global_load_dword v8, v9, {sr(P_WD,2)}")
            a(f"s_add_u32 s8, s8, {64*5*HPW}")


def bulk_gate(a, tv):
    a.b0(tv)
    if HOLD:
        a.spin(F_NONCE, 0, tv, op="lg", sleep=1)


def select(a):
    a.lab("SELECT")
    SX = 52
    srd(a, SX, P_U, 2359296)
    KD, IX, KY = 16, 48, 80
    M1, M2, T1, T2, VO, VK, CH = 8, 9, 10, 11, 12, 6, 5
    a("v_lshlrev_b32 v7, 4, v2")
    a("v_add_u32 v15, 0x1000, v7")
    if KS != 32:
        a("v_lshrrev_b32 v7, 1, v2")
        a(f"v_mul_u32_u24 v7, {KS}, v7")
        a("v_and_b32 v15, 1, v2")
        a("v_lshl_add_u32 v7, v15, 4, v7")
        for i in range(8):
            a(f"v_add_u32 v{120+i}, {WS_KEY2+32*KS*i}, v7")

    def polls():
        if KS != 32:
            for i in range(8):
                a(f"global_load_dwordx4 {vr(KD+4*i,4)}, v{120+i}, {sr(P_WS,2)} {POLLF}")
            return
        for i in range(8):
            a(f"global_load_dwordx4 {vr(KD+4*i,4)}, v{7 if i < 4 else 15}, {sr(P_WS,2)} offset:{1024*(i&3)} {POLLF}")
    assert WS_KEY == 0
    a("v_lshlrev_b32 v8, 2, v2")
    a("v_sub_u32 v8, 2047, v8")
    for i in range(8):
        for e in range(4):
            a(f"v_subrev_u32 v{IX+4*i+e}, {256*i+e}, v8")
    a("v_lshrrev_b32 v9, 3, v2")
    a("v_and_b32 v9, 6, v9")
    a("v_xor_b32 v9, v9, v2")
    a("v_and_b32 v9, 7, v9")
    a(f"v_lshlrev_b32 v{CH}, 4, v9")
    a(f"v_mov_b32 v{VO}, 0")
    a(f"v_mov_b32 v{VK}, 0")
    a("s_mov_b32 s11, 0xffff0000")
    if E("DRY", 0):
        a("s_mov_b32 s15, 1")
        a("s_branch SEL_GOT")
        a.lab("SEL_BACK")
    a("s_mov_b32 s15, 0")
    a.spin(F_GD, 2, 13)
    a("s_mov_b32 s9, 0")
    a("s_waitcnt vmcnt(0)")
    if SELD:
        a(f"s_sleep {SELD}")
    a.stamp(8)
    a.lab("SEL_POLL")
    polls()
    for i in range(8):
        a(f"s_waitcnt vmcnt({7-i})")
        if i == 0:
            a(f"v_xor_b32 v13, v{KD+1}, v14")
        else:
            a(f"v_bitop3_b32 v13, v13, v{KD+4*i+1}, v14 bitop3:0xf6")
        a(f"v_bitop3_b32 v13, v13, v{KD+4*i+3}, v14 bitop3:0xf6")
    a("v_cmp_ne_u32 vcc, 0, v13")
    a("s_add_u32 s9, s9, 1")
    a("s_cmp_eq_u64 vcc, 0")
    a("s_cbranch_scc1 SEL_GOT")
    a(f"s_cmp_lt_u32 s9, {SPIN}")
    a("s_cbranch_scc1 SEL_POLL")
    a.lab("SEL_GOT")
    if STAMP:
        a("s_mov_b32 s94, s9")
    a.stamp(6)
    for i in range(8):
        for h in range(2):
            a(f"v_lshl_or_b32 v{KY+4*i+2*h}, v{KD+4*i+2*h}, 16, v{IX+4*i+2*h}")
            a(f"v_and_or_b32 v{KY+4*i+2*h+1}, v{KD+4*i+2*h}, s11, v{IX+4*i+2*h+1}")
        ks = [KY + 4 * i + e for e in range(4)]
        if i == 0:
            a(f"v_min_u32 v{M2}, v{ks[0]}, v{ks[1]}")
            a(f"v_max_u32 v{M1}, v{ks[0]}, v{ks[1]}")
            ks = ks[2:]
        for k in ks:
            a(f"v_med3_u32 v{M2}, v{M1}, v{M2}, v{k}")
            a(f"v_max_u32 v{M1}, v{M1}, v{k}")
    a.stamp(3)

    def place(r):
        lo, hi = ((0xff << (8 * r)) & 0xffffffff, (0xff << (8 * r)) >> 32)
        return ["s_and_b32 s13, s12, 0x7ff", "s_sub_u32 s13, 2047, s13", "s_mul_i32 s13, s13, 1152",
                [f"s_mov_b32 exec_lo, {lo:#x}", f"s_mov_b32 exec_hi, {hi:#x}",
                 f"v_add_u32 v{VO}, s13, v{CH}", f"v_mov_b32 v{VK}, s12", "s_mov_b64 exec, -1"]]
    for r in range(8):
        if r == 0:
            a(f"v_mov_b32 v{T1}, v{M1}")
            fill = []
        else:
            a(f"v_subrev_u32 v{T1}, s12, v{M1}")
            a(f"v_subrev_u32 v{T2}, s12, v{M2}")
            a(f"v_max_u32 v{T1}, v{T1}, v{T2}")
            p = place(r - 1)
            fill = [p[0:2], [p[2]], p[3]]
        for st in wave_max_steps(T1):
            for x in (fill.pop(0) if fill else []):
                a(x)
            a(st)
        a(f"v_readlane_b32 s8, v{T1}, 63")
        a("s_add_u32 s12, s12, s8" if r else "s_mov_b32 s12, s8")
    p = place(7)
    for x in p[:3] + p[3]:
        a(x)
    if E("DRY", 0):
        a("s_cmp_lg_u32 s15, 0")
        a("s_cbranch_scc1 SEL_BACK")
    a("s_mov_b32 s14, 0")
    a.lab("SEL_GATHER")
    for b in range(9):
        a(f"s_mov_b32 m0, {XB + 896*b}")
        a(f"buffer_load_dwordx4 v{VO}, {sr(SX,4)}, 0 offen offset:{128*b} lds")
    a.signal(F_D, 13)
    a.stamp(4)
    a("s_cmp_lg_u32 s14, 0")
    a("s_cbranch_scc1 SEL_OK")
    TK = KD
    for k in range(32):
        a(f"v_sub_u32 v{TK+k}, v{KY+k}, v{M2}")

    def tree():
        for j in range(10):
            a(f"v_max3_u32 v{TK+3*j}, v{TK+3*j}, v{TK+3*j+1}, v{TK+3*j+2}")
        a(f"v_max3_u32 v{TK}, v{TK}, v{TK+3}, v{TK+6}")
        a(f"v_max3_u32 v{TK+9}, v{TK+9}, v{TK+12}, v{TK+15}")
        a(f"v_max3_u32 v{TK+18}, v{TK+18}, v{TK+21}, v{TK+24}")
        a(f"v_max3_u32 v{TK+27}, v{TK+27}, v{TK+30}, v{TK+31}")
        a(f"v_max3_u32 v{TK}, v{TK}, v{TK+9}, v{TK+18}")
        a(f"v_max_u32 v{TK}, v{TK}, v{TK+27}")
    tree()
    a(f"v_add_u32 v{TK}, v{TK}, v{M2}")
    a(f"v_cmp_lt_u32 vcc, s12, v{TK}")
    if E("FORCESLOW"):
        a("s_mov_b64 vcc, 1")
    a("s_cmp_eq_u64 vcc, 0")
    a("s_cbranch_scc1 SEL_OK")
    a("s_waitcnt vmcnt(0)")
    a("s_mov_b32 s12, 0")
    a("s_mov_b64 s[56:57], 0xff")
    a.lab("SEL_SLOW")
    for k in range(32):
        a(f"v_subrev_u32 v{TK+k}, s12, v{KY+k}")
    tree()
    for st in wave_max_steps(TK):
        a(st)
    a(f"v_readlane_b32 s8, v{TK}, 63")
    a("s_add_u32 s12, s12, s8")
    for x in place(0)[:3]:
        a(x)
    a("s_mov_b64 exec, s[56:57]")
    a(f"v_add_u32 v{VO}, s13, v{CH}")
    a(f"v_mov_b32 v{VK}, s12")
    a("s_mov_b64 exec, -1")
    a("s_lshl_b64 s[56:57], s[56:57], 8")
    a("s_add_u32 s14, s14, 1")
    a("s_cmp_lt_u32 s14, 8")
    a("s_cbranch_scc1 SEL_SLOW")
    a("s_branch SEL_GATHER")
    a.lab("SEL_OK")
    a("s_cmp_lg_u32 s2, 0")
    a("s_cbranch_scc1 SEL_NOPUB")
    a(f"v_mov_b32 v{VK+1}, v14")
    a(f"v_add_u32 v8, {WS_SEL}, v2")
    a("s_mov_b32 exec_lo, 0x01010101")
    a("s_mov_b32 exec_hi, 0x01010101")
    a(f"global_store_dwordx2 v8, {vr(VK,2)}, {sr(P_WS,2)} sc1")
    a("s_mov_b64 exec, 1")
    a(f"global_store_dword v8, v14, {sr(P_WS,2)} offset:{WS_BASE-WS_SEL} sc1")
    a("s_mov_b64 exec, -1")
    a("s_waitcnt vmcnt(2)")
    a("s_branch SEL_END")
    a.lab("SEL_NOPUB")
    a("s_waitcnt vmcnt(0)")
    a.lab("SEL_END")
    a("v_mov_b32 v8, 3")
    a(f"ds_write_b32 v1, v8 offset:{F_XR}")
    a.stamp(5)
    a.end()


def ffn_loader(a):
    a.lab("F_LOAD")
    a("s_setprio 3")
    SG, SU, SD = 52, 56, 60
    a("s_sub_u32 s12, s3, 9")
    a("v_lshrrev_b32 v5, 3, v2")
    a("v_bfe_u32 v6, v2, 4, 1")
    a("v_xor_b32 v6, v6, v2")
    a("v_and_b32 v6, 7, v6")
    a("s_movk_i32 s8, 9216")
    a("v_mul_lo_u32 v7, v5, s8")
    a("v_lshl_add_u32 v8, v6, 4, v7")
    a("v_xor_b32 v9, 32, v8")
    a("v_xor_b32 v10, 64, v8")
    a("v_xor_b32 v11, 96, v8")
    a("v_bfe_u32 v6, v2, 4, 1")
    a("v_lshlrev_b32 v6, 1, v6")
    a("v_xor_b32 v6, v6, v2")
    a("v_and_b32 v6, 7, v6")
    a("v_mul_u32_u24 v7, 1152, v5")
    a("v_lshl_add_u32 v12, v6, 4, v7")
    a("v_xor_b32 v13, 64, v12")
    a("s_mul_i32 s13, s12, 294912")
    a("s_lshl_b32 s8, s7, 7")
    a("s_add_u32 s13, s13, s8")
    a("s_lshl_b32 s15, s12, 13")
    a(f"s_add_u32 s15, s15, {WA}")
    a("s_mul_i32 s14, s12, 24576")
    a(f"s_add_u32 s14, s14, {WB}")
    a("s_mul_i32 s11, s7, 73728")
    a("s_mul_i32 s8, s12, 384")
    a("s_add_u32 s11, s11, s8")
    a("s_waitcnt lgkmcnt(0)")
    srd(a, SG, P_WG, 5308416)
    srd(a, SU, P_WU, 5308416)
    srd(a, SD, P_WD, 5308416)
    bulk_gate(a, 14)
    n = 0
    sig = 0

    def pre():
        nonlocal sig
        if n == E("W0", 99):
            a.spin(F_NONCE, 0, 14, op="lg", sleep=1)
        if n >= WIN_F:
            a(f"s_waitcnt vmcnt({WIN_F-1})")
        if sig < 6 and n - WIN_F + 1 >= 8 * (sig + 1):
            a.signal(F_L + 4 * sig, 14)
            if sig in (0, 2, 5):
                a.stamp(1 + sig // 2)
            sig += 1
    for c in range(6):
        if c >= 3:
            a.spin(F_AC + 4 * (c - 3), 4, 14)
        for R in range(4):
            for mu in range(2):
                pre()
                a(f"s_add_u32 m0, s15, {(c%3)*24576 + R*2048 + mu*1024}")
                if not NOW:
                    a(f"buffer_load_dwordx4 v{8+2*mu+(R&1)}, {sr(SU if mu else SG,4)}, s13 offen {WNT} lds")
                n += 1
            a(f"s_add_u32 s13, s13, {73728 if R < 3 else 73728*9}")
    a.signal(F_D, 14)
    a.stamp(4)
    while sig < 6:
        a(f"s_waitcnt vmcnt({48 - 8*(sig+1)})")
        a.signal(F_L + 4 * sig, 14)
        sig += 1
    a.stamp(3)
    a("s_cmp_eq_u32 s3, 9")
    a("s_cbranch_scc1 F_COMP2")
    a.end()


def ffn_comp(a):
    a.lab("F_COMP")
    a.b0()
    a.lab("F_COMP2")
    a("s_and_b32 s12, s3, 3")
    a("v_lshrrev_b32 v5, 2, v3")
    a("v_bfe_u32 v7, v3, 3, 1")
    a("v_and_b32 v13, 1, v4")
    a("v_lshl_or_b32 v14, v13, 1, v7")
    a("v_and_b32 v15, 7, v3")
    a(f"v_mul_u32_u24 v16, {HS}, v15")
    a(f"v_add_u32 v16, {HB}, v16")
    a("s_mov_b32 s56, 0xff00ff00")
    a("s_mov_b32 s57, 0xff00ff00")
    a("s_lshr_b32 s8, s3, 2")
    a("s_cmp_lg_u32 s8, 1")
    a("s_cbranch_scc1 F_DOWN")
    WF, AG = 24, 8
    a("v_bfe_u32 v6, v3, 1, 1")
    a("v_lshl_or_b32 v8, v6, 2, v14")
    a("v_xor_b32 v8, s12, v8")
    a("v_lshlrev_b32 v8, 4, v8")
    a("v_lshl_add_u32 v8, v5, 7, v8")
    a("v_lshl_add_u32 v8, v6, 10, v8")
    a("v_lshl_add_u32 v8, v4, 11, v8")
    a("v_and_b32 v9, 1, v3")
    a("v_lshl_add_u32 v8, v9, 3, v8")
    a("v_xor_b32 v9, 64, v8")
    a(f"v_add_u32 v10, {WA+49152}, v8")
    a(f"v_add_u32 v11, {WA+49152}, v9")
    a("v_lshlrev_b32 v6, 2, v13")
    a("v_lshrrev_b32 v5, 1, v4")
    a("v_add_u32 v6, v6, v5")
    a("v_lshl_add_u32 v6, v7, 5, v6")
    a("s_lshl_b32 s8, s12, 3")
    a("v_add_lshl_u32 v6, v6, s8, 1")
    a("v_add_u32 v5, v6, v16")
    a("v_and_b32 v6, 6, v3")
    a("v_xor_b32 v6, v6, v4")
    a("v_lshlrev_b32 v6, 4, v6")
    a("v_lshl_add_u32 v6, v15, 7, v6")
    a(f"v_add_u32 v6, {XB}, v6")
    a("v_xor_b32 v7, 64, v6")
    for c in range(6):
        a.spin(F_L + 4 * c, 3, 12, sleep=E("CSL", 1))
        if c in (2, 5):
            a.stamp(2 + c // 3)
        for s in range(3):
            for t in range(2):
                base, off = (8 + t, WA + (c % 3) * 24576 + s * 8192) if c % 3 < 2 else (10 + t, s * 8192)
                r = WF + 8 * (3 * c + s) + 4 * t
                a(f"ds_read_b64_tr_b16 {vr(r,2)}, v{base} offset:{off}")
                a(f"ds_read_b64_tr_b16 {vr(r+2,2)}, v{base} offset:{off+512}")
        if c < 3:
            a("s_waitcnt lgkmcnt(0)")
            a.signal(F_AC + 4 * c, 12)
    a("s_setprio 3")
    a.spin(F_XR, 1, 12)
    a.stamp(4)
    a.auto(True)
    xs = lambda s: 16 + 4 * s
    def xrd(s):
        a(f"ds_read_b128 {vr(xs(s),4)}, v{7 if s&1 else 6} offset:{1024*(s>>1)}")
    xrd(0); xrd(1)
    nx = 2
    for s in range(18):
        for t in range(2):
            a(f"v_mfma_f32_16x16x32_bf16 {vr(AG+4*t,4)}, {vr(WF+8*s+4*t,4)}, {vr(xs(s),4)}, {vr(AG+4*t,4) if s else 0}")
            if nx < 18 and xs(nx) + 4 <= WF + 8 * s + 4 * t + 4:
                xrd(nx); nx += 1
    a.auto(False)
    a.stamp(8)
    for r in range(4):
        a(f"v_cndmask_b32 v{AG+r}, v{AG+r}, v{AG+4+r}, s[56:57]")
    a(f"v_permlane32_swap_b32 v{AG}, v{AG+1}")
    a(f"v_permlane32_swap_b32 v{AG+2}, v{AG+3}")
    for op in ("v_cvt_pk_bf16_f32 v{u}, v{g}, v{u}", "v_lshlrev_b32 v{g}, 16, v{u}", "v_mul_f32 v{t}, 0xbfb8aa3b, v{g}", "v_exp_f32 v{t}, v{t}",
               "v_and_b32 v{u}, 0xffff0000, v{u}", "v_add_f32 v{t}, 1.0, v{t}", "v_rcp_f32 v{t}, v{t}", "v_mul_f32 v{g}, v{g}, v{t}",
               "v_cvt_pk_bf16_f32 v{g}, v{g}, v{g}", "v_and_b32 v{g}, 0xffff0000, v{g}", "v_mul_f32 v{g}, v{g}, v{u}"):
        for p in range(2):
            a(op.format(g=AG + 2 * p, u=AG + 2 * p + 1, t=AG + 4 + p))
    a(f"v_cvt_pk_bf16_f32 v{AG}, v{AG}, v{AG+2}")
    a(f"ds_write_b16 v5, v{AG}")
    a(f"ds_write_b16_d16_hi v5, v{AG} offset:4")
    a("s_waitcnt lgkmcnt(0)")
    a.stamp(5)
    a("s_barrier")
    a.end()
    a.lab("F_DOWN")
    RW, DF, AC, HF = 24, 56, 120, 152
    a("v_lshl_add_u32 v10, v4, 4, v16")
    a("v_mul_u32_u24 v8, 9216, v4")
    a("s_mul_i32 s13, s7, 73728")
    for j in range(4):
        a(f"s_mov_b32 s{60+j}, {0x07060500+j:#x}")
    a("s_mov_b32 s64, 0x05040100")
    a("s_mov_b32 s65, 0x07060302")
    a("s_lshl_b32 s14, s7, 7")
    a(f"s_add_u32 s14, s14, {WS_MB}")
    a("v_lshl_add_u32 v11, v15, 4, s14")
    a("s_waitcnt lgkmcnt(0)")
    srd(a, 52, P_WS, WS_SIZE)
    srd(a, 68, P_WD, 5308416)
    a("s_cmp_eq_u32 s3, 9")
    a("s_cbranch_scc1 F_DN2")

    def down(nd):
        nf = 2 * nd
        raw = lambda q, e: (RW if q == 0 else 88) + nd * e
        frg = lambda q, j: (DF if q == 0 else RW) + 4 * j
        for q in range(2):
            for e in range(8):
                if nd == 4 and E("DE", 4) and 8 * q + e == E("DE", 4):
                    a.spin(F_D, 4, 12, sleep=1)
                if not NOW:
                    a(f"buffer_load_dword{'x4' if nd == 4 else 'x2'} {vr(raw(q,e),nd)}, v8, s[68:71], s13 offen offset:{1152*(e&3)}")
                if e & 3 == 3:
                    a(f"s_add_u32 s13, s13, {4608 if e == 3 else 36864-4608}")
        for q in range(2):
            for p in range(4):
                a(f"s_waitcnt vmcnt({14 - 8*q - 2*p})")
                for j in range(nf):
                    a(f"v_perm_b32 v{frg(q,j)+p}, v{raw(q,2*p+1)+(j>>1)}, v{raw(q,2*p)+(j>>1)}, s{64+(j&1)}")
        a.stamp(4)
        a("s_barrier")
        a.stamp(5)
        for q in range(2):
            a(f"ds_read_b128 {vr(HF+4*q,4)}, v10 offset:{64*q}")
        a("s_waitcnt lgkmcnt(0)")
        for j in range(nf):
            for q in range(2):
                a(f"v_mfma_f32_16x16x32_bf16 {vr(AC+4*j,4)}, {vr(frg(q,j),4)}, {vr(HF+4*q,4)}, {vr(AC+4*j,4) if q else 0}")
        O = 88
        for r in range(nd):
            for j in range(4):
                x, y = (AC + 4 * j + r, AC + 16 + 4 * j + r) if nd == 4 else (AC + 4 * j + 2 * r, AC + 4 * j + 2 * r + 1)
                a(f"v_cndmask_b32 v{O+4*r+j}, v{x}, v{y}, s[56:57]")
            for j in range(4):
                a(f"v_perm_b32 v{O+4*r+j}, v{O+4*r+j}, v17, s{60+j}")
            a(f"s_mov_b32 s12, {18432*r}")
            a(f"buffer_store_dwordx4 {vr(O+4*r,4)}, v11, s[52:55], s12 offen sc1")
        a.stamp(6)
        a.end()
    a("v_lshl_add_u32 v8, v3, 4, v8")
    a("s_lshl_b32 s8, s3, 8")
    a("s_add_u32 s13, s13, s8")
    a("s_lshl_b32 s8, s3, 5")
    a("v_lshl_add_u32 v6, v4, 3, v7")
    a("v_add_u32 v6, s8, v6")
    a("v_mul_u32_u24 v6, 9216, v6")
    a("v_add_u32 v11, v6, v11")
    a.spin(F_X, 0, 17, op="lg", sleep=2)
    a.spin(F_D, 3 if E("DE", 4) else 4, 12, sleep=1)
    a("s_setprio 2")
    down(4)
    a.lab("F_DN2")
    a("v_lshl_add_u32 v8, v3, 3, v8")
    a("s_add_u32 s13, s13, 1024")
    a("v_lshl_add_u32 v6, v4, 2, v7")
    a("v_add_u32 v6, 128, v6")
    a("v_mul_u32_u24 v6, 9216, v6")
    a("v_add_u32 v11, v6, v11")
    a.spin(F_X, 0, 17, op="lg")
    down(2)


def helper(a):
    a.lab("HELPER")
    if not HPN:
        a.end()
        return
    a(f"s_cmp_ge_u32 s3, {2+HPW}")
    a("s_cbranch_scc1 K_END")
    a("s_and_b32 s12, s3, 1")
    a("s_sub_u32 s13, s3, 2")
    a("s_lshr_b32 s13, s13, 1")
    a("s_mul_i32 s13, s13, 5")
    a("s_add_u32 s13, s13, s5")
    a(f"s_add_u32 s13, s13, {(HPS-NJF) & 0xffffffff}")
    prefetch(a, HPN, E("HH", 0))
    if STAMP:
        a("s_waitcnt vmcnt(0)")
        a.stamp(1)
    a.end()


DSK, EXPN = 166, 167
PA, PB, EF = 142, 146, 150


def cmul(a, d, x, y):
    a(f"v_pk_mul_f32 {vr(d,2)}, {vr(x,2)}, {vr(y,2)} op_sel:[0,0] op_sel_hi:[0,1]")
    a(f"v_pk_fma_f32 {vr(d,2)}, {vr(x,2)}, {vr(y,2)}, {vr(d,2)} op_sel:[1,1,0] op_sel_hi:[1,0,1] neg_lo:[0,1,0]")


def kgen_head(a):
    a.lab("C_KGEN")
    a.fine(6)
    PR = 16
    a("s_and_b32 s12, s3, 3")
    a("s_lshr_b32 s13, s3, 2")
    a("s_lshl_b32 s14, s7, 2")
    a("s_add_u32 s14, s14, s12")
    a("s_lshl_b32 s8, s14, 8")
    a("s_lshl_b32 s9, s13, 7")
    a("s_add_u32 s8, s8, s9")
    a("v_lshl_add_u32 v5, v2, 1, s8")
    for k in range(6):
        a(f"v_mov_b32 v{PR+k}, 0")
    a("s_lshl_b32 s55, s7, 3")
    a("s_setprio 2")
    a(f"s_mul_i32 s15, s3, {KTS}")
    a(f"s_add_u32 s15, s15, {KT}")
    a(f"s_mul_i32 s52, s12, {4*CS}")
    a(f"s_add_u32 s52, s52, {KC}")
    a(f"s_mul_i32 s53, s12, {US}")
    a(f"s_add_u32 s53, s53, {UP}")
    a(f"v_mul_u32_u24 v7, {TS}, v3")
    a("v_lshl_add_u32 v7, v4, 4, v7")
    a("v_add_u32 v7, s15, v7")
    a("s_mov_b32 m0, s15")
    a("s_waitcnt lgkmcnt(0)")
    a.fine(7)
    a(f"s_load_dwordx2 s[58:59], {sr(P_LDT,2)}, s55")
    for k, p in enumerate([P_ARE, P_AIM, P_BRE, P_BIM, P_CRE, P_CIM]):
        a(f"global_load_short_d16_hi v{PR+k}, v5, {sr(p,2)}")
    a(f"s_load_dwordx2 s[68:69], {sr(P_DSK,2)}, s55")
    a.b0()
    a("s_branch C_KBODY")


def kgen(a):
    a.lab("C_KBODY")
    PR = 16
    a.lab("C_SETD")
    a.fine(8)
    a("s_waitcnt lgkmcnt(0)")
    a.auto(True)
    a("s_lshl_b32 s8, s12, 4")
    a("s_lshr_b64 s[58:59], s[58:59], s8")
    a("s_lshl_b32 s8, s58, 16")
    a("v_mov_b32 v44, s8")
    a(f"v_mul_f32 v45, {L2E:#x}, v44")
    a(f"v_mov_b32 v46, {L2E:#x}")
    a("v_fma_f32 v46, v44, v46, -v45")
    a(f"v_mov_b32 v47, {L2E_LO:#x}")
    a("v_fma_f32 v46, v44, v47, v46")
    a("v_exp_f32 v45, v45")
    a(f"v_mul_f32 v46, {LN2:#x}, v46")
    a("v_fma_f32 v45, v45, v46, v45")
    a("v_cvt_pk_bf16_f32 v45, v45, v45")
    DT, DTL, DTR = 36, 37, 38
    a(f"v_and_b32 v{DT}, 0xffff0000, v45")
    a(f"v_mul_f32 v{DTL}, {L2E:#x}, v{DT}")
    a(f"v_mul_f32 v{DTR}, {INV2PI:#x}, v{DT}")
    a("s_waitcnt vmcnt(0)")
    a.stamp(1)
    if STAMP and E("CLK2"):
        a("s_memtime s[90:91]")
    ZR, ZI, WR = 40, 41, 42
    a(f"v_mul_f32 v{ZR}, v{PR}, v{DTL}")
    a(f"v_mul_f32 v{ZI}, v{PR+1}, v{DTR}")
    T0 = 24

    def direct(dst, c):
        if c != 1:
            a(f"v_mul_f32 v{dst}, {fbits(c):#x}, v{ZR}")
            a(f"v_mul_f32 v{dst+1}, {fbits(c):#x}, v{ZI}")
        a(f"v_exp_f32 v{T0}, v{dst if c != 1 else ZR}")
        a(f"v_fract_f32 v{dst+1}, v{dst+1 if c != 1 else ZI}")
        a(f"v_cos_f32 v{dst}, v{dst+1}")
        a(f"v_sin_f32 v{dst+1}, v{dst+1}")
        a(f"v_mul_f32 v{dst}, v{T0}, v{dst}")
        a(f"v_mul_f32 v{dst+1}, v{T0}, v{dst+1}")
    PW, R1 = 46, 44
    pc = lambda c: PW + 2 * (c - 1)
    direct(pc(1), 1)
    a(f"v_mul_f32 v{PR+2}, v{PR+2}, v{DT}")
    a(f"v_mul_f32 v{PR+3}, v{PR+3}, v{DT}")
    cmul(a, WR, PR + 4, PR + 2)
    a(f"v_max_f32 v39, |v{WR}|, |v{WR+1}|")
    side = wave_max_steps(39) + ["v_readlane_b32 s8, v39, 63"]
    OT = [26, 27, 28, 29]
    cnt = [0]

    pend = []

    def flush():
        while pend:
            a(pend.pop(0))

    def emit(row, x):
        o = OT[cnt[0] % 4]
        cnt[0] += 1
        flush()
        a(f"v_cvt_pk_f16_f32 v{o}, v{x}, v{x+1}")
        pend.append(f"ds_write_addtid_b32 v{o} offset:{row*TS}")
    cmul(a, pc(2), pc(1), pc(1))
    cmul(a, pc(4), pc(2), pc(2))
    Q1, QA, QB = 60, 62, 64
    cmul(a, Q1, pc(4), pc(4))
    a(f"v_mov_b32 v30, 0x3c00")
    a(f"v_xor_b32 v{Q1+1}, 0x80000000, v{Q1+1}")
    a("ds_write_addtid_b32 v30")
    emit(1, Q1)
    cur, nxt = Q1, QA
    for b in range(2, 16):
        cmul(a, nxt, cur, Q1)
        if side:
            a(side.pop(0))
        emit(b, nxt)
        cur, nxt = nxt, (QB if nxt == QA else QA)
    a("s_lshr_b32 s8, s8, 23")
    a("s_sub_u32 s8, 258, s8")
    a("s_min_u32 s54, s8, 253")
    a("s_lshl_b32 s8, s54, 23")
    a(f"v_mul_f32 v{WR}, s8, v{WR}")
    a(f"v_mul_f32 v{WR+1}, s8, v{WR+1}")
    QF, PF, KA = 72, 88, 104
    flush()
    for ks in range(4):
        a(f"ds_read_b128 {vr(QF+4*ks,4)}, v7 offset:{64*ks}")
    direct(R1, 128)
    cmul(a, pc(3), pc(2), pc(1)); cmul(a, pc(5), pc(4), pc(1)); cmul(a, pc(6), pc(3), pc(3)); cmul(a, pc(7), pc(6), pc(1))
    CH = [66, 68]
    YC = [60, 62]
    state = {"cur": WR, "k": 0, "y": 0}

    def adv():
        n = CH[state["k"] & 1]
        cmul(a, n, state["cur"], R1)
        state["cur"] = n; state["k"] += 1

    def row(r, c):
        if c == 0:
            emit(r, state["cur"])
        else:
            y = YC[state["y"] & 1]; state["y"] += 1
            cmul(a, y, state["cur"], pc(c))
            emit(r, y)

    def rd():
        flush()
        for ks in range(4):
            a(f"ds_read_b128 {vr(PF+4*ks,4)}, v7 offset:{64*ks}")

    def mm(t, ks):
        a(f"v_mfma_f32_16x16x32_f16 {vr(KA+4*t,4)}, {vr(PF+4*ks,4)}, {vr(QF+4*ks,4)}, {vr(KA+4*t,4) if ks else 0}")
    for h in range(2):
        for c in range(8):
            row(8 * h + c, c)
        adv()
    rd()
    for h in range(2):
        for c in range(4):
            row(4 * h + c, 2 * c)
            if h == 1:
                mm(0, c)
        adv()
    for q in range(4):
        row(8 + 2 * q, 0); row(9 + 2 * q, 4)
        adv()
    rd()
    for q in range(9):
        row(q, 0)
        if q < 8:
            adv()
        if 4 <= q < 8:
            mm(1, q - 4)
    rd()
    a("v_lshl_add_u32 v8, v2, 4, s15")
    for ks in range(4):
        mm(2, ks)
    a.auto(False)
    a.stamp(2)
    if STAMP and E("CLK2"):
        a("s_memtime s[96:97]")
    a("s_lshl_b32 s8, s12, 2")
    a(f"s_add_u32 s8, s8, {F_PAIR}")
    a("v_mov_b32 v9, s8")
    a("s_cmp_eq_u32 s13, 0")
    a("s_cbranch_scc1 C_KA")
    for t in range(3):
        a(f"ds_write_b128 v8, {vr(KA+4*t,4)} offset:{1024*t}")
    a("v_mov_b32 v10, s54")
    a("ds_write_b32 v9, v10")
    a.stamp(3)
    a("s_setprio 0")
    a("v_and_b32 v14, 3, v3")
    a("v_sub_u32 v14, 3, v14")
    a(f"v_mul_u32_u24 v14, {CS}, v14")
    a("v_lshrrev_b32 v13, 2, v3")
    a("v_lshl_add_u32 v13, v4, 1, v13")
    a("v_lshl_add_u32 v14, v13, 3, v14")
    a("v_add3_u32 v5, v14, s52, 8")
    a("v_lshlrev_b32 v14, 1, v3")
    a("v_sub_u32 v14, v4, v14")
    a("v_lshlrev_b32 v14, 4, v14")
    a(f"s_add_u32 s8, s53, {4064-512*7}")
    a("v_add_u32 v6, s8, v14")
    a("v_lshl_add_u32 v14, v3, 2, v4")
    a(f"s_mul_i32 s8, s12, {OS}")
    a(f"s_add_u32 s8, s8, {OP+4088-512*7}")
    a("v_lshlrev_b32 v14, 3, v14")
    a("v_sub_u32 v140, s8, v14")
    a.spin(F_H, 1, 10, prio=E("BSP", 3), sleep=1)
    a.spin(f"v9 offset:{F_K-F_PAIR}", 0, 10, op="lg", sleep=E("BSS", 0))
    a.stamp(4)
    if STAMP and E("CLK"):
        a("s_memtime s[82:83]")
    gphase(a, 0)
    a.lab("C_KA")
    a("s_setprio 1")
    a("v_lshrrev_b32 v116, 1, v4")
    a("v_and_b32 v117, 1, v4")
    a("v_lshlrev_b32 v116, 8, v116")
    a("v_lshl_add_u32 v116, v117, 3, v116")
    a("v_lshl_add_u32 v116, v3, 4, v116")
    a("v_add_u32 v116, s15, v116")
    a("v_cmp_gt_u32 vcc, 2, v4")
    a("v_lshlrev_b32 v117, 2, v3")
    a("v_lshlrev_b32 v118, 3, v3")
    a("v_cndmask_b32 v117, v117, v118, vcc")
    a("v_lshl_add_u32 v117, v4, 7, v117")
    a("v_add_u32 v117, s15, v117")
    a("v_mov_b32 v118, 64")
    a("v_cndmask_b32 v118, v118, 4, vcc")
    a("v_add_u32 v118, v118, v117")
    a("v_lshlrev_b32 v119, 1, v3")
    a("v_lshl_add_u32 v119, v4, 7, v119")
    a("v_add_u32 v119, s15, v119")
    a("v_lshlrev_b32 v120, 5, v2")
    a("v_lshlrev_b32 v121, 4, v2")
    a("v_add_u32 v121, 256, v121")
    a("v_min_u32 v120, v120, v121")
    a("v_lshlrev_b32 v121, 3, v2")
    a("v_add_u32 v121, 512, v121")
    a("v_min_u32 v120, v120, v121")
    a("v_add_u32 v120, s15, v120")
    EB = 2048
    a("v_min_u32 v121, 15, v2")
    a("v_lshl_add_u32 v121, v121, 2, s15")
    a("v_lshlrev_b32 v122, 2, v4")
    a("v_sub_u32 v122, v3, v122")
    a("v_lshl_add_u32 v122, v122, 2, s15")
    a(f"v_add_u32 v122, {EB+52}, v122")
    a("v_lshl_add_u32 v123, v2, 5, s52")
    a("s_mov_b32 s56, 0x01000100")
    a("s_mov_b32 s57, 0x03020302")
    a("v_and_b32 v14, 3, v3")
    a("v_sub_u32 v14, 3, v14")
    a(f"v_mul_u32_u24 v14, {CS}, v14")
    a("v_lshrrev_b32 v13, 2, v3")
    a("v_lshl_add_u32 v13, v4, 1, v13")
    a("v_lshl_add_u32 v14, v13, 3, v14")
    a("v_add3_u32 v5, v14, s52, 8")
    a("v_lshlrev_b32 v14, 1, v3")
    a("v_sub_u32 v14, v4, v14")
    a("v_lshlrev_b32 v14, 4, v14")
    a(f"s_add_u32 s8, s53, {4064-512*7}")
    a("v_add_u32 v6, s8, v14")
    a("v_lshl_add_u32 v14, v3, 2, v4")
    a(f"s_mul_i32 s8, s12, {OS}")
    a(f"s_add_u32 s8, s8, {OP+4088-512*7}")
    a("v_lshlrev_b32 v14, 3, v14")
    a("v_sub_u32 v140, s8, v14")
    if E("APR", 2) != 2:
        a(f"s_setprio {E('APR', 2)}")
    a("v_lshl_add_u32 v14, v4, 3, v3")
    a("v_sub_u32 v14, 39, v14")
    a("s_mov_b32 s8, 0x3f800000")
    for P, bits, sh in ((PA, 0x7f, 19), (PB, 0x1ff, 20)):
        a(f"v_mov_b32 v10, {bits}")
        a("v_mov_b32 v11, 0")
        a("v_lshlrev_b64 v[10:11], v14, v[10:11]")
        a(f"v_alignbit_b32 v10, v11, v10, {sh}")
        for p in range(4):
            a(f"v_bfe_i32 v11, v10, {2*p}, 1")
            a(f"v_bfe_i32 v12, v10, {2*p+1}, 1")
            a("v_and_b32 v11, 0x3f80, v11")
            a(f"v_and_or_b32 v{P+p}, v12, s8, v11")
    a("s_lshl_b32 s8, s12, 4")
    a("s_lshr_b64 s[68:69], s[68:69], s8")
    a("s_lshl_b32 s68, s68, 16")
    a("s_sub_u32 s58, 254, s54")
    a("s_lshl_b32 s58, s58, 23")
    for r in range(12):
        a(f"v_mul_f32 v{KA+r}, s58, v{KA+r}")
    a("s_mov_b64 exec, 1")
    a(f"v_add_f32 v{KA}, s68, v{KA}")
    a("s_mov_b64 exec, -1")
    a.spin("v9", 0, 18, prio=2, op="lg")
    a("s_sub_u32 s60, 254, s8")
    a("s_lshl_b32 s60, s60, 23")
    a.auto(True)
    for t in range(3):
        a(f"ds_read_b128 {vr(PF+4*t,4)}, v8 offset:{4*KTS+1024*t}")
    for t in range(3):
        for p in range(2):
            r = 4 * t + 2 * p
            a(f"v_pk_fma_f32 {vr(KA+r,2)}, {vr(PF+r,2)}, s[60:61], {vr(KA+r,2)} op_sel_hi:[1,0,1]")
            a(f"v_cvt_pk_bf16_f32 v{20+2*t+p}, v{KA+r}, v{KA+r+1}")
        if t == 0:
            a("ds_write_b64 v116, v[20:21]")
        elif t == 1:
            a("ds_write_b32 v117, v22 offset:512")
            a("ds_write_b32 v118, v23 offset:512")
    a("ds_write_b16 v119, v24 offset:1024")
    S = 32
    for p in range(4):
        a(f"ds_read_b64 {vr(S+2*p,2)}, v120 offset:{8*p}")
    a("s_mov_b32 exec_lo, 0xffff0000")
    a("s_mov_b32 exec_hi, 0")
    for p in range(7, -1, -1):
        if p & 1:
            a(f"v_alignbit_b32 v{S+p}, v{S+p//2+1}, v{S+p//2}, 16")
        else:
            a(f"v_perm_b32 v{S+p}, v{S+p//2}, v{S+p//2}, s56")
    a("s_mov_b32 exec_lo, 0")
    a("s_mov_b32 exec_hi, -1")
    for p, (src, kind) in reversed(list(enumerate([(0, "l"), (0, "m"), (0, "h"), (1, "l"), (1, "l"), (1, "m"), (1, "h"), (2, "l")]))):
        if kind == "m":
            a(f"v_mov_b32 v{S+p}, v{S+src}")
        else:
            a(f"v_perm_b32 v{S+p}, v{S+src}, v{S+src}, s{56 if kind == 'l' else 57}")
    a("s_mov_b64 exec, -1")
    a(f"ds_write_b128 v123, {vr(S,4)} offset:32")
    a(f"ds_write_b128 v123, {vr(S+4,4)} offset:48")
    a(f"v_mov_b32_dpp v{S-2}, v{S+6} wave_shr:1 {DPPF} bound_ctrl:0")
    a(f"v_mov_b32_dpp v{S-1}, v{S+7} wave_shr:1 {DPPF} bound_ctrl:0")
    C1, C2, C3 = 44, 52, 60
    for p in range(8):
        a(f"v_alignbit_b32 v{C1+p}, v{S+p}, v{S+p-1}, 16")
        if p & 3 == 3:
            a(f"ds_write_b128 v123, {vr(C1+p-3,4)} offset:{CS+32+4*(p-3)}")
    for p in range(4):
        a(f"v_pk_mov_b32 {vr(C2+2*p,2)}, {vr(S+2*p-2,2)}, {vr(S+2*p,2)} op_sel:[1,0]")
        if p & 1:
            a(f"ds_write_b128 v123, {vr(C2+2*p-2,4)} offset:{2*CS+32+8*(p-1)}")
    for p in range(8):
        a(f"v_alignbit_b32 v{C3+p}, v{S+p-1}, v{S+p-2}, 16")
        if p & 3 == 3:
            a(f"ds_write_b128 v123, {vr(C3+p-3,4)} offset:{3*CS+32+4*(p-3)}")
    a("v_mov_b32 v10, 1")
    a(f"ds_write_b32 v9, v10 offset:{F_K-F_PAIR}")
    a.stamp(3)
    a(f"s_setprio {E('GPL', 3)}")
    for r in range(4):
        a(f"ds_write_b16{'_d16_hi' if r&1 else ''} v119, v{24+(r>>1)} offset:{EB+62+32*r}")
    a(f"ds_write_b32 v121, v1 offset:{EB}")
    for D in range(4):
        a(f"ds_read2_b32 {vr(EF+4*D,2)}, v122 offset0:{16*D+3} offset1:{16*D+2}")
        a(f"ds_read2_b32 {vr(EF+4*D+2,2)}, v122 offset0:{16*D+1} offset1:{16*D}")
    TL = 72
    a(f"v_alignbit_b32 v{TL}, v{S+7}, v{S+6}, 16")
    for r in (1, 2, 3, 6, 7, 8, 10, 11, 12):
        a(f"v_mov_b32 v{TL+r}, v{S+7}")
    a(f"v_and_b32 v{TL+4}, 0xffff, v{S+7}")
    a(f"v_and_b32 v{TL+9}, 0xffff, v{S+7}")
    a(f"v_mov_b32 v{TL+5}, 0")
    a(f"v_mov_b32 v{TL+13}, 0")
    a("s_mov_b32 exec_lo, 0")
    a("s_mov_b32 exec_hi, 0x80000000")
    a(f"ds_write_b128 v123, {vr(TL,4)} offset:{3*CS+64}")
    a(f"ds_write_b128 v123, {vr(TL+2,4)} offset:64")
    a(f"ds_write_b128 v123, {vr(TL+6,4)} offset:{2*CS+64}")
    a(f"ds_write_b128 v123, {vr(TL+10,4)} offset:{CS+64}")
    a("s_mov_b64 exec, -1")
    a.auto(False)
    a.spin(F_H, 1, 10, sleep=1)
    a.stamp(4)
    gphase(a, 1)


def bias_of(a, d, m):
    a(f"v_lshrrev_b32 v{d}, 7, v{m}")
    a(f"v_subrev_u32 v{d}, 26, v{d}")
    a(f"v_max_i32 v{d}, 0, v{d}")


def gphase(a, isA):
    AC = 16
    SET = [32, 76]
    a(f"s_setprio {E('GPL', 3) if isA else E('GP0', 2)}")
    acc = lambda t: vr(AC + 4 * (t & 3), 4)
    afr = lambda aa, rho: SET[rho & 1] + 4 * aa
    bfr = lambda b, rho: SET[rho & 1] + 16 + 4 * (b % 7)

    def rdA(aa, rho, dst=None):
        d = afr(aa, rho) if dst is None else dst
        return [f"ds_read_b64 {vr(d,2)}, v5 offset:{64*rho+512*aa}", f"ds_read_b64 {vr(d+2,2)}, v5 offset:{64*rho+512*aa+8}"]

    def rdB(b, rho, dst=None, extra=0):
        return [f"ds_read_b128 {vr(bfr(b, rho) if dst is None else dst,4)}, v6 offset:{512*(7-b)+64*rho+extra}"]
    started = set()

    def mf(t, A, B):
        c = acc(t) if t in started else "0"
        started.add(t)
        return f"v_mfma_f32_16x16x32_bf16 {acc(t)}, {vr(A,4)}, {vr(B,4)}, {c}"

    def reads(pairs, rho):
        r, sa, sb = [], set(), set()
        for t, aa in pairs:
            if aa not in sa:
                sa.add(aa); r += rdA(aa, rho)
            if t - aa not in sb:
                sb.add(t - aa); r += rdB(t - aa, rho)
        return r

    def sweep(pairs, plan=None, hook=None):
        plan = plan or [(pairs, rho) for rho in range(8)]
        for x in reads(*plan[0]):
            a(x)
        for i, (pairs, rho) in enumerate(plan):
            nxt = reads(*plan[i + 1]) if i + 1 < len(plan) else []
            if hook:
                nxt = nxt + hook(i)
            n, done = len(nxt), 0
            for k, (t, aa) in enumerate(pairs):
                if i and k in (0, len(pairs) // 2):
                    rest = pairs[k:len(pairs) // 2] if k == 0 else pairs[k:]
                    a("@need " + ", ".join([vr(afr(a2, rho), 4) for t2, a2 in rest] + [vr(bfr(t2 - a2, rho), 4) for t2, a2 in rest]))
                a(mf(t, afr(aa, rho), bfr(t - aa, rho)))
                upto = -(-n * (k + 1) // len(pairs))
                while done < upto:
                    a(nxt[done]); done += 1

    def yout(tiles, fl):
        for k, t in enumerate(tiles):
            R = AC + 4 * (t & 3)
            a(f"v_cvt_pk_bf16_f32 v{124+2*k}, v{R+3}, v{R+2}")
            a(f"v_cvt_pk_bf16_f32 v{125+2*k}, v{R+1}, v{R}")
            a(f"ds_write_b64 v140, {vr(124+2*k,2)} offset:{512*(7-t)}")
        a.auto(False)
        a.signal(F_O + 4 * fl, 12)
    a.auto(True)
    if isA:
        UA, UB, ZA, ZB, A32 = 32, 48, 64, 80, 96
        for b in range(4):
            for x in rdB(b, 0, UA + 4 * b) + rdB(b, 0, UB + 4 * b, 16):
                a(x)
        for x in rdA(4, 0, A32):
            a(x)
        for b in range(4):
            a(f"v_mfma_f32_16x16x32_bf16 {vr(ZA+4*b,4)}, {vr(UA+4*b,4)}, {vr(PA,4)}, 0")
            a(f"v_mfma_f32_16x16x32_bf16 {vr(ZB+4*b,4)}, {vr(UB+4*b,4)}, {vr(PB,4)}, 0")
        for b in range(4):
            a(mf(4 + b, A32, UA + 4 * b))
            for r in range(4):
                a(f"v_cvt_pk_bf16_f32 v{ZA+4*b+r}, v{ZA+4*b+r}, v{ZB+4*b+r}")
        for t in range(4, 8):
            for b in range(t - 3):
                a(mf(t, ZA + 4 * b, EF + 4 * (t - b - 4)))
        a.auto(False)
        a.stamp(5)
        a.spin(F_H + 4, 1, 10, prio=E('GP1', 1), sleep=1)
        if STAMP and E("CLK"):
            a("s_memtime s[82:83]")
            a.stamp(4)
        a.auto(True)
        P = lambda ts: [(t, aa) for aa in range(4) for t in ts]
        plan = [(P((7, 6, 5, 4)), r) for r in range(R3)] + [(P((5, 4)), r) for r in range(R3, 8)] + [(P((7, 6)), r) for r in range(R3, 8)]

        def hook(i):
            if i != 8:
                return []
            o = []
            for k, t in enumerate((5, 4)):
                R = AC + 4 * (t & 3)
                o += [f"v_cvt_pk_bf16_f32 v{124+2*k}, v{R+3}, v{R+2}", f"v_cvt_pk_bf16_f32 v{125+2*k}, v{R+1}, v{R}",
                      f"ds_write_b64 v140, {vr(124+2*k,2)} offset:{512*(7-t)}"]
            return o + [f"ds_add_u32 v13, v12"]
        a("v_cmp_eq_u32 vcc, 0, v2")
        a(f"v_mov_b32 v13, {F_O+4}")
        a("v_cndmask_b32 v12, 0, 1, vcc")
        a("v_lshl_add_u32 v14, v2, 2, s15")
        a("v_cndmask_b32 v13, v14, v13, vcc")
        sweep(None, plan, hook)
        a.stamp(6)
        if STAMP and E("CLK"):
            a("s_memtime s[84:85]")
        yout((7, 6), 2)
        a.stamp(7)
        a.end()
        return
    sweep([(t, aa) for aa in range(4) for t in range(3, aa - 1, -1)])
    a.stamp(6)
    if STAMP and E("CLK"):
        a("s_memtime s[84:85]")
    yout((0, 1, 2, 3), 0)
    a.stamp(7)
    a(f"ds_read_b32 v10, v1 offset:{F_X}")
    a("s_cmp_eq_u32 s3, 4")
    a("s_cbranch_scc1 C_FIN")
    if E("WB"):
        a("s_lshl_b32 s8, s3, 8")
        a("s_add_u32 s8, s8, s5")
        a(f"s_cmp_lg_u32 s8, {5*256+20}")
        a("s_cbranch_scc1 K_END")
        a.spin(F_O + 4, E("WB"), 10, sleep=4)
        a("buffer_wbl2 sc1")
        a("s_waitcnt vmcnt(0)")
    a.end()


EG, ES = 40, 6


def epi_setup(a):
    srd(a, 60, P_OUT, 2359296)


def epi_gaddr(a, d):
    a("s_lshl_b32 s8, s14, 8")
    a(f"s_add_u32 s8, s8, {WS_G}")
    a(f"v_xor_b32 v{d}, 63, v2")
    a(f"v_lshrrev_b32 v{d}, 1, v{d}")
    a(f"v_lshl_add_u32 v{d}, v{d}, 3, s8")


def tr_addr(a, d, base, stride, n):
    a(f"v_bfe_u32 v{d}, v2, 2, 2")
    a(f"v_mul_u32_u24 v{d}, {stride}, v{d}")
    a("v_and_b32 v13, 3, v2")
    a("v_lshl_add_u32 v13, v4, 2, v13")
    a(f"v_lshl_add_u32 v{d}, v13, 3, v{d}")
    a("s_lshl_b32 s8, s14, 7")
    a(f"s_sub_u32 s8, {base+3968-128*(n-1)}, s8")
    a(f"v_add_u32 v{d}, s8, v{d}")


def epi_x(a, n, slot0):
    tr_addr(a, 12, UP, US, n)
    for k in range(n):
        a(f"ds_read_b64_tr_b16 {vr(EG+ES*(slot0+k)+4,2)}, v12 offset:{128*(n-1-k)}")


def epi_t1(a, n, slot0):
    a("s_waitcnt lgkmcnt(0)")
    for k in range(n):
        B = EG + ES * (slot0 + k)
        for p in range(2):
            a(f"v_lshlrev_b32 v{B+2*p}, 16, v{B+4+p}")
            a(f"v_and_b32 v{B+1+2*p}, 0xffff0000, v{B+4+p}")


def epi_g(a, sets, GD):
    n = sum(c for _, c in sets)
    l = a.uid("GP")
    a("s_mov_b32 s9, 0")
    a.lab(l)
    a(f"v_xor_b32 v14, v{GD+1}, v10")
    for k in range(1, n):
        a(f"v_bitop3_b32 v14, v14, v{GD+2*k+1}, v10 bitop3:0xf6")
    a("v_cmp_ne_u32 vcc, 0, v14")
    a("s_add_u32 s9, s9, 1")
    a("s_cmp_eq_u64 vcc, 0")
    a(f"s_cbranch_scc1 {l}_D")
    a(f"s_cmp_ge_u32 s9, {SPIN}")
    a(f"s_cbranch_scc1 {l}_D")
    epi_gl(a, sets, GD)
    a("s_waitcnt vmcnt(0)")
    a(f"s_branch {l}")
    a.lab(l + "_D")


def epi_gl(a, sets, GD):
    k = 0
    for ad, c in sets:
        for i in range(c):
            a(f"global_load_dwordx2 {vr(GD+2*k,2)}, v{ad}, {sr(P_WS,2)} offset:{256*i} sc1")
            k += 1


def epi_t2(a, n, slot0, GD):
    a("v_and_b32 v11, 1, v2")
    a("v_lshlrev_b32 v11, 4, v11")
    a("s_lshl_b32 s8, s14, 8")
    a(f"s_add_u32 s8, s8, {OM}")
    a("v_xor_b32 v12, 63, v2")
    a("v_lshl_add_u32 v12, v12, 2, s8")
    Bs = [EG + ES * (slot0 + k) for k in range(n)]
    for k, B in enumerate(Bs):
        a(f"v_lshlrev_b32 v{B+4}, v11, v{GD+2*k}")
    for B in Bs:
        a(f"v_and_b32 v{B+4}, 0xffff0000, v{B+4}")
    for B in Bs:
        a(f"v_sub_f32 v{B+5}, 1.0, v{B+4}")
    for B in Bs:
        a(f"v_cvt_pk_bf16_f32 v{B+5}, v{B+5}, v{B+5}")
    for B in Bs:
        a(f"v_and_b32 v{B+5}, 0xffff0000, v{B+5}")
    for k, B in enumerate(Bs):
        if E("PK1"):
            for p in range(2):
                a(f"v_pk_mul_f32 {vr(B+2*p,2)}, {vr(B+2*p,2)}, {vr(B+4,2)} op_sel:[0,1] op_sel_hi:[1,1]")
        else:
            for r in range(4):
                a(f"v_mul_f32 v{B+r}, v{B+r}, v{B+5}")
        a(f"ds_write_b32 v12, v{B+4} offset:{256*k}")


def epi_fin(a, n, slot0, half):
    tr_addr(a, 12, OP, OS, n)
    a("v_xor_b32 v14, 63, v2")
    a("v_mul_u32_u24 v14, 1152, v14")
    a("v_add_u32 v14, s55, v14")
    a("s_mul_i32 s15, s14, 73728")
    a.spin(F_O + 4 * half, 4, 15, sleep=E("OSL", 1), prio=3)
    a.auto(True)
    Y = 16
    for k in range(n):
        a(f"ds_read_b64_tr_b16 {vr(Y+2*k,2)}, v12 offset:{128*(n-1-k)}")
    for k in range(n):
        B = EG + ES * (slot0 + k)
        R, y = 24 + 4 * k, Y + 2 * k
        for p in range(2):
            a(f"v_lshlrev_b32 v{R+2*p}, 16, v{y+p}")
            a(f"v_and_b32 v{R+2*p+1}, 0xffff0000, v{y+p}")
        if E("PK2"):
            for p in range(2):
                a(f"v_pk_fma_f32 {vr(B+2*p,2)}, {vr(R+2*p,2)}, {vr(B+4,2)}, {vr(B+2*p,2)} op_sel_hi:[1,0,1]")
        else:
            for r in range(4):
                a(f"v_fmac_f32 v{B+r}, v{R+r}, v{B+4}")
        for p in range(2):
            a(f"v_cvt_pk_bf16_f32 v{B+p}, v{B+2*p}, v{B+2*p+1}")
        if E("STW", -1) >= 0 and k:
            a(f"s_waitcnt vmcnt({E('STW')})")
        a(f"buffer_store_dwordx2 {vr(B,2)}, v14, s[60:63], s15 offen")
        a("s_add_u32 s15, s15, 73728")
    a.auto(False)


def gsets(a, mid):
    a("s_lshl_b32 s14, s12, 1")
    a("s_add_u32 s14, s14, 16")
    epi_gaddr(a, mid)
    a(f"v_add_u32 v9, 2048, v{mid}")
    a("s_lshl_b32 s14, s12, 2")
    epi_gaddr(a, 5)


def burst_addr(a):
    a(f"s_sub_u32 s9, s5, {NJH}")
    a("s_lshl_b32 s9, s9, 2")
    a("s_add_u32 s9, s9, s12")
    a("s_mul_i32 s9, s9, 9216")
    a("s_mul_i32 s8, s4, 663552")
    a("s_add_u32 s8, s8, s9")
    a("v_lshl_add_u32 v88, v2, 7, s8")
    a("v_min_u32 v89, 7, v2")
    a("v_lshl_add_u32 v89, v89, 7, s8")
    a("v_add_u32 v89, 8192, v89")


def burst(a):
    if BSN:
        for k in range(2):
            a(f"global_load_dword v{96+k}, v{88+k}, {sr(P_WD,2)}")


def io_common(a):
    a("s_mul_i32 s7, s4, 18")
    a("s_add_u32 s7, s7, s5")
    a(f"s_sub_u32 s7, s7, {NJH}")
    a("s_lshl_b32 s55, s7, 3")
    a("s_sub_u32 s12, s3, 8")
    epi_setup(a)
    burst_addr(a)


def uloader(a):
    a.lab("C_LOAD")
    a("s_setprio 3")
    a(f"s_sub_u32 s13, s5, {NJH}")
    pf = stripe_pf(a)
    pf2 = []
    if PF2AT >= 0:
        pf, pf2 = pf[:2], [x.replace("v10,", "v98,").replace("v11,", "v99,") for x in pf[2:]]
    a("v_mul_u32_u24 v6, 4608, v2")
    a("s_lshl_b32 s8, s7, 3")
    a("v_add_u32 v6, s8, v6")
    a("v_lshlrev_b32 v7, 3, v2")
    a(f"v_sub_u32 v7, {UP+4088-512*7}, v7")
    a("s_mov_b32 s56, 0x05040100")
    a("s_mov_b32 s58, 0x07060302")
    a("s_mov_b32 s57, s13")
    a("s_waitcnt lgkmcnt(0)")
    if E("PFE", 0):
        for x in pf:
            a(x)
    srd(a, 72, P_U, 2359296)
    a.b0(12)
    if E("PFX"):
        a.spin(F_X, 0, 12, op="lg")
    if not E("PFE", 0):
        for k, x in enumerate(pf):
            if k == 2 and E("PF2"):
                a("s_waitcnt vmcnt(0)")
            a(x)
    io_common(a)
    for j in range(4):
        a(f"v_mov_b32 v{24+j}, 0")
    a("v_lshrrev_b32 v28, 2, v2")
    a(f"v_mul_u32_u24 v28, {CS}, v28")
    a(f"v_add_u32 v28, {KC}, v28")
    a("v_and_b32 v29, 3, v2")
    a("v_lshl_add_u32 v30, v29, 4, v28")
    a("ds_write_b128 v30, v[24:27] offset:2096")
    a("v_and_b32 v29, 1, v2")
    a("v_lshl_add_u32 v30, v29, 4, v28")
    a("ds_write_b128 v30, v[24:27]")
    a("v_lshrrev_b32 v28, 5, v2")
    a(f"v_mul_u32_u24 v28, {US}, v28")
    a("v_and_b32 v29, 31, v2")
    a("v_lshl_add_u32 v30, v29, 4, v28")
    a(f"v_add_u32 v30, {UP+4096}, v30")
    a("ds_write_b128 v30, v[24:27]")
    a(f"ds_write_b128 v30, v[24:27] offset:{2*US}")
    gsets(a, 13)
    a("s_mov_b32 s15, 0")
    if ROT:
        for k in range(4):
            a(f"s_add_u32 s8, s57, {k}")
            a("s_and_b32 s8, s8, 3")
            a(f"s_mul_i32 s{76+k}, s8, 294912")
            a(f"s_add_u32 s{64+k}, s{76+k}, {4*294912}")
            a("s_lshl_b32 s8, s8, 9")
            a(f"v_subrev_u32 v{32+k}, s8, v7")
    a("v_mov_b32 v12, 1")
    a(f"s_waitcnt vmcnt({E('UW', 2 if PF2AT < 0 else 0)})")
    a.stamp(7)
    U = 104

    def issue(i):
        if not NOU:
            so = f"s{(76 if i < 16 else 64) + ((i >> 2) & 3)}" if ROT else "s15"
            a(f"buffer_load_dwordx2 {vr(U+2*i,2)}, v6, s[72:75], {so} offen offset:{1152*(i&3)}")
        if i & 3 == 3:
            a("s_add_u32 s15, s15, 294912")
        if i == PF2AT:
            for x in pf2:
                a(x)
        if i == BST:
            a(f"ds_write_b32 v1, v12 offset:{F_UI}")
            epi_gl(a, [(5, 4), (13, 2), (9, 2)], 104)
            burst(a)
    a.auto(True)
    nis = 0
    for i in range(32):
        while nis < min(32, i + WIN_U):
            issue(nis); nis += 1
        a(f"@need {vr(U+2*i,2)}")
        if i & 3 == 3:
            while nis < min(32, i + 1 + WIN_U):
                issue(nis); nis += 1
            t, u, o = i >> 2, U + 2 * (i - 3), 16 + 8 * ((i >> 2) & 1)
            for ch in range(4):
                sel = "s58" if ch & 1 else "s56"
                a(f"v_perm_b32 v{o+2*ch}, v{u+4+(ch>>1)}, v{u+6+(ch>>1)}, {sel}")
                a(f"v_perm_b32 v{o+2*ch+1}, v{u+(ch>>1)}, v{u+2+(ch>>1)}, {sel}")
                if ROT:
                    a(f"ds_write_b64 v{32+(t&3)}, {vr(o+2*ch,2)} offset:{ch*US+512*(7-(t&4))}")
                else:
                    a(f"ds_write_b64 v7, {vr(o+2*ch,2)} offset:{ch*US+512*(7-t)}")
        if i == 3:
            a.stamp(8)
        if i & 15 == 15:
            a(f"ds_write_b32 v1, v12 offset:{F_H+4*(i>>4)}")
            a.stamp(2 - (i >> 4))
    a.auto(False)
    a("v_mov_b32 v6, v13")
    a.spin(F_X, 0, 10, op="lg")
    epi_x(a, 4, 0)
    epi_t1(a, 4, 0)
    a("s_branch C_IO3")
    a.lab("C_IO")
    io_common(a)
    gsets(a, 6)
    GD = 104
    GS = [(5, 4), (6, 2), (9, 2)]
    a.spin(F_X, 0, 10, op="lg")
    a.spin(F_H, 1, 12, prio=3, sleep=2)
    epi_x(a, 4, 0)
    epi_t1(a, 4, 0)
    a.spin(F_UI, 1, 12, prio=3, sleep=1)
    epi_gl(a, GS, GD)
    burst(a)
    a.lab("C_IO3")
    a(f"s_waitcnt vmcnt({2 if BSN else 0})")
    epi_g(a, GS, GD)
    epi_t2(a, 4, 0, GD)
    a.stamp(3)
    epi_fin(a, 4, 0, 0)
    a.stamp(4)
    a.spin(F_H + 4, 1, 12, prio=3, sleep=2)
    def hi(base):
        a("s_lshl_b32 s14, s12, 1")
        a(f"s_add_u32 s14, s14, {base}")
    hi(24); epi_x(a, 2, 6)
    hi(16); epi_x(a, 2, 4)
    epi_t1(a, 4, 4)
    hi(24); epi_t2(a, 2, 6, GD + 12)
    hi(16); epi_t2(a, 2, 4, GD + 8)
    epi_fin(a, 2, 4, 1)
    a.stamp(5)
    hi(24); epi_fin(a, 2, 6, 2)
    a.signal(F_SI, 8)
    a.stamp(6)
    a("s_waitcnt vmcnt(0)")
    a.signal(F_ST, 8)
    a.end()
    a.lab("C_FIN")
    Z = 104
    a("s_setprio 0")
    a("v_and_b32 v8, 7, v2")
    a("v_lshlrev_b32 v8, 3, v8")
    a(f"v_add_u32 v8, {WS_SEL}, v8")
    a("s_mul_i32 s8, s7, 9216")
    a(f"s_add_u32 s8, s8, {WS_MB}")
    a("v_lshl_add_u32 v5, v2, 4, s8")
    a("v_add_u32 v6, 0x1000, v5")
    a("v_add_u32 v7, 0x2000, v5")
    a("s_waitcnt lgkmcnt(0)")
    for j in range(4):
        a(f"v_bfe_u32 v{Z+6+j}, v10, {8*j}, 8")
    a("s_mov_b32 s9, 0")
    a.lab("C_SPOLL")
    a(f"global_load_dwordx2 v[16:17], v8, {sr(P_WS,2)} sc1")
    a("s_waitcnt vmcnt(0)")
    a("v_cmp_ne_u32 vcc, v17, v10")
    a("s_add_u32 s9, s9, 1")
    a("s_cmp_eq_u64 vcc, 0")
    a("s_cbranch_scc1 C_SOK")
    a("s_sleep 4")
    a(f"s_cmp_lt_u32 s9, {SPIN}")
    a("s_cbranch_scc1 C_SPOLL")
    a.lab("C_SOK")
    a.spin(F_H + 4, 1, 12, prio=3, sleep=2)
    a("v_and_b32 v18, 0x7ff, v16")
    a("v_sub_u32 v18, 2047, v18")
    a("v_and_b32 v19, 1, v4")
    a("v_lshrrev_b32 v20, 1, v4")
    a("v_lshl_or_b32 v19, v19, 1, v20")
    a("v_lshlrev_b32 v19, 1, v19")
    a("v_and_b32 v22, 0x7ff, v16")
    a(f"v_mul_u32_u24 v23, {US//2}, v19")
    a("v_lshl_add_u32 v23, v22, 1, v23")
    a(f"v_add_u32 v23, {UP}, v23")
    a(f"ds_read_u16 v{Z+1}, v23")
    a("v_and_b32 v20, 0xffff0000, v16")
    a("v_ashrrev_i32 v21, 31, v20")
    a("v_not_b32 v21, v21")
    a("v_or_b32 v21, 0x80000000, v21")
    a("v_and_b32 v21, 0xffff0000, v21")
    a("v_xor_b32 v20, v20, v21")
    sigmoid_f32(a, Z, 20, 21)
    rb(a, Z)
    a(f"v_lshlrev_b32 v{Z+2}, 2, v18")
    a(f"v_add_u32 v{Z+2}, {OM}, v{Z+2}")
    a(f"v_mul_u32_u24 v{Z+3}, {OS//2}, v19")
    a(f"v_lshl_add_u32 v{Z+3}, v22, 1, v{Z+3}")
    a(f"v_add_u32 v{Z+3}, {OP}, v{Z+3}")
    a(f"v_mul_u32_u24 v{Z+4}, 1152, v18")
    a(f"v_add3_u32 v{Z+4}, v{Z+4}, v19, s55")
    a("s_waitcnt lgkmcnt(0)")
    a(f"v_lshlrev_b32 v{Z+1}, 16, v{Z+1}")
    MB = 120
    a("s_mov_b32 s9, 0")
    a("s_setprio 0")
    a("s_mov_b64 exec, 1")
    if E("SENT"):
        a(f"v_add_u32 v27, {128*E('SENT')}, v5")
    a.lab("C_M1")
    a(f"ds_read_b32 v26, v1 offset:{F_O+4}")
    a("s_waitcnt lgkmcnt(0)")
    a("v_readfirstlane_b32 s8, v26")
    a(f"s_cmp_ge_u32 s8, {E('MF', 1)}")
    a("s_cbranch_scc1 C_M1S")
    a(f"global_load_dword v26, v{27 if E('SENT') else 5}, {sr(P_WS,2)} sc1")
    a("s_waitcnt vmcnt(0)")
    a("v_xor_b32 v26, v26, v10")
    a("v_and_b32 v26, 0xff, v26")
    a("v_cmp_ne_u32 vcc, 0, v26")
    a("s_add_u32 s9, s9, 1")
    a("s_cmp_eq_u64 vcc, 0")
    a("s_cbranch_scc1 C_M1D")
    a(f"s_cmp_lt_u32 s9, {SPIN}")
    a("s_cbranch_scc1 C_M1")
    a.lab("C_M1S")
    a.spin(F_SI, E("SI", 4), 26, sleep=1)
    a.lab("C_M1D")
    a.stamp(5)
    a("s_mov_b64 exec, -1")
    a("s_setprio 3")
    a("s_mov_b32 s9, 0")
    a.lab("C_MPOLL")
    for i in range(9):
        a(f"global_load_dwordx4 {vr(MB+4*i,4)}, v{5+(i>>2)}, {sr(P_WS,2)} offset:{1024*(i&3)} sc1")
    for i in range(9):
        a(f"s_waitcnt vmcnt({8-i})")
        for j in range(4):
            a(f"v_xor_b32 v{MB+4*i+j}, v{MB+4*i+j}, v{Z+6+j}")
        a(f"v_or3_b32 v26, v{MB+4*i}, v{MB+4*i+1}, {'v26' if i else '0'}")
        a(f"v_or3_b32 v26, v{MB+4*i+2}, v{MB+4*i+3}, v26")
        if i:
            for p in range(2):
                a(f"v_pk_add_f32 {vr(28+2*p,2)}, {vr(28+2*p if i > 1 else MB+2*p,2)}, {vr(MB+4*i+2*p,2)}")
    a("v_and_b32 v26, 0xff, v26")
    a("v_cmp_ne_u32 vcc, 0, v26")
    a("s_add_u32 s9, s9, 1")
    a("s_cmp_eq_u64 vcc, 0")
    a("s_cbranch_scc1 C_MOK")
    if E("MSL", 2):
        a(f"s_sleep {E('MSL', 2)}")
    a(f"s_cmp_lt_u32 s9, {SPIN}")
    a("s_cbranch_scc1 C_MPOLL")
    a.lab("C_MOK")
    if STAMP:
        a("s_mov_b32 s82, s9")
    a.stamp(8)
    a("v_permlane32_swap_b32 v28, v29")
    a("v_permlane32_swap_b32 v30, v31")
    a("v_add_f32 v28, v28, v29")
    a("v_add_f32 v30, v30, v31")
    a("v_permlane16_swap_b32 v28, v30")
    a("v_add_f32 v28, v28, v30")
    a(f"v_add_f32_dpp v28, v28, v28 row_ror:8 {DPPF}")
    rb(a, 28)
    a(f"v_mul_f32 v28, v28, v{Z}")
    rb(a, 28)
    a(f"v_add_f32 v28, v28, v{Z+1}")
    rb(a, 28)
    a.spin(F_ST, 4, 27, prio=3)
    a(f"ds_read_b32 v25, v{Z+2}")
    a(f"ds_read_u16 v24, v{Z+3}")
    a("s_waitcnt lgkmcnt(0)")
    a("v_sub_f32 v26, 1.0, v25")
    a("v_lshlrev_b32 v24, 16, v24")
    rb(a, 26)
    a("v_mul_f32 v28, v28, v26")
    a("v_fmac_f32 v28, v24, v25")
    a("v_cvt_pk_bf16_f32 v28, v28, v28")
    a("s_mov_b32 exec_lo, 0x00ff00ff")
    a("s_mov_b32 exec_hi, 0x00ff00ff")
    a(f"global_store_short v{Z+4}, v28, {sr(P_OUT,2)}")
    a("s_mov_b64 exec, -1")
    a.end()


def kernel(a):
    a.raw(".p2align 8")
    a.raw(".globl k1_kernel")
    a.raw(".type k1_kernel,@function")
    a.lab("k1_kernel")
    a("v_lshrrev_b32 v1, 6, v0")
    a("s_cmp_ge_u32 s2, 256")
    a("v_readfirstlane_b32 s3, v1")
    a("s_cbranch_scc1 K_END")
    a("v_and_b32 v2, 63, v0")
    a("v_mov_b32 v1, 0")
    a("s_cmp_lg_u32 s3, 1")
    a("s_cbranch_scc1 K_NOZ")
    a("v_lshlrev_b32 v3, 2, v2")
    a("ds_write_b32 v3, v1")
    a("s_waitcnt lgkmcnt(0)")
    a.lab("K_NOZ")
    a("s_load_dwordx16 s[16:31], s[0:1], 0")
    a("s_load_dwordx16 s[32:47], s[0:1], 64")
    a("s_load_dwordx4 s[48:51], s[0:1], 128")
    a("s_lshr_b32 s5, s2, 3")
    if CODEPF:
        a("s_lshl_b32 s8, s3, 8")
        a("s_add_u32 s8, s8, s5")
        a(f"s_cmp_lg_u32 s8, {NJF}")
        a("s_cbranch_scc1 K_NOCPF")
        a("s_getpc_b64 s[8:9]")
        a("s_and_b32 s8, s8, 0xffffff00")
        a("v_lshlrev_b32 v8, 7, v2")
        for k in range(4):
            a(f"v_min_u32 v9, CODE_END-k1_kernel-4, v8")
            a(f"global_load_dword v{160+k}, v9, s[8:9]")
            a(f"v_add_u32 v8, 8192, v8")
        a.lab("K_NOCPF")
    if STAMP:
        for i in range(1, 10):
            a(f"s_mov_b32 s{80+2*i}, 0")
    if PROBE:
        a("s_mov_b32 s98, 0")
    a.stamp(0)
    a("v_and_b32 v3, 15, v2")
    a("v_lshrrev_b32 v4, 4, v2")
    a("s_and_b32 s4, s2, 7")
    if not E("OLDB0"):
        a("s_barrier")
    a("s_cmp_eq_u32 s3, 8")
    a("s_cbranch_scc1 ROUTER")
    a(f"s_cmp_lt_u32 s5, {NJH}")
    a("s_cbranch_scc1 K_OTHER")
    a("s_mul_i32 s7, s4, 18")
    a("s_add_u32 s7, s7, s5")
    a(f"s_sub_u32 s7, s7, {NJH}")
    a("s_cmp_ge_u32 s3, 8")
    a("s_cbranch_scc1 K_CIO")
    kgen_head(a)
    router(a)
    a.lab("K_OTHER")
    a("s_mul_i32 s7, s4, 9")
    a("s_add_u32 s7, s7, s5")
    a("s_mov_b32 s12, s3")
    a("s_cmp_lt_u32 s3, 2")
    a("s_cbranch_scc1 GATE")
    a(f"s_cmp_ge_u32 s5, {NJF}")
    a("s_cbranch_scc1 HELPER")
    a("s_cmp_lt_u32 s3, 8")
    a("s_cbranch_scc1 F_COMP")
    ffn_loader(a)
    a.lab("K_CIO")
    a("s_sub_u32 s12, s3, 9")
    a("s_cmp_eq_u32 s3, 11")
    a("s_cbranch_scc1 C_LOAD")
    a("s_branch GATE")
    uloader(a)
    helper(a)
    gate(a)
    kgen(a)
    select(a)
    ffn_comp(a)
    if STAMP:
        a.lab("STAMP_OUT")
        a("s_memrealtime s[98:99]")
        a("s_waitcnt lgkmcnt(0)")
        a("s_lshl_b32 s8, s2, 4")
        a("s_add_u32 s8, s8, s3")
        a("s_lshl_b32 s8, s8, 6")
        a(f"s_add_u32 s8, s8, {WS_STAMP}")
        a("v_mov_b32 v5, s8")
        for i in range(10):
            a(f"v_mov_b32 v6, s{80+2*i}")
            a(f"global_store_dword v5, v6, {sr(P_WS,2)} offset:{4*i}")
    if PROBE:
        a.lab("PADTAIL")
        a("s_waitcnt vmcnt(0) lgkmcnt(0)")
        a("s_cmp_eq_u32 s98, 0")
        a("s_cbranch_scc1 K_END")
        a("s_setprio 0")
        a.lab("PADL")
        a("s_sleep 8")
        a("s_memrealtime s[96:97]")
        a("s_waitcnt lgkmcnt(0)")
        a("s_sub_u32 s96, s96, s98")
        a("s_cmp_lt_u32 s96, 2000")
        a("s_cbranch_scc1 PADL")
    a.lab("K_END")
    a("s_endpgm")
    a.lab("CODE_END")


def main():
    ref = open(os.path.join(HERE, NAME + ".s.ref")).read().splitlines()
    head = [l for l in ref if l.startswith(";") and "@launch" not in l and "Override" not in l and "grid=ceil" not in l]
    a = G()
    kernel(a)
    out = head + [
        f"; @launch kernel=k1_kernel grid=(256,1,1) block=(768,1,1) lds={LDS}",
        '.amdgcn_target "amdgcn-amd-amdhsa--gfx950"',
        ".text",
    ] + a.finish() + [
        '.section .rodata,"a"',
        ".p2align 6",
        ".amdhsa_kernel k1_kernel",
        "  .amdhsa_next_free_vgpr 168",
        "  .amdhsa_next_free_sgpr 102",
        "  .amdhsa_accum_offset 168",
        "  .amdhsa_group_segment_fixed_size 0",
        "  .amdhsa_kernarg_size 144",
        "  .amdhsa_user_sgpr_count 2",
        "  .amdhsa_user_sgpr_kernarg_segment_ptr 1",
        "  .amdhsa_system_sgpr_workgroup_id_x 1",
        ".end_amdhsa_kernel",
    ]
    path = sys.argv[1] if len(sys.argv) > 1 else os.path.join(HERE, NAME + ".s")
    open(path, "w").write("\n".join(out) + "\n")


if __name__ == "__main__":
    main()
```

```python
import sys, os
from asmlib import *

NAME = "gated_mix__ssm_conv_s4__moe_arch_mod__prompt"
HERE = os.path.dirname(os.path.abspath(__file__))
E = lambda k, d=0: int(os.environ.get(k, d))
STAMP = E("STAMP")
PROBE = os.environ.get("PROBE", "")
CODEPF = E("CODEPF", 1)
SELD = E("SELD", 16)
UD = E("UD", 0)
NF = E("NF", 4)
YX = E("YX", 0)
WS_Y = 12 << 20
FT = E("FT", 0)
RDIR = E("RDIR", 2)
GAT = E("GAT", 31)
GPD = E("GPD", 0)
BL = E("BL", 72)
NBI = 2 if BL == 72 else 1
BLATE = E("BLATE", 0)
KS = E("KS", 32)
WS_KEY2 = 2 << 20
PF2AT = E("PF2AT", -1)
R3 = E("R3", 6)
ROT = E("ROT", 1)
SPB = E("SPB", 0)
SPW = E("SPW", 4)
C3 = E("C3", 28)
HSB = E("HSB", 0)
WNT = os.environ.get("WNT", "")
POLLF = os.environ.get("POLLF", "sc1").replace("_", " ")
PUBF = os.environ.get("PUBF", "sc1").replace("_", " ")
PFN = E("PFN", 0)
PFS = E("PFS", 8)
PFW = E("PFW", 1)
HPN = E("HPN", 3)
HPS = E("HPS", 53)
HPW = E("HPW", 4)
PSTEP = 5 * HPW // 2
BST = E("BST", 31)
BSN = E("BSN", 5)
BSS = E("BSS", 0)
WIN_U = E("WIN_U", 5)
WIN_F = E("WIN_F", 10)
HELP = E("HELP", 1)
DUMP = E("DUMP")
HOLD = E("HOLD")
FINE = E("FINE")
NOU = E("NOU")
NOW = E("NOW")

WS_KEY, WS_SEL, WS_BASE, WS_G, WS_MB = 0, 8192, 8448, 16384, 32768
WS_UT = 8 << 20
WS_STAMP = 4 << 20
WS_SIZE = 0x10000000

LDS = 163840
F_NONCE, F_PAIR, F_ST, F_I, F_K, F_H, F_O = 0, 16, 40, 48, 64, 80, 96
F_L, F_D, F_AC, F_XR, F_HR = 16, 40, 48, 84, 88
KT = 256
KTS = 4608
TS = 288
OS = 4160
KC = KT + 8 * KTS
CS = 1216
UP = KC + 16 * CS
US = 4672
OM = UP + 4 * US
OP = OM + 8192
PM = OP + 4 * OS
assert PM + 5120 <= 147712 and OP % 16 == 0
WA = 256
WB = WA + 73728
XB = WB + 73728
HB = XB + 9216
HS = 144
GW = HB + 8 * HS
assert GW + 2048 <= LDS and GW % 16 == 0
F_X, F_GD, F_RI, F_SI, F_UI, F_BU, F_PM = 8, 12, 4, 44, 88, 92, 32

L2E = 0x3fb8aa3b
L2E_LO = 0x32a57060
LN2 = 0x3f317218
INV2PI = 0x3e22f983

P_U, P_ARE, P_AIM, P_BRE, P_BIM, P_CRE, P_CIM, P_LDT = 16, 18, 20, 22, 24, 26, 28, 30
P_DSK, P_BX, P_WR, P_WG, P_WU, P_WD, P_GW, P_OUT = 32, 34, 36, 38, 40, 42, 44, 46
P_DBG, P_WS = 48, 50
NJF, NJH = 9, 14
SPIN = 0x20000

DPPF = "row_mask:0xf bank_mask:0xf"


class G(Asm):
    nlab = 0

    def stamp(s, i):
        if PROBE:
            import inspect
            fn = inspect.stack()[1].function
            if fn == "pre":
                fn = "ffn_loader"
            if f"{fn}:{i}" == PROBE:
                s("s_memrealtime s[98:99]")
        if STAMP and not (FINE and i >= 6):
            s(f"s_memrealtime s[{80+2*i}:{81+2*i}]")

    def fine(s, i):
        if STAMP and FINE:
            s(f"s_memrealtime s[{80+2*i}:{81+2*i}]")

    def b0(s, wait=None):
        if E("OLDB0"):
            s("s_barrier")
        elif wait is not None:
            s.spin(F_RI, 1, wait)

    def end(s):
        s("s_branch STAMP_OUT" if STAMP else "s_branch PADTAIL" if PROBE else "s_endpgm")

    def uid(s, p):
        G.nlab += 1
        return f"{p}_{G.nlab}"

    def spin(s, off, target, tv, sleep=0, op="ge", prio=None):
        l = s.uid("SP")
        if prio is not None:
            s(f"s_setprio {E('SPP', 3) if sleep else 0}")
        s("s_mov_b32 s9, 0")
        s.lab(l)
        s(f"ds_read_b32 v{tv}, v1 offset:{off}") if isinstance(off, int) else s(f"ds_read_b32 v{tv}, {off}")
        s("s_waitcnt lgkmcnt(0)")
        s(f"v_readfirstlane_b32 s8, v{tv}")
        s("s_add_u32 s9, s9, 1")
        s(f"s_cmp_{op}_u32 s8, {target}")
        s(f"s_cbranch_scc1 {l}_D")
        if sleep:
            s(f"s_sleep {sleep}")
        s(f"s_cmp_lt_u32 s9, {SPIN*4}")
        s(f"s_cbranch_scc1 {l}")
        s.lab(l + "_D")
        if prio is not None:
            s(f"s_setprio {prio}")

    def signal(s, off, tv):
        s(f"v_mov_b32 v{tv}, 1")
        s("s_mov_b64 exec, 1")
        s(f"ds_add_u32 v1, v{tv} offset:{off}") if isinstance(off, int) else s(f"ds_add_u32 {off}, v{tv}")
        s("s_mov_b64 exec, -1")


def srd(a, d, p, size):
    a(f"s_mov_b32 s{d}, s{p}")
    a(f"s_mov_b32 s{d+1}, s{p+1}")
    a(f"s_mov_b32 s{d+2}, {size}")
    a(f"s_mov_b32 s{d+3}, 0x20000")


def wave_max_steps(vv):
    return [f"v_max_u32_dpp v{vv}, v{vv}, v{vv} row_shr:1 {DPPF}",
            f"v_max_u32_dpp v{vv}, v{vv}, v{vv} row_shr:2 {DPPF}",
            f"v_max_u32_dpp v{vv}, v{vv}, v{vv} row_shr:4 {DPPF}",
            f"v_max_u32_dpp v{vv}, v{vv}, v{vv} row_shr:8 {DPPF}",
            f"v_max_u32_dpp v{vv}, v{vv}, v{vv} row_bcast:15 row_mask:0xa bank_mask:0xf",
            f"v_max_u32_dpp v{vv}, v{vv}, v{vv} row_bcast:31 row_mask:0xc bank_mask:0xf"]


def sigmoid_f32(a, dst, src, t):
    a(f"v_mul_f32 v{t}, 0xbfb8aa3b, v{src}")
    a(f"v_exp_f32 v{t}, v{t}")
    a(f"v_add_f32 v{t}, 1.0, v{t}")
    a(f"v_rcp_f32 v{dst}, v{t}")


def rb(a, r):
    a(f"v_cvt_pk_bf16_f32 v{r}, v{r}, v{r}")
    a(f"v_and_b32 v{r}, 0xffff0000, v{r}")


def router(a):
    a.lab("ROUTER")
    a("s_setprio 3")
    X, W = 16, 52
    a("v_lshrrev_b32 v5, 3, v2")
    a("v_and_b32 v6, 7, v2")
    a("v_lshlrev_b32 v9, 4, v6")
    a("v_mul_u32_u24 v8, 1152, v5")
    a("s_mul_i32 s8, s2, 9216")
    a("v_add3_u32 v8, v8, v9, s8")
    a("v_lshlrev_b32 v7, 4, v2")
    a("v_min_u32 v10, 7, v2")
    a("v_lshlrev_b32 v10, 4, v10")
    a(f"s_mov_b32 m0, {XB}")
    a("s_waitcnt lgkmcnt(0)")
    a.fine(7)
    a(f"s_load_dword s10, {sr(P_WS,2)}, {WS_BASE}")
    if RDIR:
        for i in range(9):
            a(f"global_load_dwordx4 {vr(X+4*i,4)}, v8, {sr(P_U,2)} offset:{128*i}")
            a(f"global_load_dwordx4 {vr(W+4*i,4)}, v9, {sr(P_WR,2)} offset:{128*i}")
    if RDIR != 2:
        for i in range(9):
            if i:
                a(f"s_mov_b32 m0, {XB+896*i}")
            a(f"global_load_lds_dwordx4 v8, {sr(P_U,2)} offset:{128*i}")
    a(f"s_mov_b32 m0, {GW}")
    a(f"global_load_lds_dwordx4 v7, {sr(P_GW,2)}")
    a(f"global_load_lds_dwordx4 v10, {sr(P_GW,2)} offset:1024")
    if not RDIR:
        for i in range(9):
            a(f"global_load_dwordx4 {vr(W+4*i,4)}, v9, {sr(P_WR,2)} offset:{128*i}")
    a.fine(6)
    a.b0()
    a("v_mov_b32 v11, 1")
    a(f"ds_write_b32 v1, v11 offset:{F_RI}")
    a(f"v_add_u32 v7, {XB}, v7")
    if KS == 32:
        a("s_lshl_b32 s8, s2, 5")
        a("v_lshl_add_u32 v15, v4, 3, s8")
    else:
        a(f"s_mul_i32 s8, s2, {KS}")
        a(f"s_add_u32 s8, s8, {WS_KEY2}")
        a("v_lshl_add_u32 v15, v4, 3, s8")
        a("v_lshl_add_u32 v15, v3, 5, v15")
    a("s_mov_b32 s11, 0xffff")
    for j in range(4):
        a(f"v_mov_b32 v{8+j}, 0")
    a("s_waitcnt lgkmcnt(0)")
    a.fine(8)
    a("s_add_u32 s10, s10, 1")
    a("s_addc_u32 s10, s10, 0")
    a("v_mov_b32 v14, s10")
    a("v_mov_b32 v13, s10")
    if RDIR:
        for i in range(9):
            a(f"s_waitcnt vmcnt({2*(8-i) + (11 if RDIR == 1 else 2)})")
            for j in range(4):
                a(f"v_dot2c_f32_bf16 v{8+j}, v{X+4*i+j}, v{W+4*i+j}")
        a.stamp(1)
    else:
        a("s_waitcnt vmcnt(9)")
        a.stamp(1)
        if STAMP or PROBE:
            a("s_waitcnt lgkmcnt(0)")
        for i in range(9):
            a(f"ds_read_b128 {vr(X+4*i,4)}, v7 offset:{1024*i}")
        a(f"ds_write_b32 v1, v14 offset:{F_X}")
        for i in range(9):
            a(f"s_waitcnt vmcnt({8-i}) lgkmcnt({9-i})")
            for j in range(4):
                a(f"v_dot2c_f32_bf16 v{8+j}, v{X+4*i+j}, v{W+4*i+j}")
    a("v_add_f32 v8, v8, v9")
    a("v_add_f32 v10, v10, v11")
    a("v_add_f32 v8, v8, v10")
    a(f"v_add_f32_dpp v8, v8, v8 quad_perm:[1,0,3,2] {DPPF}")
    a(f"v_add_f32_dpp v8, v8, v8 quad_perm:[2,3,0,1] {DPPF}")
    a(f"v_add_f32_dpp v8, v8, v8 row_half_mirror {DPPF}")
    a("v_cvt_pk_bf16_f32 v8, v8, v8")
    a("v_ashrrev_i32 v9, 31, v8")
    a("v_or_b32 v9, 0x80008000, v9")
    a("v_xor_b32 v8, v8, v9")
    a(f"v_mov_b32_dpp v9, v8 row_ror:8 {DPPF}")
    km = {32: 0x00010001, 64: 0x00030003, 128: 0x000f000f}[KS]
    a(f"s_mov_b32 exec_lo, {km:#x}")
    a(f"s_mov_b32 exec_hi, {km:#x}")
    a("v_bfi_b32 v12, s11, v8, v9")
    a(f"global_store_dwordx2 v15, v[12:13], {sr(P_WS,2)} {PUBF}")
    a("s_mov_b64 exec, -1")
    a(f"ds_write_b32 v1, v14 offset:{F_NONCE}")
    a.stamp(2)
    if RDIR == 2:
        for i in range(9):
            a(f"ds_write_b128 v7, {vr(X+4*i,4)} offset:{1024*i}")
    if RDIR:
        a("s_waitcnt vmcnt(1)")
        a(f"ds_write_b32 v1, v14 offset:{F_X}")
    a(f"s_cmp_ge_u32 s5, {NJH}")
    a("s_cbranch_scc1 C_IO")
    a(f"s_cmp_lt_u32 s5, {NJF}")
    a("s_cbranch_scc1 SELECT")
    a.end()


def gate(a):
    a.lab("GATE")
    if E("GTP"):
        a(f"s_setprio {E('GTP')}")
    X, W, WL = 16, 34, 44
    a("s_lshl_b32 s8, s12, 9")
    a(f"s_add_u32 s8, s8, {XB}")
    a("v_lshl_add_u32 v5, v2, 2, s8")
    a("v_and_b32 v6, 31, v2")
    a("v_lshlrev_b32 v6, 2, v6")
    a(f"v_add_u32 v6, {GW}, v6")
    a("s_lshl_b32 s8, s2, 1")
    a("s_add_u32 s8, s8, s12")
    a("v_mov_b32 v8, 0")
    a("v_mov_b32 v9, 0")
    a("v_mov_b32 v10, 0x3f803f80")
    a("s_lshl_b32 s8, s8, 5")
    a(f"s_add_u32 s8, s8, {WS_G}")
    a("v_lshrrev_b32 v7, 5, v2")
    a("v_lshl_add_u32 v7, v7, 3, s8")
    a("v_and_b32 v11, 16, v2")
    a("v_add_u32 v7, v7, v11")
    a.b0()
    if E("GATED"):
        a(f"s_sleep {E('GATED')}")
    a.spin(F_X, 0, 13, op="lg", sleep=E("GSL", 1))
    a.auto(True)
    for i in range(5):
        a(f"ds_read2_b32 {vr(W+2*i,2)}, v6 offset0:{64*(i&3)} offset1:{64*(i&3)+32}" if i < 4 else f"ds_read_b32 v{W+8}, v6 offset:1024")
    for i in range(9):
        a(f"ds_read2st64_b32 {vr(X+2*i,2)}, v5 offset0:{4*i} offset1:{4*i+1}")
    for i in range(9):
        a(f"v_and_b32 v{WL+i}, 0xffff, v{W+i}")
        a(f"v_and_b32 v{W+i}, 0xffff0000, v{W+i}")
    for i in range(10):
        t = 56 + 4 * (i & 1)
        u = 56 + 4 * ((i - 1) & 1)
        for j in range(2):
            if i < 9:
                a(f"v_dot2_f32_bf16 v{t+2*j}, v{X+2*i+j}, v{WL+i}, 0")
                a(f"v_dot2_f32_bf16 v{t+2*j+1}, v{X+2*i+j}, v{W+i}, 0")
        if i:
            for j in range(2):
                a(f"v_cvt_pk_bf16_f32 v{u+2*j}, v{u+2*j}, v{u+2*j+1}")
            for j in range(2):
                a(f"v_dot2c_f32_bf16 v{8+j}, v{u+2*j}, v10")
    a.auto(False)
    a.signal(F_GD, 11)
    a("v_permlane16_swap_b32 v8, v9")
    a("v_add_f32 v8, v8, v9")
    for r in (8, 4, 2, 1):
        a(f"v_add_f32_dpp v8, v8, v8 row_ror:{r} {DPPF}")
    rb(a, 8)
    sigmoid_f32(a, 8, 8, 9)
    rb(a, 8)
    a("v_sub_f32 v9, 1.0, v8")
    a("v_cvt_pk_bf16_f32 v12, v8, v9")
    a("s_mov_b32 exec_lo, 0x00010001")
    a("s_mov_b32 exec_hi, 0x00010001")
    a(f"global_store_dwordx2 v7, v[12:13], {sr(P_WS,2)} sc1")
    a("s_mov_b64 exec, -1")
    a.stamp(1)
    a(f"s_cmp_lt_u32 s5, {NJF}")
    a("s_cbranch_scc1 F_COMP2")
    a(f"s_cmp_ge_u32 s5, {NJH}")
    a("s_cbranch_scc1 C_IO")
    if GPD:
        a("s_lshl_b32 s8, s3, 8")
        a("s_add_u32 s8, s8, s5")
        a(f"s_cmp_lg_u32 s8, {NJF+1}")
        a("s_cbranch_scc1 G_END")
        a("v_lshlrev_b32 v5, 8, v2")
        a(f"v_add_u32 v5, {WS_G}, v5")
        a("s_waitcnt vmcnt(0)")
        a(f"s_sleep {GPD}")
        a(f"global_load_dword v6, v5, {sr(P_WS,2)} sc1")
        a(f"global_load_dword v6, v5, {sr(P_WS,2)} offset:128 sc1")
        a.lab("G_END")
    a.end()


def stripe_pf(a):
    a("s_and_b32 s8, s13, 15" if PF2AT >= 0 else "s_mov_b32 s8, s13")
    a("s_mul_i32 s8, s8, 73728")
    a("s_lshl_b32 s9, s4, 7")
    a("s_add_u32 s8, s8, s9")
    a("v_mul_u32_u24 v9, 1152, v2")
    a("v_add_u32 v9, s8, v9")
    a("s_add_u32 s8, s13, 18")
    a("s_min_u32 s8, s8, 31")
    a("s_sub_u32 s8, s8, s13")
    a("s_mul_i32 s8, s8, 73728")
    a("v_add_u32 v8, s8, v9" if PF2AT < 0 else f"v_add_u32 v8, {16*73728}, v9")
    return [f"global_load_dword v10, v9, {sr(P_U,2)}", f"global_load_dword v11, v9, {sr(P_U,2)} offset:128",
            f"global_load_dword v10, v8, {sr(P_U,2)}", f"global_load_dword v11, v8, {sr(P_U,2)} offset:128"]


def prefetch(a, n, hold):
    a("v_mul_u32_u24 v5, 57, v2")
    a("v_lshrrev_b32 v5, 9, v5")
    a("v_mul_u32_u24 v6, 9, v5")
    a("v_sub_u32 v6, v2, v6")
    a("s_waitcnt lgkmcnt(0)")
    a("s_cmp_eq_u32 s12, 1")
    a(f"s_cselect_b32 s52, s{P_WU}, s{P_WG}")
    a(f"s_cselect_b32 s53, s{P_WU+1}, s{P_WG+1}")
    a("s_mov_b32 s54, 5308416")
    a("s_mov_b32 s55, 0x20000")
    a("v_mul_u32_u24 v5, 9216, v5")
    a("v_lshl_add_u32 v5, v6, 7, v5")
    a("s_mul_i32 s8, s4, 1152")
    if C3:
        a(f"s_sub_u32 s14, s13, {HPS}")
        a("s_lshr_b32 s9, s52, 7")
        a("s_add_u32 s9, s9, s4")
        a("s_sub_u32 s9, 3, s9")
        a("s_and_b32 s9, s9, 7")
        a("s_lshl_b32 s15, s9, 7")
        a("s_add_u32 s15, s15, s8")
        a(f"s_mul_i32 s14, s14, {9216*C3}")
        a("s_add_u32 s15, s15, s14")
        a(f"s_add_u32 s15, s15, {9216*(7*HPS - C3*PSTEP)}")
        a("s_cmp_eq_u32 s9, 0")
        a("s_cselect_b32 s9, 1024, 0")
        a("v_and_b32 v7, 31, v2")
        a(f"v_min_u32 v7, {C3-1}, v7")
        a("v_mul_u32_u24 v7, 9216, v7")
        a("v_lshrrev_b32 v9, 5, v2")
        a("v_mul_u32_u24 v9, s9, v9")
        a("v_add_u32 v7, v7, v9")
    a("s_mul_i32 s13, s13, 64512")
    a("s_add_u32 s13, s13, s8")
    a.b0(13)
    if hold:
        a.spin(F_NONCE, 0, 13, op="lg", sleep=1)
    if C3:
        a("buffer_load_dword v8, v7, s[52:55], s15 offen")
    for k in range(n):
        if k >= PFW or (C3 and E("C3W", 1)):
            a(f"s_waitcnt vmcnt({PFW-1})")
        a("buffer_load_dword v8, v5, s[52:55], s13 offen")
        a(f"s_add_u32 s13, s13, {64512*PSTEP}")
    if E("HD", 0):
        a(f"s_sub_u32 s8, s5, {NJF}")
        a(f"s_mul_i32 s8, s8, {HPW}")
        a("s_add_u32 s8, s8, s3")
        a("s_sub_u32 s8, s8, 2")
        n0 = 72 - BL
        a("s_lshl_b32 s8, s8, 6")
        a("s_mul_i32 s9, s4, 663552")
        for k in range(E("HD", 0)):
            a(f"v_add_u32 v9, s8, v2")
            a(f"v_min_u32 v9, {72*n0-1}, v9")
            a(f"v_mul_u32_u24 v10, {(1<<16)//n0+1}, v9")
            a("v_lshrrev_b32 v10, 16, v10")
            a(f"v_mul_u32_u24 v10, {BL}, v10")
            a("v_add_u32 v9, v9, v10")
            a("v_min_u32 v9, 5183, v9")
            a("v_lshl_add_u32 v9, v9, 7, s9")
            a(f"s_waitcnt vmcnt({PFW-1})")
            a(f"global_load_dword v8, v9, {sr(P_WD,2)}")
            a(f"s_add_u32 s8, s8, {64*5*HPW}")


def bulk_gate(a, tv):
    a.b0(tv)
    if HOLD:
        a.spin(F_NONCE, 0, tv, op="lg", sleep=1)


def select(a):
    a.lab("SELECT")
    SX = 52
    srd(a, SX, P_U, 2359296)
    KD, IX, KY = 16, 48, 80
    M1, M2, T1, T2, VO, VK, CH = 8, 9, 10, 11, 12, 6, 5
    a("v_lshlrev_b32 v7, 4, v2")
    a("v_add_u32 v15, 0x1000, v7")
    if KS != 32:
        a("v_lshrrev_b32 v7, 1, v2")
        a(f"v_mul_u32_u24 v7, {KS}, v7")
        a("v_and_b32 v15, 1, v2")
        a("v_lshl_add_u32 v7, v15, 4, v7")
        for i in range(8):
            a(f"v_add_u32 v{120+i}, {WS_KEY2+32*KS*i}, v7")

    def polls():
        if KS != 32:
            for i in range(8):
                a(f"global_load_dwordx4 {vr(KD+4*i,4)}, v{120+i}, {sr(P_WS,2)} {POLLF}")
            return
        for i in range(8):
            a(f"global_load_dwordx4 {vr(KD+4*i,4)}, v{7 if i < 4 else 15}, {sr(P_WS,2)} offset:{1024*(i&3)} {POLLF}")
    assert WS_KEY == 0
    a("v_lshlrev_b32 v8, 2, v2")
    a("v_sub_u32 v8, 2047, v8")
    for i in range(8):
        for e in range(4):
            a(f"v_subrev_u32 v{IX+4*i+e}, {256*i+e}, v8")
    a("v_lshrrev_b32 v9, 3, v2")
    a("v_and_b32 v9, 6, v9")
    a("v_xor_b32 v9, v9, v2")
    a("v_and_b32 v9, 7, v9")
    a(f"v_lshlrev_b32 v{CH}, 4, v9")
    a(f"v_mov_b32 v{VO}, 0")
    a(f"v_mov_b32 v{VK}, 0")
    a("s_mov_b32 s11, 0xffff0000")
    if E("DRY", 0):
        a("s_mov_b32 s15, 1")
        a("s_branch SEL_GOT")
        a.lab("SEL_BACK")
    a("s_mov_b32 s15, 0")
    a.spin(F_GD, 2, 13)
    a("s_mov_b32 s9, 0")
    a("s_waitcnt vmcnt(0)")
    if SELD:
        a(f"s_sleep {SELD}")
    a.stamp(8)
    a.lab("SEL_POLL")
    polls()
    for i in range(8):
        a(f"s_waitcnt vmcnt({7-i})")
        if i == 0:
            a(f"v_xor_b32 v13, v{KD+1}, v14")
        else:
            a(f"v_bitop3_b32 v13, v13, v{KD+4*i+1}, v14 bitop3:0xf6")
        a(f"v_bitop3_b32 v13, v13, v{KD+4*i+3}, v14 bitop3:0xf6")
    a("v_cmp_ne_u32 vcc, 0, v13")
    a("s_add_u32 s9, s9, 1")
    a("s_cmp_eq_u64 vcc, 0")
    a("s_cbranch_scc1 SEL_GOT")
    a(f"s_cmp_lt_u32 s9, {SPIN}")
    a("s_cbranch_scc1 SEL_POLL")
    a.lab("SEL_GOT")
    if STAMP:
        a("s_mov_b32 s94, s9")
    a.stamp(6)
    for i in range(8):
        for h in range(2):
            a(f"v_lshl_or_b32 v{KY+4*i+2*h}, v{KD+4*i+2*h}, 16, v{IX+4*i+2*h}")
            a(f"v_and_or_b32 v{KY+4*i+2*h+1}, v{KD+4*i+2*h}, s11, v{IX+4*i+2*h+1}")
        ks = [KY + 4 * i + e for e in range(4)]
        if i == 0:
            a(f"v_min_u32 v{M2}, v{ks[0]}, v{ks[1]}")
            a(f"v_max_u32 v{M1}, v{ks[0]}, v{ks[1]}")
            ks = ks[2:]
        for k in ks:
            a(f"v_med3_u32 v{M2}, v{M1}, v{M2}, v{k}")
            a(f"v_max_u32 v{M1}, v{M1}, v{k}")
    a.stamp(3)

    def place(r):
        lo, hi = ((0xff << (8 * r)) & 0xffffffff, (0xff << (8 * r)) >> 32)
        return ["s_and_b32 s13, s12, 0x7ff", "s_sub_u32 s13, 2047, s13", "s_mul_i32 s13, s13, 1152",
                [f"s_mov_b32 exec_lo, {lo:#x}", f"s_mov_b32 exec_hi, {hi:#x}",
                 f"v_add_u32 v{VO}, s13, v{CH}", f"v_mov_b32 v{VK}, s12", "s_mov_b64 exec, -1"]]
    for r in range(8):
        if r == 0:
            a(f"v_mov_b32 v{T1}, v{M1}")
            fill = []
        else:
            a(f"v_subrev_u32 v{T1}, s12, v{M1}")
            a(f"v_subrev_u32 v{T2}, s12, v{M2}")
            a(f"v_max_u32 v{T1}, v{T1}, v{T2}")
            p = place(r - 1)
            fill = [p[0:2], [p[2]], p[3]]
        for st in wave_max_steps(T1):
            for x in (fill.pop(0) if fill else []):
                a(x)
            a(st)
        a(f"v_readlane_b32 s8, v{T1}, 63")
        a("s_add_u32 s12, s12, s8" if r else "s_mov_b32 s12, s8")
    p = place(7)
    for x in p[:3] + p[3]:
        a(x)
    if E("DRY", 0):
        a("s_cmp_lg_u32 s15, 0")
        a("s_cbranch_scc1 SEL_BACK")
    a("s_mov_b32 s14, 0")
    a.lab("SEL_GATHER")
    for b in range(9):
        a(f"s_mov_b32 m0, {XB + 896*b}")
        a(f"buffer_load_dwordx4 v{VO}, {sr(SX,4)}, 0 offen offset:{128*b} lds")
    a.signal(F_D, 13)
    a.stamp(4)
    a("s_cmp_lg_u32 s14, 0")
    a("s_cbranch_scc1 SEL_OK")
    TK = KD
    for k in range(32):
        a(f"v_sub_u32 v{TK+k}, v{KY+k}, v{M2}")

    def tree():
        for j in range(10):
            a(f"v_max3_u32 v{TK+3*j}, v{TK+3*j}, v{TK+3*j+1}, v{TK+3*j+2}")
        a(f"v_max3_u32 v{TK}, v{TK}, v{TK+3}, v{TK+6}")
        a(f"v_max3_u32 v{TK+9}, v{TK+9}, v{TK+12}, v{TK+15}")
        a(f"v_max3_u32 v{TK+18}, v{TK+18}, v{TK+21}, v{TK+24}")
        a(f"v_max3_u32 v{TK+27}, v{TK+27}, v{TK+30}, v{TK+31}")
        a(f"v_max3_u32 v{TK}, v{TK}, v{TK+9}, v{TK+18}")
        a(f"v_max_u32 v{TK}, v{TK}, v{TK+27}")
    tree()
    a(f"v_add_u32 v{TK}, v{TK}, v{M2}")
    a(f"v_cmp_lt_u32 vcc, s12, v{TK}")
    if E("FORCESLOW"):
        a("s_mov_b64 vcc, 1")
    a("s_cmp_eq_u64 vcc, 0")
    a("s_cbranch_scc1 SEL_OK")
    a("s_waitcnt vmcnt(0)")
    a("s_mov_b32 s12, 0")
    a("s_mov_b64 s[56:57], 0xff")
    a.lab("SEL_SLOW")
    for k in range(32):
        a(f"v_subrev_u32 v{TK+k}, s12, v{KY+k}")
    tree()
    for st in wave_max_steps(TK):
        a(st)
    a(f"v_readlane_b32 s8, v{TK}, 63")
    a("s_add_u32 s12, s12, s8")
    for x in place(0)[:3]:
        a(x)
    a("s_mov_b64 exec, s[56:57]")
    a(f"v_add_u32 v{VO}, s13, v{CH}")
    a(f"v_mov_b32 v{VK}, s12")
    a("s_mov_b64 exec, -1")
    a("s_lshl_b64 s[56:57], s[56:57], 8")
    a("s_add_u32 s14, s14, 1")
    a("s_cmp_lt_u32 s14, 8")
    a("s_cbranch_scc1 SEL_SLOW")
    a("s_branch SEL_GATHER")
    a.lab("SEL_OK")
    a("s_cmp_lg_u32 s2, 0")
    a("s_cbranch_scc1 SEL_NOPUB")
    a(f"v_mov_b32 v{VK+1}, v14")
    a(f"v_add_u32 v8, {WS_SEL}, v2")
    a("s_mov_b32 exec_lo, 0x01010101")
    a("s_mov_b32 exec_hi, 0x01010101")
    a(f"global_store_dwordx2 v8, {vr(VK,2)}, {sr(P_WS,2)} sc1")
    a("s_mov_b64 exec, 1")
    a(f"global_store_dword v8, v14, {sr(P_WS,2)} offset:{WS_BASE-WS_SEL} sc1")
    a("s_mov_b64 exec, -1")
    a("s_waitcnt vmcnt(2)")
    a("s_branch SEL_END")
    a.lab("SEL_NOPUB")
    a("s_waitcnt vmcnt(0)")
    a.lab("SEL_END")
    a("v_mov_b32 v8, 3")
    a(f"ds_write_b32 v1, v8 offset:{F_XR}")
    a.stamp(5)
    a.end()


def ffn_loader(a):
    a.lab("F_LOAD")
    a("s_setprio 3")
    SG, SU, SD = 52, 56, 60
    a("s_sub_u32 s12, s3, 9")
    a("v_lshrrev_b32 v5, 3, v2")
    a("v_bfe_u32 v6, v2, 4, 1")
    a("v_xor_b32 v6, v6, v2")
    a("v_and_b32 v6, 7, v6")
    a("s_movk_i32 s8, 9216")
    a("v_mul_lo_u32 v7, v5, s8")
    a("v_lshl_add_u32 v8, v6, 4, v7")
    a("v_xor_b32 v9, 32, v8")
    a("v_xor_b32 v10, 64, v8")
    a("v_xor_b32 v11, 96, v8")
    a("v_bfe_u32 v6, v2, 4, 1")
    a("v_lshlrev_b32 v6, 1, v6")
    a("v_xor_b32 v6, v6, v2")
    a("v_and_b32 v6, 7, v6")
    a("v_mul_u32_u24 v7, 1152, v5")
    a("v_lshl_add_u32 v12, v6, 4, v7")
    a("v_xor_b32 v13, 64, v12")
    a("s_mul_i32 s13, s12, 294912")
    a("s_lshl_b32 s8, s7, 7")
    a("s_add_u32 s13, s13, s8")
    a("s_lshl_b32 s15, s12, 13")
    a(f"s_add_u32 s15, s15, {WA}")
    a("s_mul_i32 s14, s12, 24576")
    a(f"s_add_u32 s14, s14, {WB}")
    a("s_mul_i32 s11, s7, 73728")
    a("s_mul_i32 s8, s12, 384")
    a("s_add_u32 s11, s11, s8")
    a("s_waitcnt lgkmcnt(0)")
    srd(a, SG, P_WG, 5308416)
    srd(a, SU, P_WU, 5308416)
    srd(a, SD, P_WD, 5308416)
    bulk_gate(a, 14)
    n = 0
    sig = 0

    def pre():
        nonlocal sig
        if n == E("W0", 99):
            a.spin(F_NONCE, 0, 14, op="lg", sleep=1)
        if n >= WIN_F:
            a(f"s_waitcnt vmcnt({WIN_F-1})")
        if sig < 6 and n - WIN_F + 1 >= 8 * (sig + 1):
            a.signal(F_L + 4 * sig, 14)
            if sig in (0, 2, 5):
                a.stamp(1 + sig // 2)
            sig += 1
    for c in range(6):
        if c >= 3:
            a.spin(F_AC + 4 * (c - 3), 4, 14)
        for R in range(4):
            for mu in range(2):
                pre()
                a(f"s_add_u32 m0, s15, {(c%3)*24576 + R*2048 + mu*1024}")
                if not NOW:
                    a(f"buffer_load_dwordx4 v{8+2*mu+(R&1)}, {sr(SU if mu else SG,4)}, s13 offen {WNT} lds")
                n += 1
            a(f"s_add_u32 s13, s13, {73728 if R < 3 else 73728*9}")
    a.signal(F_D, 14)
    a.stamp(4)
    while sig < 6:
        a(f"s_waitcnt vmcnt({48 - 8*(sig+1)})")
        a.signal(F_L + 4 * sig, 14)
        sig += 1
    a.stamp(3)
    a("s_cmp_eq_u32 s3, 9")
    a("s_cbranch_scc1 F_COMP2")
    a.end()


def ffn_comp(a):
    a.lab("F_COMP")
    a.b0()
    a.lab("F_COMP2")
    a("s_and_b32 s12, s3, 3")
    a("v_lshrrev_b32 v5, 2, v3")
    a("v_bfe_u32 v7, v3, 3, 1")
    a("v_and_b32 v13, 1, v4")
    a("v_lshl_or_b32 v14, v13, 1, v7")
    a("v_and_b32 v15, 7, v3")
    a(f"v_mul_u32_u24 v16, {HS}, v15")
    a(f"v_add_u32 v16, {HB}, v16")
    a("s_mov_b32 s56, 0xff00ff00")
    a("s_mov_b32 s57, 0xff00ff00")
    a("s_lshr_b32 s8, s3, 2")
    a("s_cmp_lg_u32 s8, 1")
    a("s_cbranch_scc1 F_DOWN")
    WF, AG = 24, 8
    a("v_bfe_u32 v6, v3, 1, 1")
    a("v_lshl_or_b32 v8, v6, 2, v14")
    a("v_xor_b32 v8, s12, v8")
    a("v_lshlrev_b32 v8, 4, v8")
    a("v_lshl_add_u32 v8, v5, 7, v8")
    a("v_lshl_add_u32 v8, v6, 10, v8")
    a("v_lshl_add_u32 v8, v4, 11, v8")
    a("v_and_b32 v9, 1, v3")
    a("v_lshl_add_u32 v8, v9, 3, v8")
    a("v_xor_b32 v9, 64, v8")
    a(f"v_add_u32 v10, {WA+49152}, v8")
    a(f"v_add_u32 v11, {WA+49152}, v9")
    a("v_lshlrev_b32 v6, 2, v13")
    a("v_lshrrev_b32 v5, 1, v4")
    a("v_add_u32 v6, v6, v5")
    a("v_lshl_add_u32 v6, v7, 5, v6")
    a("s_lshl_b32 s8, s12, 3")
    a("v_add_lshl_u32 v6, v6, s8, 1")
    a("v_add_u32 v5, v6, v16")
    a("v_and_b32 v6, 6, v3")
    a("v_xor_b32 v6, v6, v4")
    a("v_lshlrev_b32 v6, 4, v6")
    a("v_lshl_add_u32 v6, v15, 7, v6")
    a(f"v_add_u32 v6, {XB}, v6")
    a("v_xor_b32 v7, 64, v6")
    for c in range(6):
        a.spin(F_L + 4 * c, 3, 12, sleep=E("CSL", 1))
        if c in (2, 5):
            a.stamp(2 + c // 3)
        for s in range(3):
            for t in range(2):
                base, off = (8 + t, WA + (c % 3) * 24576 + s * 8192) if c % 3 < 2 else (10 + t, s * 8192)
                r = WF + 8 * (3 * c + s) + 4 * t
                a(f"ds_read_b64_tr_b16 {vr(r,2)}, v{base} offset:{off}")
                a(f"ds_read_b64_tr_b16 {vr(r+2,2)}, v{base} offset:{off+512}")
        if c < 3:
            a("s_waitcnt lgkmcnt(0)")
            a.signal(F_AC + 4 * c, 12)
    a("s_setprio 3")
    a.spin(F_XR, 1, 12)
    a.stamp(4)
    a.auto(True)
    xs = lambda s: 16 + 4 * s
    def xrd(s):
        a(f"ds_read_b128 {vr(xs(s),4)}, v{7 if s&1 else 6} offset:{1024*(s>>1)}")
    xrd(0); xrd(1)
    nx = 2
    for s in range(18):
        for t in range(2):
            a(f"v_mfma_f32_16x16x32_bf16 {vr(AG+4*t,4)}, {vr(WF+8*s+4*t,4)}, {vr(xs(s),4)}, {vr(AG+4*t,4) if s else 0}")
            if nx < 18 and xs(nx) + 4 <= WF + 8 * s + 4 * t + 4:
                xrd(nx); nx += 1
    a.auto(False)
    a.stamp(8)
    for r in range(4):
        a(f"v_cndmask_b32 v{AG+r}, v{AG+r}, v{AG+4+r}, s[56:57]")
    a(f"v_permlane32_swap_b32 v{AG}, v{AG+1}")
    a(f"v_permlane32_swap_b32 v{AG+2}, v{AG+3}")
    for op in ("v_cvt_pk_bf16_f32 v{u}, v{g}, v{u}", "v_lshlrev_b32 v{g}, 16, v{u}", "v_mul_f32 v{t}, 0xbfb8aa3b, v{g}", "v_exp_f32 v{t}, v{t}",
               "v_and_b32 v{u}, 0xffff0000, v{u}", "v_add_f32 v{t}, 1.0, v{t}", "v_rcp_f32 v{t}, v{t}", "v_mul_f32 v{g}, v{g}, v{t}",
               "v_cvt_pk_bf16_f32 v{g}, v{g}, v{g}", "v_and_b32 v{g}, 0xffff0000, v{g}", "v_mul_f32 v{g}, v{g}, v{u}"):
        for p in range(2):
            a(op.format(g=AG + 2 * p, u=AG + 2 * p + 1, t=AG + 4 + p))
    a(f"v_cvt_pk_bf16_f32 v{AG}, v{AG}, v{AG+2}")
    a(f"ds_write_b16 v5, v{AG}")
    a(f"ds_write_b16_d16_hi v5, v{AG} offset:4")
    a.signal(F_HR, 12)
    a.stamp(5)
    a.end()
    a.lab("F_DOWN")
    RW, DF, AC, HF = 24, 56, 120, 152
    a("v_lshl_add_u32 v10, v4, 4, v16")
    a("v_mul_u32_u24 v8, 9216, v4")
    a("s_mul_i32 s13, s7, 73728")
    for j in range(4):
        a(f"s_mov_b32 s{60+j}, {0x07060500+j:#x}")
    a("s_mov_b32 s64, 0x05040100")
    a("s_mov_b32 s65, 0x07060302")
    a("s_lshl_b32 s14, s7, 7")
    a(f"s_add_u32 s14, s14, {WS_MB}")
    a("v_lshl_add_u32 v11, v15, 4, s14")
    a("s_waitcnt lgkmcnt(0)")
    srd(a, 52, P_WS, WS_SIZE)
    srd(a, 68, P_WD, 5308416)
    a("s_cmp_eq_u32 s3, 9")
    a("s_cbranch_scc1 F_DN2")

    def down(nd):
        nf = 2 * nd
        raw = lambda q, e: (RW if q == 0 else 88) + nd * e
        frg = lambda q, j: (DF if q == 0 else RW) + 4 * j
        for q in range(2):
            for e in range(8):
                if nd == 4 and E("DE", 4) and 8 * q + e == E("DE", 4):
                    a.spin(F_D, 4, 12, sleep=1)
                if not NOW:
                    a(f"buffer_load_dword{'x4' if nd == 4 else 'x2'} {vr(raw(q,e),nd)}, v8, s[68:71], s13 offen offset:{1152*(e&3)}")
                if e & 3 == 3:
                    a(f"s_add_u32 s13, s13, {4608 if e == 3 else 36864-4608}")
        def perms(q, p):
            a(f"s_waitcnt vmcnt({14 - 8*q - 2*p})")
            for j in range(nf):
                a(f"v_perm_b32 v{frg(q,j)+p}, v{raw(q,2*p+1)+(j>>1)}, v{raw(q,2*p)+(j>>1)}, s{64+(j&1)}")

        def mms(q):
            for j in range(nf):
                if nd == 4:
                    c = vr(AC + 4 * (j & 3), 4)
                    a(f"v_mfma_f32_16x16x32_bf16 {c}, {vr(frg(q,j),4)}, {vr(HF+8*(j>>2)+4*q,4)}, {c if q or j > 3 else 0}")
                else:
                    a(f"v_mfma_f32_16x16x32_bf16 {vr(AC+4*j,4)}, {vr(frg(q,j),4)}, {vr(HF+4*q,4)}, {vr(AC+4*j,4) if q else 0}")
        for q, p in [(0, 0), (0, 1), (0, 2), (0, 3), (1, 0), (1, 1)]:
            perms(q, p)
        a.spin(F_HR, 4, 12)
        a.stamp(5)
        for q in range(2):
            a(f"ds_read_b128 {vr(HF+4*q,4)}, v10 offset:{64*q}")
        a("s_waitcnt lgkmcnt(0)")
        if nd == 4:
            for r in range(8):
                a(f"v_cndmask_b32 v{HF+8+r}, 0, v{HF+r}, s[56:57]")
                a(f"v_cndmask_b32 v{HF+r}, v{HF+r}, 0, s[56:57]")
        mms(0)
        perms(1, 2)
        perms(1, 3)
        a.stamp(4)
        mms(1)
        O = 88
        for r in range(nd):
            for j in range(4):
                if nd == 4:
                    a(f"v_perm_b32 v{O+4*r+j}, v{AC+4*j+r}, v17, s{60+j}")
                else:
                    a(f"v_cndmask_b32 v{O+4*r+j}, v{AC+4*j+2*r}, v{AC+4*j+2*r+1}, s[56:57]")
            if nd == 2:
                for j in range(4):
                    a(f"v_perm_b32 v{O+4*r+j}, v{O+4*r+j}, v17, s{60+j}")
            a(f"s_mov_b32 s12, {18432*r}")
            a(f"buffer_store_dwordx4 {vr(O+4*r,4)}, v11, s[52:55], s12 offen sc1")
        a.stamp(6)
        a.end()
    a("v_lshl_add_u32 v8, v3, 4, v8")
    a("s_lshl_b32 s8, s3, 8")
    a("s_add_u32 s13, s13, s8")
    a("s_lshl_b32 s8, s3, 5")
    a("v_lshl_add_u32 v6, v4, 3, v7")
    a("v_add_u32 v6, s8, v6")
    a("v_mul_u32_u24 v6, 9216, v6")
    a("v_add_u32 v11, v6, v11")
    a.spin(F_X, 0, 17, op="lg", sleep=2)
    a.spin(F_D, 3 if E("DE", 4) else 4, 12, sleep=1)
    a("s_setprio 2")
    down(4)
    a.lab("F_DN2")
    a("v_lshl_add_u32 v8, v3, 3, v8")
    a("s_add_u32 s13, s13, 1024")
    a("v_lshl_add_u32 v6, v4, 2, v7")
    a("v_add_u32 v6, 128, v6")
    a("v_mul_u32_u24 v6, 9216, v6")
    a("v_add_u32 v11, v6, v11")
    a.spin(F_X, 0, 17, op="lg")
    down(2)


def relay(a):
    a.lab("RELAY")
    a(f"s_sub_u32 s12, s5, {NJF}")
    a("s_lshl_b32 s12, s12, 3")
    a("s_add_u32 s12, s12, s4")
    a("s_cmp_ge_u32 s12, 32")
    a("s_cbranch_scc1 RL_END")
    a("s_cmp_gt_u32 s3, 8")
    a("s_cselect_b32 s13, 3, 2")
    a("s_sub_u32 s13, s3, s13")
    a("s_lshl_b32 s8, s13, 18")
    a("s_lshl_b32 s9, s12, 9")
    a("s_add_u32 s8, s8, s9")
    a(f"s_add_u32 s8, s8, {WS_Y}")
    a("v_lshrrev_b32 v5, 5, v2")
    a("v_and_b32 v6, 31, v2")
    a("v_lshlrev_b32 v7, 14, v5")
    a("v_lshl_add_u32 v7, v6, 4, v7")
    a("v_add_u32 v16, s8, v7")
    for k in range(1, 8):
        a(f"v_add_u32 v{16+k}, {32768*k}, v16")
    RS = 144
    a(f"s_mul_i32 s14, s13, {32*RS}")
    a("s_add_u32 s14, s14, 256")
    a(f"v_mul_u32_u24 v7, {RS}, v6")
    a("v_lshl_add_u32 v7, v5, 3, v7")
    a("v_add_u32 v7, s14, v7")
    a("v_lshrrev_b32 v5, 3, v2")
    a("v_and_b32 v6, 7, v2")
    a(f"v_mul_u32_u24 v8, {RS}, v5")
    a("v_lshl_add_u32 v8, v6, 4, v8")
    a("v_add_u32 v8, s14, v8")
    a("v_mul_u32_u24 v9, 1152, v5")
    a("v_lshl_add_u32 v9, v6, 4, v9")
    a("s_mul_i32 s8, s12, 36864")
    a("s_lshl_b32 s9, s13, 7")
    a("s_add_u32 s8, s8, s9")
    a("v_add_u32 v9, s8, v9")
    a("s_lshl_b32 s8, s12, 5")
    a("s_sub_u32 s8, 2047, s8")
    a("v_sub_u32 v11, s8, v5")
    a("v_lshlrev_b32 v12, 3, v6")
    a(f"v_add_u32 v12, {WS_SEL}, v12")
    a.spin(F_X, 0, 10, op="lg", sleep=4)
    a("s_mov_b32 s9, 0")
    a.lab("RL_S")
    a("s_sleep 8")
    a(f"global_load_dwordx2 v[14:15], v12, {sr(P_WS,2)} sc1")
    a("s_waitcnt vmcnt(0)")
    a("v_cmp_ne_u32 vcc, v15, v10")
    a("s_add_u32 s9, s9, 1")
    a("s_cmp_eq_u64 vcc, 0")
    a("s_cbranch_scc1 RL_SD")
    a(f"s_cmp_lt_u32 s9, {SPIN}")
    a("s_cbranch_scc1 RL_S")
    a.lab("RL_SD")
    a.stamp(2)
    a("v_and_b32 v14, 0x7ff, v14")
    for i in range(4):
        a(f"v_subrev_u32 v13, {8*i}, v11")
        a("v_cmp_eq_u32 vcc, v13, v14")
        a("v_cndmask_b32 v13, 0, -1, vcc")
        a(f"v_or_b32_dpp v13, v13, v13 quad_perm:[1,0,3,2] {DPPF}")
        a(f"v_or_b32_dpp v13, v13, v13 quad_perm:[2,3,0,1] {DPPF}")
        a(f"v_or_b32_dpp v13, v13, v13 row_half_mirror {DPPF}")
        a(f"v_cmp_eq_u32 s[{56+2*i}:{57+2*i}], 0, v13")
    if E("YD", 8):
        a(f"s_sleep {E('YD', 8)}")
    a("s_mov_b32 s9, 0")
    a.lab("RL_P")
    for k in range(8):
        a(f"global_load_dwordx4 {vr(24+4*k,4)}, v{16+k}, {sr(P_WS,2)} sc1")
    for k in range(8):
        a(f"s_waitcnt vmcnt({7-k})")
        a("v_xor_b32 v13, v26, v10" if k == 0 else f"v_bitop3_b32 v13, v13, v{26+4*k}, v10 bitop3:0xf6")
        a(f"ds_write_b64 v7, {vr(24+4*k,2)} offset:{16*k}")
    a("v_cmp_ne_u32 vcc, 0, v13")
    a("s_add_u32 s9, s9, 1")
    a("s_cmp_eq_u64 vcc, 0")
    a("s_cbranch_scc1 RL_PD")
    a("s_waitcnt lgkmcnt(0)")
    a(f"s_cmp_lt_u32 s9, {SPIN}")
    a("s_cbranch_scc1 RL_P")
    a.lab("RL_PD")
    a.stamp(3)
    if STAMP:
        a("s_mov_b32 s94, s9")
        a("s_waitcnt lgkmcnt(0)")
    for i in range(4):
        a(f"ds_read_b128 {vr(56+4*i,4)}, v8 offset:{8*RS*i}")
    for i in range(4):
        a(f"s_waitcnt lgkmcnt({3-i})")
        a(f"s_mov_b64 exec, s[{56+2*i}:{57+2*i}]")
        a(f"s_cbranch_execz RL_N{i}")
        a(f"global_store_dwordx4 v9, {vr(56+4*i,4)}, {sr(P_OUT,2)}")
        a.lab(f"RL_N{i}")
        a("s_mov_b64 exec, -1")
        a("v_add_u32 v9, 9216, v9")
    if STAMP:
        a("s_waitcnt vmcnt(0)")
    a.lab("RL_END")
    a.end()


def helper(a):
    a.lab("HELPER")
    if not HPN:
        a.end()
        return
    a(f"s_cmp_ge_u32 s3, {2+HPW}")
    a("s_cbranch_scc1 " + ("RELAY" if YX else "K_END"))
    a("s_and_b32 s12, s3, 1")
    a("s_sub_u32 s13, s3, 2")
    a("s_lshr_b32 s13, s13, 1")
    a("s_mul_i32 s13, s13, 5")
    a("s_add_u32 s13, s13, s5")
    a(f"s_add_u32 s13, s13, {(HPS-NJF) & 0xffffffff}")
    prefetch(a, HPN, E("HH", 0))
    if STAMP or YX:
        a("s_waitcnt vmcnt(0)")
        a.stamp(1)
    if YX:
        relay(a)
    else:
        a.end()


DSK, EXPN = 166, 167
PA, PB, A16, PC, PD, A32, E2, EF = 104, 108, 112, 116, 120, 124, 128, 152


def cmul(a, d, x, y):
    a(f"v_pk_mul_f32 {vr(d,2)}, {vr(x,2)}, {vr(y,2)} op_sel:[0,0] op_sel_hi:[0,1]")
    a(f"v_pk_fma_f32 {vr(d,2)}, {vr(x,2)}, {vr(y,2)}, {vr(d,2)} op_sel:[1,1,0] op_sel_hi:[1,0,1] neg_lo:[0,1,0]")


def kgen_head(a):
    a.lab("C_KGEN")
    a.fine(6)
    PR = 16
    a("s_and_b32 s12, s3, 3")
    a("s_lshr_b32 s13, s3, 2")
    a("s_lshl_b32 s14, s7, 2")
    a("s_add_u32 s14, s14, s12")
    a("s_lshl_b32 s8, s14, 8")
    a("s_lshl_b32 s9, s13, 7")
    a("s_add_u32 s8, s8, s9")
    a("v_lshl_add_u32 v5, v2, 1, s8")
    for k in range(6):
        a(f"v_mov_b32 v{PR+k}, 0")
    a("s_lshl_b32 s55, s7, 3")
    a("s_setprio 2")
    a(f"s_mul_i32 s15, s3, {KTS}")
    a(f"s_add_u32 s15, s15, {KT}")
    a(f"s_mul_i32 s52, s12, {4*CS}")
    a(f"s_add_u32 s52, s52, {KC}")
    a(f"s_mul_i32 s53, s12, {US}")
    a(f"s_add_u32 s53, s53, {UP}")
    a(f"v_mul_u32_u24 v7, {TS}, v3")
    a("v_lshl_add_u32 v7, v4, 4, v7")
    a("v_add_u32 v7, s15, v7")
    a("s_mov_b32 m0, s15")
    a("s_waitcnt lgkmcnt(0)")
    a.fine(7)
    a(f"s_load_dwordx2 s[58:59], {sr(P_LDT,2)}, s55")
    for k, p in enumerate([P_ARE, P_AIM, P_BRE, P_BIM, P_CRE, P_CIM]):
        a(f"global_load_short_d16_hi v{PR+k}, v5, {sr(p,2)}")
    a(f"s_load_dwordx2 s[68:69], {sr(P_DSK,2)}, s55")
    a.b0()
    a("s_branch C_KBODY")


def kgen(a):
    a.lab("C_KBODY")
    PR = 16
    a.lab("C_SETD")
    a.fine(8)
    a("s_waitcnt lgkmcnt(0)")
    a.auto(True)
    a("s_lshl_b32 s8, s12, 4")
    a("s_lshr_b64 s[58:59], s[58:59], s8")
    a("s_lshl_b32 s8, s58, 16")
    a("v_mov_b32 v44, s8")
    a(f"v_mul_f32 v45, {L2E:#x}, v44")
    a(f"v_mov_b32 v46, {L2E:#x}")
    a("v_fma_f32 v46, v44, v46, -v45")
    a(f"v_mov_b32 v47, {L2E_LO:#x}")
    a("v_fma_f32 v46, v44, v47, v46")
    a("v_exp_f32 v45, v45")
    a(f"v_mul_f32 v46, {LN2:#x}, v46")
    a("v_fma_f32 v45, v45, v46, v45")
    a("v_cvt_pk_bf16_f32 v45, v45, v45")
    DT, DTL, DTR = 36, 37, 38
    a(f"v_and_b32 v{DT}, 0xffff0000, v45")
    a(f"v_mul_f32 v{DTL}, {L2E:#x}, v{DT}")
    a(f"v_mul_f32 v{DTR}, {INV2PI:#x}, v{DT}")
    a("s_waitcnt vmcnt(0)")
    a.stamp(1)
    if STAMP and E("CLK2"):
        a("s_memtime s[90:91]")
    ZR, ZI, WR = 40, 41, 42
    a(f"v_mul_f32 v{ZR}, v{PR}, v{DTL}")
    a(f"v_mul_f32 v{ZI}, v{PR+1}, v{DTR}")
    T0 = 24

    def direct(dst, c):
        if c != 1:
            a(f"v_mul_f32 v{dst}, {fbits(c):#x}, v{ZR}")
            a(f"v_mul_f32 v{dst+1}, {fbits(c):#x}, v{ZI}")
        a(f"v_exp_f32 v{T0}, v{dst if c != 1 else ZR}")
        a(f"v_fract_f32 v{dst+1}, v{dst+1 if c != 1 else ZI}")
        a(f"v_cos_f32 v{dst}, v{dst+1}")
        a(f"v_sin_f32 v{dst+1}, v{dst+1}")
        a(f"v_mul_f32 v{dst}, v{T0}, v{dst}")
        a(f"v_mul_f32 v{dst+1}, v{T0}, v{dst+1}")
    PW, R1 = 46, 44
    pc = lambda c: PW + 2 * (c - 1)
    direct(pc(1), 1)
    a(f"v_mul_f32 v{PR+2}, v{PR+2}, v{DT}")
    a(f"v_mul_f32 v{PR+3}, v{PR+3}, v{DT}")
    cmul(a, WR, PR + 4, PR + 2)
    a(f"v_max_f32 v39, |v{WR}|, |v{WR+1}|")
    side = wave_max_steps(39) + ["v_readlane_b32 s8, v39, 63"]
    OT = [26, 27, 28, 29]
    cnt = [0]

    pend = []

    def flush():
        while pend:
            a(pend.pop(0))

    def emit(row, x):
        o = OT[cnt[0] % 4]
        cnt[0] += 1
        flush()
        a(f"v_cvt_pk_f16_f32 v{o}, v{x}, v{x+1}")
        pend.append(f"ds_write_addtid_b32 v{o} offset:{row*TS}")
    cmul(a, pc(2), pc(1), pc(1))
    cmul(a, pc(4), pc(2), pc(2))
    Q1, QA, QB = 60, 62, 64
    cmul(a, Q1, pc(4), pc(4))
    a(f"v_mov_b32 v30, 0x3c00")
    a(f"v_xor_b32 v{Q1+1}, 0x80000000, v{Q1+1}")
    a("ds_write_addtid_b32 v30")
    emit(1, Q1)
    cur, nxt = Q1, QA
    for b in range(2, 16):
        cmul(a, nxt, cur, Q1)
        if side:
            a(side.pop(0))
        emit(b, nxt)
        cur, nxt = nxt, (QB if nxt == QA else QA)
    a("s_lshr_b32 s8, s8, 23")
    a("s_sub_u32 s8, 258, s8")
    a("s_min_u32 s54, s8, 253")
    a("s_lshl_b32 s8, s54, 23")
    a(f"v_mul_f32 v{WR}, s8, v{WR}")
    a(f"v_mul_f32 v{WR+1}, s8, v{WR+1}")
    QF, PF, KA = 72, 88, 104
    flush()
    for ks in range(4):
        a(f"ds_read_b128 {vr(QF+4*ks,4)}, v7 offset:{64*ks}")
    direct(R1, 128)
    cmul(a, pc(3), pc(2), pc(1)); cmul(a, pc(5), pc(4), pc(1)); cmul(a, pc(6), pc(3), pc(3)); cmul(a, pc(7), pc(6), pc(1))
    CH = [66, 68]
    YC = [60, 62]
    state = {"cur": WR, "k": 0, "y": 0}

    def adv():
        n = CH[state["k"] & 1]
        cmul(a, n, state["cur"], R1)
        state["cur"] = n; state["k"] += 1

    def row(r, c):
        if c == 0:
            emit(r, state["cur"])
        else:
            y = YC[state["y"] & 1]; state["y"] += 1
            cmul(a, y, state["cur"], pc(c))
            emit(r, y)

    def rd():
        flush()
        for ks in range(4):
            a(f"ds_read_b128 {vr(PF+4*ks,4)}, v7 offset:{64*ks}")

    def mm(t, ks):
        a(f"v_mfma_f32_16x16x32_f16 {vr(KA+4*t,4)}, {vr(PF+4*ks,4)}, {vr(QF+4*ks,4)}, {vr(KA+4*t,4) if ks else 0}")
    for h in range(2):
        for c in range(8):
            row(8 * h + c, c)
        adv()
    rd()
    for h in range(2):
        for c in range(4):
            row(4 * h + c, 2 * c)
            if h == 1:
                mm(0, c)
        adv()
    for q in range(4):
        row(8 + 2 * q, 0); row(9 + 2 * q, 4)
        adv()
    rd()
    for q in range(9):
        row(q, 0)
        if q < 8:
            adv()
        if 4 <= q < 8:
            mm(1, q - 4)
    rd()
    a("v_lshl_add_u32 v8, v2, 4, s15")
    for ks in range(4):
        mm(2, ks)
    a.auto(False)
    a.stamp(2)
    if STAMP and E("CLK2"):
        a("s_memtime s[96:97]")
    a("s_lshl_b32 s8, s12, 2")
    a(f"s_add_u32 s8, s8, {F_PAIR}")
    a("v_mov_b32 v9, s8")
    a("s_cmp_eq_u32 s13, 0")
    a("s_cbranch_scc1 C_KA")
    for t in range(3):
        a(f"ds_write_b128 v8, {vr(KA+4*t,4)} offset:{1024*t}")
    a("v_mov_b32 v10, s54")
    a("ds_write_b32 v9, v10")
    a.stamp(3)
    a("s_setprio 0")
    a("v_and_b32 v14, 3, v3")
    a("v_sub_u32 v14, 3, v14")
    a(f"v_mul_u32_u24 v14, {CS}, v14")
    a("v_lshrrev_b32 v13, 2, v3")
    a("v_lshl_add_u32 v13, v4, 1, v13")
    a("v_lshl_add_u32 v14, v13, 3, v14")
    a("v_add3_u32 v5, v14, s52, 8")
    a("v_lshlrev_b32 v14, 1, v3")
    a("v_sub_u32 v14, v4, v14")
    a("v_lshlrev_b32 v14, 4, v14")
    a(f"s_add_u32 s8, s53, {4064-512*7}")
    a("v_add_u32 v6, s8, v14")
    a("v_lshl_add_u32 v14, v3, 2, v4")
    a(f"s_mul_i32 s8, s12, {OS}")
    a(f"s_add_u32 s8, s8, {OP+4088-512*7}")
    a("v_lshlrev_b32 v14, 3, v14")
    a("v_sub_u32 v7, s8, v14")
    a.spin(F_H, 1, 10, prio=E("BSP", 3), sleep=1)
    a.spin(f"v9 offset:{F_K-F_PAIR}", 0, 10, op="lg", sleep=E("BSS", 0))
    a.stamp(4)
    if STAMP and E("CLK"):
        a("s_memtime s[82:83]")
    gphase(a, 0)
    a.lab("C_KA")
    a("s_setprio 1")
    a("v_and_b32 v14, 3, v3")
    a("v_sub_u32 v14, 3, v14")
    a(f"v_mul_u32_u24 v14, {CS}, v14")
    a("v_lshrrev_b32 v13, 2, v3")
    a("v_lshl_add_u32 v13, v4, 1, v13")
    a("v_lshl_add_u32 v14, v13, 3, v14")
    a("v_add3_u32 v5, v14, s52, 8")
    a("v_lshlrev_b32 v14, 1, v3")
    a("v_sub_u32 v14, v4, v14")
    a("v_lshlrev_b32 v14, 4, v14")
    a(f"s_add_u32 s8, s53, {4064-512*7}")
    a("v_add_u32 v6, s8, v14")
    a("v_lshl_add_u32 v14, v3, 2, v4")
    a(f"s_mul_i32 s8, s12, {OS}")
    a(f"s_add_u32 s8, s8, {OP+4088-512*7}")
    a("v_lshlrev_b32 v14, 3, v14")
    a("v_sub_u32 v7, s8, v14")
    a("v_lshrrev_b32 v11, 1, v4")
    a("v_and_b32 v12, 1, v4")
    a("v_lshlrev_b32 v11, 8, v11")
    a("v_lshl_add_u32 v11, v12, 3, v11")
    a("v_lshl_add_u32 v11, v3, 4, v11")
    a("v_add_u32 v11, s15, v11")
    a("v_cmp_gt_u32 vcc, 2, v4")
    a("v_lshlrev_b32 v12, 2, v3")
    a("v_lshlrev_b32 v13, 3, v3")
    a("v_cndmask_b32 v12, v12, v13, vcc")
    a("v_lshl_add_u32 v12, v4, 7, v12")
    a("v_add_u32 v12, s15, v12")
    a("v_mov_b32 v13, 64")
    a("v_cndmask_b32 v13, v13, 4, vcc")
    a("v_add_u32 v13, v13, v12")
    a("v_lshlrev_b32 v14, 1, v3")
    a("v_lshl_add_u32 v14, v4, 7, v14")
    a("v_add_u32 v14, s15, v14")
    a("v_lshlrev_b32 v15, 4, v2")
    a("v_lshlrev_b32 v16, 3, v2")
    a("v_add_u32 v16, 256, v16")
    a("v_min_u32 v15, v15, v16")
    a("v_add_u32 v15, s15, v15")
    EB, E2B = 2048, 3072
    a("v_min_u32 v16, 15, v2")
    a("v_lshl_add_u32 v16, v16, 2, s15")
    a("v_lshrrev_b32 v26, 5, v2")
    a("v_lshlrev_b32 v26, 8, v26")
    a("v_lshl_add_u32 v26, v2, 2, v26")
    a("v_add_u32 v26, s15, v26")
    a("v_lshlrev_b32 v17, 2, v4")
    a("v_sub_u32 v17, v3, v17")
    a("v_lshl_add_u32 v27, v17, 3, s15")
    a(f"v_add_u32 v27, {E2B+104}, v27")
    a("v_lshl_add_u32 v17, v17, 2, s15")
    a(f"v_add_u32 v17, {EB+52}, v17")
    a("v_lshl_add_u32 v19, v2, 4, s52")
    a("s_mov_b32 s56, 0x01000100")
    a("s_mov_b32 s57, 0x03020302")
    a("s_lshl_b32 s8, s12, 4")
    a("s_lshr_b64 s[68:69], s[68:69], s8")
    a("s_lshl_b32 s68, s68, 16")
    a("s_sub_u32 s58, 254, s54")
    a("s_lshl_b32 s58, s58, 23")
    for r in range(12):
        a(f"v_mul_f32 v{KA+r}, s58, v{KA+r}")
    a("s_mov_b64 exec, 1")
    a(f"v_add_f32 v{KA}, s68, v{KA}")
    a("s_mov_b64 exec, -1")
    for r in (3, 7, 10, 11, 14, 15):
        a(f"v_mov_b32 v{72+r}, 0")
    a("v_lshlrev_b32 v28, 4, v2")
    a(f"v_add_u32 v28, {PM}, v28")
    a.spin(F_PM, 2, 18)
    for k, r in ((2, PC), (3, PD), (4, A32)):
        a(f"ds_read_b128 {vr(r,4)}, v28 offset:{1024*k}")
    a.spin("v9", 0, 18, prio=2, op="lg")
    a("s_sub_u32 s60, 254, s8")
    a("s_lshl_b32 s60, s60, 23")
    a.auto(True)
    for t in range(3):
        a(f"ds_read_b128 {vr(PF+4*t,4)}, v8 offset:{4*KTS+1024*t}")
    for t in range(3):
        for p in range(2):
            r = 4 * t + 2 * p
            a(f"v_pk_fma_f32 {vr(KA+r,2)}, {vr(PF+r,2)}, s[60:61], {vr(KA+r,2)} op_sel_hi:[1,0,1]")
            a(f"v_cvt_pk_bf16_f32 v{20+2*t+p}, v{KA+r}, v{KA+r+1}")
        if t == 0:
            a("ds_write_b64 v11, v[20:21]")
        elif t == 1:
            a("ds_write_b32 v12, v22 offset:512")
            a("ds_write_b32 v13, v23 offset:512")
            S = 32
            for p in range(2):
                a(f"ds_read_b64 {vr(S+2*p,2)}, v15 offset:{8*p}")
    a("s_mov_b32 exec_lo, 0")
    a(f"v_alignbit_b32 v{S+3}, v{S+2}, v{S+1}, 16")
    a(f"v_perm_b32 v{S+2}, v{S+1}, v{S+1}, s56")
    a(f"v_alignbit_b32 v{S+1}, v{S+1}, v{S}, 16")
    a(f"v_perm_b32 v{S}, v{S}, v{S}, s56")
    a("s_mov_b32 exec_lo, -1")
    a(f"ds_write_b128 v19, {vr(S,4)} offset:32")
    a(f"v_mov_b32_dpp v{S-2}, v{S+2} wave_shr:1 {DPPF} bound_ctrl:0")
    a(f"v_mov_b32_dpp v{S-1}, v{S+3} wave_shr:1 {DPPF} bound_ctrl:0")
    C1, C2, C3 = 44, 52, 60
    for p in range(4):
        a(f"v_alignbit_b32 v{C1+p}, v{S+p}, v{S+p-1}, 16")
    a(f"ds_write_b128 v19, {vr(C1,4)} offset:{CS+32}")
    for p in range(4):
        a(f"v_mov_b32 v{C2+p}, v{S+p-1}")
    a(f"ds_write_b128 v19, {vr(C2,4)} offset:{2*CS+32}")
    for p in range(4):
        a(f"v_alignbit_b32 v{C3+p}, v{S+p-1}, v{S+p-2}, 16")
    a(f"ds_write_b128 v19, {vr(C3,4)} offset:{3*CS+32}")
    a("v_mov_b32 v10, 1")
    a(f"ds_write_b32 v9, v10 offset:{F_K-F_PAIR}")
    a.stamp(3)
    a(f"s_setprio {E('GPL', 3)}")
    TL = 72
    a(f"v_perm_b32 v{TL+1}, v{S+3}, v{S+3}, s57")
    a(f"v_alignbit_b32 v{TL}, v{S+3}, v{S+2}, 16")
    a(f"v_lshrrev_b32 v{TL+6}, 16, v{S+3}")
    a(f"v_mov_b32 v{TL+4}, v{S+3}")
    for r in (2, 5, 8, 9, 12):
        a(f"v_mov_b32 v{TL+r}, v{TL+1}")
    a(f"v_mov_b32 v{TL+13}, v{TL+6}")
    a("s_mov_b32 exec_lo, 0")
    for r in range(4):
        a(f"ds_write_b16{'_d16_hi' if r&1 else ''} v{12+(r>>1)}, v{22+(r>>1)} offset:{E2B-130+2*(r&1)}")
    a("s_mov_b32 exec_hi, 0x80000000")
    for j in range(4):
        a(f"ds_write_b128 v19, {vr(TL+4*(3-j),4)} offset:{j*CS+48}")
    a("s_mov_b64 exec, 1")
    a(f"ds_write_b16 v14, v24 offset:{E2B+382}")
    a("s_mov_b64 exec, -1")
    a(f"ds_write_b32 v26, v1 offset:{E2B}")
    for r in range(4):
        a(f"ds_write_b16{'_d16_hi' if r&1 else ''} v14, v{24+(r>>1)} offset:{EB+62+32*r}")
    a(f"ds_write_b32 v16, v1 offset:{EB}")
    a("v_readlane_b32 s59, v24, 0")
    a("v_mov_b32 v11, v27")
    a("v_mov_b32 v12, v17")
    a("v_mov_b32 v13, v28")
    a("s_pack_ll_b32_b16 s59, s59, s59")
    a.auto(False)
    a.spin(F_H, 1, 10, sleep=1)
    a.stamp(4)
    gphase(a, 1)


def bias_of(a, d, m):
    a(f"v_lshrrev_b32 v{d}, 7, v{m}")
    a(f"v_subrev_u32 v{d}, 26, v{d}")
    a(f"v_max_i32 v{d}, 0, v{d}")


def gphase(a, isA):
    AC = 16
    SET = [40, 68]
    tb = 2 if isA else 0
    a(f"s_setprio {E('GPL', 3) if isA else E('GP0', 2)}")
    acc = lambda t: vr(AC + 4 * (t - tb), 4)
    afr = lambda aa, rho: SET[rho & 1] + 4 * aa
    bfr = lambda b, rho: SET[rho & 1] + 8 + 4 * (b % 5)

    def rdA(aa, rho, dst=None):
        d = afr(aa, rho) if dst is None else dst
        return [f"ds_read_b64 {vr(d,2)}, v5 offset:{64*rho+512*aa}", f"ds_read_b64 {vr(d+2,2)}, v5 offset:{64*rho+512*aa+8}"]

    def rdB(b, rho, dst=None, extra=0):
        return [f"ds_read_b128 {vr(bfr(b, rho) if dst is None else dst,4)}, v6 offset:{512*(7-b)+64*rho+extra}"]
    started = set()

    def mf(t, A, B):
        c = acc(t) if t in started else "0"
        started.add(t)
        return f"v_mfma_f32_16x16x32_bf16 {acc(t)}, {vr(A,4)}, {vr(B,4)}, {c}"

    def reads(pairs, rho):
        r, sa, sb = [], set(), set()
        for t, aa in pairs:
            if aa not in sa:
                sa.add(aa); r += rdA(aa, rho)
            if t - aa not in sb:
                sb.add(t - aa); r += rdB(t - aa, rho)
        return r

    def sweep(pairs, plan=None, hook=None):
        plan = plan or [(pairs, rho) for rho in range(8)]
        for x in reads(*plan[0]):
            a(x)
        for i, (pairs, rho) in enumerate(plan):
            nxt = reads(*plan[i + 1]) if i + 1 < len(plan) else []
            if hook:
                nxt = nxt + hook(i)
            n, done = len(nxt), 0
            for k, (t, aa) in enumerate(pairs):
                if i and k in (0, len(pairs) // 2):
                    rest = pairs[k:len(pairs) // 2] if k == 0 else pairs[k:]
                    a("@need " + ", ".join([vr(afr(a2, rho), 4) for t2, a2 in rest] + [vr(bfr(t2 - a2, rho), 4) for t2, a2 in rest]))
                a(mf(t, afr(aa, rho), bfr(t - aa, rho)))
                upto = -(-n * (k + 1) // len(pairs))
                while done < upto:
                    a(nxt[done]); done += 1

    def yout(tiles, fl):
        for k, t in enumerate(tiles):
            R = AC + 4 * (t - tb)
            a(f"v_cvt_pk_bf16_f32 v{96+2*k}, v{R+3}, v{R+2}")
            a(f"v_cvt_pk_bf16_f32 v{97+2*k}, v{R+1}, v{R}")
            a(f"ds_write_b64 v7, {vr(96+2*k,2)} offset:{512*(7-t)}")
        a.auto(False)
        a.signal(F_O + 4 * fl, 12)
    a.auto(True)
    if isA:
        U = lambda b: 40 + 8 * (b & 1)
        Z = lambda b: 56 + 24 * (b & 1)
        M = "v_mfma_f32_16x16x32_bf16"

        def urd(b):
            return rdB(b, 0, U(b)) + rdB(b, 0, U(b) + 4, 16)

        PL = [(0, PC), (0, PD), (1, PC), (1, PD), (0, PA), (1, PB)]
        pool2 = lambda b: [f"{M} {vr(Z(b)+4*k,4)}, {vr(U(b)+4*h,4)}, {vr(P,4)}, 0" for k, (h, P) in enumerate(PL) if k < 4] + [mf(b + 2, A16, U(b))]
        pool3 = lambda b: [f"{M} {vr(Z(b)+4*k,4)}, {vr(U(b)+4*h,4)}, {vr(P,4)}, 0" for k, (h, P) in enumerate(PL) if k >= 4] + [mf(b + 4, A32, U(b))]
        cvt = lambda b, fs: [f"v_cvt_pk_bf16_f32 v{Z(b)+8*f+r}, v{Z(b)+8*f+r}, v{Z(b)+8*f+4+r}" for f in fs for r in range(4)]
        use2 = lambda b, lo, hi: [mf(b + 2 + D, Z(b) + 8 * f, E2 + 8 * D + 4 * f) for D in range(3) if lo <= b + 2 + D < hi for f in range(2)]
        use3 = lambda b, lo=4, hi=8: [mf(t, Z(b) + 16, EF + 4 * (t - b - 4)) for t in range(max(b + 4, lo), hi)]

        def emit(main, fill=[], per=2, skip=0):
            for x in interleave(main, fill, per=per, skip=skip):
                a(x)
        e2rd = lambda D: [x for f in range(2) for x in (f"ds_read2_b32 {vr(E2+8*D+4*f,2)}, v11 offset0:{32*D+6+f} offset1:{32*D+4+f}",
                                                        f"ds_read2_b32 {vr(E2+8*D+4*f+2,2)}, v11 offset0:{32*D+2+f} offset1:{32*D+f}")]
        efrd = [x for D in range(4) for x in (f"ds_read2_b32 {vr(EF+4*D,2)}, v12 offset0:{16*D+3} offset1:{16*D+2}",
                                              f"ds_read2_b32 {vr(EF+4*D+2,2)}, v12 offset0:{16*D+1} offset1:{16*D}")]
        emit(urd(0) + urd(1) + rdA(2, 0, A16) + e2rd(0))
        for p in range(4):
            a(f"v_and_b32 v{A32+p}, s59, v{A32+p}")
        emit(pool2(0), e2rd(1) + [f"ds_read_b128 {vr(PA,4)}, v13", f"ds_read_b128 {vr(PB,4)}, v13 offset:1024"], per=1)
        emit(pool2(1), cvt(0, (0, 1)))
        emit(use2(0, 2, 4), cvt(1, (0, 1)))
        emit(use2(1, 2, 4) + pool3(0), e2rd(2) + efrd, per=2)
        for t in (2, 3):
            a(f"ds_write_b128 v8, {acc(t)} offset:{1024*(t-2)}")
        a("v_mov_b32 v10, 1")
        a(f"ds_write_b32 v9, v10 offset:{F_I-F_PAIR}")
        a(f"s_setprio {E('GP1', 1)}")
        emit(pool3(1) + use2(0, 4, 8), urd(2) + cvt(0, (2,)), per=2)
        emit(use2(1, 4, 8) + use3(0, 4, 6), urd(3) + cvt(1, (2,)), per=1)
        emit(pool2(2) + use3(1, 4, 6))
        emit(pool2(3), cvt(2, (0, 1)))
        emit(use2(2, 4, 6), cvt(3, (0, 1)))
        emit(use2(3, 4, 6) + use3(0, 6, 8) + use3(1, 6, 8))
        for t in (4, 5):
            a(f"ds_write_b128 v8, {acc(t)} offset:{1024*(t-2)}")
        a("v_mov_b32 v10, 2")
        a(f"ds_write_b32 v9, v10 offset:{F_I-F_PAIR}")
        a(f"s_setprio {E('GP2', 1)}")
        emit(pool3(2) + pool3(3) + use2(2, 6, 8))
        emit(use2(3, 6, 8), cvt(2, (2,)) + cvt(3, (2,)))
        emit(use3(2) + use3(3))
        a.auto(False)
        a.stamp(5)
        a.spin(F_H + 4, 1, 10, prio=E('GP2', 1), sleep=1)
        if STAMP and E("CLK"):
            a("s_memtime s[82:83]")
            a.stamp(4)
        a.auto(True)
        U = lambda b: 152 + 8 * (b & 1)
        Z = lambda b: 96
        P = lambda ts: [(t, aa) for aa in range(2) for t in ts]
        plan = [(P((7, 6)), r) for r in range(8)]

        def hook(i):
            if i < 6:
                return [lambda: urd(4) + urd(5), lambda: pool2(4), lambda: cvt(4, (0, 1)), lambda: use2(4, 4, 8) + pool2(5),
                        lambda: cvt(5, (0, 1)), lambda: use2(5, 4, 8)][i]()
            if i != 8:
                return []
            o = []
            for k, t in enumerate((5, 4)):
                R = AC + 4 * (t - tb)
                o += [f"v_cvt_pk_bf16_f32 v{96+2*k}, v{R+3}, v{R+2}", f"v_cvt_pk_bf16_f32 v{97+2*k}, v{R+1}, v{R}",
                      f"ds_write_b64 v7, {vr(96+2*k,2)} offset:{512*(7-t)}"]
            return o + [f"ds_add_u32 v13, v12"]
        sweep(None, plan, hook)
        a.stamp(6)
        if STAMP and E("CLK"):
            a("s_memtime s[84:85]")
        yout((7, 6), 2)
        a.stamp(7)
        a.end()
        return
    sweep([(t, aa) for aa in range(2) for t in range(3, aa - 1, -1)])
    a.auto(False)
    a.stamp(6)
    if STAMP and E("CLK"):
        a("s_memtime s[84:85]")
    a("s_setprio 3")
    a(f"v_subrev_u32 v8, {4*KTS}, v8")
    a.spin(f"v9 offset:{F_I-F_PAIR}", 1, 10)
    a.auto(True)
    for k in range(2):
        a(f"ds_read_b128 {vr(40+4*k,4)}, v8 offset:{1024*k}")
    for r in range(8):
        a(f"v_add_f32 v{AC+8+r}, v{AC+8+r}, v{40+r}")
    yout((0, 1, 2, 3), 0)
    a.stamp(5)
    a.spin(F_H + 4, 1, 10, prio=E('GP3', 2), sleep=1)
    a.auto(True)
    sweep([(t, aa) for aa in range(2) for t in (5, 4)])
    a.auto(False)
    a("s_setprio 3")
    a.spin(f"v9 offset:{F_I-F_PAIR}", 2, 10)
    a.auto(True)
    for k in range(2):
        a(f"ds_read_b128 {vr(40+4*k,4)}, v8 offset:{2048+1024*k}")
    for r in range(8):
        a(f"v_add_f32 v{AC+16+r}, v{AC+16+r}, v{40+r}")
    yout((4, 5), 1)
    a.stamp(7)
    a(f"ds_read_b32 v10, v1 offset:{F_X}")
    a("s_cmp_eq_u32 s3, 4")
    a("s_cbranch_scc1 C_FIN")
    if E("WB"):
        a("s_lshl_b32 s8, s3, 8")
        a("s_add_u32 s8, s8, s5")
        a(f"s_cmp_lg_u32 s8, {5*256+20}")
        a("s_cbranch_scc1 K_END")
        a.spin(F_O + 4, E("WB"), 10, sleep=4)
        a("buffer_wbl2 sc1")
        a("s_waitcnt vmcnt(0)")
    a.end()


XD, GD = 40, 56
VX, VY, VG, VO = 72, 73, 74, 78


def epi_setup(a):
    srd(a, 60, P_OUT, 2359296)
    a("v_bfe_u32 v79, v2, 2, 2")
    a("v_and_b32 v80, 3, v2")
    a("v_lshl_add_u32 v80, v4, 2, v80")
    a("s_lshl_b32 s8, s12, 7")
    for d, base, stride in ((VX, UP, US), (VY, OP, OS)):
        a(f"v_mul_u32_u24 v{d}, {stride}, v79")
        a(f"v_lshl_add_u32 v{d}, v80, 3, v{d}")
        a(f"s_sub_u32 s9, {base+3968-512*7}, s8")
        a(f"v_add_u32 v{d}, s9, v{d}")
    a("v_xor_b32 v79, 63, v2")
    a("s_lshl_b32 s8, s12, 9")
    a(f"s_add_u32 s8, s8, {WS_G}")
    a(f"v_lshl_add_u32 v{VG}, v79, 3, s8")
    for k in range(1, 4):
        a(f"v_add_u32 v{VG+k}, {4096*k}, v{VG}")
    a(f"v_mul_u32_u24 v{VO}, 1152, v79")
    a(f"v_add_u32 v{VO}, s55, v{VO}")
    a("s_mul_i32 s68, s12, 73728")
    if YX:
        a(f"s_add_u32 s68, s68, {4*294912}")
        a("s_lshl_b32 s8, s7, 14")
        a("s_lshl_b32 s9, s12, 10")
        a("s_add_u32 s8, s8, s9")
        a(f"s_add_u32 s8, s8, {WS_Y}")
        a("v_lshl_add_u32 v81, v79, 4, s8")
        for k in range(1, 4):
            a(f"v_add_u32 v{81+k}, {4096*k}, v81")
    a("s_mov_b32 s70, 0x05040100")
    a("s_mov_b32 s71, 0x07060302")


def epi_x(a, ks):
    for k in ks:
        a(f"ds_read_b64_tr_b16 {vr(XD+2*k,2)}, v{VX} offset:{512*(7-k)}")


def epi_g(a):
    l = a.uid("GP")
    a("s_mov_b32 s9, 0")
    a.lab(l)
    a(f"v_xor_b32 v14, v{GD+1}, v10")
    for k in range(1, 8):
        a(f"v_bitop3_b32 v14, v14, v{GD+2*k+1}, v10 bitop3:0xf6")
    a("v_cmp_ne_u32 vcc, 0, v14")
    a("s_add_u32 s9, s9, 1")
    a("s_cmp_eq_u64 vcc, 0")
    a(f"s_cbranch_scc1 {l}_D")
    a(f"s_cmp_ge_u32 s9, {SPIN}")
    a(f"s_cbranch_scc1 {l}_D")
    epi_gl(a)
    a("s_waitcnt vmcnt(0)")
    a(f"s_branch {l}")
    a.lab(l + "_D")


def epi_gl(a):
    for k in range(8):
        a(f"global_load_dwordx2 {vr(GD+2*k,2)}, v{VG+(k>>1)}, {sr(P_WS,2)} offset:{2048*(k&1)} sc1")


TX = 120


def epi_unp(a, ks):
    for k in ks:
        if k < NF:
            for p in range(2):
                a(f"v_lshlrev_b32 v{TX+4*k+2*p}, 16, v{XD+2*k+p}")
                a(f"v_and_b32 v{TX+4*k+2*p+1}, 0xffff0000, v{XD+2*k+p}")


def epi_mul(a, ks):
    for k in ks:
        if k < NF:
            a(f"v_and_b32 v{16+(k&3)}, 0xffff0000, v{GD+2*k}")
            a(f"v_lshlrev_b32 v{GD+2*k+1}, 16, v{GD+2*k}")
            for c in range(4):
                a(f"v_mul_f32 v{TX+4*k+c}, v{TX+4*k+c}, v{16+(k&3)}")


def epi_fin(a, ks, stage):
    a.spin(F_O + 4 * stage, 4, 15, sleep=E("OSL", 1), prio=3)
    a.auto(True)
    Y = 16
    for n, k in enumerate(ks):
        a(f"ds_read_b64_tr_b16 {vr(Y+2*n,2)}, v{VY} offset:{512*(7-k)}")
    for n0 in range(0, len(ks), 2):
        pr = [(n, ks[n], 24 + 4 * n) for n in (n0, n0 + 1)]
        if ks[n0] < NF:
            for n, k, R in pr:
                for p in range(2):
                    a(f"v_lshlrev_b32 v{R+2*p}, 16, v{Y+2*n+p}")
                    a(f"v_and_b32 v{R+2*p+1}, 0xffff0000, v{Y+2*n+p}")
                for c in range(4):
                    a(f"v_fma_f32 v{R+c}, v{R+c}, v{GD+2*k+1}, v{TX+4*k+c}")
        else:
            for n, k, R in pr:
                for c in range(4):
                    a(f"v_perm_b32 v{R+c}, v{XD+2*k+(c>>1)}, v{Y+2*n+(c>>1)}, s{70+(c&1)}")
            for n, k, R in pr:
                for c in range(4):
                    a(f"v_dot2_f32_bf16 v{R+c}, v{R+c}, v{GD+2*k}, 0")
        for n, k, R in pr:
            if YX and stage == 0:
                for p in range(2):
                    a(f"v_cvt_pk_bf16_f32 v{104+4*k+p}, v{R+2*p}, v{R+2*p+1}")
                a(f"global_store_dwordx4 v{81+k}, {vr(104+4*k,4)}, {sr(P_WS,2)} sc1")
                continue
            for p in range(2):
                a(f"v_cvt_pk_bf16_f32 v{XD+2*k+p}, v{R+2*p}, v{R+2*p+1}")
            a(f"buffer_store_dwordx2 {vr(XD+2*k,2)}, v{VO}, s[60:63], s68 offen")
            a("s_add_u32 s68, s68, 294912")
    a.auto(False)


def burst_addr(a):
    a(f"s_sub_u32 s9, s5, {NJH}")
    a("s_lshl_b32 s9, s9, 2")
    a("s_add_u32 s9, s9, s12")
    a("s_mul_i32 s9, s9, 9216")
    a("s_mul_i32 s8, s4, 663552")
    a("s_add_u32 s8, s8, s9")
    if BL == 72:
        a("v_lshl_add_u32 v88, v2, 7, s8")
        a("v_min_u32 v89, 7, v2")
        a("v_lshl_add_u32 v89, v89, 7, s8")
        a("v_add_u32 v89, 8192, v89")
    else:
        a(f"s_add_u32 s8, s8, {128*(72-BL)}")
        a(f"v_min_u32 v88, {BL-1}, v2")
        a("v_lshl_add_u32 v88, v88, 7, s8")


def burst(a):
    if BSN:
        for k in range(NBI):
            a(f"global_load_dword v{96+k}, v{88+k}, {sr(P_WD,2)}")


def io_common(a):
    a("s_mul_i32 s7, s4, 18")
    a("s_add_u32 s7, s7, s5")
    a(f"s_sub_u32 s7, s7, {NJH}")
    a("s_lshl_b32 s55, s7, 3")
    a("s_sub_u32 s12, s3, 8")
    epi_setup(a)
    burst_addr(a)


def uloader(a):
    a.lab("C_LOAD")
    a("s_setprio 3")
    a(f"s_sub_u32 s13, s5, {NJH}")
    pf = stripe_pf(a)
    pf2 = []
    if PF2AT >= 0:
        pf, pf2 = pf[:2], [x.replace("v10,", "v98,").replace("v11,", "v99,") for x in pf[2:]]
    a("v_mul_u32_u24 v6, 4608, v2")
    a("s_lshl_b32 s8, s7, 3")
    a("v_add_u32 v6, s8, v6")
    a("v_lshlrev_b32 v7, 3, v2")
    a(f"v_sub_u32 v7, {UP+4088-512*7}, v7")
    a("s_mov_b32 s56, 0x05040100")
    a("s_mov_b32 s58, 0x07060302")
    a("s_mov_b32 s57, s13")
    a("s_waitcnt lgkmcnt(0)")
    if E("PFE", 0):
        for x in pf:
            a(x)
    srd(a, 72, P_U, 2359296)
    a.b0(12)
    if E("PFX"):
        a.spin(F_X, 0, 12, op="lg")
    if not E("PFE", 0):
        for k, x in enumerate(pf):
            if k == 2 and E("PF2"):
                a("s_waitcnt vmcnt(0)")
            a(x)
    io_common(a)
    for j in range(4):
        a(f"v_mov_b32 v{24+j}, 0")
    a("v_lshrrev_b32 v28, 2, v2")
    a(f"v_mul_u32_u24 v28, {CS}, v28")
    a(f"v_add_u32 v28, {KC}, v28")
    a("v_and_b32 v29, 3, v2")
    a("v_lshl_add_u32 v30, v29, 4, v28")
    a("ds_write_b128 v30, v[24:27] offset:1072")
    a("v_and_b32 v29, 1, v2")
    a("v_lshl_add_u32 v30, v29, 4, v28")
    a("ds_write_b128 v30, v[24:27]")
    a("v_lshrrev_b32 v28, 5, v2")
    a(f"v_mul_u32_u24 v28, {US}, v28")
    a("v_and_b32 v29, 31, v2")
    a("v_lshl_add_u32 v30, v29, 4, v28")
    a(f"v_add_u32 v30, {UP+4096}, v30")
    a("ds_write_b128 v30, v[24:27]")
    a(f"ds_write_b128 v30, v[24:27] offset:{2*US}")
    a("s_mov_b32 s15, 0")
    if ROT:
        for k in range(4):
            a(f"s_add_u32 s8, s57, {k}")
            a("s_and_b32 s8, s8, 3")
            a(f"s_mul_i32 s{76+k}, s8, 294912")
            a(f"s_add_u32 s{64+k}, s{76+k}, {4*294912}")
            a("s_lshl_b32 s8, s8, 9")
            a(f"v_subrev_u32 v{32+k}, s8, v7")
    a("v_mov_b32 v12, 1")
    a(f"s_waitcnt vmcnt({E('UW', 2 if PF2AT < 0 else 0)})")
    a.stamp(7)
    U = 104

    def issue(i):
        if not NOU:
            so = f"s{(76 if i < 16 else 64) + ((i >> 2) & 3)}" if ROT else "s15"
            a(f"buffer_load_dwordx2 {vr(U+2*i,2)}, v6, s[72:75], {so} offen offset:{1152*(i&3)}")
        if i & 3 == 3:
            a("s_add_u32 s15, s15, 294912")
        if i == PF2AT:
            for x in pf2:
                a(x)
        if i == GAT:
            a(f"ds_write_b32 v1, v12 offset:{F_UI}")
            epi_gl(a)
        if i == BST:
            if GAT != BST:
                a(f"ds_write_b32 v1, v12 offset:{F_BU}")
            if not BLATE:
                burst(a)
    a.auto(True)
    nis = 0
    for i in range(32):
        while nis < min(32, i + WIN_U):
            issue(nis); nis += 1
        a(f"@need {vr(U+2*i,2)}")
        if i & 3 == 3:
            while nis < min(32, i + 1 + WIN_U):
                issue(nis); nis += 1
            t, u, o = i >> 2, U + 2 * (i - 3), 16 + 8 * ((i >> 2) & 1)
            for ch in range(4):
                sel = "s58" if ch & 1 else "s56"
                a(f"v_perm_b32 v{o+2*ch}, v{u+4+(ch>>1)}, v{u+6+(ch>>1)}, {sel}")
                a(f"v_perm_b32 v{o+2*ch+1}, v{u+(ch>>1)}, v{u+2+(ch>>1)}, {sel}")
                if ROT:
                    a(f"ds_write_b64 v{32+(t&3)}, {vr(o+2*ch,2)} offset:{ch*US+512*(7-(t&4))}")
                else:
                    a(f"ds_write_b64 v7, {vr(o+2*ch,2)} offset:{ch*US+512*(7-t)}")
        if i == 3:
            a.stamp(8)
        if i & 15 == 15:
            a(f"ds_write_b32 v1, v12 offset:{F_H+4*(i>>4)}")
            a.stamp(2 - (i >> 4))
    a.auto(False)
    epi_x(a, range(4))
    a.spin(F_X, 0, 10, op="lg")
    epi_unp(a, range(4))
    a("s_branch C_IO3")
    a.lab("C_IO")
    io_common(a)
    a.spin(F_X, 0, 10, op="lg")
    a.spin(F_H, 1, 12, prio=3, sleep=2)
    epi_x(a, range(4))
    a("s_waitcnt lgkmcnt(0)")
    epi_unp(a, range(4))
    a.spin(F_UI, 1, 12, prio=3, sleep=1)
    epi_gl(a)
    if GAT != BST:
        a.spin(F_BU, 1, 12, prio=3, sleep=1)
    if not BLATE:
        burst(a)
    a.lab("C_IO3")
    a.spin(F_H + 4, 1, 12, prio=3, sleep=1)
    epi_x(a, range(4, 8))
    a(f"s_waitcnt vmcnt({NBI if BSN and not BLATE else 0})")
    if BLATE == 1:
        burst(a)
    epi_g(a)
    if YX:
        for k in range(4):
            a(f"v_mov_b32 v{106+4*k}, v10")
            a(f"v_mov_b32 v{107+4*k}, v10")
    epi_mul(a, range(4))
    a.stamp(3)
    epi_fin(a, [0, 1, 2, 3], 0)
    epi_unp(a, range(4, 8))
    epi_mul(a, range(4, 8))
    a("s_lshl_b32 s8, s12, 8")
    a(f"s_sub_u32 s8, {OM+7936-1024*7}, s8")
    a("v_lshl_add_u32 v14, v2, 2, s8")
    for k in range(8):
        a(f"ds_write_b32 v14, v{GD+2*k} offset:{1024*(7-k)}")
    a.stamp(4)
    epi_fin(a, [4, 5], 1)
    a.stamp(5)
    epi_fin(a, [6, 7], 2)
    a.signal(F_SI, 8)
    a.stamp(6)
    a("s_waitcnt vmcnt(0)")
    a.signal(F_ST, 8)
    a.end()
    a.lab("C_FIN")
    Z = 104
    a("s_setprio 0")
    a("v_and_b32 v8, 7, v2")
    a("v_lshlrev_b32 v8, 3, v8")
    a(f"v_add_u32 v8, {WS_SEL}, v8")
    a("s_mul_i32 s8, s7, 9216")
    a(f"s_add_u32 s8, s8, {WS_MB}")
    a("v_lshl_add_u32 v5, v2, 4, s8")
    a("v_add_u32 v6, 0x1000, v5")
    a("v_add_u32 v7, 0x2000, v5")
    a("v_and_b32 v19, 1, v4")
    a("v_lshrrev_b32 v20, 1, v4")
    a("v_lshl_or_b32 v19, v19, 1, v20")
    a(f"v_mul_u32_u24 v12, {US}, v19")
    a(f"v_add_u32 v12, {UP}, v12")
    a(f"v_mul_u32_u24 v13, {OS}, v19")
    a(f"v_add_u32 v13, {OP}, v13")
    a(f"s_add_u32 s8, s55, {2047*1152}")
    a("v_lshl_add_u32 v14, v19, 1, s8")
    a("s_waitcnt lgkmcnt(0)")
    for j in range(4):
        a(f"v_bfe_u32 v{Z+6+j}, v10, {8*j}, 8")
    MB = 120
    if FT:
        a.spin(F_O + 8, 4, 26, sleep=1, prio=3)
        if FT > 1:
            a(f"s_sleep {FT}")
    else:
        a.spin(F_SI, E("SI", 4), 26, sleep=1, prio=3)
    a.stamp(5)
    a("s_mov_b32 s9, 0")
    a.lab("C_MPOLL")
    a(f"global_load_dwordx2 v[16:17], v8, {sr(P_WS,2)} sc1")
    for i in range(9):
        a(f"global_load_dwordx4 {vr(MB+4*i,4)}, v{5+(i>>2)}, {sr(P_WS,2)} offset:{1024*(i&3)} sc1")
    a("s_waitcnt vmcnt(9)")
    a("v_and_b32 v22, 0x7ff, v16")
    a("v_lshl_add_u32 v23, v22, 1, v12")
    a(f"ds_read_u16 v{Z+1}, v23")
    a("v_lshl_add_u32 v23, v22, 1, v13")
    a(f"ds_read_u16 v{Z+3}, v23")
    a("v_lshlrev_b32 v23, 2, v22")
    a(f"v_add_u32 v23, {OM}, v23")
    if not (FT or E("SI", 4) < 4):
        a("ds_read_b32 v24, v23")
    a("v_and_b32 v20, 0xffff0000, v16")
    a("v_ashrrev_i32 v21, 31, v20")
    a("v_not_b32 v21, v21")
    a("v_or_b32 v21, 0x80000000, v21")
    a("v_and_b32 v21, 0xffff0000, v21")
    a("v_xor_b32 v20, v20, v21")
    sigmoid_f32(a, Z, 20, 21)
    rb(a, Z)
    a(f"v_mul_u32_u24 v{Z+4}, 1152, v22")
    a(f"v_sub_u32 v{Z+4}, v14, v{Z+4}")
    a("s_waitcnt lgkmcnt(0)")
    a(f"v_lshlrev_b32 v{Z+1}, 16, v{Z+1}")
    for i in range(9):
        a(f"s_waitcnt vmcnt({8-i})")
        for j in range(4):
            a(f"v_xor_b32 v{MB+4*i+j}, v{MB+4*i+j}, v{Z+6+j}")
        a(f"v_or3_b32 v26, v{MB+4*i}, v{MB+4*i+1}, {'v26' if i else '0'}")
        a(f"v_or3_b32 v26, v{MB+4*i+2}, v{MB+4*i+3}, v26")
        if i:
            for p in range(2):
                a(f"v_pk_add_f32 {vr(28+2*p,2)}, {vr(28+2*p if i > 1 else MB+2*p,2)}, {vr(MB+4*i+2*p,2)}")
    a("v_and_b32 v26, 0xff, v26")
    a("v_bitop3_b32 v26, v26, v17, v10 bitop3:0xf6")
    a("v_cmp_ne_u32 vcc, 0, v26")
    a("s_add_u32 s9, s9, 1")
    a("s_cmp_eq_u64 vcc, 0")
    a("s_cbranch_scc1 C_MOK")
    a(f"s_cmp_lt_u32 s9, {SPIN}")
    a("s_cbranch_scc1 C_MPOLL")
    a.lab("C_MOK")
    if STAMP:
        a("s_mov_b32 s82, s9")
    a.stamp(8)
    a("v_permlane32_swap_b32 v28, v29")
    a("v_permlane32_swap_b32 v30, v31")
    a("v_add_f32 v28, v28, v29")
    a("v_add_f32 v30, v30, v31")
    a("v_permlane16_swap_b32 v28, v30")
    a("v_add_f32 v28, v28, v30")
    a(f"v_add_f32_dpp v28, v28, v28 row_ror:8 {DPPF}")
    rb(a, 28)
    a(f"v_mul_f32 v28, v28, v{Z}")
    rb(a, 28)
    a(f"v_add_f32 v28, v28, v{Z+1}")
    rb(a, 28)
    a(f"v_or_b32 v28, v28, v{Z+3}")
    if FT or E("SI", 4) < 4:
        a.spin(F_SI, 4, 27)
        a("ds_read_b32 v24, v23")
        a("s_waitcnt lgkmcnt(0)")
    a("v_dot2_f32_bf16 v28, v28, v24, 0")
    a("v_cvt_pk_bf16_f32 v28, v28, v28")
    a.spin(F_ST, 4, 27)
    a("s_mov_b32 exec_lo, 0x00ff00ff")
    a("s_mov_b32 exec_hi, 0x00ff00ff")
    a(f"global_store_short v{Z+4}, v28, {sr(P_OUT,2)}")
    a("s_mov_b64 exec, -1")
    a.end()


def kernel(a):
    a.raw(".p2align 8")
    a.raw(".globl k1_kernel")
    a.raw(".type k1_kernel,@function")
    a.lab("k1_kernel")
    a("v_lshrrev_b32 v1, 6, v0")
    a("s_cmp_ge_u32 s2, 256")
    a("v_readfirstlane_b32 s3, v1")
    a("s_cbranch_scc1 K_END")
    a("v_and_b32 v2, 63, v0")
    a("v_mov_b32 v1, 0")
    a("s_cmp_lg_u32 s3, 1")
    a("s_cbranch_scc1 K_NOZ")
    a("v_lshlrev_b32 v3, 2, v2")
    a("ds_write_b32 v3, v1")
    a("s_waitcnt lgkmcnt(0)")
    a.lab("K_NOZ")
    a("s_load_dwordx16 s[16:31], s[0:1], 0")
    a("s_load_dwordx16 s[32:47], s[0:1], 64")
    a("s_load_dwordx4 s[48:51], s[0:1], 128")
    a("s_lshr_b32 s5, s2, 3")
    if CODEPF:
        a("s_lshl_b32 s8, s3, 8")
        a("s_add_u32 s8, s8, s5")
        a(f"s_cmp_lg_u32 s8, {NJF}")
        a("s_cbranch_scc1 K_NOCPF")
        a("s_getpc_b64 s[8:9]")
        a("s_and_b32 s8, s8, 0xffffff00")
        a("v_lshlrev_b32 v8, 7, v2")
        for k in range(4):
            a(f"v_min_u32 v9, CODE_END-k1_kernel-4, v8")
            a(f"global_load_dword v{160+k}, v9, s[8:9]")
            a(f"v_add_u32 v8, 8192, v8")
        a.lab("K_NOCPF")
    if STAMP:
        for i in range(1, 10):
            a(f"s_mov_b32 s{80+2*i}, 0")
    if PROBE:
        a("s_mov_b32 s98, 0")
    a.stamp(0)
    a("v_and_b32 v3, 15, v2")
    a("v_lshrrev_b32 v4, 4, v2")
    a("s_and_b32 s4, s2, 7")
    if not E("OLDB0"):
        a("s_barrier")
    a("s_cmp_eq_u32 s3, 8")
    a("s_cbranch_scc1 ROUTER")
    a(f"s_cmp_lt_u32 s5, {NJH}")
    a("s_cbranch_scc1 K_OTHER")
    a("s_mul_i32 s7, s4, 18")
    a("s_add_u32 s7, s7, s5")
    a(f"s_sub_u32 s7, s7, {NJH}")
    a("s_cmp_ge_u32 s3, 8")
    a("s_cbranch_scc1 K_CIO")
    kgen_head(a)
    router(a)
    a.lab("K_OTHER")
    a("s_mul_i32 s7, s4, 9")
    a("s_add_u32 s7, s7, s5")
    a("s_mov_b32 s12, s3")
    a("s_cmp_lt_u32 s3, 2")
    a("s_cbranch_scc1 GATE")
    a(f"s_cmp_ge_u32 s5, {NJF}")
    a("s_cbranch_scc1 HELPER")
    a("s_cmp_lt_u32 s3, 8")
    a("s_cbranch_scc1 F_COMP")
    ffn_loader(a)
    a.lab("K_CIO")
    a("s_sub_u32 s12, s3, 9")
    a("s_cmp_eq_u32 s3, 11")
    a("s_cbranch_scc1 C_LOAD")
    a("v_lshl_add_u32 v14, v4, 3, v3")
    a("v_sub_u32 v14, 39, v14")
    a("s_lshl_b32 s8, s12, 11")
    a(f"s_add_u32 s8, s8, {PM}")
    a("v_lshl_add_u32 v15, v2, 4, s8")
    W = [(0x7f, 19), (0x1ff, 20), (0x7, 21), (0x1f, 18), (0x3, 21)]
    for k in range(3):
        a("s_cmp_eq_u32 s12, 0")
        a(f"s_cselect_b32 s8, {W[k][0]}, {W[k+2][0]}")
        a(f"s_cselect_b32 s9, {W[k][1]}, {W[k+2][1]}")
        a("s_movk_i32 s11, 0x3f80")
        if k == 2:
            a("s_cselect_b32 s11, s11, 0xffff")
        a("s_lshl_b32 s13, s11, 16")
        a("v_mov_b32 v10, s8")
        a("v_mov_b32 v11, 0")
        a("v_lshlrev_b64 v[10:11], v14, v[10:11]")
        a("v_alignbit_b32 v10, v11, v10, s9")
        for p in range(4):
            a(f"v_bfe_i32 v11, v10, {2*p}, 1")
            a(f"v_bfe_i32 v12, v10, {2*p+1}, 1")
            a("v_and_b32 v11, s11, v11")
            a(f"v_and_or_b32 v{16+4*k+p}, v12, s13, v11")
        a(f"ds_write_b128 v15, {vr(16+4*k,4)} offset:{1024*k}")
    a.signal(F_PM, 10)
    a("s_branch GATE")
    uloader(a)
    helper(a)
    gate(a)
    kgen(a)
    select(a)
    ffn_comp(a)
    if STAMP:
        a.lab("STAMP_OUT")
        a("s_memrealtime s[98:99]")
        a("s_waitcnt lgkmcnt(0)")
        a("s_lshl_b32 s8, s2, 4")
        a("s_add_u32 s8, s8, s3")
        a("s_lshl_b32 s8, s8, 6")
        a(f"s_add_u32 s8, s8, {WS_STAMP}")
        a("v_mov_b32 v5, s8")
        for i in range(10):
            a(f"v_mov_b32 v6, s{80+2*i}")
            a(f"global_store_dword v5, v6, {sr(P_WS,2)} offset:{4*i}")
    if PROBE:
        a.lab("PADTAIL")
        a("s_waitcnt vmcnt(0) lgkmcnt(0)")
        a("s_cmp_eq_u32 s98, 0")
        a("s_cbranch_scc1 K_END")
        a("s_setprio 0")
        a.lab("PADL")
        a("s_sleep 8")
        a("s_memrealtime s[96:97]")
        a("s_waitcnt lgkmcnt(0)")
        a("s_sub_u32 s96, s96, s98")
        a("s_cmp_lt_u32 s96, 2000")
        a("s_cbranch_scc1 PADL")
    a.lab("K_END")
    a("s_endpgm")
    a.lab("CODE_END")


def main():
    ref = open(os.path.join(HERE, NAME + ".s.ref")).read().splitlines()
    head = [l for l in ref if l.startswith(";") and "@launch" not in l and "Override" not in l and "grid=ceil" not in l]
    a = G()
    kernel(a)
    out = head + [
        f"; @launch kernel=k1_kernel grid=(256,1,1) block=(768,1,1) lds={LDS}",
        '.amdgcn_target "amdgcn-amd-amdhsa--gfx950"',
        ".text",
    ] + a.finish() + [
        '.section .rodata,"a"',
        ".p2align 6",
        ".amdhsa_kernel k1_kernel",
        "  .amdhsa_next_free_vgpr 168",
        "  .amdhsa_next_free_sgpr 102",
        "  .amdhsa_accum_offset 168",
        "  .amdhsa_group_segment_fixed_size 0",
        "  .amdhsa_kernarg_size 144",
        "  .amdhsa_user_sgpr_count 2",
        "  .amdhsa_user_sgpr_kernarg_segment_ptr 1",
        "  .amdhsa_system_sgpr_workgroup_id_x 1",
        ".end_amdhsa_kernel",
    ]
    path = sys.argv[1] if len(sys.argv) > 1 else os.path.join(HERE, NAME + ".s")
    open(path, "w").write("\n".join(out) + "\n")


if __name__ == "__main__":
    main()
```

```python
import sys, os
from asmlib import *

NAME = "gated_mix__ssm_conv_s4__moe_arch_mod__prompt"
HERE = os.path.dirname(os.path.abspath(__file__))
E = lambda k, d=0: int(os.environ.get(k, d))
STAMP = E("STAMP")
PROBE = os.environ.get("PROBE", "")
CODEPF = E("CODEPF", 1)
SELD = E("SELD", 16)
UD = E("UD", 0)
GORD = E("GORD", 1)
ST0 = E("ST0", 1)
NF = E("NF", 4)
YX = E("YX", 0)
WS_Y = 12 << 20
FT = E("FT", 0)
RDIR = E("RDIR", 2)
GAT = E("GAT", 31)
GPD = E("GPD", 0)
BL = E("BL", 72)
NBI = 2 if BL == 72 else 1
BLATE = E("BLATE", 0)
KS = E("KS", 32)
WS_KEY2 = 2 << 20
PF2AT = E("PF2AT", -1)
R3 = E("R3", 6)
ROT = 0
SPB = E("SPB", 0)
SPW = E("SPW", 4)
C3 = E("C3", 28)
HSB = E("HSB", 0)
WNT = os.environ.get("WNT", "")
POLLF = os.environ.get("POLLF", "sc1").replace("_", " ")
PUBF = os.environ.get("PUBF", "sc1").replace("_", " ")
PFN = E("PFN", 0)
PFS = E("PFS", 8)
PFW = E("PFW", 1)
HPN = E("HPN", 3)
HPS = E("HPS", 53)
HPW = E("HPW", 4)
PSTEP = 5 * HPW // 2
BST = E("BST", 31)
BSN = E("BSN", 5)
BSS = E("BSS", 0)
WIN_U = E("WIN_U", 5)
WIN_F = E("WIN_F", 10)
HELP = E("HELP", 1)
DUMP = E("DUMP")
HOLD = E("HOLD")
FINE = E("FINE")
NOU = E("NOU")
NOW = E("NOW")

WS_KEY, WS_SEL, WS_BASE, WS_G, WS_MB = 0, 8192, 8448, 16384, 32768
WS_UT = 8 << 20
WS_STAMP = 4 << 20
WS_SIZE = 0x10000000

LDS = 163840
F_NONCE, F_PAIR, F_ST, F_I, F_K, F_H, F_O = 0, 16, 40, 48, 64, 80, 96
F_L, F_D, F_AC, F_XR, F_HR, F_PI = 16, 40, 48, 84, 88, 92
KT = 256
KTS = 4608
TS = 288
OS = 4160
KC = KT + 8 * KTS
CS = 1216
UP = KC + 16 * CS
US = 4672
OM = UP + 4 * US
OP = OM + 8192
PM = OP + 4 * OS
assert PM + 5120 + 512 <= 147712 and OP % 16 == 0
WA = 256
WB = WA + 73728
XB = WB + 73728
HB = XB + 9216
HS = 144
GW = HB + 9 * HS
assert GW + 2048 <= LDS and GW % 16 == 0
F_X, F_GD, F_RI, F_SI, F_UI, F_BU, F_PM, F_GI = 8, 12, 4, 44, 88, 92, 32, 36

L2E = 0x3fb8aa3b
L2E_LO = 0x32a57060
LN2 = 0x3f317218
INV2PI = 0x3e22f983

P_U, P_ARE, P_AIM, P_BRE, P_BIM, P_CRE, P_CIM, P_LDT = 16, 18, 20, 22, 24, 26, 28, 30
P_DSK, P_BX, P_WR, P_WG, P_WU, P_WD, P_GW, P_OUT = 32, 34, 36, 38, 40, 42, 44, 46
P_DBG, P_WS = 48, 50
NJF, NJH = 9, 14
SPIN = 0x20000

DPPF = "row_mask:0xf bank_mask:0xf"


class G(Asm):
    nlab = 0

    def stamp(s, i):
        if PROBE:
            import inspect
            fn = inspect.stack()[1].function
            if fn == "pre":
                fn = "ffn_loader"
            if f"{fn}:{i}" == PROBE:
                s("s_memrealtime s[98:99]")
        if STAMP and not (FINE and i >= 6):
            s(f"s_memrealtime s[{80+2*i}:{81+2*i}]")

    def fine(s, i):
        if STAMP and FINE:
            s(f"s_memrealtime s[{80+2*i}:{81+2*i}]")

    def b0(s, wait=None):
        if E("OLDB0"):
            s("s_barrier")
        elif wait is not None:
            s.spin(F_RI, 1, wait)

    def end(s):
        s("s_branch STAMP_OUT" if STAMP else "s_branch PADTAIL" if PROBE else "s_endpgm")

    def uid(s, p):
        G.nlab += 1
        return f"{p}_{G.nlab}"

    def spin(s, off, target, tv, sleep=0, op="ge", prio=None):
        l = s.uid("SP")
        if prio is not None:
            s(f"s_setprio {E('SPP', 3) if sleep else 0}")
        s("s_mov_b32 s9, 0")
        s.lab(l)
        s(f"ds_read_b32 v{tv}, v1 offset:{off}") if isinstance(off, int) else s(f"ds_read_b32 v{tv}, {off}")
        s("s_waitcnt lgkmcnt(0)")
        s(f"v_readfirstlane_b32 s8, v{tv}")
        s("s_add_u32 s9, s9, 1")
        s(f"s_cmp_{op}_u32 s8, {target}")
        s(f"s_cbranch_scc1 {l}_D")
        if sleep:
            s(f"s_sleep {sleep}")
        s(f"s_cmp_lt_u32 s9, {SPIN*4}")
        s(f"s_cbranch_scc1 {l}")
        s.lab(l + "_D")
        if prio is not None:
            s(f"s_setprio {prio}")

    def signal(s, off, tv):
        s(f"v_mov_b32 v{tv}, 1")
        s("s_mov_b64 exec, 1")
        s(f"ds_add_u32 v1, v{tv} offset:{off}") if isinstance(off, int) else s(f"ds_add_u32 {off}, v{tv}")
        s("s_mov_b64 exec, -1")


def srd(a, d, p, size):
    a(f"s_mov_b32 s{d}, s{p}")
    a(f"s_mov_b32 s{d+1}, s{p+1}")
    a(f"s_mov_b32 s{d+2}, {size}")
    a(f"s_mov_b32 s{d+3}, 0x20000")


def wave_max_steps(vv):
    return [f"v_max_u32_dpp v{vv}, v{vv}, v{vv} row_shr:1 {DPPF}",
            f"v_max_u32_dpp v{vv}, v{vv}, v{vv} row_shr:2 {DPPF}",
            f"v_max_u32_dpp v{vv}, v{vv}, v{vv} row_shr:4 {DPPF}",
            f"v_max_u32_dpp v{vv}, v{vv}, v{vv} row_shr:8 {DPPF}",
            f"v_max_u32_dpp v{vv}, v{vv}, v{vv} row_bcast:15 row_mask:0xa bank_mask:0xf",
            f"v_max_u32_dpp v{vv}, v{vv}, v{vv} row_bcast:31 row_mask:0xc bank_mask:0xf"]


def sigmoid_f32(a, dst, src, t):
    a(f"v_mul_f32 v{t}, 0xbfb8aa3b, v{src}")
    a(f"v_exp_f32 v{t}, v{t}")
    a(f"v_add_f32 v{t}, 1.0, v{t}")
    a(f"v_rcp_f32 v{dst}, v{t}")


def rb(a, r):
    a(f"v_cvt_pk_bf16_f32 v{r}, v{r}, v{r}")
    a(f"v_and_b32 v{r}, 0xffff0000, v{r}")


def router(a):
    a.lab("ROUTER")
    a("s_setprio 3")
    X, W = 16, 52
    a("v_lshrrev_b32 v5, 3, v2")
    a("v_and_b32 v6, 7, v2")
    a("v_lshlrev_b32 v9, 4, v6")
    a("v_mul_u32_u24 v8, 1152, v5")
    a("s_mul_i32 s8, s2, 9216")
    a("v_add3_u32 v8, v8, v9, s8")
    a("v_lshlrev_b32 v7, 4, v2")
    a("v_min_u32 v10, 7, v2")
    a("v_lshlrev_b32 v10, 4, v10")
    a(f"s_mov_b32 m0, {XB}")
    a("s_waitcnt lgkmcnt(0)")
    a.fine(7)
    a(f"s_load_dword s10, {sr(P_WS,2)}, {WS_BASE}")
    if RDIR:
        for i in range(9):
            a(f"global_load_dwordx4 {vr(X+4*i,4)}, v8, {sr(P_U,2)} offset:{128*i}")
            a(f"global_load_dwordx4 {vr(W+4*i,4)}, v9, {sr(P_WR,2)} offset:{128*i}")
    if RDIR != 2:
        for i in range(9):
            if i:
                a(f"s_mov_b32 m0, {XB+896*i}")
            a(f"global_load_lds_dwordx4 v8, {sr(P_U,2)} offset:{128*i}")
    a(f"s_mov_b32 m0, {GW}")
    a(f"global_load_lds_dwordx4 v7, {sr(P_GW,2)}")
    a(f"global_load_lds_dwordx4 v10, {sr(P_GW,2)} offset:1024")
    if not RDIR:
        for i in range(9):
            a(f"global_load_dwordx4 {vr(W+4*i,4)}, v9, {sr(P_WR,2)} offset:{128*i}")
    a.fine(6)
    a.b0()
    a("v_mov_b32 v11, 1")
    a(f"ds_write_b32 v1, v11 offset:{F_RI}")
    a(f"v_add_u32 v7, {XB}, v7")
    if KS == 32:
        a("s_lshl_b32 s8, s2, 5")
        a("v_lshl_add_u32 v15, v4, 3, s8")
    else:
        a(f"s_mul_i32 s8, s2, {KS}")
        a(f"s_add_u32 s8, s8, {WS_KEY2}")
        a("v_lshl_add_u32 v15, v4, 3, s8")
        a("v_lshl_add_u32 v15, v3, 5, v15")
    a("s_mov_b32 s11, 0xffff")
    for j in range(4):
        a(f"v_mov_b32 v{8+j}, 0")
    a("s_waitcnt lgkmcnt(0)")
    a.fine(8)
    a("s_add_u32 s10, s10, 1")
    a("s_addc_u32 s10, s10, 0")
    a("v_mov_b32 v14, s10")
    a("v_mov_b32 v13, s10")
    if RDIR:
        for i in range(9):
            a(f"s_waitcnt vmcnt({2*(8-i) + (11 if RDIR == 1 else 2)})")
            for j in range(4):
                a(f"v_dot2c_f32_bf16 v{8+j}, v{X+4*i+j}, v{W+4*i+j}")
        a.stamp(1)
    else:
        a("s_waitcnt vmcnt(9)")
        a.stamp(1)
        if STAMP or PROBE:
            a("s_waitcnt lgkmcnt(0)")
        for i in range(9):
            a(f"ds_read_b128 {vr(X+4*i,4)}, v7 offset:{1024*i}")
        a(f"ds_write_b32 v1, v14 offset:{F_X}")
        for i in range(9):
            a(f"s_waitcnt vmcnt({8-i}) lgkmcnt({9-i})")
            for j in range(4):
                a(f"v_dot2c_f32_bf16 v{8+j}, v{X+4*i+j}, v{W+4*i+j}")
    a("v_add_f32 v8, v8, v9")
    a("v_add_f32 v10, v10, v11")
    a("v_add_f32 v8, v8, v10")
    a(f"v_add_f32_dpp v8, v8, v8 quad_perm:[1,0,3,2] {DPPF}")
    a(f"v_add_f32_dpp v8, v8, v8 quad_perm:[2,3,0,1] {DPPF}")
    a(f"v_add_f32_dpp v8, v8, v8 row_half_mirror {DPPF}")
    a("v_cvt_pk_bf16_f32 v8, v8, v8")
    a("v_ashrrev_i32 v9, 31, v8")
    a("v_or_b32 v9, 0x80008000, v9")
    a("v_xor_b32 v8, v8, v9")
    a(f"v_mov_b32_dpp v9, v8 row_ror:8 {DPPF}")
    km = {32: 0x00010001, 64: 0x00030003, 128: 0x000f000f}[KS]
    a(f"s_mov_b32 exec_lo, {km:#x}")
    a(f"s_mov_b32 exec_hi, {km:#x}")
    a("v_bfi_b32 v12, s11, v8, v9")
    a(f"global_store_dwordx2 v15, v[12:13], {sr(P_WS,2)} {PUBF}")
    a("s_mov_b64 exec, -1")
    a(f"ds_write_b32 v1, v14 offset:{F_NONCE}")
    a.stamp(2)
    if RDIR == 2:
        for i in range(9):
            a(f"ds_write_b128 v7, {vr(X+4*i,4)} offset:{1024*i}")
    if RDIR:
        a("s_waitcnt vmcnt(1)")
        a(f"ds_write_b32 v1, v14 offset:{F_X}")
    a(f"s_cmp_ge_u32 s5, {NJH}")
    a("s_cbranch_scc1 C_IO")
    a(f"s_cmp_lt_u32 s5, {NJF}")
    a("s_cbranch_scc1 SELECT")
    a.end()


def gate(a):
    a.lab("GATE")
    if E("GTP"):
        a(f"s_setprio {E('GTP')}")
    X, W, WL = 16, 34, 44
    a("s_lshl_b32 s8, s12, 9")
    a(f"s_add_u32 s8, s8, {XB}")
    a("v_lshl_add_u32 v5, v2, 2, s8")
    a("v_and_b32 v6, 31, v2")
    a("v_lshlrev_b32 v6, 2, v6")
    a(f"v_add_u32 v6, {GW}, v6")
    a("s_lshl_b32 s8, s2, 1")
    a("s_add_u32 s8, s8, s12")
    a("v_mov_b32 v8, 0")
    a("v_mov_b32 v9, 0")
    a("v_mov_b32 v10, 0x3f803f80")
    a("s_lshl_b32 s8, s8, 5")
    a(f"s_add_u32 s8, s8, {WS_G}")
    a("v_lshrrev_b32 v7, 5, v2")
    a("v_lshl_add_u32 v7, v7, 3, s8")
    a("v_and_b32 v11, 16, v2")
    a("v_add_u32 v7, v7, v11")
    a.b0()
    if E("GATED"):
        a(f"s_sleep {E('GATED')}")
    a.spin(F_X, 0, 13, op="lg", sleep=E("GSL", 1))
    a.auto(True)
    for i in range(5):
        a(f"ds_read2_b32 {vr(W+2*i,2)}, v6 offset0:{64*(i&3)} offset1:{64*(i&3)+32}" if i < 4 else f"ds_read_b32 v{W+8}, v6 offset:1024")
    for i in range(9):
        a(f"ds_read2st64_b32 {vr(X+2*i,2)}, v5 offset0:{4*i} offset1:{4*i+1}")
    for i in range(9):
        a(f"v_and_b32 v{WL+i}, 0xffff, v{W+i}")
        a(f"v_and_b32 v{W+i}, 0xffff0000, v{W+i}")
    for i in range(10):
        t = 56 + 4 * (i & 1)
        u = 56 + 4 * ((i - 1) & 1)
        for j in range(2):
            if i < 9:
                a(f"v_dot2_f32_bf16 v{t+2*j}, v{X+2*i+j}, v{WL+i}, 0")
                a(f"v_dot2_f32_bf16 v{t+2*j+1}, v{X+2*i+j}, v{W+i}, 0")
        if i:
            for j in range(2):
                a(f"v_cvt_pk_bf16_f32 v{u+2*j}, v{u+2*j}, v{u+2*j+1}")
            for j in range(2):
                a(f"v_dot2c_f32_bf16 v{8+j}, v{u+2*j}, v10")
    a.auto(False)
    a.signal(F_GD, 11)
    a("v_permlane16_swap_b32 v8, v9")
    a("v_add_f32 v8, v8, v9")
    for r in (8, 4, 2, 1):
        a(f"v_add_f32_dpp v8, v8, v8 row_ror:{r} {DPPF}")
    rb(a, 8)
    sigmoid_f32(a, 8, 8, 9)
    rb(a, 8)
    a("v_sub_f32 v9, 1.0, v8")
    a("v_cvt_pk_bf16_f32 v12, v8, v9")
    a("s_mov_b32 exec_lo, 0x00010001")
    a("s_mov_b32 exec_hi, 0x00010001")
    a(f"global_store_dwordx2 v7, v[12:13], {sr(P_WS,2)} sc1")
    a("s_mov_b64 exec, -1")
    a.stamp(1)
    a(f"s_cmp_lt_u32 s5, {NJF}")
    a("s_cbranch_scc1 F_COMP2")
    a(f"s_cmp_ge_u32 s5, {NJH}")
    a("s_cbranch_scc1 C_IO")
    if GPD:
        a("s_lshl_b32 s8, s3, 8")
        a("s_add_u32 s8, s8, s5")
        a(f"s_cmp_lg_u32 s8, {NJF+1}")
        a("s_cbranch_scc1 G_END")
        a("v_lshlrev_b32 v5, 8, v2")
        a(f"v_add_u32 v5, {WS_G}, v5")
        a("s_waitcnt vmcnt(0)")
        a(f"s_sleep {GPD}")
        a(f"global_load_dword v6, v5, {sr(P_WS,2)} sc1")
        a(f"global_load_dword v6, v5, {sr(P_WS,2)} offset:128 sc1")
        a.lab("G_END")
    a.end()


def stripe_pf(a):
    a("s_and_b32 s8, s13, 15" if PF2AT >= 0 else "s_mov_b32 s8, s13")
    a("s_mul_i32 s8, s8, 73728")
    a("s_lshl_b32 s9, s4, 7")
    a("s_add_u32 s8, s8, s9")
    a("v_mul_u32_u24 v9, 1152, v2")
    a("v_add_u32 v9, s8, v9")
    a("s_add_u32 s8, s13, 18")
    a("s_min_u32 s8, s8, 31")
    a("s_sub_u32 s8, s8, s13")
    a("s_mul_i32 s8, s8, 73728")
    a("v_add_u32 v8, s8, v9" if PF2AT < 0 else f"v_add_u32 v8, {16*73728}, v9")
    return [f"global_load_dword v10, v9, {sr(P_U,2)}", f"global_load_dword v11, v9, {sr(P_U,2)} offset:128",
            f"global_load_dword v10, v8, {sr(P_U,2)}", f"global_load_dword v11, v8, {sr(P_U,2)} offset:128"]


def prefetch(a, n, hold):
    a("v_mul_u32_u24 v5, 57, v2")
    a("v_lshrrev_b32 v5, 9, v5")
    a("v_mul_u32_u24 v6, 9, v5")
    a("v_sub_u32 v6, v2, v6")
    a("s_waitcnt lgkmcnt(0)")
    a("s_cmp_eq_u32 s12, 1")
    a(f"s_cselect_b32 s52, s{P_WU}, s{P_WG}")
    a(f"s_cselect_b32 s53, s{P_WU+1}, s{P_WG+1}")
    a("s_mov_b32 s54, 5308416")
    a("s_mov_b32 s55, 0x20000")
    a("v_mul_u32_u24 v5, 9216, v5")
    a("v_lshl_add_u32 v5, v6, 7, v5")
    a("s_mul_i32 s8, s4, 1152")
    if C3:
        a(f"s_sub_u32 s14, s13, {HPS}")
        a("s_lshr_b32 s9, s52, 7")
        a("s_add_u32 s9, s9, s4")
        a("s_sub_u32 s9, 3, s9")
        a("s_and_b32 s9, s9, 7")
        a("s_lshl_b32 s15, s9, 7")
        a("s_add_u32 s15, s15, s8")
        a(f"s_mul_i32 s14, s14, {9216*C3}")
        a("s_add_u32 s15, s15, s14")
        a(f"s_add_u32 s15, s15, {9216*(7*HPS - C3*PSTEP)}")
        a("s_cmp_eq_u32 s9, 0")
        a("s_cselect_b32 s9, 1024, 0")
        a("v_and_b32 v7, 31, v2")
        a(f"v_min_u32 v7, {C3-1}, v7")
        a("v_mul_u32_u24 v7, 9216, v7")
        a("v_lshrrev_b32 v9, 5, v2")
        a("v_mul_u32_u24 v9, s9, v9")
        a("v_add_u32 v7, v7, v9")
    a("s_mul_i32 s13, s13, 64512")
    a("s_add_u32 s13, s13, s8")
    a.b0(13)
    if hold:
        a.spin(F_NONCE, 0, 13, op="lg", sleep=1)
    if C3:
        a("buffer_load_dword v8, v7, s[52:55], s15 offen")
    for k in range(n):
        if k >= PFW or (C3 and E("C3W", 1)):
            a(f"s_waitcnt vmcnt({PFW-1})")
        a("buffer_load_dword v8, v5, s[52:55], s13 offen")
        a(f"s_add_u32 s13, s13, {64512*PSTEP}")
    if E("HD", 0):
        a(f"s_sub_u32 s8, s5, {NJF}")
        a(f"s_mul_i32 s8, s8, {HPW}")
        a("s_add_u32 s8, s8, s3")
        a("s_sub_u32 s8, s8, 2")
        n0 = 72 - BL
        a("s_lshl_b32 s8, s8, 6")
        a("s_mul_i32 s9, s4, 663552")
        for k in range(E("HD", 0)):
            a(f"v_add_u32 v9, s8, v2")
            a(f"v_min_u32 v9, {72*n0-1}, v9")
            a(f"v_mul_u32_u24 v10, {(1<<16)//n0+1}, v9")
            a("v_lshrrev_b32 v10, 16, v10")
            a(f"v_mul_u32_u24 v10, {BL}, v10")
            a("v_add_u32 v9, v9, v10")
            a("v_min_u32 v9, 5183, v9")
            a("v_lshl_add_u32 v9, v9, 7, s9")
            a(f"s_waitcnt vmcnt({PFW-1})")
            a(f"global_load_dword v8, v9, {sr(P_WD,2)}")
            a(f"s_add_u32 s8, s8, {64*5*HPW}")


def bulk_gate(a, tv):
    a.b0(tv)
    if HOLD:
        a.spin(F_NONCE, 0, tv, op="lg", sleep=1)


def select(a):
    a.lab("SELECT")
    SX = 52
    srd(a, SX, P_U, 2359296)
    KD, IX, KY = 16, 48, 80
    M1, M2, T1, T2, VO, VK, CH = 8, 9, 10, 11, 12, 6, 5
    a("v_lshlrev_b32 v7, 4, v2")
    a("v_add_u32 v15, 0x1000, v7")
    if KS != 32:
        a("v_lshrrev_b32 v7, 1, v2")
        a(f"v_mul_u32_u24 v7, {KS}, v7")
        a("v_and_b32 v15, 1, v2")
        a("v_lshl_add_u32 v7, v15, 4, v7")
        for i in range(8):
            a(f"v_add_u32 v{120+i}, {WS_KEY2+32*KS*i}, v7")

    def polls():
        if KS != 32:
            for i in range(8):
                a(f"global_load_dwordx4 {vr(KD+4*i,4)}, v{120+i}, {sr(P_WS,2)} {POLLF}")
            return
        for i in range(8):
            a(f"global_load_dwordx4 {vr(KD+4*i,4)}, v{7 if i < 4 else 15}, {sr(P_WS,2)} offset:{1024*(i&3)} {POLLF}")
    assert WS_KEY == 0
    a("v_lshlrev_b32 v8, 2, v2")
    a("v_sub_u32 v8, 2047, v8")
    for i in range(8):
        for e in range(4):
            a(f"v_subrev_u32 v{IX+4*i+e}, {256*i+e}, v8")
    a("v_lshrrev_b32 v9, 3, v2")
    a("v_and_b32 v9, 6, v9")
    a("v_xor_b32 v9, v9, v2")
    a("v_and_b32 v9, 7, v9")
    a(f"v_lshlrev_b32 v{CH}, 4, v9")
    a(f"v_mov_b32 v{VO}, 0")
    a(f"v_mov_b32 v{VK}, 0")
    a("s_mov_b32 s11, 0xffff0000")
    if E("DRY", 0):
        a("s_mov_b32 s15, 1")
        a("s_branch SEL_GOT")
        a.lab("SEL_BACK")
    a("s_mov_b32 s15, 0")
    a.spin(F_GD, 2, 13)
    a("s_mov_b32 s9, 0")
    a("s_waitcnt vmcnt(0)")
    if SELD:
        a(f"s_sleep {SELD}")
    a.stamp(8)
    a.lab("SEL_POLL")
    polls()
    if E("W1", 99) < 99:
        a(f"ds_write_b32 v1, v14 offset:{F_PI}")
    for i in range(8):
        a(f"s_waitcnt vmcnt({7-i})")
        if i == 0:
            a(f"v_xor_b32 v13, v{KD+1}, v14")
        else:
            a(f"v_bitop3_b32 v13, v13, v{KD+4*i+1}, v14 bitop3:0xf6")
        a(f"v_bitop3_b32 v13, v13, v{KD+4*i+3}, v14 bitop3:0xf6")
    a("v_cmp_ne_u32 vcc, 0, v13")
    a("s_add_u32 s9, s9, 1")
    a("s_cmp_eq_u64 vcc, 0")
    a("s_cbranch_scc1 SEL_GOT")
    a(f"s_cmp_lt_u32 s9, {SPIN}")
    a("s_cbranch_scc1 SEL_POLL")
    a.lab("SEL_GOT")
    if STAMP:
        a("s_mov_b32 s94, s9")
    a.stamp(6)
    for i in range(8):
        for h in range(2):
            a(f"v_lshl_or_b32 v{KY+4*i+2*h}, v{KD+4*i+2*h}, 16, v{IX+4*i+2*h}")
            a(f"v_and_or_b32 v{KY+4*i+2*h+1}, v{KD+4*i+2*h}, s11, v{IX+4*i+2*h+1}")
        ks = [KY + 4 * i + e for e in range(4)]
        if i == 0:
            a(f"v_min_u32 v{M2}, v{ks[0]}, v{ks[1]}")
            a(f"v_max_u32 v{M1}, v{ks[0]}, v{ks[1]}")
            ks = ks[2:]
        for k in ks:
            a(f"v_med3_u32 v{M2}, v{M1}, v{M2}, v{k}")
            a(f"v_max_u32 v{M1}, v{M1}, v{k}")
    a.stamp(3)

    def place(r):
        lo, hi = ((0xff << (8 * r)) & 0xffffffff, (0xff << (8 * r)) >> 32)
        return ["s_and_b32 s13, s12, 0x7ff", "s_sub_u32 s13, 2047, s13", "s_mul_i32 s13, s13, 1152",
                [f"s_mov_b32 exec_lo, {lo:#x}", f"s_mov_b32 exec_hi, {hi:#x}",
                 f"v_add_u32 v{VO}, s13, v{CH}", f"v_mov_b32 v{VK}, s12", "s_mov_b64 exec, -1"]]
    for r in range(8):
        if r == 0:
            a(f"v_mov_b32 v{T1}, v{M1}")
            fill = []
        else:
            a(f"v_subrev_u32 v{T1}, s12, v{M1}")
            a(f"v_subrev_u32 v{T2}, s12, v{M2}")
            a(f"v_max_u32 v{T1}, v{T1}, v{T2}")
            p = place(r - 1)
            fill = [p[0:2], [p[2]], p[3]]
        for st in wave_max_steps(T1):
            for x in (fill.pop(0) if fill else []):
                a(x)
            a(st)
        a(f"v_readlane_b32 s8, v{T1}, 63")
        a("s_add_u32 s12, s12, s8" if r else "s_mov_b32 s12, s8")
    p = place(7)
    for x in p[:3] + p[3]:
        a(x)
    if E("DRY", 0):
        a("s_cmp_lg_u32 s15, 0")
        a("s_cbranch_scc1 SEL_BACK")
    a("s_mov_b32 s14, 0")
    a.lab("SEL_GATHER")
    for b in range(9):
        a(f"s_mov_b32 m0, {XB + 896*b}")
        a(f"buffer_load_dwordx4 v{VO}, {sr(SX,4)}, 0 offen offset:{128*b} lds")
    a.signal(F_D, 13)
    a.stamp(4)
    a("s_cmp_lg_u32 s14, 0")
    a("s_cbranch_scc1 SEL_OK")
    TK = KD
    for k in range(32):
        a(f"v_sub_u32 v{TK+k}, v{KY+k}, v{M2}")

    def tree():
        for j in range(10):
            a(f"v_max3_u32 v{TK+3*j}, v{TK+3*j}, v{TK+3*j+1}, v{TK+3*j+2}")
        a(f"v_max3_u32 v{TK}, v{TK}, v{TK+3}, v{TK+6}")
        a(f"v_max3_u32 v{TK+9}, v{TK+9}, v{TK+12}, v{TK+15}")
        a(f"v_max3_u32 v{TK+18}, v{TK+18}, v{TK+21}, v{TK+24}")
        a(f"v_max3_u32 v{TK+27}, v{TK+27}, v{TK+30}, v{TK+31}")
        a(f"v_max3_u32 v{TK}, v{TK}, v{TK+9}, v{TK+18}")
        a(f"v_max_u32 v{TK}, v{TK}, v{TK+27}")
    tree()
    a(f"v_add_u32 v{TK}, v{TK}, v{M2}")
    a(f"v_cmp_lt_u32 vcc, s12, v{TK}")
    if E("FORCESLOW"):
        a("s_mov_b64 vcc, 1")
    a("s_cmp_eq_u64 vcc, 0")
    a("s_cbranch_scc1 SEL_OK")
    a("s_waitcnt vmcnt(0)")
    a("s_mov_b32 s12, 0")
    a("s_mov_b64 s[56:57], 0xff")
    a.lab("SEL_SLOW")
    for k in range(32):
        a(f"v_subrev_u32 v{TK+k}, s12, v{KY+k}")
    tree()
    for st in wave_max_steps(TK):
        a(st)
    a(f"v_readlane_b32 s8, v{TK}, 63")
    a("s_add_u32 s12, s12, s8")
    for x in place(0)[:3]:
        a(x)
    a("s_mov_b64 exec, s[56:57]")
    a(f"v_add_u32 v{VO}, s13, v{CH}")
    a(f"v_mov_b32 v{VK}, s12")
    a("s_mov_b64 exec, -1")
    a("s_lshl_b64 s[56:57], s[56:57], 8")
    a("s_add_u32 s14, s14, 1")
    a("s_cmp_lt_u32 s14, 8")
    a("s_cbranch_scc1 SEL_SLOW")
    a("s_branch SEL_GATHER")
    a.lab("SEL_OK")
    a("s_cmp_lg_u32 s2, 0")
    a("s_cbranch_scc1 SEL_NOPUB")
    a(f"v_mov_b32 v{VK+1}, v14")
    a(f"v_add_u32 v8, {WS_SEL}, v2")
    a("s_mov_b32 exec_lo, 0x01010101")
    a("s_mov_b32 exec_hi, 0x01010101")
    a(f"global_store_dwordx2 v8, {vr(VK,2)}, {sr(P_WS,2)} sc1")
    a("s_mov_b64 exec, 1")
    a(f"global_store_dword v8, v14, {sr(P_WS,2)} offset:{WS_BASE-WS_SEL} sc1")
    a("s_mov_b64 exec, -1")
    a("s_waitcnt vmcnt(2)")
    a("s_branch SEL_END")
    a.lab("SEL_NOPUB")
    a("s_waitcnt vmcnt(0)")
    a.lab("SEL_END")
    a("v_mov_b32 v8, 3")
    a(f"ds_write_b32 v1, v8 offset:{F_XR}")
    a.stamp(5)
    a.end()


def ffn_loader(a):
    a.lab("F_LOAD")
    a("s_setprio 3")
    SG, SU, SD = 52, 56, 60
    a("s_sub_u32 s12, s3, 9")
    a("v_lshrrev_b32 v5, 3, v2")
    a("v_bfe_u32 v6, v2, 4, 1")
    a("v_xor_b32 v6, v6, v2")
    a("v_and_b32 v6, 7, v6")
    a("s_movk_i32 s8, 9216")
    a("v_mul_lo_u32 v7, v5, s8")
    a("v_lshl_add_u32 v8, v6, 4, v7")
    a("v_xor_b32 v9, 32, v8")
    a("v_xor_b32 v10, 64, v8")
    a("v_xor_b32 v11, 96, v8")
    a("v_bfe_u32 v6, v2, 4, 1")
    a("v_lshlrev_b32 v6, 1, v6")
    a("v_xor_b32 v6, v6, v2")
    a("v_and_b32 v6, 7, v6")
    a("v_mul_u32_u24 v7, 1152, v5")
    a("v_lshl_add_u32 v12, v6, 4, v7")
    a("v_xor_b32 v13, 64, v12")
    a("s_mul_i32 s13, s12, 294912")
    a("s_lshl_b32 s8, s7, 7")
    a("s_add_u32 s13, s13, s8")
    a("s_lshl_b32 s15, s12, 13")
    a(f"s_add_u32 s15, s15, {WA}")
    a("s_mul_i32 s14, s12, 24576")
    a(f"s_add_u32 s14, s14, {WB}")
    a("s_mul_i32 s11, s7, 73728")
    a("s_mul_i32 s8, s12, 384")
    a("s_add_u32 s11, s11, s8")
    a("s_waitcnt lgkmcnt(0)")
    srd(a, SG, P_WG, 5308416)
    srd(a, SU, P_WU, 5308416)
    srd(a, SD, P_WD, 5308416)
    bulk_gate(a, 14)
    n = 0
    sig = 0

    def pre():
        nonlocal sig
        if n == E("W1", 99):
            a.spin(F_PI, 1, 14, sleep=1)
        if n == E("W0", 99):
            a.spin(F_NONCE, 0, 14, op="lg", sleep=1)
        if n >= WIN_F:
            a(f"s_waitcnt vmcnt({WIN_F-1})")
        if sig < 6 and n - WIN_F + 1 >= 8 * (sig + 1):
            a.signal(F_L + 4 * sig, 14)
            if sig in (0, 2, 5):
                a.stamp(1 + sig // 2)
            sig += 1
    for c in range(6):
        if c >= 3:
            a.spin(F_AC + 4 * (c - 3), 4, 14)
        for R in range(4):
            for mu in range(2):
                pre()
                a(f"s_add_u32 m0, s15, {(c%3)*24576 + R*2048 + mu*1024}")
                if not NOW:
                    a(f"buffer_load_dwordx4 v{8+2*mu+(R&1)}, {sr(SU if mu else SG,4)}, s13 offen {WNT} lds")
                n += 1
            a(f"s_add_u32 s13, s13, {73728 if R < 3 else 73728*9}")
    a.signal(F_D, 14)
    a.stamp(4)
    while sig < 6:
        a(f"s_waitcnt vmcnt({48 - 8*(sig+1)})")
        a.signal(F_L + 4 * sig, 14)
        sig += 1
    a.stamp(3)
    a("s_cmp_eq_u32 s3, 9")
    a("s_cbranch_scc1 F_COMP2")
    a.end()


def ffn_comp(a):
    a.lab("F_COMP")
    a.b0()
    a.lab("F_COMP2")
    a("s_and_b32 s12, s3, 3")
    a("v_lshrrev_b32 v5, 2, v3")
    a("v_bfe_u32 v7, v3, 3, 1")
    a("v_and_b32 v13, 1, v4")
    a("v_lshl_or_b32 v14, v13, 1, v7")
    a("v_and_b32 v15, 7, v3")
    a(f"v_mul_u32_u24 v16, {HS}, v15")
    a(f"v_add_u32 v16, {HB}, v16")
    a("s_mov_b32 s56, 0xff00ff00")
    a("s_mov_b32 s57, 0xff00ff00")
    a("s_lshr_b32 s8, s3, 2")
    a("s_cmp_lg_u32 s8, 1")
    a("s_cbranch_scc1 F_DOWN")
    WF, AG = 24, 8
    a("v_bfe_u32 v6, v3, 1, 1")
    a("v_lshl_or_b32 v8, v6, 2, v14")
    a("v_xor_b32 v8, s12, v8")
    a("v_lshlrev_b32 v8, 4, v8")
    a("v_lshl_add_u32 v8, v5, 7, v8")
    a("v_lshl_add_u32 v8, v6, 10, v8")
    a("v_lshl_add_u32 v8, v4, 11, v8")
    a("v_and_b32 v9, 1, v3")
    a("v_lshl_add_u32 v8, v9, 3, v8")
    a("v_xor_b32 v9, 64, v8")
    a(f"v_add_u32 v10, {WA+49152}, v8")
    a(f"v_add_u32 v11, {WA+49152}, v9")
    a("v_lshlrev_b32 v6, 2, v13")
    a("v_lshrrev_b32 v5, 1, v4")
    a("v_add_u32 v6, v6, v5")
    a("v_lshl_add_u32 v6, v7, 5, v6")
    a("s_lshl_b32 s8, s12, 3")
    a("v_add_lshl_u32 v6, v6, s8, 1")
    a("v_add_u32 v5, v6, v16")
    a("v_and_b32 v6, 6, v3")
    a("v_xor_b32 v6, v6, v4")
    a("v_lshlrev_b32 v6, 4, v6")
    a("v_lshl_add_u32 v6, v15, 7, v6")
    a(f"v_add_u32 v6, {XB}, v6")
    a("v_xor_b32 v7, 64, v6")
    for c in range(6):
        a.spin(F_L + 4 * c, 3, 12, sleep=E("CSL", 1))
        if c in (2, 5):
            a.stamp(2 + c // 3)
        for s in range(3):
            for t in range(2):
                base, off = (8 + t, WA + (c % 3) * 24576 + s * 8192) if c % 3 < 2 else (10 + t, s * 8192)
                r = WF + 8 * (3 * c + s) + 4 * t
                a(f"ds_read_b64_tr_b16 {vr(r,2)}, v{base} offset:{off}")
                a(f"ds_read_b64_tr_b16 {vr(r+2,2)}, v{base} offset:{off+512}")
        if c < 3:
            a("s_waitcnt lgkmcnt(0)")
            a.signal(F_AC + 4 * c, 12)
    a("s_setprio 3")
    a.spin(F_XR, 1, 12)
    a.stamp(4)
    a.auto(True)
    xs = lambda s: 16 + 4 * s
    def xrd(s):
        a(f"ds_read_b128 {vr(xs(s),4)}, v{7 if s&1 else 6} offset:{1024*(s>>1)}")
    xrd(0); xrd(1)
    nx = 2
    for s in range(18):
        for t in range(2):
            a(f"v_mfma_f32_16x16x32_bf16 {vr(AG+4*t,4)}, {vr(WF+8*s+4*t,4)}, {vr(xs(s),4)}, {vr(AG+4*t,4) if s else 0}")
            if nx < 18 and xs(nx) + 4 <= WF + 8 * s + 4 * t + 4:
                xrd(nx); nx += 1
    a.auto(False)
    a.stamp(8)
    for r in range(4):
        a(f"v_cndmask_b32 v{AG+r}, v{AG+r}, v{AG+4+r}, s[56:57]")
    a(f"v_permlane32_swap_b32 v{AG}, v{AG+1}")
    a(f"v_permlane32_swap_b32 v{AG+2}, v{AG+3}")
    for op in ("v_cvt_pk_bf16_f32 v{u}, v{g}, v{u}", "v_lshlrev_b32 v{g}, 16, v{u}", "v_mul_f32 v{t}, 0xbfb8aa3b, v{g}", "v_exp_f32 v{t}, v{t}",
               "v_and_b32 v{u}, 0xffff0000, v{u}", "v_add_f32 v{t}, 1.0, v{t}", "v_rcp_f32 v{t}, v{t}", "v_mul_f32 v{g}, v{g}, v{t}",
               "v_cvt_pk_bf16_f32 v{g}, v{g}, v{g}", "v_and_b32 v{g}, 0xffff0000, v{g}", "v_mul_f32 v{g}, v{g}, v{u}"):
        for p in range(2):
            a(op.format(g=AG + 2 * p, u=AG + 2 * p + 1, t=AG + 4 + p))
    a(f"v_cvt_pk_bf16_f32 v{AG}, v{AG}, v{AG+2}")
    a(f"ds_write_b16 v5, v{AG}")
    a(f"ds_write_b16_d16_hi v5, v{AG} offset:4")
    a.signal(F_HR, 12)
    a.stamp(5)
    a.end()
    a.lab("F_DOWN")
    RW, DF, AC, HF = 24, 56, 120, 152
    a("v_lshl_add_u32 v10, v4, 4, v16")
    a(f"v_mov_b32 v18, {HB+8*HS}")
    a("v_cndmask_b32 v19, v18, v10, s[56:57]")
    a("v_cndmask_b32 v18, v10, v18, s[56:57]")
    a("v_and_b32 v20, 31, v2")
    a("v_lshlrev_b32 v20, 2, v20")
    a(f"v_add_u32 v20, {HB+8*HS}, v20")
    a("ds_write_b32 v20, v1")
    a("v_mul_u32_u24 v8, 9216, v4")
    a("s_mul_i32 s13, s7, 73728")
    for j in range(4):
        a(f"s_mov_b32 s{60+j}, {0x07060500+j:#x}")
    a("s_mov_b32 s64, 0x05040100")
    a("s_mov_b32 s65, 0x07060302")
    a("s_lshl_b32 s14, s7, 7")
    a(f"s_add_u32 s14, s14, {WS_MB}")
    a("v_lshl_add_u32 v11, v15, 4, s14")
    a("s_waitcnt lgkmcnt(0)")
    srd(a, 52, P_WS, WS_SIZE)
    srd(a, 68, P_WD, 5308416)
    a("s_cmp_eq_u32 s3, 9")
    a("s_cbranch_scc1 F_DN2")

    def down(nd):
        nf = 2 * nd
        raw = lambda q, e: (RW if q == 0 else 88) + nd * e
        frg = lambda q, j: (DF if q == 0 else RW) + 4 * j
        for q in range(2):
            for e in range(8):
                if nd == 4 and E("DE", 4) and 8 * q + e == E("DE", 4):
                    a.spin(F_D, 4, 12, sleep=1)
                if not NOW:
                    a(f"buffer_load_dword{'x4' if nd == 4 else 'x2'} {vr(raw(q,e),nd)}, v8, s[68:71], s13 offen offset:{1152*(e&3)}")
                if e & 3 == 3:
                    a(f"s_add_u32 s13, s13, {4608 if e == 3 else 36864-4608}")
        def perms(q, p):
            a(f"s_waitcnt vmcnt({14 - 8*q - 2*p})")
            for j in range(nf):
                a(f"v_perm_b32 v{frg(q,j)+p}, v{raw(q,2*p+1)+(j>>1)}, v{raw(q,2*p)+(j>>1)}, s{64+(j&1)}")

        def mms(q):
            for j in range(nf):
                if nd == 4:
                    c = vr(AC + 4 * (j & 3), 4)
                    a(f"v_mfma_f32_16x16x32_bf16 {c}, {vr(frg(q,j),4)}, {vr(HF+8*(j>>2)+4*q,4)}, {c if q or j > 3 else 0}")
                else:
                    a(f"v_mfma_f32_16x16x32_bf16 {vr(AC+4*j,4)}, {vr(frg(q,j),4)}, {vr(HF+4*q,4)}, {vr(AC+4*j,4) if q else 0}")
        for q, p in [(0, 0), (0, 1), (0, 2), (0, 3), (1, 0), (1, 1)]:
            perms(q, p)
        a.spin(F_HR, 4, 12)
        a.stamp(5)
        for q in range(2):
            if nd == 4:
                a(f"ds_read_b128 {vr(HF+4*q,4)}, v18 offset:{64*q}")
                a(f"ds_read_b128 {vr(HF+8+4*q,4)}, v19 offset:{64*q}")
            else:
                a(f"ds_read_b128 {vr(HF+4*q,4)}, v10 offset:{64*q}")
        a(f"s_waitcnt lgkmcnt({nd//2})")
        mms(0)
        a("s_waitcnt lgkmcnt(0)")
        perms(1, 2)
        perms(1, 3)
        a.stamp(4)
        mms(1)
        O = 88
        for r in range(nd):
            for j in range(4):
                if nd == 4:
                    a(f"v_perm_b32 v{O+4*r+j}, v{AC+4*j+r}, v17, s{60+j}")
                else:
                    a(f"v_cndmask_b32 v{O+4*r+j}, v{AC+4*j+2*r}, v{AC+4*j+2*r+1}, s[56:57]")
            if nd == 2:
                for j in range(4):
                    a(f"v_perm_b32 v{O+4*r+j}, v{O+4*r+j}, v17, s{60+j}")
            a(f"s_mov_b32 s12, {18432*r}")
            a(f"buffer_store_dwordx4 {vr(O+4*r,4)}, v11, s[52:55], s12 offen sc1")
        a.stamp(6)
        a.end()
    a("v_lshl_add_u32 v8, v3, 4, v8")
    a("s_lshl_b32 s8, s3, 8")
    a("s_add_u32 s13, s13, s8")
    a("s_lshl_b32 s8, s3, 5")
    a("v_lshl_add_u32 v6, v4, 3, v7")
    a("v_add_u32 v6, s8, v6")
    a("v_mul_u32_u24 v6, 9216, v6")
    a("v_add_u32 v11, v6, v11")
    a.spin(F_X, 0, 17, op="lg", sleep=2)
    if SPB:
        a("s_mul_i32 s8, s7, 73728")
        a(f"s_mul_i32 s9, s3, {SPB*15*128}")
        a("s_add_u32 s8, s8, s9")
        a(f"s_add_u32 s72, s{P_WD}, s8")
        a(f"s_addc_u32 s73, s{P_WD+1}, 0")
        a("s_mov_b32 s9, 0")
        a.lab("F_SP")
        for i in range(15):
            a(f"s_load_dword s74, s[72:73], {128*i}")
        a("s_add_u32 s72, s72, 1920")
        a("s_addc_u32 s73, s73, 0")
        a("s_add_u32 s9, s9, 1")
        a("s_waitcnt lgkmcnt(0)")
        a(f"s_cmp_lt_u32 s9, {SPB}")
        a("s_cbranch_scc1 F_SP")
        a.stamp(2)
    a.spin(F_D, 3 if E("DE", 4) else 4, 12, sleep=1)
    a("s_setprio 2")
    down(4)
    a.lab("F_DN2")
    a("v_lshl_add_u32 v8, v3, 3, v8")
    a("s_add_u32 s13, s13, 1024")
    a("v_lshl_add_u32 v6, v4, 2, v7")
    a("v_add_u32 v6, 128, v6")
    a("v_mul_u32_u24 v6, 9216, v6")
    a("v_add_u32 v11, v6, v11")
    a.spin(F_X, 0, 17, op="lg")
    down(2)


def relay(a):
    a.lab("RELAY")
    a(f"s_sub_u32 s12, s5, {NJF}")
    a("s_lshl_b32 s12, s12, 3")
    a("s_add_u32 s12, s12, s4")
    a("s_cmp_ge_u32 s12, 32")
    a("s_cbranch_scc1 RL_END")
    a("s_cmp_gt_u32 s3, 8")
    a("s_cselect_b32 s13, 3, 2")
    a("s_sub_u32 s13, s3, s13")
    a("s_lshl_b32 s8, s13, 18")
    a("s_lshl_b32 s9, s12, 9")
    a("s_add_u32 s8, s8, s9")
    a(f"s_add_u32 s8, s8, {WS_Y}")
    a("v_lshrrev_b32 v5, 5, v2")
    a("v_and_b32 v6, 31, v2")
    a("v_lshlrev_b32 v7, 14, v5")
    a("v_lshl_add_u32 v7, v6, 4, v7")
    a("v_add_u32 v16, s8, v7")
    for k in range(1, 8):
        a(f"v_add_u32 v{16+k}, {32768*k}, v16")
    RS = 144
    a(f"s_mul_i32 s14, s13, {32*RS}")
    a("s_add_u32 s14, s14, 256")
    a(f"v_mul_u32_u24 v7, {RS}, v6")
    a("v_lshl_add_u32 v7, v5, 3, v7")
    a("v_add_u32 v7, s14, v7")
    a("v_lshrrev_b32 v5, 3, v2")
    a("v_and_b32 v6, 7, v2")
    a(f"v_mul_u32_u24 v8, {RS}, v5")
    a("v_lshl_add_u32 v8, v6, 4, v8")
    a("v_add_u32 v8, s14, v8")
    a("v_mul_u32_u24 v9, 1152, v5")
    a("v_lshl_add_u32 v9, v6, 4, v9")
    a("s_mul_i32 s8, s12, 36864")
    a("s_lshl_b32 s9, s13, 7")
    a("s_add_u32 s8, s8, s9")
    a("v_add_u32 v9, s8, v9")
    a("s_lshl_b32 s8, s12, 5")
    a("s_sub_u32 s8, 2047, s8")
    a("v_sub_u32 v11, s8, v5")
    a("v_lshlrev_b32 v12, 3, v6")
    a(f"v_add_u32 v12, {WS_SEL}, v12")
    a.spin(F_X, 0, 10, op="lg", sleep=4)
    a("s_mov_b32 s9, 0")
    a.lab("RL_S")
    a("s_sleep 8")
    a(f"global_load_dwordx2 v[14:15], v12, {sr(P_WS,2)} sc1")
    a("s_waitcnt vmcnt(0)")
    a("v_cmp_ne_u32 vcc, v15, v10")
    a("s_add_u32 s9, s9, 1")
    a("s_cmp_eq_u64 vcc, 0")
    a("s_cbranch_scc1 RL_SD")
    a(f"s_cmp_lt_u32 s9, {SPIN}")
    a("s_cbranch_scc1 RL_S")
    a.lab("RL_SD")
    a.stamp(2)
    a("v_and_b32 v14, 0x7ff, v14")
    for i in range(4):
        a(f"v_subrev_u32 v13, {8*i}, v11")
        a("v_cmp_eq_u32 vcc, v13, v14")
        a("v_cndmask_b32 v13, 0, -1, vcc")
        a(f"v_or_b32_dpp v13, v13, v13 quad_perm:[1,0,3,2] {DPPF}")
        a(f"v_or_b32_dpp v13, v13, v13 quad_perm:[2,3,0,1] {DPPF}")
        a(f"v_or_b32_dpp v13, v13, v13 row_half_mirror {DPPF}")
        a(f"v_cmp_eq_u32 s[{56+2*i}:{57+2*i}], 0, v13")
    if E("YD", 8):
        a(f"s_sleep {E('YD', 8)}")
    a("s_mov_b32 s9, 0")
    a.lab("RL_P")
    for k in range(8):
        a(f"global_load_dwordx4 {vr(24+4*k,4)}, v{16+k}, {sr(P_WS,2)} sc1")
    for k in range(8):
        a(f"s_waitcnt vmcnt({7-k})")
        a("v_xor_b32 v13, v26, v10" if k == 0 else f"v_bitop3_b32 v13, v13, v{26+4*k}, v10 bitop3:0xf6")
        a(f"ds_write_b64 v7, {vr(24+4*k,2)} offset:{16*k}")
    a("v_cmp_ne_u32 vcc, 0, v13")
    a("s_add_u32 s9, s9, 1")
    a("s_cmp_eq_u64 vcc, 0")
    a("s_cbranch_scc1 RL_PD")
    a("s_waitcnt lgkmcnt(0)")
    a(f"s_cmp_lt_u32 s9, {SPIN}")
    a("s_cbranch_scc1 RL_P")
    a.lab("RL_PD")
    a.stamp(3)
    if STAMP:
        a("s_mov_b32 s94, s9")
        a("s_waitcnt lgkmcnt(0)")
    for i in range(4):
        a(f"ds_read_b128 {vr(56+4*i,4)}, v8 offset:{8*RS*i}")
    for i in range(4):
        a(f"s_waitcnt lgkmcnt({3-i})")
        a(f"s_mov_b64 exec, s[{56+2*i}:{57+2*i}]")
        a(f"s_cbranch_execz RL_N{i}")
        a(f"global_store_dwordx4 v9, {vr(56+4*i,4)}, {sr(P_OUT,2)}")
        a.lab(f"RL_N{i}")
        a("s_mov_b64 exec, -1")
        a("v_add_u32 v9, 9216, v9")
    if STAMP:
        a("s_waitcnt vmcnt(0)")
    a.lab("RL_END")
    a.end()


def helper(a):
    a.lab("HELPER")
    if not HPN:
        a.end()
        return
    a(f"s_cmp_ge_u32 s3, {2+HPW}")
    a("s_cbranch_scc1 " + ("RELAY" if YX else "K_END"))
    a("s_and_b32 s12, s3, 1")
    a("s_sub_u32 s13, s3, 2")
    a("s_lshr_b32 s13, s13, 1")
    a("s_mul_i32 s13, s13, 5")
    a("s_add_u32 s13, s13, s5")
    a(f"s_add_u32 s13, s13, {(HPS-NJF) & 0xffffffff}")
    prefetch(a, HPN, E("HH", 0))
    if STAMP or YX:
        a("s_waitcnt vmcnt(0)")
        a.stamp(1)
    if YX:
        relay(a)
    else:
        a.end()


DSK, EXPN = 166, 167
PA, PB, A16, PC, PD, A32, E2, EF = 104, 108, 112, 116, 120, 124, 128, 152


def cmul(a, d, x, y):
    a(f"v_pk_mul_f32 {vr(d,2)}, {vr(x,2)}, {vr(y,2)} op_sel:[0,0] op_sel_hi:[0,1]")
    a(f"v_pk_fma_f32 {vr(d,2)}, {vr(x,2)}, {vr(y,2)}, {vr(d,2)} op_sel:[1,1,0] op_sel_hi:[1,0,1] neg_lo:[0,1,0]")


def kgen_head(a):
    a.lab("C_KGEN")
    a.fine(6)
    PR = 16
    a("s_and_b32 s12, s3, 3")
    a("s_lshr_b32 s13, s3, 2")
    a("s_lshl_b32 s14, s7, 2")
    a("s_add_u32 s14, s14, s12")
    a("s_lshl_b32 s8, s14, 8")
    a("s_lshl_b32 s9, s13, 7")
    a("s_add_u32 s8, s8, s9")
    a("v_lshl_add_u32 v5, v2, 1, s8")
    for k in range(6):
        a(f"v_mov_b32 v{PR+k}, 0")
    a("s_lshl_b32 s55, s7, 3")
    a("s_setprio 2")
    a(f"s_mul_i32 s15, s3, {KTS}")
    a(f"s_add_u32 s15, s15, {KT}")
    a(f"s_mul_i32 s52, s12, {4*CS}")
    a(f"s_add_u32 s52, s52, {KC}")
    a(f"s_mul_i32 s53, s12, {US}")
    a(f"s_add_u32 s53, s53, {UP}")
    a(f"v_mul_u32_u24 v7, {TS}, v3")
    a("v_lshl_add_u32 v7, v4, 4, v7")
    a("v_add_u32 v7, s15, v7")
    a("s_mov_b32 m0, s15")
    a("s_waitcnt lgkmcnt(0)")
    a.fine(7)
    a(f"s_load_dwordx2 s[58:59], {sr(P_LDT,2)}, s55")
    for k, p in enumerate([P_ARE, P_AIM, P_BRE, P_BIM, P_CRE, P_CIM]):
        a(f"global_load_short_d16_hi v{PR+k}, v5, {sr(p,2)}")
    a(f"s_load_dwordx2 s[68:69], {sr(P_DSK,2)}, s55")
    a.b0()
    a("s_branch C_KBODY")


def kgen(a):
    a.lab("C_KBODY")
    PR = 16
    a.lab("C_SETD")
    a.fine(8)
    a("s_waitcnt lgkmcnt(0)")
    a.auto(True)
    a("s_lshl_b32 s8, s12, 4")
    a("s_lshr_b64 s[58:59], s[58:59], s8")
    a("s_lshl_b32 s8, s58, 16")
    a("v_mov_b32 v44, s8")
    a(f"v_mul_f32 v45, {L2E:#x}, v44")
    a(f"v_mov_b32 v46, {L2E:#x}")
    a("v_fma_f32 v46, v44, v46, -v45")
    a(f"v_mov_b32 v47, {L2E_LO:#x}")
    a("v_fma_f32 v46, v44, v47, v46")
    a("v_exp_f32 v45, v45")
    a(f"v_mul_f32 v46, {LN2:#x}, v46")
    a("v_fma_f32 v45, v45, v46, v45")
    a("v_cvt_pk_bf16_f32 v45, v45, v45")
    DT, DTL, DTR = 36, 37, 38
    a(f"v_and_b32 v{DT}, 0xffff0000, v45")
    a(f"v_mul_f32 v{DTL}, {L2E:#x}, v{DT}")
    a(f"v_mul_f32 v{DTR}, {INV2PI:#x}, v{DT}")
    a("s_waitcnt vmcnt(0)")
    a.stamp(1)
    if STAMP and E("CLK2"):
        a("s_memtime s[90:91]")
    ZR, ZI, WR = 40, 41, 42
    a(f"v_mul_f32 v{ZR}, v{PR}, v{DTL}")
    a(f"v_mul_f32 v{ZI}, v{PR+1}, v{DTR}")
    T0 = 24

    def direct(dst, c):
        if c != 1:
            a(f"v_mul_f32 v{dst}, {fbits(c):#x}, v{ZR}")
            a(f"v_mul_f32 v{dst+1}, {fbits(c):#x}, v{ZI}")
        a(f"v_exp_f32 v{T0}, v{dst if c != 1 else ZR}")
        a(f"v_fract_f32 v{dst+1}, v{dst+1 if c != 1 else ZI}")
        a(f"v_cos_f32 v{dst}, v{dst+1}")
        a(f"v_sin_f32 v{dst+1}, v{dst+1}")
        a(f"v_mul_f32 v{dst}, v{T0}, v{dst}")
        a(f"v_mul_f32 v{dst+1}, v{T0}, v{dst+1}")
    PW, R1 = 46, 44
    pc = lambda c: PW + 2 * (c - 1)
    direct(pc(1), 1)
    a(f"v_mul_f32 v{PR+2}, v{PR+2}, v{DT}")
    a(f"v_mul_f32 v{PR+3}, v{PR+3}, v{DT}")
    cmul(a, WR, PR + 4, PR + 2)
    a(f"v_max_f32 v39, |v{WR}|, |v{WR+1}|")
    side = wave_max_steps(39) + ["v_readlane_b32 s8, v39, 63"]
    OT = [26, 27, 28, 29]
    cnt = [0]

    pend = []

    def flush():
        while pend:
            a(pend.pop(0))

    def emit(row, x):
        o = OT[cnt[0] % 4]
        cnt[0] += 1
        flush()
        a(f"v_cvt_pk_f16_f32 v{o}, v{x}, v{x+1}")
        pend.append(f"ds_write_addtid_b32 v{o} offset:{row*TS}")
    cmul(a, pc(2), pc(1), pc(1))
    cmul(a, pc(4), pc(2), pc(2))
    Q1, QA, QB = 60, 62, 64
    cmul(a, Q1, pc(4), pc(4))
    a(f"v_mov_b32 v30, 0x3c00")
    a(f"v_xor_b32 v{Q1+1}, 0x80000000, v{Q1+1}")
    a("ds_write_addtid_b32 v30")
    emit(1, Q1)
    cur, nxt = Q1, QA
    for b in range(2, 16):
        cmul(a, nxt, cur, Q1)
        if side:
            a(side.pop(0))
        emit(b, nxt)
        cur, nxt = nxt, (QB if nxt == QA else QA)
    a("s_lshr_b32 s8, s8, 23")
    a("s_sub_u32 s8, 258, s8")
    a("s_min_u32 s54, s8, 253")
    a("s_lshl_b32 s8, s54, 23")
    a(f"v_mul_f32 v{WR}, s8, v{WR}")
    a(f"v_mul_f32 v{WR+1}, s8, v{WR+1}")
    QF, PF, KA = 72, 88, 104
    flush()
    for ks in range(4):
        a(f"ds_read_b128 {vr(QF+4*ks,4)}, v7 offset:{64*ks}")
    direct(R1, 128)
    cmul(a, pc(3), pc(2), pc(1)); cmul(a, pc(5), pc(4), pc(1)); cmul(a, pc(6), pc(3), pc(3)); cmul(a, pc(7), pc(6), pc(1))
    CH = [66, 68]
    YC = [60, 62]
    state = {"cur": WR, "k": 0, "y": 0}

    def adv():
        n = CH[state["k"] & 1]
        cmul(a, n, state["cur"], R1)
        state["cur"] = n; state["k"] += 1

    def row(r, c):
        if c == 0:
            emit(r, state["cur"])
        else:
            y = YC[state["y"] & 1]; state["y"] += 1
            cmul(a, y, state["cur"], pc(c))
            emit(r, y)

    def rd():
        flush()
        for ks in range(4):
            a(f"ds_read_b128 {vr(PF+4*ks,4)}, v7 offset:{64*ks}")

    def mm(t, ks):
        a(f"v_mfma_f32_16x16x32_f16 {vr(KA+4*t,4)}, {vr(PF+4*ks,4)}, {vr(QF+4*ks,4)}, {vr(KA+4*t,4) if ks else 0}")
    for h in range(2):
        for c in range(8):
            row(8 * h + c, c)
        adv()
    rd()
    for h in range(2):
        for c in range(4):
            row(4 * h + c, 2 * c)
            if h == 1:
                mm(0, c)
        adv()
    for q in range(4):
        row(8 + 2 * q, 0); row(9 + 2 * q, 4)
        adv()
    rd()
    for q in range(9):
        row(q, 0)
        if q < 8:
            adv()
        if 4 <= q < 8:
            mm(1, q - 4)
    rd()
    a("v_lshl_add_u32 v8, v2, 4, s15")
    for ks in range(4):
        mm(2, ks)
    a.auto(False)
    a.stamp(2)
    if STAMP and E("CLK2"):
        a("s_memtime s[96:97]")
    a("s_lshl_b32 s8, s12, 2")
    a(f"s_add_u32 s8, s8, {F_PAIR}")
    a("v_mov_b32 v9, s8")
    a("s_cmp_eq_u32 s13, 0")
    a("s_cbranch_scc1 C_KA")
    for t in range(3):
        a(f"ds_write_b128 v8, {vr(KA+4*t,4)} offset:{1024*t}")
    a("v_mov_b32 v10, s54")
    a("ds_write_b32 v9, v10")
    a.stamp(3)
    a("s_setprio 0")
    a("v_and_b32 v14, 3, v3")
    a("v_sub_u32 v14, 3, v14")
    a(f"v_mul_u32_u24 v14, {CS}, v14")
    a("v_lshrrev_b32 v13, 2, v3")
    a("v_lshl_add_u32 v13, v4, 1, v13")
    a("v_lshl_add_u32 v14, v13, 3, v14")
    a("v_add3_u32 v5, v14, s52, 8")
    a("v_lshlrev_b32 v14, 1, v3")
    a("v_sub_u32 v14, v4, v14")
    a("v_lshlrev_b32 v14, 4, v14")
    a(f"s_add_u32 s8, s53, {4064-512*7}")
    a("v_add_u32 v6, s8, v14")
    a("v_lshl_add_u32 v14, v3, 2, v4")
    a(f"s_mul_i32 s8, s12, {OS}")
    a(f"s_add_u32 s8, s8, {OP+4088-512*7}")
    a("v_lshlrev_b32 v14, 3, v14")
    a("v_sub_u32 v7, s8, v14")
    a.spin(F_H, 1, 10, prio=E("BSP", 3), sleep=1)
    a.spin(f"v9 offset:{F_K-F_PAIR}", 0, 10, op="lg", sleep=E("BSS", 0))
    a.stamp(4)
    gphase(a, 0)
    a.lab("C_KA")
    a("s_setprio 1")
    a("v_and_b32 v14, 3, v3")
    a("v_sub_u32 v14, 3, v14")
    a(f"v_mul_u32_u24 v14, {CS}, v14")
    a("v_lshrrev_b32 v13, 2, v3")
    a("v_lshl_add_u32 v13, v4, 1, v13")
    a("v_lshl_add_u32 v14, v13, 3, v14")
    a("v_add3_u32 v5, v14, s52, 8")
    a("v_lshlrev_b32 v14, 1, v3")
    a("v_sub_u32 v14, v4, v14")
    a("v_lshlrev_b32 v14, 4, v14")
    a(f"s_add_u32 s8, s53, {4064-512*7}")
    a("v_add_u32 v6, s8, v14")
    a("v_lshl_add_u32 v14, v3, 2, v4")
    a(f"s_mul_i32 s8, s12, {OS}")
    a(f"s_add_u32 s8, s8, {OP+4088-512*7}")
    a("v_lshlrev_b32 v14, 3, v14")
    a("v_sub_u32 v7, s8, v14")
    a("v_lshrrev_b32 v11, 1, v4")
    a("v_and_b32 v12, 1, v4")
    a("v_lshlrev_b32 v11, 8, v11")
    a("v_lshl_add_u32 v11, v12, 3, v11")
    a("v_lshl_add_u32 v11, v3, 4, v11")
    a("v_add_u32 v11, s15, v11")
    a("v_cmp_gt_u32 vcc, 2, v4")
    a("v_lshlrev_b32 v12, 2, v3")
    a("v_lshlrev_b32 v13, 3, v3")
    a("v_cndmask_b32 v12, v12, v13, vcc")
    a("v_lshl_add_u32 v12, v4, 7, v12")
    a("v_add_u32 v12, s15, v12")
    a("v_mov_b32 v13, 64")
    a("v_cndmask_b32 v13, v13, 4, vcc")
    a("v_add_u32 v13, v13, v12")
    a("v_lshlrev_b32 v14, 1, v3")
    a("v_lshl_add_u32 v14, v4, 7, v14")
    a("v_add_u32 v14, s15, v14")
    a("v_lshlrev_b32 v15, 4, v2")
    a("v_lshlrev_b32 v16, 3, v2")
    a("v_add_u32 v16, 256, v16")
    a("v_min_u32 v15, v15, v16")
    a("v_add_u32 v15, s15, v15")
    EB, E2B = 2048, 3072
    a("v_min_u32 v16, 15, v2")
    a("v_lshl_add_u32 v16, v16, 2, s15")
    a("v_lshrrev_b32 v26, 5, v2")
    a("v_lshlrev_b32 v26, 8, v26")
    a("v_lshl_add_u32 v26, v2, 2, v26")
    a("v_add_u32 v26, s15, v26")
    a("v_lshlrev_b32 v17, 2, v4")
    a("v_sub_u32 v17, v3, v17")
    a("v_lshl_add_u32 v27, v17, 3, s15")
    a(f"v_add_u32 v27, {E2B+104}, v27")
    a("v_lshl_add_u32 v17, v17, 2, s15")
    a(f"v_add_u32 v17, {EB+52}, v17")
    a("v_lshl_add_u32 v19, v2, 4, s52")
    a("s_mov_b32 s56, 0x01000100")
    a("s_mov_b32 s57, 0x03020302")
    a("s_lshl_b32 s8, s12, 4")
    a("s_lshr_b64 s[68:69], s[68:69], s8")
    a("s_lshl_b32 s68, s68, 16")
    a("s_sub_u32 s58, 254, s54")
    a("s_lshl_b32 s58, s58, 23")
    for r in range(12):
        a(f"v_mul_f32 v{KA+r}, s58, v{KA+r}")
    a("s_mov_b64 exec, 1")
    a(f"v_add_f32 v{KA}, s68, v{KA}")
    a("s_mov_b64 exec, -1")
    for r in (3, 7, 10, 11, 14, 15):
        a(f"v_mov_b32 v{72+r}, 0")
    a("v_lshlrev_b32 v28, 4, v2")
    a(f"v_add_u32 v28, {PM}, v28")
    a.spin(F_PM, 2, 18)
    for k, r in ((2, PC), (3, PD), (4, A32)):
        a(f"ds_read_b128 {vr(r,4)}, v28 offset:{1024*k}")
    a.spin("v9", 0, 18, prio=2, op="lg")
    a("s_sub_u32 s60, 254, s8")
    a("s_lshl_b32 s60, s60, 23")
    a.auto(True)
    for t in range(3):
        a(f"ds_read_b128 {vr(PF+4*t,4)}, v8 offset:{4*KTS+1024*t}")
    for t in range(3):
        for p in range(2):
            r = 4 * t + 2 * p
            a(f"v_pk_fma_f32 {vr(KA+r,2)}, {vr(PF+r,2)}, s[60:61], {vr(KA+r,2)} op_sel_hi:[1,0,1]")
            a(f"v_cvt_pk_bf16_f32 v{20+2*t+p}, v{KA+r}, v{KA+r+1}")
        if t == 0:
            a("ds_write_b64 v11, v[20:21]")
        elif t == 1:
            a("ds_write_b32 v12, v22 offset:512")
            a("ds_write_b32 v13, v23 offset:512")
            S = 32
            for p in range(2):
                a(f"ds_read_b64 {vr(S+2*p,2)}, v15 offset:{8*p}")
    a("s_mov_b32 exec_lo, 0")
    a(f"v_alignbit_b32 v{S+3}, v{S+2}, v{S+1}, 16")
    a(f"v_perm_b32 v{S+2}, v{S+1}, v{S+1}, s56")
    a(f"v_alignbit_b32 v{S+1}, v{S+1}, v{S}, 16")
    a(f"v_perm_b32 v{S}, v{S}, v{S}, s56")
    a("s_mov_b32 exec_lo, -1")
    a(f"ds_write_b128 v19, {vr(S,4)} offset:32")
    a(f"v_mov_b32_dpp v{S-2}, v{S+2} wave_shr:1 {DPPF} bound_ctrl:0")
    a(f"v_mov_b32_dpp v{S-1}, v{S+3} wave_shr:1 {DPPF} bound_ctrl:0")
    C1, C2, C3 = 44, 52, 60
    for p in range(4):
        a(f"v_alignbit_b32 v{C1+p}, v{S+p}, v{S+p-1}, 16")
    a(f"ds_write_b128 v19, {vr(C1,4)} offset:{CS+32}")
    for p in range(4):
        a(f"v_mov_b32 v{C2+p}, v{S+p-1}")
    a(f"ds_write_b128 v19, {vr(C2,4)} offset:{2*CS+32}")
    for p in range(4):
        a(f"v_alignbit_b32 v{C3+p}, v{S+p-1}, v{S+p-2}, 16")
    a(f"ds_write_b128 v19, {vr(C3,4)} offset:{3*CS+32}")
    a("v_mov_b32 v10, 1")
    a(f"ds_write_b32 v9, v10 offset:{F_K-F_PAIR}")
    a.stamp(3)
    a(f"s_setprio {E('GPL', 3)}")
    TL = 72
    a(f"v_perm_b32 v{TL+1}, v{S+3}, v{S+3}, s57")
    a(f"v_alignbit_b32 v{TL}, v{S+3}, v{S+2}, 16")
    a(f"v_lshrrev_b32 v{TL+6}, 16, v{S+3}")
    a(f"v_mov_b32 v{TL+4}, v{S+3}")
    for r in (2, 5, 8, 9, 12):
        a(f"v_mov_b32 v{TL+r}, v{TL+1}")
    a(f"v_mov_b32 v{TL+13}, v{TL+6}")
    a("s_mov_b32 exec_lo, 0")
    for r in range(4):
        a(f"ds_write_b16{'_d16_hi' if r&1 else ''} v{12+(r>>1)}, v{22+(r>>1)} offset:{E2B-130+2*(r&1)}")
    a("s_mov_b32 exec_hi, 0x80000000")
    for j in range(4):
        a(f"ds_write_b128 v19, {vr(TL+4*(3-j),4)} offset:{j*CS+48}")
    a("s_mov_b64 exec, 1")
    a(f"ds_write_b16 v14, v24 offset:{E2B+382}")
    a("s_mov_b64 exec, -1")
    a(f"ds_write_b32 v26, v1 offset:{E2B}")
    for r in range(4):
        a(f"ds_write_b16{'_d16_hi' if r&1 else ''} v14, v{24+(r>>1)} offset:{EB+62+32*r}")
    a(f"ds_write_b32 v16, v1 offset:{EB}")
    a("v_readlane_b32 s59, v24, 0")
    a("v_mov_b32 v11, v27")
    a("v_mov_b32 v12, v17")
    a("v_mov_b32 v13, v28")
    a("s_pack_ll_b32_b16 s59, s59, s59")
    a.auto(False)
    a.spin(F_H, 2, 10, sleep=1)
    a.stamp(4)
    gphase(a, 1)


def bias_of(a, d, m):
    a(f"v_lshrrev_b32 v{d}, 7, v{m}")
    a(f"v_subrev_u32 v{d}, 26, v{d}")
    a(f"v_max_i32 v{d}, 0, v{d}")


def gphase(a, isA):
    M = "v_mfma_f32_16x16x32_bf16"
    rdA = lambda m, d: [f"ds_read_b64 {vr(d,2)}, v5 offset:{64*m}", f"ds_read_b64 {vr(d+2,2)}, v5 offset:{64*m+8}"]
    rdB = lambda b, rho, d, extra=0: f"ds_read_b128 {vr(d,4)}, v6 offset:{512*(7-b)+64*rho+extra}"
    slot = lambda t: 1024 * (t - 2) if t < 6 else 4 * KTS + 1024 * (t - 6)

    def emit(main, fill=[], per=2, skip=0):
        for x in interleave(main, fill, per=per, skip=skip):
            a(x)
    if isA:
        a(f"s_setprio {E('GPA', 1)}")
        AC = 16
        acc = lambda t: vr(AC + 4 * (t - 2), 4)
        started = set()

        def mf(t, A, B):
            c = acc(t) if t in started else "0"
            started.add(t)
            return f"{M} {acc(t)}, {vr(A,4)}, {vr(B,4)}, {c}"
        U = lambda b: 40 + 8 * (b & 1)
        Z = lambda b: 56 + 24 * (b & 1)
        urd = lambda b: [rdB(b, 0, U(b)), rdB(b, 0, U(b) + 4, 16)]
        PL = [(0, PC), (0, PD), (1, PC), (1, PD), (0, PA), (1, PB)]
        pool2 = lambda b: [f"{M} {vr(Z(b)+4*k,4)}, {vr(U(b)+4*h,4)}, {vr(P,4)}, 0" for k, (h, P) in enumerate(PL) if k < 4] + [mf(b + 2, A16, U(b))]
        pool3 = lambda b: [f"{M} {vr(Z(b)+4*k,4)}, {vr(U(b)+4*h,4)}, {vr(P,4)}, 0" for k, (h, P) in enumerate(PL) if k >= 4] + [mf(b + 4, A32, U(b))] if b < 4 else []
        cvt = lambda b, fs: [f"v_cvt_pk_bf16_f32 v{Z(b)+8*f+r}, v{Z(b)+8*f+r}, v{Z(b)+8*f+4+r}" for f in fs for r in range(4)]
        use2 = lambda b, lo, hi: [mf(b + 2 + D, Z(b) + 8 * f, E2 + 8 * D + 4 * f) for D in range(3) if lo <= b + 2 + D < min(hi, 8) for f in range(2)]
        use3 = lambda b: [mf(t, Z(b) + 16, EF + 4 * (t - b - 4)) for t in range(b + 4, 8)]
        hand = lambda t: [f"ds_write_b128 v8, {acc(t)} offset:{slot(t)}", f"v_mov_b32 v10, {t}", f"ds_write_b32 v9, v10 offset:{F_I-F_PAIR}"]
        e2rd = lambda D: [x for f in range(2) for x in (f"ds_read2_b32 {vr(E2+8*D+4*f,2)}, v11 offset0:{32*D+6+f} offset1:{32*D+4+f}",
                                                        f"ds_read2_b32 {vr(E2+8*D+4*f+2,2)}, v11 offset0:{32*D+2+f} offset1:{32*D+f}")]
        efrd = [x for D in range(4) for x in (f"ds_read2_b32 {vr(EF+4*D,2)}, v12 offset0:{16*D+3} offset1:{16*D+2}",
                                              f"ds_read2_b32 {vr(EF+4*D+2,2)}, v12 offset0:{16*D+1} offset1:{16*D}")]
        a.auto(True)
        emit(urd(0) + urd(1) + rdA(16, A16) + e2rd(0))
        for p in range(4):
            a(f"v_and_b32 v{A32+p}, s59, v{A32+p}")
        emit(pool2(0), e2rd(1) + [f"ds_read_b128 {vr(PA,4)}, v13", f"ds_read_b128 {vr(PB,4)}, v13 offset:1024"], per=1)
        emit(pool2(1), cvt(0, (0, 1)))
        emit(use2(0, 2, 4), cvt(1, (0, 1)))
        emit(use2(1, 2, 4) + pool3(0) + pool3(1), e2rd(2) + hand(2) + efrd + hand(3), per=2)
        a.auto(False)
        a.spin(F_H, 4, 10, sleep=1)
        a.auto(True)
        emit(urd(2) + urd(3) + use2(0, 4, 8) + use2(1, 4, 8), cvt(0, (2,)) + cvt(1, (2,)))
        emit(pool2(2) + use3(0) + use3(1))
        emit(pool2(3) + pool3(2), cvt(2, (0, 1)))
        emit(use2(2, 4, 8) + pool3(3), cvt(3, (0, 1)) + cvt(2, (2,)) + hand(4))
        emit(use2(3, 4, 8) + use3(2), cvt(3, (2,)) + ["s_nop 0"] * 4 + hand(5))
        emit(use3(3))
        a.auto(False)
        a.stamp(5)
        a.spin(F_H, 6, 10, sleep=1)
        a.auto(True)
        emit(urd(4) + urd(5) + pool2(4))
        emit(pool2(5), cvt(4, (0, 1)))
        emit(use2(4, 4, 8), cvt(5, (0, 1)))
        emit(use2(5, 4, 8) + hand(6) + hand(7))
        a.auto(False)
        a.stamp(7)
        a.end()
        return
    a(f"s_setprio {E('GPB', 2)}")
    AF, BF, NB = 40, 104, 6
    acc = lambda t: 16 + 4 * (t % 3)
    a(f"v_subrev_u32 v8, {4*KTS}, v8")
    a("v_cmp_eq_u32 vcc, 0, v2")
    a(f"v_mov_b32 v13, {F_O}")
    a("v_cndmask_b32 v12, 0, 1, vcc")
    a("v_lshlrev_b32 v14, 2, v2")
    a(f"v_add_u32 v14, {PM+5120}, v14")
    a("v_cndmask_b32 v13, v14, v13, vcc")
    stage = {1: 0, 3: 1, 5: 2, 6: 3, 7: 4}

    PT = 32

    def yout(t):
        o = [f"v_add_f32 v{acc(t)+r}, v{acc(t)+r}, v{PT+r}" for r in range(4)] if t >= 2 else []
        o += [f"v_cvt_pk_bf16_f32 v30, v{acc(t)+3}, v{acc(t)+2}", f"v_cvt_pk_bf16_f32 v31, v{acc(t)+1}, v{acc(t)}",
              f"ds_write_b64 v7, v[30:31] offset:{512*(7-t)}"]
        if t in stage:
            o.append(f"ds_add_u32 v13, v12 offset:{4*stage[t]}")
        return o
    bf = lambda n: BF + 4 * (n % NB)
    rdn = lambda n: rdB(n >> 3, n & 7, bf(n))
    part = lambda t: [f"ds_read_b128 {vr(PT,4)}, v8 offset:{slot(t)}"] if t >= 2 else []
    a.auto(True)
    emit(rdA(0, AF) + [rdn(0)] + rdA(8, AF + 32) + [rdn(1)] + rdA(1, AF + 4) + rdA(9, AF + 36) + [rdn(2), rdn(3)])
    for b in range(8):
        y = yout(b - 1) if b else []
        for rho in range(8):
            n = 8 * b + rho
            f0, f1 = [], []
            if b == 0 and rho < 6:
                f0, f1 = rdA(rho + 2, AF + 4 * (rho + 2)), rdA(rho + 10, AF + 32 + 4 * (rho + 2))
            if b and rho in (2, 3):
                f0, f1, y = y[:2], y[2:4], y[4:]
            if rho == 4:
                f0 = f0 + [f"ds_read_b32 v28, v1 offset:{F_H}", f"ds_read_b32 v29, v9 offset:{F_I-F_PAIR}"]
            if rho == 5:
                f0 = f0 + part(b)
            if rho == 6:
                f1 = f1 + ["v_readfirstlane_b32 s9, v29"]
            if rho == 7:
                f0 = f0 + ["v_readfirstlane_b32 s8, v28", "s_add_u32 s9, s9, 2"]
                if b < 2:
                    f1 = f1 + [f"s_cmp_lt_u32 s8, {b+2}"]
                elif b < 7:
                    f1 = f1 + ["s_min_u32 s8, s8, s9", f"s_cmp_lt_u32 s8, {b+2}"]
                else:
                    f1 = f1 + ["s_cmp_lt_u32 s9, 9"]
            if n + 4 < 64:
                f1 = [rdn(n + 4)] + f1
            a(f"{M} {vr(acc(b),4)}, {vr(AF+4*rho,4)}, {vr(bf(n),4)}, {vr(acc(b),4) if n else 0}")
            emit(f0)
            if b < 7:
                a(f"{M} {vr(acc(b+1),4)}, {vr(AF+32+4*rho,4)}, {vr(bf(n),4)}, {vr(acc(b+1),4) if rho else 0}")
            emit(f1)
        a(f"s_cbranch_scc1 C_SLOW{b}")
        a.lab(f"KEEP_P{b}")
        if b == 3:
            a.stamp(5)
            if STAMP and E("CLK"):
                a("s_memtime s[82:83]")
    a.stamp(6)
    if STAMP and E("CLK"):
        a("s_memtime s[84:85]")
    emit(yout(7))
    a.auto(False)
    a.stamp(7)
    a(f"ds_read_b32 v10, v1 offset:{F_X}")
    a("s_cmp_eq_u32 s3, 4")
    a("s_cbranch_scc1 C_FIN")
    a.end()
    for b in range(8):
        a.lab(f"C_SLOW{b}")
        if b < 7:
            a.spin(F_H, b + 2, 28)
        if b >= 2:
            a.spin(f"v9 offset:{F_I-F_PAIR}", b, 28)
        for x in part(b) + ([rdn(8 * b + 8 + k) for k in range(4)] if b < 7 else []):
            a(x)
        a("s_waitcnt lgkmcnt(0)")
        a(f"s_branch KEEP_P{b}")


XD, GD = 40, 56
VX, VY, VG, VO = 72, 73, 74, 78


def epi_setup(a):
    srd(a, 60, P_OUT, 2359296)
    a("v_bfe_u32 v79, v2, 2, 2")
    a("v_and_b32 v80, 3, v2")
    a("v_lshl_add_u32 v80, v4, 2, v80")
    a("s_lshl_b32 s8, s12, 7")
    for d, base, stride in ((VX, UP, US), (VY, OP, OS)):
        a(f"v_mul_u32_u24 v{d}, {stride}, v79")
        a(f"v_lshl_add_u32 v{d}, v80, 3, v{d}")
        a(f"s_sub_u32 s9, {base+3968-512*7}, s8")
        a(f"v_add_u32 v{d}, s9, v{d}")
    a("v_xor_b32 v79, 63, v2")
    a("s_lshl_b32 s8, s12, 9")
    a(f"s_add_u32 s8, s8, {WS_G}")
    a(f"v_lshl_add_u32 v{VG}, v79, 3, s8")
    for k in range(1, 4):
        a(f"v_add_u32 v{VG+k}, {4096*k}, v{VG}")
    a(f"v_mul_u32_u24 v{VO}, 1152, v79")
    a(f"v_add_u32 v{VO}, s55, v{VO}")
    a("s_mul_i32 s68, s12, 73728")
    if YX:
        a(f"s_add_u32 s68, s68, {4*294912}")
        a("s_lshl_b32 s8, s7, 14")
        a("s_lshl_b32 s9, s12, 10")
        a("s_add_u32 s8, s8, s9")
        a(f"s_add_u32 s8, s8, {WS_Y}")
        a("v_lshl_add_u32 v81, v79, 4, s8")
        for k in range(1, 4):
            a(f"v_add_u32 v{81+k}, {4096*k}, v81")
    a("s_mov_b32 s70, 0x05040100")
    a("s_mov_b32 s71, 0x07060302")


def epi_x(a, ks):
    for k in ks:
        a(f"ds_read_b64_tr_b16 {vr(XD+2*k,2)}, v{VX} offset:{512*(7-k)}")


def epi_g(a):
    l = a.uid("GP")
    a("s_mov_b32 s9, 0")
    a.lab(l)
    a(f"v_xor_b32 v14, v{GD+1}, v10")
    for k in range(1, 8):
        a(f"v_bitop3_b32 v14, v14, v{GD+2*k+1}, v10 bitop3:0xf6")
    a("v_cmp_ne_u32 vcc, 0, v14")
    a("s_add_u32 s9, s9, 1")
    a("s_cmp_eq_u64 vcc, 0")
    a(f"s_cbranch_scc1 {l}_D")
    a(f"s_cmp_ge_u32 s9, {SPIN}")
    a(f"s_cbranch_scc1 {l}_D")
    epi_gl(a)
    a("s_waitcnt vmcnt(0)")
    a(f"s_branch {l}")
    a.lab(l + "_D")


def epi_gl(a):
    for k in range(8):
        a(f"global_load_dwordx2 {vr(GD+2*k,2)}, v{VG+(k>>1)}, {sr(P_WS,2)} offset:{2048*(k&1)} sc1")


TX = 120


def epi_unp(a, ks):
    for k in ks:
        if k < NF:
            for p in range(2):
                a(f"v_lshlrev_b32 v{TX+4*k+2*p}, 16, v{XD+2*k+p}")
                a(f"v_and_b32 v{TX+4*k+2*p+1}, 0xffff0000, v{XD+2*k+p}")


def epi_mul(a, ks):
    for k in ks:
        if k < NF:
            a(f"v_and_b32 v{16+(k&3)}, 0xffff0000, v{GD+2*k}")
            a(f"v_lshlrev_b32 v{GD+2*k+1}, 16, v{GD+2*k}")
            for c in range(4):
                a(f"v_mul_f32 v{TX+4*k+c}, v{TX+4*k+c}, v{16+(k&3)}")


def epi_fin(a, ks, stage):
    a.spin(F_O + 4 * stage, 4, 15, sleep=E("OSL", 1), prio=E("IOP", 3))
    a.auto(True)
    Y = 16
    for n, k in enumerate(ks):
        a(f"ds_read_b64_tr_b16 {vr(Y+2*n,2)}, v{VY} offset:{512*(7-k)}")
    for n0 in range(0, len(ks), 2):
        pr = [(n, ks[n], 24 + 4 * n) for n in (n0, n0 + 1) if n < len(ks)]
        if ks[n0] < NF:
            for n, k, R in pr:
                for p in range(2):
                    a(f"v_lshlrev_b32 v{R+2*p}, 16, v{Y+2*n+p}")
                    a(f"v_and_b32 v{R+2*p+1}, 0xffff0000, v{Y+2*n+p}")
                for c in range(4):
                    a(f"v_fma_f32 v{R+c}, v{R+c}, v{GD+2*k+1}, v{TX+4*k+c}")
        else:
            for n, k, R in pr:
                for c in range(4):
                    a(f"v_perm_b32 v{R+c}, v{XD+2*k+(c>>1)}, v{Y+2*n+(c>>1)}, s{70+(c&1)}")
            for n, k, R in pr:
                for c in range(4):
                    a(f"v_dot2_f32_bf16 v{R+c}, v{R+c}, v{GD+2*k}, 0")
        for n, k, R in pr:
            if YX and stage == 0:
                for p in range(2):
                    a(f"v_cvt_pk_bf16_f32 v{104+4*k+p}, v{R+2*p}, v{R+2*p+1}")
                a(f"global_store_dwordx4 v{81+k}, {vr(104+4*k,4)}, {sr(P_WS,2)} sc1")
                continue
            for p in range(2):
                a(f"v_cvt_pk_bf16_f32 v{XD+2*k+p}, v{R+2*p}, v{R+2*p+1}")
            if not E("NOST"):
                a(f"buffer_store_dwordx2 {vr(XD+2*k,2)}, v{VO}, s[60:63], s68 offen")
            a("s_add_u32 s68, s68, 294912")
    a.auto(False)


def burst_addr(a):
    a(f"s_sub_u32 s9, s5, {NJH}")
    if GORD and E("BH"):
        a("s_mul_i32 s9, s9, 3")
        a("s_min_u32 s8, s12, 2")
        a("s_add_u32 s9, s9, s8")
        a("s_mul_i32 s8, s9, 43")
        a("s_lshr_b32 s8, s8, 8")
        a("s_mul_i32 s9, s9, 6144")
        a("s_add_u32 s8, s8, 1")
        a("s_mul_i32 s8, s8, 36864")
        a("s_add_u32 s9, s9, s8")
        a("s_mul_i32 s8, s4, 663552")
        a("s_add_u32 s8, s8, s9")
        a("v_min_u32 v88, 47, v2")
        a("v_lshl_add_u32 v88, v88, 7, s8")
        a("v_mov_b32 v89, s8")
        return
    if GORD:
        a("s_mul_i32 s9, s9, 3")
        a("s_min_u32 s8, s12, 2")
        a("s_add_u32 s9, s9, s8")
        a("s_mul_i32 s9, s9, 12288")
        a("s_mul_i32 s8, s4, 663552")
        a("s_add_u32 s8, s8, s9")
        a("v_lshl_add_u32 v88, v2, 7, s8")
        a("v_min_u32 v89, 31, v2")
        a("v_lshl_add_u32 v89, v89, 7, s8")
        a("v_add_u32 v89, 8192, v89")
        return
    a("s_lshl_b32 s9, s9, 2")
    a("s_add_u32 s9, s9, s12")
    a("s_mul_i32 s9, s9, 9216")
    a("s_mul_i32 s8, s4, 663552")
    a("s_add_u32 s8, s8, s9")
    if BL == 72:
        a("v_lshl_add_u32 v88, v2, 7, s8")
        a("v_min_u32 v89, 7, v2")
        a("v_lshl_add_u32 v89, v89, 7, s8")
        a("v_add_u32 v89, 8192, v89")
    else:
        a(f"s_add_u32 s8, s8, {128*(72-BL)}")
        a(f"v_min_u32 v88, {BL-1}, v2")
        a("v_lshl_add_u32 v88, v88, 7, s8")


def burst(a):
    if BSN:
        for k in range(NBI):
            a(f"global_load_dword v{96+k}, v{88+k}, {sr(P_WD,2)}")


def io_common(a):
    a("s_mul_i32 s7, s4, 18")
    a("s_add_u32 s7, s7, s5")
    a(f"s_sub_u32 s7, s7, {NJH}")
    a("s_lshl_b32 s55, s7, 3")
    a("s_sub_u32 s12, s3, 8")
    epi_setup(a)
    burst_addr(a)


def uloader(a):
    a.lab("C_LOAD")
    a("s_setprio 3")
    a(f"s_sub_u32 s13, s5, {NJH}")
    pf = stripe_pf(a)
    pf2 = []
    if PF2AT >= 0:
        pf, pf2 = pf[:2], [x.replace("v10,", "v98,").replace("v11,", "v99,") for x in pf[2:]]
    a("v_mul_u32_u24 v6, 4608, v2")
    a("s_lshl_b32 s8, s7, 3")
    a("v_add_u32 v6, s8, v6")
    a("v_lshlrev_b32 v7, 3, v2")
    a(f"v_sub_u32 v7, {UP+4088-512*7}, v7")
    a("s_mov_b32 s56, 0x05040100")
    a("s_mov_b32 s58, 0x07060302")
    a("s_mov_b32 s57, s13")
    a("s_waitcnt lgkmcnt(0)")
    if E("PFE", 0):
        for x in pf:
            a(x)
    srd(a, 72, P_U, 2359296)
    a.b0(12)
    if E("PFX"):
        a.spin(F_X, 0, 12, op="lg")
    if not E("PFE", 0):
        for k, x in enumerate(pf):
            if k == 2 and E("PF2"):
                a("s_waitcnt vmcnt(0)")
            a(x)
    io_common(a)
    for j in range(4):
        a(f"v_mov_b32 v{24+j}, 0")
    a("v_lshrrev_b32 v28, 2, v2")
    a(f"v_mul_u32_u24 v28, {CS}, v28")
    a(f"v_add_u32 v28, {KC}, v28")
    a("v_and_b32 v29, 3, v2")
    a("v_lshl_add_u32 v30, v29, 4, v28")
    a("ds_write_b128 v30, v[24:27] offset:1072")
    a("v_and_b32 v29, 1, v2")
    a("v_lshl_add_u32 v30, v29, 4, v28")
    a("ds_write_b128 v30, v[24:27]")
    a("v_lshrrev_b32 v28, 5, v2")
    a(f"v_mul_u32_u24 v28, {US}, v28")
    a("v_and_b32 v29, 31, v2")
    a("v_lshl_add_u32 v30, v29, 4, v28")
    a(f"v_add_u32 v30, {UP+4096}, v30")
    a("ds_write_b128 v30, v[24:27]")
    a(f"ds_write_b128 v30, v[24:27] offset:{2*US}")
    a("s_mov_b32 s15, 0")
    if ROT:
        for k in range(4):
            a(f"s_add_u32 s8, s57, {k}")
            a("s_and_b32 s8, s8, 3")
            a(f"s_mul_i32 s{76+k}, s8, 294912")
            a(f"s_add_u32 s{64+k}, s{76+k}, {4*294912}")
            a("s_lshl_b32 s8, s8, 9")
            a(f"v_subrev_u32 v{32+k}, s8, v7")
    a("v_mov_b32 v12, 1")
    a(f"s_waitcnt vmcnt({E('UW', 2 if PF2AT < 0 else 0)})")
    a.stamp(7)
    U = 104

    def issue(i):
        if not NOU:
            so = f"s{(76 if i < 16 else 64) + ((i >> 2) & 3)}" if ROT else "s15"
            a(f"buffer_load_dwordx2 {vr(U+2*i,2)}, v6, s[72:75], {so} offen offset:{1152*(i&3)}")
        if i & 3 == 3:
            a("s_add_u32 s15, s15, 294912")
        if i == PF2AT:
            for x in pf2:
                a(x)
        if i == GAT:
            a(f"ds_write_b32 v1, v12 offset:{F_UI}")
            epi_gl(a)
        if i == BST:
            if GAT != BST:
                a(f"ds_write_b32 v1, v12 offset:{F_BU}")
            if not BLATE and not GORD:
                burst(a)
    a.auto(True)
    nis = 0
    for i in range(32):
        while nis < min(32, i + WIN_U):
            issue(nis); nis += 1
        a(f"@need {vr(U+2*i,2)}")
        if i & 3 == 3:
            while nis < min(32, i + 1 + WIN_U):
                issue(nis); nis += 1
            t, u, o = i >> 2, U + 2 * (i - 3), 16 + 8 * ((i >> 2) & 1)
            for ch in range(4):
                sel = "s58" if ch & 1 else "s56"
                a(f"v_perm_b32 v{o+2*ch}, v{u+4+(ch>>1)}, v{u+6+(ch>>1)}, {sel}")
                a(f"v_perm_b32 v{o+2*ch+1}, v{u+(ch>>1)}, v{u+2+(ch>>1)}, {sel}")
                if ROT:
                    a(f"ds_write_b64 v{32+(t&3)}, {vr(o+2*ch,2)} offset:{ch*US+512*(7-(t&4))}")
                else:
                    a(f"ds_write_b64 v7, {vr(o+2*ch,2)} offset:{ch*US+512*(7-t)}")
        if i == 3:
            a.stamp(8)
        if i & 3 == 3:
            a(f"v_mov_b32 v36, {(i>>2)+1}")
            a(f"ds_write_b32 v1, v36 offset:{F_H}")
        if i & 15 == 15:
            a.stamp(2 - (i >> 4))
    a.auto(False)
    epi_x(a, range(4))
    a.spin(F_X, 0, 10, op="lg")
    epi_unp(a, range(4))
    if GORD:
        a("s_waitcnt vmcnt(0)")
    a("s_branch C_IO3")
    a.lab("C_IO")
    io_common(a)
    a.spin(F_X, 0, 10, op="lg")
    a.spin(F_H, 4, 12, prio=E("IOP", 3), sleep=E("OSL2", 2))
    epi_x(a, range(4))
    a("s_waitcnt lgkmcnt(0)")
    epi_unp(a, range(4))
    a.spin(F_UI, 1, 12, prio=E("IOP", 3), sleep=E("OSL2", 1))
    epi_gl(a)
    if GAT != BST:
        a.spin(F_BU, 1, 12, prio=3, sleep=1)
    if GORD:
        a.signal(F_GI, 12)
        a.spin(F_GI, 3, 12)
    if not BLATE:
        burst(a)
    if GORD:
        a(f"s_waitcnt vmcnt({NBI})")
    a.lab("C_IO3")
    a(f"s_waitcnt vmcnt({NBI if BSN and not BLATE else 0})")
    if BLATE == 1:
        burst(a)
    epi_g(a)
    if YX:
        for k in range(4):
            a(f"v_mov_b32 v{106+4*k}, v10")
            a(f"v_mov_b32 v{107+4*k}, v10")
    epi_mul(a, range(4))
    a.stamp(3)
    epi_fin(a, [0, 1], 0)
    epi_fin(a, [2, 3], 1)
    a.spin(F_H, 8, 12)
    epi_x(a, range(4, 8))
    if NF > 4:
        a("s_waitcnt lgkmcnt(0)")
    epi_unp(a, range(4, 8))
    epi_mul(a, range(4, 8))
    a("s_lshl_b32 s8, s12, 8")
    a(f"s_sub_u32 s8, {OM+7936-1024*7}, s8")
    a("v_lshl_add_u32 v14, v2, 2, s8")
    for k in range(8):
        a(f"ds_write_b32 v14, v{GD+2*k} offset:{1024*(7-k)}")
    a.stamp(4)
    epi_fin(a, [4, 5], 2)
    a.stamp(5)
    epi_fin(a, [6], 3)
    epi_fin(a, [7], 4)
    a.signal(F_SI, 8)
    a.stamp(6)
    a("s_waitcnt vmcnt(0)")
    a.signal(F_ST, 8)
    a.end()
    a.lab("C_FIN")
    Z = 104
    a("s_setprio 0")
    a("v_and_b32 v8, 7, v2")
    a("v_lshlrev_b32 v8, 3, v8")
    a(f"v_add_u32 v8, {WS_SEL}, v8")
    a("s_mul_i32 s8, s7, 9216")
    a(f"s_add_u32 s8, s8, {WS_MB}")
    a("v_lshl_add_u32 v5, v2, 4, s8")
    a("v_add_u32 v6, 0x1000, v5")
    a("v_add_u32 v7, 0x2000, v5")
    a("v_and_b32 v19, 1, v4")
    a("v_lshrrev_b32 v20, 1, v4")
    a("v_lshl_or_b32 v19, v19, 1, v20")
    a(f"v_mul_u32_u24 v12, {US}, v19")
    a(f"v_add_u32 v12, {UP}, v12")
    a(f"v_mul_u32_u24 v13, {OS}, v19")
    a(f"v_add_u32 v13, {OP}, v13")
    a(f"s_add_u32 s8, s55, {2047*1152}")
    a("v_lshl_add_u32 v14, v19, 1, s8")
    a("s_waitcnt lgkmcnt(0)")
    for j in range(4):
        a(f"v_bfe_u32 v{Z+6+j}, v10, {8*j}, 8")
    MB = 120
    if FT:
        a.spin(F_O + 16, 4, 26, sleep=1, prio=3)
        if FT > 1:
            a(f"s_sleep {FT}")
    else:
        a.spin(F_SI, E("SI", 4), 26, sleep=1, prio=3)
    a.stamp(5)
    a("s_mov_b32 s9, 0")
    a.lab("C_MPOLL")
    a(f"global_load_dwordx2 v[16:17], v8, {sr(P_WS,2)} sc1")
    for i in range(9):
        a(f"global_load_dwordx4 {vr(MB+4*i,4)}, v{5+(i>>2)}, {sr(P_WS,2)} offset:{1024*(i&3)} sc1")
    a("s_waitcnt vmcnt(9)")
    a("v_and_b32 v22, 0x7ff, v16")
    a("v_lshl_add_u32 v23, v22, 1, v12")
    a(f"ds_read_u16 v{Z+1}, v23")
    a("v_lshl_add_u32 v23, v22, 1, v13")
    a(f"ds_read_u16 v{Z+3}, v23")
    a("v_lshlrev_b32 v23, 2, v22")
    a(f"v_add_u32 v23, {OM}, v23")
    if not (FT or E("SI", 4) < 4):
        a("ds_read_b32 v24, v23")
    a("v_and_b32 v20, 0xffff0000, v16")
    a("v_ashrrev_i32 v21, 31, v20")
    a("v_not_b32 v21, v21")
    a("v_or_b32 v21, 0x80000000, v21")
    a("v_and_b32 v21, 0xffff0000, v21")
    a("v_xor_b32 v20, v20, v21")
    sigmoid_f32(a, Z, 20, 21)
    rb(a, Z)
    a(f"v_mul_u32_u24 v{Z+4}, 1152, v22")
    a(f"v_sub_u32 v{Z+4}, v14, v{Z+4}")
    a("s_waitcnt lgkmcnt(0)")
    a(f"v_lshlrev_b32 v{Z+1}, 16, v{Z+1}")
    for i in range(9):
        a(f"s_waitcnt vmcnt({8-i})")
        for j in range(4):
            a(f"v_xor_b32 v{MB+4*i+j}, v{MB+4*i+j}, v{Z+6+j}")
        a(f"v_or3_b32 v26, v{MB+4*i}, v{MB+4*i+1}, {'v26' if i else '0'}")
        a(f"v_or3_b32 v26, v{MB+4*i+2}, v{MB+4*i+3}, v26")
        if i:
            for p in range(2):
                a(f"v_pk_add_f32 {vr(28+2*p,2)}, {vr(28+2*p if i > 1 else MB+2*p,2)}, {vr(MB+4*i+2*p,2)}")
    a("v_and_b32 v26, 0xff, v26")
    a("v_bitop3_b32 v26, v26, v17, v10 bitop3:0xf6")
    a("v_cmp_ne_u32 vcc, 0, v26")
    a("s_add_u32 s9, s9, 1")
    a("s_cmp_eq_u64 vcc, 0")
    a("s_cbranch_scc1 C_MOK")
    a(f"s_cmp_lt_u32 s9, {SPIN}")
    a("s_cbranch_scc1 C_MPOLL")
    a.lab("C_MOK")
    if STAMP:
        a("s_mov_b32 s82, s9")
    a.stamp(8)
    a("v_permlane32_swap_b32 v28, v29")
    a("v_permlane32_swap_b32 v30, v31")
    a("v_add_f32 v28, v28, v29")
    a("v_add_f32 v30, v30, v31")
    a("v_permlane16_swap_b32 v28, v30")
    a("v_add_f32 v28, v28, v30")
    a(f"v_add_f32_dpp v28, v28, v28 row_ror:8 {DPPF}")
    rb(a, 28)
    a(f"v_mul_f32 v28, v28, v{Z}")
    rb(a, 28)
    a(f"v_add_f32 v28, v28, v{Z+1}")
    rb(a, 28)
    a(f"v_or_b32 v28, v28, v{Z+3}")
    if FT or E("SI", 4) < 4:
        a.spin(F_SI, 4, 27)
        a("ds_read_b32 v24, v23")
        a("s_waitcnt lgkmcnt(0)")
    a("v_dot2_f32_bf16 v28, v28, v24, 0")
    a("v_cvt_pk_bf16_f32 v28, v28, v28")
    a.spin(F_ST, 4, 27)
    a("s_mov_b32 exec_lo, 0x00ff00ff")
    a("s_mov_b32 exec_hi, 0x00ff00ff")
    a(f"global_store_short v{Z+4}, v28, {sr(P_OUT,2)}")
    a("s_mov_b64 exec, -1")
    a.end()


def kernel(a):
    a.raw(".p2align 8")
    a.raw(".globl k1_kernel")
    a.raw(".type k1_kernel,@function")
    a.lab("k1_kernel")
    a("v_lshrrev_b32 v1, 6, v0")
    a("s_cmp_ge_u32 s2, 256")
    a("v_readfirstlane_b32 s3, v1")
    a("s_cbranch_scc1 K_END")
    a("v_and_b32 v2, 63, v0")
    a("v_mov_b32 v1, 0")
    a("s_cmp_lg_u32 s3, 1")
    a("s_cbranch_scc1 K_NOZ")
    a("v_lshlrev_b32 v3, 2, v2")
    a("ds_write_b32 v3, v1")
    a("s_waitcnt lgkmcnt(0)")
    a.lab("K_NOZ")
    a("s_load_dwordx16 s[16:31], s[0:1], 0")
    a("s_load_dwordx16 s[32:47], s[0:1], 64")
    a("s_load_dwordx4 s[48:51], s[0:1], 128")
    a("s_lshr_b32 s5, s2, 3")
    if CODEPF:
        a("s_lshl_b32 s8, s3, 8")
        a("s_add_u32 s8, s8, s5")
        a(f"s_cmp_lg_u32 s8, {NJF}")
        a("s_cbranch_scc1 K_NOCPF")
        a("s_getpc_b64 s[8:9]")
        a("s_and_b32 s8, s8, 0xffffff00")
        a("v_lshlrev_b32 v8, 7, v2")
        for k in range(4):
            a(f"v_min_u32 v9, CODE_END-k1_kernel-4, v8")
            a(f"global_load_dword v{160+k}, v9, s[8:9]")
            a(f"v_add_u32 v8, 8192, v8")
        a.lab("K_NOCPF")
    if STAMP:
        for i in range(1, 10):
            a(f"s_mov_b32 s{80+2*i}, 0")
    if PROBE:
        a("s_mov_b32 s98, 0")
    a.stamp(0)
    a("v_and_b32 v3, 15, v2")
    a("v_lshrrev_b32 v4, 4, v2")
    a("s_and_b32 s4, s2, 7")
    if not E("OLDB0"):
        a("s_barrier")
    a("s_cmp_eq_u32 s3, 8")
    a("s_cbranch_scc1 ROUTER")
    a(f"s_cmp_lt_u32 s5, {NJH}")
    a("s_cbranch_scc1 K_OTHER")
    a("s_mul_i32 s7, s4, 18")
    a("s_add_u32 s7, s7, s5")
    a(f"s_sub_u32 s7, s7, {NJH}")
    a("s_cmp_ge_u32 s3, 8")
    a("s_cbranch_scc1 K_CIO")
    kgen_head(a)
    router(a)
    a.lab("K_OTHER")
    a("s_mul_i32 s7, s4, 9")
    a("s_add_u32 s7, s7, s5")
    a("s_mov_b32 s12, s3")
    a("s_cmp_lt_u32 s3, 2")
    a("s_cbranch_scc1 GATE")
    a(f"s_cmp_ge_u32 s5, {NJF}")
    a("s_cbranch_scc1 HELPER")
    a("s_cmp_lt_u32 s3, 8")
    a("s_cbranch_scc1 F_COMP")
    ffn_loader(a)
    a.lab("K_CIO")
    a("s_sub_u32 s12, s3, 9")
    a("s_cmp_eq_u32 s3, 11")
    a("s_cbranch_scc1 C_LOAD")
    a("v_lshl_add_u32 v14, v4, 3, v3")
    a("v_sub_u32 v14, 39, v14")
    a("s_lshl_b32 s8, s12, 11")
    a(f"s_add_u32 s8, s8, {PM}")
    a("v_lshl_add_u32 v15, v2, 4, s8")
    W = [(0x7f, 19), (0x1ff, 20), (0x7, 21), (0x1f, 18), (0x3, 21)]
    for k in range(3):
        a("s_cmp_eq_u32 s12, 0")
        a(f"s_cselect_b32 s8, {W[k][0]}, {W[k+2][0]}")
        a(f"s_cselect_b32 s9, {W[k][1]}, {W[k+2][1]}")
        a("s_movk_i32 s11, 0x3f80")
        if k == 2:
            a("s_cselect_b32 s11, s11, 0xffff")
        a("s_lshl_b32 s13, s11, 16")
        a("v_mov_b32 v10, s8")
        a("v_mov_b32 v11, 0")
        a("v_lshlrev_b64 v[10:11], v14, v[10:11]")
        a("v_alignbit_b32 v10, v11, v10, s9")
        for p in range(4):
            a(f"v_bfe_i32 v11, v10, {2*p}, 1")
            a(f"v_bfe_i32 v12, v10, {2*p+1}, 1")
            a("v_and_b32 v11, s11, v11")
            a(f"v_and_or_b32 v{16+4*k+p}, v12, s13, v11")
        a(f"ds_write_b128 v15, {vr(16+4*k,4)} offset:{1024*k}")
    a.signal(F_PM, 10)
    a("s_branch GATE")
    uloader(a)
    helper(a)
    gate(a)
    kgen(a)
    select(a)
    ffn_comp(a)
    if STAMP:
        a.lab("STAMP_OUT")
        a("s_memrealtime s[98:99]")
        a("s_waitcnt lgkmcnt(0)")
        a("s_lshl_b32 s8, s2, 4")
        a("s_add_u32 s8, s8, s3")
        a("s_lshl_b32 s8, s8, 6")
        a(f"s_add_u32 s8, s8, {WS_STAMP}")
        a("v_mov_b32 v5, s8")
        for i in range(10):
            a(f"v_mov_b32 v6, s{80+2*i}")
            a(f"global_store_dword v5, v6, {sr(P_WS,2)} offset:{4*i}")
    if PROBE:
        a.lab("PADTAIL")
        a("s_waitcnt vmcnt(0) lgkmcnt(0)")
        a("s_cmp_eq_u32 s98, 0")
        a("s_cbranch_scc1 K_END")
        a("s_setprio 0")
        a.lab("PADL")
        a("s_sleep 8")
        a("s_memrealtime s[96:97]")
        a("s_waitcnt lgkmcnt(0)")
        a("s_sub_u32 s96, s96, s98")
        a("s_cmp_lt_u32 s96, 2000")
        a("s_cbranch_scc1 PADL")
    a.lab("K_END")
    a("s_endpgm")
    a.lab("CODE_END")


def main():
    ref = open(os.path.join(HERE, NAME + ".s.ref")).read().splitlines()
    head = [l for l in ref if l.startswith(";") and "@launch" not in l and "Override" not in l and "grid=ceil" not in l]
    a = G()
    kernel(a)
    out = head + [
        f"; @launch kernel=k1_kernel grid=(256,1,1) block=(768,1,1) lds={LDS}",
        '.amdgcn_target "amdgcn-amd-amdhsa--gfx950"',
        ".text",
    ] + a.finish() + [
        '.section .rodata,"a"',
        ".p2align 6",
        ".amdhsa_kernel k1_kernel",
        "  .amdhsa_next_free_vgpr 168",
        "  .amdhsa_next_free_sgpr 102",
        "  .amdhsa_accum_offset 168",
        "  .amdhsa_group_segment_fixed_size 0",
        "  .amdhsa_kernarg_size 144",
        "  .amdhsa_user_sgpr_count 2",
        "  .amdhsa_user_sgpr_kernarg_segment_ptr 1",
        "  .amdhsa_system_sgpr_workgroup_id_x 1",
        ".end_amdhsa_kernel",
    ]
    path = sys.argv[1] if len(sys.argv) > 1 else os.path.join(HERE, NAME + ".s")
    open(path, "w").write("\n".join(out) + "\n")


if __name__ == "__main__":
    main()
```

```python
import sys, os
from asmlib import *

NAME = "gated_mix__ssm_conv_s4__moe_arch_mod__prompt"
HERE = os.path.dirname(os.path.abspath(__file__))
E = lambda k, d=0: int(os.environ.get(k, d))
STAMP = E("STAMP")
PROBE = os.environ.get("PROBE", "")
CODEPF = E("CODEPF", 1)
SELD = E("SELD", 16)
UD = E("UD", 0)
GORD = E("GORD", 1)
ST0 = E("ST0", 1)
NF = E("NF", 4)
YX = E("YX", 0)
WS_Y = 12 << 20
FT = E("FT", 0)
RDIR = E("RDIR", 2)
GAT = E("GAT", 31)
GPD = E("GPD", 0)
BL = E("BL", 72)
NBI = 2 if BL == 72 else 1
BLATE = E("BLATE", 0)
KS = E("KS", 32)
WS_KEY2 = 2 << 20
PF2AT = E("PF2AT", -1)
R3 = E("R3", 6)
ROT = 0
SPB = E("SPB", 0)
SPW = E("SPW", 4)
C3 = E("C3", 28)
HSB = E("HSB", 0)
WNT = os.environ.get("WNT", "")
POLLF = os.environ.get("POLLF", "sc1").replace("_", " ")
PUBF = os.environ.get("PUBF", "sc1").replace("_", " ")
PFN = E("PFN", 0)
PFS = E("PFS", 8)
PFW = E("PFW", 1)
HPN = E("HPN", 3)
HPS = E("HPS", 53)
HPW = E("HPW", 4)
PSTEP = 5 * HPW // 2
BST = E("BST", 31)
BSN = E("BSN", 5)
BSS = E("BSS", 0)
WIN_U = E("WIN_U", 5)
WIN_F = E("WIN_F", 10)
HELP = E("HELP", 1)
DUMP = E("DUMP")
HOLD = E("HOLD")
FINE = E("FINE")
NOU = E("NOU")
NOW = E("NOW")

WS_KEY, WS_SEL, WS_BASE, WS_G, WS_MB = 0, 8192, 8448, 16384, 32768
WS_UT = 8 << 20
WS_STAMP = 4 << 20
WS_SIZE = 0x10000000

LDS = 163840
F_NONCE, F_PAIR, F_ST, F_I, F_K, F_H, F_O = 0, 16, 40, 48, 64, 80, 96
F_L, F_D, F_AC, F_XR, F_HR, F_PI = 16, 40, 48, 84, 88, 92
KT = 256
KTS = 4608
TS = 288
OS = 4160
KC = KT + 8 * KTS
CS = 1216
UP = KC + 16 * CS
US = 4672
OM = UP + 4 * US
OP = OM + 8192
PM = OP + 4 * OS
assert PM + 5120 + 512 <= 147712 and OP % 16 == 0
WA = 256
WB = WA + 73728
XB = WB + 73728
HB = XB + 9216
HS = 144
GW = HB + 9 * HS
assert GW + 2048 <= LDS and GW % 16 == 0
F_X, F_GD, F_RI, F_SI, F_UI, F_BU, F_PM, F_GI = 8, 12, 4, 44, 88, 92, 32, 36

L2E = 0x3fb8aa3b
L2E_LO = 0x32a57060
LN2 = 0x3f317218
INV2PI = 0x3e22f983

P_U, P_ARE, P_AIM, P_BRE, P_BIM, P_CRE, P_CIM, P_LDT = 16, 18, 20, 22, 24, 26, 28, 30
P_DSK, P_BX, P_WR, P_WG, P_WU, P_WD, P_GW, P_OUT = 32, 34, 36, 38, 40, 42, 44, 46
P_DBG, P_WS = 48, 50
NJF, NJH = 9, 14
SPIN = 0x20000

DPPF = "row_mask:0xf bank_mask:0xf"


class G(Asm):
    nlab = 0

    def stamp(s, i):
        if PROBE:
            import inspect
            fn = inspect.stack()[1].function
            if fn == "pre":
                fn = "ffn_loader"
            if f"{fn}:{i}" == PROBE:
                s("s_memrealtime s[98:99]")
        if STAMP and not (FINE and i >= 6):
            s(f"s_memrealtime s[{80+2*i}:{81+2*i}]")

    def fine(s, i):
        if STAMP and FINE:
            s(f"s_memrealtime s[{80+2*i}:{81+2*i}]")

    def b0(s, wait=None):
        if E("OLDB0"):
            s("s_barrier")
        elif wait is not None:
            s.spin(F_RI, 1, wait)

    def end(s):
        s("s_branch STAMP_OUT" if STAMP else "s_branch PADTAIL" if PROBE else "s_endpgm")

    def uid(s, p):
        G.nlab += 1
        return f"{p}_{G.nlab}"

    def spin(s, off, target, tv, sleep=0, op="ge", prio=None):
        l = s.uid("SP")
        if prio is not None:
            s(f"s_setprio {E('SPP', 3) if sleep else 0}")
        s("s_mov_b32 s9, 0")
        s.lab(l)
        s(f"ds_read_b32 v{tv}, v1 offset:{off}") if isinstance(off, int) else s(f"ds_read_b32 v{tv}, {off}")
        s("s_waitcnt lgkmcnt(0)")
        s(f"v_readfirstlane_b32 s8, v{tv}")
        s("s_add_u32 s9, s9, 1")
        s(f"s_cmp_{op}_u32 s8, {target}")
        s(f"s_cbranch_scc1 {l}_D")
        if sleep:
            s(f"s_sleep {sleep}")
        s(f"s_cmp_lt_u32 s9, {SPIN*4}")
        s(f"s_cbranch_scc1 {l}")
        s.lab(l + "_D")
        if prio is not None:
            s(f"s_setprio {prio}")

    def signal(s, off, tv):
        s(f"v_mov_b32 v{tv}, 1")
        s("s_mov_b64 exec, 1")
        s(f"ds_add_u32 v1, v{tv} offset:{off}") if isinstance(off, int) else s(f"ds_add_u32 {off}, v{tv}")
        s("s_mov_b64 exec, -1")


def srd(a, d, p, size):
    a(f"s_mov_b32 s{d}, s{p}")
    a(f"s_mov_b32 s{d+1}, s{p+1}")
    a(f"s_mov_b32 s{d+2}, {size}")
    a(f"s_mov_b32 s{d+3}, 0x20000")


def wave_max_steps(vv):
    return [f"v_max_u32_dpp v{vv}, v{vv}, v{vv} row_shr:1 {DPPF}",
            f"v_max_u32_dpp v{vv}, v{vv}, v{vv} row_shr:2 {DPPF}",
            f"v_max_u32_dpp v{vv}, v{vv}, v{vv} row_shr:4 {DPPF}",
            f"v_max_u32_dpp v{vv}, v{vv}, v{vv} row_shr:8 {DPPF}",
            f"v_max_u32_dpp v{vv}, v{vv}, v{vv} row_bcast:15 row_mask:0xa bank_mask:0xf",
            f"v_max_u32_dpp v{vv}, v{vv}, v{vv} row_bcast:31 row_mask:0xc bank_mask:0xf"]


def sigmoid_f32(a, dst, src, t):
    a(f"v_mul_f32 v{t}, 0xbfb8aa3b, v{src}")
    a(f"v_exp_f32 v{t}, v{t}")
    a(f"v_add_f32 v{t}, 1.0, v{t}")
    a(f"v_rcp_f32 v{dst}, v{t}")


def rb(a, r):
    a(f"v_cvt_pk_bf16_f32 v{r}, v{r}, v{r}")
    a(f"v_and_b32 v{r}, 0xffff0000, v{r}")


def router(a):
    a.lab("ROUTER")
    a("s_setprio 3")
    X, W = 16, 52
    a("v_lshrrev_b32 v5, 3, v2")
    a("v_and_b32 v6, 7, v2")
    a("v_lshlrev_b32 v9, 4, v6")
    a("v_mul_u32_u24 v8, 1152, v5")
    a("s_mul_i32 s8, s2, 9216")
    a("v_add3_u32 v8, v8, v9, s8")
    a("v_lshlrev_b32 v7, 4, v2")
    a("v_min_u32 v10, 7, v2")
    a("v_lshlrev_b32 v10, 4, v10")
    a(f"s_mov_b32 m0, {XB}")
    a("s_waitcnt lgkmcnt(0)")
    a.fine(7)
    a(f"s_load_dword s10, {sr(P_WS,2)}, {WS_BASE}")
    if RDIR:
        for i in range(9):
            a(f"global_load_dwordx4 {vr(X+4*i,4)}, v8, {sr(P_U,2)} offset:{128*i}")
            a(f"global_load_dwordx4 {vr(W+4*i,4)}, v9, {sr(P_WR,2)} offset:{128*i}")
    if RDIR != 2:
        for i in range(9):
            if i:
                a(f"s_mov_b32 m0, {XB+896*i}")
            a(f"global_load_lds_dwordx4 v8, {sr(P_U,2)} offset:{128*i}")
    a(f"s_mov_b32 m0, {GW}")
    a(f"global_load_lds_dwordx4 v7, {sr(P_GW,2)}")
    a(f"global_load_lds_dwordx4 v10, {sr(P_GW,2)} offset:1024")
    if not RDIR:
        for i in range(9):
            a(f"global_load_dwordx4 {vr(W+4*i,4)}, v9, {sr(P_WR,2)} offset:{128*i}")
    a.fine(6)
    a.b0()
    a("v_mov_b32 v11, 1")
    a(f"ds_write_b32 v1, v11 offset:{F_RI}")
    a(f"v_add_u32 v7, {XB}, v7")
    if KS == 32:
        a("s_lshl_b32 s8, s2, 5")
        a("v_lshl_add_u32 v15, v4, 3, s8")
    else:
        a(f"s_mul_i32 s8, s2, {KS}")
        a(f"s_add_u32 s8, s8, {WS_KEY2}")
        a("v_lshl_add_u32 v15, v4, 3, s8")
        a("v_lshl_add_u32 v15, v3, 5, v15")
    a("s_mov_b32 s11, 0xffff")
    for j in range(4):
        a(f"v_mov_b32 v{8+j}, 0")
    a("s_waitcnt lgkmcnt(0)")
    a.fine(8)
    a("s_add_u32 s10, s10, 1")
    a("s_addc_u32 s10, s10, 0")
    a("v_mov_b32 v14, s10")
    a("v_mov_b32 v13, s10")
    if RDIR:
        for i in range(9):
            a(f"s_waitcnt vmcnt({2*(8-i) + (11 if RDIR == 1 else 2)})")
            for j in range(4):
                a(f"v_dot2c_f32_bf16 v{8+j}, v{X+4*i+j}, v{W+4*i+j}")
        a.stamp(1)
    else:
        a("s_waitcnt vmcnt(9)")
        a.stamp(1)
        if STAMP or PROBE:
            a("s_waitcnt lgkmcnt(0)")
        for i in range(9):
            a(f"ds_read_b128 {vr(X+4*i,4)}, v7 offset:{1024*i}")
        a(f"ds_write_b32 v1, v14 offset:{F_X}")
        for i in range(9):
            a(f"s_waitcnt vmcnt({8-i}) lgkmcnt({9-i})")
            for j in range(4):
                a(f"v_dot2c_f32_bf16 v{8+j}, v{X+4*i+j}, v{W+4*i+j}")
    a("v_add_f32 v8, v8, v9")
    a("v_add_f32 v10, v10, v11")
    a("v_add_f32 v8, v8, v10")
    a(f"v_add_f32_dpp v8, v8, v8 quad_perm:[1,0,3,2] {DPPF}")
    a(f"v_add_f32_dpp v8, v8, v8 quad_perm:[2,3,0,1] {DPPF}")
    a(f"v_add_f32_dpp v8, v8, v8 row_half_mirror {DPPF}")
    a("v_cvt_pk_bf16_f32 v8, v8, v8")
    a("v_ashrrev_i32 v9, 31, v8")
    a("v_or_b32 v9, 0x80008000, v9")
    a("v_xor_b32 v8, v8, v9")
    a(f"v_mov_b32_dpp v9, v8 row_ror:8 {DPPF}")
    km = {32: 0x00010001, 64: 0x00030003, 128: 0x000f000f}[KS]
    a(f"s_mov_b32 exec_lo, {km:#x}")
    a(f"s_mov_b32 exec_hi, {km:#x}")
    a("v_bfi_b32 v12, s11, v8, v9")
    a(f"global_store_dwordx2 v15, v[12:13], {sr(P_WS,2)} {PUBF}")
    a("s_mov_b64 exec, -1")
    a(f"ds_write_b32 v1, v14 offset:{F_NONCE}")
    a.stamp(2)
    if RDIR == 2:
        for i in range(9):
            a(f"ds_write_b128 v7, {vr(X+4*i,4)} offset:{1024*i}")
    if RDIR:
        a("s_waitcnt vmcnt(1)")
        a(f"ds_write_b32 v1, v14 offset:{F_X}")
    a(f"s_cmp_ge_u32 s5, {NJH}")
    a("s_cbranch_scc1 C_IO")
    a(f"s_cmp_lt_u32 s5, {NJF}")
    a("s_cbranch_scc1 SELECT")
    a.end()


def gate(a):
    a.lab("GATE")
    if E("GTP"):
        a(f"s_setprio {E('GTP')}")
    X, W, WL = 16, 34, 44
    a("s_lshl_b32 s8, s12, 9")
    a(f"s_add_u32 s8, s8, {XB}")
    a("v_lshl_add_u32 v5, v2, 2, s8")
    a("v_and_b32 v6, 31, v2")
    a("v_lshlrev_b32 v6, 2, v6")
    a(f"v_add_u32 v6, {GW}, v6")
    a("s_lshl_b32 s8, s2, 1")
    a("s_add_u32 s8, s8, s12")
    a("v_mov_b32 v8, 0")
    a("v_mov_b32 v9, 0")
    a("v_mov_b32 v10, 0x3f803f80")
    a("s_lshl_b32 s8, s8, 5")
    a(f"s_add_u32 s8, s8, {WS_G}")
    a("v_lshrrev_b32 v7, 5, v2")
    a("v_lshl_add_u32 v7, v7, 3, s8")
    a("v_and_b32 v11, 16, v2")
    a("v_add_u32 v7, v7, v11")
    a.b0()
    if E("GATED"):
        a(f"s_sleep {E('GATED')}")
    a.spin(F_X, 0, 13, op="lg", sleep=E("GSL", 1))
    a.auto(True)
    for i in range(5):
        a(f"ds_read2_b32 {vr(W+2*i,2)}, v6 offset0:{64*(i&3)} offset1:{64*(i&3)+32}" if i < 4 else f"ds_read_b32 v{W+8}, v6 offset:1024")
    for i in range(9):
        a(f"ds_read2st64_b32 {vr(X+2*i,2)}, v5 offset0:{4*i} offset1:{4*i+1}")
    for i in range(9):
        a(f"v_and_b32 v{WL+i}, 0xffff, v{W+i}")
        a(f"v_and_b32 v{W+i}, 0xffff0000, v{W+i}")
    for i in range(10):
        t = 56 + 4 * (i & 1)
        u = 56 + 4 * ((i - 1) & 1)
        for j in range(2):
            if i < 9:
                a(f"v_dot2_f32_bf16 v{t+2*j}, v{X+2*i+j}, v{WL+i}, 0")
                a(f"v_dot2_f32_bf16 v{t+2*j+1}, v{X+2*i+j}, v{W+i}, 0")
        if i:
            for j in range(2):
                a(f"v_cvt_pk_bf16_f32 v{u+2*j}, v{u+2*j}, v{u+2*j+1}")
            for j in range(2):
                a(f"v_dot2c_f32_bf16 v{8+j}, v{u+2*j}, v10")
    a.auto(False)
    a.signal(F_GD, 11)
    a("v_permlane16_swap_b32 v8, v9")
    a("v_add_f32 v8, v8, v9")
    for r in (8, 4, 2, 1):
        a(f"v_add_f32_dpp v8, v8, v8 row_ror:{r} {DPPF}")
    rb(a, 8)
    sigmoid_f32(a, 8, 8, 9)
    rb(a, 8)
    a("v_sub_f32 v9, 1.0, v8")
    a("v_cvt_pk_bf16_f32 v12, v8, v9")
    a("s_mov_b32 exec_lo, 0x00010001")
    a("s_mov_b32 exec_hi, 0x00010001")
    a(f"global_store_dwordx2 v7, v[12:13], {sr(P_WS,2)} sc1")
    a("s_mov_b64 exec, -1")
    a.stamp(1)
    a(f"s_cmp_lt_u32 s5, {NJF}")
    a("s_cbranch_scc1 F_COMP2")
    a(f"s_cmp_ge_u32 s5, {NJH}")
    a("s_cbranch_scc1 C_IO")
    if GPD:
        a("s_lshl_b32 s8, s3, 8")
        a("s_add_u32 s8, s8, s5")
        a(f"s_cmp_lg_u32 s8, {NJF+1}")
        a("s_cbranch_scc1 G_END")
        a("v_lshlrev_b32 v5, 8, v2")
        a(f"v_add_u32 v5, {WS_G}, v5")
        a("s_waitcnt vmcnt(0)")
        a(f"s_sleep {GPD}")
        a(f"global_load_dword v6, v5, {sr(P_WS,2)} sc1")
        a(f"global_load_dword v6, v5, {sr(P_WS,2)} offset:128 sc1")
        a.lab("G_END")
    a.end()


def stripe_pf(a):
    a("s_and_b32 s8, s13, 15" if PF2AT >= 0 else "s_mov_b32 s8, s13")
    a("s_mul_i32 s8, s8, 73728")
    a("s_lshl_b32 s9, s4, 7")
    a("s_add_u32 s8, s8, s9")
    a("v_mul_u32_u24 v9, 1152, v2")
    a("v_add_u32 v9, s8, v9")
    a("s_add_u32 s8, s13, 18")
    a("s_min_u32 s8, s8, 31")
    a("s_sub_u32 s8, s8, s13")
    a("s_mul_i32 s8, s8, 73728")
    a("v_add_u32 v8, s8, v9" if PF2AT < 0 else f"v_add_u32 v8, {16*73728}, v9")
    return [f"global_load_dword v10, v9, {sr(P_U,2)}", f"global_load_dword v11, v9, {sr(P_U,2)} offset:128",
            f"global_load_dword v10, v8, {sr(P_U,2)}", f"global_load_dword v11, v8, {sr(P_U,2)} offset:128"]


def prefetch(a, n, hold):
    a("v_mul_u32_u24 v5, 57, v2")
    a("v_lshrrev_b32 v5, 9, v5")
    a("v_mul_u32_u24 v6, 9, v5")
    a("v_sub_u32 v6, v2, v6")
    a("s_waitcnt lgkmcnt(0)")
    a("s_cmp_eq_u32 s12, 1")
    a(f"s_cselect_b32 s52, s{P_WU}, s{P_WG}")
    a(f"s_cselect_b32 s53, s{P_WU+1}, s{P_WG+1}")
    a("s_mov_b32 s54, 5308416")
    a("s_mov_b32 s55, 0x20000")
    a("v_mul_u32_u24 v5, 9216, v5")
    a("v_lshl_add_u32 v5, v6, 7, v5")
    a("s_mul_i32 s8, s4, 1152")
    if C3:
        a(f"s_sub_u32 s14, s13, {HPS}")
        a("s_lshr_b32 s9, s52, 7")
        a("s_add_u32 s9, s9, s4")
        a("s_sub_u32 s9, 3, s9")
        a("s_and_b32 s9, s9, 7")
        a("s_lshl_b32 s15, s9, 7")
        a("s_add_u32 s15, s15, s8")
        a(f"s_mul_i32 s14, s14, {9216*C3}")
        a("s_add_u32 s15, s15, s14")
        a(f"s_add_u32 s15, s15, {9216*(7*HPS - C3*PSTEP)}")
        a("s_cmp_eq_u32 s9, 0")
        a("s_cselect_b32 s9, 1024, 0")
        a("v_and_b32 v7, 31, v2")
        a(f"v_min_u32 v7, {C3-1}, v7")
        a("v_mul_u32_u24 v7, 9216, v7")
        a("v_lshrrev_b32 v9, 5, v2")
        a("v_mul_u32_u24 v9, s9, v9")
        a("v_add_u32 v7, v7, v9")
    a("s_mul_i32 s13, s13, 64512")
    a("s_add_u32 s13, s13, s8")
    a.b0(13)
    if hold:
        a.spin(F_NONCE, 0, 13, op="lg", sleep=1)
    if C3:
        a("buffer_load_dword v8, v7, s[52:55], s15 offen")
    for k in range(n):
        if k >= PFW or (C3 and E("C3W", 1)):
            a(f"s_waitcnt vmcnt({PFW-1})")
        a("buffer_load_dword v8, v5, s[52:55], s13 offen")
        a(f"s_add_u32 s13, s13, {64512*PSTEP}")
    if E("HD", 0):
        a(f"s_sub_u32 s8, s5, {NJF}")
        a(f"s_mul_i32 s8, s8, {HPW}")
        a("s_add_u32 s8, s8, s3")
        a("s_sub_u32 s8, s8, 2")
        n0 = 72 - BL
        a("s_lshl_b32 s8, s8, 6")
        a("s_mul_i32 s9, s4, 663552")
        for k in range(E("HD", 0)):
            a(f"v_add_u32 v9, s8, v2")
            a(f"v_min_u32 v9, {72*n0-1}, v9")
            a(f"v_mul_u32_u24 v10, {(1<<16)//n0+1}, v9")
            a("v_lshrrev_b32 v10, 16, v10")
            a(f"v_mul_u32_u24 v10, {BL}, v10")
            a("v_add_u32 v9, v9, v10")
            a("v_min_u32 v9, 5183, v9")
            a("v_lshl_add_u32 v9, v9, 7, s9")
            a(f"s_waitcnt vmcnt({PFW-1})")
            a(f"global_load_dword v8, v9, {sr(P_WD,2)}")
            a(f"s_add_u32 s8, s8, {64*5*HPW}")


def bulk_gate(a, tv):
    a.b0(tv)
    if HOLD:
        a.spin(F_NONCE, 0, tv, op="lg", sleep=1)


def select(a):
    a.lab("SELECT")
    SX = 52
    srd(a, SX, P_U, 2359296)
    KD, IX, KY = 16, 48, 80
    M1, M2, T1, T2, VO, VK, CH = 8, 9, 10, 11, 12, 6, 5
    a("v_lshlrev_b32 v7, 4, v2")
    a("v_add_u32 v15, 0x1000, v7")
    if KS != 32:
        a("v_lshrrev_b32 v7, 1, v2")
        a(f"v_mul_u32_u24 v7, {KS}, v7")
        a("v_and_b32 v15, 1, v2")
        a("v_lshl_add_u32 v7, v15, 4, v7")
        for i in range(8):
            a(f"v_add_u32 v{120+i}, {WS_KEY2+32*KS*i}, v7")

    def polls():
        if KS != 32:
            for i in range(8):
                a(f"global_load_dwordx4 {vr(KD+4*i,4)}, v{120+i}, {sr(P_WS,2)} {POLLF}")
            return
        for i in range(8):
            a(f"global_load_dwordx4 {vr(KD+4*i,4)}, v{7 if i < 4 else 15}, {sr(P_WS,2)} offset:{1024*(i&3)} {POLLF}")
    assert WS_KEY == 0
    a("v_lshlrev_b32 v8, 2, v2")
    a("v_sub_u32 v8, 2047, v8")
    for i in range(8):
        for e in range(4):
            a(f"v_subrev_u32 v{IX+4*i+e}, {256*i+e}, v8")
    a("v_lshrrev_b32 v9, 3, v2")
    a("v_and_b32 v9, 6, v9")
    a("v_xor_b32 v9, v9, v2")
    a("v_and_b32 v9, 7, v9")
    a(f"v_lshlrev_b32 v{CH}, 4, v9")
    a(f"v_mov_b32 v{VO}, 0")
    a(f"v_mov_b32 v{VK}, 0")
    a("s_mov_b32 s11, 0xffff0000")
    if E("DRY", 0):
        a("s_mov_b32 s15, 1")
        a("s_branch SEL_GOT")
        a.lab("SEL_BACK")
    a("s_mov_b32 s15, 0")
    a.spin(F_GD, 2, 13)
    a("s_mov_b32 s9, 0")
    a("s_waitcnt vmcnt(0)")
    if SELD:
        a(f"s_sleep {SELD}")
    a.stamp(8)
    a.lab("SEL_POLL")
    polls()
    if E("W1", 99) < 99:
        a(f"ds_write_b32 v1, v14 offset:{F_PI}")
    for i in range(8):
        a(f"s_waitcnt vmcnt({7-i})")
        if i == 0:
            a(f"v_xor_b32 v13, v{KD+1}, v14")
        else:
            a(f"v_bitop3_b32 v13, v13, v{KD+4*i+1}, v14 bitop3:0xf6")
        a(f"v_bitop3_b32 v13, v13, v{KD+4*i+3}, v14 bitop3:0xf6")
    a("v_cmp_ne_u32 vcc, 0, v13")
    a("s_add_u32 s9, s9, 1")
    a("s_cmp_eq_u64 vcc, 0")
    a("s_cbranch_scc1 SEL_GOT")
    a(f"s_cmp_lt_u32 s9, {SPIN}")
    a("s_cbranch_scc1 SEL_POLL")
    a.lab("SEL_GOT")
    if STAMP:
        a("s_mov_b32 s94, s9")
    a.stamp(6)
    for i in range(8):
        for h in range(2):
            a(f"v_lshl_or_b32 v{KY+4*i+2*h}, v{KD+4*i+2*h}, 16, v{IX+4*i+2*h}")
            a(f"v_and_or_b32 v{KY+4*i+2*h+1}, v{KD+4*i+2*h}, s11, v{IX+4*i+2*h+1}")
        ks = [KY + 4 * i + e for e in range(4)]
        if i == 0:
            a(f"v_min_u32 v{M2}, v{ks[0]}, v{ks[1]}")
            a(f"v_max_u32 v{M1}, v{ks[0]}, v{ks[1]}")
            ks = ks[2:]
        for k in ks:
            a(f"v_med3_u32 v{M2}, v{M1}, v{M2}, v{k}")
            a(f"v_max_u32 v{M1}, v{M1}, v{k}")
    a.stamp(3)

    def place(r):
        lo, hi = ((0xff << (8 * r)) & 0xffffffff, (0xff << (8 * r)) >> 32)
        return ["s_and_b32 s13, s12, 0x7ff", "s_sub_u32 s13, 2047, s13", "s_mul_i32 s13, s13, 1152",
                [f"s_mov_b32 exec_lo, {lo:#x}", f"s_mov_b32 exec_hi, {hi:#x}",
                 f"v_add_u32 v{VO}, s13, v{CH}", f"v_mov_b32 v{VK}, s12", "s_mov_b64 exec, -1"]]
    for r in range(8):
        if r == 0:
            a(f"v_mov_b32 v{T1}, v{M1}")
            fill = []
        else:
            a(f"v_subrev_u32 v{T1}, s12, v{M1}")
            a(f"v_subrev_u32 v{T2}, s12, v{M2}")
            a(f"v_max_u32 v{T1}, v{T1}, v{T2}")
            p = place(r - 1)
            fill = [p[0:2], [p[2]], p[3]]
        for st in wave_max_steps(T1):
            for x in (fill.pop(0) if fill else []):
                a(x)
            a(st)
        a(f"v_readlane_b32 s8, v{T1}, 63")
        a("s_add_u32 s12, s12, s8" if r else "s_mov_b32 s12, s8")
    p = place(7)
    for x in p[:3] + p[3]:
        a(x)
    if E("DRY", 0):
        a("s_cmp_lg_u32 s15, 0")
        a("s_cbranch_scc1 SEL_BACK")
    a("s_mov_b32 s14, 0")
    a.lab("SEL_GATHER")
    for b in range(9):
        a(f"s_mov_b32 m0, {XB + 896*b}")
        a(f"buffer_load_dwordx4 v{VO}, {sr(SX,4)}, 0 offen offset:{128*b} lds")
    a.signal(F_D, 13)
    a.stamp(4)
    a("s_cmp_lg_u32 s14, 0")
    a("s_cbranch_scc1 SEL_OK")
    TK = KD
    for k in range(32):
        a(f"v_sub_u32 v{TK+k}, v{KY+k}, v{M2}")

    def tree():
        for j in range(10):
            a(f"v_max3_u32 v{TK+3*j}, v{TK+3*j}, v{TK+3*j+1}, v{TK+3*j+2}")
        a(f"v_max3_u32 v{TK}, v{TK}, v{TK+3}, v{TK+6}")
        a(f"v_max3_u32 v{TK+9}, v{TK+9}, v{TK+12}, v{TK+15}")
        a(f"v_max3_u32 v{TK+18}, v{TK+18}, v{TK+21}, v{TK+24}")
        a(f"v_max3_u32 v{TK+27}, v{TK+27}, v{TK+30}, v{TK+31}")
        a(f"v_max3_u32 v{TK}, v{TK}, v{TK+9}, v{TK+18}")
        a(f"v_max_u32 v{TK}, v{TK}, v{TK+27}")
    tree()
    a(f"v_add_u32 v{TK}, v{TK}, v{M2}")
    a(f"v_cmp_lt_u32 vcc, s12, v{TK}")
    if E("FORCESLOW"):
        a("s_mov_b64 vcc, 1")
    a("s_cmp_eq_u64 vcc, 0")
    a("s_cbranch_scc1 SEL_OK")
    a("s_waitcnt vmcnt(0)")
    a("s_mov_b32 s12, 0")
    a("s_mov_b64 s[56:57], 0xff")
    a.lab("SEL_SLOW")
    for k in range(32):
        a(f"v_subrev_u32 v{TK+k}, s12, v{KY+k}")
    tree()
    for st in wave_max_steps(TK):
        a(st)
    a(f"v_readlane_b32 s8, v{TK}, 63")
    a("s_add_u32 s12, s12, s8")
    for x in place(0)[:3]:
        a(x)
    a("s_mov_b64 exec, s[56:57]")
    a(f"v_add_u32 v{VO}, s13, v{CH}")
    a(f"v_mov_b32 v{VK}, s12")
    a("s_mov_b64 exec, -1")
    a("s_lshl_b64 s[56:57], s[56:57], 8")
    a("s_add_u32 s14, s14, 1")
    a("s_cmp_lt_u32 s14, 8")
    a("s_cbranch_scc1 SEL_SLOW")
    a("s_branch SEL_GATHER")
    a.lab("SEL_OK")
    a("s_cmp_lg_u32 s2, 0")
    a("s_cbranch_scc1 SEL_NOPUB")
    if E("DBGP"):
        for i, p in enumerate([P_U, P_U+1, P_ARE, P_WR, P_WG, P_WG+1, P_WU, P_WD, P_GW, P_OUT, P_OUT+1, P_WS, P_WS+1, P_DBG, 0, 1]):
            a(f"v_mov_b32 v8, s{p}")
            a(f"global_store_dword v1, v8, {sr(P_DBG,2)} offset:{4*i}")
        a("s_waitcnt vmcnt(0)")
    a(f"v_mov_b32 v{VK+1}, v14")
    a(f"v_add_u32 v8, {WS_SEL}, v2")
    a("s_mov_b32 exec_lo, 0x01010101")
    a("s_mov_b32 exec_hi, 0x01010101")
    a(f"global_store_dwordx2 v8, {vr(VK,2)}, {sr(P_WS,2)} sc1")
    a("s_mov_b64 exec, 1")
    a(f"global_store_dword v8, v14, {sr(P_WS,2)} offset:{WS_BASE-WS_SEL} sc1")
    a("s_mov_b64 exec, -1")
    a("s_waitcnt vmcnt(2)")
    a("s_branch SEL_END")
    a.lab("SEL_NOPUB")
    a("s_waitcnt vmcnt(0)")
    a.lab("SEL_END")
    a("v_mov_b32 v8, 3")
    a(f"ds_write_b32 v1, v8 offset:{F_XR}")
    a.stamp(5)
    a.end()


def ffn_loader(a):
    a.lab("F_LOAD")
    a("s_setprio 3")
    SG, SU, SD = 52, 56, 60
    a("s_sub_u32 s12, s3, 9")
    a("v_lshrrev_b32 v5, 3, v2")
    a("v_bfe_u32 v6, v2, 4, 1")
    a("v_xor_b32 v6, v6, v2")
    a("v_and_b32 v6, 7, v6")
    a("s_movk_i32 s8, 9216")
    a("v_mul_lo_u32 v7, v5, s8")
    a("v_lshl_add_u32 v8, v6, 4, v7")
    a("v_xor_b32 v9, 32, v8")
    a("v_xor_b32 v10, 64, v8")
    a("v_xor_b32 v11, 96, v8")
    a("v_bfe_u32 v6, v2, 4, 1")
    a("v_lshlrev_b32 v6, 1, v6")
    a("v_xor_b32 v6, v6, v2")
    a("v_and_b32 v6, 7, v6")
    a("v_mul_u32_u24 v7, 1152, v5")
    a("v_lshl_add_u32 v12, v6, 4, v7")
    a("v_xor_b32 v13, 64, v12")
    a("s_mul_i32 s13, s12, 294912")
    a("s_lshl_b32 s8, s7, 7")
    a("s_add_u32 s13, s13, s8")
    a("s_lshl_b32 s15, s12, 13")
    a(f"s_add_u32 s15, s15, {WA}")
    a("s_mul_i32 s14, s12, 24576")
    a(f"s_add_u32 s14, s14, {WB}")
    a("s_mul_i32 s11, s7, 73728")
    a("s_mul_i32 s8, s12, 384")
    a("s_add_u32 s11, s11, s8")
    a("s_waitcnt lgkmcnt(0)")
    srd(a, SG, P_WG, 5308416)
    srd(a, SU, P_WU, 5308416)
    srd(a, SD, P_WD, 5308416)
    bulk_gate(a, 14)
    n = 0
    sig = 0

    def pre():
        nonlocal sig
        if n == E("W1", 99):
            a.spin(F_PI, 1, 14, sleep=1)
        if n == E("W0", 99):
            a.spin(F_NONCE, 0, 14, op="lg", sleep=1)
        if n >= WIN_F:
            a(f"s_waitcnt vmcnt({WIN_F-1})")
        if sig < 6 and n - WIN_F + 1 >= 8 * (sig + 1):
            a.signal(F_L + 4 * sig, 14)
            if sig in (0, 2, 5):
                a.stamp(1 + sig // 2)
            sig += 1
    for c in range(6):
        if c >= 3:
            a.spin(F_AC + 4 * (c - 3), 4, 14)
        for R in range(4):
            for mu in range(2):
                pre()
                a(f"s_add_u32 m0, s15, {(c%3)*24576 + R*2048 + mu*1024}")
                if not NOW:
                    a(f"buffer_load_dwordx4 v{8+2*mu+(R&1)}, {sr(SU if mu else SG,4)}, s13 offen {WNT} lds")
                n += 1
            a(f"s_add_u32 s13, s13, {73728 if R < 3 else 73728*9}")
    a.signal(F_D, 14)
    a.stamp(4)
    while sig < 6:
        a(f"s_waitcnt vmcnt({48 - 8*(sig+1)})")
        a.signal(F_L + 4 * sig, 14)
        sig += 1
    a.stamp(3)
    a("s_cmp_eq_u32 s3, 9")
    a("s_cbranch_scc1 F_COMP2")
    a.end()


def ffn_comp(a):
    a.lab("F_COMP")
    a.b0()
    a.lab("F_COMP2")
    a("s_and_b32 s12, s3, 3")
    a("v_lshrrev_b32 v5, 2, v3")
    a("v_bfe_u32 v7, v3, 3, 1")
    a("v_and_b32 v13, 1, v4")
    a("v_lshl_or_b32 v14, v13, 1, v7")
    a("v_and_b32 v15, 7, v3")
    a(f"v_mul_u32_u24 v16, {HS}, v15")
    a(f"v_add_u32 v16, {HB}, v16")
    a("s_mov_b32 s56, 0xff00ff00")
    a("s_mov_b32 s57, 0xff00ff00")
    a("s_lshr_b32 s8, s3, 2")
    a("s_cmp_lg_u32 s8, 1")
    a("s_cbranch_scc1 F_DOWN")
    WF, AG = 24, 8
    a("v_bfe_u32 v6, v3, 1, 1")
    a("v_lshl_or_b32 v8, v6, 2, v14")
    a("v_xor_b32 v8, s12, v8")
    a("v_lshlrev_b32 v8, 4, v8")
    a("v_lshl_add_u32 v8, v5, 7, v8")
    a("v_lshl_add_u32 v8, v6, 10, v8")
    a("v_lshl_add_u32 v8, v4, 11, v8")
    a("v_and_b32 v9, 1, v3")
    a("v_lshl_add_u32 v8, v9, 3, v8")
    a("v_xor_b32 v9, 64, v8")
    a(f"v_add_u32 v10, {WA+49152}, v8")
    a(f"v_add_u32 v11, {WA+49152}, v9")
    a("v_lshlrev_b32 v6, 2, v13")
    a("v_lshrrev_b32 v5, 1, v4")
    a("v_add_u32 v6, v6, v5")
    a("v_lshl_add_u32 v6, v7, 5, v6")
    a("s_lshl_b32 s8, s12, 3")
    a("v_add_lshl_u32 v6, v6, s8, 1")
    a("v_add_u32 v5, v6, v16")
    a("v_and_b32 v6, 6, v3")
    a("v_xor_b32 v6, v6, v4")
    a("v_lshlrev_b32 v6, 4, v6")
    a("v_lshl_add_u32 v6, v15, 7, v6")
    a(f"v_add_u32 v6, {XB}, v6")
    a("v_xor_b32 v7, 64, v6")
    for c in range(6):
        a.spin(F_L + 4 * c, 3, 12, sleep=E("CSL", 1))
        if c in (2, 5):
            a.stamp(2 + c // 3)
        for s in range(3):
            for t in range(2):
                base, off = (8 + t, WA + (c % 3) * 24576 + s * 8192) if c % 3 < 2 else (10 + t, s * 8192)
                r = WF + 8 * (3 * c + s) + 4 * t
                a(f"ds_read_b64_tr_b16 {vr(r,2)}, v{base} offset:{off}")
                a(f"ds_read_b64_tr_b16 {vr(r+2,2)}, v{base} offset:{off+512}")
        if c < 3:
            a("s_waitcnt lgkmcnt(0)")
            a.signal(F_AC + 4 * c, 12)
    a("s_setprio 3")
    a.spin(F_XR, 1, 12)
    a.stamp(4)
    a.auto(True)
    xs = lambda s: 16 + 4 * s
    def xrd(s):
        a(f"ds_read_b128 {vr(xs(s),4)}, v{7 if s&1 else 6} offset:{1024*(s>>1)}")
    xrd(0); xrd(1)
    nx = 2
    for s in range(18):
        for t in range(2):
            a(f"v_mfma_f32_16x16x32_bf16 {vr(AG+4*t,4)}, {vr(WF+8*s+4*t,4)}, {vr(xs(s),4)}, {vr(AG+4*t,4) if s else 0}")
            if nx < 18 and xs(nx) + 4 <= WF + 8 * s + 4 * t + 4:
                xrd(nx); nx += 1
    a.auto(False)
    a.stamp(8)
    for r in range(4):
        a(f"v_cndmask_b32 v{AG+r}, v{AG+r}, v{AG+4+r}, s[56:57]")
    a(f"v_permlane32_swap_b32 v{AG}, v{AG+1}")
    a(f"v_permlane32_swap_b32 v{AG+2}, v{AG+3}")
    for op in ("v_cvt_pk_bf16_f32 v{u}, v{g}, v{u}", "v_lshlrev_b32 v{g}, 16, v{u}", "v_mul_f32 v{t}, 0xbfb8aa3b, v{g}", "v_exp_f32 v{t}, v{t}",
               "v_and_b32 v{u}, 0xffff0000, v{u}", "v_add_f32 v{t}, 1.0, v{t}", "v_rcp_f32 v{t}, v{t}", "v_mul_f32 v{g}, v{g}, v{t}",
               "v_cvt_pk_bf16_f32 v{g}, v{g}, v{g}", "v_and_b32 v{g}, 0xffff0000, v{g}", "v_mul_f32 v{g}, v{g}, v{u}"):
        for p in range(2):
            a(op.format(g=AG + 2 * p, u=AG + 2 * p + 1, t=AG + 4 + p))
    a(f"v_cvt_pk_bf16_f32 v{AG}, v{AG}, v{AG+2}")
    a(f"ds_write_b16 v5, v{AG}")
    a(f"ds_write_b16_d16_hi v5, v{AG} offset:4")
    a.signal(F_HR, 12)
    a.stamp(5)
    a.end()
    a.lab("F_DOWN")
    RW, DF, AC, HF = 24, 56, 120, 152
    a("v_lshl_add_u32 v10, v4, 4, v16")
    a(f"v_mov_b32 v18, {HB+8*HS}")
    a("v_cndmask_b32 v19, v18, v10, s[56:57]")
    a("v_cndmask_b32 v18, v10, v18, s[56:57]")
    a("v_and_b32 v20, 31, v2")
    a("v_lshlrev_b32 v20, 2, v20")
    a(f"v_add_u32 v20, {HB+8*HS}, v20")
    a("ds_write_b32 v20, v1")
    a("v_mul_u32_u24 v8, 9216, v4")
    a("s_mul_i32 s13, s7, 73728")
    for j in range(4):
        a(f"s_mov_b32 s{60+j}, {0x07060500+j:#x}")
    a("s_mov_b32 s64, 0x05040100")
    a("s_mov_b32 s65, 0x07060302")
    a("s_lshl_b32 s14, s7, 7")
    a(f"s_add_u32 s14, s14, {WS_MB}")
    a("v_lshl_add_u32 v11, v15, 4, s14")
    a("s_waitcnt lgkmcnt(0)")
    srd(a, 52, P_WS, WS_SIZE)
    srd(a, 68, P_WD, 5308416)
    a("s_cmp_eq_u32 s3, 9")
    a("s_cbranch_scc1 F_DN2")

    def down(nd):
        nf = 2 * nd
        raw = lambda q, e: (RW if q == 0 else 88) + nd * e
        frg = lambda q, j: (DF if q == 0 else RW) + 4 * j
        for q in range(2):
            for e in range(8):
                if nd == 4 and E("DE", 4) and 8 * q + e == E("DE", 4):
                    a.spin(F_D, 4, 12, sleep=1)
                if not NOW:
                    a(f"buffer_load_dword{'x4' if nd == 4 else 'x2'} {vr(raw(q,e),nd)}, v8, s[68:71], s13 offen offset:{1152*(e&3)}")
                if e & 3 == 3:
                    a(f"s_add_u32 s13, s13, {4608 if e == 3 else 36864-4608}")
        def perms(q, p):
            a(f"s_waitcnt vmcnt({14 - 8*q - 2*p})")
            for j in range(nf):
                a(f"v_perm_b32 v{frg(q,j)+p}, v{raw(q,2*p+1)+(j>>1)}, v{raw(q,2*p)+(j>>1)}, s{64+(j&1)}")

        def mms(q):
            for j in range(nf):
                if nd == 4:
                    c = vr(AC + 4 * (j & 3), 4)
                    a(f"v_mfma_f32_16x16x32_bf16 {c}, {vr(frg(q,j),4)}, {vr(HF+8*(j>>2)+4*q,4)}, {c if q or j > 3 else 0}")
                else:
                    a(f"v_mfma_f32_16x16x32_bf16 {vr(AC+4*j,4)}, {vr(frg(q,j),4)}, {vr(HF+4*q,4)}, {vr(AC+4*j,4) if q else 0}")
        for q, p in [(0, 0), (0, 1), (0, 2), (0, 3), (1, 0), (1, 1)]:
            perms(q, p)
        a.spin(F_HR, 4, 12)
        a.stamp(5)
        for q in range(2):
            if nd == 4:
                a(f"ds_read_b128 {vr(HF+4*q,4)}, v18 offset:{64*q}")
                a(f"ds_read_b128 {vr(HF+8+4*q,4)}, v19 offset:{64*q}")
            else:
                a(f"ds_read_b128 {vr(HF+4*q,4)}, v10 offset:{64*q}")
        a(f"s_waitcnt lgkmcnt({nd//2})")
        mms(0)
        a("s_waitcnt lgkmcnt(0)")
        perms(1, 2)
        perms(1, 3)
        a.stamp(4)
        mms(1)
        O = 88
        for r in range(nd):
            for j in range(4):
                if nd == 4:
                    a(f"v_perm_b32 v{O+4*r+j}, v{AC+4*j+r}, v17, s{60+j}")
                else:
                    a(f"v_cndmask_b32 v{O+4*r+j}, v{AC+4*j+2*r}, v{AC+4*j+2*r+1}, s[56:57]")
            if nd == 2:
                for j in range(4):
                    a(f"v_perm_b32 v{O+4*r+j}, v{O+4*r+j}, v17, s{60+j}")
            a(f"s_mov_b32 s12, {18432*r}")
            a(f"buffer_store_dwordx4 {vr(O+4*r,4)}, v11, s[52:55], s12 offen sc1")
        a.stamp(6)
        a.end()
    a("v_lshl_add_u32 v8, v3, 4, v8")
    a("s_lshl_b32 s8, s3, 8")
    a("s_add_u32 s13, s13, s8")
    a("s_lshl_b32 s8, s3, 5")
    a("v_lshl_add_u32 v6, v4, 3, v7")
    a("v_add_u32 v6, s8, v6")
    a("v_mul_u32_u24 v6, 9216, v6")
    a("v_add_u32 v11, v6, v11")
    a.spin(F_X, 0, 17, op="lg", sleep=2)
    if SPB:
        a("s_mul_i32 s8, s7, 73728")
        a(f"s_mul_i32 s9, s3, {SPB*15*128}")
        a("s_add_u32 s8, s8, s9")
        a(f"s_add_u32 s72, s{P_WD}, s8")
        a(f"s_addc_u32 s73, s{P_WD+1}, 0")
        a("s_mov_b32 s9, 0")
        a.lab("F_SP")
        for i in range(15):
            a(f"s_load_dword s74, s[72:73], {128*i}")
        a("s_add_u32 s72, s72, 1920")
        a("s_addc_u32 s73, s73, 0")
        a("s_add_u32 s9, s9, 1")
        a("s_waitcnt lgkmcnt(0)")
        a(f"s_cmp_lt_u32 s9, {SPB}")
        a("s_cbranch_scc1 F_SP")
        a.stamp(2)
    a.spin(F_D, 3 if E("DE", 4) else 4, 12, sleep=1)
    a("s_setprio 2")
    down(4)
    a.lab("F_DN2")
    a("v_lshl_add_u32 v8, v3, 3, v8")
    a("s_add_u32 s13, s13, 1024")
    a("v_lshl_add_u32 v6, v4, 2, v7")
    a("v_add_u32 v6, 128, v6")
    a("v_mul_u32_u24 v6, 9216, v6")
    a("v_add_u32 v11, v6, v11")
    a.spin(F_X, 0, 17, op="lg")
    down(2)


def relay(a):
    a.lab("RELAY")
    a(f"s_sub_u32 s12, s5, {NJF}")
    a("s_lshl_b32 s12, s12, 3")
    a("s_add_u32 s12, s12, s4")
    a("s_cmp_ge_u32 s12, 32")
    a("s_cbranch_scc1 RL_END")
    a("s_cmp_gt_u32 s3, 8")
    a("s_cselect_b32 s13, 3, 2")
    a("s_sub_u32 s13, s3, s13")
    a("s_lshl_b32 s8, s13, 18")
    a("s_lshl_b32 s9, s12, 9")
    a("s_add_u32 s8, s8, s9")
    a(f"s_add_u32 s8, s8, {WS_Y}")
    a("v_lshrrev_b32 v5, 5, v2")
    a("v_and_b32 v6, 31, v2")
    a("v_lshlrev_b32 v7, 14, v5")
    a("v_lshl_add_u32 v7, v6, 4, v7")
    a("v_add_u32 v16, s8, v7")
    for k in range(1, 8):
        a(f"v_add_u32 v{16+k}, {32768*k}, v16")
    RS = 144
    a(f"s_mul_i32 s14, s13, {32*RS}")
    a("s_add_u32 s14, s14, 256")
    a(f"v_mul_u32_u24 v7, {RS}, v6")
    a("v_lshl_add_u32 v7, v5, 3, v7")
    a("v_add_u32 v7, s14, v7")
    a("v_lshrrev_b32 v5, 3, v2")
    a("v_and_b32 v6, 7, v2")
    a(f"v_mul_u32_u24 v8, {RS}, v5")
    a("v_lshl_add_u32 v8, v6, 4, v8")
    a("v_add_u32 v8, s14, v8")
    a("v_mul_u32_u24 v9, 1152, v5")
    a("v_lshl_add_u32 v9, v6, 4, v9")
    a("s_mul_i32 s8, s12, 36864")
    a("s_lshl_b32 s9, s13, 7")
    a("s_add_u32 s8, s8, s9")
    a("v_add_u32 v9, s8, v9")
    a("s_lshl_b32 s8, s12, 5")
    a("s_sub_u32 s8, 2047, s8")
    a("v_sub_u32 v11, s8, v5")
    a("v_lshlrev_b32 v12, 3, v6")
    a(f"v_add_u32 v12, {WS_SEL}, v12")
    a.spin(F_X, 0, 10, op="lg", sleep=4)
    a("s_mov_b32 s9, 0")
    a.lab("RL_S")
    a("s_sleep 8")
    a(f"global_load_dwordx2 v[14:15], v12, {sr(P_WS,2)} sc1")
    a("s_waitcnt vmcnt(0)")
    a("v_cmp_ne_u32 vcc, v15, v10")
    a("s_add_u32 s9, s9, 1")
    a("s_cmp_eq_u64 vcc, 0")
    a("s_cbranch_scc1 RL_SD")
    a(f"s_cmp_lt_u32 s9, {SPIN}")
    a("s_cbranch_scc1 RL_S")
    a.lab("RL_SD")
    a.stamp(2)
    a("v_and_b32 v14, 0x7ff, v14")
    for i in range(4):
        a(f"v_subrev_u32 v13, {8*i}, v11")
        a("v_cmp_eq_u32 vcc, v13, v14")
        a("v_cndmask_b32 v13, 0, -1, vcc")
        a(f"v_or_b32_dpp v13, v13, v13 quad_perm:[1,0,3,2] {DPPF}")
        a(f"v_or_b32_dpp v13, v13, v13 quad_perm:[2,3,0,1] {DPPF}")
        a(f"v_or_b32_dpp v13, v13, v13 row_half_mirror {DPPF}")
        a(f"v_cmp_eq_u32 s[{56+2*i}:{57+2*i}], 0, v13")
    if E("YD", 8):
        a(f"s_sleep {E('YD', 8)}")
    a("s_mov_b32 s9, 0")
    a.lab("RL_P")
    for k in range(8):
        a(f"global_load_dwordx4 {vr(24+4*k,4)}, v{16+k}, {sr(P_WS,2)} sc1")
    for k in range(8):
        a(f"s_waitcnt vmcnt({7-k})")
        a("v_xor_b32 v13, v26, v10" if k == 0 else f"v_bitop3_b32 v13, v13, v{26+4*k}, v10 bitop3:0xf6")
        a(f"ds_write_b64 v7, {vr(24+4*k,2)} offset:{16*k}")
    a("v_cmp_ne_u32 vcc, 0, v13")
    a("s_add_u32 s9, s9, 1")
    a("s_cmp_eq_u64 vcc, 0")
    a("s_cbranch_scc1 RL_PD")
    a("s_waitcnt lgkmcnt(0)")
    a(f"s_cmp_lt_u32 s9, {SPIN}")
    a("s_cbranch_scc1 RL_P")
    a.lab("RL_PD")
    a.stamp(3)
    if STAMP:
        a("s_mov_b32 s94, s9")
        a("s_waitcnt lgkmcnt(0)")
    for i in range(4):
        a(f"ds_read_b128 {vr(56+4*i,4)}, v8 offset:{8*RS*i}")
    for i in range(4):
        a(f"s_waitcnt lgkmcnt({3-i})")
        a(f"s_mov_b64 exec, s[{56+2*i}:{57+2*i}]")
        a(f"s_cbranch_execz RL_N{i}")
        a(f"global_store_dwordx4 v9, {vr(56+4*i,4)}, {sr(P_OUT,2)}")
        a.lab(f"RL_N{i}")
        a("s_mov_b64 exec, -1")
        a("v_add_u32 v9, 9216, v9")
    if STAMP:
        a("s_waitcnt vmcnt(0)")
    a.lab("RL_END")
    a.end()


def helper(a):
    a.lab("HELPER")
    if not HPN:
        a.end()
        return
    a(f"s_cmp_ge_u32 s3, {2+HPW}")
    a("s_cbranch_scc1 " + ("RELAY" if YX else "K_END"))
    a("s_and_b32 s12, s3, 1")
    a("s_sub_u32 s13, s3, 2")
    a("s_lshr_b32 s13, s13, 1")
    a("s_mul_i32 s13, s13, 5")
    a("s_add_u32 s13, s13, s5")
    a(f"s_add_u32 s13, s13, {(HPS-NJF) & 0xffffffff}")
    prefetch(a, HPN, E("HH", 0))
    if STAMP or YX:
        a("s_waitcnt vmcnt(0)")
        a.stamp(1)
    if YX:
        relay(a)
    else:
        a.end()


DSK, EXPN = 166, 167
PA, PB, A16, PC, PD, A32, E2, EF = 104, 108, 112, 116, 120, 124, 128, 152


def cmul(a, d, x, y):
    a(f"v_pk_mul_f32 {vr(d,2)}, {vr(x,2)}, {vr(y,2)} op_sel:[0,0] op_sel_hi:[0,1]")
    a(f"v_pk_fma_f32 {vr(d,2)}, {vr(x,2)}, {vr(y,2)}, {vr(d,2)} op_sel:[1,1,0] op_sel_hi:[1,0,1] neg_lo:[0,1,0]")


def kgen_head(a):
    a.lab("C_KGEN")
    a.fine(6)
    PR = 16
    a("s_and_b32 s12, s3, 3")
    a("s_lshr_b32 s13, s3, 2")
    a("s_lshl_b32 s14, s7, 2")
    a("s_add_u32 s14, s14, s12")
    a("s_lshl_b32 s8, s14, 8")
    a("s_lshl_b32 s9, s13, 7")
    a("s_add_u32 s8, s8, s9")
    a("v_lshl_add_u32 v5, v2, 1, s8")
    for k in range(6):
        a(f"v_mov_b32 v{PR+k}, 0")
    a("s_lshl_b32 s55, s7, 3")
    a("s_setprio 2")
    a(f"s_mul_i32 s15, s3, {KTS}")
    a(f"s_add_u32 s15, s15, {KT}")
    a(f"s_mul_i32 s52, s12, {4*CS}")
    a(f"s_add_u32 s52, s52, {KC}")
    a(f"s_mul_i32 s53, s12, {US}")
    a(f"s_add_u32 s53, s53, {UP}")
    a(f"v_mul_u32_u24 v7, {TS}, v3")
    a("v_lshl_add_u32 v7, v4, 4, v7")
    a("v_add_u32 v7, s15, v7")
    a("s_mov_b32 m0, s15")
    a("s_waitcnt lgkmcnt(0)")
    a.fine(7)
    a(f"s_load_dwordx2 s[58:59], {sr(P_LDT,2)}, s55")
    for k, p in enumerate([P_ARE, P_AIM, P_BRE, P_BIM, P_CRE, P_CIM]):
        a(f"global_load_short_d16_hi v{PR+k}, v5, {sr(p,2)}")
    a(f"s_load_dwordx2 s[68:69], {sr(P_DSK,2)}, s55")
    a.b0()
    a("s_branch C_KBODY")


def kgen(a):
    a.lab("C_KBODY")
    PR = 16
    a.lab("C_SETD")
    a.fine(8)
    a("s_waitcnt lgkmcnt(0)")
    a.auto(True)
    a("s_lshl_b32 s8, s12, 4")
    a("s_lshr_b64 s[58:59], s[58:59], s8")
    a("s_lshl_b32 s8, s58, 16")
    a("v_mov_b32 v44, s8")
    a(f"v_mul_f32 v45, {L2E:#x}, v44")
    a(f"v_mov_b32 v46, {L2E:#x}")
    a("v_fma_f32 v46, v44, v46, -v45")
    a(f"v_mov_b32 v47, {L2E_LO:#x}")
    a("v_fma_f32 v46, v44, v47, v46")
    a("v_exp_f32 v45, v45")
    a(f"v_mul_f32 v46, {LN2:#x}, v46")
    a("v_fma_f32 v45, v45, v46, v45")
    a("v_cvt_pk_bf16_f32 v45, v45, v45")
    DT, DTL, DTR = 36, 37, 38
    a(f"v_and_b32 v{DT}, 0xffff0000, v45")
    a(f"v_mul_f32 v{DTL}, {L2E:#x}, v{DT}")
    a(f"v_mul_f32 v{DTR}, {INV2PI:#x}, v{DT}")
    a("s_waitcnt vmcnt(0)")
    a.stamp(1)
    if STAMP and E("CLK2"):
        a("s_memtime s[90:91]")
    ZR, ZI, WR = 40, 41, 42
    a(f"v_mul_f32 v{ZR}, v{PR}, v{DTL}")
    a(f"v_mul_f32 v{ZI}, v{PR+1}, v{DTR}")
    T0 = 24

    def direct(dst, c):
        if c != 1:
            a(f"v_mul_f32 v{dst}, {fbits(c):#x}, v{ZR}")
            a(f"v_mul_f32 v{dst+1}, {fbits(c):#x}, v{ZI}")
        a(f"v_exp_f32 v{T0}, v{dst if c != 1 else ZR}")
        a(f"v_fract_f32 v{dst+1}, v{dst+1 if c != 1 else ZI}")
        a(f"v_cos_f32 v{dst}, v{dst+1}")
        a(f"v_sin_f32 v{dst+1}, v{dst+1}")
        a(f"v_mul_f32 v{dst}, v{T0}, v{dst}")
        a(f"v_mul_f32 v{dst+1}, v{T0}, v{dst+1}")
    PW, R1 = 46, 44
    pc = lambda c: PW + 2 * (c - 1)
    direct(pc(1), 1)
    a(f"v_mul_f32 v{PR+2}, v{PR+2}, v{DT}")
    a(f"v_mul_f32 v{PR+3}, v{PR+3}, v{DT}")
    cmul(a, WR, PR + 4, PR + 2)
    a(f"v_max_f32 v39, |v{WR}|, |v{WR+1}|")
    side = wave_max_steps(39) + ["v_readlane_b32 s8, v39, 63"]
    OT = [26, 27, 28, 29]
    cnt = [0]

    pend = []

    def flush():
        while pend:
            a(pend.pop(0))

    def emit(row, x):
        o = OT[cnt[0] % 4]
        cnt[0] += 1
        flush()
        a(f"v_cvt_pk_f16_f32 v{o}, v{x}, v{x+1}")
        pend.append(f"ds_write_addtid_b32 v{o} offset:{row*TS}")
    cmul(a, pc(2), pc(1), pc(1))
    cmul(a, pc(4), pc(2), pc(2))
    Q1, QA, QB = 60, 62, 64
    cmul(a, Q1, pc(4), pc(4))
    a(f"v_mov_b32 v30, 0x3c00")
    a(f"v_xor_b32 v{Q1+1}, 0x80000000, v{Q1+1}")
    a("ds_write_addtid_b32 v30")
    emit(1, Q1)
    cur, nxt = Q1, QA
    for b in range(2, 16):
        cmul(a, nxt, cur, Q1)
        if side:
            a(side.pop(0))
        emit(b, nxt)
        cur, nxt = nxt, (QB if nxt == QA else QA)
    a("s_lshr_b32 s8, s8, 23")
    a("s_sub_u32 s8, 258, s8")
    a("s_min_u32 s54, s8, 253")
    a("s_lshl_b32 s8, s54, 23")
    a(f"v_mul_f32 v{WR}, s8, v{WR}")
    a(f"v_mul_f32 v{WR+1}, s8, v{WR+1}")
    QF, PF, KA = 72, 88, 104
    flush()
    for ks in range(4):
        a(f"ds_read_b128 {vr(QF+4*ks,4)}, v7 offset:{64*ks}")
    direct(R1, 128)
    cmul(a, pc(3), pc(2), pc(1)); cmul(a, pc(5), pc(4), pc(1)); cmul(a, pc(6), pc(3), pc(3)); cmul(a, pc(7), pc(6), pc(1))
    CH = [66, 68]
    YC = [60, 62]
    state = {"cur": WR, "k": 0, "y": 0}

    def adv():
        n = CH[state["k"] & 1]
        cmul(a, n, state["cur"], R1)
        state["cur"] = n; state["k"] += 1

    def row(r, c):
        if c == 0:
            emit(r, state["cur"])
        else:
            y = YC[state["y"] & 1]; state["y"] += 1
            cmul(a, y, state["cur"], pc(c))
            emit(r, y)

    def rd():
        flush()
        for ks in range(4):
            a(f"ds_read_b128 {vr(PF+4*ks,4)}, v7 offset:{64*ks}")

    def mm(t, ks):
        a(f"v_mfma_f32_16x16x32_f16 {vr(KA+4*t,4)}, {vr(PF+4*ks,4)}, {vr(QF+4*ks,4)}, {vr(KA+4*t,4) if ks else 0}")
    for h in range(2):
        for c in range(8):
            row(8 * h + c, c)
        adv()
    rd()
    for h in range(2):
        for c in range(4):
            row(4 * h + c, 2 * c)
            if h == 1:
                mm(0, c)
        adv()
    for q in range(4):
        row(8 + 2 * q, 0); row(9 + 2 * q, 4)
        adv()
    rd()
    for q in range(9):
        row(q, 0)
        if q < 8:
            adv()
        if 4 <= q < 8:
            mm(1, q - 4)
    rd()
    a("v_lshl_add_u32 v8, v2, 4, s15")
    for ks in range(4):
        mm(2, ks)
    a.auto(False)
    a.stamp(2)
    if STAMP and E("CLK2"):
        a("s_memtime s[96:97]")
    a("s_lshl_b32 s8, s12, 2")
    a(f"s_add_u32 s8, s8, {F_PAIR}")
    a("v_mov_b32 v9, s8")
    a("s_cmp_eq_u32 s13, 0")
    a("s_cbranch_scc1 C_KA")
    for t in range(3):
        a(f"ds_write_b128 v8, {vr(KA+4*t,4)} offset:{1024*t}")
    a("v_mov_b32 v10, s54")
    a("ds_write_b32 v9, v10")
    a.stamp(3)
    a("s_setprio 0")
    a("v_and_b32 v14, 3, v3")
    a("v_sub_u32 v14, 3, v14")
    a(f"v_mul_u32_u24 v14, {CS}, v14")
    a("v_lshrrev_b32 v13, 2, v3")
    a("v_lshl_add_u32 v13, v4, 1, v13")
    a("v_lshl_add_u32 v14, v13, 3, v14")
    a("v_add3_u32 v5, v14, s52, 8")
    a("v_lshlrev_b32 v14, 1, v3")
    a("v_sub_u32 v14, v4, v14")
    a("v_lshlrev_b32 v14, 4, v14")
    a(f"s_add_u32 s8, s53, {4064-512*7}")
    a("v_add_u32 v6, s8, v14")
    a("v_lshl_add_u32 v14, v3, 2, v4")
    a(f"s_mul_i32 s8, s12, {OS}")
    a(f"s_add_u32 s8, s8, {OP+4088-512*7}")
    a("v_lshlrev_b32 v14, 3, v14")
    a("v_sub_u32 v7, s8, v14")
    a.spin(F_H, 1, 10, prio=E("BSP", 3), sleep=1)
    a.spin(f"v9 offset:{F_K-F_PAIR}", 0, 10, op="lg", sleep=E("BSS", 0))
    a.stamp(4)
    gphase(a, 0)
    a.lab("C_KA")
    a("s_setprio 1")
    a("v_and_b32 v14, 3, v3")
    a("v_sub_u32 v14, 3, v14")
    a(f"v_mul_u32_u24 v14, {CS}, v14")
    a("v_lshrrev_b32 v13, 2, v3")
    a("v_lshl_add_u32 v13, v4, 1, v13")
    a("v_lshl_add_u32 v14, v13, 3, v14")
    a("v_add3_u32 v5, v14, s52, 8")
    a("v_lshlrev_b32 v14, 1, v3")
    a("v_sub_u32 v14, v4, v14")
    a("v_lshlrev_b32 v14, 4, v14")
    a(f"s_add_u32 s8, s53, {4064-512*7}")
    a("v_add_u32 v6, s8, v14")
    a("v_lshl_add_u32 v14, v3, 2, v4")
    a(f"s_mul_i32 s8, s12, {OS}")
    a(f"s_add_u32 s8, s8, {OP+4088-512*7}")
    a("v_lshlrev_b32 v14, 3, v14")
    a("v_sub_u32 v7, s8, v14")
    a("v_lshrrev_b32 v11, 1, v4")
    a("v_and_b32 v12, 1, v4")
    a("v_lshlrev_b32 v11, 8, v11")
    a("v_lshl_add_u32 v11, v12, 3, v11")
    a("v_lshl_add_u32 v11, v3, 4, v11")
    a("v_add_u32 v11, s15, v11")
    a("v_cmp_gt_u32 vcc, 2, v4")
    a("v_lshlrev_b32 v12, 2, v3")
    a("v_lshlrev_b32 v13, 3, v3")
    a("v_cndmask_b32 v12, v12, v13, vcc")
    a("v_lshl_add_u32 v12, v4, 7, v12")
    a("v_add_u32 v12, s15, v12")
    a("v_mov_b32 v13, 64")
    a("v_cndmask_b32 v13, v13, 4, vcc")
    a("v_add_u32 v13, v13, v12")
    a("v_lshlrev_b32 v14, 1, v3")
    a("v_lshl_add_u32 v14, v4, 7, v14")
    a("v_add_u32 v14, s15, v14")
    a("v_lshlrev_b32 v15, 4, v2")
    a("v_lshlrev_b32 v16, 3, v2")
    a("v_add_u32 v16, 256, v16")
    a("v_min_u32 v15, v15, v16")
    a("v_add_u32 v15, s15, v15")
    EB, E2B = 2048, 3072
    a("v_min_u32 v16, 15, v2")
    a("v_lshl_add_u32 v16, v16, 2, s15")
    a("v_lshrrev_b32 v26, 5, v2")
    a("v_lshlrev_b32 v26, 8, v26")
    a("v_lshl_add_u32 v26, v2, 2, v26")
    a("v_add_u32 v26, s15, v26")
    a("v_lshlrev_b32 v17, 2, v4")
    a("v_sub_u32 v17, v3, v17")
    a("v_lshl_add_u32 v27, v17, 3, s15")
    a(f"v_add_u32 v27, {E2B+104}, v27")
    a("v_lshl_add_u32 v17, v17, 2, s15")
    a(f"v_add_u32 v17, {EB+52}, v17")
    a("v_lshl_add_u32 v19, v2, 4, s52")
    a("s_mov_b32 s56, 0x01000100")
    a("s_mov_b32 s57, 0x03020302")
    a("s_lshl_b32 s8, s12, 4")
    a("s_lshr_b64 s[68:69], s[68:69], s8")
    a("s_lshl_b32 s68, s68, 16")
    a("s_sub_u32 s58, 254, s54")
    a("s_lshl_b32 s58, s58, 23")
    for r in range(12):
        a(f"v_mul_f32 v{KA+r}, s58, v{KA+r}")
    a("s_mov_b64 exec, 1")
    a(f"v_add_f32 v{KA}, s68, v{KA}")
    a("s_mov_b64 exec, -1")
    for r in (3, 7, 10, 11, 14, 15):
        a(f"v_mov_b32 v{72+r}, 0")
    a("v_lshlrev_b32 v28, 4, v2")
    a(f"v_add_u32 v28, {PM}, v28")
    a.spin(F_PM, 2, 18)
    for k, r in ((2, PC), (3, PD), (4, A32)):
        a(f"ds_read_b128 {vr(r,4)}, v28 offset:{1024*k}")
    a.spin("v9", 0, 18, prio=2, op="lg")
    a("s_sub_u32 s60, 254, s8")
    a("s_lshl_b32 s60, s60, 23")
    a.auto(True)
    for t in range(3):
        a(f"ds_read_b128 {vr(PF+4*t,4)}, v8 offset:{4*KTS+1024*t}")
    for t in range(3):
        for p in range(2):
            r = 4 * t + 2 * p
            a(f"v_pk_fma_f32 {vr(KA+r,2)}, {vr(PF+r,2)}, s[60:61], {vr(KA+r,2)} op_sel_hi:[1,0,1]")
            a(f"v_cvt_pk_bf16_f32 v{20+2*t+p}, v{KA+r}, v{KA+r+1}")
        if t == 0:
            a("ds_write_b64 v11, v[20:21]")
        elif t == 1:
            a("ds_write_b32 v12, v22 offset:512")
            a("ds_write_b32 v13, v23 offset:512")
            S = 32
            for p in range(2):
                a(f"ds_read_b64 {vr(S+2*p,2)}, v15 offset:{8*p}")
    a("s_mov_b32 exec_lo, 0")
    a(f"v_alignbit_b32 v{S+3}, v{S+2}, v{S+1}, 16")
    a(f"v_perm_b32 v{S+2}, v{S+1}, v{S+1}, s56")
    a(f"v_alignbit_b32 v{S+1}, v{S+1}, v{S}, 16")
    a(f"v_perm_b32 v{S}, v{S}, v{S}, s56")
    a("s_mov_b32 exec_lo, -1")
    a(f"ds_write_b128 v19, {vr(S,4)} offset:32")
    a(f"v_mov_b32_dpp v{S-2}, v{S+2} wave_shr:1 {DPPF} bound_ctrl:0")
    a(f"v_mov_b32_dpp v{S-1}, v{S+3} wave_shr:1 {DPPF} bound_ctrl:0")
    C1, C2, C3 = 44, 52, 60
    for p in range(4):
        a(f"v_alignbit_b32 v{C1+p}, v{S+p}, v{S+p-1}, 16")
    a(f"ds_write_b128 v19, {vr(C1,4)} offset:{CS+32}")
    for p in range(4):
        a(f"v_mov_b32 v{C2+p}, v{S+p-1}")
    a(f"ds_write_b128 v19, {vr(C2,4)} offset:{2*CS+32}")
    for p in range(4):
        a(f"v_alignbit_b32 v{C3+p}, v{S+p-1}, v{S+p-2}, 16")
    a(f"ds_write_b128 v19, {vr(C3,4)} offset:{3*CS+32}")
    a("v_mov_b32 v10, 1")
    a(f"ds_write_b32 v9, v10 offset:{F_K-F_PAIR}")
    a.stamp(3)
    a(f"s_setprio {E('GPL', 3)}")
    TL = 72
    a(f"v_perm_b32 v{TL+1}, v{S+3}, v{S+3}, s57")
    a(f"v_alignbit_b32 v{TL}, v{S+3}, v{S+2}, 16")
    a(f"v_lshrrev_b32 v{TL+6}, 16, v{S+3}")
    a(f"v_mov_b32 v{TL+4}, v{S+3}")
    for r in (2, 5, 8, 9, 12):
        a(f"v_mov_b32 v{TL+r}, v{TL+1}")
    a(f"v_mov_b32 v{TL+13}, v{TL+6}")
    a("s_mov_b32 exec_lo, 0")
    for r in range(4):
        a(f"ds_write_b16{'_d16_hi' if r&1 else ''} v{12+(r>>1)}, v{22+(r>>1)} offset:{E2B-130+2*(r&1)}")
    a("s_mov_b32 exec_hi, 0x80000000")
    for j in range(4):
        a(f"ds_write_b128 v19, {vr(TL+4*(3-j),4)} offset:{j*CS+48}")
    a("s_mov_b64 exec, 1")
    a(f"ds_write_b16 v14, v24 offset:{E2B+382}")
    a("s_mov_b64 exec, -1")
    a(f"ds_write_b32 v26, v1 offset:{E2B}")
    for r in range(4):
        a(f"ds_write_b16{'_d16_hi' if r&1 else ''} v14, v{24+(r>>1)} offset:{EB+62+32*r}")
    a(f"ds_write_b32 v16, v1 offset:{EB}")
    a("v_readlane_b32 s59, v24, 0")
    a("v_mov_b32 v11, v27")
    a("v_mov_b32 v12, v17")
    a("v_mov_b32 v13, v28")
    a("s_pack_ll_b32_b16 s59, s59, s59")
    a.auto(False)
    a.spin(F_H, 2, 10, sleep=1)
    a.stamp(4)
    gphase(a, 1)


def bias_of(a, d, m):
    a(f"v_lshrrev_b32 v{d}, 7, v{m}")
    a(f"v_subrev_u32 v{d}, 26, v{d}")
    a(f"v_max_i32 v{d}, 0, v{d}")


def gphase(a, isA):
    M = "v_mfma_f32_16x16x32_bf16"
    rdA = lambda m, d: [f"ds_read_b64 {vr(d,2)}, v5 offset:{64*m}", f"ds_read_b64 {vr(d+2,2)}, v5 offset:{64*m+8}"]
    rdB = lambda b, rho, d, extra=0: f"ds_read_b128 {vr(d,4)}, v6 offset:{512*(7-b)+64*rho+extra}"
    slot = lambda t: 1024 * (t - 2) if t < 6 else 4 * KTS + 1024 * (t - 6)

    def emit(main, fill=[], per=2, skip=0):
        for x in interleave(main, fill, per=per, skip=skip):
            a(x)
    if isA:
        a(f"s_setprio {E('GPA', 1)}")
        AC = 16
        acc = lambda t: vr(AC + 4 * (t - 2), 4)
        started = set()

        def mf(t, A, B):
            c = acc(t) if t in started else "0"
            started.add(t)
            return f"{M} {acc(t)}, {vr(A,4)}, {vr(B,4)}, {c}"
        U = lambda b: 40 + 8 * (b & 1)
        Z = lambda b: 56 + 24 * (b & 1)
        urd = lambda b: [rdB(b, 0, U(b)), rdB(b, 0, U(b) + 4, 16)]
        PL = [(0, PC), (0, PD), (1, PC), (1, PD), (0, PA), (1, PB)]
        pool2 = lambda b: [f"{M} {vr(Z(b)+4*k,4)}, {vr(U(b)+4*h,4)}, {vr(P,4)}, 0" for k, (h, P) in enumerate(PL) if k < 4] + [mf(b + 2, A16, U(b))]
        pool3 = lambda b: [f"{M} {vr(Z(b)+4*k,4)}, {vr(U(b)+4*h,4)}, {vr(P,4)}, 0" for k, (h, P) in enumerate(PL) if k >= 4] + [mf(b + 4, A32, U(b))] if b < 4 else []
        cvt = lambda b, fs: [f"v_cvt_pk_bf16_f32 v{Z(b)+8*f+r}, v{Z(b)+8*f+r}, v{Z(b)+8*f+4+r}" for f in fs for r in range(4)]
        use2 = lambda b, lo, hi: [mf(b + 2 + D, Z(b) + 8 * f, E2 + 8 * D + 4 * f) for D in range(3) if lo <= b + 2 + D < min(hi, 8) for f in range(2)]
        use3 = lambda b: [mf(t, Z(b) + 16, EF + 4 * (t - b - 4)) for t in range(b + 4, 8)]
        hand = lambda t: [f"ds_write_b128 v8, {acc(t)} offset:{slot(t)}", f"v_mov_b32 v10, {t}", f"ds_write_b32 v9, v10 offset:{F_I-F_PAIR}"]
        e2rd = lambda D: [x for f in range(2) for x in (f"ds_read2_b32 {vr(E2+8*D+4*f,2)}, v11 offset0:{32*D+6+f} offset1:{32*D+4+f}",
                                                        f"ds_read2_b32 {vr(E2+8*D+4*f+2,2)}, v11 offset0:{32*D+2+f} offset1:{32*D+f}")]
        efrd = [x for D in range(4) for x in (f"ds_read2_b32 {vr(EF+4*D,2)}, v12 offset0:{16*D+3} offset1:{16*D+2}",
                                              f"ds_read2_b32 {vr(EF+4*D+2,2)}, v12 offset0:{16*D+1} offset1:{16*D}")]
        a.auto(True)
        emit(urd(0) + urd(1) + rdA(16, A16) + e2rd(0))
        for p in range(4):
            a(f"v_and_b32 v{A32+p}, s59, v{A32+p}")
        emit(pool2(0), e2rd(1) + [f"ds_read_b128 {vr(PA,4)}, v13", f"ds_read_b128 {vr(PB,4)}, v13 offset:1024"], per=1)
        emit(pool2(1), cvt(0, (0, 1)))
        emit(use2(0, 2, 4), cvt(1, (0, 1)))
        emit(use2(1, 2, 4) + pool3(0) + pool3(1), e2rd(2) + hand(2) + efrd + hand(3), per=2)
        a.auto(False)
        a.spin(F_H, 4, 10, sleep=1)
        a.auto(True)
        emit(urd(2) + urd(3) + use2(0, 4, 8) + use2(1, 4, 8), cvt(0, (2,)) + cvt(1, (2,)))
        emit(pool2(2) + use3(0) + use3(1))
        emit(pool2(3) + pool3(2), cvt(2, (0, 1)))
        emit(use2(2, 4, 8) + pool3(3), cvt(3, (0, 1)) + cvt(2, (2,)) + hand(4))
        emit(use2(3, 4, 8) + use3(2), cvt(3, (2,)) + ["s_nop 0"] * 4 + hand(5))
        emit(use3(3))
        a.auto(False)
        a.stamp(5)
        a.spin(F_H, 6, 10, sleep=1)
        a.auto(True)
        emit(urd(4) + urd(5) + pool2(4))
        emit(pool2(5), cvt(4, (0, 1)))
        emit(use2(4, 4, 8), cvt(5, (0, 1)))
        emit(use2(5, 4, 8) + hand(6) + hand(7))
        a.auto(False)
        a.stamp(7)
        a.end()
        return
    a(f"s_setprio {E('GPB', 2)}")
    AF, BF, NB = 40, 104, 6
    acc = lambda t: 16 + 4 * (t % 3)
    a(f"v_subrev_u32 v8, {4*KTS}, v8")
    a("v_cmp_eq_u32 vcc, 0, v2")
    a(f"v_mov_b32 v13, {F_O}")
    a("v_cndmask_b32 v12, 0, 1, vcc")
    a("v_lshlrev_b32 v14, 2, v2")
    a(f"v_add_u32 v14, {PM+5120}, v14")
    a("v_cndmask_b32 v13, v14, v13, vcc")
    stage = {1: 0, 3: 1, 5: 2, 6: 3, 7: 4}

    PT = 32

    def yout(t):
        o = [f"v_add_f32 v{acc(t)+r}, v{acc(t)+r}, v{PT+r}" for r in range(4)] if t >= 2 else []
        o += [f"v_cvt_pk_bf16_f32 v30, v{acc(t)+3}, v{acc(t)+2}", f"v_cvt_pk_bf16_f32 v31, v{acc(t)+1}, v{acc(t)}",
              f"ds_write_b64 v7, v[30:31] offset:{512*(7-t)}"]
        if t in stage:
            o.append(f"ds_add_u32 v13, v12 offset:{4*stage[t]}")
        return o
    bf = lambda n: BF + 4 * (n % NB)
    rdn = lambda n: rdB(n >> 3, n & 7, bf(n))
    part = lambda t: [f"ds_read_b128 {vr(PT,4)}, v8 offset:{slot(t)}"] if t >= 2 else []
    a.auto(True)
    emit(rdA(0, AF) + [rdn(0)] + rdA(8, AF + 32) + [rdn(1)] + rdA(1, AF + 4) + rdA(9, AF + 36) + [rdn(2), rdn(3)])
    for b in range(8):
        y = yout(b - 1) if b else []
        for rho in range(8):
            n = 8 * b + rho
            f0, f1 = [], []
            if b == 0 and rho < 6:
                f0, f1 = rdA(rho + 2, AF + 4 * (rho + 2)), rdA(rho + 10, AF + 32 + 4 * (rho + 2))
            if b and rho in (2, 3):
                f0, f1, y = y[:2], y[2:4], y[4:]
            if rho == 4:
                f0 = f0 + [f"ds_read_b32 v28, v1 offset:{F_H}", f"ds_read_b32 v29, v9 offset:{F_I-F_PAIR}"]
            if rho == 5:
                f0 = f0 + part(b)
            if rho == 6:
                f1 = f1 + ["v_readfirstlane_b32 s9, v29"]
            if rho == 7:
                f0 = f0 + ["v_readfirstlane_b32 s8, v28", "s_add_u32 s9, s9, 2"]
                if b < 2:
                    f1 = f1 + [f"s_cmp_lt_u32 s8, {b+2}"]
                elif b < 7:
                    f1 = f1 + ["s_min_u32 s8, s8, s9", f"s_cmp_lt_u32 s8, {b+2}"]
                else:
                    f1 = f1 + ["s_cmp_lt_u32 s9, 9"]
            if n + 4 < 64:
                f1 = [rdn(n + 4)] + f1
            a(f"{M} {vr(acc(b),4)}, {vr(AF+4*rho,4)}, {vr(bf(n),4)}, {vr(acc(b),4) if n else 0}")
            emit(f0)
            if b < 7:
                a(f"{M} {vr(acc(b+1),4)}, {vr(AF+32+4*rho,4)}, {vr(bf(n),4)}, {vr(acc(b+1),4) if rho else 0}")
            emit(f1)
        a(f"s_cbranch_scc1 C_SLOW{b}")
        a.lab(f"KEEP_P{b}")
        if b == 3:
            a.stamp(5)
            if STAMP and E("CLK"):
                a("s_memtime s[82:83]")
    a.stamp(6)
    if STAMP and E("CLK"):
        a("s_memtime s[84:85]")
    emit(yout(7))
    a.auto(False)
    a.stamp(7)
    a(f"ds_read_b32 v10, v1 offset:{F_X}")
    a("s_cmp_eq_u32 s3, 4")
    a("s_cbranch_scc1 C_FIN")
    a.end()
    for b in range(8):
        a.lab(f"C_SLOW{b}")
        if b < 7:
            a.spin(F_H, b + 2, 28)
        if b >= 2:
            a.spin(f"v9 offset:{F_I-F_PAIR}", b, 28)
        for x in part(b) + ([rdn(8 * b + 8 + k) for k in range(4)] if b < 7 else []):
            a(x)
        a("s_waitcnt lgkmcnt(0)")
        a(f"s_branch KEEP_P{b}")


XD, GD = 40, 56
VX, VY, VG, VO = 72, 73, 74, 78


def epi_setup(a):
    srd(a, 60, P_OUT, 2359296)
    a("v_bfe_u32 v79, v2, 2, 2")
    a("v_and_b32 v80, 3, v2")
    a("v_lshl_add_u32 v80, v4, 2, v80")
    a("s_lshl_b32 s8, s12, 7")
    for d, base, stride in ((VX, UP, US), (VY, OP, OS)):
        a(f"v_mul_u32_u24 v{d}, {stride}, v79")
        a(f"v_lshl_add_u32 v{d}, v80, 3, v{d}")
        a(f"s_sub_u32 s9, {base+3968-512*7}, s8")
        a(f"v_add_u32 v{d}, s9, v{d}")
    a("v_xor_b32 v79, 63, v2")
    a("s_lshl_b32 s8, s12, 9")
    a(f"s_add_u32 s8, s8, {WS_G}")
    a(f"v_lshl_add_u32 v{VG}, v79, 3, s8")
    for k in range(1, 4):
        a(f"v_add_u32 v{VG+k}, {4096*k}, v{VG}")
    a(f"v_mul_u32_u24 v{VO}, 1152, v79")
    a(f"v_add_u32 v{VO}, s55, v{VO}")
    a("s_mul_i32 s68, s12, 73728")
    if YX:
        a(f"s_add_u32 s68, s68, {4*294912}")
        a("s_lshl_b32 s8, s7, 14")
        a("s_lshl_b32 s9, s12, 10")
        a("s_add_u32 s8, s8, s9")
        a(f"s_add_u32 s8, s8, {WS_Y}")
        a("v_lshl_add_u32 v81, v79, 4, s8")
        for k in range(1, 4):
            a(f"v_add_u32 v{81+k}, {4096*k}, v81")
    a("s_mov_b32 s70, 0x05040100")
    a("s_mov_b32 s71, 0x07060302")


def epi_x(a, ks):
    for k in ks:
        a(f"ds_read_b64_tr_b16 {vr(XD+2*k,2)}, v{VX} offset:{512*(7-k)}")


def epi_g(a):
    l = a.uid("GP")
    a("s_mov_b32 s9, 0")
    a.lab(l)
    a(f"v_xor_b32 v14, v{GD+1}, v10")
    for k in range(1, 8):
        a(f"v_bitop3_b32 v14, v14, v{GD+2*k+1}, v10 bitop3:0xf6")
    a("v_cmp_ne_u32 vcc, 0, v14")
    a("s_add_u32 s9, s9, 1")
    a("s_cmp_eq_u64 vcc, 0")
    a(f"s_cbranch_scc1 {l}_D")
    a(f"s_cmp_ge_u32 s9, {SPIN}")
    a(f"s_cbranch_scc1 {l}_D")
    epi_gl(a)
    a("s_waitcnt vmcnt(0)")
    a(f"s_branch {l}")
    a.lab(l + "_D")


def epi_gl(a):
    for k in range(8):
        a(f"global_load_dwordx2 {vr(GD+2*k,2)}, v{VG+(k>>1)}, {sr(P_WS,2)} offset:{2048*(k&1)} sc1")


TX = 120


def epi_unp(a, ks):
    for k in ks:
        if k < NF:
            for p in range(2):
                a(f"v_lshlrev_b32 v{TX+4*k+2*p}, 16, v{XD+2*k+p}")
                a(f"v_and_b32 v{TX+4*k+2*p+1}, 0xffff0000, v{XD+2*k+p}")


def epi_mul(a, ks):
    for k in ks:
        if k < NF:
            a(f"v_and_b32 v{16+(k&3)}, 0xffff0000, v{GD+2*k}")
            a(f"v_lshlrev_b32 v{GD+2*k+1}, 16, v{GD+2*k}")
            for c in range(4):
                a(f"v_mul_f32 v{TX+4*k+c}, v{TX+4*k+c}, v{16+(k&3)}")


def epi_fin(a, ks, stage):
    a.spin(F_O + 4 * stage, 4, 15, sleep=E("OSL", 1), prio=E("IOP", 3))
    a.auto(True)
    Y = 16
    for n, k in enumerate(ks):
        a(f"ds_read_b64_tr_b16 {vr(Y+2*n,2)}, v{VY} offset:{512*(7-k)}")
    for n0 in range(0, len(ks), 2):
        pr = [(n, ks[n], 24 + 4 * n) for n in (n0, n0 + 1) if n < len(ks)]
        if ks[n0] < NF:
            for n, k, R in pr:
                for p in range(2):
                    a(f"v_lshlrev_b32 v{R+2*p}, 16, v{Y+2*n+p}")
                    a(f"v_and_b32 v{R+2*p+1}, 0xffff0000, v{Y+2*n+p}")
                for c in range(4):
                    a(f"v_fma_f32 v{R+c}, v{R+c}, v{GD+2*k+1}, v{TX+4*k+c}")
        else:
            for n, k, R in pr:
                for c in range(4):
                    a(f"v_perm_b32 v{R+c}, v{XD+2*k+(c>>1)}, v{Y+2*n+(c>>1)}, s{70+(c&1)}")
            for n, k, R in pr:
                for c in range(4):
                    a(f"v_dot2_f32_bf16 v{R+c}, v{R+c}, v{GD+2*k}, 0")
        for n, k, R in pr:
            if YX and stage == 0:
                for p in range(2):
                    a(f"v_cvt_pk_bf16_f32 v{104+4*k+p}, v{R+2*p}, v{R+2*p+1}")
                a(f"global_store_dwordx4 v{81+k}, {vr(104+4*k,4)}, {sr(P_WS,2)} sc1")
                continue
            for p in range(2):
                a(f"v_cvt_pk_bf16_f32 v{XD+2*k+p}, v{R+2*p}, v{R+2*p+1}")
            if not E("NOST"):
                a(f"buffer_store_dwordx2 {vr(XD+2*k,2)}, v{VO}, s[60:63], s68 offen")
            a("s_add_u32 s68, s68, 294912")
    a.auto(False)


def burst_addr(a):
    a(f"s_sub_u32 s9, s5, {NJH}")
    if GORD and E("BH"):
        a("s_mul_i32 s9, s9, 3")
        a("s_min_u32 s8, s12, 2")
        a("s_add_u32 s9, s9, s8")
        a("s_mul_i32 s8, s9, 43")
        a("s_lshr_b32 s8, s8, 8")
        a("s_mul_i32 s9, s9, 6144")
        a("s_add_u32 s8, s8, 1")
        a("s_mul_i32 s8, s8, 36864")
        a("s_add_u32 s9, s9, s8")
        a("s_mul_i32 s8, s4, 663552")
        a("s_add_u32 s8, s8, s9")
        a("v_min_u32 v88, 47, v2")
        a("v_lshl_add_u32 v88, v88, 7, s8")
        a("v_mov_b32 v89, s8")
        return
    if GORD:
        a("s_mul_i32 s9, s9, 3")
        a("s_min_u32 s8, s12, 2")
        a("s_add_u32 s9, s9, s8")
        a("s_mul_i32 s9, s9, 12288")
        a("s_mul_i32 s8, s4, 663552")
        a("s_add_u32 s8, s8, s9")
        a("v_lshl_add_u32 v88, v2, 7, s8")
        a("v_min_u32 v89, 31, v2")
        a("v_lshl_add_u32 v89, v89, 7, s8")
        a("v_add_u32 v89, 8192, v89")
        return
    a("s_lshl_b32 s9, s9, 2")
    a("s_add_u32 s9, s9, s12")
    a("s_mul_i32 s9, s9, 9216")
    a("s_mul_i32 s8, s4, 663552")
    a("s_add_u32 s8, s8, s9")
    if BL == 72:
        a("v_lshl_add_u32 v88, v2, 7, s8")
        a("v_min_u32 v89, 7, v2")
        a("v_lshl_add_u32 v89, v89, 7, s8")
        a("v_add_u32 v89, 8192, v89")
    else:
        a(f"s_add_u32 s8, s8, {128*(72-BL)}")
        a(f"v_min_u32 v88, {BL-1}, v2")
        a("v_lshl_add_u32 v88, v88, 7, s8")


def burst(a):
    if BSN:
        for k in range(NBI):
            a(f"global_load_dword v{96+k}, v{88+k}, {sr(P_WD,2)}")


def io_common(a):
    a("s_mul_i32 s7, s4, 18")
    a("s_add_u32 s7, s7, s5")
    a(f"s_sub_u32 s7, s7, {NJH}")
    a("s_lshl_b32 s55, s7, 3")
    a("s_sub_u32 s12, s3, 8")
    epi_setup(a)
    burst_addr(a)


def uloader(a):
    a.lab("C_LOAD")
    a("s_setprio 3")
    a(f"s_sub_u32 s13, s5, {NJH}")
    pf = stripe_pf(a)
    pf2 = []
    if PF2AT >= 0:
        pf, pf2 = pf[:2], [x.replace("v10,", "v98,").replace("v11,", "v99,") for x in pf[2:]]
    a("v_mul_u32_u24 v6, 4608, v2")
    a("s_lshl_b32 s8, s7, 3")
    a("v_add_u32 v6, s8, v6")
    a("v_lshlrev_b32 v7, 3, v2")
    a(f"v_sub_u32 v7, {UP+4088-512*7}, v7")
    a("s_mov_b32 s56, 0x05040100")
    a("s_mov_b32 s58, 0x07060302")
    a("s_mov_b32 s57, s13")
    a("s_waitcnt lgkmcnt(0)")
    if E("PFE", 0):
        for x in pf:
            a(x)
    srd(a, 72, P_U, 2359296)
    a.b0(12)
    if E("PFX"):
        a.spin(F_X, 0, 12, op="lg")
    if not E("PFE", 0):
        for k, x in enumerate(pf):
            if k == 2 and E("PF2"):
                a("s_waitcnt vmcnt(0)")
            a(x)
    io_common(a)
    for j in range(4):
        a(f"v_mov_b32 v{24+j}, 0")
    a("v_lshrrev_b32 v28, 2, v2")
    a(f"v_mul_u32_u24 v28, {CS}, v28")
    a(f"v_add_u32 v28, {KC}, v28")
    a("v_and_b32 v29, 3, v2")
    a("v_lshl_add_u32 v30, v29, 4, v28")
    a("ds_write_b128 v30, v[24:27] offset:1072")
    a("v_and_b32 v29, 1, v2")
    a("v_lshl_add_u32 v30, v29, 4, v28")
    a("ds_write_b128 v30, v[24:27]")
    a("v_lshrrev_b32 v28, 5, v2")
    a(f"v_mul_u32_u24 v28, {US}, v28")
    a("v_and_b32 v29, 31, v2")
    a("v_lshl_add_u32 v30, v29, 4, v28")
    a(f"v_add_u32 v30, {UP+4096}, v30")
    a("ds_write_b128 v30, v[24:27]")
    a(f"ds_write_b128 v30, v[24:27] offset:{2*US}")
    a("s_mov_b32 s15, 0")
    if ROT:
        for k in range(4):
            a(f"s_add_u32 s8, s57, {k}")
            a("s_and_b32 s8, s8, 3")
            a(f"s_mul_i32 s{76+k}, s8, 294912")
            a(f"s_add_u32 s{64+k}, s{76+k}, {4*294912}")
            a("s_lshl_b32 s8, s8, 9")
            a(f"v_subrev_u32 v{32+k}, s8, v7")
    a("v_mov_b32 v12, 1")
    a(f"s_waitcnt vmcnt({E('UW', 2 if PF2AT < 0 else 0)})")
    a.stamp(7)
    U = 104

    def issue(i):
        if not NOU:
            so = f"s{(76 if i < 16 else 64) + ((i >> 2) & 3)}" if ROT else "s15"
            a(f"buffer_load_dwordx2 {vr(U+2*i,2)}, v6, s[72:75], {so} offen offset:{1152*(i&3)}")
        if i & 3 == 3:
            a("s_add_u32 s15, s15, 294912")
        if i == PF2AT:
            for x in pf2:
                a(x)
        if i == GAT:
            a(f"ds_write_b32 v1, v12 offset:{F_UI}")
            epi_gl(a)
        if i == BST:
            if GAT != BST:
                a(f"ds_write_b32 v1, v12 offset:{F_BU}")
            if not BLATE and not GORD:
                burst(a)
    a.auto(True)
    nis = 0
    for i in range(32):
        while nis < min(32, i + WIN_U):
            issue(nis); nis += 1
        a(f"@need {vr(U+2*i,2)}")
        if i & 3 == 3:
            while nis < min(32, i + 1 + WIN_U):
                issue(nis); nis += 1
            t, u, o = i >> 2, U + 2 * (i - 3), 16 + 8 * ((i >> 2) & 1)
            for ch in range(4):
                sel = "s58" if ch & 1 else "s56"
                a(f"v_perm_b32 v{o+2*ch}, v{u+4+(ch>>1)}, v{u+6+(ch>>1)}, {sel}")
                a(f"v_perm_b32 v{o+2*ch+1}, v{u+(ch>>1)}, v{u+2+(ch>>1)}, {sel}")
                if ROT:
                    a(f"ds_write_b64 v{32+(t&3)}, {vr(o+2*ch,2)} offset:{ch*US+512*(7-(t&4))}")
                else:
                    a(f"ds_write_b64 v7, {vr(o+2*ch,2)} offset:{ch*US+512*(7-t)}")
        if i == 3:
            a.stamp(8)
        if i & 3 == 3:
            a(f"v_mov_b32 v36, {(i>>2)+1}")
            a(f"ds_write_b32 v1, v36 offset:{F_H}")
        if i & 15 == 15:
            a.stamp(2 - (i >> 4))
    a.auto(False)
    epi_x(a, range(4))
    a.spin(F_X, 0, 10, op="lg")
    epi_unp(a, range(4))
    if GORD:
        a("s_waitcnt vmcnt(0)")
    a("s_branch C_IO3")
    a.lab("C_IO")
    io_common(a)
    a.spin(F_X, 0, 10, op="lg")
    a.spin(F_H, 4, 12, prio=E("IOP", 3), sleep=E("OSL2", 2))
    epi_x(a, range(4))
    a("s_waitcnt lgkmcnt(0)")
    epi_unp(a, range(4))
    a.spin(F_UI, 1, 12, prio=E("IOP", 3), sleep=E("OSL2", 1))
    epi_gl(a)
    if GAT != BST:
        a.spin(F_BU, 1, 12, prio=3, sleep=1)
    if GORD:
        a.signal(F_GI, 12)
        a.spin(F_GI, 3, 12)
    if not BLATE:
        burst(a)
    if GORD:
        a(f"s_waitcnt vmcnt({NBI})")
    a.lab("C_IO3")
    a(f"s_waitcnt vmcnt({NBI if BSN and not BLATE else 0})")
    if BLATE == 1:
        burst(a)
    epi_g(a)
    if YX:
        for k in range(4):
            a(f"v_mov_b32 v{106+4*k}, v10")
            a(f"v_mov_b32 v{107+4*k}, v10")
    epi_mul(a, range(4))
    a.stamp(3)
    epi_fin(a, [0, 1], 0)
    epi_fin(a, [2, 3], 1)
    a.spin(F_H, 8, 12)
    epi_x(a, range(4, 8))
    if NF > 4:
        a("s_waitcnt lgkmcnt(0)")
    epi_unp(a, range(4, 8))
    epi_mul(a, range(4, 8))
    a("s_lshl_b32 s8, s12, 8")
    a(f"s_sub_u32 s8, {OM+7936-1024*7}, s8")
    a("v_lshl_add_u32 v14, v2, 2, s8")
    for k in range(8):
        a(f"ds_write_b32 v14, v{GD+2*k} offset:{1024*(7-k)}")
    a.stamp(4)
    epi_fin(a, [4, 5], 2)
    a.stamp(5)
    epi_fin(a, [6], 3)
    epi_fin(a, [7], 4)
    a.signal(F_SI, 8)
    a.stamp(6)
    a("s_waitcnt vmcnt(0)")
    a.signal(F_ST, 8)
    a.end()
    a.lab("C_FIN")
    Z = 104
    a("s_setprio 0")
    a("v_and_b32 v8, 7, v2")
    a("v_lshlrev_b32 v8, 3, v8")
    a(f"v_add_u32 v8, {WS_SEL}, v8")
    a("s_mul_i32 s8, s7, 9216")
    a(f"s_add_u32 s8, s8, {WS_MB}")
    a("v_lshl_add_u32 v5, v2, 4, s8")
    a("v_add_u32 v6, 0x1000, v5")
    a("v_add_u32 v7, 0x2000, v5")
    a("v_and_b32 v19, 1, v4")
    a("v_lshrrev_b32 v20, 1, v4")
    a("v_lshl_or_b32 v19, v19, 1, v20")
    a(f"v_mul_u32_u24 v12, {US}, v19")
    a(f"v_add_u32 v12, {UP}, v12")
    a(f"v_mul_u32_u24 v13, {OS}, v19")
    a(f"v_add_u32 v13, {OP}, v13")
    a(f"s_add_u32 s8, s55, {2047*1152}")
    a("v_lshl_add_u32 v14, v19, 1, s8")
    a("s_waitcnt lgkmcnt(0)")
    for j in range(4):
        a(f"v_bfe_u32 v{Z+6+j}, v10, {8*j}, 8")
    MB = 120
    if FT:
        a.spin(F_O + 16, 4, 26, sleep=1, prio=3)
        if FT > 1:
            a(f"s_sleep {FT}")
    else:
        a.spin(F_SI, E("SI", 4), 26, sleep=1, prio=3)
    a.stamp(5)
    a("s_mov_b32 s9, 0")
    a.lab("C_MPOLL")
    a(f"global_load_dwordx2 v[16:17], v8, {sr(P_WS,2)} sc1")
    for i in range(9):
        a(f"global_load_dwordx4 {vr(MB+4*i,4)}, v{5+(i>>2)}, {sr(P_WS,2)} offset:{1024*(i&3)} sc1")
    a("s_waitcnt vmcnt(9)")
    a("v_and_b32 v22, 0x7ff, v16")
    a("v_lshl_add_u32 v23, v22, 1, v12")
    a(f"ds_read_u16 v{Z+1}, v23")
    a("v_lshl_add_u32 v23, v22, 1, v13")
    a(f"ds_read_u16 v{Z+3}, v23")
    a("v_lshlrev_b32 v23, 2, v22")
    a(f"v_add_u32 v23, {OM}, v23")
    if not (FT or E("SI", 4) < 4):
        a("ds_read_b32 v24, v23")
    a("v_and_b32 v20, 0xffff0000, v16")
    a("v_ashrrev_i32 v21, 31, v20")
    a("v_not_b32 v21, v21")
    a("v_or_b32 v21, 0x80000000, v21")
    a("v_and_b32 v21, 0xffff0000, v21")
    a("v_xor_b32 v20, v20, v21")
    sigmoid_f32(a, Z, 20, 21)
    rb(a, Z)
    a(f"v_mul_u32_u24 v{Z+4}, 1152, v22")
    a(f"v_sub_u32 v{Z+4}, v14, v{Z+4}")
    a("s_waitcnt lgkmcnt(0)")
    a(f"v_lshlrev_b32 v{Z+1}, 16, v{Z+1}")
    for i in range(9):
        a(f"s_waitcnt vmcnt({8-i})")
        for j in range(4):
            a(f"v_xor_b32 v{MB+4*i+j}, v{MB+4*i+j}, v{Z+6+j}")
        a(f"v_or3_b32 v26, v{MB+4*i}, v{MB+4*i+1}, {'v26' if i else '0'}")
        a(f"v_or3_b32 v26, v{MB+4*i+2}, v{MB+4*i+3}, v26")
        if i:
            for p in range(2):
                a(f"v_pk_add_f32 {vr(28+2*p,2)}, {vr(28+2*p if i > 1 else MB+2*p,2)}, {vr(MB+4*i+2*p,2)}")
    a("v_and_b32 v26, 0xff, v26")
    a("v_bitop3_b32 v26, v26, v17, v10 bitop3:0xf6")
    a("v_cmp_ne_u32 vcc, 0, v26")
    a("s_add_u32 s9, s9, 1")
    a("s_cmp_eq_u64 vcc, 0")
    a("s_cbranch_scc1 C_MOK")
    a(f"s_cmp_lt_u32 s9, {SPIN}")
    a("s_cbranch_scc1 C_MPOLL")
    a.lab("C_MOK")
    if STAMP:
        a("s_mov_b32 s82, s9")
    a.stamp(8)
    a("v_permlane32_swap_b32 v28, v29")
    a("v_permlane32_swap_b32 v30, v31")
    a("v_add_f32 v28, v28, v29")
    a("v_add_f32 v30, v30, v31")
    a("v_permlane16_swap_b32 v28, v30")
    a("v_add_f32 v28, v28, v30")
    a(f"v_add_f32_dpp v28, v28, v28 row_ror:8 {DPPF}")
    rb(a, 28)
    a(f"v_mul_f32 v28, v28, v{Z}")
    rb(a, 28)
    a(f"v_add_f32 v28, v28, v{Z+1}")
    rb(a, 28)
    a(f"v_or_b32 v28, v28, v{Z+3}")
    if FT or E("SI", 4) < 4:
        a.spin(F_SI, 4, 27)
        a("ds_read_b32 v24, v23")
        a("s_waitcnt lgkmcnt(0)")
    a("v_dot2_f32_bf16 v28, v28, v24, 0")
    a("v_cvt_pk_bf16_f32 v28, v28, v28")
    a.spin(F_ST, 4, 27)
    a("s_mov_b32 exec_lo, 0x00ff00ff")
    a("s_mov_b32 exec_hi, 0x00ff00ff")
    a(f"global_store_short v{Z+4}, v28, {sr(P_OUT,2)}")
    a("s_mov_b64 exec, -1")
    a.end()


def kernel(a):
    a.raw(".p2align 8")
    a.raw(".globl k1_kernel")
    a.raw(".type k1_kernel,@function")
    a.lab("k1_kernel")
    a("v_lshrrev_b32 v1, 6, v0")
    a("s_cmp_ge_u32 s2, 256")
    a("v_readfirstlane_b32 s3, v1")
    a("s_cbranch_scc1 K_END")
    a("v_and_b32 v2, 63, v0")
    a("v_mov_b32 v1, 0")
    a("s_cmp_lg_u32 s3, 1")
    a("s_cbranch_scc1 K_NOZ")
    a("v_lshlrev_b32 v3, 2, v2")
    a("ds_write_b32 v3, v1")
    a("s_waitcnt lgkmcnt(0)")
    a.lab("K_NOZ")
    a("s_load_dwordx16 s[16:31], s[0:1], 0")
    a("s_load_dwordx16 s[32:47], s[0:1], 64")
    a("s_load_dwordx4 s[48:51], s[0:1], 128")
    a("s_lshr_b32 s5, s2, 3")
    if CODEPF:
        a("s_lshl_b32 s8, s3, 8")
        a("s_add_u32 s8, s8, s5")
        a(f"s_cmp_lg_u32 s8, {NJF}")
        a("s_cbranch_scc1 K_NOCPF")
        a("s_getpc_b64 s[8:9]")
        a("s_and_b32 s8, s8, 0xffffff00")
        a("v_lshlrev_b32 v8, 7, v2")
        for k in range(4):
            a(f"v_min_u32 v9, CODE_END-k1_kernel-4, v8")
            a(f"global_load_dword v{160+k}, v9, s[8:9]")
            a(f"v_add_u32 v8, 8192, v8")
        a.lab("K_NOCPF")
    if STAMP:
        for i in range(1, 10):
            a(f"s_mov_b32 s{80+2*i}, 0")
    if PROBE:
        a("s_mov_b32 s98, 0")
    a.stamp(0)
    a("v_and_b32 v3, 15, v2")
    a("v_lshrrev_b32 v4, 4, v2")
    a("s_and_b32 s4, s2, 7")
    if not E("OLDB0"):
        a("s_barrier")
    a("s_cmp_eq_u32 s3, 8")
    a("s_cbranch_scc1 ROUTER")
    a(f"s_cmp_lt_u32 s5, {NJH}")
    a("s_cbranch_scc1 K_OTHER")
    a("s_mul_i32 s7, s4, 18")
    a("s_add_u32 s7, s7, s5")
    a(f"s_sub_u32 s7, s7, {NJH}")
    a("s_cmp_ge_u32 s3, 8")
    a("s_cbranch_scc1 K_CIO")
    kgen_head(a)
    router(a)
    a.lab("K_OTHER")
    a("s_mul_i32 s7, s4, 9")
    a("s_add_u32 s7, s7, s5")
    a("s_mov_b32 s12, s3")
    a("s_cmp_lt_u32 s3, 2")
    a("s_cbranch_scc1 GATE")
    a(f"s_cmp_ge_u32 s5, {NJF}")
    a("s_cbranch_scc1 HELPER")
    a("s_cmp_lt_u32 s3, 8")
    a("s_cbranch_scc1 F_COMP")
    ffn_loader(a)
    a.lab("K_CIO")
    a("s_sub_u32 s12, s3, 9")
    a("s_cmp_eq_u32 s3, 11")
    a("s_cbranch_scc1 C_LOAD")
    a("v_lshl_add_u32 v14, v4, 3, v3")
    a("v_sub_u32 v14, 39, v14")
    a("s_lshl_b32 s8, s12, 11")
    a(f"s_add_u32 s8, s8, {PM}")
    a("v_lshl_add_u32 v15, v2, 4, s8")
    W = [(0x7f, 19), (0x1ff, 20), (0x7, 21), (0x1f, 18), (0x3, 21)]
    for k in range(3):
        a("s_cmp_eq_u32 s12, 0")
        a(f"s_cselect_b32 s8, {W[k][0]}, {W[k+2][0]}")
        a(f"s_cselect_b32 s9, {W[k][1]}, {W[k+2][1]}")
        a("s_movk_i32 s11, 0x3f80")
        if k == 2:
            a("s_cselect_b32 s11, s11, 0xffff")
        a("s_lshl_b32 s13, s11, 16")
        a("v_mov_b32 v10, s8")
        a("v_mov_b32 v11, 0")
        a("v_lshlrev_b64 v[10:11], v14, v[10:11]")
        a("v_alignbit_b32 v10, v11, v10, s9")
        for p in range(4):
            a(f"v_bfe_i32 v11, v10, {2*p}, 1")
            a(f"v_bfe_i32 v12, v10, {2*p+1}, 1")
            a("v_and_b32 v11, s11, v11")
            a(f"v_and_or_b32 v{16+4*k+p}, v12, s13, v11")
        a(f"ds_write_b128 v15, {vr(16+4*k,4)} offset:{1024*k}")
    a.signal(F_PM, 10)
    a("s_branch GATE")
    uloader(a)
    helper(a)
    gate(a)
    kgen(a)
    select(a)
    ffn_comp(a)
    if STAMP:
        a.lab("STAMP_OUT")
        a("s_memrealtime s[98:99]")
        a("s_waitcnt lgkmcnt(0)")
        a("s_lshl_b32 s8, s2, 4")
        a("s_add_u32 s8, s8, s3")
        a("s_lshl_b32 s8, s8, 6")
        a(f"s_add_u32 s8, s8, {WS_STAMP}")
        a("v_mov_b32 v5, s8")
        for i in range(10):
            a(f"v_mov_b32 v6, s{80+2*i}")
            a(f"global_store_dword v5, v6, {sr(P_WS,2)} offset:{4*i}")
    if PROBE:
        a.lab("PADTAIL")
        a("s_waitcnt vmcnt(0) lgkmcnt(0)")
        a("s_cmp_eq_u32 s98, 0")
        a("s_cbranch_scc1 K_END")
        a("s_setprio 0")
        a.lab("PADL")
        a("s_sleep 8")
        a("s_memrealtime s[96:97]")
        a("s_waitcnt lgkmcnt(0)")
        a("s_sub_u32 s96, s96, s98")
        a("s_cmp_lt_u32 s96, 2000")
        a("s_cbranch_scc1 PADL")
    a.lab("K_END")
    a("s_endpgm")
    a.lab("CODE_END")


def main():
    ref = open(os.path.join(HERE, NAME + ".s.ref")).read().splitlines()
    head = [l for l in ref if l.startswith(";") and "@launch" not in l and "Override" not in l and "grid=ceil" not in l]
    a = G()
    kernel(a)
    out = head + [
        f"; @launch kernel=k1_kernel grid=(256,1,1) block=(768,1,1) lds={LDS}",
        '.amdgcn_target "amdgcn-amd-amdhsa--gfx950"',
        ".text",
    ] + a.finish() + [
        '.section .rodata,"a"',
        ".p2align 6",
        ".amdhsa_kernel k1_kernel",
        "  .amdhsa_next_free_vgpr 168",
        "  .amdhsa_next_free_sgpr 102",
        "  .amdhsa_accum_offset 168",
        "  .amdhsa_group_segment_fixed_size 0",
        "  .amdhsa_kernarg_size 144",
        "  .amdhsa_user_sgpr_count 2",
        "  .amdhsa_user_sgpr_kernarg_segment_ptr 1",
        "  .amdhsa_system_sgpr_workgroup_id_x 1",
        ".end_amdhsa_kernel",
    ]
    path = sys.argv[1] if len(sys.argv) > 1 else os.path.join(HERE, NAME + ".s")
    open(path, "w").write("\n".join(out) + "\n")


if __name__ == "__main__":
    main()
```

```python
import sys, os
from asmlib import *

NAME = "gated_mix__ssm_conv_s4__moe_arch_mod__prompt"
HERE = os.path.dirname(os.path.abspath(__file__))
E = lambda k, d=0: int(os.environ.get(k, d))
STAMP = E("STAMP")
PROBE = os.environ.get("PROBE", "")
CODEPF = E("CODEPF", 1)
SELD = E("SELD", 16)
GORD = E("GORD", 1)
NF = E("NF", 4)
FT = E("FT", 0)
RDIR = E("RDIR", 2)
GAT = E("GAT", 31)
BL = E("BL", 72)
NBI = 2 if BL == 72 else 1
BLATE = E("BLATE", 0)
KS = E("KS", 32)
WS_KEY2 = 2 << 20
PF2AT = E("PF2AT", -1)
ROT = 0
C3 = E("C3", 28)
WNT = os.environ.get("WNT", "")
POLLF = os.environ.get("POLLF", "sc1").replace("_", " ")
PUBF = os.environ.get("PUBF", "sc1").replace("_", " ")
PFW = E("PFW", 1)
HPN = E("HPN", 3)
HPS = E("HPS", 53)
HPW = E("HPW", 4)
PSTEP = 5 * HPW // 2
BST = E("BST", 31)
BSN = E("BSN", 5)
WIN_U = E("WIN_U", 6)
WIN_F = E("WIN_F", 10)
HOLD = E("HOLD")
FINE = E("FINE")
NOU = E("NOU")
NOW = E("NOW")

WS_KEY, WS_SEL, WS_BASE, WS_G, WS_MB = 0, 8192, 8448, 16384, 32768
WS_STAMP = 4 << 20
WS_SIZE = 0x10000000

LDS = 163840
F_NONCE, F_PAIR, F_ST, F_I, F_K, F_H, F_O = 0, 16, 40, 48, 64, 80, 96
F_L, F_D, F_AC, F_XR, F_HR, F_PI = 16, 40, 48, 84, 88, 92
KT = 256
KTS = 4608
TS = 288
OS = 4160
KC = KT + 8 * KTS
CS = 1216
UP = KC + 16 * CS
US = 4672
OM = UP + 4 * US
OP = OM + 8192
PM = OP + 4 * OS
assert PM + 5120 + 512 <= 147712 and OP % 16 == 0
WA = 256
WB = WA + 73728
XB = WB + 73728
HB = XB + 9216
HS = 144
GW = HB + 9 * HS
assert GW + 2048 <= LDS and GW % 16 == 0
F_X, F_GD, F_RI, F_SI, F_UI, F_BU, F_PM, F_GI = 8, 12, 4, 44, 88, 92, 32, 36

L2E = 0x3fb8aa3b
L2E_LO = 0x32a57060
LN2 = 0x3f317218
INV2PI = 0x3e22f983

P_U, P_ARE, P_AIM, P_BRE, P_BIM, P_CRE, P_CIM, P_LDT = 16, 18, 20, 22, 24, 26, 28, 30
P_DSK, P_BX, P_WR, P_WG, P_WU, P_WD, P_GW, P_OUT = 32, 34, 36, 38, 40, 42, 44, 46
P_DBG, P_WS = 48, 50
NJF, NJH = 9, 14
SPIN = 0x20000

DPPF = "row_mask:0xf bank_mask:0xf"


class G(Asm):
    nlab = 0

    def stamp(s, i):
        if PROBE:
            import inspect
            fn = inspect.stack()[1].function
            if fn == "pre":
                fn = "ffn_loader"
            if f"{fn}:{i}" == PROBE:
                s("s_memrealtime s[98:99]")
        if STAMP and not (FINE and i >= 6):
            s(f"s_memrealtime s[{80+2*i}:{81+2*i}]")

    def fine(s, i):
        if STAMP and FINE:
            s(f"s_memrealtime s[{80+2*i}:{81+2*i}]")

    def b0(s, wait=None):
        if E("OLDB0"):
            s("s_barrier")
        elif wait is not None:
            s.spin(F_RI, 1, wait)

    def end(s):
        s("s_branch STAMP_OUT" if STAMP else "s_branch PADTAIL" if PROBE else "s_endpgm")

    def uid(s, p):
        G.nlab += 1
        return f"{p}_{G.nlab}"

    def spin(s, off, target, tv, sleep=0, op="ge", prio=None):
        l = s.uid("SP")
        if prio is not None:
            s(f"s_setprio {E('SPP', 3) if sleep else 0}")
        s("s_mov_b32 s9, 0")
        s.lab(l)
        s(f"ds_read_b32 v{tv}, v1 offset:{off}") if isinstance(off, int) else s(f"ds_read_b32 v{tv}, {off}")
        s("s_waitcnt lgkmcnt(0)")
        s(f"v_readfirstlane_b32 s8, v{tv}")
        s("s_add_u32 s9, s9, 1")
        s(f"s_cmp_{op}_u32 s8, {target}")
        s(f"s_cbranch_scc1 {l}_D")
        if sleep:
            s(f"s_sleep {sleep * E('SLM', 1)}")
        s(f"s_cmp_lt_u32 s9, {SPIN*4}")
        s(f"s_cbranch_scc1 {l}")
        s.lab(l + "_D")
        if prio is not None:
            s(f"s_setprio {prio}")

    def signal(s, off, tv):
        s(f"v_mov_b32 v{tv}, 1")
        s("s_mov_b64 exec, 1")
        s(f"ds_add_u32 v1, v{tv} offset:{off}") if isinstance(off, int) else s(f"ds_add_u32 {off}, v{tv}")
        s("s_mov_b64 exec, -1")


def srd(a, d, p, size):
    a(f"s_mov_b32 s{d}, s{p}")
    a(f"s_mov_b32 s{d+1}, s{p+1}")
    a(f"s_mov_b32 s{d+2}, {size}")
    a(f"s_mov_b32 s{d+3}, 0x20000")


def wave_max_steps(vv):
    return [f"v_max_u32_dpp v{vv}, v{vv}, v{vv} row_shr:1 {DPPF}",
            f"v_max_u32_dpp v{vv}, v{vv}, v{vv} row_shr:2 {DPPF}",
            f"v_max_u32_dpp v{vv}, v{vv}, v{vv} row_shr:4 {DPPF}",
            f"v_max_u32_dpp v{vv}, v{vv}, v{vv} row_shr:8 {DPPF}",
            f"v_max_u32_dpp v{vv}, v{vv}, v{vv} row_bcast:15 row_mask:0xa bank_mask:0xf",
            f"v_max_u32_dpp v{vv}, v{vv}, v{vv} row_bcast:31 row_mask:0xc bank_mask:0xf"]


def sigmoid_f32(a, dst, src, t):
    a(f"v_mul_f32 v{t}, 0xbfb8aa3b, v{src}")
    a(f"v_exp_f32 v{t}, v{t}")
    a(f"v_add_f32 v{t}, 1.0, v{t}")
    a(f"v_rcp_f32 v{dst}, v{t}")


def rb(a, r):
    a(f"v_cvt_pk_bf16_f32 v{r}, v{r}, v{r}")
    a(f"v_and_b32 v{r}, 0xffff0000, v{r}")


def router(a):
    a.lab("ROUTER")
    a("s_setprio 3")
    X, W = 16, 52
    a("v_lshrrev_b32 v5, 3, v2")
    a("v_and_b32 v6, 7, v2")
    a("v_lshlrev_b32 v9, 4, v6")
    a("v_mul_u32_u24 v8, 1152, v5")
    a("s_mul_i32 s8, s2, 9216")
    a("v_add3_u32 v8, v8, v9, s8")
    a("v_lshlrev_b32 v7, 4, v2")
    a("v_min_u32 v10, 7, v2")
    a("v_lshlrev_b32 v10, 4, v10")
    a(f"s_mov_b32 m0, {XB}")
    a("s_waitcnt lgkmcnt(0)")
    a.fine(7)
    a(f"s_load_dword s10, {sr(P_WS,2)}, {WS_BASE}")
    if RDIR:
        for i in range(9):
            a(f"global_load_dwordx4 {vr(X+4*i,4)}, v8, {sr(P_U,2)} offset:{128*i}")
            a(f"global_load_dwordx4 {vr(W+4*i,4)}, v9, {sr(P_WR,2)} offset:{128*i}")
    if RDIR != 2:
        for i in range(9):
            if i:
                a(f"s_mov_b32 m0, {XB+896*i}")
            a(f"global_load_lds_dwordx4 v8, {sr(P_U,2)} offset:{128*i}")
    a(f"s_mov_b32 m0, {GW}")
    a(f"global_load_lds_dwordx4 v7, {sr(P_GW,2)}")
    a(f"global_load_lds_dwordx4 v10, {sr(P_GW,2)} offset:1024")
    if not RDIR:
        for i in range(9):
            a(f"global_load_dwordx4 {vr(W+4*i,4)}, v9, {sr(P_WR,2)} offset:{128*i}")
    a.fine(6)
    a.b0()
    a("v_mov_b32 v11, 1")
    a(f"ds_write_b32 v1, v11 offset:{F_RI}")
    a(f"v_add_u32 v7, {XB}, v7")
    if KS == 32:
        a("s_lshl_b32 s8, s2, 5")
        a("v_lshl_add_u32 v15, v4, 3, s8")
    else:
        a(f"s_mul_i32 s8, s2, {KS}")
        a(f"s_add_u32 s8, s8, {WS_KEY2}")
        a("v_lshl_add_u32 v15, v4, 3, s8")
        a("v_lshl_add_u32 v15, v3, 5, v15")
    a("s_mov_b32 s11, 0xffff")
    for j in range(4):
        a(f"v_mov_b32 v{8+j}, 0")
    a("s_waitcnt lgkmcnt(0)")
    a.fine(8)
    a("s_add_u32 s10, s10, 1")
    a("s_addc_u32 s10, s10, 0")
    a("v_mov_b32 v14, s10")
    a("v_mov_b32 v13, s10")
    if RDIR:
        for i in range(9):
            a(f"s_waitcnt vmcnt({2*(8-i) + (11 if RDIR == 1 else 2)})")
            for j in range(4):
                a(f"v_dot2c_f32_bf16 v{8+j}, v{X+4*i+j}, v{W+4*i+j}")
        a.stamp(1)
    else:
        a("s_waitcnt vmcnt(9)")
        a.stamp(1)
        if STAMP or PROBE:
            a("s_waitcnt lgkmcnt(0)")
        for i in range(9):
            a(f"ds_read_b128 {vr(X+4*i,4)}, v7 offset:{1024*i}")
        a(f"ds_write_b32 v1, v14 offset:{F_X}")
        for i in range(9):
            a(f"s_waitcnt vmcnt({8-i}) lgkmcnt({9-i})")
            for j in range(4):
                a(f"v_dot2c_f32_bf16 v{8+j}, v{X+4*i+j}, v{W+4*i+j}")
    a("v_add_f32 v8, v8, v9")
    a("v_add_f32 v10, v10, v11")
    a("v_add_f32 v8, v8, v10")
    a(f"v_add_f32_dpp v8, v8, v8 quad_perm:[1,0,3,2] {DPPF}")
    a(f"v_add_f32_dpp v8, v8, v8 quad_perm:[2,3,0,1] {DPPF}")
    a(f"v_add_f32_dpp v8, v8, v8 row_half_mirror {DPPF}")
    a("v_cvt_pk_bf16_f32 v8, v8, v8")
    a("v_ashrrev_i32 v9, 31, v8")
    a("v_or_b32 v9, 0x80008000, v9")
    a("v_xor_b32 v8, v8, v9")
    a(f"v_mov_b32_dpp v9, v8 row_ror:8 {DPPF}")
    km = {32: 0x00010001, 64: 0x00030003, 128: 0x000f000f}[KS]
    a(f"s_mov_b32 exec_lo, {km:#x}")
    a(f"s_mov_b32 exec_hi, {km:#x}")
    a("v_bfi_b32 v12, s11, v8, v9")
    a(f"global_store_dwordx2 v15, v[12:13], {sr(P_WS,2)} {PUBF}")
    a("s_mov_b64 exec, -1")
    a(f"ds_write_b32 v1, v14 offset:{F_NONCE}")
    a.stamp(2)
    if E("RLP", 1):
        a("s_setprio 0")
    if RDIR == 2:
        for i in range(9):
            a(f"ds_write_b128 v7, {vr(X+4*i,4)} offset:{1024*i}")
    if RDIR:
        a("s_waitcnt vmcnt(1)")
        a(f"ds_write_b32 v1, v14 offset:{F_X}")
    a(f"s_cmp_ge_u32 s5, {NJH}")
    a("s_cbranch_scc1 C_IO")
    a(f"s_cmp_lt_u32 s5, {NJF}")
    a("s_cbranch_scc1 SELECT")
    a.end()


def gate(a):
    a.lab("GATE")
    if E("GTP"):
        a(f"s_setprio {E('GTP')}")
    X, W, WL = 16, 34, 44
    a("s_lshl_b32 s8, s12, 9")
    a(f"s_add_u32 s8, s8, {XB}")
    a("v_lshl_add_u32 v5, v2, 2, s8")
    a("v_and_b32 v6, 31, v2")
    a("v_lshlrev_b32 v6, 2, v6")
    a(f"v_add_u32 v6, {GW}, v6")
    a("s_lshl_b32 s8, s2, 1")
    a("s_add_u32 s8, s8, s12")
    a("v_mov_b32 v8, 0")
    a("v_mov_b32 v9, 0")
    a("v_mov_b32 v10, 0x3f803f80")
    a("s_lshl_b32 s8, s8, 5")
    a(f"s_add_u32 s8, s8, {WS_G}")
    a("v_lshrrev_b32 v7, 5, v2")
    a("v_lshl_add_u32 v7, v7, 3, s8")
    a("v_and_b32 v11, 16, v2")
    a("v_add_u32 v7, v7, v11")
    a.b0()
    if E("GATED"):
        a(f"s_sleep {E('GATED')}")
    a.spin(F_X, 0, 13, op="lg", sleep=E("GSL", 1))
    a.auto(True)
    for i in range(5):
        a(f"ds_read2_b32 {vr(W+2*i,2)}, v6 offset0:{64*(i&3)} offset1:{64*(i&3)+32}" if i < 4 else f"ds_read_b32 v{W+8}, v6 offset:1024")
    for i in range(9):
        a(f"ds_read2st64_b32 {vr(X+2*i,2)}, v5 offset0:{4*i} offset1:{4*i+1}")
    for i in range(9):
        a(f"v_and_b32 v{WL+i}, 0xffff, v{W+i}")
        a(f"v_and_b32 v{W+i}, 0xffff0000, v{W+i}")
    for i in range(10):
        t = 56 + 4 * (i & 1)
        u = 56 + 4 * ((i - 1) & 1)
        for j in range(2):
            if i < 9:
                a(f"v_dot2_f32_bf16 v{t+2*j}, v{X+2*i+j}, v{WL+i}, 0")
                a(f"v_dot2_f32_bf16 v{t+2*j+1}, v{X+2*i+j}, v{W+i}, 0")
        if i:
            for j in range(2):
                a(f"v_cvt_pk_bf16_f32 v{u+2*j}, v{u+2*j}, v{u+2*j+1}")
            for j in range(2):
                a(f"v_dot2c_f32_bf16 v{8+j}, v{u+2*j}, v10")
    a.auto(False)
    a.signal(F_GD, 11)
    a("v_permlane16_swap_b32 v8, v9")
    a("v_add_f32 v8, v8, v9")
    for r in (8, 4, 2, 1):
        a(f"v_add_f32_dpp v8, v8, v8 row_ror:{r} {DPPF}")
    rb(a, 8)
    sigmoid_f32(a, 8, 8, 9)
    rb(a, 8)
    a("v_sub_f32 v9, 1.0, v8")
    a("v_cvt_pk_bf16_f32 v12, v8, v9")
    a("s_mov_b32 exec_lo, 0x00010001")
    a("s_mov_b32 exec_hi, 0x00010001")
    a(f"global_store_dwordx2 v7, v[12:13], {sr(P_WS,2)} sc1")
    a("s_mov_b64 exec, -1")
    a.stamp(1)
    a(f"s_cmp_lt_u32 s5, {NJF}")
    a("s_cbranch_scc1 F_COMP2")
    a(f"s_cmp_ge_u32 s5, {NJH}")
    a("s_cbranch_scc1 C_IO")
    a.end()


def stripe_pf(a):
    a("s_and_b32 s8, s13, 15" if PF2AT >= 0 else "s_mov_b32 s8, s13")
    a("s_mul_i32 s8, s8, 73728")
    a("s_lshl_b32 s9, s4, 7")
    a("s_add_u32 s8, s8, s9")
    a("v_mul_u32_u24 v9, 1152, v2")
    a("v_add_u32 v9, s8, v9")
    a("s_add_u32 s8, s13, 18")
    a("s_min_u32 s8, s8, 31")
    a("s_sub_u32 s8, s8, s13")
    a("s_mul_i32 s8, s8, 73728")
    a("v_add_u32 v8, s8, v9" if PF2AT < 0 else f"v_add_u32 v8, {16*73728}, v9")
    return [f"global_load_dword v10, v9, {sr(P_U,2)}", f"global_load_dword v11, v9, {sr(P_U,2)} offset:128",
            f"global_load_dword v10, v8, {sr(P_U,2)}", f"global_load_dword v11, v8, {sr(P_U,2)} offset:128"]


def prefetch(a, n, hold):
    a("v_mul_u32_u24 v5, 57, v2")
    a("v_lshrrev_b32 v5, 9, v5")
    a("v_mul_u32_u24 v6, 9, v5")
    a("v_sub_u32 v6, v2, v6")
    a("s_waitcnt lgkmcnt(0)")
    a("s_cmp_eq_u32 s12, 1")
    a(f"s_cselect_b32 s52, s{P_WU}, s{P_WG}")
    a(f"s_cselect_b32 s53, s{P_WU+1}, s{P_WG+1}")
    a("s_mov_b32 s54, 5308416")
    a("s_mov_b32 s55, 0x20000")
    a("v_mul_u32_u24 v5, 9216, v5")
    a("v_lshl_add_u32 v5, v6, 7, v5")
    a("s_mul_i32 s8, s4, 1152")
    if C3:
        a(f"s_sub_u32 s14, s13, {HPS}")
        a("s_lshr_b32 s9, s52, 7")
        a("s_add_u32 s9, s9, s4")
        a("s_sub_u32 s9, 3, s9")
        a("s_and_b32 s9, s9, 7")
        a("s_lshl_b32 s15, s9, 7")
        a("s_add_u32 s15, s15, s8")
        a(f"s_mul_i32 s14, s14, {9216*C3}")
        a("s_add_u32 s15, s15, s14")
        a(f"s_add_u32 s15, s15, {9216*(7*HPS - C3*PSTEP)}")
        a("s_cmp_eq_u32 s9, 0")
        a("s_cselect_b32 s9, 1024, 0")
        a("v_and_b32 v7, 31, v2")
        a(f"v_min_u32 v7, {C3-1}, v7")
        a("v_mul_u32_u24 v7, 9216, v7")
        a("v_lshrrev_b32 v9, 5, v2")
        a("v_mul_u32_u24 v9, s9, v9")
        a("v_add_u32 v7, v7, v9")
    a("s_mul_i32 s13, s13, 64512")
    a("s_add_u32 s13, s13, s8")
    a.b0(13)
    if hold:
        a.spin(F_NONCE, 0, 13, op="lg", sleep=1)
    if C3:
        a("buffer_load_dword v8, v7, s[52:55], s15 offen")
    for k in range(n):
        if k >= PFW or (C3 and E("C3W", 1)):
            a(f"s_waitcnt vmcnt({PFW-1})")
        a("buffer_load_dword v8, v5, s[52:55], s13 offen")
        a(f"s_add_u32 s13, s13, {64512*PSTEP}")


def bulk_gate(a, tv):
    a.b0(tv)
    if HOLD:
        a.spin(F_NONCE, 0, tv, op="lg", sleep=1)


def select(a):
    a.lab("SELECT")
    a("s_setprio 3")
    SX = 52
    srd(a, SX, P_U, 2359296)
    KD, IX, KY = 16, 48, 80
    M1, M2, T1, T2, VO, VK, CH = 8, 9, 10, 11, 12, 6, 5
    a("v_lshlrev_b32 v7, 4, v2")
    a("v_add_u32 v15, 0x1000, v7")
    if KS != 32:
        a("v_lshrrev_b32 v7, 1, v2")
        a(f"v_mul_u32_u24 v7, {KS}, v7")
        a("v_and_b32 v15, 1, v2")
        a("v_lshl_add_u32 v7, v15, 4, v7")
        for i in range(8):
            a(f"v_add_u32 v{120+i}, {WS_KEY2+32*KS*i}, v7")

    def polls():
        if KS != 32:
            for i in range(8):
                a(f"global_load_dwordx4 {vr(KD+4*i,4)}, v{120+i}, {sr(P_WS,2)} {POLLF}")
            return
        for i in range(8):
            a(f"global_load_dwordx4 {vr(KD+4*i,4)}, v{7 if i < 4 else 15}, {sr(P_WS,2)} offset:{1024*(i&3)} {POLLF}")
    assert WS_KEY == 0
    a("v_lshlrev_b32 v8, 2, v2")
    a("v_sub_u32 v8, 2047, v8")
    for i in range(8):
        for e in range(4):
            a(f"v_subrev_u32 v{IX+4*i+e}, {256*i+e}, v8")
    a("v_lshrrev_b32 v9, 3, v2")
    a("v_and_b32 v9, 6, v9")
    a("v_xor_b32 v9, v9, v2")
    a("v_and_b32 v9, 7, v9")
    a(f"v_lshlrev_b32 v{CH}, 4, v9")
    a(f"v_mov_b32 v{VO}, 0")
    a(f"v_mov_b32 v{VK}, 0")
    a("s_mov_b32 s11, 0xffff0000")
    a("s_mov_b32 s15, 0")
    a.spin(F_GD, 2, 13)
    a("s_mov_b32 s9, 0")
    a("s_waitcnt vmcnt(0)")
    if SELD:
        a(f"s_sleep {SELD}")
    a.stamp(8)
    a.lab("SEL_POLL")
    polls()
    if E("W1", 99) < 99:
        a(f"ds_write_b32 v1, v14 offset:{F_PI}")
    for i in range(8):
        a(f"s_waitcnt vmcnt({7-i})")
        if i == 0:
            a(f"v_xor_b32 v13, v{KD+1}, v14")
        else:
            a(f"v_bitop3_b32 v13, v13, v{KD+4*i+1}, v14 bitop3:0xf6")
        a(f"v_bitop3_b32 v13, v13, v{KD+4*i+3}, v14 bitop3:0xf6")
    a("v_cmp_ne_u32 vcc, 0, v13")
    a("s_add_u32 s9, s9, 1")
    a("s_cmp_eq_u64 vcc, 0")
    a("s_cbranch_scc1 SEL_GOT")
    a(f"s_cmp_lt_u32 s9, {SPIN}")
    a("s_cbranch_scc1 SEL_POLL")
    a.lab("SEL_GOT")
    if STAMP:
        a("s_mov_b32 s94, s9")
    a.stamp(6)
    for i in range(8):
        for h in range(2):
            a(f"v_lshl_or_b32 v{KY+4*i+2*h}, v{KD+4*i+2*h}, 16, v{IX+4*i+2*h}")
            a(f"v_and_or_b32 v{KY+4*i+2*h+1}, v{KD+4*i+2*h}, s11, v{IX+4*i+2*h+1}")
        ks = [KY + 4 * i + e for e in range(4)]
        if i == 0:
            a(f"v_min_u32 v{M2}, v{ks[0]}, v{ks[1]}")
            a(f"v_max_u32 v{M1}, v{ks[0]}, v{ks[1]}")
            ks = ks[2:]
        for k in ks:
            a(f"v_med3_u32 v{M2}, v{M1}, v{M2}, v{k}")
            a(f"v_max_u32 v{M1}, v{M1}, v{k}")
    a.stamp(3)

    def place(r):
        lo, hi = ((0xff << (8 * r)) & 0xffffffff, (0xff << (8 * r)) >> 32)
        return ["s_and_b32 s13, s12, 0x7ff", "s_sub_u32 s13, 2047, s13", "s_mul_i32 s13, s13, 1152",
                [f"s_mov_b32 exec_lo, {lo:#x}", f"s_mov_b32 exec_hi, {hi:#x}",
                 f"v_add_u32 v{VO}, s13, v{CH}", f"v_mov_b32 v{VK}, s12", "s_mov_b64 exec, -1"]]
    for r in range(8):
        if r == 0:
            a(f"v_mov_b32 v{T1}, v{M1}")
            fill = []
        else:
            a(f"v_subrev_u32 v{T1}, s12, v{M1}")
            a(f"v_subrev_u32 v{T2}, s12, v{M2}")
            a(f"v_max_u32 v{T1}, v{T1}, v{T2}")
            p = place(r - 1)
            fill = [p[0:2], [p[2]], p[3]]
        for st in wave_max_steps(T1):
            for x in (fill.pop(0) if fill else []):
                a(x)
            a(st)
        a(f"v_readlane_b32 s8, v{T1}, 63")
        a("s_add_u32 s12, s12, s8" if r else "s_mov_b32 s12, s8")
    p = place(7)
    for x in p[:3] + p[3]:
        a(x)
    a("s_mov_b32 s14, 0")
    a.lab("SEL_GATHER")
    for b in range(9):
        a(f"s_mov_b32 m0, {XB + 896*b}")
        a(f"buffer_load_dwordx4 v{VO}, {sr(SX,4)}, 0 offen offset:{128*b} lds")
    a.signal(F_D, 13)
    a.stamp(4)
    a("s_cmp_lg_u32 s14, 0")
    a("s_cbranch_scc1 SEL_OK")
    TK = KD
    for k in range(32):
        a(f"v_sub_u32 v{TK+k}, v{KY+k}, v{M2}")

    def tree():
        for j in range(10):
            a(f"v_max3_u32 v{TK+3*j}, v{TK+3*j}, v{TK+3*j+1}, v{TK+3*j+2}")
        a(f"v_max3_u32 v{TK}, v{TK}, v{TK+3}, v{TK+6}")
        a(f"v_max3_u32 v{TK+9}, v{TK+9}, v{TK+12}, v{TK+15}")
        a(f"v_max3_u32 v{TK+18}, v{TK+18}, v{TK+21}, v{TK+24}")
        a(f"v_max3_u32 v{TK+27}, v{TK+27}, v{TK+30}, v{TK+31}")
        a(f"v_max3_u32 v{TK}, v{TK}, v{TK+9}, v{TK+18}")
        a(f"v_max_u32 v{TK}, v{TK}, v{TK+27}")
    tree()
    a(f"v_add_u32 v{TK}, v{TK}, v{M2}")
    a(f"v_cmp_lt_u32 vcc, s12, v{TK}")
    if E("FORCESLOW"):
        a("s_mov_b64 vcc, 1")
    a("s_cmp_eq_u64 vcc, 0")
    a("s_cbranch_scc1 SEL_OK")
    a("s_waitcnt vmcnt(0)")
    a("s_mov_b32 s12, 0")
    a("s_mov_b64 s[56:57], 0xff")
    a.lab("SEL_SLOW")
    for k in range(32):
        a(f"v_subrev_u32 v{TK+k}, s12, v{KY+k}")
    tree()
    for st in wave_max_steps(TK):
        a(st)
    a(f"v_readlane_b32 s8, v{TK}, 63")
    a("s_add_u32 s12, s12, s8")
    for x in place(0)[:3]:
        a(x)
    a("s_mov_b64 exec, s[56:57]")
    a(f"v_add_u32 v{VO}, s13, v{CH}")
    a(f"v_mov_b32 v{VK}, s12")
    a("s_mov_b64 exec, -1")
    a("s_lshl_b64 s[56:57], s[56:57], 8")
    a("s_add_u32 s14, s14, 1")
    a("s_cmp_lt_u32 s14, 8")
    a("s_cbranch_scc1 SEL_SLOW")
    a("s_branch SEL_GATHER")
    a.lab("SEL_OK")
    a("s_cmp_lg_u32 s2, 0")
    a("s_cbranch_scc1 SEL_NOPUB")
    a(f"v_mov_b32 v{VK+1}, v14")
    a(f"v_add_u32 v8, {WS_SEL}, v2")
    a("s_mov_b32 exec_lo, 0x01010101")
    a("s_mov_b32 exec_hi, 0x01010101")
    a(f"global_store_dwordx2 v8, {vr(VK,2)}, {sr(P_WS,2)} sc1")
    a("s_mov_b64 exec, 1")
    a(f"global_store_dword v8, v14, {sr(P_WS,2)} offset:{WS_BASE-WS_SEL} sc1")
    a("s_mov_b64 exec, -1")
    a("s_waitcnt vmcnt(2)")
    a("s_branch SEL_END")
    a.lab("SEL_NOPUB")
    a("s_waitcnt vmcnt(0)")
    a.lab("SEL_END")
    a("v_mov_b32 v8, 3")
    a(f"ds_write_b32 v1, v8 offset:{F_XR}")
    a.stamp(5)
    a.end()


def ffn_loader(a):
    a.lab("F_LOAD")
    a("s_setprio 3")
    SG, SU, SD = 52, 56, 60
    a("s_sub_u32 s12, s3, 9")
    a("v_lshrrev_b32 v5, 3, v2")
    a("v_bfe_u32 v6, v2, 4, 1")
    a("v_xor_b32 v6, v6, v2")
    a("v_and_b32 v6, 7, v6")
    a("s_movk_i32 s8, 9216")
    a("v_mul_lo_u32 v7, v5, s8")
    a("v_lshl_add_u32 v8, v6, 4, v7")
    a("v_xor_b32 v9, 32, v8")
    a("v_xor_b32 v10, 64, v8")
    a("v_xor_b32 v11, 96, v8")
    a("v_bfe_u32 v6, v2, 4, 1")
    a("v_lshlrev_b32 v6, 1, v6")
    a("v_xor_b32 v6, v6, v2")
    a("v_and_b32 v6, 7, v6")
    a("v_mul_u32_u24 v7, 1152, v5")
    a("v_lshl_add_u32 v12, v6, 4, v7")
    a("v_xor_b32 v13, 64, v12")
    a("s_mul_i32 s13, s12, 294912")
    a("s_lshl_b32 s8, s7, 7")
    a("s_add_u32 s13, s13, s8")
    a("s_lshl_b32 s15, s12, 13")
    a(f"s_add_u32 s15, s15, {WA}")
    a("s_mul_i32 s14, s12, 24576")
    a(f"s_add_u32 s14, s14, {WB}")
    a("s_mul_i32 s11, s7, 73728")
    a("s_mul_i32 s8, s12, 384")
    a("s_add_u32 s11, s11, s8")
    a("s_waitcnt lgkmcnt(0)")
    srd(a, SG, P_WG, 5308416)
    srd(a, SU, P_WU, 5308416)
    srd(a, SD, P_WD, 5308416)
    bulk_gate(a, 14)
    n = 0
    sig = 0

    def pre():
        nonlocal sig
        if n == E("W1", 99):
            a.spin(F_PI, 1, 14, sleep=1)
        if n == E("W0", 99):
            a.spin(F_NONCE, 0, 14, op="lg", sleep=1)
        if n >= WIN_F:
            a(f"s_waitcnt vmcnt({WIN_F-1})")
        if sig < 6 and n - WIN_F + 1 >= 8 * (sig + 1):
            a.signal(F_L + 4 * sig, 14)
            if sig in (0, 2, 5):
                a.stamp(1 + sig // 2)
            sig += 1
    for c in range(6):
        if c >= 3:
            a.spin(F_AC + 4 * (c - 3), 4, 14)
        for R in range(4):
            for mu in range(2):
                pre()
                a(f"s_add_u32 m0, s15, {(c%3)*24576 + R*2048 + mu*1024}")
                if not NOW:
                    a(f"buffer_load_dwordx4 v{8+2*mu+(R&1)}, {sr(SU if mu else SG,4)}, s13 offen {WNT} lds")
                n += 1
            a(f"s_add_u32 s13, s13, {73728 if R < 3 else 73728*9}")
    a.signal(F_D, 14)
    a.stamp(4)
    while sig < 6:
        a(f"s_waitcnt vmcnt({48 - 8*(sig+1)})")
        a.signal(F_L + 4 * sig, 14)
        sig += 1
    a.stamp(3)
    a("s_cmp_eq_u32 s3, 9")
    a("s_cbranch_scc1 F_COMP2")
    a.end()


def ffn_comp(a):
    a.lab("F_COMP")
    a.b0()
    a.lab("F_COMP2")
    a("s_and_b32 s12, s3, 3")
    a("v_lshrrev_b32 v5, 2, v3")
    a("v_bfe_u32 v7, v3, 3, 1")
    a("v_and_b32 v13, 1, v4")
    a("v_lshl_or_b32 v14, v13, 1, v7")
    a("v_and_b32 v15, 7, v3")
    a(f"v_mul_u32_u24 v16, {HS}, v15")
    a(f"v_add_u32 v16, {HB}, v16")
    a("s_mov_b32 s56, 0xff00ff00")
    a("s_mov_b32 s57, 0xff00ff00")
    a("s_lshr_b32 s8, s3, 2")
    a("s_cmp_lg_u32 s8, 1")
    a("s_cbranch_scc1 F_DOWN")
    WF, AG = 24, 8
    a("v_bfe_u32 v6, v3, 1, 1")
    a("v_lshl_or_b32 v8, v6, 2, v14")
    a("v_xor_b32 v8, s12, v8")
    a("v_lshlrev_b32 v8, 4, v8")
    a("v_lshl_add_u32 v8, v5, 7, v8")
    a("v_lshl_add_u32 v8, v6, 10, v8")
    a("v_lshl_add_u32 v8, v4, 11, v8")
    a("v_and_b32 v9, 1, v3")
    a("v_lshl_add_u32 v8, v9, 3, v8")
    a("v_xor_b32 v9, 64, v8")
    a(f"v_add_u32 v10, {WA+49152}, v8")
    a(f"v_add_u32 v11, {WA+49152}, v9")
    a("v_lshlrev_b32 v6, 2, v13")
    a("v_lshrrev_b32 v5, 1, v4")
    a("v_add_u32 v6, v6, v5")
    a("v_lshl_add_u32 v6, v7, 5, v6")
    a("s_lshl_b32 s8, s12, 3")
    a("v_add_lshl_u32 v6, v6, s8, 1")
    a("v_add_u32 v5, v6, v16")
    a("v_and_b32 v6, 6, v3")
    a("v_xor_b32 v6, v6, v4")
    a("v_lshlrev_b32 v6, 4, v6")
    a("v_lshl_add_u32 v6, v15, 7, v6")
    a(f"v_add_u32 v6, {XB}, v6")
    a("v_xor_b32 v7, 64, v6")
    for c in range(6):
        a.spin(F_L + 4 * c, 3, 12, sleep=E("CSL", 1))
        if c in (2, 5):
            a.stamp(2 + c // 3)
        for s in range(3):
            for t in range(2):
                base, off = (8 + t, WA + (c % 3) * 24576 + s * 8192) if c % 3 < 2 else (10 + t, s * 8192)
                r = WF + 8 * (3 * c + s) + 4 * t
                a(f"ds_read_b64_tr_b16 {vr(r,2)}, v{base} offset:{off}")
                a(f"ds_read_b64_tr_b16 {vr(r+2,2)}, v{base} offset:{off+512}")
        if c < 3:
            a("s_waitcnt lgkmcnt(0)")
            a.signal(F_AC + 4 * c, 12)
    a("s_setprio 3")
    a.spin(F_XR, 1, 12)
    a.stamp(4)
    a.auto(True)
    xs = lambda s: 16 + 4 * s
    def xrd(s):
        a(f"ds_read_b128 {vr(xs(s),4)}, v{7 if s&1 else 6} offset:{1024*(s>>1)}")
    xrd(0); xrd(1)
    nx = 2
    for s in range(18):
        for t in range(2):
            a(f"v_mfma_f32_16x16x32_bf16 {vr(AG+4*t,4)}, {vr(WF+8*s+4*t,4)}, {vr(xs(s),4)}, {vr(AG+4*t,4) if s else 0}")
            if nx < 18 and xs(nx) + 4 <= WF + 8 * s + 4 * t + 4:
                xrd(nx); nx += 1
    a.auto(False)
    a.stamp(8)
    for r in range(4):
        a(f"v_cndmask_b32 v{AG+r}, v{AG+r}, v{AG+4+r}, s[56:57]")
    a(f"v_permlane32_swap_b32 v{AG}, v{AG+1}")
    a(f"v_permlane32_swap_b32 v{AG+2}, v{AG+3}")
    for op in ("v_cvt_pk_bf16_f32 v{u}, v{g}, v{u}", "v_lshlrev_b32 v{g}, 16, v{u}", "v_mul_f32 v{t}, 0xbfb8aa3b, v{g}", "v_exp_f32 v{t}, v{t}",
               "v_and_b32 v{u}, 0xffff0000, v{u}", "v_add_f32 v{t}, 1.0, v{t}", "v_rcp_f32 v{t}, v{t}", "v_mul_f32 v{g}, v{g}, v{t}",
               "v_cvt_pk_bf16_f32 v{g}, v{g}, v{g}", "v_and_b32 v{g}, 0xffff0000, v{g}", "v_mul_f32 v{g}, v{g}, v{u}"):
        for p in range(2):
            a(op.format(g=AG + 2 * p, u=AG + 2 * p + 1, t=AG + 4 + p))
    a(f"v_cvt_pk_bf16_f32 v{AG}, v{AG}, v{AG+2}")
    a(f"ds_write_b16 v5, v{AG}")
    a(f"ds_write_b16_d16_hi v5, v{AG} offset:4")
    a.signal(F_HR, 12)
    a.stamp(5)
    a.end()
    a.lab("F_DOWN")
    RW, DF, AC, HF = 24, 56, 120, 152
    a("v_lshl_add_u32 v10, v4, 4, v16")
    a(f"v_mov_b32 v18, {HB+8*HS}")
    a("v_cndmask_b32 v19, v18, v10, s[56:57]")
    a("v_cndmask_b32 v18, v10, v18, s[56:57]")
    a("v_and_b32 v20, 31, v2")
    a("v_lshlrev_b32 v20, 2, v20")
    a(f"v_add_u32 v20, {HB+8*HS}, v20")
    a("ds_write_b32 v20, v1")
    a("v_mul_u32_u24 v8, 9216, v4")
    a("s_mul_i32 s13, s7, 73728")
    for j in range(4):
        a(f"s_mov_b32 s{60+j}, {0x07060500+j:#x}")
    a("s_mov_b32 s64, 0x05040100")
    a("s_mov_b32 s65, 0x07060302")
    a("s_lshl_b32 s14, s7, 7")
    a(f"s_add_u32 s14, s14, {WS_MB}")
    a("v_lshl_add_u32 v11, v15, 4, s14")
    a("s_waitcnt lgkmcnt(0)")
    srd(a, 52, P_WS, WS_SIZE)
    srd(a, 68, P_WD, 5308416)
    a("s_cmp_eq_u32 s3, 9")
    a("s_cbranch_scc1 F_DN2")

    def down(nd):
        nf = 2 * nd
        raw = lambda q, e: (RW if q == 0 else 88) + nd * e
        frg = lambda q, j: (DF if q == 0 else RW) + 4 * j
        for q in range(2):
            for e in range(8):
                if nd == 4 and E("DE", 4) and 8 * q + e == E("DE", 4):
                    a.spin(F_D, 4, 12, sleep=1)
                if not NOW:
                    a(f"buffer_load_dword{'x4' if nd == 4 else 'x2'} {vr(raw(q,e),nd)}, v8, s[68:71], s13 offen offset:{1152*(e&3)}")
                if e & 3 == 3:
                    a(f"s_add_u32 s13, s13, {4608 if e == 3 else 36864-4608}")
        def perms(q, p):
            a(f"s_waitcnt vmcnt({14 - 8*q - 2*p})")
            for j in range(nf):
                a(f"v_perm_b32 v{frg(q,j)+p}, v{raw(q,2*p+1)+(j>>1)}, v{raw(q,2*p)+(j>>1)}, s{64+(j&1)}")

        def mms(q):
            for j in range(nf):
                if nd == 4:
                    c = vr(AC + 4 * (j & 3), 4)
                    a(f"v_mfma_f32_16x16x32_bf16 {c}, {vr(frg(q,j),4)}, {vr(HF+8*(j>>2)+4*q,4)}, {c if q or j > 3 else 0}")
                else:
                    a(f"v_mfma_f32_16x16x32_bf16 {vr(AC+4*j,4)}, {vr(frg(q,j),4)}, {vr(HF+4*q,4)}, {vr(AC+4*j,4) if q else 0}")
        for q, p in [(0, 0), (0, 1), (0, 2), (0, 3), (1, 0), (1, 1)]:
            perms(q, p)
        a.spin(F_HR, 4, 12)
        a.stamp(5)
        for q in range(2):
            if nd == 4:
                a(f"ds_read_b128 {vr(HF+4*q,4)}, v18 offset:{64*q}")
                a(f"ds_read_b128 {vr(HF+8+4*q,4)}, v19 offset:{64*q}")
            else:
                a(f"ds_read_b128 {vr(HF+4*q,4)}, v10 offset:{64*q}")
        a(f"s_waitcnt lgkmcnt({nd//2})")
        mms(0)
        a("s_waitcnt lgkmcnt(0)")
        perms(1, 2)
        perms(1, 3)
        a.stamp(4)
        mms(1)
        O = 88
        for r in range(nd):
            for j in range(4):
                if nd == 4:
                    a(f"v_perm_b32 v{O+4*r+j}, v{AC+4*j+r}, v17, s{60+j}")
                else:
                    a(f"v_cndmask_b32 v{O+4*r+j}, v{AC+4*j+2*r}, v{AC+4*j+2*r+1}, s[56:57]")
            if nd == 2:
                for j in range(4):
                    a(f"v_perm_b32 v{O+4*r+j}, v{O+4*r+j}, v17, s{60+j}")
            a(f"s_mov_b32 s12, {18432*r}")
            a(f"buffer_store_dwordx4 {vr(O+4*r,4)}, v11, s[52:55], s12 offen sc1")
        a.stamp(6)
        a.end()
    a("v_lshl_add_u32 v8, v3, 4, v8")
    a("s_lshl_b32 s8, s3, 8")
    a("s_add_u32 s13, s13, s8")
    a("s_lshl_b32 s8, s3, 5")
    a("v_lshl_add_u32 v6, v4, 3, v7")
    a("v_add_u32 v6, s8, v6")
    a("v_mul_u32_u24 v6, 9216, v6")
    a("v_add_u32 v11, v6, v11")
    a.spin(F_X, 0, 17, op="lg", sleep=2)
    a.spin(F_D, 3 if E("DE", 4) else 4, 12, sleep=1)
    a("s_setprio 2")
    down(4)
    a.lab("F_DN2")
    a("v_lshl_add_u32 v8, v3, 3, v8")
    a("s_add_u32 s13, s13, 1024")
    a("v_lshl_add_u32 v6, v4, 2, v7")
    a("v_add_u32 v6, 128, v6")
    a("v_mul_u32_u24 v6, 9216, v6")
    a("v_add_u32 v11, v6, v11")
    a.spin(F_X, 0, 17, op="lg")
    down(2)


def helper(a):
    a.lab("HELPER")
    if not HPN:
        a.end()
        return
    a(f"s_cmp_ge_u32 s3, {2+HPW}")
    a("s_cbranch_scc1 K_END")
    a("s_and_b32 s12, s3, 1")
    a("s_sub_u32 s13, s3, 2")
    a("s_lshr_b32 s13, s13, 1")
    a("s_mul_i32 s13, s13, 5")
    a("s_add_u32 s13, s13, s5")
    a(f"s_add_u32 s13, s13, {(HPS-NJF) & 0xffffffff}")
    prefetch(a, HPN, E("HH", 0))
    if STAMP:
        a("s_waitcnt vmcnt(0)")
        a.stamp(1)
    a.end()


DSK, EXPN = 166, 167
PA, PB, A16, PC, PD, A32, E2, EF = 104, 108, 112, 116, 120, 124, 128, 152


def cmul(a, d, x, y):
    a(f"v_pk_mul_f32 {vr(d,2)}, {vr(x,2)}, {vr(y,2)} op_sel:[0,0] op_sel_hi:[0,1]")
    a(f"v_pk_fma_f32 {vr(d,2)}, {vr(x,2)}, {vr(y,2)}, {vr(d,2)} op_sel:[1,1,0] op_sel_hi:[1,0,1] neg_lo:[0,1,0]")


def kgen_head(a):
    a.lab("C_KGEN")
    a.fine(6)
    PR = 16
    a("s_and_b32 s12, s3, 3")
    a("s_lshr_b32 s13, s3, 2")
    a("s_lshl_b32 s14, s7, 2")
    a("s_add_u32 s14, s14, s12")
    a("s_lshl_b32 s8, s14, 8")
    a("s_lshl_b32 s9, s13, 7")
    a("s_add_u32 s8, s8, s9")
    a("v_lshl_add_u32 v5, v2, 1, s8")
    for k in range(6):
        a(f"v_mov_b32 v{PR+k}, 0")
    a("s_lshl_b32 s55, s7, 3")
    a("s_setprio 2")
    a(f"s_mul_i32 s15, s3, {KTS}")
    a(f"s_add_u32 s15, s15, {KT}")
    a(f"s_mul_i32 s52, s12, {4*CS}")
    a(f"s_add_u32 s52, s52, {KC}")
    a(f"s_mul_i32 s53, s12, {US}")
    a(f"s_add_u32 s53, s53, {UP}")
    a(f"v_mul_u32_u24 v7, {TS}, v3")
    a("v_lshl_add_u32 v7, v4, 4, v7")
    a("v_add_u32 v7, s15, v7")
    a("s_mov_b32 m0, s15")
    a("s_waitcnt lgkmcnt(0)")
    a.fine(7)
    a(f"s_load_dwordx2 s[58:59], {sr(P_LDT,2)}, s55")
    for k, p in enumerate([P_ARE, P_AIM, P_BRE, P_BIM, P_CRE, P_CIM]):
        a(f"global_load_short_d16_hi v{PR+k}, v5, {sr(p,2)}")
    a(f"s_load_dwordx2 s[68:69], {sr(P_DSK,2)}, s55")
    a.b0()
    a("s_branch C_KBODY")


def kgen(a):
    a.lab("C_KBODY")
    PR = 16
    a.lab("C_SETD")
    a.fine(8)
    a("s_waitcnt lgkmcnt(0)")
    a.auto(True)
    a("s_lshl_b32 s8, s12, 4")
    a("s_lshr_b64 s[58:59], s[58:59], s8")
    a("s_lshl_b32 s8, s58, 16")
    a("v_mov_b32 v44, s8")
    a(f"v_mul_f32 v45, {L2E:#x}, v44")
    a(f"v_mov_b32 v46, {L2E:#x}")
    a("v_fma_f32 v46, v44, v46, -v45")
    a(f"v_mov_b32 v47, {L2E_LO:#x}")
    a("v_fma_f32 v46, v44, v47, v46")
    a("v_exp_f32 v45, v45")
    a(f"v_mul_f32 v46, {LN2:#x}, v46")
    a("v_fma_f32 v45, v45, v46, v45")
    a("v_cvt_pk_bf16_f32 v45, v45, v45")
    DT, DTL, DTR = 36, 37, 38
    a(f"v_and_b32 v{DT}, 0xffff0000, v45")
    a(f"v_mul_f32 v{DTL}, {L2E:#x}, v{DT}")
    a(f"v_mul_f32 v{DTR}, {INV2PI:#x}, v{DT}")
    a("s_waitcnt vmcnt(0)")
    a.stamp(1)
    if STAMP and E("CLK2"):
        a("s_memtime s[90:91]")
    ZR, ZI, WR = 40, 41, 42
    a(f"v_mul_f32 v{ZR}, v{PR}, v{DTL}")
    a(f"v_mul_f32 v{ZI}, v{PR+1}, v{DTR}")
    T0 = 24

    def direct(dst, c):
        if c != 1:
            a(f"v_mul_f32 v{dst}, {fbits(c):#x}, v{ZR}")
            a(f"v_mul_f32 v{dst+1}, {fbits(c):#x}, v{ZI}")
        a(f"v_exp_f32 v{T0}, v{dst if c != 1 else ZR}")
        a(f"v_fract_f32 v{dst+1}, v{dst+1 if c != 1 else ZI}")
        a(f"v_cos_f32 v{dst}, v{dst+1}")
        a(f"v_sin_f32 v{dst+1}, v{dst+1}")
        a(f"v_mul_f32 v{dst}, v{T0}, v{dst}")
        a(f"v_mul_f32 v{dst+1}, v{T0}, v{dst+1}")
    PW, R1 = 46, 44
    pc = lambda c: PW + 2 * (c - 1)
    direct(pc(1), 1)
    a(f"v_mul_f32 v{PR+2}, v{PR+2}, v{DT}")
    a(f"v_mul_f32 v{PR+3}, v{PR+3}, v{DT}")
    cmul(a, WR, PR + 4, PR + 2)
    a(f"v_max_f32 v39, |v{WR}|, |v{WR+1}|")
    side = wave_max_steps(39) + ["v_readlane_b32 s8, v39, 63"]
    OT = [26, 27, 28, 29]
    cnt = [0]

    pend = []

    def flush():
        while pend:
            a(pend.pop(0))

    def emit(row, x):
        o = OT[cnt[0] % 4]
        cnt[0] += 1
        flush()
        a(f"v_cvt_pk_f16_f32 v{o}, v{x}, v{x+1}")
        pend.append(f"ds_write_addtid_b32 v{o} offset:{row*TS}")
    cmul(a, pc(2), pc(1), pc(1))
    cmul(a, pc(4), pc(2), pc(2))
    Q1, QA, QB = 60, 62, 64
    cmul(a, Q1, pc(4), pc(4))
    a(f"v_mov_b32 v30, 0x3c00")
    a(f"v_xor_b32 v{Q1+1}, 0x80000000, v{Q1+1}")
    a("ds_write_addtid_b32 v30")
    emit(1, Q1)
    cur, nxt = Q1, QA
    for b in range(2, 16):
        cmul(a, nxt, cur, Q1)
        if side:
            a(side.pop(0))
        emit(b, nxt)
        cur, nxt = nxt, (QB if nxt == QA else QA)
    a("s_lshr_b32 s8, s8, 23")
    a("s_sub_u32 s8, 258, s8")
    a("s_min_u32 s54, s8, 253")
    a("s_lshl_b32 s8, s54, 23")
    a(f"v_mul_f32 v{WR}, s8, v{WR}")
    a(f"v_mul_f32 v{WR+1}, s8, v{WR+1}")
    QF, PF, KA = 72, 88, 104
    flush()
    for ks in range(4):
        a(f"ds_read_b128 {vr(QF+4*ks,4)}, v7 offset:{64*ks}")
    direct(R1, 128)
    cmul(a, pc(3), pc(2), pc(1)); cmul(a, pc(5), pc(4), pc(1)); cmul(a, pc(6), pc(3), pc(3)); cmul(a, pc(7), pc(6), pc(1))
    CH = [66, 68]
    YC = [60, 62]
    state = {"cur": WR, "k": 0, "y": 0}

    def adv():
        n = CH[state["k"] & 1]
        cmul(a, n, state["cur"], R1)
        state["cur"] = n; state["k"] += 1

    def row(r, c):
        if c == 0:
            emit(r, state["cur"])
        else:
            y = YC[state["y"] & 1]; state["y"] += 1
            cmul(a, y, state["cur"], pc(c))
            emit(r, y)

    def rd():
        flush()
        for ks in range(4):
            a(f"ds_read_b128 {vr(PF+4*ks,4)}, v7 offset:{64*ks}")

    def mm(t, ks):
        a(f"v_mfma_f32_16x16x32_f16 {vr(KA+4*t,4)}, {vr(PF+4*ks,4)}, {vr(QF+4*ks,4)}, {vr(KA+4*t,4) if ks else 0}")
    for h in range(2):
        for c in range(8):
            row(8 * h + c, c)
        adv()
    rd()
    for h in range(2):
        for c in range(4):
            row(4 * h + c, 2 * c)
            if h == 1:
                mm(0, c)
        adv()
    for q in range(4):
        row(8 + 2 * q, 0); row(9 + 2 * q, 4)
        adv()
    rd()
    for q in range(9):
        row(q, 0)
        if q < 8:
            adv()
        if 4 <= q < 8:
            mm(1, q - 4)
    rd()
    a("v_lshl_add_u32 v8, v2, 4, s15")
    for ks in range(4):
        mm(2, ks)
    a.auto(False)
    a.stamp(2)
    if STAMP and E("CLK2"):
        a("s_memtime s[96:97]")
    a("s_lshl_b32 s8, s12, 2")
    a(f"s_add_u32 s8, s8, {F_PAIR}")
    a("v_mov_b32 v9, s8")
    a("s_cmp_eq_u32 s13, 0")
    a("s_cbranch_scc1 C_KA")
    for t in range(3):
        a(f"ds_write_b128 v8, {vr(KA+4*t,4)} offset:{1024*t}")
    a("v_mov_b32 v10, s54")
    a("ds_write_b32 v9, v10")
    a.stamp(3)
    a("s_setprio 0")
    a("v_and_b32 v14, 3, v3")
    a("v_sub_u32 v14, 3, v14")
    a(f"v_mul_u32_u24 v14, {CS}, v14")
    a("v_lshrrev_b32 v13, 2, v3")
    a("v_lshl_add_u32 v13, v4, 1, v13")
    a("v_lshl_add_u32 v14, v13, 3, v14")
    a("v_add3_u32 v5, v14, s52, 8")
    a("v_lshlrev_b32 v14, 1, v3")
    a("v_sub_u32 v14, v4, v14")
    a("v_lshlrev_b32 v14, 4, v14")
    a(f"s_add_u32 s8, s53, {4064-512*7}")
    a("v_add_u32 v6, s8, v14")
    a("v_lshl_add_u32 v14, v3, 2, v4")
    a(f"s_mul_i32 s8, s12, {OS}")
    a(f"s_add_u32 s8, s8, {OP+4088-512*7}")
    a("v_lshlrev_b32 v14, 3, v14")
    a("v_sub_u32 v7, s8, v14")
    a.spin(F_H, 1, 10, prio=E("BSP", 3), sleep=1)
    a.spin(f"v9 offset:{F_K-F_PAIR}", 0, 10, op="lg", sleep=E("BSS", 0))
    a.stamp(4)
    gphase(a, 0)
    a.lab("C_KA")
    a("s_setprio 1")
    a("v_and_b32 v14, 3, v3")
    a("v_sub_u32 v14, 3, v14")
    a(f"v_mul_u32_u24 v14, {CS}, v14")
    a("v_lshrrev_b32 v13, 2, v3")
    a("v_lshl_add_u32 v13, v4, 1, v13")
    a("v_lshl_add_u32 v14, v13, 3, v14")
    a("v_add3_u32 v5, v14, s52, 8")
    a("v_lshlrev_b32 v14, 1, v3")
    a("v_sub_u32 v14, v4, v14")
    a("v_lshlrev_b32 v14, 4, v14")
    a(f"s_add_u32 s8, s53, {4064-512*7}")
    a("v_add_u32 v6, s8, v14")
    a("v_lshl_add_u32 v14, v3, 2, v4")
    a(f"s_mul_i32 s8, s12, {OS}")
    a(f"s_add_u32 s8, s8, {OP+4088-512*7}")
    a("v_lshlrev_b32 v14, 3, v14")
    a("v_sub_u32 v7, s8, v14")
    a("v_lshrrev_b32 v11, 1, v4")
    a("v_and_b32 v12, 1, v4")
    a("v_lshlrev_b32 v11, 8, v11")
    a("v_lshl_add_u32 v11, v12, 3, v11")
    a("v_lshl_add_u32 v11, v3, 4, v11")
    a("v_add_u32 v11, s15, v11")
    a("v_cmp_gt_u32 vcc, 2, v4")
    a("v_lshlrev_b32 v12, 2, v3")
    a("v_lshlrev_b32 v13, 3, v3")
    a("v_cndmask_b32 v12, v12, v13, vcc")
    a("v_lshl_add_u32 v12, v4, 7, v12")
    a("v_add_u32 v12, s15, v12")
    a("v_mov_b32 v13, 64")
    a("v_cndmask_b32 v13, v13, 4, vcc")
    a("v_add_u32 v13, v13, v12")
    a("v_lshlrev_b32 v14, 1, v3")
    a("v_lshl_add_u32 v14, v4, 7, v14")
    a("v_add_u32 v14, s15, v14")
    a("v_lshlrev_b32 v15, 4, v2")
    a("v_lshlrev_b32 v16, 3, v2")
    a("v_add_u32 v16, 256, v16")
    a("v_min_u32 v15, v15, v16")
    a("v_add_u32 v15, s15, v15")
    EB, E2B = 2048, 3072
    a("v_min_u32 v16, 15, v2")
    a("v_lshl_add_u32 v16, v16, 2, s15")
    a("v_lshrrev_b32 v26, 5, v2")
    a("v_lshlrev_b32 v26, 8, v26")
    a("v_lshl_add_u32 v26, v2, 2, v26")
    a("v_add_u32 v26, s15, v26")
    a("v_lshlrev_b32 v17, 2, v4")
    a("v_sub_u32 v17, v3, v17")
    a("v_lshl_add_u32 v27, v17, 3, s15")
    a(f"v_add_u32 v27, {E2B+104}, v27")
    a("v_lshl_add_u32 v17, v17, 2, s15")
    a(f"v_add_u32 v17, {EB+52}, v17")
    a("v_lshl_add_u32 v19, v2, 4, s52")
    a("s_mov_b32 s56, 0x01000100")
    a("s_mov_b32 s57, 0x03020302")
    a("s_lshl_b32 s8, s12, 4")
    a("s_lshr_b64 s[68:69], s[68:69], s8")
    a("s_lshl_b32 s68, s68, 16")
    a("s_sub_u32 s58, 254, s54")
    a("s_lshl_b32 s58, s58, 23")
    for r in range(12):
        a(f"v_mul_f32 v{KA+r}, s58, v{KA+r}")
    a("s_mov_b64 exec, 1")
    a(f"v_add_f32 v{KA}, s68, v{KA}")
    a("s_mov_b64 exec, -1")
    for r in (3, 7, 10, 11, 14, 15):
        a(f"v_mov_b32 v{72+r}, 0")
    a("v_lshlrev_b32 v28, 4, v2")
    a(f"v_add_u32 v28, {PM}, v28")
    a.spin(F_PM, 2, 18)
    for k, r in ((2, PC), (3, PD), (4, A32)):
        a(f"ds_read_b128 {vr(r,4)}, v28 offset:{1024*k}")
    a.spin("v9", 0, 18, prio=2, op="lg")
    a("s_sub_u32 s60, 254, s8")
    a("s_lshl_b32 s60, s60, 23")
    a.auto(True)
    for t in range(3):
        a(f"ds_read_b128 {vr(PF+4*t,4)}, v8 offset:{4*KTS+1024*t}")
    for t in range(3):
        for p in range(2):
            r = 4 * t + 2 * p
            a(f"v_pk_fma_f32 {vr(KA+r,2)}, {vr(PF+r,2)}, s[60:61], {vr(KA+r,2)} op_sel_hi:[1,0,1]")
            a(f"v_cvt_pk_bf16_f32 v{20+2*t+p}, v{KA+r}, v{KA+r+1}")
        if t == 0:
            a("ds_write_b64 v11, v[20:21]")
        elif t == 1:
            a("ds_write_b32 v12, v22 offset:512")
            a("ds_write_b32 v13, v23 offset:512")
            S = 32
            for p in range(2):
                a(f"ds_read_b64 {vr(S+2*p,2)}, v15 offset:{8*p}")
    a("s_mov_b32 exec_lo, 0")
    a(f"v_alignbit_b32 v{S+3}, v{S+2}, v{S+1}, 16")
    a(f"v_perm_b32 v{S+2}, v{S+1}, v{S+1}, s56")
    a(f"v_alignbit_b32 v{S+1}, v{S+1}, v{S}, 16")
    a(f"v_perm_b32 v{S}, v{S}, v{S}, s56")
    a("s_mov_b32 exec_lo, -1")
    a(f"ds_write_b128 v19, {vr(S,4)} offset:32")
    a(f"v_mov_b32_dpp v{S-2}, v{S+2} wave_shr:1 {DPPF} bound_ctrl:0")
    a(f"v_mov_b32_dpp v{S-1}, v{S+3} wave_shr:1 {DPPF} bound_ctrl:0")
    C1, C2, C3 = 44, 52, 60
    for p in range(4):
        a(f"v_alignbit_b32 v{C1+p}, v{S+p}, v{S+p-1}, 16")
    a(f"ds_write_b128 v19, {vr(C1,4)} offset:{CS+32}")
    for p in range(4):
        a(f"v_mov_b32 v{C2+p}, v{S+p-1}")
    a(f"ds_write_b128 v19, {vr(C2,4)} offset:{2*CS+32}")
    for p in range(4):
        a(f"v_alignbit_b32 v{C3+p}, v{S+p-1}, v{S+p-2}, 16")
    a(f"ds_write_b128 v19, {vr(C3,4)} offset:{3*CS+32}")
    a("v_mov_b32 v10, 1")
    a(f"ds_write_b32 v9, v10 offset:{F_K-F_PAIR}")
    a.stamp(3)
    a(f"s_setprio {E('GPL', 3)}")
    TL = 72
    a(f"v_perm_b32 v{TL+1}, v{S+3}, v{S+3}, s57")
    a(f"v_alignbit_b32 v{TL}, v{S+3}, v{S+2}, 16")
    a(f"v_lshrrev_b32 v{TL+6}, 16, v{S+3}")
    a(f"v_mov_b32 v{TL+4}, v{S+3}")
    for r in (2, 5, 8, 9, 12):
        a(f"v_mov_b32 v{TL+r}, v{TL+1}")
    a(f"v_mov_b32 v{TL+13}, v{TL+6}")
    a("s_mov_b32 exec_lo, 0")
    for r in range(4):
        a(f"ds_write_b16{'_d16_hi' if r&1 else ''} v{12+(r>>1)}, v{22+(r>>1)} offset:{E2B-130+2*(r&1)}")
    a("s_mov_b32 exec_hi, 0x80000000")
    for j in range(4):
        a(f"ds_write_b128 v19, {vr(TL+4*(3-j),4)} offset:{j*CS+48}")
    a("s_mov_b64 exec, 1")
    a(f"ds_write_b16 v14, v24 offset:{E2B+382}")
    a("s_mov_b64 exec, -1")
    a(f"ds_write_b32 v26, v1 offset:{E2B}")
    for r in range(4):
        a(f"ds_write_b16{'_d16_hi' if r&1 else ''} v14, v{24+(r>>1)} offset:{EB+62+32*r}")
    a(f"ds_write_b32 v16, v1 offset:{EB}")
    a("v_readlane_b32 s59, v24, 0")
    a("v_mov_b32 v11, v27")
    a("v_mov_b32 v12, v17")
    a("v_mov_b32 v13, v28")
    a("s_pack_ll_b32_b16 s59, s59, s59")
    a.auto(False)
    a.spin(F_H, 2, 10, sleep=1)
    a.stamp(4)
    gphase(a, 1)


def gphase(a, isA):
    M = "v_mfma_f32_16x16x32_bf16"
    rdA = lambda m, d: [f"ds_read_b64 {vr(d,2)}, v5 offset:{64*m}", f"ds_read_b64 {vr(d+2,2)}, v5 offset:{64*m+8}"]
    rdB = lambda b, rho, d, extra=0: f"ds_read_b128 {vr(d,4)}, v6 offset:{512*(7-b)+64*rho+extra}"
    slot = lambda t: 1024 * (t - 2) if t < 6 else 4 * KTS + 1024 * (t - 6)

    def emit(main, fill=[], per=2, skip=0):
        for x in interleave(main, fill, per=per, skip=skip):
            a(x)
    if isA:
        a(f"s_setprio {E('GPA', 1)}")
        AC = 16
        acc = lambda t: vr(AC + 4 * (t - 2), 4)
        started = set()

        def mf(t, A, B):
            c = acc(t) if t in started else "0"
            started.add(t)
            return f"{M} {acc(t)}, {vr(A,4)}, {vr(B,4)}, {c}"
        U = lambda b: 40 + 8 * (b & 1)
        Z = lambda b: 56 + 24 * (b & 1)
        urd = lambda b: [rdB(b, 0, U(b)), rdB(b, 0, U(b) + 4, 16)]
        PL = [(0, PC), (0, PD), (1, PC), (1, PD), (0, PA), (1, PB)]
        pool2 = lambda b: [f"{M} {vr(Z(b)+4*k,4)}, {vr(U(b)+4*h,4)}, {vr(P,4)}, 0" for k, (h, P) in enumerate(PL) if k < 4] + [mf(b + 2, A16, U(b))]
        pool3 = lambda b: [f"{M} {vr(Z(b)+4*k,4)}, {vr(U(b)+4*h,4)}, {vr(P,4)}, 0" for k, (h, P) in enumerate(PL) if k >= 4] + [mf(b + 4, A32, U(b))] if b < 4 else []
        cvt = lambda b, fs: [f"v_cvt_pk_bf16_f32 v{Z(b)+8*f+r}, v{Z(b)+8*f+r}, v{Z(b)+8*f+4+r}" for f in fs for r in range(4)]
        use2 = lambda b, lo, hi: [mf(b + 2 + D, Z(b) + 8 * f, E2 + 8 * D + 4 * f) for D in range(3) if lo <= b + 2 + D < min(hi, 8) for f in range(2)]
        use3 = lambda b: [mf(t, Z(b) + 16, EF + 4 * (t - b - 4)) for t in range(b + 4, 8)]
        hand = lambda t: [f"ds_write_b128 v8, {acc(t)} offset:{slot(t)}", f"v_mov_b32 v10, {t}", f"ds_write_b32 v9, v10 offset:{F_I-F_PAIR}"]
        e2rd = lambda D: [x for f in range(2) for x in (f"ds_read2_b32 {vr(E2+8*D+4*f,2)}, v11 offset0:{32*D+6+f} offset1:{32*D+4+f}",
                                                        f"ds_read2_b32 {vr(E2+8*D+4*f+2,2)}, v11 offset0:{32*D+2+f} offset1:{32*D+f}")]
        efrd = [x for D in range(4) for x in (f"ds_read2_b32 {vr(EF+4*D,2)}, v12 offset0:{16*D+3} offset1:{16*D+2}",
                                              f"ds_read2_b32 {vr(EF+4*D+2,2)}, v12 offset0:{16*D+1} offset1:{16*D}")]
        a.auto(True)
        emit(urd(0) + urd(1) + rdA(16, A16) + e2rd(0))
        for p in range(4):
            a(f"v_and_b32 v{A32+p}, s59, v{A32+p}")
        emit(pool2(0), e2rd(1) + [f"ds_read_b128 {vr(PA,4)}, v13", f"ds_read_b128 {vr(PB,4)}, v13 offset:1024"], per=1)
        emit(pool2(1), cvt(0, (0, 1)))
        emit(use2(0, 2, 4), cvt(1, (0, 1)))
        emit(use2(1, 2, 4) + pool3(0) + pool3(1), e2rd(2) + hand(2) + efrd + hand(3), per=2)
        a.auto(False)
        a.spin(F_H, 4, 10, sleep=1)
        a(f"s_setprio {E('GPA2', 3)}")
        a.auto(True)
        emit(urd(2) + urd(3) + use2(0, 4, 8) + use2(1, 4, 8), cvt(0, (2,)) + cvt(1, (2,)))
        emit(pool2(2) + use3(0) + use3(1))
        emit(pool2(3) + pool3(2), cvt(2, (0, 1)))
        emit(use2(2, 4, 8) + pool3(3), cvt(3, (0, 1)) + cvt(2, (2,)) + hand(4))
        emit(use2(3, 4, 8) + use3(2), cvt(3, (2,)) + ["s_nop 0"] * 4 + hand(5))
        emit(use3(3))
        a.auto(False)
        a.stamp(5)
        a(f"s_setprio {E('GPA3', 3)}")
        a.spin(F_H, 6, 10, sleep=1)
        a.auto(True)
        emit(urd(4) + urd(5) + pool2(4))
        emit(pool2(5), cvt(4, (0, 1)))
        emit(use2(4, 4, 8), cvt(5, (0, 1)))
        emit(use2(5, 4, 8) + hand(6) + hand(7))
        a.auto(False)
        a.stamp(7)
        a.end()
        return
    a(f"s_setprio {E('GPB', 2)}")
    AF, BF, NB = 40, 104, 6
    acc = lambda t: 16 + 4 * (t % 3)
    a(f"v_subrev_u32 v8, {4*KTS}, v8")
    a("v_cmp_eq_u32 vcc, 0, v2")
    a(f"v_mov_b32 v13, {F_O}")
    a("v_cndmask_b32 v12, 0, 1, vcc")
    a("v_lshlrev_b32 v14, 2, v2")
    a(f"v_add_u32 v14, {PM+5120}, v14")
    a("v_cndmask_b32 v13, v14, v13, vcc")
    stage = {1: 0, 3: 1, 5: 2, 6: 3, 7: 4}

    PT = 32

    def yout(t):
        o = [f"v_add_f32 v{acc(t)+r}, v{acc(t)+r}, v{PT+r}" for r in range(4)] if t >= 2 else []
        o += [f"v_cvt_pk_bf16_f32 v30, v{acc(t)+3}, v{acc(t)+2}", f"v_cvt_pk_bf16_f32 v31, v{acc(t)+1}, v{acc(t)}",
              f"ds_write_b64 v7, v[30:31] offset:{512*(7-t)}"]
        if t in stage:
            o.append(f"ds_add_u32 v13, v12 offset:{4*stage[t]}")
        return o
    bf = lambda n: BF + 4 * (n % NB)
    rdn = lambda n: rdB(n >> 3, n & 7, bf(n))
    part = lambda t: [f"ds_read_b128 {vr(PT,4)}, v8 offset:{slot(t)}"] if t >= 2 else []
    a.auto(True)
    emit(rdA(0, AF) + [rdn(0)] + rdA(8, AF + 32) + [rdn(1)] + rdA(1, AF + 4) + rdA(9, AF + 36) + [rdn(2), rdn(3)])
    for b in range(8):
        y = yout(b - 1) if b else []
        for rho in range(8):
            n = 8 * b + rho
            f0, f1 = [], []
            if b == 0 and rho < 6:
                f0, f1 = rdA(rho + 2, AF + 4 * (rho + 2)), rdA(rho + 10, AF + 32 + 4 * (rho + 2))
            if b and rho in (2, 3):
                f0, f1, y = y[:2], y[2:4], y[4:]
            if rho == 4:
                f0 = f0 + [f"ds_read_b32 v28, v1 offset:{F_H}", f"ds_read_b32 v29, v9 offset:{F_I-F_PAIR}"]
            if rho == 5:
                f0 = f0 + part(b)
            if rho == 6:
                f1 = f1 + ["v_readfirstlane_b32 s9, v29"]
            if rho == 7:
                f0 = f0 + ["v_readfirstlane_b32 s8, v28", "s_add_u32 s9, s9, 2"]
                if b < 2:
                    f1 = f1 + [f"s_cmp_lt_u32 s8, {b+2}"]
                elif b < 7:
                    f1 = f1 + ["s_min_u32 s8, s8, s9", f"s_cmp_lt_u32 s8, {b+2}"]
                else:
                    f1 = f1 + ["s_cmp_lt_u32 s9, 9"]
            if n + 4 < 64:
                f1 = [rdn(n + 4)] + f1
            a(f"{M} {vr(acc(b),4)}, {vr(AF+4*rho,4)}, {vr(bf(n),4)}, {vr(acc(b),4) if n else 0}")
            emit(f0)
            if b < 7:
                a(f"{M} {vr(acc(b+1),4)}, {vr(AF+32+4*rho,4)}, {vr(bf(n),4)}, {vr(acc(b+1),4) if rho else 0}")
            emit(f1)
        a(f"s_cbranch_scc1 C_SLOW{b}")
        a.lab(f"KEEP_P{b}")
        if b == 3:
            a.stamp(5)
            if STAMP and E("CLK"):
                a("s_memtime s[82:83]")
    a.stamp(6)
    if STAMP and E("CLK"):
        a("s_memtime s[84:85]")
    emit(yout(7))
    a.auto(False)
    a.stamp(7)
    a(f"ds_read_b32 v10, v1 offset:{F_X}")
    a("s_cmp_eq_u32 s3, 4")
    a("s_cbranch_scc1 C_FIN")
    a.end()
    for b in range(8):
        a.lab(f"C_SLOW{b}")
        if b < 7:
            a.spin(F_H, b + 2, 28)
        if b >= 2:
            a.spin(f"v9 offset:{F_I-F_PAIR}", b, 28)
        for x in part(b) + ([rdn(8 * b + 8 + k) for k in range(4)] if b < 7 else []):
            a(x)
        a("s_waitcnt lgkmcnt(0)")
        a(f"s_branch KEEP_P{b}")


XD, GD = 40, 56
VX, VY, VG, VO = 72, 73, 74, 78


def epi_setup(a):
    srd(a, 60, P_OUT, 2359296)
    a("v_bfe_u32 v79, v2, 2, 2")
    a("v_and_b32 v80, 3, v2")
    a("v_lshl_add_u32 v80, v4, 2, v80")
    a("s_lshl_b32 s8, s12, 7")
    for d, base, stride in ((VX, UP, US), (VY, OP, OS)):
        a(f"v_mul_u32_u24 v{d}, {stride}, v79")
        a(f"v_lshl_add_u32 v{d}, v80, 3, v{d}")
        a(f"s_sub_u32 s9, {base+3968-512*7}, s8")
        a(f"v_add_u32 v{d}, s9, v{d}")
    a("v_xor_b32 v79, 63, v2")
    a("s_lshl_b32 s8, s12, 9")
    a(f"s_add_u32 s8, s8, {WS_G}")
    a(f"v_lshl_add_u32 v{VG}, v79, 3, s8")
    for k in range(1, 4):
        a(f"v_add_u32 v{VG+k}, {4096*k}, v{VG}")
    a(f"v_mul_u32_u24 v{VO}, 1152, v79")
    a(f"v_add_u32 v{VO}, s55, v{VO}")
    a("s_mul_i32 s68, s12, 73728")
    a("s_mov_b32 s70, 0x05040100")
    a("s_mov_b32 s71, 0x07060302")


def epi_x(a, ks):
    for k in ks:
        a(f"ds_read_b64_tr_b16 {vr(XD+2*k,2)}, v{VX} offset:{512*(7-k)}")


def epi_g(a):
    l = a.uid("GP")
    a("s_mov_b32 s9, 0")
    a.lab(l)
    a(f"v_xor_b32 v14, v{GD+1}, v10")
    for k in range(1, 8):
        a(f"v_bitop3_b32 v14, v14, v{GD+2*k+1}, v10 bitop3:0xf6")
    a("v_cmp_ne_u32 vcc, 0, v14")
    a("s_add_u32 s9, s9, 1")
    a("s_cmp_eq_u64 vcc, 0")
    a(f"s_cbranch_scc1 {l}_D")
    a(f"s_cmp_ge_u32 s9, {SPIN}")
    a(f"s_cbranch_scc1 {l}_D")
    epi_gl(a)
    a("s_waitcnt vmcnt(0)")
    a(f"s_branch {l}")
    a.lab(l + "_D")


def epi_gl(a):
    for k in range(8):
        a(f"global_load_dwordx2 {vr(GD+2*k,2)}, v{VG+(k>>1)}, {sr(P_WS,2)} offset:{2048*(k&1)} sc1")


TX = 120


def epi_unp(a, ks):
    for k in ks:
        if k < NF:
            for p in range(2):
                a(f"v_lshlrev_b32 v{TX+4*k+2*p}, 16, v{XD+2*k+p}")
                a(f"v_and_b32 v{TX+4*k+2*p+1}, 0xffff0000, v{XD+2*k+p}")


def epi_mul(a, ks):
    for k in ks:
        if k < NF:
            a(f"v_and_b32 v{16+(k&3)}, 0xffff0000, v{GD+2*k}")
            a(f"v_lshlrev_b32 v{GD+2*k+1}, 16, v{GD+2*k}")
            for c in range(4):
                a(f"v_mul_f32 v{TX+4*k+c}, v{TX+4*k+c}, v{16+(k&3)}")


def epi_fin(a, ks, stage):
    a.spin(F_O + 4 * stage, 4, 15, sleep=E("OSL", 1), prio=E("IOP", 3))
    a.auto(True)
    Y = 16
    for n, k in enumerate(ks):
        a(f"ds_read_b64_tr_b16 {vr(Y+2*n,2)}, v{VY} offset:{512*(7-k)}")
    for n0 in range(0, len(ks), 2):
        pr = [(n, ks[n], 24 + 4 * n) for n in (n0, n0 + 1) if n < len(ks)]
        if ks[n0] < NF:
            for n, k, R in pr:
                for p in range(2):
                    a(f"v_lshlrev_b32 v{R+2*p}, 16, v{Y+2*n+p}")
                    a(f"v_and_b32 v{R+2*p+1}, 0xffff0000, v{Y+2*n+p}")
                for c in range(4):
                    a(f"v_fma_f32 v{R+c}, v{R+c}, v{GD+2*k+1}, v{TX+4*k+c}")
        else:
            for n, k, R in pr:
                for c in range(4):
                    a(f"v_perm_b32 v{R+c}, v{XD+2*k+(c>>1)}, v{Y+2*n+(c>>1)}, s{70+(c&1)}")
            for n, k, R in pr:
                for c in range(4):
                    a(f"v_dot2_f32_bf16 v{R+c}, v{R+c}, v{GD+2*k}, 0")
        for n, k, R in pr:
            for p in range(2):
                a(f"v_cvt_pk_bf16_f32 v{XD+2*k+p}, v{R+2*p}, v{R+2*p+1}")
            if not E("NOST"):
                a(f"buffer_store_dwordx2 {vr(XD+2*k,2)}, v{VO}, s[60:63], s68 offen")
            a("s_add_u32 s68, s68, 294912")
    a.auto(False)


def burst_addr(a):
    a(f"s_sub_u32 s9, s5, {NJH}")
    if GORD:
        a("s_mul_i32 s9, s9, 3")
        a("s_min_u32 s8, s12, 2")
        a("s_add_u32 s9, s9, s8")
        a("s_mul_i32 s9, s9, 12288")
        a("s_mul_i32 s8, s4, 663552")
        a("s_add_u32 s8, s8, s9")
        a("v_lshl_add_u32 v88, v2, 7, s8")
        a("v_min_u32 v89, 31, v2")
        a("v_lshl_add_u32 v89, v89, 7, s8")
        a("v_add_u32 v89, 8192, v89")
        return
    a("s_lshl_b32 s9, s9, 2")
    a("s_add_u32 s9, s9, s12")
    a("s_mul_i32 s9, s9, 9216")
    a("s_mul_i32 s8, s4, 663552")
    a("s_add_u32 s8, s8, s9")
    if BL == 72:
        a("v_lshl_add_u32 v88, v2, 7, s8")
        a("v_min_u32 v89, 7, v2")
        a("v_lshl_add_u32 v89, v89, 7, s8")
        a("v_add_u32 v89, 8192, v89")
    else:
        a(f"s_add_u32 s8, s8, {128*(72-BL)}")
        a(f"v_min_u32 v88, {BL-1}, v2")
        a("v_lshl_add_u32 v88, v88, 7, s8")


def burst(a):
    if BSN:
        for k in range(NBI):
            a(f"global_load_dword v{96+k}, v{88+k}, {sr(P_WD,2)}")


def io_common(a):
    a("s_mul_i32 s7, s4, 18")
    a("s_add_u32 s7, s7, s5")
    a(f"s_sub_u32 s7, s7, {NJH}")
    a("s_lshl_b32 s55, s7, 3")
    a("s_sub_u32 s12, s3, 8")
    epi_setup(a)
    burst_addr(a)


def uloader(a):
    a.lab("C_LOAD")
    a("s_setprio 3")
    a(f"s_sub_u32 s13, s5, {NJH}")
    pf = stripe_pf(a)
    pf2 = []
    if PF2AT >= 0:
        pf, pf2 = pf[:2], [x.replace("v10,", "v98,").replace("v11,", "v99,") for x in pf[2:]]
    a("v_mul_u32_u24 v6, 4608, v2")
    a("s_lshl_b32 s8, s7, 3")
    a("v_add_u32 v6, s8, v6")
    a("v_lshlrev_b32 v7, 3, v2")
    a(f"v_sub_u32 v7, {UP+4088-512*7}, v7")
    a("s_mov_b32 s56, 0x05040100")
    a("s_mov_b32 s58, 0x07060302")
    a("s_mov_b32 s57, s13")
    a("s_waitcnt lgkmcnt(0)")
    if E("PFE", 0):
        for x in pf:
            a(x)
    srd(a, 72, P_U, 2359296)
    a.b0(12)
    if E("PFX"):
        a.spin(F_X, 0, 12, op="lg")
    if not E("PFE", 0):
        for k, x in enumerate(pf):
            if k == 2 and E("PF2"):
                a("s_waitcnt vmcnt(0)")
            a(x)
    io_common(a)
    for j in range(4):
        a(f"v_mov_b32 v{24+j}, 0")
    a("v_lshrrev_b32 v28, 2, v2")
    a(f"v_mul_u32_u24 v28, {CS}, v28")
    a(f"v_add_u32 v28, {KC}, v28")
    a("v_and_b32 v29, 3, v2")
    a("v_lshl_add_u32 v30, v29, 4, v28")
    a("ds_write_b128 v30, v[24:27] offset:1072")
    a("v_and_b32 v29, 1, v2")
    a("v_lshl_add_u32 v30, v29, 4, v28")
    a("ds_write_b128 v30, v[24:27]")
    a("v_lshrrev_b32 v28, 5, v2")
    a(f"v_mul_u32_u24 v28, {US}, v28")
    a("v_and_b32 v29, 31, v2")
    a("v_lshl_add_u32 v30, v29, 4, v28")
    a(f"v_add_u32 v30, {UP+4096}, v30")
    a("ds_write_b128 v30, v[24:27]")
    a(f"ds_write_b128 v30, v[24:27] offset:{2*US}")
    a("s_mov_b32 s15, 0")
    if ROT:
        for k in range(4):
            a(f"s_add_u32 s8, s57, {k}")
            a("s_and_b32 s8, s8, 3")
            a(f"s_mul_i32 s{76+k}, s8, 294912")
            a(f"s_add_u32 s{64+k}, s{76+k}, {4*294912}")
            a("s_lshl_b32 s8, s8, 9")
            a(f"v_subrev_u32 v{32+k}, s8, v7")
    a("v_mov_b32 v12, 1")
    a(f"s_waitcnt vmcnt({E('UW', 2 if PF2AT < 0 else 0)})")
    a.stamp(7)
    U = 104

    def issue(i):
        if not NOU:
            so = f"s{(76 if i < 16 else 64) + ((i >> 2) & 3)}" if ROT else "s15"
            a(f"buffer_load_dwordx2 {vr(U+2*i,2)}, v6, s[72:75], {so} offen offset:{1152*(i&3)}")
        if i & 3 == 3:
            a("s_add_u32 s15, s15, 294912")
        if i == PF2AT:
            for x in pf2:
                a(x)
        if i == GAT:
            a(f"ds_write_b32 v1, v12 offset:{F_UI}")
            epi_gl(a)
        if i == BST:
            if GAT != BST:
                a(f"ds_write_b32 v1, v12 offset:{F_BU}")
            if not BLATE and not GORD:
                burst(a)
    a.auto(True)
    nis = 0
    for i in range(32):
        while nis < min(32, i + WIN_U):
            issue(nis); nis += 1
        a(f"@need {vr(U+2*i,2)}")
        if i & 3 == 3:
            while nis < min(32, i + 1 + WIN_U):
                issue(nis); nis += 1
            t, u, o = i >> 2, U + 2 * (i - 3), 16 + 8 * ((i >> 2) & 1)
            for ch in range(4):
                sel = "s58" if ch & 1 else "s56"
                a(f"v_perm_b32 v{o+2*ch}, v{u+4+(ch>>1)}, v{u+6+(ch>>1)}, {sel}")
                a(f"v_perm_b32 v{o+2*ch+1}, v{u+(ch>>1)}, v{u+2+(ch>>1)}, {sel}")
                if ROT:
                    a(f"ds_write_b64 v{32+(t&3)}, {vr(o+2*ch,2)} offset:{ch*US+512*(7-(t&4))}")
                else:
                    a(f"ds_write_b64 v7, {vr(o+2*ch,2)} offset:{ch*US+512*(7-t)}")
        if i == 3:
            a.stamp(8)
        if i & 3 == 3:
            a(f"v_mov_b32 v36, {(i>>2)+1}")
            a(f"ds_write_b32 v1, v36 offset:{F_H}")
        if i & 15 == 15:
            a.stamp(2 - (i >> 4))
    a.auto(False)
    epi_x(a, range(4))
    a.spin(F_X, 0, 10, op="lg")
    epi_unp(a, range(4))
    if GORD:
        a("s_waitcnt vmcnt(0)")
    a("s_branch C_IO3")
    a.lab("C_IO")
    io_common(a)
    a.spin(F_X, 0, 10, op="lg")
    if BST < GAT:
        a.spin(F_BU, 1, 12, prio=E("IOP", 3), sleep=1)
        burst(a)
    a.spin(F_H, 4, 12, prio=E("IOP", 3), sleep=E("OSL2", 2))
    epi_x(a, range(4))
    a("s_waitcnt lgkmcnt(0)")
    epi_unp(a, range(4))
    a.spin(F_UI, 1, 12, prio=E("IOP", 3), sleep=E("OSL2", 1))
    epi_gl(a)
    if BST < GAT:
        a("s_waitcnt vmcnt(0)")
    else:
        if GAT != BST:
            a.spin(F_BU, 1, 12, prio=3, sleep=1)
        if GORD:
            a.signal(F_GI, 12)
            a.spin(F_GI, 3, 12)
        if not BLATE:
            burst(a)
        if GORD:
            a(f"s_waitcnt vmcnt({NBI})")
    a.lab("C_IO3")
    a(f"s_waitcnt vmcnt({NBI if BSN and not BLATE else 0})")
    if BLATE == 1:
        burst(a)
    epi_g(a)
    epi_mul(a, range(4))
    a.stamp(3)
    epi_fin(a, [0, 1], 0)
    epi_fin(a, [2, 3], 1)
    a.spin(F_H, 8, 12)
    epi_x(a, range(4, 8))
    if NF > 4:
        a("s_waitcnt lgkmcnt(0)")
    epi_unp(a, range(4, 8))
    epi_mul(a, range(4, 8))
    a("s_lshl_b32 s8, s12, 8")
    a(f"s_sub_u32 s8, {OM+7936-1024*7}, s8")
    a("v_lshl_add_u32 v14, v2, 2, s8")
    for k in range(8):
        a(f"ds_write_b32 v14, v{GD+2*k} offset:{1024*(7-k)}")
    a.stamp(4)
    epi_fin(a, [4, 5], 2)
    a.stamp(5)
    if E("L2"):
        epi_fin(a, [6, 7], 4)
    else:
        epi_fin(a, [6], 3)
        epi_fin(a, [7], 4)
    a.signal(F_SI, 8)
    a.stamp(6)
    a("s_waitcnt vmcnt(0)")
    a.signal(F_ST, 8)
    a.end()
    a.lab("C_FIN")
    Z = 104
    a("s_setprio 0")
    a("v_and_b32 v8, 7, v2")
    a("v_lshlrev_b32 v8, 3, v8")
    a(f"v_add_u32 v8, {WS_SEL}, v8")
    a("s_mul_i32 s8, s7, 9216")
    a(f"s_add_u32 s8, s8, {WS_MB}")
    a("v_lshl_add_u32 v5, v2, 4, s8")
    a("v_add_u32 v6, 0x1000, v5")
    a("v_add_u32 v7, 0x2000, v5")
    a("v_and_b32 v19, 1, v4")
    a("v_lshrrev_b32 v20, 1, v4")
    a("v_lshl_or_b32 v19, v19, 1, v20")
    a(f"v_mul_u32_u24 v12, {US}, v19")
    a(f"v_add_u32 v12, {UP}, v12")
    a(f"v_mul_u32_u24 v13, {OS}, v19")
    a(f"v_add_u32 v13, {OP}, v13")
    a(f"s_add_u32 s8, s55, {2047*1152}")
    a("v_lshl_add_u32 v14, v19, 1, s8")
    a("s_waitcnt lgkmcnt(0)")
    for j in range(4):
        a(f"v_bfe_u32 v{Z+6+j}, v10, {8*j}, 8")
    MB = 120
    if FT:
        a.spin(F_O + 16, 4, 26, sleep=1, prio=3)
        if FT > 1:
            a(f"s_sleep {FT}")
    else:
        a.spin(F_SI, E("SI", 4), 26, sleep=1, prio=3)
    a.stamp(5)
    a("s_mov_b32 s9, 0")
    a.lab("C_MPOLL")
    a(f"global_load_dwordx2 v[16:17], v8, {sr(P_WS,2)} sc1")
    for i in range(9):
        a(f"global_load_dwordx4 {vr(MB+4*i,4)}, v{5+(i>>2)}, {sr(P_WS,2)} offset:{1024*(i&3)} sc1")
    a("s_waitcnt vmcnt(9)")
    a("v_and_b32 v22, 0x7ff, v16")
    a("v_lshl_add_u32 v23, v22, 1, v12")
    a(f"ds_read_u16 v{Z+1}, v23")
    a("v_lshl_add_u32 v23, v22, 1, v13")
    a(f"ds_read_u16 v{Z+3}, v23")
    a("v_lshlrev_b32 v23, 2, v22")
    a(f"v_add_u32 v23, {OM}, v23")
    if not (FT or E("SI", 4) < 4):
        a("ds_read_b32 v24, v23")
    a("v_and_b32 v20, 0xffff0000, v16")
    a("v_ashrrev_i32 v21, 31, v20")
    a("v_not_b32 v21, v21")
    a("v_or_b32 v21, 0x80000000, v21")
    a("v_and_b32 v21, 0xffff0000, v21")
    a("v_xor_b32 v20, v20, v21")
    sigmoid_f32(a, Z, 20, 21)
    rb(a, Z)
    a(f"v_mul_u32_u24 v{Z+4}, 1152, v22")
    a(f"v_sub_u32 v{Z+4}, v14, v{Z+4}")
    a("s_waitcnt lgkmcnt(0)")
    a(f"v_lshlrev_b32 v{Z+1}, 16, v{Z+1}")
    for i in range(9):
        a(f"s_waitcnt vmcnt({8-i})")
        for j in range(4):
            a(f"v_xor_b32 v{MB+4*i+j}, v{MB+4*i+j}, v{Z+6+j}")
        a(f"v_or3_b32 v26, v{MB+4*i}, v{MB+4*i+1}, {'v26' if i else '0'}")
        a(f"v_or3_b32 v26, v{MB+4*i+2}, v{MB+4*i+3}, v26")
        if i:
            for p in range(2):
                a(f"v_pk_add_f32 {vr(28+2*p,2)}, {vr(28+2*p if i > 1 else MB+2*p,2)}, {vr(MB+4*i+2*p,2)}")
    a("v_and_b32 v26, 0xff, v26")
    a("v_bitop3_b32 v26, v26, v17, v10 bitop3:0xf6")
    a("v_cmp_ne_u32 vcc, 0, v26")
    a("s_add_u32 s9, s9, 1")
    a("s_cmp_eq_u64 vcc, 0")
    a("s_cbranch_scc1 C_MOK")
    a(f"s_cmp_lt_u32 s9, {SPIN}")
    a("s_cbranch_scc1 C_MPOLL")
    a.lab("C_MOK")
    if STAMP:
        a("s_mov_b32 s82, s9")
    a.stamp(8)
    a("v_permlane32_swap_b32 v28, v29")
    a("v_permlane32_swap_b32 v30, v31")
    a("v_add_f32 v28, v28, v29")
    a("v_add_f32 v30, v30, v31")
    a("v_permlane16_swap_b32 v28, v30")
    a("v_add_f32 v28, v28, v30")
    a(f"v_add_f32_dpp v28, v28, v28 row_ror:8 {DPPF}")
    rb(a, 28)
    a(f"v_mul_f32 v28, v28, v{Z}")
    rb(a, 28)
    a(f"v_add_f32 v28, v28, v{Z+1}")
    rb(a, 28)
    a(f"v_or_b32 v28, v28, v{Z+3}")
    if FT or E("SI", 4) < 4:
        a.spin(F_SI, 4, 27)
        a("ds_read_b32 v24, v23")
        a("s_waitcnt lgkmcnt(0)")
    a("v_dot2_f32_bf16 v28, v28, v24, 0")
    a("v_cvt_pk_bf16_f32 v28, v28, v28")
    a.spin(F_ST, 4, 27)
    a("s_mov_b32 exec_lo, 0x00ff00ff")
    a("s_mov_b32 exec_hi, 0x00ff00ff")
    a(f"global_store_short v{Z+4}, v28, {sr(P_OUT,2)}")
    a("s_mov_b64 exec, -1")
    a.end()


def kernel(a):
    a.raw(".p2align 8")
    a.raw(".globl k1_kernel")
    a.raw(".type k1_kernel,@function")
    a.lab("k1_kernel")
    a("v_lshrrev_b32 v1, 6, v0")
    a("s_cmp_ge_u32 s2, 256")
    a("v_readfirstlane_b32 s3, v1")
    a("s_cbranch_scc1 K_END")
    a("v_and_b32 v2, 63, v0")
    a("v_mov_b32 v1, 0")
    a("s_cmp_lg_u32 s3, 1")
    a("s_cbranch_scc1 K_NOZ")
    a("v_lshlrev_b32 v3, 2, v2")
    a("ds_write_b32 v3, v1")
    a("s_waitcnt lgkmcnt(0)")
    a.lab("K_NOZ")
    a("s_load_dwordx16 s[16:31], s[0:1], 0")
    a("s_load_dwordx16 s[32:47], s[0:1], 64")
    a("s_load_dwordx4 s[48:51], s[0:1], 128")
    a("s_lshr_b32 s5, s2, 3")
    if CODEPF:
        a("s_lshl_b32 s8, s3, 8")
        a("s_add_u32 s8, s8, s5")
        a(f"s_cmp_lg_u32 s8, {NJF}")
        a("s_cbranch_scc1 K_NOCPF")
        a("s_getpc_b64 s[8:9]")
        a("s_and_b32 s8, s8, 0xffffff00")
        a("v_lshlrev_b32 v8, 7, v2")
        for k in range(4):
            a(f"v_min_u32 v9, CODE_END-k1_kernel-4, v8")
            a(f"global_load_dword v{160+k}, v9, s[8:9]")
            a(f"v_add_u32 v8, 8192, v8")
        a.lab("K_NOCPF")
    if STAMP:
        for i in range(1, 10):
            a(f"s_mov_b32 s{80+2*i}, 0")
    if PROBE:
        a("s_mov_b32 s98, 0")
    a.stamp(0)
    a("v_and_b32 v3, 15, v2")
    a("v_lshrrev_b32 v4, 4, v2")
    a("s_and_b32 s4, s2, 7")
    if not E("OLDB0"):
        a("s_barrier")
    a("s_cmp_eq_u32 s3, 8")
    a("s_cbranch_scc1 ROUTER")
    a(f"s_cmp_lt_u32 s5, {NJH}")
    a("s_cbranch_scc1 K_OTHER")
    a("s_mul_i32 s7, s4, 18")
    a("s_add_u32 s7, s7, s5")
    a(f"s_sub_u32 s7, s7, {NJH}")
    a("s_cmp_ge_u32 s3, 8")
    a("s_cbranch_scc1 K_CIO")
    kgen_head(a)
    router(a)
    a.lab("K_OTHER")
    a("s_mul_i32 s7, s4, 9")
    a("s_add_u32 s7, s7, s5")
    a("s_mov_b32 s12, s3")
    a("s_cmp_lt_u32 s3, 2")
    a("s_cbranch_scc1 GATE")
    a(f"s_cmp_ge_u32 s5, {NJF}")
    a("s_cbranch_scc1 HELPER")
    a("s_cmp_lt_u32 s3, 8")
    a("s_cbranch_scc1 F_COMP")
    ffn_loader(a)
    a.lab("K_CIO")
    a("s_sub_u32 s12, s3, 9")
    a("s_cmp_eq_u32 s3, 11")
    a("s_cbranch_scc1 C_LOAD")
    a("v_lshl_add_u32 v14, v4, 3, v3")
    a("v_sub_u32 v14, 39, v14")
    a("s_lshl_b32 s8, s12, 11")
    a(f"s_add_u32 s8, s8, {PM}")
    a("v_lshl_add_u32 v15, v2, 4, s8")
    W = [(0x7f, 19), (0x1ff, 20), (0x7, 21), (0x1f, 18), (0x3, 21)]
    for k in range(3):
        a("s_cmp_eq_u32 s12, 0")
        a(f"s_cselect_b32 s8, {W[k][0]}, {W[k+2][0]}")
        a(f"s_cselect_b32 s9, {W[k][1]}, {W[k+2][1]}")
        a("s_movk_i32 s11, 0x3f80")
        if k == 2:
            a("s_cselect_b32 s11, s11, 0xffff")
        a("s_lshl_b32 s13, s11, 16")
        a("v_mov_b32 v10, s8")
        a("v_mov_b32 v11, 0")
        a("v_lshlrev_b64 v[10:11], v14, v[10:11]")
        a("v_alignbit_b32 v10, v11, v10, s9")
        for p in range(4):
            a(f"v_bfe_i32 v11, v10, {2*p}, 1")
            a(f"v_bfe_i32 v12, v10, {2*p+1}, 1")
            a("v_and_b32 v11, s11, v11")
            a(f"v_and_or_b32 v{16+4*k+p}, v12, s13, v11")
        a(f"ds_write_b128 v15, {vr(16+4*k,4)} offset:{1024*k}")
    a.signal(F_PM, 10)
    a("s_branch GATE")
    uloader(a)
    helper(a)
    gate(a)
    kgen(a)
    select(a)
    ffn_comp(a)
    if STAMP:
        a.lab("STAMP_OUT")
        a("s_memrealtime s[98:99]")
        a("s_waitcnt lgkmcnt(0)")
        a("s_lshl_b32 s8, s2, 4")
        a("s_add_u32 s8, s8, s3")
        a("s_lshl_b32 s8, s8, 6")
        a(f"s_add_u32 s8, s8, {WS_STAMP}")
        a("v_mov_b32 v5, s8")
        for i in range(10):
            a(f"v_mov_b32 v6, s{80+2*i}")
            a(f"global_store_dword v5, v6, {sr(P_WS,2)} offset:{4*i}")
    if PROBE:
        a.lab("PADTAIL")
        a("s_waitcnt vmcnt(0) lgkmcnt(0)")
        a("s_cmp_eq_u32 s98, 0")
        a("s_cbranch_scc1 K_END")
        a("s_setprio 0")
        a.lab("PADL")
        a("s_sleep 8")
        a("s_memrealtime s[96:97]")
        a("s_waitcnt lgkmcnt(0)")
        a("s_sub_u32 s96, s96, s98")
        a("s_cmp_lt_u32 s96, 2000")
        a("s_cbranch_scc1 PADL")
    a.lab("K_END")
    a("s_endpgm")
    a.lab("CODE_END")


def main():
    ref = open(os.path.join(HERE, NAME + ".s.ref")).read().splitlines()
    head = [l for l in ref if l.startswith(";") and "@launch" not in l and "Override" not in l and "grid=ceil" not in l]
    a = G()
    kernel(a)
    out = head + [
        f"; @launch kernel=k1_kernel grid=(256,1,1) block=(768,1,1) lds={LDS}",
        '.amdgcn_target "amdgcn-amd-amdhsa--gfx950"',
        ".text",
    ] + a.finish() + [
        '.section .rodata,"a"',
        ".p2align 6",
        ".amdhsa_kernel k1_kernel",
        "  .amdhsa_next_free_vgpr 168",
        "  .amdhsa_next_free_sgpr 102",
        "  .amdhsa_accum_offset 168",
        "  .amdhsa_group_segment_fixed_size 0",
        "  .amdhsa_kernarg_size 144",
        "  .amdhsa_user_sgpr_count 2",
        "  .amdhsa_user_sgpr_kernarg_segment_ptr 1",
        "  .amdhsa_system_sgpr_workgroup_id_x 1",
        ".end_amdhsa_kernel",
    ]
    path = sys.argv[1] if len(sys.argv) > 1 else os.path.join(HERE, NAME + ".s")
    open(path, "w").write("\n".join(out) + "\n")


if __name__ == "__main__":
    main()
```

```python
import sys, os
from asmlib import *

NAME = "gated_mix__ssm_conv_s4__moe_arch_mod__prompt"
HERE = os.path.dirname(os.path.abspath(__file__))
E = lambda k, d=0: int(os.environ.get(k, d))
STAMP = E("STAMP")
PROBE = os.environ.get("PROBE", "")
CODEPF = E("CODEPF", 1)
SELD = E("SELD", 16)
GORD = E("GORD", 1)
NF = E("NF", 4)
FT = E("FT", 0)
RDIR = E("RDIR", 2)
GAT = E("GAT", 31)
BL = E("BL", 72)
NBI = 2 if BL == 72 else 1
BLATE = E("BLATE", 0)
KS = E("KS", 32)
WS_KEY2 = 2 << 20
PF2AT = E("PF2AT", -1)
ROT = 0
C3 = E("C3", 28)
WNT = os.environ.get("WNT", "")
POLLF = os.environ.get("POLLF", "sc1").replace("_", " ")
PUBF = os.environ.get("PUBF", "sc1").replace("_", " ")
PFW = E("PFW", 1)
HPN = E("HPN", 3)
HPS = E("HPS", 53)
HPW = E("HPW", 4)
PSTEP = 5 * HPW // 2
BST = E("BST", 31)
BSN = E("BSN", 5)
WIN_U = E("WIN_U", 6)
WIN_F = E("WIN_F", 10)
HOLD = E("HOLD")
FINE = E("FINE")
NOU = E("NOU")
NOW = E("NOW")

WS_KEY, WS_SEL, WS_BASE, WS_G, WS_MB = 0, 8192, 8448, 16384, 32768
WS_STAMP = 4 << 20
WS_SIZE = 0x10000000

LDS = 163840
F_NONCE, F_PAIR, F_ST, F_I, F_K, F_H, F_O = 0, 16, 40, 48, 64, 80, 96
F_L, F_D, F_AC, F_XR, F_HR, F_PI = 16, 40, 48, 84, 88, 92
KT = 256
KTS = 4608
TS = 288
OS = 4160
KC = KT + 8 * KTS
CS = 1216
UP = KC + 16 * CS
US = 4672
OM = UP + 4 * US
OP = OM + 8192
PM = OP + 4 * OS
assert PM + 5120 + 512 <= 147712 and OP % 16 == 0
WA = 256
WB = WA + 73728
XB = WB + 73728
HB = XB + 9216
HS = 144
GW = HB + 9 * HS
assert GW + 2048 <= LDS and GW % 16 == 0
F_X, F_GD, F_RI, F_SI, F_UI, F_BU, F_PM, F_GI = 8, 12, 4, 44, 88, 92, 32, 36

L2E = 0x3fb8aa3b
L2E_LO = 0x32a57060
LN2 = 0x3f317218
INV2PI = 0x3e22f983

P_U, P_ARE, P_AIM, P_BRE, P_BIM, P_CRE, P_CIM, P_LDT = 16, 18, 20, 22, 24, 26, 28, 30
P_DSK, P_BX, P_WR, P_WG, P_WU, P_WD, P_GW, P_OUT = 32, 34, 36, 38, 40, 42, 44, 46
P_DBG, P_WS = 48, 50
NJF, NJH = 9, 14
SPIN = 0x20000

DPPF = "row_mask:0xf bank_mask:0xf"


class G(Asm):
    nlab = 0

    def stamp(s, i):
        if PROBE:
            import inspect
            fn = inspect.stack()[1].function
            if fn == "pre":
                fn = "ffn_loader"
            if f"{fn}:{i}" == PROBE:
                s("s_memrealtime s[98:99]")
        if i >= 20 or STAMP == 3:
            return
        if STAMP == 2:
            import inspect
            fn = inspect.stack()[1].function
            if not (i == 0 or (fn, i) in (("down", 6), ("uloader", 5), ("uloader", 6), ("select", 5), ("gphase", 7))):
                return
        if STAMP and not (FINE and i >= 6):
            s(f"s_memrealtime s[{80+2*i}:{81+2*i}]")

    def fine(s, i):
        if STAMP and FINE:
            s(f"s_memrealtime s[{80+2*i}:{81+2*i}]")

    def b0(s, wait=None):
        if E("OLDB0"):
            s("s_barrier")
        elif wait is not None:
            s.spin(F_RI, 1, wait)

    def end(s):
        s("s_branch STAMP_OUT" if STAMP else "s_branch PADTAIL" if PROBE else "s_endpgm")

    def uid(s, p):
        G.nlab += 1
        return f"{p}_{G.nlab}"

    def spin(s, off, target, tv, sleep=0, op="ge", prio=None):
        l = s.uid("SP")
        if prio is not None:
            s(f"s_setprio {E('SPP', 3) if sleep else 0}")
        s("s_mov_b32 s9, 0")
        s.lab(l)
        s(f"ds_read_b32 v{tv}, v1 offset:{off}") if isinstance(off, int) else s(f"ds_read_b32 v{tv}, {off}")
        s("s_waitcnt lgkmcnt(0)")
        s(f"v_readfirstlane_b32 s8, v{tv}")
        s("s_add_u32 s9, s9, 1")
        s(f"s_cmp_{op}_u32 s8, {target}")
        s(f"s_cbranch_scc1 {l}_D")
        if sleep:
            s(f"s_sleep {sleep * E('SLM', 1)}")
        s(f"s_cmp_lt_u32 s9, {SPIN*4}")
        s(f"s_cbranch_scc1 {l}")
        s.lab(l + "_D")
        if prio is not None:
            s(f"s_setprio {prio}")

    def signal(s, off, tv):
        s(f"v_mov_b32 v{tv}, 1")
        s("s_mov_b64 exec, 1")
        s(f"ds_add_u32 v1, v{tv} offset:{off}") if isinstance(off, int) else s(f"ds_add_u32 {off}, v{tv}")
        s("s_mov_b64 exec, -1")


def srd(a, d, p, size):
    a(f"s_mov_b32 s{d}, s{p}")
    a(f"s_mov_b32 s{d+1}, s{p+1}")
    a(f"s_mov_b32 s{d+2}, {size}")
    a(f"s_mov_b32 s{d+3}, 0x20000")


def wave_max_steps(vv):
    return [f"v_max_u32_dpp v{vv}, v{vv}, v{vv} row_shr:1 {DPPF}",
            f"v_max_u32_dpp v{vv}, v{vv}, v{vv} row_shr:2 {DPPF}",
            f"v_max_u32_dpp v{vv}, v{vv}, v{vv} row_shr:4 {DPPF}",
            f"v_max_u32_dpp v{vv}, v{vv}, v{vv} row_shr:8 {DPPF}",
            f"v_max_u32_dpp v{vv}, v{vv}, v{vv} row_bcast:15 row_mask:0xa bank_mask:0xf",
            f"v_max_u32_dpp v{vv}, v{vv}, v{vv} row_bcast:31 row_mask:0xc bank_mask:0xf"]


def sigmoid_f32(a, dst, src, t):
    a(f"v_mul_f32 v{t}, 0xbfb8aa3b, v{src}")
    a(f"v_exp_f32 v{t}, v{t}")
    a(f"v_add_f32 v{t}, 1.0, v{t}")
    a(f"v_rcp_f32 v{dst}, v{t}")


def rb(a, r):
    a(f"v_cvt_pk_bf16_f32 v{r}, v{r}, v{r}")
    a(f"v_and_b32 v{r}, 0xffff0000, v{r}")


def router(a):
    a.raw(".p2align 7")
    a.lab("ROUTER")
    X, W = 16, 52
    assert RDIR == 2
    a("v_lshrrev_b32 v5, 3, v2")
    a("v_and_b32 v6, 7, v2")
    a("v_lshlrev_b32 v9, 4, v6")
    a("v_lshl_add_u32 v5, s2, 3, v5")
    a("v_mul_u32_u24 v8, 1152, v5")
    a("v_add_u32 v8, v8, v9")
    a("s_waitcnt lgkmcnt(0)")
    a.fine(7)
    for i in range(9):
        a(f"global_load_dwordx4 {vr(X+4*i,4)}, v8, {sr(P_U,2)} offset:{128*i}")
    a(f"s_load_dword s10, {sr(P_WS,2)}, {WS_BASE}")
    a("s_setprio 3")
    for i in range(9):
        a(f"global_load_dwordx4 {vr(W+4*i,4)}, v9, {sr(P_WR,2)} offset:{128*i}")
    a("v_lshlrev_b32 v7, 4, v2")
    a("v_min_u32 v10, 7, v2")
    a(f"s_mov_b32 m0, {GW}")
    a("v_lshlrev_b32 v10, 4, v10")
    a(f"global_load_lds_dwordx4 v7, {sr(P_GW,2)}")
    a(f"global_load_lds_dwordx4 v10, {sr(P_GW,2)} offset:1024")
    a.fine(6)
    a.stamp(21)
    a.b0()
    a("v_mov_b32 v11, 1")
    a(f"ds_write_b32 v1, v11 offset:{F_RI}")
    a("v_and_b32 v3, 15, v2")
    a("v_lshrrev_b32 v4, 4, v2")
    a("s_and_b32 s4, s2, 7")
    a(f"v_add_u32 v7, {XB}, v7")
    if KS == 32:
        a("s_lshl_b32 s8, s2, 5")
        a("v_lshl_add_u32 v15, v4, 3, s8")
    else:
        a(f"s_mul_i32 s8, s2, {KS}")
        a(f"s_add_u32 s8, s8, {WS_KEY2}")
        a("v_lshl_add_u32 v15, v4, 3, s8")
        a("v_lshl_add_u32 v15, v3, 5, v15")
    a("s_mov_b32 s11, 0xffff")
    for j in range(4):
        a(f"v_mov_b32 v{8+j}, 0")
    a("s_waitcnt lgkmcnt(0)")
    a.fine(8)
    a("s_add_u32 s10, s10, 1")
    a("s_addc_u32 s10, s10, 0")
    a("v_mov_b32 v14, s10")
    a("v_mov_b32 v13, s10")
    if RDIR:
        for i in range(9):
            a(f"s_waitcnt vmcnt({8-i+2})")
            for j in range(4):
                a(f"v_dot2c_f32_bf16 v{8+j}, v{X+4*i+j}, v{W+4*i+j}")
        a.stamp(1)
    else:
        a("s_waitcnt vmcnt(9)")
        a.stamp(1)
        if STAMP or PROBE:
            a("s_waitcnt lgkmcnt(0)")
        for i in range(9):
            a(f"ds_read_b128 {vr(X+4*i,4)}, v7 offset:{1024*i}")
        a(f"ds_write_b32 v1, v14 offset:{F_X}")
        for i in range(9):
            a(f"s_waitcnt vmcnt({8-i}) lgkmcnt({9-i})")
            for j in range(4):
                a(f"v_dot2c_f32_bf16 v{8+j}, v{X+4*i+j}, v{W+4*i+j}")
    a("v_add_f32 v8, v8, v9")
    a("v_add_f32 v10, v10, v11")
    a("v_add_f32 v8, v8, v10")
    a(f"v_add_f32_dpp v8, v8, v8 quad_perm:[1,0,3,2] {DPPF}")
    a(f"v_add_f32_dpp v8, v8, v8 quad_perm:[2,3,0,1] {DPPF}")
    a(f"v_add_f32_dpp v8, v8, v8 row_half_mirror {DPPF}")
    a("v_cvt_pk_bf16_f32 v8, v8, v8")
    a("v_ashrrev_i32 v9, 31, v8")
    a("v_or_b32 v9, 0x80008000, v9")
    a("v_xor_b32 v8, v8, v9")
    a(f"v_mov_b32_dpp v9, v8 row_ror:8 {DPPF}")
    km = {32: 0x00010001, 64: 0x00030003, 128: 0x000f000f}[KS]
    a(f"s_mov_b32 exec_lo, {km:#x}")
    a(f"s_mov_b32 exec_hi, {km:#x}")
    a("v_bfi_b32 v12, s11, v8, v9")
    a(f"global_store_dwordx2 v15, v[12:13], {sr(P_WS,2)} {PUBF}")
    a("s_mov_b64 exec, -1")
    a(f"ds_write_b32 v1, v14 offset:{F_NONCE}")
    a.stamp(2)
    if E("RLP", 1):
        a("s_setprio 0")
    if RDIR == 2:
        for i in range(9):
            a(f"ds_write_b128 v7, {vr(X+4*i,4)} offset:{1024*i}")
    if RDIR:
        a("s_waitcnt vmcnt(1)")
        a(f"ds_write_b32 v1, v14 offset:{F_X}")
    a(f"s_cmp_ge_u32 s5, {NJH}")
    a("s_cbranch_scc1 C_IO")
    a(f"s_cmp_lt_u32 s5, {NJF}")
    a("s_cbranch_scc1 SELECT")
    a.end()


def gate(a):
    a.lab("GATE")
    if E("GTP"):
        a(f"s_setprio {E('GTP')}")
    X, W, WL = 16, 34, 44
    a("s_lshl_b32 s8, s12, 9")
    a(f"s_add_u32 s8, s8, {XB}")
    a("v_lshl_add_u32 v5, v2, 2, s8")
    a("v_and_b32 v6, 31, v2")
    a("v_lshlrev_b32 v6, 2, v6")
    a(f"v_add_u32 v6, {GW}, v6")
    a("s_lshl_b32 s8, s2, 1")
    a("s_add_u32 s8, s8, s12")
    a("v_mov_b32 v8, 0")
    a("v_mov_b32 v9, 0")
    a("v_mov_b32 v10, 0x3f803f80")
    a("s_lshl_b32 s8, s8, 5")
    a(f"s_add_u32 s8, s8, {WS_G}")
    a("v_lshrrev_b32 v7, 5, v2")
    a("v_lshl_add_u32 v7, v7, 3, s8")
    a("v_and_b32 v11, 16, v2")
    a("v_add_u32 v7, v7, v11")
    a.b0()
    if E("GATED"):
        a(f"s_sleep {E('GATED')}")
    a.spin(F_X, 0, 13, op="lg", sleep=E("GSL", 1))
    a.auto(True)
    for i in range(5):
        a(f"ds_read2_b32 {vr(W+2*i,2)}, v6 offset0:{64*(i&3)} offset1:{64*(i&3)+32}" if i < 4 else f"ds_read_b32 v{W+8}, v6 offset:1024")
    for i in range(9):
        a(f"ds_read2st64_b32 {vr(X+2*i,2)}, v5 offset0:{4*i} offset1:{4*i+1}")
    for i in range(9):
        a(f"v_and_b32 v{WL+i}, 0xffff, v{W+i}")
        a(f"v_and_b32 v{W+i}, 0xffff0000, v{W+i}")
    for i in range(10):
        t = 56 + 4 * (i & 1)
        u = 56 + 4 * ((i - 1) & 1)
        for j in range(2):
            if i < 9:
                a(f"v_dot2_f32_bf16 v{t+2*j}, v{X+2*i+j}, v{WL+i}, 0")
                a(f"v_dot2_f32_bf16 v{t+2*j+1}, v{X+2*i+j}, v{W+i}, 0")
        if i:
            for j in range(2):
                a(f"v_cvt_pk_bf16_f32 v{u+2*j}, v{u+2*j}, v{u+2*j+1}")
            for j in range(2):
                a(f"v_dot2c_f32_bf16 v{8+j}, v{u+2*j}, v10")
    a.auto(False)
    a.signal(F_GD, 11)
    a("v_permlane16_swap_b32 v8, v9")
    a("v_add_f32 v8, v8, v9")
    for r in (8, 4, 2, 1):
        a(f"v_add_f32_dpp v8, v8, v8 row_ror:{r} {DPPF}")
    rb(a, 8)
    sigmoid_f32(a, 8, 8, 9)
    rb(a, 8)
    a("v_sub_f32 v9, 1.0, v8")
    a("v_cvt_pk_bf16_f32 v12, v8, v9")
    a("s_mov_b32 exec_lo, 0x00010001")
    a("s_mov_b32 exec_hi, 0x00010001")
    a(f"global_store_dwordx2 v7, v[12:13], {sr(P_WS,2)} sc1")
    a("s_mov_b64 exec, -1")
    a.stamp(1)
    a(f"s_cmp_lt_u32 s5, {NJF}")
    a("s_cbranch_scc1 F_COMP2")
    a(f"s_cmp_ge_u32 s5, {NJH}")
    a("s_cbranch_scc1 C_IO")
    a.end()


def stripe_pf(a):
    a("s_and_b32 s8, s13, 15" if PF2AT >= 0 else "s_mov_b32 s8, s13")
    a("s_mul_i32 s8, s8, 73728")
    a("s_lshl_b32 s9, s4, 7")
    a("s_add_u32 s8, s8, s9")
    a("v_mul_u32_u24 v9, 1152, v2")
    a("v_add_u32 v9, s8, v9")
    a("s_add_u32 s8, s13, 18")
    a("s_min_u32 s8, s8, 31")
    a("s_sub_u32 s8, s8, s13")
    a("s_mul_i32 s8, s8, 73728")
    a("v_add_u32 v8, s8, v9" if PF2AT < 0 else f"v_add_u32 v8, {16*73728}, v9")
    return [f"global_load_dword v10, v9, {sr(P_U,2)}", f"global_load_dword v11, v9, {sr(P_U,2)} offset:128",
            f"global_load_dword v10, v8, {sr(P_U,2)}", f"global_load_dword v11, v8, {sr(P_U,2)} offset:128"]


def prefetch(a, n, hold):
    a("v_mul_u32_u24 v5, 57, v2")
    a("v_lshrrev_b32 v5, 9, v5")
    a("v_mul_u32_u24 v6, 9, v5")
    a("v_sub_u32 v6, v2, v6")
    a("s_waitcnt lgkmcnt(0)")
    a("s_cmp_eq_u32 s12, 1")
    a(f"s_cselect_b32 s52, s{P_WU}, s{P_WG}")
    a(f"s_cselect_b32 s53, s{P_WU+1}, s{P_WG+1}")
    a("s_mov_b32 s54, 5308416")
    a("s_mov_b32 s55, 0x20000")
    a("v_mul_u32_u24 v5, 9216, v5")
    a("v_lshl_add_u32 v5, v6, 7, v5")
    a("s_mul_i32 s8, s4, 1152")
    if C3:
        a(f"s_sub_u32 s14, s13, {HPS}")
        a("s_lshr_b32 s9, s52, 7")
        a("s_add_u32 s9, s9, s4")
        a("s_sub_u32 s9, 3, s9")
        a("s_and_b32 s9, s9, 7")
        a("s_lshl_b32 s15, s9, 7")
        a("s_add_u32 s15, s15, s8")
        a(f"s_mul_i32 s14, s14, {9216*C3}")
        a("s_add_u32 s15, s15, s14")
        a(f"s_add_u32 s15, s15, {9216*(7*HPS - C3*PSTEP)}")
        a("s_cmp_eq_u32 s9, 0")
        a("s_cselect_b32 s9, 1024, 0")
        a("v_and_b32 v7, 31, v2")
        a(f"v_min_u32 v7, {C3-1}, v7")
        a("v_mul_u32_u24 v7, 9216, v7")
        a("v_lshrrev_b32 v9, 5, v2")
        a("v_mul_u32_u24 v9, s9, v9")
        a("v_add_u32 v7, v7, v9")
    a("s_mul_i32 s13, s13, 64512")
    a("s_add_u32 s13, s13, s8")
    a.b0(13)
    if hold:
        a.spin(F_NONCE, 0, 13, op="lg", sleep=1)
    if C3:
        a("buffer_load_dword v8, v7, s[52:55], s15 offen")
    for k in range(n):
        if k >= PFW or (C3 and E("C3W", 1)):
            a(f"s_waitcnt vmcnt({PFW-1})")
        a("buffer_load_dword v8, v5, s[52:55], s13 offen")
        a(f"s_add_u32 s13, s13, {64512*PSTEP}")


def bulk_gate(a, tv):
    a.b0(tv)
    if HOLD:
        a.spin(F_NONCE, 0, tv, op="lg", sleep=1)


def select(a):
    a.lab("SELECT")
    a("s_setprio 3")
    SX = 52
    srd(a, SX, P_U, 2359296)
    KD, IX, KY = 16, 48, 80
    M1, M2, T1, T2, VO, VK, CH = 8, 9, 10, 11, 12, 6, 5
    a("v_lshlrev_b32 v7, 4, v2")
    a("v_add_u32 v15, 0x1000, v7")
    if KS != 32:
        a("v_lshrrev_b32 v7, 1, v2")
        a(f"v_mul_u32_u24 v7, {KS}, v7")
        a("v_and_b32 v15, 1, v2")
        a("v_lshl_add_u32 v7, v15, 4, v7")
        for i in range(8):
            a(f"v_add_u32 v{120+i}, {WS_KEY2+32*KS*i}, v7")

    def polls():
        if KS != 32:
            for i in range(8):
                a(f"global_load_dwordx4 {vr(KD+4*i,4)}, v{120+i}, {sr(P_WS,2)} {POLLF}")
            return
        for i in range(8):
            a(f"global_load_dwordx4 {vr(KD+4*i,4)}, v{7 if i < 4 else 15}, {sr(P_WS,2)} offset:{1024*(i&3)} {POLLF}")
    assert WS_KEY == 0
    a("v_lshlrev_b32 v8, 2, v2")
    a("v_sub_u32 v8, 2047, v8")
    for i in range(8):
        for e in range(4):
            a(f"v_subrev_u32 v{IX+4*i+e}, {256*i+e}, v8")
    a("v_lshrrev_b32 v9, 3, v2")
    a("v_and_b32 v9, 6, v9")
    a("v_xor_b32 v9, v9, v2")
    a("v_and_b32 v9, 7, v9")
    a(f"v_lshlrev_b32 v{CH}, 4, v9")
    a(f"v_mov_b32 v{VO}, 0")
    a(f"v_mov_b32 v{VK}, 0")
    a("s_mov_b32 s11, 0xffff0000")
    a("s_mov_b32 s15, 0")
    a.spin(F_GD, 2, 13)
    a("s_mov_b32 s9, 0")
    a("s_waitcnt vmcnt(0)")
    if SELD:
        a(f"s_sleep {SELD}")
    a.stamp(8)
    a.lab("SEL_POLL")
    polls()
    if E("W1", 99) < 99:
        a(f"ds_write_b32 v1, v14 offset:{F_PI}")
    for i in range(8):
        a(f"s_waitcnt vmcnt({7-i})")
        if i == 0:
            a(f"v_xor_b32 v13, v{KD+1}, v14")
        else:
            a(f"v_bitop3_b32 v13, v13, v{KD+4*i+1}, v14 bitop3:0xf6")
        a(f"v_bitop3_b32 v13, v13, v{KD+4*i+3}, v14 bitop3:0xf6")
    a("v_cmp_ne_u32 vcc, 0, v13")
    a("s_add_u32 s9, s9, 1")
    a("s_cmp_eq_u64 vcc, 0")
    a("s_cbranch_scc1 SEL_GOT")
    a(f"s_cmp_lt_u32 s9, {SPIN}")
    a("s_cbranch_scc1 SEL_POLL")
    a.lab("SEL_GOT")
    if STAMP:
        a("s_mov_b32 s94, s9")
    a.stamp(6)
    for i in range(8):
        for h in range(2):
            a(f"v_lshl_or_b32 v{KY+4*i+2*h}, v{KD+4*i+2*h}, 16, v{IX+4*i+2*h}")
            a(f"v_and_or_b32 v{KY+4*i+2*h+1}, v{KD+4*i+2*h}, s11, v{IX+4*i+2*h+1}")
        ks = [KY + 4 * i + e for e in range(4)]
        if i == 0:
            a(f"v_min_u32 v{M2}, v{ks[0]}, v{ks[1]}")
            a(f"v_max_u32 v{M1}, v{ks[0]}, v{ks[1]}")
            ks = ks[2:]
        for k in ks:
            a(f"v_med3_u32 v{M2}, v{M1}, v{M2}, v{k}")
            a(f"v_max_u32 v{M1}, v{M1}, v{k}")
    a.stamp(3)

    def place(r):
        lo, hi = ((0xff << (8 * r)) & 0xffffffff, (0xff << (8 * r)) >> 32)
        return ["s_and_b32 s13, s12, 0x7ff", "s_sub_u32 s13, 2047, s13", "s_mul_i32 s13, s13, 1152",
                [f"s_mov_b32 exec_lo, {lo:#x}", f"s_mov_b32 exec_hi, {hi:#x}",
                 f"v_add_u32 v{VO}, s13, v{CH}", f"v_mov_b32 v{VK}, s12", "s_mov_b64 exec, -1"]]
    for r in range(8):
        if r == 0:
            a(f"v_mov_b32 v{T1}, v{M1}")
            fill = []
        else:
            a(f"v_subrev_u32 v{T1}, s12, v{M1}")
            a(f"v_subrev_u32 v{T2}, s12, v{M2}")
            a(f"v_max_u32 v{T1}, v{T1}, v{T2}")
            p = place(r - 1)
            fill = [p[0:2], [p[2]], p[3]]
        for st in wave_max_steps(T1):
            for x in (fill.pop(0) if fill else []):
                a(x)
            a(st)
        a(f"v_readlane_b32 s8, v{T1}, 63")
        a("s_add_u32 s12, s12, s8" if r else "s_mov_b32 s12, s8")
    p = place(7)
    for x in p[:3] + p[3]:
        a(x)
    a("s_mov_b32 s14, 0")
    a.lab("SEL_GATHER")
    for b in range(9):
        a(f"s_mov_b32 m0, {XB + 896*b}")
        a(f"buffer_load_dwordx4 v{VO}, {sr(SX,4)}, 0 offen offset:{128*b} lds")
    a.signal(F_D, 13)
    a.stamp(4)
    a("s_cmp_lg_u32 s14, 0")
    a("s_cbranch_scc1 SEL_OK")
    TK = KD
    for k in range(32):
        a(f"v_sub_u32 v{TK+k}, v{KY+k}, v{M2}")

    def tree():
        for j in range(10):
            a(f"v_max3_u32 v{TK+3*j}, v{TK+3*j}, v{TK+3*j+1}, v{TK+3*j+2}")
        a(f"v_max3_u32 v{TK}, v{TK}, v{TK+3}, v{TK+6}")
        a(f"v_max3_u32 v{TK+9}, v{TK+9}, v{TK+12}, v{TK+15}")
        a(f"v_max3_u32 v{TK+18}, v{TK+18}, v{TK+21}, v{TK+24}")
        a(f"v_max3_u32 v{TK+27}, v{TK+27}, v{TK+30}, v{TK+31}")
        a(f"v_max3_u32 v{TK}, v{TK}, v{TK+9}, v{TK+18}")
        a(f"v_max_u32 v{TK}, v{TK}, v{TK+27}")
    tree()
    a(f"v_add_u32 v{TK}, v{TK}, v{M2}")
    a(f"v_cmp_lt_u32 vcc, s12, v{TK}")
    if E("FORCESLOW"):
        a("s_mov_b64 vcc, 1")
    a("s_cmp_eq_u64 vcc, 0")
    a("s_cbranch_scc1 SEL_OK")
    a("s_waitcnt vmcnt(0)")
    a("s_mov_b32 s12, 0")
    a("s_mov_b64 s[56:57], 0xff")
    a.lab("SEL_SLOW")
    for k in range(32):
        a(f"v_subrev_u32 v{TK+k}, s12, v{KY+k}")
    tree()
    for st in wave_max_steps(TK):
        a(st)
    a(f"v_readlane_b32 s8, v{TK}, 63")
    a("s_add_u32 s12, s12, s8")
    for x in place(0)[:3]:
        a(x)
    a("s_mov_b64 exec, s[56:57]")
    a(f"v_add_u32 v{VO}, s13, v{CH}")
    a(f"v_mov_b32 v{VK}, s12")
    a("s_mov_b64 exec, -1")
    a("s_lshl_b64 s[56:57], s[56:57], 8")
    a("s_add_u32 s14, s14, 1")
    a("s_cmp_lt_u32 s14, 8")
    a("s_cbranch_scc1 SEL_SLOW")
    a("s_branch SEL_GATHER")
    a.lab("SEL_OK")
    a("s_cmp_lg_u32 s2, 0")
    a("s_cbranch_scc1 SEL_NOPUB")
    a(f"v_mov_b32 v{VK+1}, v14")
    a(f"v_add_u32 v8, {WS_SEL}, v2")
    a("s_mov_b32 exec_lo, 0x01010101")
    a("s_mov_b32 exec_hi, 0x01010101")
    a(f"global_store_dwordx2 v8, {vr(VK,2)}, {sr(P_WS,2)} sc1")
    a("s_mov_b64 exec, 1")
    a(f"global_store_dword v8, v14, {sr(P_WS,2)} offset:{WS_BASE-WS_SEL} sc1")
    a("s_mov_b64 exec, -1")
    a("s_waitcnt vmcnt(2)")
    a("s_branch SEL_END")
    a.lab("SEL_NOPUB")
    a("s_waitcnt vmcnt(0)")
    a.lab("SEL_END")
    a("v_mov_b32 v8, 3")
    a(f"ds_write_b32 v1, v8 offset:{F_XR}")
    a.stamp(5)
    a.end()


def ffn_loader(a):
    a.lab("F_LOAD")
    a("s_setprio 3")
    SG, SU, SD = 52, 56, 60
    a("s_sub_u32 s12, s3, 9")
    a("v_lshrrev_b32 v5, 3, v2")
    a("v_bfe_u32 v6, v2, 4, 1")
    a("v_xor_b32 v6, v6, v2")
    a("v_and_b32 v6, 7, v6")
    a("s_movk_i32 s8, 9216")
    a("v_mul_lo_u32 v7, v5, s8")
    a("v_lshl_add_u32 v8, v6, 4, v7")
    a("v_xor_b32 v9, 32, v8")
    a("v_xor_b32 v10, 64, v8")
    a("v_xor_b32 v11, 96, v8")
    a("v_bfe_u32 v6, v2, 4, 1")
    a("v_lshlrev_b32 v6, 1, v6")
    a("v_xor_b32 v6, v6, v2")
    a("v_and_b32 v6, 7, v6")
    a("v_mul_u32_u24 v7, 1152, v5")
    a("v_lshl_add_u32 v12, v6, 4, v7")
    a("v_xor_b32 v13, 64, v12")
    a("s_mul_i32 s13, s12, 294912")
    a("s_lshl_b32 s8, s7, 7")
    a("s_add_u32 s13, s13, s8")
    a("s_lshl_b32 s15, s12, 13")
    a(f"s_add_u32 s15, s15, {WA}")
    a("s_mul_i32 s14, s12, 24576")
    a(f"s_add_u32 s14, s14, {WB}")
    a("s_mul_i32 s11, s7, 73728")
    a("s_mul_i32 s8, s12, 384")
    a("s_add_u32 s11, s11, s8")
    a("s_waitcnt lgkmcnt(0)")
    srd(a, SG, P_WG, 5308416)
    srd(a, SU, P_WU, 5308416)
    srd(a, SD, P_WD, 5308416)
    bulk_gate(a, 14)
    a.stamp(23)
    n = 0
    sig = 0

    def pre():
        nonlocal sig
        if n == E("W1", 99):
            a.spin(F_PI, 1, 14, sleep=1)
        if n == E("W0", 99):
            a.spin(F_NONCE, 0, 14, op="lg", sleep=1)
        if n >= WIN_F:
            a(f"s_waitcnt vmcnt({WIN_F-1})")
        if sig < 6 and n - WIN_F + 1 >= 8 * (sig + 1):
            a.signal(F_L + 4 * sig, 14)
            if sig in (0, 2, 5):
                a.stamp(1 + sig // 2)
            sig += 1
    for c in range(6):
        if c >= 3:
            a.spin(F_AC + 4 * (c - 3), 4, 14)
        for R in range(4):
            for mu in range(2):
                pre()
                a(f"s_add_u32 m0, s15, {(c%3)*24576 + R*2048 + mu*1024}")
                if not NOW:
                    a(f"buffer_load_dwordx4 v{8+2*mu+(R&1)}, {sr(SU if mu else SG,4)}, s13 offen {WNT} lds")
                n += 1
            a(f"s_add_u32 s13, s13, {73728 if R < 3 else 73728*9}")
    a.signal(F_D, 14)
    a.stamp(4)
    while sig < 6:
        a(f"s_waitcnt vmcnt({48 - 8*(sig+1)})")
        a.signal(F_L + 4 * sig, 14)
        sig += 1
    a.stamp(3)
    a("s_cmp_eq_u32 s3, 9")
    a("s_cbranch_scc1 F_COMP2")
    a.end()


def ffn_comp(a):
    a.lab("F_COMP")
    a.b0()
    a.lab("F_COMP2")
    a("s_and_b32 s12, s3, 3")
    a("v_lshrrev_b32 v5, 2, v3")
    a("v_bfe_u32 v7, v3, 3, 1")
    a("v_and_b32 v13, 1, v4")
    a("v_lshl_or_b32 v14, v13, 1, v7")
    a("v_and_b32 v15, 7, v3")
    a(f"v_mul_u32_u24 v16, {HS}, v15")
    a(f"v_add_u32 v16, {HB}, v16")
    a("s_mov_b32 s56, 0xff00ff00")
    a("s_mov_b32 s57, 0xff00ff00")
    a("s_lshr_b32 s8, s3, 2")
    a("s_cmp_lg_u32 s8, 1")
    a("s_cbranch_scc1 F_DOWN")
    WF, AG = 24, 8
    a("v_bfe_u32 v6, v3, 1, 1")
    a("v_lshl_or_b32 v8, v6, 2, v14")
    a("v_xor_b32 v8, s12, v8")
    a("v_lshlrev_b32 v8, 4, v8")
    a("v_lshl_add_u32 v8, v5, 7, v8")
    a("v_lshl_add_u32 v8, v6, 10, v8")
    a("v_lshl_add_u32 v8, v4, 11, v8")
    a("v_and_b32 v9, 1, v3")
    a("v_lshl_add_u32 v8, v9, 3, v8")
    a("v_xor_b32 v9, 64, v8")
    a(f"v_add_u32 v10, {WA+49152}, v8")
    a(f"v_add_u32 v11, {WA+49152}, v9")
    a("v_lshlrev_b32 v6, 2, v13")
    a("v_lshrrev_b32 v5, 1, v4")
    a("v_add_u32 v6, v6, v5")
    a("v_lshl_add_u32 v6, v7, 5, v6")
    a("s_lshl_b32 s8, s12, 3")
    a("v_add_lshl_u32 v6, v6, s8, 1")
    a("v_add_u32 v5, v6, v16")
    a("v_and_b32 v6, 6, v3")
    a("v_xor_b32 v6, v6, v4")
    a("v_lshlrev_b32 v6, 4, v6")
    a("v_lshl_add_u32 v6, v15, 7, v6")
    a(f"v_add_u32 v6, {XB}, v6")
    a("v_xor_b32 v7, 64, v6")
    for c in range(6):
        a.spin(F_L + 4 * c, 3, 12, sleep=E("CSL", 1))
        if c in (2, 5):
            a.stamp(2 + c // 3)
        for s in range(3):
            for t in range(2):
                base, off = (8 + t, WA + (c % 3) * 24576 + s * 8192) if c % 3 < 2 else (10 + t, s * 8192)
                r = WF + 8 * (3 * c + s) + 4 * t
                a(f"ds_read_b64_tr_b16 {vr(r,2)}, v{base} offset:{off}")
                a(f"ds_read_b64_tr_b16 {vr(r+2,2)}, v{base} offset:{off+512}")
        if c < 3:
            a("s_waitcnt lgkmcnt(0)")
            a.signal(F_AC + 4 * c, 12)
    a("s_setprio 3")
    a.spin(F_XR, 1, 12)
    a.stamp(4)
    a.auto(True)
    xs = lambda s: 16 + 4 * s
    def xrd(s):
        a(f"ds_read_b128 {vr(xs(s),4)}, v{7 if s&1 else 6} offset:{1024*(s>>1)}")
    xrd(0); xrd(1)
    nx = 2
    for s in range(18):
        for t in range(2):
            a(f"v_mfma_f32_16x16x32_bf16 {vr(AG+4*t,4)}, {vr(WF+8*s+4*t,4)}, {vr(xs(s),4)}, {vr(AG+4*t,4) if s else 0}")
            if nx < 18 and xs(nx) + 4 <= WF + 8 * s + 4 * t + 4:
                xrd(nx); nx += 1
    a.auto(False)
    a.stamp(8)
    for r in range(4):
        a(f"v_cndmask_b32 v{AG+r}, v{AG+r}, v{AG+4+r}, s[56:57]")
    a(f"v_permlane32_swap_b32 v{AG}, v{AG+1}")
    a(f"v_permlane32_swap_b32 v{AG+2}, v{AG+3}")
    for op in ("v_cvt_pk_bf16_f32 v{u}, v{g}, v{u}", "v_lshlrev_b32 v{g}, 16, v{u}", "v_mul_f32 v{t}, 0xbfb8aa3b, v{g}", "v_exp_f32 v{t}, v{t}",
               "v_and_b32 v{u}, 0xffff0000, v{u}", "v_add_f32 v{t}, 1.0, v{t}", "v_rcp_f32 v{t}, v{t}", "v_mul_f32 v{g}, v{g}, v{t}",
               "v_cvt_pk_bf16_f32 v{g}, v{g}, v{g}", "v_and_b32 v{g}, 0xffff0000, v{g}", "v_mul_f32 v{g}, v{g}, v{u}"):
        for p in range(2):
            a(op.format(g=AG + 2 * p, u=AG + 2 * p + 1, t=AG + 4 + p))
    a(f"v_cvt_pk_bf16_f32 v{AG}, v{AG}, v{AG+2}")
    a(f"ds_write_b16 v5, v{AG}")
    a(f"ds_write_b16_d16_hi v5, v{AG} offset:4")
    a.signal(F_HR, 12)
    a.stamp(5)
    a.end()
    a.lab("F_DOWN")
    RW, DF, AC, HF = 24, 56, 120, 152
    a("v_lshl_add_u32 v10, v4, 4, v16")
    a(f"v_mov_b32 v18, {HB+8*HS}")
    a("v_cndmask_b32 v19, v18, v10, s[56:57]")
    a("v_cndmask_b32 v18, v10, v18, s[56:57]")
    a("v_and_b32 v20, 31, v2")
    a("v_lshlrev_b32 v20, 2, v20")
    a(f"v_add_u32 v20, {HB+8*HS}, v20")
    a("ds_write_b32 v20, v1")
    a("v_mul_u32_u24 v8, 9216, v4")
    a("s_mul_i32 s13, s7, 73728")
    for j in range(4):
        a(f"s_mov_b32 s{60+j}, {0x07060500+j:#x}")
    a("s_mov_b32 s64, 0x05040100")
    a("s_mov_b32 s65, 0x07060302")
    a("s_lshl_b32 s14, s7, 7")
    a(f"s_add_u32 s14, s14, {WS_MB}")
    a("v_lshl_add_u32 v11, v15, 4, s14")
    a("s_waitcnt lgkmcnt(0)")
    srd(a, 52, P_WS, WS_SIZE)
    srd(a, 68, P_WD, 5308416)
    a("s_cmp_eq_u32 s3, 9")
    a("s_cbranch_scc1 F_DN2")

    def down(nd):
        nf = 2 * nd
        raw = lambda q, e: (RW if q == 0 else 88) + nd * e
        frg = lambda q, j: (DF if q == 0 else RW) + 4 * j
        for q in range(2):
            for e in range(8):
                if nd == 4 and E("DE", 4) and 8 * q + e == E("DE", 4):
                    a.spin(F_D, 4, 12, sleep=1)
                if not NOW:
                    a(f"buffer_load_dword{'x4' if nd == 4 else 'x2'} {vr(raw(q,e),nd)}, v8, s[68:71], s13 offen offset:{1152*(e&3)}")
                if e & 3 == 3:
                    a(f"s_add_u32 s13, s13, {4608 if e == 3 else 36864-4608}")
        def perms(q, p):
            a(f"s_waitcnt vmcnt({14 - 8*q - 2*p})")
            for j in range(nf):
                a(f"v_perm_b32 v{frg(q,j)+p}, v{raw(q,2*p+1)+(j>>1)}, v{raw(q,2*p)+(j>>1)}, s{64+(j&1)}")

        def mms(q):
            for j in range(nf):
                if nd == 4:
                    c = vr(AC + 4 * (j & 3), 4)
                    a(f"v_mfma_f32_16x16x32_bf16 {c}, {vr(frg(q,j),4)}, {vr(HF+8*(j>>2)+4*q,4)}, {c if q or j > 3 else 0}")
                else:
                    a(f"v_mfma_f32_16x16x32_bf16 {vr(AC+4*j,4)}, {vr(frg(q,j),4)}, {vr(HF+4*q,4)}, {vr(AC+4*j,4) if q else 0}")
        for q, p in [(0, 0), (0, 1), (0, 2), (0, 3), (1, 0), (1, 1)]:
            perms(q, p)
        a.spin(F_HR, 4, 12)
        a.stamp(5)
        for q in range(2):
            if nd == 4:
                a(f"ds_read_b128 {vr(HF+4*q,4)}, v18 offset:{64*q}")
                a(f"ds_read_b128 {vr(HF+8+4*q,4)}, v19 offset:{64*q}")
            else:
                a(f"ds_read_b128 {vr(HF+4*q,4)}, v10 offset:{64*q}")
        a(f"s_waitcnt lgkmcnt({nd//2})")
        mms(0)
        a("s_waitcnt lgkmcnt(0)")
        perms(1, 2)
        perms(1, 3)
        a.stamp(4)
        mms(1)
        O = 88
        for r in range(nd):
            for j in range(4):
                if nd == 4:
                    a(f"v_perm_b32 v{O+4*r+j}, v{AC+4*j+r}, v17, s{60+j}")
                else:
                    a(f"v_cndmask_b32 v{O+4*r+j}, v{AC+4*j+2*r}, v{AC+4*j+2*r+1}, s[56:57]")
            if nd == 2:
                for j in range(4):
                    a(f"v_perm_b32 v{O+4*r+j}, v{O+4*r+j}, v17, s{60+j}")
            a(f"s_mov_b32 s12, {18432*r}")
            a(f"buffer_store_dwordx4 {vr(O+4*r,4)}, v11, s[52:55], s12 offen sc1")
        a.stamp(6)
        a.end()
    a("v_lshl_add_u32 v8, v3, 4, v8")
    a("s_lshl_b32 s8, s3, 8")
    a("s_add_u32 s13, s13, s8")
    a("s_lshl_b32 s8, s3, 5")
    a("v_lshl_add_u32 v6, v4, 3, v7")
    a("v_add_u32 v6, s8, v6")
    a("v_mul_u32_u24 v6, 9216, v6")
    a("v_add_u32 v11, v6, v11")
    a.spin(F_X, 0, 17, op="lg", sleep=2)
    a.spin(F_D, 3 if E("DE", 4) else 4, 12, sleep=1)
    a("s_setprio 2")
    down(4)
    a.lab("F_DN2")
    a("v_lshl_add_u32 v8, v3, 3, v8")
    a("s_add_u32 s13, s13, 1024")
    a("v_lshl_add_u32 v6, v4, 2, v7")
    a("v_add_u32 v6, 128, v6")
    a("v_mul_u32_u24 v6, 9216, v6")
    a("v_add_u32 v11, v6, v11")
    a.spin(F_X, 0, 17, op="lg")
    down(2)


def helper(a):
    a.lab("HELPER")
    if not HPN:
        a.end()
        return
    a(f"s_cmp_ge_u32 s3, {2+HPW}")
    a("s_cbranch_scc1 K_END")
    a("s_and_b32 s12, s3, 1")
    a("s_sub_u32 s13, s3, 2")
    a("s_lshr_b32 s13, s13, 1")
    a("s_mul_i32 s13, s13, 5")
    a("s_add_u32 s13, s13, s5")
    a(f"s_add_u32 s13, s13, {(HPS-NJF) & 0xffffffff}")
    prefetch(a, HPN, E("HH", 0))
    if STAMP:
        a("s_waitcnt vmcnt(0)")
        a.stamp(1)
    a.end()


DSK, EXPN = 166, 167
PA, PB, A16, PC, PD, A32, E2, EF = 104, 108, 112, 116, 120, 124, 128, 152


def cmul(a, d, x, y):
    a(f"v_pk_mul_f32 {vr(d,2)}, {vr(x,2)}, {vr(y,2)} op_sel:[0,0] op_sel_hi:[0,1]")
    a(f"v_pk_fma_f32 {vr(d,2)}, {vr(x,2)}, {vr(y,2)}, {vr(d,2)} op_sel:[1,1,0] op_sel_hi:[1,0,1] neg_lo:[0,1,0]")


def kgen_head(a):
    a.lab("C_KGEN")
    a.fine(6)
    PR = 16
    a("s_and_b32 s4, s2, 7")
    a("s_mul_i32 s7, s4, 18")
    a("s_add_u32 s7, s7, s5")
    a(f"s_sub_u32 s7, s7, {NJH}")
    a("s_and_b32 s12, s3, 3")
    a("s_lshr_b32 s13, s3, 2")
    a("s_lshl2_add_u32 s8, s7, s12")
    a("s_lshl1_add_u32 s8, s8, s13")
    a("s_lshl_b32 s8, s8, 7")
    a("v_lshl_add_u32 v5, v2, 1, s8")
    for k in range(3):
        a(f"v_mov_b64 {vr(PR+2*k,2)}, 0")
    a("s_lshl_b32 s55, s7, 3")
    a("s_waitcnt lgkmcnt(0)")
    a.fine(7)
    a(f"s_load_dwordx2 s[58:59], {sr(P_LDT,2)}, s55")
    for k, p in enumerate([P_ARE, P_AIM, P_BRE, P_BIM, P_CRE, P_CIM]):
        a(f"global_load_short_d16_hi v{PR+k}, v5, {sr(p,2)}")
    a.stamp(22)
    a.b0()
    a("s_branch C_KBODY")


def kgen(a):
    a.lab("C_KBODY")
    PR = 16
    a(f"s_load_dwordx2 s[68:69], {sr(P_DSK,2)}, s55")
    a("s_setprio 2")
    a("v_and_b32 v3, 15, v2")
    a("v_lshrrev_b32 v4, 4, v2")
    a("s_and_b32 s4, s2, 7")
    a(f"s_mul_i32 s15, s3, {KTS}")
    a(f"s_add_u32 s15, s15, {KT}")
    a(f"s_mul_i32 s52, s12, {4*CS}")
    a(f"s_add_u32 s52, s52, {KC}")
    a(f"s_mul_i32 s53, s12, {US}")
    a(f"s_add_u32 s53, s53, {UP}")
    a(f"v_mul_u32_u24 v7, {TS}, v3")
    a("v_lshl_add_u32 v7, v4, 4, v7")
    a("v_add_u32 v7, s15, v7")
    a("s_mov_b32 m0, s15")
    a.lab("C_SETD")
    a.fine(8)
    a("s_waitcnt lgkmcnt(0)")
    a.auto(True)
    a("s_lshl_b32 s8, s12, 4")
    a("s_lshr_b64 s[58:59], s[58:59], s8")
    a("s_lshl_b32 s8, s58, 16")
    a("v_mov_b32 v44, s8")
    a(f"v_mul_f32 v45, {L2E:#x}, v44")
    a(f"v_mov_b32 v46, {L2E:#x}")
    a("v_fma_f32 v46, v44, v46, -v45")
    a(f"v_mov_b32 v47, {L2E_LO:#x}")
    a("v_fma_f32 v46, v44, v47, v46")
    a("v_exp_f32 v45, v45")
    a(f"v_mul_f32 v46, {LN2:#x}, v46")
    a("v_fma_f32 v45, v45, v46, v45")
    a("v_cvt_pk_bf16_f32 v45, v45, v45")
    DT, DTL, DTR = 36, 37, 38
    a(f"v_and_b32 v{DT}, 0xffff0000, v45")
    a(f"v_mul_f32 v{DTL}, {L2E:#x}, v{DT}")
    a(f"v_mul_f32 v{DTR}, {INV2PI:#x}, v{DT}")
    a("s_waitcnt vmcnt(0)")
    a.stamp(1)
    if STAMP and E("CLK2"):
        a("s_memtime s[90:91]")
    ZR, ZI, WR = 40, 41, 42
    a(f"v_mul_f32 v{ZR}, v{PR}, v{DTL}")
    a(f"v_mul_f32 v{ZI}, v{PR+1}, v{DTR}")
    T0 = 24

    def direct(dst, c):
        if c != 1:
            a(f"v_mul_f32 v{dst}, {fbits(c):#x}, v{ZR}")
            a(f"v_mul_f32 v{dst+1}, {fbits(c):#x}, v{ZI}")
        a(f"v_exp_f32 v{T0}, v{dst if c != 1 else ZR}")
        a(f"v_fract_f32 v{dst+1}, v{dst+1 if c != 1 else ZI}")
        a(f"v_cos_f32 v{dst}, v{dst+1}")
        a(f"v_sin_f32 v{dst+1}, v{dst+1}")
        a(f"v_mul_f32 v{dst}, v{T0}, v{dst}")
        a(f"v_mul_f32 v{dst+1}, v{T0}, v{dst+1}")
    PW, R1 = 46, 44
    pc = lambda c: PW + 2 * (c - 1)
    direct(pc(1), 1)
    a(f"v_mul_f32 v{PR+2}, v{PR+2}, v{DT}")
    a(f"v_mul_f32 v{PR+3}, v{PR+3}, v{DT}")
    cmul(a, WR, PR + 4, PR + 2)
    a(f"v_max_f32 v39, |v{WR}|, |v{WR+1}|")
    side = wave_max_steps(39) + ["v_readlane_b32 s8, v39, 63"]
    OT = [26, 27, 28, 29]
    cnt = [0]

    pend = []

    def flush():
        while pend:
            a(pend.pop(0))

    def emit(row, x):
        o = OT[cnt[0] % 4]
        cnt[0] += 1
        flush()
        a(f"v_cvt_pk_f16_f32 v{o}, v{x}, v{x+1}")
        pend.append(f"ds_write_addtid_b32 v{o} offset:{row*TS}")
    cmul(a, pc(2), pc(1), pc(1))
    cmul(a, pc(4), pc(2), pc(2))
    Q1, QA, QB = 60, 62, 64
    cmul(a, Q1, pc(4), pc(4))
    a(f"v_mov_b32 v30, 0x3c00")
    a(f"v_xor_b32 v{Q1+1}, 0x80000000, v{Q1+1}")
    a("ds_write_addtid_b32 v30")
    emit(1, Q1)
    cur, nxt = Q1, QA
    for b in range(2, 16):
        cmul(a, nxt, cur, Q1)
        if side:
            a(side.pop(0))
        emit(b, nxt)
        cur, nxt = nxt, (QB if nxt == QA else QA)
    a("s_lshr_b32 s8, s8, 23")
    a("s_sub_u32 s8, 258, s8")
    a("s_min_u32 s54, s8, 253")
    a("s_lshl_b32 s8, s54, 23")
    a(f"v_mul_f32 v{WR}, s8, v{WR}")
    a(f"v_mul_f32 v{WR+1}, s8, v{WR+1}")
    QF, PF, KA = 72, 88, 104
    flush()
    for ks in range(4):
        a(f"ds_read_b128 {vr(QF+4*ks,4)}, v7 offset:{64*ks}")
    direct(R1, 128)
    cmul(a, pc(3), pc(2), pc(1)); cmul(a, pc(5), pc(4), pc(1)); cmul(a, pc(6), pc(3), pc(3)); cmul(a, pc(7), pc(6), pc(1))
    CH = [66, 68]
    YC = [60, 62]
    state = {"cur": WR, "k": 0, "y": 0}

    def adv():
        n = CH[state["k"] & 1]
        cmul(a, n, state["cur"], R1)
        state["cur"] = n; state["k"] += 1

    def row(r, c):
        if c == 0:
            emit(r, state["cur"])
        else:
            y = YC[state["y"] & 1]; state["y"] += 1
            cmul(a, y, state["cur"], pc(c))
            emit(r, y)

    def rd():
        flush()
        for ks in range(4):
            a(f"ds_read_b128 {vr(PF+4*ks,4)}, v7 offset:{64*ks}")

    def mm(t, ks):
        a(f"v_mfma_f32_16x16x32_f16 {vr(KA+4*t,4)}, {vr(PF+4*ks,4)}, {vr(QF+4*ks,4)}, {vr(KA+4*t,4) if ks else 0}")
    for h in range(2):
        for c in range(8):
            row(8 * h + c, c)
        adv()
    rd()
    for h in range(2):
        for c in range(4):
            row(4 * h + c, 2 * c)
            if h == 1:
                mm(0, c)
        adv()
    for q in range(4):
        row(8 + 2 * q, 0); row(9 + 2 * q, 4)
        adv()
    rd()
    for q in range(9):
        row(q, 0)
        if q < 8:
            adv()
        if 4 <= q < 8:
            mm(1, q - 4)
    rd()
    a("v_lshl_add_u32 v8, v2, 4, s15")
    for ks in range(4):
        mm(2, ks)
    a.auto(False)
    a.stamp(2)
    if STAMP and E("CLK2"):
        a("s_memtime s[96:97]")
    a("s_lshl_b32 s8, s12, 2")
    a(f"s_add_u32 s8, s8, {F_PAIR}")
    a("v_mov_b32 v9, s8")
    a("s_cmp_eq_u32 s13, 0")
    a("s_cbranch_scc1 C_KA")
    for t in range(3):
        a(f"ds_write_b128 v8, {vr(KA+4*t,4)} offset:{1024*t}")
    a("v_mov_b32 v10, s54")
    a("ds_write_b32 v9, v10")
    a.stamp(3)
    a("s_setprio 0")
    a("v_and_b32 v14, 3, v3")
    a("v_sub_u32 v14, 3, v14")
    a(f"v_mul_u32_u24 v14, {CS}, v14")
    a("v_lshrrev_b32 v13, 2, v3")
    a("v_lshl_add_u32 v13, v4, 1, v13")
    a("v_lshl_add_u32 v14, v13, 3, v14")
    a("v_add3_u32 v5, v14, s52, 8")
    a("v_lshlrev_b32 v14, 1, v3")
    a("v_sub_u32 v14, v4, v14")
    a("v_lshlrev_b32 v14, 4, v14")
    a(f"s_add_u32 s8, s53, {4064-512*7}")
    a("v_add_u32 v6, s8, v14")
    a("v_lshl_add_u32 v14, v3, 2, v4")
    a(f"s_mul_i32 s8, s12, {OS}")
    a(f"s_add_u32 s8, s8, {OP+4088-512*7}")
    a("v_lshlrev_b32 v14, 3, v14")
    a("v_sub_u32 v7, s8, v14")
    a.spin(F_H, 1, 10, prio=E("BSP", 3), sleep=1)
    a.spin(f"v9 offset:{F_K-F_PAIR}", 0, 10, op="lg", sleep=E("BSS", 0))
    a.stamp(4)
    gphase(a, 0)
    a.lab("C_KA")
    a("s_setprio 1")
    a("v_and_b32 v14, 3, v3")
    a("v_sub_u32 v14, 3, v14")
    a(f"v_mul_u32_u24 v14, {CS}, v14")
    a("v_lshrrev_b32 v13, 2, v3")
    a("v_lshl_add_u32 v13, v4, 1, v13")
    a("v_lshl_add_u32 v14, v13, 3, v14")
    a("v_add3_u32 v5, v14, s52, 8")
    a("v_lshlrev_b32 v14, 1, v3")
    a("v_sub_u32 v14, v4, v14")
    a("v_lshlrev_b32 v14, 4, v14")
    a(f"s_add_u32 s8, s53, {4064-512*7}")
    a("v_add_u32 v6, s8, v14")
    a("v_lshl_add_u32 v14, v3, 2, v4")
    a(f"s_mul_i32 s8, s12, {OS}")
    a(f"s_add_u32 s8, s8, {OP+4088-512*7}")
    a("v_lshlrev_b32 v14, 3, v14")
    a("v_sub_u32 v7, s8, v14")
    a("v_lshrrev_b32 v11, 1, v4")
    a("v_and_b32 v12, 1, v4")
    a("v_lshlrev_b32 v11, 8, v11")
    a("v_lshl_add_u32 v11, v12, 3, v11")
    a("v_lshl_add_u32 v11, v3, 4, v11")
    a("v_add_u32 v11, s15, v11")
    a("v_cmp_gt_u32 vcc, 2, v4")
    a("v_lshlrev_b32 v12, 2, v3")
    a("v_lshlrev_b32 v13, 3, v3")
    a("v_cndmask_b32 v12, v12, v13, vcc")
    a("v_lshl_add_u32 v12, v4, 7, v12")
    a("v_add_u32 v12, s15, v12")
    a("v_mov_b32 v13, 64")
    a("v_cndmask_b32 v13, v13, 4, vcc")
    a("v_add_u32 v13, v13, v12")
    a("v_lshlrev_b32 v14, 1, v3")
    a("v_lshl_add_u32 v14, v4, 7, v14")
    a("v_add_u32 v14, s15, v14")
    a("v_lshlrev_b32 v15, 4, v2")
    a("v_lshlrev_b32 v16, 3, v2")
    a("v_add_u32 v16, 256, v16")
    a("v_min_u32 v15, v15, v16")
    a("v_add_u32 v15, s15, v15")
    EB, E2B = 2048, 3072
    a("v_min_u32 v16, 15, v2")
    a("v_lshl_add_u32 v16, v16, 2, s15")
    a("v_lshrrev_b32 v26, 5, v2")
    a("v_lshlrev_b32 v26, 8, v26")
    a("v_lshl_add_u32 v26, v2, 2, v26")
    a("v_add_u32 v26, s15, v26")
    a("v_lshlrev_b32 v17, 2, v4")
    a("v_sub_u32 v17, v3, v17")
    a("v_lshl_add_u32 v27, v17, 3, s15")
    a(f"v_add_u32 v27, {E2B+104}, v27")
    a("v_lshl_add_u32 v17, v17, 2, s15")
    a(f"v_add_u32 v17, {EB+52}, v17")
    a("v_lshl_add_u32 v19, v2, 4, s52")
    a("s_mov_b32 s56, 0x01000100")
    a("s_mov_b32 s57, 0x03020302")
    a("s_lshl_b32 s8, s12, 4")
    a("s_lshr_b64 s[68:69], s[68:69], s8")
    a("s_lshl_b32 s68, s68, 16")
    a("s_sub_u32 s58, 254, s54")
    a("s_lshl_b32 s58, s58, 23")
    for r in range(12):
        a(f"v_mul_f32 v{KA+r}, s58, v{KA+r}")
    a("s_mov_b64 exec, 1")
    a(f"v_add_f32 v{KA}, s68, v{KA}")
    a("s_mov_b64 exec, -1")
    for r in (3, 7, 10, 11, 14, 15):
        a(f"v_mov_b32 v{72+r}, 0")
    a("v_lshlrev_b32 v28, 4, v2")
    a(f"v_add_u32 v28, {PM}, v28")
    a.spin(F_PM, 2, 18)
    for k, r in ((2, PC), (3, PD), (4, A32)):
        a(f"ds_read_b128 {vr(r,4)}, v28 offset:{1024*k}")
    a.spin("v9", 0, 18, prio=2, op="lg")
    a("s_sub_u32 s60, 254, s8")
    a("s_lshl_b32 s60, s60, 23")
    a.auto(True)
    for t in range(3):
        a(f"ds_read_b128 {vr(PF+4*t,4)}, v8 offset:{4*KTS+1024*t}")
    for t in range(3):
        for p in range(2):
            r = 4 * t + 2 * p
            a(f"v_pk_fma_f32 {vr(KA+r,2)}, {vr(PF+r,2)}, s[60:61], {vr(KA+r,2)} op_sel_hi:[1,0,1]")
            a(f"v_cvt_pk_bf16_f32 v{20+2*t+p}, v{KA+r}, v{KA+r+1}")
        if t == 0:
            a("ds_write_b64 v11, v[20:21]")
        elif t == 1:
            a("ds_write_b32 v12, v22 offset:512")
            a("ds_write_b32 v13, v23 offset:512")
            S = 32
            for p in range(2):
                a(f"ds_read_b64 {vr(S+2*p,2)}, v15 offset:{8*p}")
    a("s_mov_b32 exec_lo, 0")
    a(f"v_alignbit_b32 v{S+3}, v{S+2}, v{S+1}, 16")
    a(f"v_perm_b32 v{S+2}, v{S+1}, v{S+1}, s56")
    a(f"v_alignbit_b32 v{S+1}, v{S+1}, v{S}, 16")
    a(f"v_perm_b32 v{S}, v{S}, v{S}, s56")
    a("s_mov_b32 exec_lo, -1")
    a(f"ds_write_b128 v19, {vr(S,4)} offset:32")
    a(f"v_mov_b32_dpp v{S-2}, v{S+2} wave_shr:1 {DPPF} bound_ctrl:0")
    a(f"v_mov_b32_dpp v{S-1}, v{S+3} wave_shr:1 {DPPF} bound_ctrl:0")
    C1, C2, C3 = 44, 52, 60
    for p in range(4):
        a(f"v_alignbit_b32 v{C1+p}, v{S+p}, v{S+p-1}, 16")
    a(f"ds_write_b128 v19, {vr(C1,4)} offset:{CS+32}")
    for p in range(4):
        a(f"v_mov_b32 v{C2+p}, v{S+p-1}")
    a(f"ds_write_b128 v19, {vr(C2,4)} offset:{2*CS+32}")
    for p in range(4):
        a(f"v_alignbit_b32 v{C3+p}, v{S+p-1}, v{S+p-2}, 16")
    a(f"ds_write_b128 v19, {vr(C3,4)} offset:{3*CS+32}")
    a("v_mov_b32 v10, 1")
    a(f"ds_write_b32 v9, v10 offset:{F_K-F_PAIR}")
    a.stamp(3)
    a(f"s_setprio {E('GPL', 3)}")
    TL = 72
    a(f"v_perm_b32 v{TL+1}, v{S+3}, v{S+3}, s57")
    a(f"v_alignbit_b32 v{TL}, v{S+3}, v{S+2}, 16")
    a(f"v_lshrrev_b32 v{TL+6}, 16, v{S+3}")
    a(f"v_mov_b32 v{TL+4}, v{S+3}")
    for r in (2, 5, 8, 9, 12):
        a(f"v_mov_b32 v{TL+r}, v{TL+1}")
    a(f"v_mov_b32 v{TL+13}, v{TL+6}")
    a("s_mov_b32 exec_lo, 0")
    for r in range(4):
        a(f"ds_write_b16{'_d16_hi' if r&1 else ''} v{12+(r>>1)}, v{22+(r>>1)} offset:{E2B-130+2*(r&1)}")
    a("s_mov_b32 exec_hi, 0x80000000")
    for j in range(4):
        a(f"ds_write_b128 v19, {vr(TL+4*(3-j),4)} offset:{j*CS+48}")
    a("s_mov_b64 exec, 1")
    a(f"ds_write_b16 v14, v24 offset:{E2B+382}")
    a("s_mov_b64 exec, -1")
    a(f"ds_write_b32 v26, v1 offset:{E2B}")
    for r in range(4):
        a(f"ds_write_b16{'_d16_hi' if r&1 else ''} v14, v{24+(r>>1)} offset:{EB+62+32*r}")
    a(f"ds_write_b32 v16, v1 offset:{EB}")
    a("v_readlane_b32 s59, v24, 0")
    a("v_mov_b32 v11, v27")
    a("v_mov_b32 v12, v17")
    a("v_mov_b32 v13, v28")
    a("s_pack_ll_b32_b16 s59, s59, s59")
    a.auto(False)
    a.spin(F_H, 2, 10, sleep=1)
    a.stamp(4)
    gphase(a, 1)


def gphase(a, isA):
    M = "v_mfma_f32_16x16x32_bf16"
    rdA = lambda m, d: [f"ds_read_b64 {vr(d,2)}, v5 offset:{64*m}", f"ds_read_b64 {vr(d+2,2)}, v5 offset:{64*m+8}"]
    rdB = lambda b, rho, d, extra=0: f"ds_read_b128 {vr(d,4)}, v6 offset:{512*(7-b)+64*rho+extra}"
    slot = lambda t: 1024 * (t - 2) if t < 6 else 4 * KTS + 1024 * (t - 6)

    def emit(main, fill=[], per=2, skip=0):
        for x in interleave(main, fill, per=per, skip=skip):
            a(x)
    if isA:
        a(f"s_setprio {E('GPA', 1)}")
        AC = 16
        acc = lambda t: vr(AC + 4 * (t - 2), 4)
        started = set()

        def mf(t, A, B):
            c = acc(t) if t in started else "0"
            started.add(t)
            return f"{M} {acc(t)}, {vr(A,4)}, {vr(B,4)}, {c}"
        U = lambda b: 40 + 8 * (b & 1)
        Z = lambda b: 56 + 24 * (b & 1)
        urd = lambda b: [rdB(b, 0, U(b)), rdB(b, 0, U(b) + 4, 16)]
        PL = [(0, PC), (0, PD), (1, PC), (1, PD), (0, PA), (1, PB)]
        pool2 = lambda b: [f"{M} {vr(Z(b)+4*k,4)}, {vr(U(b)+4*h,4)}, {vr(P,4)}, 0" for k, (h, P) in enumerate(PL) if k < 4] + [mf(b + 2, A16, U(b))]
        pool3 = lambda b: [f"{M} {vr(Z(b)+4*k,4)}, {vr(U(b)+4*h,4)}, {vr(P,4)}, 0" for k, (h, P) in enumerate(PL) if k >= 4] + [mf(b + 4, A32, U(b))] if b < 4 else []
        cvt = lambda b, fs: [f"v_cvt_pk_bf16_f32 v{Z(b)+8*f+r}, v{Z(b)+8*f+r}, v{Z(b)+8*f+4+r}" for f in fs for r in range(4)]
        use2 = lambda b, lo, hi: [mf(b + 2 + D, Z(b) + 8 * f, E2 + 8 * D + 4 * f) for D in range(3) if lo <= b + 2 + D < min(hi, 8) for f in range(2)]
        use3 = lambda b: [mf(t, Z(b) + 16, EF + 4 * (t - b - 4)) for t in range(b + 4, 8)]
        hand = lambda t: [f"ds_write_b128 v8, {acc(t)} offset:{slot(t)}", f"v_mov_b32 v10, {t}", f"ds_write_b32 v9, v10 offset:{F_I-F_PAIR}"]
        e2rd = lambda D: [x for f in range(2) for x in (f"ds_read2_b32 {vr(E2+8*D+4*f,2)}, v11 offset0:{32*D+6+f} offset1:{32*D+4+f}",
                                                        f"ds_read2_b32 {vr(E2+8*D+4*f+2,2)}, v11 offset0:{32*D+2+f} offset1:{32*D+f}")]
        efrd = [x for D in range(4) for x in (f"ds_read2_b32 {vr(EF+4*D,2)}, v12 offset0:{16*D+3} offset1:{16*D+2}",
                                              f"ds_read2_b32 {vr(EF+4*D+2,2)}, v12 offset0:{16*D+1} offset1:{16*D}")]
        a.auto(True)
        emit(urd(0) + urd(1) + rdA(16, A16) + e2rd(0))
        for p in range(4):
            a(f"v_and_b32 v{A32+p}, s59, v{A32+p}")
        emit(pool2(0), e2rd(1) + [f"ds_read_b128 {vr(PA,4)}, v13", f"ds_read_b128 {vr(PB,4)}, v13 offset:1024"], per=1)
        emit(pool2(1), cvt(0, (0, 1)))
        emit(use2(0, 2, 4), cvt(1, (0, 1)))
        emit(use2(1, 2, 4) + pool3(0) + pool3(1), e2rd(2) + hand(2) + efrd + hand(3), per=2)
        a.auto(False)
        a.spin(F_H, 4, 10, sleep=1)
        a(f"s_setprio {E('GPA2', 3)}")
        a.auto(True)
        emit(urd(2) + urd(3) + use2(0, 4, 8) + use2(1, 4, 8), cvt(0, (2,)) + cvt(1, (2,)))
        emit(pool2(2) + use3(0) + use3(1))
        emit(pool2(3) + pool3(2), cvt(2, (0, 1)))
        emit(use2(2, 4, 8) + pool3(3), cvt(3, (0, 1)) + cvt(2, (2,)) + hand(4))
        emit(use2(3, 4, 8) + use3(2), cvt(3, (2,)) + ["s_nop 0"] * 4 + hand(5))
        emit(use3(3))
        a.auto(False)
        a.stamp(5)
        a(f"s_setprio {E('GPA3', 3)}")
        a.spin(F_H, 6, 10, sleep=1)
        a.auto(True)
        emit(urd(4) + urd(5) + pool2(4))
        emit(pool2(5), cvt(4, (0, 1)))
        emit(use2(4, 4, 8), cvt(5, (0, 1)))
        emit(use2(5, 4, 8) + hand(6) + hand(7))
        a.auto(False)
        a.stamp(7)
        a.end()
        return
    a(f"s_setprio {E('GPB', 2)}")
    AF, BF, NB = 40, 104, 6
    acc = lambda t: 16 + 4 * (t % 3)
    a(f"v_subrev_u32 v8, {4*KTS}, v8")
    a("v_cmp_eq_u32 vcc, 0, v2")
    a(f"v_mov_b32 v13, {F_O}")
    a("v_cndmask_b32 v12, 0, 1, vcc")
    a("v_lshlrev_b32 v14, 2, v2")
    a(f"v_add_u32 v14, {PM+5120}, v14")
    a("v_cndmask_b32 v13, v14, v13, vcc")
    stage = {1: 0, 3: 1, 5: 2, 6: 3, 7: 4}

    PT = 32

    def yout(t):
        o = [f"v_add_f32 v{acc(t)+r}, v{acc(t)+r}, v{PT+r}" for r in range(4)] if t >= 2 else []
        o += [f"v_cvt_pk_bf16_f32 v30, v{acc(t)+3}, v{acc(t)+2}", f"v_cvt_pk_bf16_f32 v31, v{acc(t)+1}, v{acc(t)}",
              f"ds_write_b64 v7, v[30:31] offset:{512*(7-t)}"]
        if t in stage:
            o.append(f"ds_add_u32 v13, v12 offset:{4*stage[t]}")
        return o
    bf = lambda n: BF + 4 * (n % NB)
    rdn = lambda n: rdB(n >> 3, n & 7, bf(n))
    part = lambda t: [f"ds_read_b128 {vr(PT,4)}, v8 offset:{slot(t)}"] if t >= 2 else []
    a.auto(True)
    emit(rdA(0, AF) + [rdn(0)] + rdA(8, AF + 32) + [rdn(1)] + rdA(1, AF + 4) + rdA(9, AF + 36) + [rdn(2), rdn(3)])
    for b in range(8):
        y = yout(b - 1) if b else []
        for rho in range(8):
            n = 8 * b + rho
            f0, f1 = [], []
            if b == 0 and rho < 6:
                f0, f1 = rdA(rho + 2, AF + 4 * (rho + 2)), rdA(rho + 10, AF + 32 + 4 * (rho + 2))
            if b and rho in (2, 3):
                f0, f1, y = y[:2], y[2:4], y[4:]
            if rho == 4:
                f0 = f0 + [f"ds_read_b32 v28, v1 offset:{F_H}", f"ds_read_b32 v29, v9 offset:{F_I-F_PAIR}"]
            if rho == 5:
                f0 = f0 + part(b)
            if rho == 6:
                f1 = f1 + ["v_readfirstlane_b32 s9, v29"]
            if rho == 7:
                f0 = f0 + ["v_readfirstlane_b32 s8, v28", "s_add_u32 s9, s9, 2"]
                if b < 2:
                    f1 = f1 + [f"s_cmp_lt_u32 s8, {b+2}"]
                elif b < 7:
                    f1 = f1 + ["s_min_u32 s8, s8, s9", f"s_cmp_lt_u32 s8, {b+2}"]
                else:
                    f1 = f1 + ["s_cmp_lt_u32 s9, 9"]
            if n + 4 < 64:
                f1 = [rdn(n + 4)] + f1
            a(f"{M} {vr(acc(b),4)}, {vr(AF+4*rho,4)}, {vr(bf(n),4)}, {vr(acc(b),4) if n else 0}")
            emit(f0)
            if b < 7:
                a(f"{M} {vr(acc(b+1),4)}, {vr(AF+32+4*rho,4)}, {vr(bf(n),4)}, {vr(acc(b+1),4) if rho else 0}")
            emit(f1)
        a(f"s_cbranch_scc1 C_SLOW{b}")
        a.lab(f"KEEP_P{b}")
        if b == 3:
            a.stamp(5)
            if STAMP and E("CLK"):
                a("s_memtime s[82:83]")
    a.stamp(6)
    if STAMP and E("CLK"):
        a("s_memtime s[84:85]")
    emit(yout(7))
    a.auto(False)
    a.stamp(7)
    a(f"ds_read_b32 v10, v1 offset:{F_X}")
    a("s_cmp_eq_u32 s3, 4")
    a("s_cbranch_scc1 C_FIN")
    a.end()
    for b in range(8):
        a.lab(f"C_SLOW{b}")
        if b < 7:
            a.spin(F_H, b + 2, 28)
        if b >= 2:
            a.spin(f"v9 offset:{F_I-F_PAIR}", b, 28)
        for x in part(b) + ([rdn(8 * b + 8 + k) for k in range(4)] if b < 7 else []):
            a(x)
        a("s_waitcnt lgkmcnt(0)")
        a(f"s_branch KEEP_P{b}")


XD, GD = 40, 56
VX, VY, VG, VO = 72, 73, 74, 78


def epi_setup(a):
    srd(a, 60, P_OUT, 2359296)
    a("v_bfe_u32 v79, v2, 2, 2")
    a("v_and_b32 v80, 3, v2")
    a("v_lshl_add_u32 v80, v4, 2, v80")
    a("s_lshl_b32 s8, s12, 7")
    for d, base, stride in ((VX, UP, US), (VY, OP, OS)):
        a(f"v_mul_u32_u24 v{d}, {stride}, v79")
        a(f"v_lshl_add_u32 v{d}, v80, 3, v{d}")
        a(f"s_sub_u32 s9, {base+3968-512*7}, s8")
        a(f"v_add_u32 v{d}, s9, v{d}")
    a("v_xor_b32 v79, 63, v2")
    a("s_lshl_b32 s8, s12, 9")
    a(f"s_add_u32 s8, s8, {WS_G}")
    a(f"v_lshl_add_u32 v{VG}, v79, 3, s8")
    for k in range(1, 4):
        a(f"v_add_u32 v{VG+k}, {4096*k}, v{VG}")
    a(f"v_mul_u32_u24 v{VO}, 1152, v79")
    a(f"v_add_u32 v{VO}, s55, v{VO}")
    a("s_mul_i32 s68, s12, 73728")
    a("s_mov_b32 s70, 0x05040100")
    a("s_mov_b32 s71, 0x07060302")


def epi_x(a, ks):
    for k in ks:
        a(f"ds_read_b64_tr_b16 {vr(XD+2*k,2)}, v{VX} offset:{512*(7-k)}")


def epi_g(a):
    l = a.uid("GP")
    a("s_mov_b32 s9, 0")
    a.lab(l)
    a(f"v_xor_b32 v14, v{GD+1}, v10")
    for k in range(1, 8):
        a(f"v_bitop3_b32 v14, v14, v{GD+2*k+1}, v10 bitop3:0xf6")
    a("v_cmp_ne_u32 vcc, 0, v14")
    a("s_add_u32 s9, s9, 1")
    a("s_cmp_eq_u64 vcc, 0")
    a(f"s_cbranch_scc1 {l}_D")
    a(f"s_cmp_ge_u32 s9, {SPIN}")
    a(f"s_cbranch_scc1 {l}_D")
    epi_gl(a)
    a("s_waitcnt vmcnt(0)")
    a(f"s_branch {l}")
    a.lab(l + "_D")


def epi_gl(a):
    for k in range(8):
        a(f"global_load_dwordx2 {vr(GD+2*k,2)}, v{VG+(k>>1)}, {sr(P_WS,2)} offset:{2048*(k&1)} sc1")


TX = 120


def epi_unp(a, ks):
    for k in ks:
        if k < NF:
            for p in range(2):
                a(f"v_lshlrev_b32 v{TX+4*k+2*p}, 16, v{XD+2*k+p}")
                a(f"v_and_b32 v{TX+4*k+2*p+1}, 0xffff0000, v{XD+2*k+p}")


def epi_mul(a, ks):
    for k in ks:
        if k < NF:
            a(f"v_and_b32 v{16+(k&3)}, 0xffff0000, v{GD+2*k}")
            a(f"v_lshlrev_b32 v{GD+2*k+1}, 16, v{GD+2*k}")
            for c in range(4):
                a(f"v_mul_f32 v{TX+4*k+c}, v{TX+4*k+c}, v{16+(k&3)}")


def epi_fin(a, ks, stage):
    a.spin(F_O + 4 * stage, 4, 15, sleep=E("OSL", 1), prio=E("IOP", 3))
    a.auto(True)
    Y = 16
    for n, k in enumerate(ks):
        a(f"ds_read_b64_tr_b16 {vr(Y+2*n,2)}, v{VY} offset:{512*(7-k)}")
    for n0 in range(0, len(ks), 2):
        pr = [(n, ks[n], 24 + 4 * n) for n in (n0, n0 + 1) if n < len(ks)]
        if ks[n0] < NF:
            for n, k, R in pr:
                for p in range(2):
                    a(f"v_lshlrev_b32 v{R+2*p}, 16, v{Y+2*n+p}")
                    a(f"v_and_b32 v{R+2*p+1}, 0xffff0000, v{Y+2*n+p}")
                for c in range(4):
                    a(f"v_fma_f32 v{R+c}, v{R+c}, v{GD+2*k+1}, v{TX+4*k+c}")
        else:
            for n, k, R in pr:
                for c in range(4):
                    a(f"v_perm_b32 v{R+c}, v{XD+2*k+(c>>1)}, v{Y+2*n+(c>>1)}, s{70+(c&1)}")
            for n, k, R in pr:
                for c in range(4):
                    a(f"v_dot2_f32_bf16 v{R+c}, v{R+c}, v{GD+2*k}, 0")
        for n, k, R in pr:
            for p in range(2):
                a(f"v_cvt_pk_bf16_f32 v{XD+2*k+p}, v{R+2*p}, v{R+2*p+1}")
            if not E("NOST"):
                a(f"buffer_store_dwordx2 {vr(XD+2*k,2)}, v{VO}, s[60:63], s68 offen")
            a("s_add_u32 s68, s68, 294912")
    a.auto(False)


def burst_addr(a):
    a(f"s_sub_u32 s9, s5, {NJH}")
    if GORD:
        a("s_mul_i32 s9, s9, 3")
        a("s_min_u32 s8, s12, 2")
        a("s_add_u32 s9, s9, s8")
        a("s_mul_i32 s9, s9, 12288")
        a("s_mul_i32 s8, s4, 663552")
        a("s_add_u32 s8, s8, s9")
        a("v_lshl_add_u32 v88, v2, 7, s8")
        a("v_min_u32 v89, 31, v2")
        a("v_lshl_add_u32 v89, v89, 7, s8")
        a("v_add_u32 v89, 8192, v89")
        return
    a("s_lshl_b32 s9, s9, 2")
    a("s_add_u32 s9, s9, s12")
    a("s_mul_i32 s9, s9, 9216")
    a("s_mul_i32 s8, s4, 663552")
    a("s_add_u32 s8, s8, s9")
    if BL == 72:
        a("v_lshl_add_u32 v88, v2, 7, s8")
        a("v_min_u32 v89, 7, v2")
        a("v_lshl_add_u32 v89, v89, 7, s8")
        a("v_add_u32 v89, 8192, v89")
    else:
        a(f"s_add_u32 s8, s8, {128*(72-BL)}")
        a(f"v_min_u32 v88, {BL-1}, v2")
        a("v_lshl_add_u32 v88, v88, 7, s8")


def burst(a):
    if BSN:
        for k in range(NBI):
            a(f"global_load_dword v{96+k}, v{88+k}, {sr(P_WD,2)}")


def io_common(a):
    a("s_mul_i32 s7, s4, 18")
    a("s_add_u32 s7, s7, s5")
    a(f"s_sub_u32 s7, s7, {NJH}")
    a("s_lshl_b32 s55, s7, 3")
    a("s_sub_u32 s12, s3, 8")
    epi_setup(a)
    burst_addr(a)


def uloader(a):
    a.lab("C_LOAD")
    a("s_setprio 3")
    a(f"s_sub_u32 s13, s5, {NJH}")
    pf = stripe_pf(a)
    pf2 = []
    if PF2AT >= 0:
        pf, pf2 = pf[:2], [x.replace("v10,", "v98,").replace("v11,", "v99,") for x in pf[2:]]
    a("v_mul_u32_u24 v6, 4608, v2")
    a("s_lshl_b32 s8, s7, 3")
    a("v_add_u32 v6, s8, v6")
    a("v_lshlrev_b32 v7, 3, v2")
    a(f"v_sub_u32 v7, {UP+4088-512*7}, v7")
    a("s_mov_b32 s56, 0x05040100")
    a("s_mov_b32 s58, 0x07060302")
    a("s_mov_b32 s57, s13")
    a("s_waitcnt lgkmcnt(0)")
    if E("PFE", 0):
        for x in pf:
            a(x)
    srd(a, 72, P_U, 2359296)
    a.b0(12)
    if E("PFX"):
        a.spin(F_X, 0, 12, op="lg")
    if not E("PFE", 0):
        for k, x in enumerate(pf):
            if k == 2 and E("PF2"):
                a("s_waitcnt vmcnt(0)")
            a(x)
    io_common(a)
    for j in range(4):
        a(f"v_mov_b32 v{24+j}, 0")
    a("v_lshrrev_b32 v28, 2, v2")
    a(f"v_mul_u32_u24 v28, {CS}, v28")
    a(f"v_add_u32 v28, {KC}, v28")
    a("v_and_b32 v29, 3, v2")
    a("v_lshl_add_u32 v30, v29, 4, v28")
    a("ds_write_b128 v30, v[24:27] offset:1072")
    a("v_and_b32 v29, 1, v2")
    a("v_lshl_add_u32 v30, v29, 4, v28")
    a("ds_write_b128 v30, v[24:27]")
    a("v_lshrrev_b32 v28, 5, v2")
    a(f"v_mul_u32_u24 v28, {US}, v28")
    a("v_and_b32 v29, 31, v2")
    a("v_lshl_add_u32 v30, v29, 4, v28")
    a(f"v_add_u32 v30, {UP+4096}, v30")
    a("ds_write_b128 v30, v[24:27]")
    a(f"ds_write_b128 v30, v[24:27] offset:{2*US}")
    a("s_mov_b32 s15, 0")
    if ROT:
        for k in range(4):
            a(f"s_add_u32 s8, s57, {k}")
            a("s_and_b32 s8, s8, 3")
            a(f"s_mul_i32 s{76+k}, s8, 294912")
            a(f"s_add_u32 s{64+k}, s{76+k}, {4*294912}")
            a("s_lshl_b32 s8, s8, 9")
            a(f"v_subrev_u32 v{32+k}, s8, v7")
    a("v_mov_b32 v12, 1")
    a(f"s_waitcnt vmcnt({E('UW', 2 if PF2AT < 0 else 0)})")
    a.stamp(7)
    U = 104

    def issue(i):
        if not NOU:
            so = f"s{(76 if i < 16 else 64) + ((i >> 2) & 3)}" if ROT else "s15"
            a(f"buffer_load_dwordx2 {vr(U+2*i,2)}, v6, s[72:75], {so} offen offset:{1152*(i&3)}")
        if i & 3 == 3:
            a("s_add_u32 s15, s15, 294912")
        if i == PF2AT:
            for x in pf2:
                a(x)
        if i == GAT:
            a(f"ds_write_b32 v1, v12 offset:{F_UI}")
            epi_gl(a)
        if i == BST:
            if GAT != BST:
                a(f"ds_write_b32 v1, v12 offset:{F_BU}")
            if not BLATE and not GORD:
                burst(a)
    a.auto(True)
    nis = 0
    for i in range(32):
        while nis < min(32, i + WIN_U):
            issue(nis); nis += 1
        a(f"@need {vr(U+2*i,2)}")
        if i & 3 == 3:
            while nis < min(32, i + 1 + WIN_U):
                issue(nis); nis += 1
            t, u, o = i >> 2, U + 2 * (i - 3), 16 + 8 * ((i >> 2) & 1)
            for ch in range(4):
                sel = "s58" if ch & 1 else "s56"
                a(f"v_perm_b32 v{o+2*ch}, v{u+4+(ch>>1)}, v{u+6+(ch>>1)}, {sel}")
                a(f"v_perm_b32 v{o+2*ch+1}, v{u+(ch>>1)}, v{u+2+(ch>>1)}, {sel}")
                if ROT:
                    a(f"ds_write_b64 v{32+(t&3)}, {vr(o+2*ch,2)} offset:{ch*US+512*(7-(t&4))}")
                else:
                    a(f"ds_write_b64 v7, {vr(o+2*ch,2)} offset:{ch*US+512*(7-t)}")
        if i == 3:
            a.stamp(8)
        if i & 3 == 3:
            a(f"v_mov_b32 v36, {(i>>2)+1}")
            a(f"ds_write_b32 v1, v36 offset:{F_H}")
        if i & 15 == 15:
            a.stamp(2 - (i >> 4))
    a.auto(False)
    epi_x(a, range(4))
    a.spin(F_X, 0, 10, op="lg")
    epi_unp(a, range(4))
    if GORD:
        a("s_waitcnt vmcnt(0)")
    a("s_branch C_IO3")
    a.lab("C_IO")
    io_common(a)
    a.spin(F_X, 0, 10, op="lg")
    if BST < GAT:
        a.spin(F_BU, 1, 12, prio=E("IOP", 3), sleep=1)
        burst(a)
    a.spin(F_H, 4, 12, prio=E("IOP", 3), sleep=E("OSL2", 2))
    epi_x(a, range(4))
    a("s_waitcnt lgkmcnt(0)")
    epi_unp(a, range(4))
    a.spin(F_UI, 1, 12, prio=E("IOP", 3), sleep=E("OSL2", 1))
    epi_gl(a)
    if BST < GAT:
        a("s_waitcnt vmcnt(0)")
    else:
        if GAT != BST:
            a.spin(F_BU, 1, 12, prio=3, sleep=1)
        if GORD:
            a.signal(F_GI, 12)
            a.spin(F_GI, 3, 12)
        if not BLATE:
            burst(a)
        if GORD:
            a(f"s_waitcnt vmcnt({NBI})")
    a.lab("C_IO3")
    a(f"s_waitcnt vmcnt({NBI if BSN and not BLATE else 0})")
    if BLATE == 1:
        burst(a)
    epi_g(a)
    epi_mul(a, range(4))
    a.stamp(3)
    epi_fin(a, [0, 1], 0)
    epi_fin(a, [2, 3], 1)
    a.spin(F_H, 8, 12)
    epi_x(a, range(4, 8))
    if NF > 4:
        a("s_waitcnt lgkmcnt(0)")
    epi_unp(a, range(4, 8))
    epi_mul(a, range(4, 8))
    a("s_lshl_b32 s8, s12, 8")
    a(f"s_sub_u32 s8, {OM+7936-1024*7}, s8")
    a("v_lshl_add_u32 v14, v2, 2, s8")
    for k in range(8):
        a(f"ds_write_b32 v14, v{GD+2*k} offset:{1024*(7-k)}")
    a.stamp(4)
    epi_fin(a, [4, 5], 2)
    a.stamp(5)
    if E("L2"):
        epi_fin(a, [6, 7], 4)
    else:
        epi_fin(a, [6], 3)
        epi_fin(a, [7], 4)
    a.signal(F_SI, 8)
    a.stamp(6)
    a("s_waitcnt vmcnt(0)")
    a.signal(F_ST, 8)
    a.end()
    a.lab("C_FIN")
    Z = 104
    a("s_setprio 0")
    a("v_and_b32 v8, 7, v2")
    a("v_lshlrev_b32 v8, 3, v8")
    a(f"v_add_u32 v8, {WS_SEL}, v8")
    a("s_mul_i32 s8, s7, 9216")
    a(f"s_add_u32 s8, s8, {WS_MB}")
    a("v_lshl_add_u32 v5, v2, 4, s8")
    a("v_add_u32 v6, 0x1000, v5")
    a("v_add_u32 v7, 0x2000, v5")
    a("v_and_b32 v19, 1, v4")
    a("v_lshrrev_b32 v20, 1, v4")
    a("v_lshl_or_b32 v19, v19, 1, v20")
    a(f"v_mul_u32_u24 v12, {US}, v19")
    a(f"v_add_u32 v12, {UP}, v12")
    a(f"v_mul_u32_u24 v13, {OS}, v19")
    a(f"v_add_u32 v13, {OP}, v13")
    a(f"s_add_u32 s8, s55, {2047*1152}")
    a("v_lshl_add_u32 v14, v19, 1, s8")
    a("s_waitcnt lgkmcnt(0)")
    for j in range(4):
        a(f"v_bfe_u32 v{Z+6+j}, v10, {8*j}, 8")
    MB = 120
    if FT:
        a.spin(F_O + 16, 4, 26, sleep=1, prio=3)
        if FT > 1:
            a(f"s_sleep {FT}")
    else:
        a.spin(F_SI, E("SI", 4), 26, sleep=1, prio=3)
    a.stamp(5)
    a("s_mov_b32 s9, 0")
    a.lab("C_MPOLL")
    a(f"global_load_dwordx2 v[16:17], v8, {sr(P_WS,2)} sc1")
    for i in range(9):
        a(f"global_load_dwordx4 {vr(MB+4*i,4)}, v{5+(i>>2)}, {sr(P_WS,2)} offset:{1024*(i&3)} sc1")
    a("s_waitcnt vmcnt(9)")
    a("v_and_b32 v22, 0x7ff, v16")
    a("v_lshl_add_u32 v23, v22, 1, v12")
    a(f"ds_read_u16 v{Z+1}, v23")
    a("v_lshl_add_u32 v23, v22, 1, v13")
    a(f"ds_read_u16 v{Z+3}, v23")
    a("v_lshlrev_b32 v23, 2, v22")
    a(f"v_add_u32 v23, {OM}, v23")
    if not (FT or E("SI", 4) < 4):
        a("ds_read_b32 v24, v23")
    a("v_and_b32 v20, 0xffff0000, v16")
    a("v_ashrrev_i32 v21, 31, v20")
    a("v_not_b32 v21, v21")
    a("v_or_b32 v21, 0x80000000, v21")
    a("v_and_b32 v21, 0xffff0000, v21")
    a("v_xor_b32 v20, v20, v21")
    sigmoid_f32(a, Z, 20, 21)
    rb(a, Z)
    a(f"v_mul_u32_u24 v{Z+4}, 1152, v22")
    a(f"v_sub_u32 v{Z+4}, v14, v{Z+4}")
    a("s_waitcnt lgkmcnt(0)")
    a(f"v_lshlrev_b32 v{Z+1}, 16, v{Z+1}")
    for i in range(9):
        a(f"s_waitcnt vmcnt({8-i})")
        for j in range(4):
            a(f"v_xor_b32 v{MB+4*i+j}, v{MB+4*i+j}, v{Z+6+j}")
        a(f"v_or3_b32 v26, v{MB+4*i}, v{MB+4*i+1}, {'v26' if i else '0'}")
        a(f"v_or3_b32 v26, v{MB+4*i+2}, v{MB+4*i+3}, v26")
        if i:
            for p in range(2):
                a(f"v_pk_add_f32 {vr(28+2*p,2)}, {vr(28+2*p if i > 1 else MB+2*p,2)}, {vr(MB+4*i+2*p,2)}")
    a("v_and_b32 v26, 0xff, v26")
    a("v_bitop3_b32 v26, v26, v17, v10 bitop3:0xf6")
    a("v_cmp_ne_u32 vcc, 0, v26")
    a("s_add_u32 s9, s9, 1")
    a("s_cmp_eq_u64 vcc, 0")
    a("s_cbranch_scc1 C_MOK")
    a(f"s_cmp_lt_u32 s9, {SPIN}")
    a("s_cbranch_scc1 C_MPOLL")
    a.lab("C_MOK")
    if STAMP:
        a("s_mov_b32 s82, s9")
    a.stamp(8)
    a("v_permlane32_swap_b32 v28, v29")
    a("v_permlane32_swap_b32 v30, v31")
    a("v_add_f32 v28, v28, v29")
    a("v_add_f32 v30, v30, v31")
    a("v_permlane16_swap_b32 v28, v30")
    a("v_add_f32 v28, v28, v30")
    a(f"v_add_f32_dpp v28, v28, v28 row_ror:8 {DPPF}")
    rb(a, 28)
    a(f"v_mul_f32 v28, v28, v{Z}")
    rb(a, 28)
    a(f"v_add_f32 v28, v28, v{Z+1}")
    rb(a, 28)
    a(f"v_or_b32 v28, v28, v{Z+3}")
    if FT or E("SI", 4) < 4:
        a.spin(F_SI, 4, 27)
        a("ds_read_b32 v24, v23")
        a("s_waitcnt lgkmcnt(0)")
    a("v_dot2_f32_bf16 v28, v28, v24, 0")
    a("v_cvt_pk_bf16_f32 v28, v28, v28")
    a.spin(F_ST, 4, 27)
    a("s_mov_b32 exec_lo, 0x00ff00ff")
    a("s_mov_b32 exec_hi, 0x00ff00ff")
    a(f"global_store_short v{Z+4}, v28, {sr(P_OUT,2)}")
    a("s_mov_b64 exec, -1")
    a.end()


def kernel(a):
    a.raw(".p2align 8")
    a.raw(".globl k1_kernel")
    a.raw(".type k1_kernel,@function")
    a.lab("k1_kernel")
    a.stamp(20)
    if STAMP == 3:
        a("s_memrealtime s[80:81]")
    a("v_and_b32 v2, 63, v0")
    a("v_mov_b32 v1, 0")
    a("v_lshlrev_b32 v3, 2, v2")
    a("ds_write_b32 v3, v1")
    a("s_lshr_b32 s5, s2, 3")
    if CODEPF:
        a("v_lshlrev_b32 v8, 7, v0")
        a(f"s_cmp_lg_u32 s5, {NJF}")
        a("s_cbranch_scc1 K_NOCPF")
        a("s_getpc_b64 s[8:9]")
        a("v_min_u32 v8, CODE_END-k1_kernel-64, v8")
        a("global_load_dword v160, v8, s[8:9]")
        a.lab("K_NOCPF")
    a("s_waitcnt lgkmcnt(0)")
    a("s_load_dwordx16 s[16:31], s[0:1], 0")
    a("s_load_dwordx16 s[32:47], s[0:1], 64")
    a("s_load_dwordx4 s[48:51], s[0:1], 128")
    if STAMP in (1, 2):
        for i in range(1, 10):
            a(f"s_mov_b32 s{80+2*i}, 0")
    if PROBE and PROBE != "kernel:20":
        a("s_mov_b32 s98, 0")
    a.stamp(0)
    a("v_lshrrev_b32 v4, 6, v0")
    a("s_cmp_ge_u32 s5, 32")
    a("v_readfirstlane_b32 s3, v4")
    a("s_cbranch_scc1 K_END")
    a("s_barrier")
    a("s_cmp_eq_u32 s3, 8")
    a("s_cbranch_scc1 ROUTER")
    a(f"s_cmp_lt_u32 s5, {NJH}")
    a("s_cbranch_scc1 K_OTHER")
    a("s_cmp_ge_u32 s3, 8")
    a("s_cbranch_scc1 K_CIO")
    kgen_head(a)
    router(a)
    a.raw(".p2align 7")
    a.lab("K_OTHER")
    a("v_and_b32 v3, 15, v2")
    a("v_lshrrev_b32 v4, 4, v2")
    a("s_and_b32 s4, s2, 7")
    a("s_mul_i32 s7, s4, 9")
    a("s_add_u32 s7, s7, s5")
    a("s_mov_b32 s12, s3")
    a("s_cmp_lt_u32 s3, 2")
    a("s_cbranch_scc1 GATE")
    a(f"s_cmp_ge_u32 s5, {NJF}")
    a("s_cbranch_scc1 HELPER")
    a("s_cmp_lt_u32 s3, 8")
    a("s_cbranch_scc1 F_COMP")
    ffn_loader(a)
    a.raw(".p2align 7")
    a.lab("K_CIO")
    a("v_and_b32 v3, 15, v2")
    a("v_lshrrev_b32 v4, 4, v2")
    a("s_and_b32 s4, s2, 7")
    a("s_mul_i32 s7, s4, 18")
    a("s_add_u32 s7, s7, s5")
    a(f"s_sub_u32 s7, s7, {NJH}")
    a("s_sub_u32 s12, s3, 9")
    a("s_cmp_lg_u32 s3, 11")
    a("s_cbranch_scc1 C_CONST")
    uloader(a)
    a.lab("C_CONST")
    a("v_lshl_add_u32 v14, v4, 3, v3")
    a("v_sub_u32 v14, 39, v14")
    a("s_lshl_b32 s8, s12, 11")
    a(f"s_add_u32 s8, s8, {PM}")
    a("v_lshl_add_u32 v15, v2, 4, s8")
    W = [(0x7f, 19), (0x1ff, 20), (0x7, 21), (0x1f, 18), (0x3, 21)]
    for k in range(3):
        a("s_cmp_eq_u32 s12, 0")
        a(f"s_cselect_b32 s8, {W[k][0]}, {W[k+2][0]}")
        a(f"s_cselect_b32 s9, {W[k][1]}, {W[k+2][1]}")
        a("s_movk_i32 s11, 0x3f80")
        if k == 2:
            a("s_cselect_b32 s11, s11, 0xffff")
        a("s_lshl_b32 s13, s11, 16")
        a("v_mov_b32 v10, s8")
        a("v_mov_b32 v11, 0")
        a("v_lshlrev_b64 v[10:11], v14, v[10:11]")
        a("v_alignbit_b32 v10, v11, v10, s9")
        for p in range(4):
            a(f"v_bfe_i32 v11, v10, {2*p}, 1")
            a(f"v_bfe_i32 v12, v10, {2*p+1}, 1")
            a("v_and_b32 v11, s11, v11")
            a(f"v_and_or_b32 v{16+4*k+p}, v12, s13, v11")
        a(f"ds_write_b128 v15, {vr(16+4*k,4)} offset:{1024*k}")
    a.signal(F_PM, 10)
    a("s_branch GATE")
    helper(a)
    gate(a)
    kgen(a)
    select(a)
    ffn_comp(a)
    if STAMP:
        a.lab("STAMP_OUT")
        a("s_memrealtime s[98:99]")
        a("s_waitcnt lgkmcnt(0)")
        a("s_lshl_b32 s8, s2, 4")
        a("s_add_u32 s8, s8, s3")
        a("s_lshl_b32 s8, s8, 6")
        a(f"s_add_u32 s8, s8, {WS_STAMP}")
        a("v_mov_b32 v5, s8")
        for i in ((0, 9) if STAMP == 3 else range(10)):
            a(f"v_mov_b32 v6, s{80+2*i}")
            a(f"global_store_dword v5, v6, {sr(P_WS,2)} offset:{4*i}")
    if PROBE:
        a.lab("PADTAIL")
        a("s_waitcnt vmcnt(0) lgkmcnt(0)")
        a("s_cmp_eq_u32 s98, 0")
        a("s_cbranch_scc1 K_END")
        a("s_setprio 0")
        a.lab("PADL")
        a("s_sleep 3")
        a("s_memrealtime s[96:97]")
        a("s_waitcnt lgkmcnt(0)")
        a("s_sub_u32 s96, s96, s98")
        a("s_cmp_lt_u32 s96, 2000")
        a("s_cbranch_scc1 PADL")
    a.lab("K_END")
    a("s_endpgm")
    a.lab("CODE_END")


def main():
    ref = open(os.path.join(HERE, NAME + ".s.ref")).read().splitlines()
    head = [l for l in ref if l.startswith(";") and "@launch" not in l and "Override" not in l and "grid=ceil" not in l]
    a = G()
    kernel(a)
    out = head + [
        f"; @launch kernel=k1_kernel grid=(256,1,1) block=(768,1,1) lds={LDS}",
        '.amdgcn_target "amdgcn-amd-amdhsa--gfx950"',
        ".text",
    ] + a.finish() + [
        '.section .rodata,"a"',
        ".p2align 6",
        ".amdhsa_kernel k1_kernel",
        "  .amdhsa_next_free_vgpr 168",
        "  .amdhsa_next_free_sgpr 102",
        "  .amdhsa_accum_offset 168",
        "  .amdhsa_group_segment_fixed_size 0",
        "  .amdhsa_kernarg_size 144",
        "  .amdhsa_user_sgpr_count 2",
        "  .amdhsa_user_sgpr_kernarg_segment_ptr 1",
        "  .amdhsa_system_sgpr_workgroup_id_x 1",
        ".end_amdhsa_kernel",
    ]
    path = sys.argv[1] if len(sys.argv) > 1 else os.path.join(HERE, NAME + ".s")
    open(path, "w").write("\n".join(out) + "\n")


if __name__ == "__main__":
    main()
```

```python
import sys, os
from asmlib import *

NAME = "gated_mix__ssm_conv_s4__moe_arch_mod__prompt"
HERE = os.path.dirname(os.path.abspath(__file__))
E = lambda k, d=0: int(os.environ.get(k, d))
STAMP = E("STAMP")
PROBE = os.environ.get("PROBE", "")
CODEPF = E("CODEPF", 1)
SELD = E("SELD", 16)
GORD = E("GORD", 1)
NF = E("NF", 4)
FT = E("FT", 0)
RDIR = E("RDIR", 2)
GAT = E("GAT", 31)
BL = E("BL", 72)
NBI = 2 if BL == 72 else 1
BLATE = E("BLATE", 0)
KS = E("KS", 32)
WS_KEY2 = 2 << 20
PF2AT = E("PF2AT", -1)
ROT = 0
C3 = E("C3", 28)
WNT = os.environ.get("WNT", "")
POLLF = os.environ.get("POLLF", "sc1").replace("_", " ")
PUBF = os.environ.get("PUBF", "sc1").replace("_", " ")
PFW = E("PFW", 1)
HPN = E("HPN", 3)
HPS = E("HPS", 53)
HPW = E("HPW", 4)
PSTEP = 5 * HPW // 2
BST = E("BST", 31)
BSN = E("BSN", 5)
WIN_U = E("WIN_U", 6)
WIN_F = E("WIN_F", 10)
HOLD = E("HOLD")
FINE = E("FINE")
NOU = E("NOU")
NOW = E("NOW")

WS_KEY, WS_SEL, WS_BASE, WS_G, WS_MB = 0, 8192, 8448, 16384, 32768
WS_STAMP = 4 << 20
WS_SIZE = 0x10000000

LDS = 163840
F_NONCE, F_PAIR, F_ST, F_I, F_K, F_H, F_O = 0, 16, 40, 48, 64, 80, 96
F_L, F_D, F_AC, F_XR, F_HR, F_PI = 16, 40, 48, 84, 88, 92
KT = 256
KTS = 4608
TS = 288
OS = 4160
KC = KT + 8 * KTS
CS = 1216
UP = KC + 16 * CS
US = 4672
OM = UP + 4 * US
OP = OM + 8192
PM = OP + 4 * OS
assert PM + 5120 + 512 <= 147712 and OP % 16 == 0
WA = 256
WB = WA + 73728
XB = WB + 73728
HB = XB + 9216
HS = 144
GW = HB + 9 * HS
assert GW + 2048 <= LDS and GW % 16 == 0
F_X, F_GD, F_RI, F_SI, F_UI, F_BU, F_PM, F_GI = 8, 12, 4, 44, 88, 92, 32, 36

L2E = 0x3fb8aa3b
L2E_LO = 0x32a57060
LN2 = 0x3f317218
INV2PI = 0x3e22f983

P_U, P_ARE, P_AIM, P_BRE, P_BIM, P_CRE, P_CIM, P_LDT = 16, 18, 20, 22, 24, 26, 28, 30
P_DSK, P_BX, P_WR, P_WG, P_WU, P_WD, P_GW, P_OUT = 32, 34, 36, 38, 40, 42, 44, 46
P_DBG, P_WS = 48, 50
NJF, NJH = 9, 14
SPIN = 0x20000

DPPF = "row_mask:0xf bank_mask:0xf"


class G(Asm):
    nlab = 0

    def stamp(s, i):
        if PROBE:
            import inspect
            fn = inspect.stack()[1].function
            if fn == "pre":
                fn = "ffn_loader"
            if f"{fn}:{i}" == PROBE:
                s("s_memrealtime s[98:99]")
        if i >= 20 or STAMP == 3:
            return
        if STAMP == 2:
            import inspect
            fn = inspect.stack()[1].function
            if not (i == 0 or (fn, i) in (("down", 6), ("uloader", 5), ("uloader", 6), ("select", 5), ("gphase", 7))):
                return
        if STAMP and not (FINE and i >= 6):
            s(f"s_memrealtime s[{80+2*i}:{81+2*i}]")

    def fine(s, i):
        if STAMP and FINE:
            s(f"s_memrealtime s[{80+2*i}:{81+2*i}]")

    def b0(s, wait=None):
        if E("OLDB0"):
            s("s_barrier")
        elif wait is not None:
            s.spin(F_RI, 1, wait)

    def end(s):
        s("s_branch STAMP_OUT" if STAMP else "s_branch PADTAIL" if PROBE else "s_endpgm")

    def uid(s, p):
        G.nlab += 1
        return f"{p}_{G.nlab}"

    def spin(s, off, target, tv, sleep=0, op="ge", prio=None):
        l = s.uid("SP")
        if prio is not None:
            s(f"s_setprio {E('SPP', 3) if sleep else 0}")
        s("s_mov_b32 s9, 0")
        s.lab(l)
        s(f"ds_read_b32 v{tv}, v1 offset:{off}") if isinstance(off, int) else s(f"ds_read_b32 v{tv}, {off}")
        s("s_waitcnt lgkmcnt(0)")
        s(f"v_readfirstlane_b32 s8, v{tv}")
        s("s_add_u32 s9, s9, 1")
        s(f"s_cmp_{op}_u32 s8, {target}")
        s(f"s_cbranch_scc1 {l}_D")
        if sleep:
            s(f"s_sleep {sleep * E('SLM', 1)}")
        s(f"s_cmp_lt_u32 s9, {SPIN*4}")
        s(f"s_cbranch_scc1 {l}")
        s.lab(l + "_D")
        if prio is not None:
            s(f"s_setprio {prio}")

    def signal(s, off, tv):
        s(f"v_mov_b32 v{tv}, 1")
        s("s_mov_b64 exec, 1")
        s(f"ds_add_u32 v1, v{tv} offset:{off}") if isinstance(off, int) else s(f"ds_add_u32 {off}, v{tv}")
        s("s_mov_b64 exec, -1")


def srd(a, d, p, size):
    a(f"s_mov_b32 s{d}, s{p}")
    a(f"s_mov_b32 s{d+1}, s{p+1}")
    a(f"s_mov_b32 s{d+2}, {size}")
    a(f"s_mov_b32 s{d+3}, 0x20000")


def wave_max_steps(vv):
    return [f"v_max_u32_dpp v{vv}, v{vv}, v{vv} row_shr:1 {DPPF}",
            f"v_max_u32_dpp v{vv}, v{vv}, v{vv} row_shr:2 {DPPF}",
            f"v_max_u32_dpp v{vv}, v{vv}, v{vv} row_shr:4 {DPPF}",
            f"v_max_u32_dpp v{vv}, v{vv}, v{vv} row_shr:8 {DPPF}",
            f"v_max_u32_dpp v{vv}, v{vv}, v{vv} row_bcast:15 row_mask:0xa bank_mask:0xf",
            f"v_max_u32_dpp v{vv}, v{vv}, v{vv} row_bcast:31 row_mask:0xc bank_mask:0xf"]


def sigmoid_f32(a, dst, src, t):
    a(f"v_mul_f32 v{t}, 0xbfb8aa3b, v{src}")
    a(f"v_exp_f32 v{t}, v{t}")
    a(f"v_add_f32 v{t}, 1.0, v{t}")
    a(f"v_rcp_f32 v{dst}, v{t}")


def rb(a, r):
    a(f"v_cvt_pk_bf16_f32 v{r}, v{r}, v{r}")
    a(f"v_and_b32 v{r}, 0xffff0000, v{r}")


def router(a):
    a.raw(".p2align 7")
    a.lab("ROUTER")
    X, W = 16, 52
    assert RDIR == 2
    a("v_lshrrev_b32 v5, 3, v2")
    a("v_and_b32 v6, 7, v2")
    a("v_lshlrev_b32 v9, 4, v6")
    a("v_lshl_add_u32 v5, s2, 3, v5")
    a("v_mul_u32_u24 v8, 1152, v5")
    a("v_add_u32 v8, v8, v9")
    if E("WPF", 1):
        a("v_min_u32 v10, 8, v2")
        a("v_lshlrev_b32 v10, 7, v10")
    a("s_waitcnt lgkmcnt(0)")
    a.fine(7)
    if E("WPF", 1):
        a(f"global_load_dword v90, v10, {sr(P_WR,2)}")
    for i in range(9):
        a(f"global_load_dwordx4 {vr(X+4*i,4)}, v8, {sr(P_U,2)} offset:{128*i}")
    a(f"s_load_dword s10, {sr(P_WS,2)}, {WS_BASE}")
    a("s_setprio 3")
    for i in range(9):
        a(f"global_load_dwordx4 {vr(W+4*i,4)}, v9, {sr(P_WR,2)} offset:{128*i}")
    a("v_lshlrev_b32 v7, 4, v2")
    a("v_min_u32 v10, 7, v2")
    a(f"s_mov_b32 m0, {GW}")
    a("v_lshlrev_b32 v10, 4, v10")
    a(f"global_load_lds_dwordx4 v7, {sr(P_GW,2)}")
    a(f"global_load_lds_dwordx4 v10, {sr(P_GW,2)} offset:1024")
    a.fine(6)
    a.stamp(21)
    a.b0()
    a("v_mov_b32 v11, 1")
    a(f"ds_write_b32 v1, v11 offset:{F_RI}")
    a("v_and_b32 v3, 15, v2")
    a("v_lshrrev_b32 v4, 4, v2")
    a("s_and_b32 s4, s2, 7")
    a(f"v_add_u32 v7, {XB}, v7")
    if KS == 32:
        a("s_lshl_b32 s8, s2, 5")
        a("v_lshl_add_u32 v15, v4, 3, s8")
    else:
        a(f"s_mul_i32 s8, s2, {KS}")
        a(f"s_add_u32 s8, s8, {WS_KEY2}")
        a("v_lshl_add_u32 v15, v4, 3, s8")
        a("v_lshl_add_u32 v15, v3, 5, v15")
    a("s_mov_b32 s11, 0xffff")
    for j in range(4):
        a(f"v_mov_b32 v{8+j}, 0")
    a("s_waitcnt lgkmcnt(0)")
    a.fine(8)
    a("s_add_u32 s10, s10, 1")
    a("s_addc_u32 s10, s10, 0")
    a("v_mov_b32 v14, s10")
    a("v_mov_b32 v13, s10")
    if RDIR:
        for i in range(9):
            a(f"s_waitcnt vmcnt({8-i+2})")
            for j in range(4):
                a(f"v_dot2c_f32_bf16 v{8+j}, v{X+4*i+j}, v{W+4*i+j}")
        a.stamp(1)
    else:
        a("s_waitcnt vmcnt(9)")
        a.stamp(1)
        if STAMP or PROBE:
            a("s_waitcnt lgkmcnt(0)")
        for i in range(9):
            a(f"ds_read_b128 {vr(X+4*i,4)}, v7 offset:{1024*i}")
        a(f"ds_write_b32 v1, v14 offset:{F_X}")
        for i in range(9):
            a(f"s_waitcnt vmcnt({8-i}) lgkmcnt({9-i})")
            for j in range(4):
                a(f"v_dot2c_f32_bf16 v{8+j}, v{X+4*i+j}, v{W+4*i+j}")
    a("v_add_f32 v8, v8, v9")
    a("v_add_f32 v10, v10, v11")
    a("v_add_f32 v8, v8, v10")
    a(f"v_add_f32_dpp v8, v8, v8 quad_perm:[1,0,3,2] {DPPF}")
    a(f"v_add_f32_dpp v8, v8, v8 quad_perm:[2,3,0,1] {DPPF}")
    a(f"v_add_f32_dpp v8, v8, v8 row_half_mirror {DPPF}")
    a("v_cvt_pk_bf16_f32 v8, v8, v8")
    a("v_ashrrev_i32 v9, 31, v8")
    a("v_or_b32 v9, 0x80008000, v9")
    a("v_xor_b32 v8, v8, v9")
    a(f"v_mov_b32_dpp v9, v8 row_ror:8 {DPPF}")
    km = {32: 0x00010001, 64: 0x00030003, 128: 0x000f000f}[KS]
    a(f"s_mov_b32 exec_lo, {km:#x}")
    a(f"s_mov_b32 exec_hi, {km:#x}")
    a("v_bfi_b32 v12, s11, v8, v9")
    a(f"global_store_dwordx2 v15, v[12:13], {sr(P_WS,2)} {PUBF}")
    a("s_mov_b64 exec, -1")
    a(f"ds_write_b32 v1, v14 offset:{F_NONCE}")
    a.stamp(2)
    if E("RLP", 1):
        a("s_setprio 0")
    if RDIR == 2:
        for i in range(9):
            a(f"ds_write_b128 v7, {vr(X+4*i,4)} offset:{1024*i}")
    if RDIR:
        a("s_waitcnt vmcnt(1)")
        a(f"ds_write_b32 v1, v14 offset:{F_X}")
    a(f"s_cmp_ge_u32 s5, {NJH}")
    a("s_cbranch_scc1 C_IO")
    a(f"s_cmp_lt_u32 s5, {NJF}")
    a("s_cbranch_scc1 SELECT")
    a.end()


def gate(a):
    a.lab("GATE")
    if E("GTP"):
        a(f"s_setprio {E('GTP')}")
    X, W, WL = 16, 34, 44
    a("s_lshl_b32 s8, s12, 9")
    a(f"s_add_u32 s8, s8, {XB}")
    a("v_lshl_add_u32 v5, v2, 2, s8")
    a("v_and_b32 v6, 31, v2")
    a("v_lshlrev_b32 v6, 2, v6")
    a(f"v_add_u32 v6, {GW}, v6")
    a("s_lshl_b32 s8, s2, 1")
    a("s_add_u32 s8, s8, s12")
    a("v_mov_b32 v8, 0")
    a("v_mov_b32 v9, 0")
    a("v_mov_b32 v10, 0x3f803f80")
    a("s_lshl_b32 s8, s8, 5")
    a(f"s_add_u32 s8, s8, {WS_G}")
    a("v_lshrrev_b32 v7, 5, v2")
    a("v_lshl_add_u32 v7, v7, 3, s8")
    a("v_and_b32 v11, 16, v2")
    a("v_add_u32 v7, v7, v11")
    a.b0()
    if E("GATED"):
        a(f"s_sleep {E('GATED')}")
    a.spin(F_X, 0, 13, op="lg", sleep=E("GSL", 1))
    a.auto(True)
    for i in range(5):
        a(f"ds_read2_b32 {vr(W+2*i,2)}, v6 offset0:{64*(i&3)} offset1:{64*(i&3)+32}" if i < 4 else f"ds_read_b32 v{W+8}, v6 offset:1024")
    for i in range(9):
        a(f"ds_read2st64_b32 {vr(X+2*i,2)}, v5 offset0:{4*i} offset1:{4*i+1}")
    for i in range(9):
        a(f"v_and_b32 v{WL+i}, 0xffff, v{W+i}")
        a(f"v_and_b32 v{W+i}, 0xffff0000, v{W+i}")
    for i in range(10):
        t = 56 + 4 * (i & 1)
        u = 56 + 4 * ((i - 1) & 1)
        for j in range(2):
            if i < 9:
                a(f"v_dot2_f32_bf16 v{t+2*j}, v{X+2*i+j}, v{WL+i}, 0")
                a(f"v_dot2_f32_bf16 v{t+2*j+1}, v{X+2*i+j}, v{W+i}, 0")
        if i:
            for j in range(2):
                a(f"v_cvt_pk_bf16_f32 v{u+2*j}, v{u+2*j}, v{u+2*j+1}")
            for j in range(2):
                a(f"v_dot2c_f32_bf16 v{8+j}, v{u+2*j}, v10")
    a.auto(False)
    a.signal(F_GD, 11)
    a("v_permlane16_swap_b32 v8, v9")
    a("v_add_f32 v8, v8, v9")
    for r in (8, 4, 2, 1):
        a(f"v_add_f32_dpp v8, v8, v8 row_ror:{r} {DPPF}")
    rb(a, 8)
    sigmoid_f32(a, 8, 8, 9)
    rb(a, 8)
    a("v_sub_f32 v9, 1.0, v8")
    a("v_cvt_pk_bf16_f32 v12, v8, v9")
    a("s_mov_b32 exec_lo, 0x00010001")
    a("s_mov_b32 exec_hi, 0x00010001")
    a(f"global_store_dwordx2 v7, v[12:13], {sr(P_WS,2)} sc1")
    a("s_mov_b64 exec, -1")
    a.stamp(1)
    a(f"s_cmp_lt_u32 s5, {NJF}")
    a("s_cbranch_scc1 F_COMP2")
    a(f"s_cmp_ge_u32 s5, {NJH}")
    a("s_cbranch_scc1 C_IO")
    a.end()


def stripe_pf(a):
    a("s_and_b32 s8, s13, 15" if PF2AT >= 0 else "s_mov_b32 s8, s13")
    a("s_mul_i32 s8, s8, 73728")
    a("s_lshl_b32 s9, s4, 7")
    a("s_add_u32 s8, s8, s9")
    a("v_mul_u32_u24 v9, 1152, v2")
    a("v_add_u32 v9, s8, v9")
    a("s_add_u32 s8, s13, 18")
    a("s_min_u32 s8, s8, 31")
    a("s_sub_u32 s8, s8, s13")
    a("s_mul_i32 s8, s8, 73728")
    a("v_add_u32 v8, s8, v9" if PF2AT < 0 else f"v_add_u32 v8, {16*73728}, v9")
    return [f"global_load_dword v10, v9, {sr(P_U,2)}", f"global_load_dword v11, v9, {sr(P_U,2)} offset:128",
            f"global_load_dword v10, v8, {sr(P_U,2)}", f"global_load_dword v11, v8, {sr(P_U,2)} offset:128"]


def prefetch(a, n, hold):
    a("v_mul_u32_u24 v5, 57, v2")
    a("v_lshrrev_b32 v5, 9, v5")
    a("v_mul_u32_u24 v6, 9, v5")
    a("v_sub_u32 v6, v2, v6")
    a("s_waitcnt lgkmcnt(0)")
    a("s_cmp_eq_u32 s12, 1")
    a(f"s_cselect_b32 s52, s{P_WU}, s{P_WG}")
    a(f"s_cselect_b32 s53, s{P_WU+1}, s{P_WG+1}")
    a("s_mov_b32 s54, 5308416")
    a("s_mov_b32 s55, 0x20000")
    a("v_mul_u32_u24 v5, 9216, v5")
    a("v_lshl_add_u32 v5, v6, 7, v5")
    a("s_mul_i32 s8, s4, 1152")
    if C3:
        a(f"s_sub_u32 s14, s13, {HPS}")
        a("s_lshr_b32 s9, s52, 7")
        a("s_add_u32 s9, s9, s4")
        a("s_sub_u32 s9, 3, s9")
        a("s_and_b32 s9, s9, 7")
        a("s_lshl_b32 s15, s9, 7")
        a("s_add_u32 s15, s15, s8")
        a(f"s_mul_i32 s14, s14, {9216*C3}")
        a("s_add_u32 s15, s15, s14")
        a(f"s_add_u32 s15, s15, {9216*(7*HPS - C3*PSTEP)}")
        a("s_cmp_eq_u32 s9, 0")
        a("s_cselect_b32 s9, 1024, 0")
        a("v_and_b32 v7, 31, v2")
        a(f"v_min_u32 v7, {C3-1}, v7")
        a("v_mul_u32_u24 v7, 9216, v7")
        a("v_lshrrev_b32 v9, 5, v2")
        a("v_mul_u32_u24 v9, s9, v9")
        a("v_add_u32 v7, v7, v9")
    a("s_mul_i32 s13, s13, 64512")
    a("s_add_u32 s13, s13, s8")
    if not E("HNG"):
        a.b0(13)
    if hold:
        a.spin(F_NONCE, 0, 13, op="lg", sleep=1)
    if C3:
        a("buffer_load_dword v8, v7, s[52:55], s15 offen")
    for k in range(n):
        if k >= PFW or (C3 and E("C3W", 1)):
            a(f"s_waitcnt vmcnt({PFW-1})")
        a("buffer_load_dword v8, v5, s[52:55], s13 offen")
        a(f"s_add_u32 s13, s13, {64512*PSTEP}")


def bulk_gate(a, tv):
    a.b0(tv)
    if HOLD:
        a.spin(F_NONCE, 0, tv, op="lg", sleep=1)


def select(a):
    a.lab("SELECT")
    a("s_setprio 3")
    SX = 52
    srd(a, SX, P_U, 2359296)
    KD, IX, KY = 16, 48, 80
    M1, M2, T1, T2, VO, VK, CH = 8, 9, 10, 11, 12, 6, 5
    a("v_lshlrev_b32 v7, 4, v2")
    a("v_add_u32 v15, 0x1000, v7")
    if KS != 32:
        a("v_lshrrev_b32 v7, 1, v2")
        a(f"v_mul_u32_u24 v7, {KS}, v7")
        a("v_and_b32 v15, 1, v2")
        a("v_lshl_add_u32 v7, v15, 4, v7")
        for i in range(8):
            a(f"v_add_u32 v{120+i}, {WS_KEY2+32*KS*i}, v7")

    def polls():
        if KS != 32:
            for i in range(8):
                a(f"global_load_dwordx4 {vr(KD+4*i,4)}, v{120+i}, {sr(P_WS,2)} {POLLF}")
            return
        for i in range(8):
            a(f"global_load_dwordx4 {vr(KD+4*i,4)}, v{7 if i < 4 else 15}, {sr(P_WS,2)} offset:{1024*(i&3)} {POLLF}")
    assert WS_KEY == 0
    a("v_lshlrev_b32 v8, 2, v2")
    a("v_sub_u32 v8, 2047, v8")
    for i in range(8):
        for e in range(4):
            a(f"v_subrev_u32 v{IX+4*i+e}, {256*i+e}, v8")
    a("v_lshrrev_b32 v9, 3, v2")
    a("v_and_b32 v9, 6, v9")
    a("v_xor_b32 v9, v9, v2")
    a("v_and_b32 v9, 7, v9")
    a(f"v_lshlrev_b32 v{CH}, 4, v9")
    a(f"v_mov_b32 v{VO}, 0")
    a(f"v_mov_b32 v{VK}, 0")
    a("s_mov_b32 s11, 0xffff0000")
    a("s_mov_b32 s15, 0")
    a.spin(F_GD, 2, 13)
    a("s_mov_b32 s9, 0")
    a("s_waitcnt vmcnt(0)")
    if SELD:
        a(f"s_sleep {SELD}")
    a.stamp(8)
    a.lab("SEL_POLL")
    polls()
    if E("W1", 99) < 99:
        a(f"ds_write_b32 v1, v14 offset:{F_PI}")
    for i in range(8):
        a(f"s_waitcnt vmcnt({7-i})")
        if i == 0:
            a(f"v_xor_b32 v13, v{KD+1}, v14")
        else:
            a(f"v_bitop3_b32 v13, v13, v{KD+4*i+1}, v14 bitop3:0xf6")
        a(f"v_bitop3_b32 v13, v13, v{KD+4*i+3}, v14 bitop3:0xf6")
    a("v_cmp_ne_u32 vcc, 0, v13")
    a("s_add_u32 s9, s9, 1")
    a("s_cmp_eq_u64 vcc, 0")
    a("s_cbranch_scc1 SEL_GOT")
    a(f"s_cmp_lt_u32 s9, {SPIN}")
    a("s_cbranch_scc1 SEL_POLL")
    a.lab("SEL_GOT")
    if STAMP:
        a("s_mov_b32 s94, s9")
    a.stamp(6)
    for i in range(8):
        for h in range(2):
            a(f"v_lshl_or_b32 v{KY+4*i+2*h}, v{KD+4*i+2*h}, 16, v{IX+4*i+2*h}")
            a(f"v_and_or_b32 v{KY+4*i+2*h+1}, v{KD+4*i+2*h}, s11, v{IX+4*i+2*h+1}")
        ks = [KY + 4 * i + e for e in range(4)]
        if i == 0:
            a(f"v_min_u32 v{M2}, v{ks[0]}, v{ks[1]}")
            a(f"v_max_u32 v{M1}, v{ks[0]}, v{ks[1]}")
            ks = ks[2:]
        for k in ks:
            a(f"v_med3_u32 v{M2}, v{M1}, v{M2}, v{k}")
            a(f"v_max_u32 v{M1}, v{M1}, v{k}")
    a.stamp(3)

    def place(r):
        lo, hi = ((0xff << (8 * r)) & 0xffffffff, (0xff << (8 * r)) >> 32)
        return ["s_and_b32 s13, s12, 0x7ff", "s_sub_u32 s13, 2047, s13", "s_mul_i32 s13, s13, 1152",
                [f"s_mov_b32 exec_lo, {lo:#x}", f"s_mov_b32 exec_hi, {hi:#x}",
                 f"v_add_u32 v{VO}, s13, v{CH}", f"v_mov_b32 v{VK}, s12", "s_mov_b64 exec, -1"]]
    for r in range(8):
        if r == 0:
            a(f"v_mov_b32 v{T1}, v{M1}")
            fill = []
        else:
            a(f"v_subrev_u32 v{T1}, s12, v{M1}")
            a(f"v_subrev_u32 v{T2}, s12, v{M2}")
            a(f"v_max_u32 v{T1}, v{T1}, v{T2}")
            p = place(r - 1)
            fill = [p[0:2], [p[2]], p[3]]
        for st in wave_max_steps(T1):
            for x in (fill.pop(0) if fill else []):
                a(x)
            a(st)
        a(f"v_readlane_b32 s8, v{T1}, 63")
        a("s_add_u32 s12, s12, s8" if r else "s_mov_b32 s12, s8")
    p = place(7)
    for x in p[:3] + p[3]:
        a(x)
    a("s_mov_b32 s14, 0")
    a.lab("SEL_GATHER")
    for b in range(9):
        a(f"s_mov_b32 m0, {XB + 896*b}")
        a(f"buffer_load_dwordx4 v{VO}, {sr(SX,4)}, 0 offen offset:{128*b} lds")
    a.signal(F_D, 13)
    a.stamp(4)
    a("s_cmp_lg_u32 s14, 0")
    a("s_cbranch_scc1 SEL_OK")
    TK = KD
    for k in range(32):
        a(f"v_sub_u32 v{TK+k}, v{KY+k}, v{M2}")

    def tree():
        for j in range(10):
            a(f"v_max3_u32 v{TK+3*j}, v{TK+3*j}, v{TK+3*j+1}, v{TK+3*j+2}")
        a(f"v_max3_u32 v{TK}, v{TK}, v{TK+3}, v{TK+6}")
        a(f"v_max3_u32 v{TK+9}, v{TK+9}, v{TK+12}, v{TK+15}")
        a(f"v_max3_u32 v{TK+18}, v{TK+18}, v{TK+21}, v{TK+24}")
        a(f"v_max3_u32 v{TK+27}, v{TK+27}, v{TK+30}, v{TK+31}")
        a(f"v_max3_u32 v{TK}, v{TK}, v{TK+9}, v{TK+18}")
        a(f"v_max_u32 v{TK}, v{TK}, v{TK+27}")
    tree()
    a(f"v_add_u32 v{TK}, v{TK}, v{M2}")
    a(f"v_cmp_lt_u32 vcc, s12, v{TK}")
    if E("FORCESLOW"):
        a("s_mov_b64 vcc, 1")
    a("s_cmp_eq_u64 vcc, 0")
    a("s_cbranch_scc1 SEL_OK")
    a("s_waitcnt vmcnt(0)")
    a("s_mov_b32 s12, 0")
    a("s_mov_b64 s[56:57], 0xff")
    a.lab("SEL_SLOW")
    for k in range(32):
        a(f"v_subrev_u32 v{TK+k}, s12, v{KY+k}")
    tree()
    for st in wave_max_steps(TK):
        a(st)
    a(f"v_readlane_b32 s8, v{TK}, 63")
    a("s_add_u32 s12, s12, s8")
    for x in place(0)[:3]:
        a(x)
    a("s_mov_b64 exec, s[56:57]")
    a(f"v_add_u32 v{VO}, s13, v{CH}")
    a(f"v_mov_b32 v{VK}, s12")
    a("s_mov_b64 exec, -1")
    a("s_lshl_b64 s[56:57], s[56:57], 8")
    a("s_add_u32 s14, s14, 1")
    a("s_cmp_lt_u32 s14, 8")
    a("s_cbranch_scc1 SEL_SLOW")
    a("s_branch SEL_GATHER")
    a.lab("SEL_OK")
    a("s_cmp_lg_u32 s2, 0")
    a("s_cbranch_scc1 SEL_NOPUB")
    a(f"v_mov_b32 v{VK+1}, v14")
    a(f"v_add_u32 v8, {WS_SEL}, v2")
    a("s_mov_b32 exec_lo, 0x01010101")
    a("s_mov_b32 exec_hi, 0x01010101")
    a(f"global_store_dwordx2 v8, {vr(VK,2)}, {sr(P_WS,2)} sc1")
    a("s_mov_b64 exec, 1")
    a(f"global_store_dword v8, v14, {sr(P_WS,2)} offset:{WS_BASE-WS_SEL} sc1")
    a("s_mov_b64 exec, -1")
    a("s_waitcnt vmcnt(2)")
    a("s_branch SEL_END")
    a.lab("SEL_NOPUB")
    a("s_waitcnt vmcnt(0)")
    a.lab("SEL_END")
    a("v_mov_b32 v8, 3")
    a(f"ds_write_b32 v1, v8 offset:{F_XR}")
    a.stamp(5)
    a.end()


def ffn_loader(a):
    a.lab("F_LOAD")
    a("s_setprio 3")
    SG, SU, SD = 52, 56, 60
    a("s_sub_u32 s12, s3, 9")
    a("v_lshrrev_b32 v5, 3, v2")
    a("v_bfe_u32 v6, v2, 4, 1")
    a("v_xor_b32 v6, v6, v2")
    a("v_and_b32 v6, 7, v6")
    a("v_mul_u32_u24 v7, 9216, v5")
    a("v_lshl_add_u32 v8, v6, 4, v7")
    a("v_xor_b32 v9, 32, v8")
    a("v_xor_b32 v10, 64, v8")
    a("v_xor_b32 v11, 96, v8")
    a("s_mul_i32 s13, s12, 294912")
    a("s_lshl_b32 s8, s7, 7")
    a("s_add_u32 s13, s13, s8")
    a("s_lshl_b32 s15, s12, 13")
    a(f"s_add_u32 s15, s15, {WA}")
    for d in (SG, SU):
        a(f"s_mov_b32 s{d+2}, 5308416")
        a(f"s_mov_b32 s{d+3}, 0x20000")
    a("s_waitcnt lgkmcnt(0)")
    a(f"s_mov_b64 {sr(SG,2)}, {sr(P_WG,2)}")
    a(f"s_mov_b64 {sr(SU,2)}, {sr(P_WU,2)}")
    a.stamp(23)
    n = 0
    sig = 0

    def pre():
        nonlocal sig
        if n == E("NG", 2):
            bulk_gate(a, 14)
        if n == E("W1", 99):
            a.spin(F_PI, 1, 14, sleep=1)
        if n == E("W0", 99):
            a.spin(F_NONCE, 0, 14, op="lg", sleep=1)
        if n >= WIN_F:
            a(f"s_waitcnt vmcnt({WIN_F-1})")
        if sig < 6 and n - WIN_F + 1 >= 8 * (sig + 1):
            a.signal(F_L + 4 * sig, 14)
            if sig in (0, 2, 5):
                a.stamp(1 + sig // 2)
            sig += 1
    for c in range(6):
        if c >= 3:
            a.spin(F_AC + 4 * (c - 3), 4, 14)
        for R in range(4):
            for mu in range(2):
                pre()
                a(f"s_add_u32 m0, s15, {(c%3)*24576 + R*2048 + mu*1024}")
                if not NOW:
                    a(f"buffer_load_dwordx4 v{8+2*mu+(R&1)}, {sr(SU if mu else SG,4)}, s13 offen {WNT} lds")
                n += 1
            a(f"s_add_u32 s13, s13, {73728 if R < 3 else 73728*9}")
    a.signal(F_D, 14)
    a.stamp(4)
    while sig < 6:
        a(f"s_waitcnt vmcnt({48 - 8*(sig+1)})")
        a.signal(F_L + 4 * sig, 14)
        sig += 1
    a.stamp(3)
    a("s_cmp_eq_u32 s3, 9")
    a("s_cbranch_scc1 F_COMP2")
    a.end()


def ffn_comp(a):
    a.lab("F_COMP")
    a.b0()
    a.lab("F_COMP2")
    a("s_and_b32 s12, s3, 3")
    a("v_lshrrev_b32 v5, 2, v3")
    a("v_bfe_u32 v7, v3, 3, 1")
    a("v_and_b32 v13, 1, v4")
    a("v_lshl_or_b32 v14, v13, 1, v7")
    a("v_and_b32 v15, 7, v3")
    a(f"v_mul_u32_u24 v16, {HS}, v15")
    a(f"v_add_u32 v16, {HB}, v16")
    a("s_mov_b32 s56, 0xff00ff00")
    a("s_mov_b32 s57, 0xff00ff00")
    a("s_lshr_b32 s8, s3, 2")
    a("s_cmp_lg_u32 s8, 1")
    a("s_cbranch_scc1 F_DOWN")
    WF, AG = 24, 8
    a("v_bfe_u32 v6, v3, 1, 1")
    a("v_lshl_or_b32 v8, v6, 2, v14")
    a("v_xor_b32 v8, s12, v8")
    a("v_lshlrev_b32 v8, 4, v8")
    a("v_lshl_add_u32 v8, v5, 7, v8")
    a("v_lshl_add_u32 v8, v6, 10, v8")
    a("v_lshl_add_u32 v8, v4, 11, v8")
    a("v_and_b32 v9, 1, v3")
    a("v_lshl_add_u32 v8, v9, 3, v8")
    a("v_xor_b32 v9, 64, v8")
    a(f"v_add_u32 v10, {WA+49152}, v8")
    a(f"v_add_u32 v11, {WA+49152}, v9")
    a("v_lshlrev_b32 v6, 2, v13")
    a("v_lshrrev_b32 v5, 1, v4")
    a("v_add_u32 v6, v6, v5")
    a("v_lshl_add_u32 v6, v7, 5, v6")
    a("s_lshl_b32 s8, s12, 3")
    a("v_add_lshl_u32 v6, v6, s8, 1")
    a("v_add_u32 v5, v6, v16")
    a("v_and_b32 v6, 6, v3")
    a("v_xor_b32 v6, v6, v4")
    a("v_lshlrev_b32 v6, 4, v6")
    a("v_lshl_add_u32 v6, v15, 7, v6")
    a(f"v_add_u32 v6, {XB}, v6")
    a("v_xor_b32 v7, 64, v6")
    for c in range(6):
        a.spin(F_L + 4 * c, 3, 12, sleep=E("CSL", 1))
        if c in (2, 5):
            a.stamp(2 + c // 3)
        for s in range(3):
            for t in range(2):
                base, off = (8 + t, WA + (c % 3) * 24576 + s * 8192) if c % 3 < 2 else (10 + t, s * 8192)
                r = WF + 8 * (3 * c + s) + 4 * t
                a(f"ds_read_b64_tr_b16 {vr(r,2)}, v{base} offset:{off}")
                a(f"ds_read_b64_tr_b16 {vr(r+2,2)}, v{base} offset:{off+512}")
        if c < 3:
            a("s_waitcnt lgkmcnt(0)")
            a.signal(F_AC + 4 * c, 12)
    a("s_setprio 3")
    a.spin(F_XR, 1, 12)
    a.stamp(4)
    a.auto(True)
    xs = lambda s: 16 + 4 * s
    def xrd(s):
        a(f"ds_read_b128 {vr(xs(s),4)}, v{7 if s&1 else 6} offset:{1024*(s>>1)}")
    xrd(0); xrd(1)
    nx = 2
    for s in range(18):
        for t in range(2):
            a(f"v_mfma_f32_16x16x32_bf16 {vr(AG+4*t,4)}, {vr(WF+8*s+4*t,4)}, {vr(xs(s),4)}, {vr(AG+4*t,4) if s else 0}")
            if nx < 18 and xs(nx) + 4 <= WF + 8 * s + 4 * t + 4:
                xrd(nx); nx += 1
    a.auto(False)
    a.stamp(8)
    for r in range(4):
        a(f"v_cndmask_b32 v{AG+r}, v{AG+r}, v{AG+4+r}, s[56:57]")
    a(f"v_permlane32_swap_b32 v{AG}, v{AG+1}")
    a(f"v_permlane32_swap_b32 v{AG+2}, v{AG+3}")
    for op in ("v_cvt_pk_bf16_f32 v{u}, v{g}, v{u}", "v_lshlrev_b32 v{g}, 16, v{u}", "v_mul_f32 v{t}, 0xbfb8aa3b, v{g}", "v_exp_f32 v{t}, v{t}",
               "v_and_b32 v{u}, 0xffff0000, v{u}", "v_add_f32 v{t}, 1.0, v{t}", "v_rcp_f32 v{t}, v{t}", "v_mul_f32 v{g}, v{g}, v{t}",
               "v_cvt_pk_bf16_f32 v{g}, v{g}, v{g}", "v_and_b32 v{g}, 0xffff0000, v{g}", "v_mul_f32 v{g}, v{g}, v{u}"):
        for p in range(2):
            a(op.format(g=AG + 2 * p, u=AG + 2 * p + 1, t=AG + 4 + p))
    a(f"v_cvt_pk_bf16_f32 v{AG}, v{AG}, v{AG+2}")
    a(f"ds_write_b16 v5, v{AG}")
    a(f"ds_write_b16_d16_hi v5, v{AG} offset:4")
    a.signal(F_HR, 12)
    a.stamp(5)
    a.end()
    a.lab("F_DOWN")
    RW, DF, AC, HF = 24, 56, 120, 152
    a("v_lshl_add_u32 v10, v4, 4, v16")
    a(f"v_mov_b32 v18, {HB+8*HS}")
    a("v_cndmask_b32 v19, v18, v10, s[56:57]")
    a("v_cndmask_b32 v18, v10, v18, s[56:57]")
    a("v_and_b32 v20, 31, v2")
    a("v_lshlrev_b32 v20, 2, v20")
    a(f"v_add_u32 v20, {HB+8*HS}, v20")
    a("ds_write_b32 v20, v1")
    a("v_mul_u32_u24 v8, 9216, v4")
    a("s_mul_i32 s13, s7, 73728")
    for j in range(4):
        a(f"s_mov_b32 s{60+j}, {0x07060500+j:#x}")
    a("s_mov_b32 s64, 0x05040100")
    a("s_mov_b32 s65, 0x07060302")
    a("s_lshl_b32 s14, s7, 7")
    a(f"s_add_u32 s14, s14, {WS_MB}")
    a("v_lshl_add_u32 v11, v15, 4, s14")
    a("s_waitcnt lgkmcnt(0)")
    srd(a, 52, P_WS, WS_SIZE)
    srd(a, 68, P_WD, 5308416)
    a("s_cmp_eq_u32 s3, 9")
    a("s_cbranch_scc1 F_DN2")

    def down(nd):
        nf = 2 * nd
        raw = lambda q, e: (RW if q == 0 else 88) + nd * e
        frg = lambda q, j: (DF if q == 0 else RW) + 4 * j
        for q in range(2):
            for e in range(8):
                if nd == 4 and E("DE", 4) and 8 * q + e == E("DE", 4):
                    a.spin(F_D, 4, 12, sleep=1)
                if not NOW:
                    a(f"buffer_load_dword{'x4' if nd == 4 else 'x2'} {vr(raw(q,e),nd)}, v8, s[68:71], s13 offen offset:{1152*(e&3)}")
                if e & 3 == 3:
                    a(f"s_add_u32 s13, s13, {4608 if e == 3 else 36864-4608}")
        def perms(q, p):
            a(f"s_waitcnt vmcnt({14 - 8*q - 2*p})")
            for j in range(nf):
                a(f"v_perm_b32 v{frg(q,j)+p}, v{raw(q,2*p+1)+(j>>1)}, v{raw(q,2*p)+(j>>1)}, s{64+(j&1)}")

        def mms(q):
            for j in range(nf):
                if nd == 4:
                    c = vr(AC + 4 * (j & 3), 4)
                    a(f"v_mfma_f32_16x16x32_bf16 {c}, {vr(frg(q,j),4)}, {vr(HF+8*(j>>2)+4*q,4)}, {c if q or j > 3 else 0}")
                else:
                    a(f"v_mfma_f32_16x16x32_bf16 {vr(AC+4*j,4)}, {vr(frg(q,j),4)}, {vr(HF+4*q,4)}, {vr(AC+4*j,4) if q else 0}")
        for q, p in [(0, 0), (0, 1), (0, 2), (0, 3), (1, 0), (1, 1)]:
            perms(q, p)
        a.spin(F_HR, 4, 12)
        a.stamp(5)
        for q in range(2):
            if nd == 4:
                a(f"ds_read_b128 {vr(HF+4*q,4)}, v18 offset:{64*q}")
                a(f"ds_read_b128 {vr(HF+8+4*q,4)}, v19 offset:{64*q}")
            else:
                a(f"ds_read_b128 {vr(HF+4*q,4)}, v10 offset:{64*q}")
        a(f"s_waitcnt lgkmcnt({nd//2})")
        mms(0)
        a("s_waitcnt lgkmcnt(0)")
        perms(1, 2)
        perms(1, 3)
        a.stamp(4)
        mms(1)
        O = 88
        for r in range(nd):
            for j in range(4):
                if nd == 4:
                    a(f"v_perm_b32 v{O+4*r+j}, v{AC+4*j+r}, v17, s{60+j}")
                else:
                    a(f"v_cndmask_b32 v{O+4*r+j}, v{AC+4*j+2*r}, v{AC+4*j+2*r+1}, s[56:57]")
            if nd == 2:
                for j in range(4):
                    a(f"v_perm_b32 v{O+4*r+j}, v{O+4*r+j}, v17, s{60+j}")
            a(f"s_mov_b32 s12, {18432*r}")
            a(f"buffer_store_dwordx4 {vr(O+4*r,4)}, v11, s[52:55], s12 offen sc1")
        a.stamp(6)
        a.end()
    a("v_lshl_add_u32 v8, v3, 4, v8")
    a("s_lshl_b32 s8, s3, 8")
    a("s_add_u32 s13, s13, s8")
    a("s_lshl_b32 s8, s3, 5")
    a("v_lshl_add_u32 v6, v4, 3, v7")
    a("v_add_u32 v6, s8, v6")
    a("v_mul_u32_u24 v6, 9216, v6")
    a("v_add_u32 v11, v6, v11")
    a.spin(F_X, 0, 17, op="lg", sleep=2)
    a.spin(F_D, 3 if E("DE", 4) else 4, 12, sleep=1)
    a("s_setprio 2")
    down(4)
    a.lab("F_DN2")
    a("v_lshl_add_u32 v8, v3, 3, v8")
    a("s_add_u32 s13, s13, 1024")
    a("v_lshl_add_u32 v6, v4, 2, v7")
    a("v_add_u32 v6, 128, v6")
    a("v_mul_u32_u24 v6, 9216, v6")
    a("v_add_u32 v11, v6, v11")
    a.spin(F_X, 0, 17, op="lg")
    down(2)


def helper(a):
    a.lab("HELPER")
    if not HPN:
        a.end()
        return
    if E("TOUCH", 0):
        a(f"s_cmp_lg_u32 s3, {2+HPW}")
        a("s_cbranch_scc1 H_NT")
        a("v_lshlrev_b32 v5, 19, v3")
        a("v_min_u32 v6, 5308412, v5")
        a("v_min_u32 v5, 2359292, v5")
        a("s_waitcnt lgkmcnt(0)")
        a.b0(13)
        a(f"global_load_dword v8, v6, {sr(P_WD,2)}")
        a(f"global_load_dword v9, v5, {sr(P_OUT,2)}")
        a.lab("H_NT")
    a(f"s_cmp_ge_u32 s3, {2+HPW}")
    a("s_cbranch_scc1 K_END")
    a("s_and_b32 s12, s3, 1")
    a("s_sub_u32 s13, s3, 2")
    a("s_lshr_b32 s13, s13, 1")
    a("s_mul_i32 s13, s13, 5")
    a("s_add_u32 s13, s13, s5")
    a(f"s_add_u32 s13, s13, {(HPS-NJF) & 0xffffffff}")
    prefetch(a, HPN, E("HH", 0))
    if STAMP:
        a("s_waitcnt vmcnt(0)")
        a.stamp(1)
    a.end()


DSK, EXPN = 166, 167
PA, PB, A16, PC, PD, A32, E2, EF = 104, 108, 112, 116, 120, 124, 128, 152


def cmul(a, d, x, y):
    a(f"v_pk_mul_f32 {vr(d,2)}, {vr(x,2)}, {vr(y,2)} op_sel:[0,0] op_sel_hi:[0,1]")
    a(f"v_pk_fma_f32 {vr(d,2)}, {vr(x,2)}, {vr(y,2)}, {vr(d,2)} op_sel:[1,1,0] op_sel_hi:[1,0,1] neg_lo:[0,1,0]")


def kgen_head(a):
    a.lab("C_KGEN")
    a.fine(6)
    PR = 16
    a("s_and_b32 s4, s2, 7")
    a("s_mul_i32 s7, s4, 18")
    a("s_add_u32 s7, s7, s5")
    a(f"s_sub_u32 s7, s7, {NJH}")
    a("s_and_b32 s12, s3, 3")
    a("s_lshr_b32 s13, s3, 2")
    a("s_lshl2_add_u32 s8, s7, s12")
    a("s_lshl1_add_u32 s8, s8, s13")
    a("s_lshl_b32 s8, s8, 7")
    a("v_lshl_add_u32 v5, v2, 1, s8")
    for k in range(3):
        a(f"v_mov_b64 {vr(PR+2*k,2)}, 0")
    a("s_lshl_b32 s55, s7, 3")
    a("s_waitcnt lgkmcnt(0)")
    a.fine(7)
    a(f"s_load_dwordx2 s[58:59], {sr(P_LDT,2)}, s55")
    for k, p in enumerate([P_ARE, P_AIM, P_BRE, P_BIM, P_CRE, P_CIM]):
        a(f"global_load_short_d16_hi v{PR+k}, v5, {sr(p,2)}")
    a.stamp(22)
    a.b0()
    a("s_branch C_KBODY")


def kgen(a):
    a.lab("C_KBODY")
    PR = 16
    a(f"s_load_dwordx2 s[68:69], {sr(P_DSK,2)}, s55")
    a("s_setprio 2")
    a("v_and_b32 v3, 15, v2")
    a("v_lshrrev_b32 v4, 4, v2")
    a("s_and_b32 s4, s2, 7")
    a(f"s_mul_i32 s15, s3, {KTS}")
    a(f"s_add_u32 s15, s15, {KT}")
    a(f"s_mul_i32 s52, s12, {4*CS}")
    a(f"s_add_u32 s52, s52, {KC}")
    a(f"s_mul_i32 s53, s12, {US}")
    a(f"s_add_u32 s53, s53, {UP}")
    a(f"v_mul_u32_u24 v7, {TS}, v3")
    a("v_lshl_add_u32 v7, v4, 4, v7")
    a("v_add_u32 v7, s15, v7")
    a("s_mov_b32 m0, s15")
    a.lab("C_SETD")
    a.fine(8)
    a("s_waitcnt lgkmcnt(0)")
    a.auto(True)
    a("s_lshl_b32 s8, s12, 4")
    a("s_lshr_b64 s[58:59], s[58:59], s8")
    a("s_lshl_b32 s8, s58, 16")
    a("v_mov_b32 v44, s8")
    a(f"v_mul_f32 v45, {L2E:#x}, v44")
    a(f"v_mov_b32 v46, {L2E:#x}")
    a("v_fma_f32 v46, v44, v46, -v45")
    a(f"v_mov_b32 v47, {L2E_LO:#x}")
    a("v_fma_f32 v46, v44, v47, v46")
    a("v_exp_f32 v45, v45")
    a(f"v_mul_f32 v46, {LN2:#x}, v46")
    a("v_fma_f32 v45, v45, v46, v45")
    a("v_cvt_pk_bf16_f32 v45, v45, v45")
    DT, DTL, DTR = 36, 37, 38
    a(f"v_and_b32 v{DT}, 0xffff0000, v45")
    a(f"v_mul_f32 v{DTL}, {L2E:#x}, v{DT}")
    a(f"v_mul_f32 v{DTR}, {INV2PI:#x}, v{DT}")
    a("s_waitcnt vmcnt(0)")
    a.stamp(1)
    if STAMP and E("CLK2"):
        a("s_memtime s[90:91]")
    ZR, ZI, WR = 40, 41, 42
    a(f"v_mul_f32 v{ZR}, v{PR}, v{DTL}")
    a(f"v_mul_f32 v{ZI}, v{PR+1}, v{DTR}")
    T0 = 24

    def direct(dst, c):
        if c != 1:
            a(f"v_mul_f32 v{dst}, {fbits(c):#x}, v{ZR}")
            a(f"v_mul_f32 v{dst+1}, {fbits(c):#x}, v{ZI}")
        a(f"v_exp_f32 v{T0}, v{dst if c != 1 else ZR}")
        a(f"v_fract_f32 v{dst+1}, v{dst+1 if c != 1 else ZI}")
        a(f"v_cos_f32 v{dst}, v{dst+1}")
        a(f"v_sin_f32 v{dst+1}, v{dst+1}")
        a(f"v_mul_f32 v{dst}, v{T0}, v{dst}")
        a(f"v_mul_f32 v{dst+1}, v{T0}, v{dst+1}")
    PW, R1 = 46, 44
    pc = lambda c: PW + 2 * (c - 1)
    direct(pc(1), 1)
    a(f"v_mul_f32 v{PR+2}, v{PR+2}, v{DT}")
    a(f"v_mul_f32 v{PR+3}, v{PR+3}, v{DT}")
    cmul(a, WR, PR + 4, PR + 2)
    a(f"v_max_f32 v39, |v{WR}|, |v{WR+1}|")
    side = wave_max_steps(39) + ["v_readlane_b32 s8, v39, 63"]
    OT = [26, 27, 28, 29]
    cnt = [0]

    pend = []

    def flush():
        while pend:
            a(pend.pop(0))

    def emit(row, x):
        o = OT[cnt[0] % 4]
        cnt[0] += 1
        flush()
        a(f"v_cvt_pk_f16_f32 v{o}, v{x}, v{x+1}")
        pend.append(f"ds_write_addtid_b32 v{o} offset:{row*TS}")
    cmul(a, pc(2), pc(1), pc(1))
    cmul(a, pc(4), pc(2), pc(2))
    Q1, QA, QB = 60, 62, 64
    cmul(a, Q1, pc(4), pc(4))
    a(f"v_mov_b32 v30, 0x3c00")
    a(f"v_xor_b32 v{Q1+1}, 0x80000000, v{Q1+1}")
    a("ds_write_addtid_b32 v30")
    emit(1, Q1)
    cur, nxt = Q1, QA
    for b in range(2, 16):
        cmul(a, nxt, cur, Q1)
        if side:
            a(side.pop(0))
        emit(b, nxt)
        cur, nxt = nxt, (QB if nxt == QA else QA)
    a("s_lshr_b32 s8, s8, 23")
    a("s_sub_u32 s8, 258, s8")
    a("s_min_u32 s54, s8, 253")
    a("s_lshl_b32 s8, s54, 23")
    a(f"v_mul_f32 v{WR}, s8, v{WR}")
    a(f"v_mul_f32 v{WR+1}, s8, v{WR+1}")
    QF, PF, KA = 72, 88, 104
    flush()
    for ks in range(4):
        a(f"ds_read_b128 {vr(QF+4*ks,4)}, v7 offset:{64*ks}")
    direct(R1, 128)
    cmul(a, pc(3), pc(2), pc(1)); cmul(a, pc(5), pc(4), pc(1)); cmul(a, pc(6), pc(3), pc(3)); cmul(a, pc(7), pc(6), pc(1))
    CH = [66, 68]
    YC = [60, 62]
    state = {"cur": WR, "k": 0, "y": 0}

    def adv():
        n = CH[state["k"] & 1]
        cmul(a, n, state["cur"], R1)
        state["cur"] = n; state["k"] += 1

    def row(r, c):
        if c == 0:
            emit(r, state["cur"])
        else:
            y = YC[state["y"] & 1]; state["y"] += 1
            cmul(a, y, state["cur"], pc(c))
            emit(r, y)

    def rd():
        flush()
        for ks in range(4):
            a(f"ds_read_b128 {vr(PF+4*ks,4)}, v7 offset:{64*ks}")

    def mm(t, ks):
        a(f"v_mfma_f32_16x16x32_f16 {vr(KA+4*t,4)}, {vr(PF+4*ks,4)}, {vr(QF+4*ks,4)}, {vr(KA+4*t,4) if ks else 0}")
    for h in range(2):
        for c in range(8):
            row(8 * h + c, c)
        adv()
    rd()
    for h in range(2):
        for c in range(4):
            row(4 * h + c, 2 * c)
            if h == 1:
                mm(0, c)
        adv()
    for q in range(4):
        row(8 + 2 * q, 0); row(9 + 2 * q, 4)
        adv()
    rd()
    for q in range(9):
        row(q, 0)
        if q < 8:
            adv()
        if 4 <= q < 8:
            mm(1, q - 4)
    rd()
    a("v_lshl_add_u32 v8, v2, 4, s15")
    for ks in range(4):
        mm(2, ks)
    a.auto(False)
    a.stamp(2)
    if STAMP and E("CLK2"):
        a("s_memtime s[96:97]")
    a("s_lshl_b32 s8, s12, 2")
    a(f"s_add_u32 s8, s8, {F_PAIR}")
    a("v_mov_b32 v9, s8")
    a("s_cmp_eq_u32 s13, 0")
    a("s_cbranch_scc1 C_KA")
    for t in range(3):
        a(f"ds_write_b128 v8, {vr(KA+4*t,4)} offset:{1024*t}")
    a("v_mov_b32 v10, s54")
    a("ds_write_b32 v9, v10")
    a.stamp(3)
    a("s_setprio 0")
    a("v_and_b32 v14, 3, v3")
    a("v_sub_u32 v14, 3, v14")
    a(f"v_mul_u32_u24 v14, {CS}, v14")
    a("v_lshrrev_b32 v13, 2, v3")
    a("v_lshl_add_u32 v13, v4, 1, v13")
    a("v_lshl_add_u32 v14, v13, 3, v14")
    a("v_add3_u32 v5, v14, s52, 8")
    a("v_lshlrev_b32 v14, 1, v3")
    a("v_sub_u32 v14, v4, v14")
    a("v_lshlrev_b32 v14, 4, v14")
    a(f"s_add_u32 s8, s53, {4064-512*7}")
    a("v_add_u32 v6, s8, v14")
    a("v_lshl_add_u32 v14, v3, 2, v4")
    a(f"s_mul_i32 s8, s12, {OS}")
    a(f"s_add_u32 s8, s8, {OP+4088-512*7}")
    a("v_lshlrev_b32 v14, 3, v14")
    a("v_sub_u32 v7, s8, v14")
    a.spin(F_H, 1, 10, prio=E("BSP", 3), sleep=1)
    a.spin(f"v9 offset:{F_K-F_PAIR}", 0, 10, op="lg", sleep=E("BSS", 0))
    a.stamp(4)
    gphase(a, 0)
    a.lab("C_KA")
    a("s_setprio 1")
    a("v_and_b32 v14, 3, v3")
    a("v_sub_u32 v14, 3, v14")
    a(f"v_mul_u32_u24 v14, {CS}, v14")
    a("v_lshrrev_b32 v13, 2, v3")
    a("v_lshl_add_u32 v13, v4, 1, v13")
    a("v_lshl_add_u32 v14, v13, 3, v14")
    a("v_add3_u32 v5, v14, s52, 8")
    a("v_lshlrev_b32 v14, 1, v3")
    a("v_sub_u32 v14, v4, v14")
    a("v_lshlrev_b32 v14, 4, v14")
    a(f"s_add_u32 s8, s53, {4064-512*7}")
    a("v_add_u32 v6, s8, v14")
    a("v_lshl_add_u32 v14, v3, 2, v4")
    a(f"s_mul_i32 s8, s12, {OS}")
    a(f"s_add_u32 s8, s8, {OP+4088-512*7}")
    a("v_lshlrev_b32 v14, 3, v14")
    a("v_sub_u32 v7, s8, v14")
    a("v_lshrrev_b32 v11, 1, v4")
    a("v_and_b32 v12, 1, v4")
    a("v_lshlrev_b32 v11, 8, v11")
    a("v_lshl_add_u32 v11, v12, 3, v11")
    a("v_lshl_add_u32 v11, v3, 4, v11")
    a("v_add_u32 v11, s15, v11")
    a("v_cmp_gt_u32 vcc, 2, v4")
    a("v_lshlrev_b32 v12, 2, v3")
    a("v_lshlrev_b32 v13, 3, v3")
    a("v_cndmask_b32 v12, v12, v13, vcc")
    a("v_lshl_add_u32 v12, v4, 7, v12")
    a("v_add_u32 v12, s15, v12")
    a("v_mov_b32 v13, 64")
    a("v_cndmask_b32 v13, v13, 4, vcc")
    a("v_add_u32 v13, v13, v12")
    a("v_lshlrev_b32 v14, 1, v3")
    a("v_lshl_add_u32 v14, v4, 7, v14")
    a("v_add_u32 v14, s15, v14")
    a("v_lshlrev_b32 v15, 4, v2")
    a("v_lshlrev_b32 v16, 3, v2")
    a("v_add_u32 v16, 256, v16")
    a("v_min_u32 v15, v15, v16")
    a("v_add_u32 v15, s15, v15")
    EB, E2B = 2048, 3072
    a("v_min_u32 v16, 15, v2")
    a("v_lshl_add_u32 v16, v16, 2, s15")
    a("v_lshrrev_b32 v26, 5, v2")
    a("v_lshlrev_b32 v26, 8, v26")
    a("v_lshl_add_u32 v26, v2, 2, v26")
    a("v_add_u32 v26, s15, v26")
    a("v_lshlrev_b32 v17, 2, v4")
    a("v_sub_u32 v17, v3, v17")
    a("v_lshl_add_u32 v27, v17, 3, s15")
    a(f"v_add_u32 v27, {E2B+104}, v27")
    a("v_lshl_add_u32 v17, v17, 2, s15")
    a(f"v_add_u32 v17, {EB+52}, v17")
    a("v_lshl_add_u32 v19, v2, 4, s52")
    a("s_mov_b32 s56, 0x01000100")
    a("s_mov_b32 s57, 0x03020302")
    a("s_lshl_b32 s8, s12, 4")
    a("s_lshr_b64 s[68:69], s[68:69], s8")
    a("s_lshl_b32 s68, s68, 16")
    a("s_sub_u32 s58, 254, s54")
    a("s_lshl_b32 s58, s58, 23")
    for r in range(12):
        a(f"v_mul_f32 v{KA+r}, s58, v{KA+r}")
    a("s_mov_b64 exec, 1")
    a(f"v_add_f32 v{KA}, s68, v{KA}")
    a("s_mov_b64 exec, -1")
    for r in (3, 7, 10, 11, 14, 15):
        a(f"v_mov_b32 v{72+r}, 0")
    a("v_lshlrev_b32 v28, 4, v2")
    a(f"v_add_u32 v28, {PM}, v28")
    a.spin(F_PM, 2, 18)
    for k, r in ((2, PC), (3, PD), (4, A32)):
        a(f"ds_read_b128 {vr(r,4)}, v28 offset:{1024*k}")
    a.spin("v9", 0, 18, prio=2, op="lg")
    a("s_sub_u32 s60, 254, s8")
    a("s_lshl_b32 s60, s60, 23")
    a.auto(True)
    for t in range(3):
        a(f"ds_read_b128 {vr(PF+4*t,4)}, v8 offset:{4*KTS+1024*t}")
    for t in range(3):
        for p in range(2):
            r = 4 * t + 2 * p
            a(f"v_pk_fma_f32 {vr(KA+r,2)}, {vr(PF+r,2)}, s[60:61], {vr(KA+r,2)} op_sel_hi:[1,0,1]")
            a(f"v_cvt_pk_bf16_f32 v{20+2*t+p}, v{KA+r}, v{KA+r+1}")
        if t == 0:
            a("ds_write_b64 v11, v[20:21]")
        elif t == 1:
            a("ds_write_b32 v12, v22 offset:512")
            a("ds_write_b32 v13, v23 offset:512")
            S = 32
            for p in range(2):
                a(f"ds_read_b64 {vr(S+2*p,2)}, v15 offset:{8*p}")
    a("s_mov_b32 exec_lo, 0")
    a(f"v_alignbit_b32 v{S+3}, v{S+2}, v{S+1}, 16")
    a(f"v_perm_b32 v{S+2}, v{S+1}, v{S+1}, s56")
    a(f"v_alignbit_b32 v{S+1}, v{S+1}, v{S}, 16")
    a(f"v_perm_b32 v{S}, v{S}, v{S}, s56")
    a("s_mov_b32 exec_lo, -1")
    a(f"ds_write_b128 v19, {vr(S,4)} offset:32")
    a(f"v_mov_b32_dpp v{S-2}, v{S+2} wave_shr:1 {DPPF} bound_ctrl:0")
    a(f"v_mov_b32_dpp v{S-1}, v{S+3} wave_shr:1 {DPPF} bound_ctrl:0")
    C1, C2, C3 = 44, 52, 60
    for p in range(4):
        a(f"v_alignbit_b32 v{C1+p}, v{S+p}, v{S+p-1}, 16")
    a(f"ds_write_b128 v19, {vr(C1,4)} offset:{CS+32}")
    for p in range(4):
        a(f"v_mov_b32 v{C2+p}, v{S+p-1}")
    a(f"ds_write_b128 v19, {vr(C2,4)} offset:{2*CS+32}")
    for p in range(4):
        a(f"v_alignbit_b32 v{C3+p}, v{S+p-1}, v{S+p-2}, 16")
    a(f"ds_write_b128 v19, {vr(C3,4)} offset:{3*CS+32}")
    a("v_mov_b32 v10, 1")
    a(f"ds_write_b32 v9, v10 offset:{F_K-F_PAIR}")
    a.stamp(3)
    a(f"s_setprio {E('GPL', 3)}")
    TL = 72
    a(f"v_perm_b32 v{TL+1}, v{S+3}, v{S+3}, s57")
    a(f"v_alignbit_b32 v{TL}, v{S+3}, v{S+2}, 16")
    a(f"v_lshrrev_b32 v{TL+6}, 16, v{S+3}")
    a(f"v_mov_b32 v{TL+4}, v{S+3}")
    for r in (2, 5, 8, 9, 12):
        a(f"v_mov_b32 v{TL+r}, v{TL+1}")
    a(f"v_mov_b32 v{TL+13}, v{TL+6}")
    a("s_mov_b32 exec_lo, 0")
    for r in range(4):
        a(f"ds_write_b16{'_d16_hi' if r&1 else ''} v{12+(r>>1)}, v{22+(r>>1)} offset:{E2B-130+2*(r&1)}")
    a("s_mov_b32 exec_hi, 0x80000000")
    for j in range(4):
        a(f"ds_write_b128 v19, {vr(TL+4*(3-j),4)} offset:{j*CS+48}")
    a("s_mov_b64 exec, 1")
    a(f"ds_write_b16 v14, v24 offset:{E2B+382}")
    a("s_mov_b64 exec, -1")
    a(f"ds_write_b32 v26, v1 offset:{E2B}")
    for r in range(4):
        a(f"ds_write_b16{'_d16_hi' if r&1 else ''} v14, v{24+(r>>1)} offset:{EB+62+32*r}")
    a(f"ds_write_b32 v16, v1 offset:{EB}")
    a("v_readlane_b32 s59, v24, 0")
    a("v_mov_b32 v11, v27")
    a("v_mov_b32 v12, v17")
    a("v_mov_b32 v13, v28")
    a("s_pack_ll_b32_b16 s59, s59, s59")
    a.auto(False)
    a.spin(F_H, 2, 10, sleep=1)
    a.stamp(4)
    gphase(a, 1)


def gphase(a, isA):
    M = "v_mfma_f32_16x16x32_bf16"
    rdA = lambda m, d: [f"ds_read_b64 {vr(d,2)}, v5 offset:{64*m}", f"ds_read_b64 {vr(d+2,2)}, v5 offset:{64*m+8}"]
    rdB = lambda b, rho, d, extra=0: f"ds_read_b128 {vr(d,4)}, v6 offset:{512*(7-b)+64*rho+extra}"
    slot = lambda t: 1024 * (t - 2) if t < 6 else 4 * KTS + 1024 * (t - 6)

    def emit(main, fill=[], per=2, skip=0):
        for x in interleave(main, fill, per=per, skip=skip):
            a(x)
    if isA:
        a(f"s_setprio {E('GPA', 1)}")
        AC = 16
        acc = lambda t: vr(AC + 4 * (t - 2), 4)
        started = set()

        def mf(t, A, B):
            c = acc(t) if t in started else "0"
            started.add(t)
            return f"{M} {acc(t)}, {vr(A,4)}, {vr(B,4)}, {c}"
        U = lambda b: 40 + 8 * (b & 1)
        Z = lambda b: 56 + 24 * (b & 1)
        urd = lambda b: [rdB(b, 0, U(b)), rdB(b, 0, U(b) + 4, 16)]
        PL = [(0, PC), (0, PD), (1, PC), (1, PD), (0, PA), (1, PB)]
        pool2 = lambda b: [f"{M} {vr(Z(b)+4*k,4)}, {vr(U(b)+4*h,4)}, {vr(P,4)}, 0" for k, (h, P) in enumerate(PL) if k < 4] + [mf(b + 2, A16, U(b))]
        pool3 = lambda b: [f"{M} {vr(Z(b)+4*k,4)}, {vr(U(b)+4*h,4)}, {vr(P,4)}, 0" for k, (h, P) in enumerate(PL) if k >= 4] + [mf(b + 4, A32, U(b))] if b < 4 else []
        cvt = lambda b, fs: [f"v_cvt_pk_bf16_f32 v{Z(b)+8*f+r}, v{Z(b)+8*f+r}, v{Z(b)+8*f+4+r}" for f in fs for r in range(4)]
        use2 = lambda b, lo, hi: [mf(b + 2 + D, Z(b) + 8 * f, E2 + 8 * D + 4 * f) for D in range(3) if lo <= b + 2 + D < min(hi, 8) for f in range(2)]
        use3 = lambda b: [mf(t, Z(b) + 16, EF + 4 * (t - b - 4)) for t in range(b + 4, 8)]
        hand = lambda t: [f"ds_write_b128 v8, {acc(t)} offset:{slot(t)}", f"v_mov_b32 v10, {t}", f"ds_write_b32 v9, v10 offset:{F_I-F_PAIR}"]
        e2rd = lambda D: [x for f in range(2) for x in (f"ds_read2_b32 {vr(E2+8*D+4*f,2)}, v11 offset0:{32*D+6+f} offset1:{32*D+4+f}",
                                                        f"ds_read2_b32 {vr(E2+8*D+4*f+2,2)}, v11 offset0:{32*D+2+f} offset1:{32*D+f}")]
        efrd = [x for D in range(4) for x in (f"ds_read2_b32 {vr(EF+4*D,2)}, v12 offset0:{16*D+3} offset1:{16*D+2}",
                                              f"ds_read2_b32 {vr(EF+4*D+2,2)}, v12 offset0:{16*D+1} offset1:{16*D}")]
        a.auto(True)
        emit(urd(0) + urd(1) + rdA(16, A16) + e2rd(0))
        for p in range(4):
            a(f"v_and_b32 v{A32+p}, s59, v{A32+p}")
        emit(pool2(0), e2rd(1) + [f"ds_read_b128 {vr(PA,4)}, v13", f"ds_read_b128 {vr(PB,4)}, v13 offset:1024"], per=1)
        emit(pool2(1), cvt(0, (0, 1)))
        emit(use2(0, 2, 4), cvt(1, (0, 1)))
        emit(use2(1, 2, 4) + pool3(0) + pool3(1), e2rd(2) + hand(2) + efrd + hand(3), per=2)
        a.auto(False)
        a.spin(F_H, 4, 10, sleep=1)
        a(f"s_setprio {E('GPA2', 3)}")
        a.auto(True)
        emit(urd(2) + urd(3) + use2(0, 4, 8) + use2(1, 4, 8), cvt(0, (2,)) + cvt(1, (2,)))
        emit(pool2(2) + use3(0) + use3(1))
        emit(pool2(3) + pool3(2), cvt(2, (0, 1)))
        emit(use2(2, 4, 8) + pool3(3), cvt(3, (0, 1)) + cvt(2, (2,)) + hand(4))
        emit(use2(3, 4, 8) + use3(2), cvt(3, (2,)) + ["s_nop 0"] * 4 + hand(5))
        emit(use3(3))
        a.auto(False)
        a.stamp(5)
        a(f"s_setprio {E('GPA3', 3)}")
        a.spin(F_H, 6, 10, sleep=1)
        a.auto(True)
        emit(urd(4) + urd(5) + pool2(4))
        emit(pool2(5), cvt(4, (0, 1)))
        emit(use2(4, 4, 8), cvt(5, (0, 1)))
        emit(use2(5, 4, 8) + hand(6) + hand(7))
        a.auto(False)
        a.stamp(7)
        a.end()
        return
    a(f"s_setprio {E('GPB', 2)}")
    AF, BF, NB = 40, 104, 6
    acc = lambda t: 16 + 4 * (t % 3)
    a(f"v_subrev_u32 v8, {4*KTS}, v8")
    a("v_cmp_eq_u32 vcc, 0, v2")
    a(f"v_mov_b32 v13, {F_O}")
    a("v_cndmask_b32 v12, 0, 1, vcc")
    a("v_lshlrev_b32 v14, 2, v2")
    a(f"v_add_u32 v14, {PM+5120}, v14")
    a("v_cndmask_b32 v13, v14, v13, vcc")
    stage = {1: 0, 3: 1, 5: 2, 6: 3, 7: 4}

    PT = 32

    def yout(t):
        o = [f"v_add_f32 v{acc(t)+r}, v{acc(t)+r}, v{PT+r}" for r in range(4)] if t >= 2 else []
        o += [f"v_cvt_pk_bf16_f32 v30, v{acc(t)+3}, v{acc(t)+2}", f"v_cvt_pk_bf16_f32 v31, v{acc(t)+1}, v{acc(t)}",
              f"ds_write_b64 v7, v[30:31] offset:{512*(7-t)}"]
        if t in stage:
            o.append(f"ds_add_u32 v13, v12 offset:{4*stage[t]}")
        return o
    bf = lambda n: BF + 4 * (n % NB)
    rdn = lambda n: rdB(n >> 3, n & 7, bf(n))
    part = lambda t: [f"ds_read_b128 {vr(PT,4)}, v8 offset:{slot(t)}"] if t >= 2 else []
    a.auto(True)
    emit(rdA(0, AF) + [rdn(0)] + rdA(8, AF + 32) + [rdn(1)] + rdA(1, AF + 4) + rdA(9, AF + 36) + [rdn(2), rdn(3)])
    for b in range(8):
        y = yout(b - 1) if b else []
        for rho in range(8):
            n = 8 * b + rho
            f0, f1 = [], []
            if b == 0 and rho < 6:
                f0, f1 = rdA(rho + 2, AF + 4 * (rho + 2)), rdA(rho + 10, AF + 32 + 4 * (rho + 2))
            if b and rho in (2, 3):
                f0, f1, y = y[:2], y[2:4], y[4:]
            if rho == 4:
                f0 = f0 + [f"ds_read_b32 v28, v1 offset:{F_H}", f"ds_read_b32 v29, v9 offset:{F_I-F_PAIR}"]
            if rho == 5:
                f0 = f0 + part(b)
            if rho == 6:
                f1 = f1 + ["v_readfirstlane_b32 s9, v29"]
            if rho == 7:
                f0 = f0 + ["v_readfirstlane_b32 s8, v28", "s_add_u32 s9, s9, 2"]
                if b < 2:
                    f1 = f1 + [f"s_cmp_lt_u32 s8, {b+2}"]
                elif b < 7:
                    f1 = f1 + ["s_min_u32 s8, s8, s9", f"s_cmp_lt_u32 s8, {b+2}"]
                else:
                    f1 = f1 + ["s_cmp_lt_u32 s9, 9"]
            if n + 4 < 64:
                f1 = [rdn(n + 4)] + f1
            a(f"{M} {vr(acc(b),4)}, {vr(AF+4*rho,4)}, {vr(bf(n),4)}, {vr(acc(b),4) if n else 0}")
            emit(f0)
            if b < 7:
                a(f"{M} {vr(acc(b+1),4)}, {vr(AF+32+4*rho,4)}, {vr(bf(n),4)}, {vr(acc(b+1),4) if rho else 0}")
            emit(f1)
        a(f"s_cbranch_scc1 C_SLOW{b}")
        a.lab(f"KEEP_P{b}")
        if b == 3:
            a.stamp(5)
            if STAMP and E("CLK"):
                a("s_memtime s[82:83]")
    a.stamp(6)
    if STAMP and E("CLK"):
        a("s_memtime s[84:85]")
    emit(yout(7))
    a.auto(False)
    a.stamp(7)
    a(f"ds_read_b32 v10, v1 offset:{F_X}")
    a("s_cmp_eq_u32 s3, 4")
    a("s_cbranch_scc1 C_FIN")
    a.end()
    for b in range(8):
        a.lab(f"C_SLOW{b}")
        if b < 7:
            a.spin(F_H, b + 2, 28)
        if b >= 2:
            a.spin(f"v9 offset:{F_I-F_PAIR}", b, 28)
        for x in part(b) + ([rdn(8 * b + 8 + k) for k in range(4)] if b < 7 else []):
            a(x)
        a("s_waitcnt lgkmcnt(0)")
        a(f"s_branch KEEP_P{b}")


XD, GD = 40, 56
VX, VY, VG, VO = 72, 73, 74, 78


def epi_setup(a):
    srd(a, 60, P_OUT, 2359296)
    a("v_bfe_u32 v79, v2, 2, 2")
    a("v_and_b32 v80, 3, v2")
    a("v_lshl_add_u32 v80, v4, 2, v80")
    a("s_lshl_b32 s8, s12, 7")
    for d, base, stride in ((VX, UP, US), (VY, OP, OS)):
        a(f"v_mul_u32_u24 v{d}, {stride}, v79")
        a(f"v_lshl_add_u32 v{d}, v80, 3, v{d}")
        a(f"s_sub_u32 s9, {base+3968-512*7}, s8")
        a(f"v_add_u32 v{d}, s9, v{d}")
    a("v_xor_b32 v79, 63, v2")
    a("s_lshl_b32 s8, s12, 9")
    a(f"s_add_u32 s8, s8, {WS_G}")
    a(f"v_lshl_add_u32 v{VG}, v79, 3, s8")
    for k in range(1, 4):
        a(f"v_add_u32 v{VG+k}, {4096*k}, v{VG}")
    a(f"v_mul_u32_u24 v{VO}, 1152, v79")
    a(f"v_add_u32 v{VO}, s55, v{VO}")
    a("s_mul_i32 s68, s12, 73728")
    a("s_mov_b32 s70, 0x05040100")
    a("s_mov_b32 s71, 0x07060302")


def epi_x(a, ks):
    for k in ks:
        a(f"ds_read_b64_tr_b16 {vr(XD+2*k,2)}, v{VX} offset:{512*(7-k)}")


def epi_g(a):
    l = a.uid("GP")
    a("s_mov_b32 s9, 0")
    a.lab(l)
    a(f"v_xor_b32 v14, v{GD+1}, v10")
    for k in range(1, 8):
        a(f"v_bitop3_b32 v14, v14, v{GD+2*k+1}, v10 bitop3:0xf6")
    a("v_cmp_ne_u32 vcc, 0, v14")
    a("s_add_u32 s9, s9, 1")
    a("s_cmp_eq_u64 vcc, 0")
    a(f"s_cbranch_scc1 {l}_D")
    a(f"s_cmp_ge_u32 s9, {SPIN}")
    a(f"s_cbranch_scc1 {l}_D")
    epi_gl(a)
    a("s_waitcnt vmcnt(0)")
    a(f"s_branch {l}")
    a.lab(l + "_D")


def epi_gl(a):
    for k in range(8):
        a(f"global_load_dwordx2 {vr(GD+2*k,2)}, v{VG+(k>>1)}, {sr(P_WS,2)} offset:{2048*(k&1)} sc1")


TX = 120


def epi_unp(a, ks):
    for k in ks:
        if k < NF:
            for p in range(2):
                a(f"v_lshlrev_b32 v{TX+4*k+2*p}, 16, v{XD+2*k+p}")
                a(f"v_and_b32 v{TX+4*k+2*p+1}, 0xffff0000, v{XD+2*k+p}")


def epi_mul(a, ks):
    for k in ks:
        if k < NF:
            a(f"v_and_b32 v{16+(k&3)}, 0xffff0000, v{GD+2*k}")
            a(f"v_lshlrev_b32 v{GD+2*k+1}, 16, v{GD+2*k}")
            for c in range(4):
                a(f"v_mul_f32 v{TX+4*k+c}, v{TX+4*k+c}, v{16+(k&3)}")


def epi_fin(a, ks, stage):
    a.spin(F_O + 4 * stage, 4, 15, sleep=E("OSL", 1), prio=E("IOP", 3))
    a.auto(True)
    Y = 16
    for n, k in enumerate(ks):
        a(f"ds_read_b64_tr_b16 {vr(Y+2*n,2)}, v{VY} offset:{512*(7-k)}")
    for n0 in range(0, len(ks), 2):
        pr = [(n, ks[n], 24 + 4 * n) for n in (n0, n0 + 1) if n < len(ks)]
        if ks[n0] < NF:
            for n, k, R in pr:
                for p in range(2):
                    a(f"v_lshlrev_b32 v{R+2*p}, 16, v{Y+2*n+p}")
                    a(f"v_and_b32 v{R+2*p+1}, 0xffff0000, v{Y+2*n+p}")
                for c in range(4):
                    a(f"v_fma_f32 v{R+c}, v{R+c}, v{GD+2*k+1}, v{TX+4*k+c}")
        else:
            for n, k, R in pr:
                for c in range(4):
                    a(f"v_perm_b32 v{R+c}, v{XD+2*k+(c>>1)}, v{Y+2*n+(c>>1)}, s{70+(c&1)}")
            for n, k, R in pr:
                for c in range(4):
                    a(f"v_dot2_f32_bf16 v{R+c}, v{R+c}, v{GD+2*k}, 0")
        for n, k, R in pr:
            for p in range(2):
                a(f"v_cvt_pk_bf16_f32 v{XD+2*k+p}, v{R+2*p}, v{R+2*p+1}")
            if not E("NOST"):
                a(f"buffer_store_dwordx2 {vr(XD+2*k,2)}, v{VO}, s[60:63], s68 offen")
            a("s_add_u32 s68, s68, 294912")
    a.auto(False)


def burst_addr(a):
    a(f"s_sub_u32 s9, s5, {NJH}")
    if GORD:
        a("s_mul_i32 s9, s9, 3")
        a("s_min_u32 s8, s12, 2")
        a("s_add_u32 s9, s9, s8")
        a("s_mul_i32 s9, s9, 12288")
        a("s_mul_i32 s8, s4, 663552")
        a("s_add_u32 s8, s8, s9")
        a("v_lshl_add_u32 v88, v2, 7, s8")
        a("v_min_u32 v89, 31, v2")
        a("v_lshl_add_u32 v89, v89, 7, s8")
        a("v_add_u32 v89, 8192, v89")
        return
    a("s_lshl_b32 s9, s9, 2")
    a("s_add_u32 s9, s9, s12")
    a("s_mul_i32 s9, s9, 9216")
    a("s_mul_i32 s8, s4, 663552")
    a("s_add_u32 s8, s8, s9")
    if BL == 72:
        a("v_lshl_add_u32 v88, v2, 7, s8")
        a("v_min_u32 v89, 7, v2")
        a("v_lshl_add_u32 v89, v89, 7, s8")
        a("v_add_u32 v89, 8192, v89")
    else:
        a(f"s_add_u32 s8, s8, {128*(72-BL)}")
        a(f"v_min_u32 v88, {BL-1}, v2")
        a("v_lshl_add_u32 v88, v88, 7, s8")


def burst(a):
    if BSN:
        for k in range(NBI):
            a(f"global_load_dword v{96+k}, v{88+k}, {sr(P_WD,2)}")


def io_common(a):
    a("s_mul_i32 s7, s4, 18")
    a("s_add_u32 s7, s7, s5")
    a(f"s_sub_u32 s7, s7, {NJH}")
    a("s_lshl_b32 s55, s7, 3")
    a("s_sub_u32 s12, s3, 8")
    epi_setup(a)
    burst_addr(a)


def uloader(a):
    a.lab("C_LOAD")
    a("s_setprio 3")
    a(f"s_sub_u32 s13, s5, {NJH}")
    pf = stripe_pf(a)
    pf2 = []
    if PF2AT >= 0:
        pf, pf2 = pf[:2], [x.replace("v10,", "v98,").replace("v11,", "v99,") for x in pf[2:]]
    a("v_mul_u32_u24 v6, 4608, v2")
    a("s_lshl_b32 s8, s7, 3")
    a("v_add_u32 v6, s8, v6")
    a("v_lshlrev_b32 v7, 3, v2")
    a(f"v_sub_u32 v7, {UP+4088-512*7}, v7")
    a("s_mov_b32 s56, 0x05040100")
    a("s_mov_b32 s58, 0x07060302")
    a("s_mov_b32 s57, s13")
    a("s_waitcnt lgkmcnt(0)")
    if E("PFE", 0):
        for x in pf:
            a(x)
    srd(a, 72, P_U, 2359296)
    if not E("CNG"):
        a.b0(12)
    if E("CDL"):
        a(f"s_sleep {E('CDL')}")
    if E("PFX"):
        a.spin(F_X, 0, 12, op="lg")
    if not E("PFE", 0):
        for k, x in enumerate(pf):
            if k == 2 and E("PF2"):
                a("s_waitcnt vmcnt(0)")
            a(x)
    io_common(a)
    for j in range(4):
        a(f"v_mov_b32 v{24+j}, 0")
    a("v_lshrrev_b32 v28, 2, v2")
    a(f"v_mul_u32_u24 v28, {CS}, v28")
    a(f"v_add_u32 v28, {KC}, v28")
    a("v_and_b32 v29, 3, v2")
    a("v_lshl_add_u32 v30, v29, 4, v28")
    a("ds_write_b128 v30, v[24:27] offset:1072")
    a("v_and_b32 v29, 1, v2")
    a("v_lshl_add_u32 v30, v29, 4, v28")
    a("ds_write_b128 v30, v[24:27]")
    a("v_lshrrev_b32 v28, 5, v2")
    a(f"v_mul_u32_u24 v28, {US}, v28")
    a("v_and_b32 v29, 31, v2")
    a("v_lshl_add_u32 v30, v29, 4, v28")
    a(f"v_add_u32 v30, {UP+4096}, v30")
    a("ds_write_b128 v30, v[24:27]")
    a(f"ds_write_b128 v30, v[24:27] offset:{2*US}")
    a("s_mov_b32 s15, 0")
    if ROT:
        for k in range(4):
            a(f"s_add_u32 s8, s57, {k}")
            a("s_and_b32 s8, s8, 3")
            a(f"s_mul_i32 s{76+k}, s8, 294912")
            a(f"s_add_u32 s{64+k}, s{76+k}, {4*294912}")
            a("s_lshl_b32 s8, s8, 9")
            a(f"v_subrev_u32 v{32+k}, s8, v7")
    a("v_mov_b32 v12, 1")
    a(f"s_waitcnt vmcnt({E('UW', 2 if PF2AT < 0 else 0)})")
    a.stamp(7)
    U = 104

    def issue(i):
        if not NOU:
            so = f"s{(76 if i < 16 else 64) + ((i >> 2) & 3)}" if ROT else "s15"
            a(f"buffer_load_dwordx2 {vr(U+2*i,2)}, v6, s[72:75], {so} offen offset:{1152*(i&3)}")
        if i & 3 == 3:
            a("s_add_u32 s15, s15, 294912")
        if i == PF2AT:
            for x in pf2:
                a(x)
        if i == GAT:
            a(f"ds_write_b32 v1, v12 offset:{F_UI}")
            epi_gl(a)
        if i == BST:
            if GAT != BST:
                a(f"ds_write_b32 v1, v12 offset:{F_BU}")
            if not BLATE and not GORD:
                burst(a)
    a.auto(True)
    nis = 0
    for i in range(32):
        while nis < min(32, i + WIN_U):
            issue(nis); nis += 1
        a(f"@need {vr(U+2*i,2)}")
        if i & 3 == 3:
            while nis < min(32, i + 1 + WIN_U):
                issue(nis); nis += 1
            t, u, o = i >> 2, U + 2 * (i - 3), 16 + 8 * ((i >> 2) & 1)
            for ch in range(4):
                sel = "s58" if ch & 1 else "s56"
                a(f"v_perm_b32 v{o+2*ch}, v{u+4+(ch>>1)}, v{u+6+(ch>>1)}, {sel}")
                a(f"v_perm_b32 v{o+2*ch+1}, v{u+(ch>>1)}, v{u+2+(ch>>1)}, {sel}")
                if ROT:
                    a(f"ds_write_b64 v{32+(t&3)}, {vr(o+2*ch,2)} offset:{ch*US+512*(7-(t&4))}")
                else:
                    a(f"ds_write_b64 v7, {vr(o+2*ch,2)} offset:{ch*US+512*(7-t)}")
        if i == 3:
            a.stamp(8)
        if i & 3 == 3:
            a(f"v_mov_b32 v36, {(i>>2)+1}")
            a(f"ds_write_b32 v1, v36 offset:{F_H}")
        if i & 15 == 15:
            a.stamp(2 - (i >> 4))
    a.auto(False)
    epi_x(a, range(4))
    a.spin(F_X, 0, 10, op="lg")
    epi_unp(a, range(4))
    if GORD:
        a("s_waitcnt vmcnt(0)")
    a("s_branch C_IO3")
    a.lab("C_IO")
    io_common(a)
    a.spin(F_X, 0, 10, op="lg")
    if BST < GAT:
        a.spin(F_BU, 1, 12, prio=E("IOP", 3), sleep=1)
        burst(a)
    a.spin(F_H, 4, 12, prio=E("IOP", 3), sleep=E("OSL2", 2))
    epi_x(a, range(4))
    a("s_waitcnt lgkmcnt(0)")
    epi_unp(a, range(4))
    a.spin(F_UI, 1, 12, prio=E("IOP", 3), sleep=E("OSL2", 1))
    epi_gl(a)
    if BST < GAT:
        a("s_waitcnt vmcnt(0)")
    else:
        if GAT != BST:
            a.spin(F_BU, 1, 12, prio=3, sleep=1)
        if GORD:
            a.signal(F_GI, 12)
            a.spin(F_GI, 3, 12)
        if not BLATE:
            burst(a)
        if GORD:
            a(f"s_waitcnt vmcnt({NBI})")
    a.lab("C_IO3")
    a(f"s_waitcnt vmcnt({NBI if BSN and not BLATE else 0})")
    if BLATE == 1:
        burst(a)
    epi_g(a)
    epi_mul(a, range(4))
    a.stamp(3)
    epi_fin(a, [0, 1], 0)
    epi_fin(a, [2, 3], 1)
    a.spin(F_H, 8, 12)
    epi_x(a, range(4, 8))
    if NF > 4:
        a("s_waitcnt lgkmcnt(0)")
    epi_unp(a, range(4, 8))
    epi_mul(a, range(4, 8))
    a("s_lshl_b32 s8, s12, 8")
    a(f"s_sub_u32 s8, {OM+7936-1024*7}, s8")
    a("v_lshl_add_u32 v14, v2, 2, s8")
    for k in range(8):
        a(f"ds_write_b32 v14, v{GD+2*k} offset:{1024*(7-k)}")
    a.stamp(4)
    epi_fin(a, [4, 5], 2)
    a.stamp(5)
    if E("L2"):
        epi_fin(a, [6, 7], 4)
    else:
        epi_fin(a, [6], 3)
        epi_fin(a, [7], 4)
    a.signal(F_SI, 8)
    a.stamp(6)
    a("s_waitcnt vmcnt(0)")
    a.signal(F_ST, 8)
    a.end()
    a.lab("C_FIN")
    Z = 104
    a("s_setprio 0")
    a("v_and_b32 v8, 7, v2")
    a("v_lshlrev_b32 v8, 3, v8")
    a(f"v_add_u32 v8, {WS_SEL}, v8")
    a("s_mul_i32 s8, s7, 9216")
    a(f"s_add_u32 s8, s8, {WS_MB}")
    a("v_lshl_add_u32 v5, v2, 4, s8")
    a("v_add_u32 v6, 0x1000, v5")
    a("v_add_u32 v7, 0x2000, v5")
    a("v_and_b32 v19, 1, v4")
    a("v_lshrrev_b32 v20, 1, v4")
    a("v_lshl_or_b32 v19, v19, 1, v20")
    a(f"v_mul_u32_u24 v12, {US}, v19")
    a(f"v_add_u32 v12, {UP}, v12")
    a(f"v_mul_u32_u24 v13, {OS}, v19")
    a(f"v_add_u32 v13, {OP}, v13")
    a(f"s_add_u32 s8, s55, {2047*1152}")
    a("v_lshl_add_u32 v14, v19, 1, s8")
    a("s_waitcnt lgkmcnt(0)")
    for j in range(4):
        a(f"v_bfe_u32 v{Z+6+j}, v10, {8*j}, 8")
    MB = 120
    if FT:
        a.spin(F_O + 16, 4, 26, sleep=1, prio=3)
        if FT > 1:
            a(f"s_sleep {FT}")
    else:
        a.spin(F_SI, E("SI", 4), 26, sleep=1, prio=3)
    a.stamp(5)
    a("s_mov_b32 s9, 0")
    a.lab("C_MPOLL")
    a(f"global_load_dwordx2 v[16:17], v8, {sr(P_WS,2)} sc1")
    for i in range(9):
        a(f"global_load_dwordx4 {vr(MB+4*i,4)}, v{5+(i>>2)}, {sr(P_WS,2)} offset:{1024*(i&3)} sc1")
    a("s_waitcnt vmcnt(9)")
    a("v_and_b32 v22, 0x7ff, v16")
    a("v_lshl_add_u32 v23, v22, 1, v12")
    a(f"ds_read_u16 v{Z+1}, v23")
    a("v_lshl_add_u32 v23, v22, 1, v13")
    a(f"ds_read_u16 v{Z+3}, v23")
    a("v_lshlrev_b32 v23, 2, v22")
    a(f"v_add_u32 v23, {OM}, v23")
    if not (FT or E("SI", 4) < 4):
        a("ds_read_b32 v24, v23")
    a("v_and_b32 v20, 0xffff0000, v16")
    a("v_ashrrev_i32 v21, 31, v20")
    a("v_not_b32 v21, v21")
    a("v_or_b32 v21, 0x80000000, v21")
    a("v_and_b32 v21, 0xffff0000, v21")
    a("v_xor_b32 v20, v20, v21")
    sigmoid_f32(a, Z, 20, 21)
    rb(a, Z)
    a(f"v_mul_u32_u24 v{Z+4}, 1152, v22")
    a(f"v_sub_u32 v{Z+4}, v14, v{Z+4}")
    a("s_waitcnt lgkmcnt(0)")
    a(f"v_lshlrev_b32 v{Z+1}, 16, v{Z+1}")
    for i in range(9):
        a(f"s_waitcnt vmcnt({8-i})")
        for j in range(4):
            a(f"v_xor_b32 v{MB+4*i+j}, v{MB+4*i+j}, v{Z+6+j}")
        a(f"v_or3_b32 v26, v{MB+4*i}, v{MB+4*i+1}, {'v26' if i else '0'}")
        a(f"v_or3_b32 v26, v{MB+4*i+2}, v{MB+4*i+3}, v26")
        if i:
            for p in range(2):
                a(f"v_pk_add_f32 {vr(28+2*p,2)}, {vr(28+2*p if i > 1 else MB+2*p,2)}, {vr(MB+4*i+2*p,2)}")
    a("v_and_b32 v26, 0xff, v26")
    a("v_bitop3_b32 v26, v26, v17, v10 bitop3:0xf6")
    a("v_cmp_ne_u32 vcc, 0, v26")
    a("s_add_u32 s9, s9, 1")
    a("s_cmp_eq_u64 vcc, 0")
    a("s_cbranch_scc1 C_MOK")
    a(f"s_cmp_lt_u32 s9, {SPIN}")
    a("s_cbranch_scc1 C_MPOLL")
    a.lab("C_MOK")
    if STAMP:
        a("s_mov_b32 s82, s9")
    a.stamp(8)
    a("v_permlane32_swap_b32 v28, v29")
    a("v_permlane32_swap_b32 v30, v31")
    a("v_add_f32 v28, v28, v29")
    a("v_add_f32 v30, v30, v31")
    a("v_permlane16_swap_b32 v28, v30")
    a("v_add_f32 v28, v28, v30")
    a(f"v_add_f32_dpp v28, v28, v28 row_ror:8 {DPPF}")
    rb(a, 28)
    a(f"v_mul_f32 v28, v28, v{Z}")
    rb(a, 28)
    a(f"v_add_f32 v28, v28, v{Z+1}")
    rb(a, 28)
    a(f"v_or_b32 v28, v28, v{Z+3}")
    if FT or E("SI", 4) < 4:
        a.spin(F_SI, 4, 27)
        a("ds_read_b32 v24, v23")
        a("s_waitcnt lgkmcnt(0)")
    a("v_dot2_f32_bf16 v28, v28, v24, 0")
    a("v_cvt_pk_bf16_f32 v28, v28, v28")
    a.spin(F_ST, 4, 27)
    a("s_mov_b32 exec_lo, 0x00ff00ff")
    a("s_mov_b32 exec_hi, 0x00ff00ff")
    a(f"global_store_short v{Z+4}, v28, {sr(P_OUT,2)}")
    a("s_mov_b64 exec, -1")
    a.end()


def kernel(a):
    a.raw(".p2align 8")
    a.raw(".globl k1_kernel")
    a.raw(".type k1_kernel,@function")
    a.lab("k1_kernel")
    a.stamp(20)
    if STAMP == 3:
        a("s_memrealtime s[80:81]")
    a("v_and_b32 v2, 63, v0")
    a("v_mov_b32 v1, 0")
    a("v_lshlrev_b32 v3, 2, v2")
    a("ds_write_b32 v3, v1")
    a("s_lshr_b32 s5, s2, 3")
    if CODEPF:
        a("v_lshlrev_b32 v8, 7, v0")
        a(f"s_cmp_lg_u32 s5, {NJF}")
        a("s_cbranch_scc1 K_NOCPF")
        a("s_getpc_b64 s[8:9]")
        a("v_min_u32 v8, CODE_END-k1_kernel-64, v8")
        a("global_load_dword v160, v8, s[8:9]")
        a.lab("K_NOCPF")
    a("s_waitcnt lgkmcnt(0)")
    a("s_load_dwordx16 s[16:31], s[0:1], 0")
    a("s_load_dwordx16 s[32:47], s[0:1], 64")
    a("s_load_dwordx4 s[48:51], s[0:1], 128")
    if STAMP in (1, 2):
        for i in range(1, 10):
            a(f"s_mov_b32 s{80+2*i}, 0")
    if PROBE and PROBE != "kernel:20":
        a("s_mov_b32 s98, 0")
    a.stamp(0)
    a("v_lshrrev_b32 v4, 6, v0")
    if STAMP == 3:
        a("s_barrier")
        a("v_readfirstlane_b32 s3, v4")
    else:
        a("s_cmp_ge_u32 s5, 32")
        a("v_readfirstlane_b32 s3, v4")
        a("s_cbranch_scc1 K_END")
        a("s_barrier")
    a("s_cmp_eq_u32 s3, 8")
    a("s_cbranch_scc1 ROUTER")
    a(f"s_cmp_lt_u32 s5, {NJH}")
    a("s_cbranch_scc1 K_OTHER")
    a("s_cmp_ge_u32 s3, 8")
    a("s_cbranch_scc1 K_CIO")
    kgen_head(a)
    router(a)
    a.raw(".p2align 7")
    a.lab("K_OTHER")
    a("v_and_b32 v3, 15, v2")
    a("v_lshrrev_b32 v4, 4, v2")
    a("s_and_b32 s4, s2, 7")
    a("s_mul_i32 s7, s4, 9")
    a("s_add_u32 s7, s7, s5")
    a("s_mov_b32 s12, s3")
    a("s_cmp_lt_u32 s3, 2")
    a("s_cbranch_scc1 GATE")
    a(f"s_cmp_ge_u32 s5, {NJF}")
    a("s_cbranch_scc1 HELPER")
    a("s_cmp_lt_u32 s3, 8")
    a("s_cbranch_scc1 F_COMP")
    ffn_loader(a)
    a.raw(".p2align 7")
    a.lab("K_CIO")
    a("v_and_b32 v3, 15, v2")
    a("v_lshrrev_b32 v4, 4, v2")
    a("s_and_b32 s4, s2, 7")
    a("s_mul_i32 s7, s4, 18")
    a("s_add_u32 s7, s7, s5")
    a(f"s_sub_u32 s7, s7, {NJH}")
    a("s_sub_u32 s12, s3, 9")
    a("s_cmp_lg_u32 s3, 11")
    a("s_cbranch_scc1 C_CONST")
    uloader(a)
    a.lab("C_CONST")
    a("v_lshl_add_u32 v14, v4, 3, v3")
    a("v_sub_u32 v14, 39, v14")
    a("s_lshl_b32 s8, s12, 11")
    a(f"s_add_u32 s8, s8, {PM}")
    a("v_lshl_add_u32 v15, v2, 4, s8")
    W = [(0x7f, 19), (0x1ff, 20), (0x7, 21), (0x1f, 18), (0x3, 21)]
    for k in range(3):
        a("s_cmp_eq_u32 s12, 0")
        a(f"s_cselect_b32 s8, {W[k][0]}, {W[k+2][0]}")
        a(f"s_cselect_b32 s9, {W[k][1]}, {W[k+2][1]}")
        a("s_movk_i32 s11, 0x3f80")
        if k == 2:
            a("s_cselect_b32 s11, s11, 0xffff")
        a("s_lshl_b32 s13, s11, 16")
        a("v_mov_b32 v10, s8")
        a("v_mov_b32 v11, 0")
        a("v_lshlrev_b64 v[10:11], v14, v[10:11]")
        a("v_alignbit_b32 v10, v11, v10, s9")
        for p in range(4):
            a(f"v_bfe_i32 v11, v10, {2*p}, 1")
            a(f"v_bfe_i32 v12, v10, {2*p+1}, 1")
            a("v_and_b32 v11, s11, v11")
            a(f"v_and_or_b32 v{16+4*k+p}, v12, s13, v11")
        a(f"ds_write_b128 v15, {vr(16+4*k,4)} offset:{1024*k}")
    a.signal(F_PM, 10)
    a("s_branch GATE")
    helper(a)
    gate(a)
    kgen(a)
    select(a)
    ffn_comp(a)
    if STAMP:
        a.lab("STAMP_OUT")
        a("s_memrealtime s[98:99]")
        a("s_waitcnt lgkmcnt(0)")
        a("s_lshl_b32 s8, s2, 4")
        a("s_add_u32 s8, s8, s3")
        a("s_lshl_b32 s8, s8, 6")
        a(f"s_add_u32 s8, s8, {WS_STAMP}")
        a("v_mov_b32 v5, s8")
        for i in ((0, 9) if STAMP == 3 else range(10)):
            a(f"v_mov_b32 v6, s{80+2*i}")
            a(f"global_store_dword v5, v6, {sr(P_WS,2)} offset:{4*i}")
    if PROBE:
        a.lab("PADTAIL")
        a("s_waitcnt vmcnt(0) lgkmcnt(0)")
        a("s_cmp_eq_u32 s98, 0")
        a("s_cbranch_scc1 K_END")
        a("s_setprio 0")
        a.lab("PADL")
        a("s_sleep 3")
        a("s_memrealtime s[96:97]")
        a("s_waitcnt lgkmcnt(0)")
        a("s_sub_u32 s96, s96, s98")
        a("s_cmp_lt_u32 s96, 2000")
        a("s_cbranch_scc1 PADL")
    a.lab("K_END")
    a("s_endpgm")
    a.lab("CODE_END")


def main():
    ref = open(os.path.join(HERE, NAME + ".s.ref")).read().splitlines()
    head = [l for l in ref if l.startswith(";") and "@launch" not in l and "Override" not in l and "grid=ceil" not in l]
    a = G()
    kernel(a)
    out = head + [
        f"; @launch kernel=k1_kernel grid=(256,1,1) block=(768,1,1) lds={LDS}",
        '.amdgcn_target "amdgcn-amd-amdhsa--gfx950"',
        ".text",
    ] + a.finish() + [
        '.section .rodata,"a"',
        ".p2align 6",
        ".amdhsa_kernel k1_kernel",
        "  .amdhsa_next_free_vgpr 168",
        "  .amdhsa_next_free_sgpr 102",
        "  .amdhsa_accum_offset 168",
        "  .amdhsa_group_segment_fixed_size 0",
        "  .amdhsa_kernarg_size 144",
        "  .amdhsa_user_sgpr_count 2",
        "  .amdhsa_user_sgpr_kernarg_segment_ptr 1",
        "  .amdhsa_system_sgpr_workgroup_id_x 1",
        ".end_amdhsa_kernel",
    ]
    path = sys.argv[1] if len(sys.argv) > 1 else os.path.join(HERE, NAME + ".s")
    open(path, "w").write("\n".join(out) + "\n")


if __name__ == "__main__":
    main()
```

```python
import sys, os
from asmlib import *

NAME = "gated_mix__ssm_conv_s4__moe_arch_mod__prompt"
HERE = os.path.dirname(os.path.abspath(__file__))
E = lambda k, d=0: int(os.environ.get(k, d))
STAMP = E("STAMP")
PROBE = os.environ.get("PROBE", "")
CODEPF = E("CODEPF", 1)
SELD = E("SELD", 16)
GORD = E("GORD", 1)
NF = E("NF", 4)
FT = E("FT", 0)
RDIR = E("RDIR", 2)
GAT = E("GAT", 31)
BL = E("BL", 72)
NBI = 2 if BL == 72 else 1
BLATE = E("BLATE", 0)
KS = E("KS", 32)
WS_KEY2 = 2 << 20
PF2AT = E("PF2AT", -1)
ROT = 0
C3 = E("C3", 28)
WNT = os.environ.get("WNT", "")
POLLF = os.environ.get("POLLF", "sc1").replace("_", " ")
PUBF = os.environ.get("PUBF", "sc1").replace("_", " ")
PFW = E("PFW", 1)
HPN = E("HPN", 3)
HPS = E("HPS", 53)
HPW = E("HPW", 4)
PSTEP = 5 * HPW // 2
BST = E("BST", 31)
BSN = E("BSN", 5)
WIN_U = E("WIN_U", 6)
WIN_F = E("WIN_F", 10)
HOLD = E("HOLD")
FINE = E("FINE")
NOU = E("NOU")
NOW = E("NOW")

WS_KEY, WS_SEL, WS_BASE, WS_G, WS_MB = 0, 8192, 8448, 16384, 32768
WS_STAMP = 4 << 20
WS_SIZE = 0x10000000

LDS = 163840
F_NONCE, F_PAIR, F_ST, F_I, F_K, F_H, F_O = 0, 16, 40, 48, 64, 80, 96
F_L, F_D, F_AC, F_XR, F_HR, F_PI = 16, 40, 48, 84, 88, 92
KT = 256
KTS = 4608
TS = 288
OS = 4160
KC = KT + 8 * KTS
CS = 1216
UP = KC + 16 * CS
US = 4672
OM = UP + 4 * US
OP = OM + 8192
PM = OP + 4 * OS
assert PM + 5120 + 512 <= 147712 and OP % 16 == 0
WA = 256
WB = WA + 73728
XB = WB + 73728
HB = XB + 9216
HS = 144
GW = HB + 9 * HS
assert GW + 2048 <= LDS and GW % 16 == 0
F_X, F_GD, F_RI, F_SI, F_UI, F_BU, F_PM, F_GI = 8, 12, 4, 44, 88, 92, 32, 36

L2E = 0x3fb8aa3b
L2E_LO = 0x32a57060
LN2 = 0x3f317218
INV2PI = 0x3e22f983

P_U, P_ARE, P_AIM, P_BRE, P_BIM, P_CRE, P_CIM, P_LDT = 16, 18, 20, 22, 24, 26, 28, 30
P_DSK, P_BX, P_WR, P_WG, P_WU, P_WD, P_GW, P_OUT = 32, 34, 36, 38, 40, 42, 44, 46
P_DBG, P_WS = 48, 50
NJF, NJH = 9, 14
SPIN = 0x20000

DPPF = "row_mask:0xf bank_mask:0xf"


class G(Asm):
    nlab = 0

    def stamp(s, i):
        if PROBE:
            import inspect
            fn = inspect.stack()[1].function
            if fn == "pre":
                fn = "ffn_loader"
            if f"{fn}:{i}" == PROBE:
                s("s_memrealtime s[98:99]")
        if i >= 20 or STAMP == 3:
            return
        if STAMP == 2:
            import inspect
            fn = inspect.stack()[1].function
            if not (i == 0 or (fn, i) in (("down", 6), ("uloader", 5), ("uloader", 6), ("select", 5), ("gphase", 7))):
                return
        if STAMP and not (FINE and i >= 6):
            s(f"s_memrealtime s[{80+2*i}:{81+2*i}]")

    def fine(s, i):
        if STAMP and FINE:
            s(f"s_memrealtime s[{80+2*i}:{81+2*i}]")

    def b0(s, wait=None):
        if E("OLDB0"):
            s("s_barrier")
        elif wait is not None:
            s.spin(F_RI, 1, wait)

    def end(s):
        s("s_branch STAMP_OUT" if STAMP else "s_branch PADTAIL" if PROBE else "s_endpgm")

    def uid(s, p):
        G.nlab += 1
        return f"{p}_{G.nlab}"

    def spin(s, off, target, tv, sleep=0, op="ge", prio=None):
        l = s.uid("SP")
        if prio is not None:
            s(f"s_setprio {E('SPP', 3) if sleep else 0}")
        s("s_mov_b32 s9, 0")
        s.lab(l)
        s(f"ds_read_b32 v{tv}, v1 offset:{off}") if isinstance(off, int) else s(f"ds_read_b32 v{tv}, {off}")
        s("s_waitcnt lgkmcnt(0)")
        s(f"v_readfirstlane_b32 s8, v{tv}")
        s("s_add_u32 s9, s9, 1")
        s(f"s_cmp_{op}_u32 s8, {target}")
        s(f"s_cbranch_scc1 {l}_D")
        if sleep:
            s(f"s_sleep {sleep * E('SLM', 1)}")
        s(f"s_cmp_lt_u32 s9, {SPIN*4}")
        s(f"s_cbranch_scc1 {l}")
        s.lab(l + "_D")
        if prio is not None:
            s(f"s_setprio {prio}")

    def signal(s, off, tv):
        s(f"v_mov_b32 v{tv}, 1")
        s("s_mov_b64 exec, 1")
        s(f"ds_add_u32 v1, v{tv} offset:{off}") if isinstance(off, int) else s(f"ds_add_u32 {off}, v{tv}")
        s("s_mov_b64 exec, -1")


def srd(a, d, p, size):
    a(f"s_mov_b32 s{d}, s{p}")
    a(f"s_mov_b32 s{d+1}, s{p+1}")
    a(f"s_mov_b32 s{d+2}, {size}")
    a(f"s_mov_b32 s{d+3}, 0x20000")


def wave_max_steps(vv):
    return [f"v_max_u32_dpp v{vv}, v{vv}, v{vv} row_shr:1 {DPPF}",
            f"v_max_u32_dpp v{vv}, v{vv}, v{vv} row_shr:2 {DPPF}",
            f"v_max_u32_dpp v{vv}, v{vv}, v{vv} row_shr:4 {DPPF}",
            f"v_max_u32_dpp v{vv}, v{vv}, v{vv} row_shr:8 {DPPF}",
            f"v_max_u32_dpp v{vv}, v{vv}, v{vv} row_bcast:15 row_mask:0xa bank_mask:0xf",
            f"v_max_u32_dpp v{vv}, v{vv}, v{vv} row_bcast:31 row_mask:0xc bank_mask:0xf"]


def sigmoid_f32(a, dst, src, t):
    a(f"v_mul_f32 v{t}, 0xbfb8aa3b, v{src}")
    a(f"v_exp_f32 v{t}, v{t}")
    a(f"v_add_f32 v{t}, 1.0, v{t}")
    a(f"v_rcp_f32 v{dst}, v{t}")


def rb(a, r):
    a(f"v_cvt_pk_bf16_f32 v{r}, v{r}, v{r}")
    a(f"v_and_b32 v{r}, 0xffff0000, v{r}")


def router(a):
    a.raw(".p2align 7")
    a.lab("ROUTER")
    X, W = 16, 52
    assert RDIR == 2
    a("v_lshrrev_b32 v5, 3, v2")
    a("v_and_b32 v6, 7, v2")
    a("v_lshlrev_b32 v9, 4, v6")
    a("v_lshl_add_u32 v5, s2, 3, v5")
    a("v_mul_u32_u24 v8, 1152, v5")
    a("v_add_u32 v8, v8, v9")
    if E("WPF", 1):
        a("v_min_u32 v10, 8, v2")
        a("v_lshlrev_b32 v10, 7, v10")
    a("s_waitcnt lgkmcnt(0)")
    a.fine(7)
    if E("WPF", 1):
        a(f"global_load_dword v90, v10, {sr(P_WR,2)}")
    for i in range(9):
        a(f"global_load_dwordx4 {vr(X+4*i,4)}, v8, {sr(P_U,2)} offset:{128*i}")
    a(f"s_load_dword s10, {sr(P_WS,2)}, {WS_BASE}")
    a("s_setprio 3")
    for i in range(9):
        a(f"global_load_dwordx4 {vr(W+4*i,4)}, v9, {sr(P_WR,2)} offset:{128*i}")
    a("v_lshlrev_b32 v7, 4, v2")
    a("v_min_u32 v10, 7, v2")
    a(f"s_mov_b32 m0, {GW}")
    a("v_lshlrev_b32 v10, 4, v10")
    a(f"global_load_lds_dwordx4 v7, {sr(P_GW,2)}")
    a(f"global_load_lds_dwordx4 v10, {sr(P_GW,2)} offset:1024")
    a.fine(6)
    a.stamp(21)
    a.b0()
    a("v_mov_b32 v11, 1")
    a(f"ds_write_b32 v1, v11 offset:{F_RI}")
    a("v_and_b32 v3, 15, v2")
    a("v_lshrrev_b32 v4, 4, v2")
    a("s_and_b32 s4, s2, 7")
    a(f"v_add_u32 v7, {XB}, v7")
    if KS == 32:
        a("s_lshl_b32 s8, s2, 5")
        a("v_lshl_add_u32 v15, v4, 3, s8")
    else:
        a(f"s_mul_i32 s8, s2, {KS}")
        a(f"s_add_u32 s8, s8, {WS_KEY2}")
        a("v_lshl_add_u32 v15, v4, 3, s8")
        a("v_lshl_add_u32 v15, v3, 5, v15")
    a("s_mov_b32 s11, 0xffff")
    for j in range(4):
        a(f"v_mov_b32 v{8+j}, 0")
    a("s_waitcnt lgkmcnt(0)")
    a.fine(8)
    a("s_add_u32 s10, s10, 1")
    a("s_addc_u32 s10, s10, 0")
    a("v_mov_b32 v14, s10")
    a("v_mov_b32 v13, s10")
    if RDIR:
        for i in range(9):
            a(f"s_waitcnt vmcnt({8-i+2})")
            for j in range(4):
                a(f"v_dot2c_f32_bf16 v{8+j}, v{X+4*i+j}, v{W+4*i+j}")
        a.stamp(1)
    else:
        a("s_waitcnt vmcnt(9)")
        a.stamp(1)
        if STAMP or PROBE:
            a("s_waitcnt lgkmcnt(0)")
        for i in range(9):
            a(f"ds_read_b128 {vr(X+4*i,4)}, v7 offset:{1024*i}")
        a(f"ds_write_b32 v1, v14 offset:{F_X}")
        for i in range(9):
            a(f"s_waitcnt vmcnt({8-i}) lgkmcnt({9-i})")
            for j in range(4):
                a(f"v_dot2c_f32_bf16 v{8+j}, v{X+4*i+j}, v{W+4*i+j}")
    a("v_add_f32 v8, v8, v9")
    a("v_add_f32 v10, v10, v11")
    a("v_add_f32 v8, v8, v10")
    a(f"v_add_f32_dpp v8, v8, v8 quad_perm:[1,0,3,2] {DPPF}")
    a(f"v_add_f32_dpp v8, v8, v8 quad_perm:[2,3,0,1] {DPPF}")
    a(f"v_add_f32_dpp v8, v8, v8 row_half_mirror {DPPF}")
    a("v_cvt_pk_bf16_f32 v8, v8, v8")
    a("v_ashrrev_i32 v9, 31, v8")
    a("v_or_b32 v9, 0x80008000, v9")
    a("v_xor_b32 v8, v8, v9")
    a(f"v_mov_b32_dpp v9, v8 row_ror:8 {DPPF}")
    km = {32: 0x00010001, 64: 0x00030003, 128: 0x000f000f}[KS]
    a(f"s_mov_b32 exec_lo, {km:#x}")
    a(f"s_mov_b32 exec_hi, {km:#x}")
    a("v_bfi_b32 v12, s11, v8, v9")
    a(f"global_store_dwordx2 v15, v[12:13], {sr(P_WS,2)} {PUBF}")
    a("s_mov_b64 exec, -1")
    a(f"ds_write_b32 v1, v14 offset:{F_NONCE}")
    a.stamp(2)
    if E("RLP", 1):
        a("s_setprio 0")
    if RDIR == 2:
        for i in range(9):
            a(f"ds_write_b128 v7, {vr(X+4*i,4)} offset:{1024*i}")
    if RDIR:
        a("s_waitcnt vmcnt(1)")
        a(f"ds_write_b32 v1, v14 offset:{F_X}")
    a(f"s_cmp_ge_u32 s5, {NJH}")
    a("s_cbranch_scc1 C_IO")
    a(f"s_cmp_lt_u32 s5, {NJF}")
    a("s_cbranch_scc1 SELECT")
    a.end()


def gate(a):
    a.lab("GATE")
    if E("GTP"):
        a(f"s_setprio {E('GTP')}")
    X, W, WL = 16, 34, 44
    a("s_lshl_b32 s8, s12, 9")
    a(f"s_add_u32 s8, s8, {XB}")
    a("v_lshl_add_u32 v5, v2, 2, s8")
    a("v_and_b32 v6, 31, v2")
    a("v_lshlrev_b32 v6, 2, v6")
    a(f"v_add_u32 v6, {GW}, v6")
    a("s_lshl_b32 s8, s2, 1")
    a("s_add_u32 s8, s8, s12")
    a("v_mov_b32 v8, 0")
    a("v_mov_b32 v9, 0")
    a("v_mov_b32 v10, 0x3f803f80")
    a("s_lshl_b32 s8, s8, 5")
    a(f"s_add_u32 s8, s8, {WS_G}")
    a("v_lshrrev_b32 v7, 5, v2")
    a("v_lshl_add_u32 v7, v7, 3, s8")
    a("v_and_b32 v11, 16, v2")
    a("v_add_u32 v7, v7, v11")
    a.b0()
    if E("GATED"):
        a(f"s_sleep {E('GATED')}")
    a.spin(F_X, 0, 13, op="lg", sleep=E("GSL", 1))
    a.auto(True)
    for i in range(5):
        a(f"ds_read2_b32 {vr(W+2*i,2)}, v6 offset0:{64*(i&3)} offset1:{64*(i&3)+32}" if i < 4 else f"ds_read_b32 v{W+8}, v6 offset:1024")
    for i in range(9):
        a(f"ds_read2st64_b32 {vr(X+2*i,2)}, v5 offset0:{4*i} offset1:{4*i+1}")
    for i in range(9):
        a(f"v_and_b32 v{WL+i}, 0xffff, v{W+i}")
        a(f"v_and_b32 v{W+i}, 0xffff0000, v{W+i}")
    for i in range(10):
        t = 56 + 4 * (i & 1)
        u = 56 + 4 * ((i - 1) & 1)
        for j in range(2):
            if i < 9:
                a(f"v_dot2_f32_bf16 v{t+2*j}, v{X+2*i+j}, v{WL+i}, 0")
                a(f"v_dot2_f32_bf16 v{t+2*j+1}, v{X+2*i+j}, v{W+i}, 0")
        if i:
            for j in range(2):
                a(f"v_cvt_pk_bf16_f32 v{u+2*j}, v{u+2*j}, v{u+2*j+1}")
            for j in range(2):
                a(f"v_dot2c_f32_bf16 v{8+j}, v{u+2*j}, v10")
    a.auto(False)
    a.signal(F_GD, 11)
    a("v_permlane16_swap_b32 v8, v9")
    a("v_add_f32 v8, v8, v9")
    for r in (8, 4, 2, 1):
        a(f"v_add_f32_dpp v8, v8, v8 row_ror:{r} {DPPF}")
    rb(a, 8)
    sigmoid_f32(a, 8, 8, 9)
    rb(a, 8)
    a("v_sub_f32 v9, 1.0, v8")
    a("v_cvt_pk_bf16_f32 v12, v8, v9")
    a("s_mov_b32 exec_lo, 0x00010001")
    a("s_mov_b32 exec_hi, 0x00010001")
    a(f"global_store_dwordx2 v7, v[12:13], {sr(P_WS,2)} sc1")
    a("s_mov_b64 exec, -1")
    a.stamp(1)
    a(f"s_cmp_lt_u32 s5, {NJF}")
    a("s_cbranch_scc1 F_COMP2")
    a(f"s_cmp_ge_u32 s5, {NJH}")
    a("s_cbranch_scc1 C_IO")
    a.end()


def stripe_pf(a):
    a("s_and_b32 s8, s13, 15" if PF2AT >= 0 else "s_mov_b32 s8, s13")
    a("s_mul_i32 s8, s8, 73728")
    a("s_lshl_b32 s9, s4, 7")
    a("s_add_u32 s8, s8, s9")
    a("v_mul_u32_u24 v9, 1152, v2")
    a("v_add_u32 v9, s8, v9")
    a("s_add_u32 s8, s13, 18")
    a("s_min_u32 s8, s8, 31")
    a("s_sub_u32 s8, s8, s13")
    a("s_mul_i32 s8, s8, 73728")
    a("v_add_u32 v8, s8, v9" if PF2AT < 0 else f"v_add_u32 v8, {16*73728}, v9")
    return [f"global_load_dword v10, v9, {sr(P_U,2)}", f"global_load_dword v11, v9, {sr(P_U,2)} offset:128",
            f"global_load_dword v10, v8, {sr(P_U,2)}", f"global_load_dword v11, v8, {sr(P_U,2)} offset:128"]


def prefetch(a, n, hold):
    a("v_mul_u32_u24 v5, 57, v2")
    a("v_lshrrev_b32 v5, 9, v5")
    a("v_mul_u32_u24 v6, 9, v5")
    a("v_sub_u32 v6, v2, v6")
    a("s_waitcnt lgkmcnt(0)")
    a("s_cmp_eq_u32 s12, 1")
    a(f"s_cselect_b32 s52, s{P_WU}, s{P_WG}")
    a(f"s_cselect_b32 s53, s{P_WU+1}, s{P_WG+1}")
    a("s_mov_b32 s54, 5308416")
    a("s_mov_b32 s55, 0x20000")
    a("v_mul_u32_u24 v5, 9216, v5")
    a("v_lshl_add_u32 v5, v6, 7, v5")
    a("s_mul_i32 s8, s4, 1152")
    if C3:
        a(f"s_sub_u32 s14, s13, {HPS}")
        a("s_lshr_b32 s9, s52, 7")
        a("s_add_u32 s9, s9, s4")
        a("s_sub_u32 s9, 3, s9")
        a("s_and_b32 s9, s9, 7")
        a("s_lshl_b32 s15, s9, 7")
        a("s_add_u32 s15, s15, s8")
        a(f"s_mul_i32 s14, s14, {9216*C3}")
        a("s_add_u32 s15, s15, s14")
        a(f"s_add_u32 s15, s15, {9216*(7*HPS - C3*PSTEP)}")
        a("s_cmp_eq_u32 s9, 0")
        a("s_cselect_b32 s9, 1024, 0")
        a("v_and_b32 v7, 31, v2")
        a(f"v_min_u32 v7, {C3-1}, v7")
        a("v_mul_u32_u24 v7, 9216, v7")
        a("v_lshrrev_b32 v9, 5, v2")
        a("v_mul_u32_u24 v9, s9, v9")
        a("v_add_u32 v7, v7, v9")
    a("s_mul_i32 s13, s13, 64512")
    a("s_add_u32 s13, s13, s8")
    if not E("HNG"):
        a.b0(13)
    if hold:
        a.spin(F_NONCE, 0, 13, op="lg", sleep=1)
    if C3:
        a("buffer_load_dword v8, v7, s[52:55], s15 offen")
    for k in range(n):
        if k >= PFW or (C3 and E("C3W", 1)):
            a(f"s_waitcnt vmcnt({PFW-1})")
        a("buffer_load_dword v8, v5, s[52:55], s13 offen")
        a(f"s_add_u32 s13, s13, {64512*PSTEP}")


def bulk_gate(a, tv):
    a.b0(tv)
    if HOLD:
        a.spin(F_NONCE, 0, tv, op="lg", sleep=1)


def select(a):
    a.lab("SELECT")
    a("s_setprio 3")
    SX = 52
    srd(a, SX, P_U, 2359296)
    KD, IX, KY = 16, 48, 80
    M1, M2, T1, T2, VO, VK, CH = 8, 9, 10, 11, 12, 6, 5
    a("v_lshlrev_b32 v7, 4, v2")
    a("v_add_u32 v15, 0x1000, v7")
    if KS != 32:
        a("v_lshrrev_b32 v7, 1, v2")
        a(f"v_mul_u32_u24 v7, {KS}, v7")
        a("v_and_b32 v15, 1, v2")
        a("v_lshl_add_u32 v7, v15, 4, v7")
        for i in range(8):
            a(f"v_add_u32 v{120+i}, {WS_KEY2+32*KS*i}, v7")

    def polls():
        if KS != 32:
            for i in range(8):
                a(f"global_load_dwordx4 {vr(KD+4*i,4)}, v{120+i}, {sr(P_WS,2)} {POLLF}")
            return
        for i in range(8):
            a(f"global_load_dwordx4 {vr(KD+4*i,4)}, v{7 if i < 4 else 15}, {sr(P_WS,2)} offset:{1024*(i&3)} {POLLF}")
    assert WS_KEY == 0
    a("v_lshlrev_b32 v8, 2, v2")
    a("v_sub_u32 v8, 2047, v8")
    for i in range(8):
        for e in range(4):
            a(f"v_subrev_u32 v{IX+4*i+e}, {256*i+e}, v8")
    a("v_lshrrev_b32 v9, 3, v2")
    a("v_and_b32 v9, 6, v9")
    a("v_xor_b32 v9, v9, v2")
    a("v_and_b32 v9, 7, v9")
    a(f"v_lshlrev_b32 v{CH}, 4, v9")
    a(f"v_mov_b32 v{VO}, 0")
    a(f"v_mov_b32 v{VK}, 0")
    a("s_mov_b32 s11, 0xffff0000")
    a("s_mov_b32 s15, 0")
    a.spin(F_GD, 2, 13)
    a("s_mov_b32 s9, 0")
    a("s_waitcnt vmcnt(0)")
    if SELD:
        a(f"s_sleep {SELD}")
    a.stamp(8)
    a.lab("SEL_POLL")
    polls()
    if E("W1", 99) < 99:
        a(f"ds_write_b32 v1, v14 offset:{F_PI}")
    for i in range(8):
        a(f"s_waitcnt vmcnt({7-i})")
        if i == 0:
            a(f"v_xor_b32 v13, v{KD+1}, v14")
        else:
            a(f"v_bitop3_b32 v13, v13, v{KD+4*i+1}, v14 bitop3:0xf6")
        a(f"v_bitop3_b32 v13, v13, v{KD+4*i+3}, v14 bitop3:0xf6")
    a("v_cmp_ne_u32 vcc, 0, v13")
    a("s_add_u32 s9, s9, 1")
    a("s_cmp_eq_u64 vcc, 0")
    a("s_cbranch_scc1 SEL_GOT")
    a(f"s_cmp_lt_u32 s9, {SPIN}")
    a("s_cbranch_scc1 SEL_POLL")
    a.lab("SEL_GOT")
    if STAMP:
        a("s_mov_b32 s94, s9")
    a.stamp(6)
    for i in range(8):
        for h in range(2):
            a(f"v_lshl_or_b32 v{KY+4*i+2*h}, v{KD+4*i+2*h}, 16, v{IX+4*i+2*h}")
            a(f"v_and_or_b32 v{KY+4*i+2*h+1}, v{KD+4*i+2*h}, s11, v{IX+4*i+2*h+1}")
        ks = [KY + 4 * i + e for e in range(4)]
        if i == 0:
            a(f"v_min_u32 v{M2}, v{ks[0]}, v{ks[1]}")
            a(f"v_max_u32 v{M1}, v{ks[0]}, v{ks[1]}")
            ks = ks[2:]
        for k in ks:
            a(f"v_med3_u32 v{M2}, v{M1}, v{M2}, v{k}")
            a(f"v_max_u32 v{M1}, v{M1}, v{k}")
    a.stamp(3)

    def place(r):
        lo, hi = ((0xff << (8 * r)) & 0xffffffff, (0xff << (8 * r)) >> 32)
        return ["s_and_b32 s13, s12, 0x7ff", "s_sub_u32 s13, 2047, s13", "s_mul_i32 s13, s13, 1152",
                [f"s_mov_b32 exec_lo, {lo:#x}", f"s_mov_b32 exec_hi, {hi:#x}",
                 f"v_add_u32 v{VO}, s13, v{CH}", f"v_mov_b32 v{VK}, s12", "s_mov_b64 exec, -1"]]
    for r in range(8):
        if r == 0:
            a(f"v_mov_b32 v{T1}, v{M1}")
            fill = []
        else:
            a(f"v_subrev_u32 v{T1}, s12, v{M1}")
            a(f"v_subrev_u32 v{T2}, s12, v{M2}")
            a(f"v_max_u32 v{T1}, v{T1}, v{T2}")
            p = place(r - 1)
            fill = [p[0:2], [p[2]], p[3]]
        for st in wave_max_steps(T1):
            for x in (fill.pop(0) if fill else []):
                a(x)
            a(st)
        a(f"v_readlane_b32 s8, v{T1}, 63")
        a("s_add_u32 s12, s12, s8" if r else "s_mov_b32 s12, s8")
    p = place(7)
    for x in p[:3] + p[3]:
        a(x)
    a("s_mov_b32 s14, 0")
    a.lab("SEL_GATHER")
    for b in range(9):
        a(f"s_mov_b32 m0, {XB + 896*b}")
        a(f"buffer_load_dwordx4 v{VO}, {sr(SX,4)}, 0 offen offset:{128*b} lds")
    a.signal(F_D, 13)
    a.stamp(4)
    a("s_cmp_lg_u32 s14, 0")
    a("s_cbranch_scc1 SEL_OK")
    TK = KD
    for k in range(32):
        a(f"v_sub_u32 v{TK+k}, v{KY+k}, v{M2}")

    def tree():
        for j in range(10):
            a(f"v_max3_u32 v{TK+3*j}, v{TK+3*j}, v{TK+3*j+1}, v{TK+3*j+2}")
        a(f"v_max3_u32 v{TK}, v{TK}, v{TK+3}, v{TK+6}")
        a(f"v_max3_u32 v{TK+9}, v{TK+9}, v{TK+12}, v{TK+15}")
        a(f"v_max3_u32 v{TK+18}, v{TK+18}, v{TK+21}, v{TK+24}")
        a(f"v_max3_u32 v{TK+27}, v{TK+27}, v{TK+30}, v{TK+31}")
        a(f"v_max3_u32 v{TK}, v{TK}, v{TK+9}, v{TK+18}")
        a(f"v_max_u32 v{TK}, v{TK}, v{TK+27}")
    tree()
    a(f"v_add_u32 v{TK}, v{TK}, v{M2}")
    a(f"v_cmp_lt_u32 vcc, s12, v{TK}")
    if E("FORCESLOW"):
        a("s_mov_b64 vcc, 1")
    a("s_cmp_eq_u64 vcc, 0")
    a("s_cbranch_scc1 SEL_OK")
    a("s_waitcnt vmcnt(0)")
    a("s_mov_b32 s12, 0")
    a("s_mov_b64 s[56:57], 0xff")
    a.lab("SEL_SLOW")
    for k in range(32):
        a(f"v_subrev_u32 v{TK+k}, s12, v{KY+k}")
    tree()
    for st in wave_max_steps(TK):
        a(st)
    a(f"v_readlane_b32 s8, v{TK}, 63")
    a("s_add_u32 s12, s12, s8")
    for x in place(0)[:3]:
        a(x)
    a("s_mov_b64 exec, s[56:57]")
    a(f"v_add_u32 v{VO}, s13, v{CH}")
    a(f"v_mov_b32 v{VK}, s12")
    a("s_mov_b64 exec, -1")
    a("s_lshl_b64 s[56:57], s[56:57], 8")
    a("s_add_u32 s14, s14, 1")
    a("s_cmp_lt_u32 s14, 8")
    a("s_cbranch_scc1 SEL_SLOW")
    a("s_branch SEL_GATHER")
    a.lab("SEL_OK")
    a("s_cmp_lg_u32 s2, 0")
    a("s_cbranch_scc1 SEL_NOPUB")
    a(f"v_mov_b32 v{VK+1}, v14")
    a(f"v_add_u32 v8, {WS_SEL}, v2")
    a("s_mov_b32 exec_lo, 0x01010101")
    a("s_mov_b32 exec_hi, 0x01010101")
    a(f"global_store_dwordx2 v8, {vr(VK,2)}, {sr(P_WS,2)} sc1")
    a("s_mov_b64 exec, 1")
    a(f"global_store_dword v8, v14, {sr(P_WS,2)} offset:{WS_BASE-WS_SEL} sc1")
    a("s_mov_b64 exec, -1")
    a("s_waitcnt vmcnt(2)")
    a("s_branch SEL_END")
    a.lab("SEL_NOPUB")
    a("s_waitcnt vmcnt(0)")
    a.lab("SEL_END")
    a("v_mov_b32 v8, 3")
    a(f"ds_write_b32 v1, v8 offset:{F_XR}")
    a.stamp(5)
    a.end()


def ffn_loader(a):
    a.lab("F_LOAD")
    a("s_setprio 3")
    SG, SU, SD = 52, 56, 60
    a("s_sub_u32 s12, s3, 9")
    a("v_lshrrev_b32 v5, 3, v2")
    a("v_bfe_u32 v6, v2, 4, 1")
    a("v_xor_b32 v6, v6, v2")
    a("v_and_b32 v6, 7, v6")
    a("v_mul_u32_u24 v7, 9216, v5")
    a("v_lshl_add_u32 v8, v6, 4, v7")
    a("v_xor_b32 v9, 32, v8")
    a("v_xor_b32 v10, 64, v8")
    a("v_xor_b32 v11, 96, v8")
    a("s_mul_i32 s13, s12, 294912")
    a("s_lshl_b32 s8, s7, 7")
    a("s_add_u32 s13, s13, s8")
    a("s_lshl_b32 s15, s12, 13")
    a(f"s_add_u32 s15, s15, {WA}")
    for d in (SG, SU):
        a(f"s_mov_b32 s{d+2}, 5308416")
        a(f"s_mov_b32 s{d+3}, 0x20000")
    a("s_waitcnt lgkmcnt(0)")
    a(f"s_mov_b64 {sr(SG,2)}, {sr(P_WG,2)}")
    a(f"s_mov_b64 {sr(SU,2)}, {sr(P_WU,2)}")
    a.stamp(23)
    n = 0
    sig = 0

    def pre():
        nonlocal sig
        if n == E("NG", 2):
            bulk_gate(a, 14)
        if n == E("W1", 99):
            a.spin(F_PI, 1, 14, sleep=1)
        if n == E("W0", 99):
            a.spin(F_NONCE, 0, 14, op="lg", sleep=1)
        if n >= WIN_F:
            a(f"s_waitcnt vmcnt({WIN_F-1})")
        if sig < 6 and n - WIN_F + 1 >= 8 * (sig + 1):
            a.signal(F_L + 4 * sig, 14)
            if sig in (0, 2, 5):
                a.stamp(1 + sig // 2)
            sig += 1
    for c in range(6):
        if c >= 3:
            a.spin(F_AC + 4 * (c - 3), 4, 14)
        for R in range(4):
            for mu in range(2):
                pre()
                a(f"s_add_u32 m0, s15, {(c%3)*24576 + R*2048 + mu*1024}")
                if not NOW:
                    a(f"buffer_load_dwordx4 v{8+2*mu+(R&1)}, {sr(SU if mu else SG,4)}, s13 offen {WNT} lds")
                n += 1
            a(f"s_add_u32 s13, s13, {73728 if R < 3 else 73728*9}")
    a.signal(F_D, 14)
    a.stamp(4)
    while sig < 6:
        a(f"s_waitcnt vmcnt({48 - 8*(sig+1)})")
        a.signal(F_L + 4 * sig, 14)
        sig += 1
    a.stamp(3)
    a("s_cmp_eq_u32 s3, 9")
    a("s_cbranch_scc1 F_COMP2")
    a.end()


def ffn_comp(a):
    a.lab("F_COMP")
    a.b0()
    a.lab("F_COMP2")
    a("s_and_b32 s12, s3, 3")
    a("v_lshrrev_b32 v5, 2, v3")
    a("v_bfe_u32 v7, v3, 3, 1")
    a("v_and_b32 v13, 1, v4")
    a("v_lshl_or_b32 v14, v13, 1, v7")
    a("v_and_b32 v15, 7, v3")
    a(f"v_mul_u32_u24 v16, {HS}, v15")
    a(f"v_add_u32 v16, {HB}, v16")
    a("s_mov_b32 s56, 0xff00ff00")
    a("s_mov_b32 s57, 0xff00ff00")
    a("s_lshr_b32 s8, s3, 2")
    a("s_cmp_lg_u32 s8, 1")
    a("s_cbranch_scc1 F_DOWN")
    WF, AG = 24, 8
    a("v_bfe_u32 v6, v3, 1, 1")
    a("v_lshl_or_b32 v8, v6, 2, v14")
    a("v_xor_b32 v8, s12, v8")
    a("v_lshlrev_b32 v8, 4, v8")
    a("v_lshl_add_u32 v8, v5, 7, v8")
    a("v_lshl_add_u32 v8, v6, 10, v8")
    a("v_lshl_add_u32 v8, v4, 11, v8")
    a("v_and_b32 v9, 1, v3")
    a("v_lshl_add_u32 v8, v9, 3, v8")
    a("v_xor_b32 v9, 64, v8")
    a(f"v_add_u32 v10, {WA+49152}, v8")
    a(f"v_add_u32 v11, {WA+49152}, v9")
    a("v_lshlrev_b32 v6, 2, v13")
    a("v_lshrrev_b32 v5, 1, v4")
    a("v_add_u32 v6, v6, v5")
    a("v_lshl_add_u32 v6, v7, 5, v6")
    a("s_lshl_b32 s8, s12, 3")
    a("v_add_lshl_u32 v6, v6, s8, 1")
    a("v_add_u32 v5, v6, v16")
    a("v_and_b32 v6, 6, v3")
    a("v_xor_b32 v6, v6, v4")
    a("v_lshlrev_b32 v6, 4, v6")
    a("v_lshl_add_u32 v6, v15, 7, v6")
    a(f"v_add_u32 v6, {XB}, v6")
    a("v_xor_b32 v7, 64, v6")
    for c in range(6):
        a.spin(F_L + 4 * c, 3, 12, sleep=E("CSL", 1))
        if c in (2, 5):
            a.stamp(2 + c // 3)
        for s in range(3):
            for t in range(2):
                base, off = (8 + t, WA + (c % 3) * 24576 + s * 8192) if c % 3 < 2 else (10 + t, s * 8192)
                r = WF + 8 * (3 * c + s) + 4 * t
                a(f"ds_read_b64_tr_b16 {vr(r,2)}, v{base} offset:{off}")
                a(f"ds_read_b64_tr_b16 {vr(r+2,2)}, v{base} offset:{off+512}")
        if c < 3:
            a("s_waitcnt lgkmcnt(0)")
            a.signal(F_AC + 4 * c, 12)
    a("s_setprio 3")
    a.spin(F_XR, 1, 12)
    a.stamp(4)
    a.auto(True)
    xs = lambda s: 16 + 4 * s
    def xrd(s):
        a(f"ds_read_b128 {vr(xs(s),4)}, v{7 if s&1 else 6} offset:{1024*(s>>1)}")
    xrd(0); xrd(1)
    nx = 2
    for s in range(18):
        for t in range(2):
            a(f"v_mfma_f32_16x16x32_bf16 {vr(AG+4*t,4)}, {vr(WF+8*s+4*t,4)}, {vr(xs(s),4)}, {vr(AG+4*t,4) if s else 0}")
            if nx < 18 and xs(nx) + 4 <= WF + 8 * s + 4 * t + 4:
                xrd(nx); nx += 1
    a.auto(False)
    a.stamp(8)
    for r in range(4):
        a(f"v_cndmask_b32 v{AG+r}, v{AG+r}, v{AG+4+r}, s[56:57]")
    a(f"v_permlane32_swap_b32 v{AG}, v{AG+1}")
    a(f"v_permlane32_swap_b32 v{AG+2}, v{AG+3}")
    for op in ("v_cvt_pk_bf16_f32 v{u}, v{g}, v{u}", "v_lshlrev_b32 v{g}, 16, v{u}", "v_mul_f32 v{t}, 0xbfb8aa3b, v{g}", "v_exp_f32 v{t}, v{t}",
               "v_and_b32 v{u}, 0xffff0000, v{u}", "v_add_f32 v{t}, 1.0, v{t}", "v_rcp_f32 v{t}, v{t}", "v_mul_f32 v{g}, v{g}, v{t}",
               "v_cvt_pk_bf16_f32 v{g}, v{g}, v{g}", "v_and_b32 v{g}, 0xffff0000, v{g}", "v_mul_f32 v{g}, v{g}, v{u}"):
        for p in range(2):
            a(op.format(g=AG + 2 * p, u=AG + 2 * p + 1, t=AG + 4 + p))
    a(f"v_cvt_pk_bf16_f32 v{AG}, v{AG}, v{AG+2}")
    a(f"ds_write_b16 v5, v{AG}")
    a(f"ds_write_b16_d16_hi v5, v{AG} offset:4")
    a.signal(F_HR, 12)
    a.stamp(5)
    a.end()
    a.lab("F_DOWN")
    RW, DF, AC, HF = 24, 56, 120, 152
    a("v_lshl_add_u32 v10, v4, 4, v16")
    a(f"v_mov_b32 v18, {HB+8*HS}")
    a("v_cndmask_b32 v19, v18, v10, s[56:57]")
    a("v_cndmask_b32 v18, v10, v18, s[56:57]")
    a("v_and_b32 v20, 31, v2")
    a("v_lshlrev_b32 v20, 2, v20")
    a(f"v_add_u32 v20, {HB+8*HS}, v20")
    a("ds_write_b32 v20, v1")
    a("v_mul_u32_u24 v8, 9216, v4")
    a("s_mul_i32 s13, s7, 73728")
    for j in range(4):
        a(f"s_mov_b32 s{60+j}, {0x07060500+j:#x}")
    a("s_mov_b32 s64, 0x05040100")
    a("s_mov_b32 s65, 0x07060302")
    a("s_lshl_b32 s14, s7, 7")
    a(f"s_add_u32 s14, s14, {WS_MB}")
    a("v_lshl_add_u32 v11, v15, 4, s14")
    a("s_waitcnt lgkmcnt(0)")
    srd(a, 52, P_WS, WS_SIZE)
    srd(a, 68, P_WD, 5308416)
    a("s_cmp_eq_u32 s3, 9")
    a("s_cbranch_scc1 F_DN2")

    def down(nd):
        nf = 2 * nd
        raw = lambda q, e: (RW if q == 0 else 88) + nd * e
        frg = lambda q, j: (DF if q == 0 else RW) + 4 * j
        for q in range(2):
            for e in range(8):
                if nd == 4 and E("DE", 4) and 8 * q + e == E("DE", 4):
                    a.spin(F_D, 4, 12, sleep=1)
                if not NOW:
                    a(f"buffer_load_dword{'x4' if nd == 4 else 'x2'} {vr(raw(q,e),nd)}, v8, s[68:71], s13 offen offset:{1152*(e&3)}")
                if e & 3 == 3:
                    a(f"s_add_u32 s13, s13, {4608 if e == 3 else 36864-4608}")
        def perms(q, p):
            a(f"s_waitcnt vmcnt({14 - 8*q - 2*p})")
            for j in range(nf):
                a(f"v_perm_b32 v{frg(q,j)+p}, v{raw(q,2*p+1)+(j>>1)}, v{raw(q,2*p)+(j>>1)}, s{64+(j&1)}")

        def mms(q):
            for j in range(nf):
                if nd == 4:
                    c = vr(AC + 4 * (j & 3), 4)
                    a(f"v_mfma_f32_16x16x32_bf16 {c}, {vr(frg(q,j),4)}, {vr(HF+8*(j>>2)+4*q,4)}, {c if q or j > 3 else 0}")
                else:
                    a(f"v_mfma_f32_16x16x32_bf16 {vr(AC+4*j,4)}, {vr(frg(q,j),4)}, {vr(HF+4*q,4)}, {vr(AC+4*j,4) if q else 0}")
        for q, p in [(0, 0), (0, 1), (0, 2), (0, 3), (1, 0), (1, 1)]:
            perms(q, p)
        a.spin(F_HR, 4, 12)
        a.stamp(5)
        for q in range(2):
            if nd == 4:
                a(f"ds_read_b128 {vr(HF+4*q,4)}, v18 offset:{64*q}")
                a(f"ds_read_b128 {vr(HF+8+4*q,4)}, v19 offset:{64*q}")
            else:
                a(f"ds_read_b128 {vr(HF+4*q,4)}, v10 offset:{64*q}")
        a(f"s_waitcnt lgkmcnt({nd//2})")
        mms(0)
        a("s_waitcnt lgkmcnt(0)")
        perms(1, 2)
        perms(1, 3)
        a.stamp(4)
        mms(1)
        O = 88
        for r in range(nd):
            for j in range(4):
                if nd == 4:
                    a(f"v_perm_b32 v{O+4*r+j}, v{AC+4*j+r}, v17, s{60+j}")
                else:
                    a(f"v_cndmask_b32 v{O+4*r+j}, v{AC+4*j+2*r}, v{AC+4*j+2*r+1}, s[56:57]")
            if nd == 2:
                for j in range(4):
                    a(f"v_perm_b32 v{O+4*r+j}, v{O+4*r+j}, v17, s{60+j}")
            a(f"s_mov_b32 s12, {18432*r}")
            a(f"buffer_store_dwordx4 {vr(O+4*r,4)}, v11, s[52:55], s12 offen sc1")
        a.stamp(6)
        a.end()
    a("v_lshl_add_u32 v8, v3, 4, v8")
    a("s_lshl_b32 s8, s3, 8")
    a("s_add_u32 s13, s13, s8")
    a("s_lshl_b32 s8, s3, 5")
    a("v_lshl_add_u32 v6, v4, 3, v7")
    a("v_add_u32 v6, s8, v6")
    a("v_mul_u32_u24 v6, 9216, v6")
    a("v_add_u32 v11, v6, v11")
    a.spin(F_X, 0, 17, op="lg", sleep=2)
    a.spin(F_D, 3 if E("DE", 4) else 4, 12, sleep=1)
    a("s_setprio 2")
    down(4)
    a.lab("F_DN2")
    a("v_lshl_add_u32 v8, v3, 3, v8")
    a("s_add_u32 s13, s13, 1024")
    a("v_lshl_add_u32 v6, v4, 2, v7")
    a("v_add_u32 v6, 128, v6")
    a("v_mul_u32_u24 v6, 9216, v6")
    a("v_add_u32 v11, v6, v11")
    a.spin(F_X, 0, 17, op="lg")
    down(2)


def helper(a):
    a.lab("HELPER")
    if not HPN:
        a.end()
        return
    if E("TOUCH", 0):
        a(f"s_cmp_lg_u32 s3, {2+HPW}")
        a("s_cbranch_scc1 H_NT")
        a("v_lshlrev_b32 v5, 19, v3")
        a("v_min_u32 v6, 5308412, v5")
        a("v_min_u32 v5, 2359292, v5")
        a("s_waitcnt lgkmcnt(0)")
        a.b0(13)
        a(f"global_load_dword v8, v6, {sr(P_WD,2)}")
        a(f"global_load_dword v9, v5, {sr(P_OUT,2)}")
        a.lab("H_NT")
    a(f"s_cmp_ge_u32 s3, {2+HPW}")
    a("s_cbranch_scc1 K_END")
    a("s_and_b32 s12, s3, 1")
    a("s_sub_u32 s13, s3, 2")
    a("s_lshr_b32 s13, s13, 1")
    a("s_mul_i32 s13, s13, 5")
    a("s_add_u32 s13, s13, s5")
    a(f"s_add_u32 s13, s13, {(HPS-NJF) & 0xffffffff}")
    prefetch(a, HPN, E("HH", 0))
    if STAMP:
        a("s_waitcnt vmcnt(0)")
        a.stamp(1)
    a.end()


DSK, EXPN = 166, 167
PA, PB, A16, PC, PD, A32, E2, EF = 104, 108, 112, 116, 120, 124, 128, 152


def cmul(a, d, x, y):
    a(f"v_pk_mul_f32 {vr(d,2)}, {vr(x,2)}, {vr(y,2)} op_sel:[0,0] op_sel_hi:[0,1]")
    a(f"v_pk_fma_f32 {vr(d,2)}, {vr(x,2)}, {vr(y,2)}, {vr(d,2)} op_sel:[1,1,0] op_sel_hi:[1,0,1] neg_lo:[0,1,0]")


def kgen_head(a):
    a.lab("C_KGEN")
    a.fine(6)
    PR = 16
    a("s_and_b32 s4, s2, 7")
    a("s_mul_i32 s7, s4, 18")
    a("s_add_u32 s7, s7, s5")
    a(f"s_sub_u32 s7, s7, {NJH}")
    a("s_and_b32 s12, s3, 3")
    a("s_lshr_b32 s13, s3, 2")
    a("s_lshl2_add_u32 s8, s7, s12")
    a("s_lshl1_add_u32 s8, s8, s13")
    a("s_lshl_b32 s8, s8, 7")
    a("v_lshl_add_u32 v5, v2, 1, s8")
    for k in range(3):
        a(f"v_mov_b64 {vr(PR+2*k,2)}, 0")
    a("s_lshl_b32 s55, s7, 3")
    a("s_waitcnt lgkmcnt(0)")
    a.fine(7)
    a(f"s_load_dwordx2 s[58:59], {sr(P_LDT,2)}, s55")
    for k, p in enumerate([P_ARE, P_AIM, P_BRE, P_BIM, P_CRE, P_CIM]):
        a(f"global_load_short_d16_hi v{PR+k}, v5, {sr(p,2)}")
    a.stamp(22)
    a.b0()
    a("s_branch C_KBODY")


def kgen(a):
    a.lab("C_KBODY")
    PR = 16
    a(f"s_load_dwordx2 s[68:69], {sr(P_DSK,2)}, s55")
    a("s_setprio 2")
    a("v_and_b32 v3, 15, v2")
    a("v_lshrrev_b32 v4, 4, v2")
    a("s_and_b32 s4, s2, 7")
    a(f"s_mul_i32 s15, s3, {KTS}")
    a(f"s_add_u32 s15, s15, {KT}")
    a(f"s_mul_i32 s52, s12, {4*CS}")
    a(f"s_add_u32 s52, s52, {KC}")
    a(f"s_mul_i32 s53, s12, {US}")
    a(f"s_add_u32 s53, s53, {UP}")
    a(f"v_mul_u32_u24 v7, {TS}, v3")
    a("v_lshl_add_u32 v7, v4, 4, v7")
    a("v_add_u32 v7, s15, v7")
    a("s_mov_b32 m0, s15")
    a.lab("C_SETD")
    a.fine(8)
    a("s_waitcnt lgkmcnt(0)")
    a.auto(True)
    a("s_lshl_b32 s8, s12, 4")
    a("s_lshr_b64 s[58:59], s[58:59], s8")
    a("s_lshl_b32 s8, s58, 16")
    a("v_mov_b32 v44, s8")
    a(f"v_mul_f32 v45, {L2E:#x}, v44")
    a(f"v_mov_b32 v46, {L2E:#x}")
    a("v_fma_f32 v46, v44, v46, -v45")
    a(f"v_mov_b32 v47, {L2E_LO:#x}")
    a("v_fma_f32 v46, v44, v47, v46")
    a("v_exp_f32 v45, v45")
    a(f"v_mul_f32 v46, {LN2:#x}, v46")
    a("v_fma_f32 v45, v45, v46, v45")
    a("v_cvt_pk_bf16_f32 v45, v45, v45")
    DT, DTL, DTR = 36, 37, 38
    a(f"v_and_b32 v{DT}, 0xffff0000, v45")
    a(f"v_mul_f32 v{DTL}, {L2E:#x}, v{DT}")
    a(f"v_mul_f32 v{DTR}, {INV2PI:#x}, v{DT}")
    a("s_waitcnt vmcnt(0)")
    a.stamp(1)
    if STAMP and E("CLK2"):
        a("s_memtime s[90:91]")
    ZR, ZI, WR = 40, 41, 42
    a(f"v_mul_f32 v{ZR}, v{PR}, v{DTL}")
    a(f"v_mul_f32 v{ZI}, v{PR+1}, v{DTR}")
    T0 = 24

    def direct(dst, c):
        if c != 1:
            a(f"v_mul_f32 v{dst}, {fbits(c):#x}, v{ZR}")
            a(f"v_mul_f32 v{dst+1}, {fbits(c):#x}, v{ZI}")
        a(f"v_exp_f32 v{T0}, v{dst if c != 1 else ZR}")
        a(f"v_fract_f32 v{dst+1}, v{dst+1 if c != 1 else ZI}")
        a(f"v_cos_f32 v{dst}, v{dst+1}")
        a(f"v_sin_f32 v{dst+1}, v{dst+1}")
        a(f"v_mul_f32 v{dst}, v{T0}, v{dst}")
        a(f"v_mul_f32 v{dst+1}, v{T0}, v{dst+1}")
    PW, R1 = 46, 44
    pc = lambda c: PW + 2 * (c - 1)
    direct(pc(1), 1)
    a(f"v_mul_f32 v{PR+2}, v{PR+2}, v{DT}")
    a(f"v_mul_f32 v{PR+3}, v{PR+3}, v{DT}")
    cmul(a, WR, PR + 4, PR + 2)
    a(f"v_max_f32 v39, |v{WR}|, |v{WR+1}|")
    side = wave_max_steps(39) + ["v_readlane_b32 s8, v39, 63"]
    OT = [26, 27, 28, 29]
    cnt = [0]

    pend = []

    def flush():
        while pend:
            a(pend.pop(0))

    def emit(row, x):
        o = OT[cnt[0] % 4]
        cnt[0] += 1
        flush()
        a(f"v_cvt_pk_f16_f32 v{o}, v{x}, v{x+1}")
        pend.append(f"ds_write_addtid_b32 v{o} offset:{row*TS}")
    cmul(a, pc(2), pc(1), pc(1))
    cmul(a, pc(4), pc(2), pc(2))
    Q1, QA, QB = 60, 62, 64
    cmul(a, Q1, pc(4), pc(4))
    a(f"v_mov_b32 v30, 0x3c00")
    a(f"v_xor_b32 v{Q1+1}, 0x80000000, v{Q1+1}")
    a("ds_write_addtid_b32 v30")
    emit(1, Q1)
    cur, nxt = Q1, QA
    for b in range(2, 16):
        cmul(a, nxt, cur, Q1)
        if side:
            a(side.pop(0))
        emit(b, nxt)
        cur, nxt = nxt, (QB if nxt == QA else QA)
    a("s_lshr_b32 s8, s8, 23")
    a("s_sub_u32 s8, 258, s8")
    a("s_min_u32 s54, s8, 253")
    a("s_lshl_b32 s8, s54, 23")
    a(f"v_mul_f32 v{WR}, s8, v{WR}")
    a(f"v_mul_f32 v{WR+1}, s8, v{WR+1}")
    QF, PF, KA = 72, 88, 104
    flush()
    for ks in range(4):
        a(f"ds_read_b128 {vr(QF+4*ks,4)}, v7 offset:{64*ks}")
    direct(R1, 128)
    cmul(a, pc(3), pc(2), pc(1)); cmul(a, pc(5), pc(4), pc(1)); cmul(a, pc(6), pc(3), pc(3)); cmul(a, pc(7), pc(6), pc(1))
    CH = [66, 68]
    YC = [60, 62]
    state = {"cur": WR, "k": 0, "y": 0}

    def adv():
        n = CH[state["k"] & 1]
        cmul(a, n, state["cur"], R1)
        state["cur"] = n; state["k"] += 1

    def row(r, c):
        if c == 0:
            emit(r, state["cur"])
        else:
            y = YC[state["y"] & 1]; state["y"] += 1
            cmul(a, y, state["cur"], pc(c))
            emit(r, y)

    def rd():
        flush()
        for ks in range(4):
            a(f"ds_read_b128 {vr(PF+4*ks,4)}, v7 offset:{64*ks}")

    def mm(t, ks):
        a(f"v_mfma_f32_16x16x32_f16 {vr(KA+4*t,4)}, {vr(PF+4*ks,4)}, {vr(QF+4*ks,4)}, {vr(KA+4*t,4) if ks else 0}")
    for h in range(2):
        for c in range(8):
            row(8 * h + c, c)
        adv()
    rd()
    for h in range(2):
        for c in range(4):
            row(4 * h + c, 2 * c)
            if h == 1:
                mm(0, c)
        adv()
    for q in range(4):
        row(8 + 2 * q, 0); row(9 + 2 * q, 4)
        adv()
    rd()
    for q in range(9):
        row(q, 0)
        if q < 8:
            adv()
        if 4 <= q < 8:
            mm(1, q - 4)
    rd()
    a("v_lshl_add_u32 v8, v2, 4, s15")
    for ks in range(4):
        mm(2, ks)
    a.auto(False)
    a.stamp(2)
    if STAMP and E("CLK2"):
        a("s_memtime s[96:97]")
    a("s_lshl_b32 s8, s12, 2")
    a(f"s_add_u32 s8, s8, {F_PAIR}")
    a("v_mov_b32 v9, s8")
    a("s_cmp_eq_u32 s13, 0")
    a("s_cbranch_scc1 C_KA")
    for t in range(3):
        a(f"ds_write_b128 v8, {vr(KA+4*t,4)} offset:{1024*t}")
    a("v_mov_b32 v10, s54")
    a("ds_write_b32 v9, v10")
    a.stamp(3)
    a("s_setprio 0")
    a("v_and_b32 v14, 3, v3")
    a("v_sub_u32 v14, 3, v14")
    a(f"v_mul_u32_u24 v14, {CS}, v14")
    a("v_lshrrev_b32 v13, 2, v3")
    a("v_lshl_add_u32 v13, v4, 1, v13")
    a("v_lshl_add_u32 v14, v13, 3, v14")
    a("v_add3_u32 v5, v14, s52, 8")
    a("v_lshlrev_b32 v14, 1, v3")
    a("v_sub_u32 v14, v4, v14")
    a("v_lshlrev_b32 v14, 4, v14")
    a(f"s_add_u32 s8, s53, {4064-512*7}")
    a("v_add_u32 v6, s8, v14")
    a("v_lshl_add_u32 v14, v3, 2, v4")
    a(f"s_mul_i32 s8, s12, {OS}")
    a(f"s_add_u32 s8, s8, {OP+4088-512*7}")
    a("v_lshlrev_b32 v14, 3, v14")
    a("v_sub_u32 v7, s8, v14")
    a.spin(F_H, 1, 10, prio=E("BSP", 3), sleep=1)
    a.spin(f"v9 offset:{F_K-F_PAIR}", 0, 10, op="lg", sleep=E("BSS", 0))
    a.stamp(4)
    gphase(a, 0)
    a.lab("C_KA")
    a("s_setprio 1")
    a("v_and_b32 v14, 3, v3")
    a("v_sub_u32 v14, 3, v14")
    a(f"v_mul_u32_u24 v14, {CS}, v14")
    a("v_lshrrev_b32 v13, 2, v3")
    a("v_lshl_add_u32 v13, v4, 1, v13")
    a("v_lshl_add_u32 v14, v13, 3, v14")
    a("v_add3_u32 v5, v14, s52, 8")
    a("v_lshlrev_b32 v14, 1, v3")
    a("v_sub_u32 v14, v4, v14")
    a("v_lshlrev_b32 v14, 4, v14")
    a(f"s_add_u32 s8, s53, {4064-512*7}")
    a("v_add_u32 v6, s8, v14")
    a("v_lshl_add_u32 v14, v3, 2, v4")
    a(f"s_mul_i32 s8, s12, {OS}")
    a(f"s_add_u32 s8, s8, {OP+4088-512*7}")
    a("v_lshlrev_b32 v14, 3, v14")
    a("v_sub_u32 v7, s8, v14")
    a("v_lshrrev_b32 v11, 1, v4")
    a("v_and_b32 v12, 1, v4")
    a("v_lshlrev_b32 v11, 8, v11")
    a("v_lshl_add_u32 v11, v12, 3, v11")
    a("v_lshl_add_u32 v11, v3, 4, v11")
    a("v_add_u32 v11, s15, v11")
    a("v_cmp_gt_u32 vcc, 2, v4")
    a("v_lshlrev_b32 v12, 2, v3")
    a("v_lshlrev_b32 v13, 3, v3")
    a("v_cndmask_b32 v12, v12, v13, vcc")
    a("v_lshl_add_u32 v12, v4, 7, v12")
    a("v_add_u32 v12, s15, v12")
    a("v_mov_b32 v13, 64")
    a("v_cndmask_b32 v13, v13, 4, vcc")
    a("v_add_u32 v13, v13, v12")
    a("v_lshlrev_b32 v14, 1, v3")
    a("v_lshl_add_u32 v14, v4, 7, v14")
    a("v_add_u32 v14, s15, v14")
    a("v_lshlrev_b32 v15, 4, v2")
    a("v_lshlrev_b32 v16, 3, v2")
    a("v_add_u32 v16, 256, v16")
    a("v_min_u32 v15, v15, v16")
    a("v_add_u32 v15, s15, v15")
    EB, E2B = 2048, 3072
    a("v_min_u32 v16, 15, v2")
    a("v_lshl_add_u32 v16, v16, 2, s15")
    a("v_lshrrev_b32 v26, 5, v2")
    a("v_lshlrev_b32 v26, 8, v26")
    a("v_lshl_add_u32 v26, v2, 2, v26")
    a("v_add_u32 v26, s15, v26")
    a("v_lshlrev_b32 v17, 2, v4")
    a("v_sub_u32 v17, v3, v17")
    a("v_lshl_add_u32 v27, v17, 3, s15")
    a(f"v_add_u32 v27, {E2B+104}, v27")
    a("v_lshl_add_u32 v17, v17, 2, s15")
    a(f"v_add_u32 v17, {EB+52}, v17")
    a("v_lshl_add_u32 v19, v2, 4, s52")
    a("s_mov_b32 s56, 0x01000100")
    a("s_mov_b32 s57, 0x03020302")
    a("s_lshl_b32 s8, s12, 4")
    a("s_lshr_b64 s[68:69], s[68:69], s8")
    a("s_lshl_b32 s68, s68, 16")
    a("s_sub_u32 s58, 254, s54")
    a("s_lshl_b32 s58, s58, 23")
    for r in range(12):
        a(f"v_mul_f32 v{KA+r}, s58, v{KA+r}")
    a("s_mov_b64 exec, 1")
    a(f"v_add_f32 v{KA}, s68, v{KA}")
    a("s_mov_b64 exec, -1")
    for r in (3, 7, 10, 11, 14, 15):
        a(f"v_mov_b32 v{72+r}, 0")
    a("v_lshlrev_b32 v28, 4, v2")
    a(f"v_add_u32 v28, {PM}, v28")
    a.spin(F_PM, 2, 18)
    for k, r in ((2, PC), (3, PD), (4, A32)):
        a(f"ds_read_b128 {vr(r,4)}, v28 offset:{1024*k}")
    a.spin("v9", 0, 18, prio=2, op="lg")
    a("s_sub_u32 s60, 254, s8")
    a("s_lshl_b32 s60, s60, 23")
    a.auto(True)
    for t in range(3):
        a(f"ds_read_b128 {vr(PF+4*t,4)}, v8 offset:{4*KTS+1024*t}")
    for t in range(3):
        for p in range(2):
            r = 4 * t + 2 * p
            a(f"v_pk_fma_f32 {vr(KA+r,2)}, {vr(PF+r,2)}, s[60:61], {vr(KA+r,2)} op_sel_hi:[1,0,1]")
            a(f"v_cvt_pk_bf16_f32 v{20+2*t+p}, v{KA+r}, v{KA+r+1}")
        if t == 0:
            a("ds_write_b64 v11, v[20:21]")
        elif t == 1:
            a("ds_write_b32 v12, v22 offset:512")
            a("ds_write_b32 v13, v23 offset:512")
            S = 32
            for p in range(2):
                a(f"ds_read_b64 {vr(S+2*p,2)}, v15 offset:{8*p}")
    a("s_mov_b32 exec_lo, 0")
    a(f"v_alignbit_b32 v{S+3}, v{S+2}, v{S+1}, 16")
    a(f"v_perm_b32 v{S+2}, v{S+1}, v{S+1}, s56")
    a(f"v_alignbit_b32 v{S+1}, v{S+1}, v{S}, 16")
    a(f"v_perm_b32 v{S}, v{S}, v{S}, s56")
    a("s_mov_b32 exec_lo, -1")
    a(f"ds_write_b128 v19, {vr(S,4)} offset:32")
    a(f"v_mov_b32_dpp v{S-2}, v{S+2} wave_shr:1 {DPPF} bound_ctrl:0")
    a(f"v_mov_b32_dpp v{S-1}, v{S+3} wave_shr:1 {DPPF} bound_ctrl:0")
    C1, C2, C3 = 44, 52, 60
    for p in range(4):
        a(f"v_alignbit_b32 v{C1+p}, v{S+p}, v{S+p-1}, 16")
    a(f"ds_write_b128 v19, {vr(C1,4)} offset:{CS+32}")
    for p in range(4):
        a(f"v_mov_b32 v{C2+p}, v{S+p-1}")
    a(f"ds_write_b128 v19, {vr(C2,4)} offset:{2*CS+32}")
    for p in range(4):
        a(f"v_alignbit_b32 v{C3+p}, v{S+p-1}, v{S+p-2}, 16")
    a(f"ds_write_b128 v19, {vr(C3,4)} offset:{3*CS+32}")
    a("v_mov_b32 v10, 1")
    a(f"ds_write_b32 v9, v10 offset:{F_K-F_PAIR}")
    a.stamp(3)
    a(f"s_setprio {E('GPL', 3)}")
    TL = 72
    a(f"v_perm_b32 v{TL+1}, v{S+3}, v{S+3}, s57")
    a(f"v_alignbit_b32 v{TL}, v{S+3}, v{S+2}, 16")
    a(f"v_lshrrev_b32 v{TL+6}, 16, v{S+3}")
    a(f"v_mov_b32 v{TL+4}, v{S+3}")
    for r in (2, 5, 8, 9, 12):
        a(f"v_mov_b32 v{TL+r}, v{TL+1}")
    a(f"v_mov_b32 v{TL+13}, v{TL+6}")
    a("s_mov_b32 exec_lo, 0")
    for r in range(4):
        a(f"ds_write_b16{'_d16_hi' if r&1 else ''} v{12+(r>>1)}, v{22+(r>>1)} offset:{E2B-130+2*(r&1)}")
    a("s_mov_b32 exec_hi, 0x80000000")
    for j in range(4):
        a(f"ds_write_b128 v19, {vr(TL+4*(3-j),4)} offset:{j*CS+48}")
    a("s_mov_b64 exec, 1")
    a(f"ds_write_b16 v14, v24 offset:{E2B+382}")
    a("s_mov_b64 exec, -1")
    a(f"ds_write_b32 v26, v1 offset:{E2B}")
    for r in range(4):
        a(f"ds_write_b16{'_d16_hi' if r&1 else ''} v14, v{24+(r>>1)} offset:{EB+62+32*r}")
    a(f"ds_write_b32 v16, v1 offset:{EB}")
    a("v_readlane_b32 s59, v24, 0")
    a("v_mov_b32 v11, v27")
    a("v_mov_b32 v12, v17")
    a("v_mov_b32 v13, v28")
    a("s_pack_ll_b32_b16 s59, s59, s59")
    a.auto(False)
    a.spin(F_H, 2, 10, sleep=1)
    a.stamp(4)
    gphase(a, 1)


def gphase(a, isA):
    M = "v_mfma_f32_16x16x32_bf16"
    rdA = lambda m, d: [f"ds_read_b64 {vr(d,2)}, v5 offset:{64*m}", f"ds_read_b64 {vr(d+2,2)}, v5 offset:{64*m+8}"]
    rdB = lambda b, rho, d, extra=0: f"ds_read_b128 {vr(d,4)}, v6 offset:{512*(7-b)+64*rho+extra}"
    slot = lambda t: 1024 * (t - 2) if t < 6 else 4 * KTS + 1024 * (t - 6)

    def emit(main, fill=[], per=2, skip=0):
        for x in interleave(main, fill, per=per, skip=skip):
            a(x)
    if isA:
        a(f"s_setprio {E('GPA', 1)}")
        AC = 16
        acc = lambda t: vr(AC + 4 * (t - 2), 4)
        started = set()

        def mf(t, A, B):
            c = acc(t) if t in started else "0"
            started.add(t)
            return f"{M} {acc(t)}, {vr(A,4)}, {vr(B,4)}, {c}"
        U = lambda b: 40 + 8 * (b & 1)
        Z = lambda b: 56 + 24 * (b & 1)
        urd = lambda b: [rdB(b, 0, U(b)), rdB(b, 0, U(b) + 4, 16)]
        PL = [(0, PC), (0, PD), (1, PC), (1, PD), (0, PA), (1, PB)]
        pool2 = lambda b: [f"{M} {vr(Z(b)+4*k,4)}, {vr(U(b)+4*h,4)}, {vr(P,4)}, 0" for k, (h, P) in enumerate(PL) if k < 4] + [mf(b + 2, A16, U(b))]
        pool3 = lambda b: [f"{M} {vr(Z(b)+4*k,4)}, {vr(U(b)+4*h,4)}, {vr(P,4)}, 0" for k, (h, P) in enumerate(PL) if k >= 4] + [mf(b + 4, A32, U(b))] if b < 4 else []
        cvt = lambda b, fs: [f"v_cvt_pk_bf16_f32 v{Z(b)+8*f+r}, v{Z(b)+8*f+r}, v{Z(b)+8*f+4+r}" for f in fs for r in range(4)]
        use2 = lambda b, lo, hi: [mf(b + 2 + D, Z(b) + 8 * f, E2 + 8 * D + 4 * f) for D in range(3) if lo <= b + 2 + D < min(hi, 8) for f in range(2)]
        use3 = lambda b: [mf(t, Z(b) + 16, EF + 4 * (t - b - 4)) for t in range(b + 4, 8)]
        hand = lambda t: [f"ds_write_b128 v8, {acc(t)} offset:{slot(t)}", f"v_mov_b32 v10, {t}", f"ds_write_b32 v9, v10 offset:{F_I-F_PAIR}"]
        e2rd = lambda D: [x for f in range(2) for x in (f"ds_read2_b32 {vr(E2+8*D+4*f,2)}, v11 offset0:{32*D+6+f} offset1:{32*D+4+f}",
                                                        f"ds_read2_b32 {vr(E2+8*D+4*f+2,2)}, v11 offset0:{32*D+2+f} offset1:{32*D+f}")]
        efrd = [x for D in range(4) for x in (f"ds_read2_b32 {vr(EF+4*D,2)}, v12 offset0:{16*D+3} offset1:{16*D+2}",
                                              f"ds_read2_b32 {vr(EF+4*D+2,2)}, v12 offset0:{16*D+1} offset1:{16*D}")]
        a.auto(True)
        emit(urd(0) + urd(1) + rdA(16, A16) + e2rd(0))
        for p in range(4):
            a(f"v_and_b32 v{A32+p}, s59, v{A32+p}")
        emit(pool2(0), e2rd(1) + [f"ds_read_b128 {vr(PA,4)}, v13", f"ds_read_b128 {vr(PB,4)}, v13 offset:1024"], per=1)
        emit(pool2(1), cvt(0, (0, 1)))
        emit(use2(0, 2, 4), cvt(1, (0, 1)))
        emit(use2(1, 2, 4) + pool3(0) + pool3(1), e2rd(2) + hand(2) + efrd + hand(3), per=2)
        a.auto(False)
        a.spin(F_H, 4, 10, sleep=1)
        a(f"s_setprio {E('GPA2', 3)}")
        a.auto(True)
        emit(urd(2) + urd(3) + use2(0, 4, 8) + use2(1, 4, 8), cvt(0, (2,)) + cvt(1, (2,)))
        emit(pool2(2) + use3(0) + use3(1))
        emit(pool2(3) + pool3(2), cvt(2, (0, 1)))
        emit(use2(2, 4, 8) + pool3(3), cvt(3, (0, 1)) + cvt(2, (2,)) + hand(4))
        emit(use2(3, 4, 8) + use3(2), cvt(3, (2,)) + ["s_nop 0"] * 4 + hand(5))
        emit(use3(3))
        a.auto(False)
        a.stamp(5)
        a(f"s_setprio {E('GPA3', 3)}")
        a.spin(F_H, 6, 10, sleep=1)
        a.auto(True)
        emit(urd(4) + urd(5) + pool2(4))
        emit(pool2(5), cvt(4, (0, 1)))
        emit(use2(4, 4, 8), cvt(5, (0, 1)))
        emit(use2(5, 4, 8) + hand(6) + hand(7))
        a.auto(False)
        a.stamp(7)
        a.end()
        return
    a(f"s_setprio {E('GPB', 2)}")
    AF, BF, NB = 40, 104, 6
    acc = lambda t: 16 + 4 * (t % 3)
    a(f"v_subrev_u32 v8, {4*KTS}, v8")
    a("v_cmp_eq_u32 vcc, 0, v2")
    a(f"v_mov_b32 v13, {F_O}")
    a("v_cndmask_b32 v12, 0, 1, vcc")
    a("v_lshlrev_b32 v14, 2, v2")
    a(f"v_add_u32 v14, {PM+5120}, v14")
    a("v_cndmask_b32 v13, v14, v13, vcc")
    stage = {1: 0, 3: 1, 5: 2, 6: 3, 7: 4}

    PT = 32

    def yout(t):
        o = [f"v_add_f32 v{acc(t)+r}, v{acc(t)+r}, v{PT+r}" for r in range(4)] if t >= 2 else []
        o += [f"v_cvt_pk_bf16_f32 v30, v{acc(t)+3}, v{acc(t)+2}", f"v_cvt_pk_bf16_f32 v31, v{acc(t)+1}, v{acc(t)}",
              f"ds_write_b64 v7, v[30:31] offset:{512*(7-t)}"]
        if t in stage:
            o.append(f"ds_add_u32 v13, v12 offset:{4*stage[t]}")
        return o
    bf = lambda n: BF + 4 * (n % NB)
    rdn = lambda n: rdB(n >> 3, n & 7, bf(n))
    part = lambda t: [f"ds_read_b128 {vr(PT,4)}, v8 offset:{slot(t)}"] if t >= 2 else []
    a.auto(True)
    emit(rdA(0, AF) + [rdn(0)] + rdA(8, AF + 32) + [rdn(1)] + rdA(1, AF + 4) + rdA(9, AF + 36) + [rdn(2), rdn(3)])
    for b in range(8):
        y = yout(b - 1) if b else []
        for rho in range(8):
            n = 8 * b + rho
            f0, f1 = [], []
            if b == 0 and rho < 6:
                f0, f1 = rdA(rho + 2, AF + 4 * (rho + 2)), rdA(rho + 10, AF + 32 + 4 * (rho + 2))
            if b and rho in (2, 3):
                f0, f1, y = y[:2], y[2:4], y[4:]
            if rho == 4:
                f0 = f0 + [f"ds_read_b32 v28, v1 offset:{F_H}", f"ds_read_b32 v29, v9 offset:{F_I-F_PAIR}"]
            if rho == 5:
                f0 = f0 + part(b)
            if rho == 6:
                f1 = f1 + ["v_readfirstlane_b32 s9, v29"]
            if rho == 7:
                f0 = f0 + ["v_readfirstlane_b32 s8, v28", "s_add_u32 s9, s9, 2"]
                if b < 2:
                    f1 = f1 + [f"s_cmp_lt_u32 s8, {b+2}"]
                elif b < 7:
                    f1 = f1 + ["s_min_u32 s8, s8, s9", f"s_cmp_lt_u32 s8, {b+2}"]
                else:
                    f1 = f1 + ["s_cmp_lt_u32 s9, 9"]
            if n + 4 < 64:
                f1 = [rdn(n + 4)] + f1
            a(f"{M} {vr(acc(b),4)}, {vr(AF+4*rho,4)}, {vr(bf(n),4)}, {vr(acc(b),4) if n else 0}")
            emit(f0)
            if b < 7:
                a(f"{M} {vr(acc(b+1),4)}, {vr(AF+32+4*rho,4)}, {vr(bf(n),4)}, {vr(acc(b+1),4) if rho else 0}")
            emit(f1)
        a(f"s_cbranch_scc1 C_SLOW{b}")
        a.lab(f"KEEP_P{b}")
        if b == 3:
            a.stamp(5)
            if STAMP and E("CLK"):
                a("s_memtime s[82:83]")
    a.stamp(6)
    if STAMP and E("CLK"):
        a("s_memtime s[84:85]")
    emit(yout(7))
    a.auto(False)
    a.stamp(7)
    a(f"ds_read_b32 v10, v1 offset:{F_X}")
    a("s_cmp_eq_u32 s3, 4")
    a("s_cbranch_scc1 C_FIN")
    a.end()
    for b in range(8):
        a.lab(f"C_SLOW{b}")
        if b < 7:
            a.spin(F_H, b + 2, 28)
        if b >= 2:
            a.spin(f"v9 offset:{F_I-F_PAIR}", b, 28)
        for x in part(b) + ([rdn(8 * b + 8 + k) for k in range(4)] if b < 7 else []):
            a(x)
        a("s_waitcnt lgkmcnt(0)")
        a(f"s_branch KEEP_P{b}")


XD, GD = 40, 56
VX, VY, VG, VO = 72, 73, 74, 78


def epi_setup(a):
    srd(a, 60, P_OUT, 2359296)
    a("v_bfe_u32 v79, v2, 2, 2")
    a("v_and_b32 v80, 3, v2")
    a("v_lshl_add_u32 v80, v4, 2, v80")
    a("s_lshl_b32 s8, s12, 7")
    for d, base, stride in ((VX, UP, US), (VY, OP, OS)):
        a(f"v_mul_u32_u24 v{d}, {stride}, v79")
        a(f"v_lshl_add_u32 v{d}, v80, 3, v{d}")
        a(f"s_sub_u32 s9, {base+3968-512*7}, s8")
        a(f"v_add_u32 v{d}, s9, v{d}")
    a("v_xor_b32 v79, 63, v2")
    a("s_lshl_b32 s8, s12, 9")
    a(f"s_add_u32 s8, s8, {WS_G}")
    a(f"v_lshl_add_u32 v{VG}, v79, 3, s8")
    for k in range(1, 4):
        a(f"v_add_u32 v{VG+k}, {4096*k}, v{VG}")
    a(f"v_mul_u32_u24 v{VO}, 1152, v79")
    a(f"v_add_u32 v{VO}, s55, v{VO}")
    a("s_mul_i32 s68, s12, 73728")
    a("s_mov_b32 s70, 0x05040100")
    a("s_mov_b32 s71, 0x07060302")


def epi_x(a, ks):
    for k in ks:
        a(f"ds_read_b64_tr_b16 {vr(XD+2*k,2)}, v{VX} offset:{512*(7-k)}")


def epi_g(a):
    l = a.uid("GP")
    a("s_mov_b32 s9, 0")
    a.lab(l)
    a(f"v_xor_b32 v14, v{GD+1}, v10")
    for k in range(1, 8):
        a(f"v_bitop3_b32 v14, v14, v{GD+2*k+1}, v10 bitop3:0xf6")
    a("v_cmp_ne_u32 vcc, 0, v14")
    a("s_add_u32 s9, s9, 1")
    a("s_cmp_eq_u64 vcc, 0")
    a(f"s_cbranch_scc1 {l}_D")
    a(f"s_cmp_ge_u32 s9, {SPIN}")
    a(f"s_cbranch_scc1 {l}_D")
    epi_gl(a)
    a("s_waitcnt vmcnt(0)")
    a(f"s_branch {l}")
    a.lab(l + "_D")


def epi_gl(a):
    for k in range(8):
        a(f"global_load_dwordx2 {vr(GD+2*k,2)}, v{VG+(k>>1)}, {sr(P_WS,2)} offset:{2048*(k&1)} sc1")


TX = 120


def epi_unp(a, ks):
    for k in ks:
        if k < NF:
            for p in range(2):
                a(f"v_lshlrev_b32 v{TX+4*k+2*p}, 16, v{XD+2*k+p}")
                a(f"v_and_b32 v{TX+4*k+2*p+1}, 0xffff0000, v{XD+2*k+p}")


def epi_mul(a, ks):
    for k in ks:
        if k < NF:
            a(f"v_and_b32 v{16+(k&3)}, 0xffff0000, v{GD+2*k}")
            a(f"v_lshlrev_b32 v{GD+2*k+1}, 16, v{GD+2*k}")
            for c in range(4):
                a(f"v_mul_f32 v{TX+4*k+c}, v{TX+4*k+c}, v{16+(k&3)}")


def epi_fin(a, ks, stage):
    a.spin(F_O + 4 * stage, 4, 15, sleep=E("OSL", 1), prio=E("IOP", 3))
    a.auto(True)
    Y = 16
    for n, k in enumerate(ks):
        a(f"ds_read_b64_tr_b16 {vr(Y+2*n,2)}, v{VY} offset:{512*(7-k)}")
    for n0 in range(0, len(ks), 2):
        pr = [(n, ks[n], 24 + 4 * n) for n in (n0, n0 + 1) if n < len(ks)]
        if ks[n0] < NF:
            for n, k, R in pr:
                for p in range(2):
                    a(f"v_lshlrev_b32 v{R+2*p}, 16, v{Y+2*n+p}")
                    a(f"v_and_b32 v{R+2*p+1}, 0xffff0000, v{Y+2*n+p}")
                for c in range(4):
                    a(f"v_fma_f32 v{R+c}, v{R+c}, v{GD+2*k+1}, v{TX+4*k+c}")
        else:
            for n, k, R in pr:
                for c in range(4):
                    a(f"v_perm_b32 v{R+c}, v{XD+2*k+(c>>1)}, v{Y+2*n+(c>>1)}, s{70+(c&1)}")
            for n, k, R in pr:
                for c in range(4):
                    a(f"v_dot2_f32_bf16 v{R+c}, v{R+c}, v{GD+2*k}, 0")
        for n, k, R in pr:
            for p in range(2):
                a(f"v_cvt_pk_bf16_f32 v{XD+2*k+p}, v{R+2*p}, v{R+2*p+1}")
            if not E("NOST"):
                a(f"buffer_store_dwordx2 {vr(XD+2*k,2)}, v{VO}, s[60:63], s68 offen")
            a("s_add_u32 s68, s68, 294912")
    a.auto(False)


def burst_addr(a):
    a(f"s_sub_u32 s9, s5, {NJH}")
    if GORD:
        a("s_mul_i32 s9, s9, 3")
        a("s_min_u32 s8, s12, 2")
        a("s_add_u32 s9, s9, s8")
        a("s_mul_i32 s9, s9, 12288")
        a("s_mul_i32 s8, s4, 663552")
        a("s_add_u32 s8, s8, s9")
        a("v_lshl_add_u32 v88, v2, 7, s8")
        a("v_min_u32 v89, 31, v2")
        a("v_lshl_add_u32 v89, v89, 7, s8")
        a("v_add_u32 v89, 8192, v89")
        return
    a("s_lshl_b32 s9, s9, 2")
    a("s_add_u32 s9, s9, s12")
    a("s_mul_i32 s9, s9, 9216")
    a("s_mul_i32 s8, s4, 663552")
    a("s_add_u32 s8, s8, s9")
    if BL == 72:
        a("v_lshl_add_u32 v88, v2, 7, s8")
        a("v_min_u32 v89, 7, v2")
        a("v_lshl_add_u32 v89, v89, 7, s8")
        a("v_add_u32 v89, 8192, v89")
    else:
        a(f"s_add_u32 s8, s8, {128*(72-BL)}")
        a(f"v_min_u32 v88, {BL-1}, v2")
        a("v_lshl_add_u32 v88, v88, 7, s8")


def burst(a):
    if BSN:
        for k in range(NBI):
            a(f"global_load_dword v{96+k}, v{88+k}, {sr(P_WD,2)}")


def io_common(a):
    a("s_mul_i32 s7, s4, 18")
    a("s_add_u32 s7, s7, s5")
    a(f"s_sub_u32 s7, s7, {NJH}")
    a("s_lshl_b32 s55, s7, 3")
    a("s_sub_u32 s12, s3, 8")
    epi_setup(a)
    burst_addr(a)


def uloader(a):
    a.lab("C_LOAD")
    a("s_setprio 3")
    a(f"s_sub_u32 s13, s5, {NJH}")
    pf = stripe_pf(a)
    pf2 = []
    if PF2AT >= 0:
        pf, pf2 = pf[:2], [x.replace("v10,", "v98,").replace("v11,", "v99,") for x in pf[2:]]
    a("v_mul_u32_u24 v6, 4608, v2")
    a("s_lshl_b32 s8, s7, 3")
    a("v_add_u32 v6, s8, v6")
    a("v_lshlrev_b32 v7, 3, v2")
    a(f"v_sub_u32 v7, {UP+4088-512*7}, v7")
    a("s_mov_b32 s56, 0x05040100")
    a("s_mov_b32 s58, 0x07060302")
    a("s_mov_b32 s57, s13")
    a("s_waitcnt lgkmcnt(0)")
    if E("PFE", 0):
        for x in pf:
            a(x)
    srd(a, 72, P_U, 2359296)
    if not E("CNG"):
        a.b0(12)
    if E("CDL"):
        a(f"s_sleep {E('CDL')}")
    if E("PFX"):
        a.spin(F_X, 0, 12, op="lg")
    if not E("PFE", 0):
        for k, x in enumerate(pf):
            if k == 2 and E("PF2"):
                a("s_waitcnt vmcnt(0)")
            a(x)
    io_common(a)
    for j in range(4):
        a(f"v_mov_b32 v{24+j}, 0")
    a("v_lshrrev_b32 v28, 2, v2")
    a(f"v_mul_u32_u24 v28, {CS}, v28")
    a(f"v_add_u32 v28, {KC}, v28")
    a("v_and_b32 v29, 3, v2")
    a("v_lshl_add_u32 v30, v29, 4, v28")
    a("ds_write_b128 v30, v[24:27] offset:1072")
    a("v_and_b32 v29, 1, v2")
    a("v_lshl_add_u32 v30, v29, 4, v28")
    a("ds_write_b128 v30, v[24:27]")
    a("v_lshrrev_b32 v28, 5, v2")
    a(f"v_mul_u32_u24 v28, {US}, v28")
    a("v_and_b32 v29, 31, v2")
    a("v_lshl_add_u32 v30, v29, 4, v28")
    a(f"v_add_u32 v30, {UP+4096}, v30")
    a("ds_write_b128 v30, v[24:27]")
    a(f"ds_write_b128 v30, v[24:27] offset:{2*US}")
    a("s_mov_b32 s15, 0")
    if ROT:
        for k in range(4):
            a(f"s_add_u32 s8, s57, {k}")
            a("s_and_b32 s8, s8, 3")
            a(f"s_mul_i32 s{76+k}, s8, 294912")
            a(f"s_add_u32 s{64+k}, s{76+k}, {4*294912}")
            a("s_lshl_b32 s8, s8, 9")
            a(f"v_subrev_u32 v{32+k}, s8, v7")
    a("v_mov_b32 v12, 1")
    a(f"s_waitcnt vmcnt({E('UW', 2 if PF2AT < 0 else 0)})")
    a.stamp(7)
    U = 104

    def issue(i):
        if not NOU:
            so = f"s{(76 if i < 16 else 64) + ((i >> 2) & 3)}" if ROT else "s15"
            a(f"buffer_load_dwordx2 {vr(U+2*i,2)}, v6, s[72:75], {so} offen offset:{1152*(i&3)}")
        if i & 3 == 3:
            a("s_add_u32 s15, s15, 294912")
        if i == PF2AT:
            for x in pf2:
                a(x)
        if i == GAT:
            a(f"ds_write_b32 v1, v12 offset:{F_UI}")
            epi_gl(a)
        if i == BST:
            if GAT != BST:
                a(f"ds_write_b32 v1, v12 offset:{F_BU}")
            if not BLATE and not GORD:
                burst(a)
    a.auto(True)
    nis = 0
    for i in range(32):
        while nis < min(32, i + WIN_U):
            issue(nis); nis += 1
        a(f"@need {vr(U+2*i,2)}")
        if i & 3 == 3:
            while nis < min(32, i + 1 + WIN_U):
                issue(nis); nis += 1
            t, u, o = i >> 2, U + 2 * (i - 3), 16 + 8 * ((i >> 2) & 1)
            for ch in range(4):
                sel = "s58" if ch & 1 else "s56"
                a(f"v_perm_b32 v{o+2*ch}, v{u+4+(ch>>1)}, v{u+6+(ch>>1)}, {sel}")
                a(f"v_perm_b32 v{o+2*ch+1}, v{u+(ch>>1)}, v{u+2+(ch>>1)}, {sel}")
                if ROT:
                    a(f"ds_write_b64 v{32+(t&3)}, {vr(o+2*ch,2)} offset:{ch*US+512*(7-(t&4))}")
                else:
                    a(f"ds_write_b64 v7, {vr(o+2*ch,2)} offset:{ch*US+512*(7-t)}")
        if i == 3:
            a.stamp(8)
        if i & 3 == 3:
            a(f"v_mov_b32 v36, {(i>>2)+1}")
            a(f"ds_write_b32 v1, v36 offset:{F_H}")
        if i & 15 == 15:
            a.stamp(2 - (i >> 4))
    a.auto(False)
    epi_x(a, range(4))
    a.spin(F_X, 0, 10, op="lg")
    epi_unp(a, range(4))
    if GORD:
        a("s_waitcnt vmcnt(0)")
    a("s_branch C_IO3")
    a.lab("C_IO")
    io_common(a)
    a.spin(F_X, 0, 10, op="lg")
    if BST < GAT:
        a.spin(F_BU, 1, 12, prio=E("IOP", 3), sleep=1)
        burst(a)
    a.spin(F_H, 4, 12, prio=E("IOP", 3), sleep=E("OSL2", 2))
    epi_x(a, range(4))
    a("s_waitcnt lgkmcnt(0)")
    epi_unp(a, range(4))
    a.spin(F_UI, 1, 12, prio=E("IOP", 3), sleep=E("OSL2", 1))
    epi_gl(a)
    if BST < GAT:
        a("s_waitcnt vmcnt(0)")
    else:
        if GAT != BST:
            a.spin(F_BU, 1, 12, prio=3, sleep=1)
        if GORD:
            a.signal(F_GI, 12)
            a.spin(F_GI, 3, 12)
        if not BLATE:
            burst(a)
        if GORD:
            a(f"s_waitcnt vmcnt({NBI})")
    a.lab("C_IO3")
    a(f"s_waitcnt vmcnt({NBI if BSN and not BLATE else 0})")
    if BLATE == 1:
        burst(a)
    epi_g(a)
    epi_mul(a, range(4))
    a.stamp(3)
    epi_fin(a, [0, 1], 0)
    epi_fin(a, [2, 3], 1)
    a.spin(F_H, 8, 12)
    epi_x(a, range(4, 8))
    if NF > 4:
        a("s_waitcnt lgkmcnt(0)")
    epi_unp(a, range(4, 8))
    epi_mul(a, range(4, 8))
    a("s_lshl_b32 s8, s12, 8")
    a(f"s_sub_u32 s8, {OM+7936-1024*7}, s8")
    a("v_lshl_add_u32 v14, v2, 2, s8")
    for k in range(8):
        a(f"ds_write_b32 v14, v{GD+2*k} offset:{1024*(7-k)}")
    a.stamp(4)
    epi_fin(a, [4, 5], 2)
    a.stamp(5)
    if E("L2"):
        epi_fin(a, [6, 7], 4)
    else:
        epi_fin(a, [6], 3)
        epi_fin(a, [7], 4)
    a.signal(F_SI, 8)
    a.stamp(6)
    a("s_waitcnt vmcnt(0)")
    a.signal(F_ST, 8)
    a.end()
    a.lab("C_FIN")
    Z = 104
    a("s_setprio 0")
    a("v_and_b32 v8, 7, v2")
    a("v_lshlrev_b32 v8, 3, v8")
    a(f"v_add_u32 v8, {WS_SEL}, v8")
    a("s_mul_i32 s8, s7, 9216")
    a(f"s_add_u32 s8, s8, {WS_MB}")
    a("v_lshl_add_u32 v5, v2, 4, s8")
    a("v_add_u32 v6, 0x1000, v5")
    a("v_add_u32 v7, 0x2000, v5")
    a("v_and_b32 v19, 1, v4")
    a("v_lshrrev_b32 v20, 1, v4")
    a("v_lshl_or_b32 v19, v19, 1, v20")
    a(f"v_mul_u32_u24 v12, {US}, v19")
    a(f"v_add_u32 v12, {UP}, v12")
    a(f"v_mul_u32_u24 v13, {OS}, v19")
    a(f"v_add_u32 v13, {OP}, v13")
    a(f"s_add_u32 s8, s55, {2047*1152}")
    a("v_lshl_add_u32 v14, v19, 1, s8")
    a("s_waitcnt lgkmcnt(0)")
    for j in range(4):
        a(f"v_bfe_u32 v{Z+6+j}, v10, {8*j}, 8")
    MB = 120
    if FT:
        a.spin(F_O + 16, 4, 26, sleep=1, prio=3)
        if FT > 1:
            a(f"s_sleep {FT}")
    else:
        a.spin(F_SI, E("SI", 4), 26, sleep=1, prio=3)
    a.stamp(5)
    a("s_mov_b32 s9, 0")
    a.lab("C_MPOLL")
    a(f"global_load_dwordx2 v[16:17], v8, {sr(P_WS,2)} sc1")
    for i in range(9):
        a(f"global_load_dwordx4 {vr(MB+4*i,4)}, v{5+(i>>2)}, {sr(P_WS,2)} offset:{1024*(i&3)} sc1")
    a("s_waitcnt vmcnt(9)")
    a("v_and_b32 v22, 0x7ff, v16")
    a("v_lshl_add_u32 v23, v22, 1, v12")
    a(f"ds_read_u16 v{Z+1}, v23")
    a("v_lshl_add_u32 v23, v22, 1, v13")
    a(f"ds_read_u16 v{Z+3}, v23")
    a("v_lshlrev_b32 v23, 2, v22")
    a(f"v_add_u32 v23, {OM}, v23")
    if not (FT or E("SI", 4) < 4):
        a("ds_read_b32 v24, v23")
    a("v_and_b32 v20, 0xffff0000, v16")
    a("v_ashrrev_i32 v21, 31, v20")
    a("v_not_b32 v21, v21")
    a("v_or_b32 v21, 0x80000000, v21")
    a("v_and_b32 v21, 0xffff0000, v21")
    a("v_xor_b32 v20, v20, v21")
    sigmoid_f32(a, Z, 20, 21)
    rb(a, Z)
    a(f"v_mul_u32_u24 v{Z+4}, 1152, v22")
    a(f"v_sub_u32 v{Z+4}, v14, v{Z+4}")
    a("s_waitcnt lgkmcnt(0)")
    a(f"v_lshlrev_b32 v{Z+1}, 16, v{Z+1}")
    for i in range(9):
        a(f"s_waitcnt vmcnt({8-i})")
        for j in range(4):
            a(f"v_xor_b32 v{MB+4*i+j}, v{MB+4*i+j}, v{Z+6+j}")
        a(f"v_or3_b32 v26, v{MB+4*i}, v{MB+4*i+1}, {'v26' if i else '0'}")
        a(f"v_or3_b32 v26, v{MB+4*i+2}, v{MB+4*i+3}, v26")
        if i:
            for p in range(2):
                a(f"v_pk_add_f32 {vr(28+2*p,2)}, {vr(28+2*p if i > 1 else MB+2*p,2)}, {vr(MB+4*i+2*p,2)}")
    a("v_and_b32 v26, 0xff, v26")
    a("v_bitop3_b32 v26, v26, v17, v10 bitop3:0xf6")
    a("v_cmp_ne_u32 vcc, 0, v26")
    a("s_add_u32 s9, s9, 1")
    a("s_cmp_eq_u64 vcc, 0")
    a("s_cbranch_scc1 C_MOK")
    a(f"s_cmp_lt_u32 s9, {SPIN}")
    a("s_cbranch_scc1 C_MPOLL")
    a.lab("C_MOK")
    if STAMP:
        a("s_mov_b32 s82, s9")
    a.stamp(8)
    a("v_permlane32_swap_b32 v28, v29")
    a("v_permlane32_swap_b32 v30, v31")
    a("v_add_f32 v28, v28, v29")
    a("v_add_f32 v30, v30, v31")
    a("v_permlane16_swap_b32 v28, v30")
    a("v_add_f32 v28, v28, v30")
    a(f"v_add_f32_dpp v28, v28, v28 row_ror:8 {DPPF}")
    rb(a, 28)
    a(f"v_mul_f32 v28, v28, v{Z}")
    rb(a, 28)
    a(f"v_add_f32 v28, v28, v{Z+1}")
    rb(a, 28)
    a(f"v_or_b32 v28, v28, v{Z+3}")
    if FT or E("SI", 4) < 4:
        a.spin(F_SI, 4, 27)
        a("ds_read_b32 v24, v23")
        a("s_waitcnt lgkmcnt(0)")
    a("v_dot2_f32_bf16 v28, v28, v24, 0")
    a("v_cvt_pk_bf16_f32 v28, v28, v28")
    a.spin(F_ST, 4, 27)
    a("s_mov_b32 exec_lo, 0x00ff00ff")
    a("s_mov_b32 exec_hi, 0x00ff00ff")
    a(f"global_store_short v{Z+4}, v28, {sr(P_OUT,2)}")
    a("s_mov_b64 exec, -1")
    a.end()


def kernel(a):
    a.raw(".p2align 8")
    a.raw(".globl k1_kernel")
    a.raw(".type k1_kernel,@function")
    a.lab("k1_kernel")
    a.stamp(20)
    if STAMP == 3:
        a("s_memrealtime s[80:81]")
    a("v_and_b32 v2, 63, v0")
    a("v_mov_b32 v1, 0")
    a("v_lshlrev_b32 v3, 2, v2")
    a("ds_write_b32 v3, v1")
    a("s_lshr_b32 s5, s2, 3")
    if CODEPF:
        a("v_lshlrev_b32 v8, 7, v0")
        a(f"s_cmp_lg_u32 s5, {NJF}")
        a("s_cbranch_scc1 K_NOCPF")
        a("s_getpc_b64 s[8:9]")
        a("v_min_u32 v8, CODE_END-k1_kernel-64, v8")
        a("global_load_dword v160, v8, s[8:9]")
        a.lab("K_NOCPF")
    a("s_waitcnt lgkmcnt(0)")
    a("s_load_dwordx16 s[16:31], s[0:1], 0")
    a("s_load_dwordx16 s[32:47], s[0:1], 64")
    a("s_load_dwordx4 s[48:51], s[0:1], 128")
    if STAMP in (1, 2):
        for i in range(1, 10):
            a(f"s_mov_b32 s{80+2*i}, 0")
    if PROBE and PROBE != "kernel:20" and not os.environ.get("PW"):
        a("s_mov_b32 s98, 0")
    a.stamp(0)
    a("v_lshrrev_b32 v4, 6, v0")
    if STAMP == 3:
        a("s_barrier")
        a("v_readfirstlane_b32 s3, v4")
    else:
        a("s_cmp_ge_u32 s5, 32")
        a("v_readfirstlane_b32 s3, v4")
        a("s_cbranch_scc1 K_END")
        a("s_barrier")
    a("s_cmp_eq_u32 s3, 8")
    a("s_cbranch_scc1 ROUTER")
    a(f"s_cmp_lt_u32 s5, {NJH}")
    a("s_cbranch_scc1 K_OTHER")
    a("s_cmp_ge_u32 s3, 8")
    a("s_cbranch_scc1 K_CIO")
    kgen_head(a)
    router(a)
    a.raw(".p2align 7")
    a.lab("K_OTHER")
    a("v_and_b32 v3, 15, v2")
    a("v_lshrrev_b32 v4, 4, v2")
    a("s_and_b32 s4, s2, 7")
    a("s_mul_i32 s7, s4, 9")
    a("s_add_u32 s7, s7, s5")
    a("s_mov_b32 s12, s3")
    a("s_cmp_lt_u32 s3, 2")
    a("s_cbranch_scc1 GATE")
    a(f"s_cmp_ge_u32 s5, {NJF}")
    a("s_cbranch_scc1 HELPER")
    a("s_cmp_lt_u32 s3, 8")
    a("s_cbranch_scc1 F_COMP")
    ffn_loader(a)
    a.raw(".p2align 7")
    a.lab("K_CIO")
    a("v_and_b32 v3, 15, v2")
    a("v_lshrrev_b32 v4, 4, v2")
    a("s_and_b32 s4, s2, 7")
    a("s_mul_i32 s7, s4, 18")
    a("s_add_u32 s7, s7, s5")
    a(f"s_sub_u32 s7, s7, {NJH}")
    a("s_sub_u32 s12, s3, 9")
    a("s_cmp_lg_u32 s3, 11")
    a("s_cbranch_scc1 C_CONST")
    uloader(a)
    a.lab("C_CONST")
    a("v_lshl_add_u32 v14, v4, 3, v3")
    a("v_sub_u32 v14, 39, v14")
    a("s_lshl_b32 s8, s12, 11")
    a(f"s_add_u32 s8, s8, {PM}")
    a("v_lshl_add_u32 v15, v2, 4, s8")
    W = [(0x7f, 19), (0x1ff, 20), (0x7, 21), (0x1f, 18), (0x3, 21)]
    for k in range(3):
        a("s_cmp_eq_u32 s12, 0")
        a(f"s_cselect_b32 s8, {W[k][0]}, {W[k+2][0]}")
        a(f"s_cselect_b32 s9, {W[k][1]}, {W[k+2][1]}")
        a("s_movk_i32 s11, 0x3f80")
        if k == 2:
            a("s_cselect_b32 s11, s11, 0xffff")
        a("s_lshl_b32 s13, s11, 16")
        a("v_mov_b32 v10, s8")
        a("v_mov_b32 v11, 0")
        a("v_lshlrev_b64 v[10:11], v14, v[10:11]")
        a("v_alignbit_b32 v10, v11, v10, s9")
        for p in range(4):
            a(f"v_bfe_i32 v11, v10, {2*p}, 1")
            a(f"v_bfe_i32 v12, v10, {2*p+1}, 1")
            a("v_and_b32 v11, s11, v11")
            a(f"v_and_or_b32 v{16+4*k+p}, v12, s13, v11")
        a(f"ds_write_b128 v15, {vr(16+4*k,4)} offset:{1024*k}")
    a.signal(F_PM, 10)
    a("s_branch GATE")
    helper(a)
    gate(a)
    kgen(a)
    select(a)
    ffn_comp(a)
    if STAMP:
        a.lab("STAMP_OUT")
        a("s_memrealtime s[98:99]")
        a("s_waitcnt lgkmcnt(0)")
        a("s_lshl_b32 s8, s2, 4")
        a("s_add_u32 s8, s8, s3")
        a("s_lshl_b32 s8, s8, 6")
        a(f"s_add_u32 s8, s8, {WS_STAMP}")
        a("v_mov_b32 v5, s8")
        for i in ((0, 9) if STAMP == 3 else range(10)):
            a(f"v_mov_b32 v6, s{80+2*i}")
            a(f"global_store_dword v5, v6, {sr(P_WS,2)} offset:{4*i}")
    if PROBE:
        a.lab("PADTAIL")
        a("s_waitcnt vmcnt(0) lgkmcnt(0)")
        if os.environ.get("PW"):
            wl, wh, jl, jh = map(int, os.environ["PW"].split(","))
            for r, lo, hi in (("s3", wl, wh), ("s5", jl, jh)):
                a(f"s_cmp_lt_u32 {r}, {lo}")
                a("s_cbranch_scc1 K_END")
                a(f"s_cmp_gt_u32 {r}, {hi}")
                a("s_cbranch_scc1 K_END")
        else:
            a("s_cmp_eq_u32 s98, 0")
            a("s_cbranch_scc1 K_END")
        a("s_setprio 0")
        a.lab("PADL")
        a("s_sleep 3")
        a("s_memrealtime s[96:97]")
        a("s_waitcnt lgkmcnt(0)")
        a("s_sub_u32 s96, s96, s98")
        a("s_cmp_lt_u32 s96, 2000")
        a("s_cbranch_scc1 PADL")
    a.lab("K_END")
    a("s_endpgm")
    a.lab("CODE_END")


def main():
    ref = open(os.path.join(HERE, NAME + ".s.ref")).read().splitlines()
    head = [l for l in ref if l.startswith(";") and "@launch" not in l and "Override" not in l and "grid=ceil" not in l]
    a = G()
    kernel(a)
    out = head + [
        f"; @launch kernel=k1_kernel grid=(256,1,1) block=(768,1,1) lds={LDS}",
        '.amdgcn_target "amdgcn-amd-amdhsa--gfx950"',
        ".text",
    ] + a.finish() + [
        '.section .rodata,"a"',
        ".p2align 6",
        ".amdhsa_kernel k1_kernel",
        "  .amdhsa_next_free_vgpr 168",
        "  .amdhsa_next_free_sgpr 102",
        "  .amdhsa_accum_offset 168",
        "  .amdhsa_group_segment_fixed_size 0",
        "  .amdhsa_kernarg_size 144",
        "  .amdhsa_user_sgpr_count 2",
        "  .amdhsa_user_sgpr_kernarg_segment_ptr 1",
        "  .amdhsa_system_sgpr_workgroup_id_x 1",
        ".end_amdhsa_kernel",
    ]
    path = sys.argv[1] if len(sys.argv) > 1 else os.path.join(HERE, NAME + ".s")
    open(path, "w").write("\n".join(out) + "\n")


if __name__ == "__main__":
    main()
```

```python
import sys, os
from asmlib import *

NAME = "gated_mix__ssm_conv_s4__moe_arch_mod__prompt"
HERE = os.path.dirname(os.path.abspath(__file__))
E = lambda k, d=0: int(os.environ.get(k, d))
STAMP = E("STAMP")
PROBE = os.environ.get("PROBE", "")
CODEPF = E("CODEPF", 1)
SELD = E("SELD", 16)
GORD = E("GORD", 1)
NF = E("NF", 4)
FT = E("FT", 0)
RDIR = E("RDIR", 2)
GAT = E("GAT", 31)
BL = E("BL", 72)
NBI = 2 if BL == 72 else 1
BLATE = E("BLATE", 0)
KS = E("KS", 32)
WS_KEY2 = 2 << 20
PF2AT = E("PF2AT", -1)
ROT = 0
C3 = E("C3", 28)
WNT = os.environ.get("WNT", "")
POLLF = os.environ.get("POLLF", "sc1").replace("_", " ")
PUBF = os.environ.get("PUBF", "sc1").replace("_", " ")
PFW = E("PFW", 1)
HPN = E("HPN", 3)
HPS = E("HPS", 53)
HPW = E("HPW", 4)
PSTEP = 5 * HPW // 2
BST = E("BST", 31)
BSN = E("BSN", 5)
WIN_U = E("WIN_U", 6)
WIN_F = E("WIN_F", 10)
HOLD = E("HOLD")
FINE = E("FINE")
NOU = E("NOU")
NOW = E("NOW")

WS_KEY, WS_SEL, WS_BASE, WS_G, WS_MB = 0, 8192, 8448, 16384, 32768
WS_STAMP = 4 << 20
WS_SIZE = 0x10000000

SMALL = E("SMALL")
LDS = 120320 if SMALL else 163840
F_NONCE, F_PAIR, F_ST, F_I, F_K, F_H, F_O = 0, 16, 40, 48, 64, 80, 96
F_L, F_D, F_AC, F_XR, F_HR, F_PI = 16, 40, 48, 84, 88, 92
KT = 256
KTS = 4608
TS = 288
OS = 4160
KC = KT + 8 * KTS
CS = 1216
UP = KC + 16 * CS
US = 4672
OM = UP + 4 * US
OP = OM + 8192
PM = OP + 4 * OS
assert PM + 5120 + 512 <= 147712 and OP % 16 == 0
WA = 256
WB = WA + 73728
XB = 106496 if SMALL else WB + 73728
assert PM + 5632 <= XB
HB = XB + 9216
HS = 144
GW = HB + 9 * HS
assert GW + 2048 <= LDS and GW % 16 == 0
F_X, F_GD, F_RI, F_SI, F_UI, F_BU, F_PM, F_GI = 8, 12, 4, 44, 88, 92, 32, 36

L2E = 0x3fb8aa3b
L2E_LO = 0x32a57060
LN2 = 0x3f317218
INV2PI = 0x3e22f983

P_U, P_ARE, P_AIM, P_BRE, P_BIM, P_CRE, P_CIM, P_LDT = 16, 18, 20, 22, 24, 26, 28, 30
P_DSK, P_BX, P_WR, P_WG, P_WU, P_WD, P_GW, P_OUT = 32, 34, 36, 38, 40, 42, 44, 46
P_DBG, P_WS = 48, 50
NJF, NJH = 9, 14
SPIN = 0x20000

DPPF = "row_mask:0xf bank_mask:0xf"


class G(Asm):
    nlab = 0

    def stamp(s, i):
        if PROBE:
            import inspect
            fn = inspect.stack()[1].function
            if fn == "pre":
                fn = "ffn_loader"
            if f"{fn}:{i}" == PROBE:
                s("s_memrealtime s[98:99]")
        if i >= 20 or STAMP == 3:
            return
        if STAMP == 2:
            import inspect
            fn = inspect.stack()[1].function
            if not (i == 0 or (fn, i) in (("down", 6), ("uloader", 5), ("uloader", 6), ("select", 5), ("gphase", 7))):
                return
        if STAMP and not (FINE and i >= 6):
            s(f"s_memrealtime s[{80+2*i}:{81+2*i}]")

    def fine(s, i):
        if STAMP and FINE:
            s(f"s_memrealtime s[{80+2*i}:{81+2*i}]")

    def b0(s, wait=None):
        if E("OLDB0"):
            s("s_barrier")
        elif wait is not None:
            s.spin(F_RI, 1, wait)

    def end(s):
        s("s_branch STAMP_OUT" if STAMP else "s_branch PADTAIL" if PROBE else "s_endpgm")

    def uid(s, p):
        G.nlab += 1
        return f"{p}_{G.nlab}"

    def spin(s, off, target, tv, sleep=0, op="ge", prio=None):
        l = s.uid("SP")
        if prio is not None:
            s(f"s_setprio {E('SPP', 3) if sleep else 0}")
        s("s_mov_b32 s9, 0")
        s.lab(l)
        s(f"ds_read_b32 v{tv}, v1 offset:{off}") if isinstance(off, int) else s(f"ds_read_b32 v{tv}, {off}")
        s("s_waitcnt lgkmcnt(0)")
        s(f"v_readfirstlane_b32 s8, v{tv}")
        s("s_add_u32 s9, s9, 1")
        s(f"s_cmp_{op}_u32 s8, {target}")
        s(f"s_cbranch_scc1 {l}_D")
        if sleep:
            s(f"s_sleep {sleep * E('SLM', 1)}")
        s(f"s_cmp_lt_u32 s9, {SPIN*4}")
        s(f"s_cbranch_scc1 {l}")
        s.lab(l + "_D")
        if prio is not None:
            s(f"s_setprio {prio}")

    def signal(s, off, tv):
        s(f"v_mov_b32 v{tv}, 1")
        s("s_mov_b64 exec, 1")
        s(f"ds_add_u32 v1, v{tv} offset:{off}") if isinstance(off, int) else s(f"ds_add_u32 {off}, v{tv}")
        s("s_mov_b64 exec, -1")


def srd(a, d, p, size):
    a(f"s_mov_b32 s{d}, s{p}")
    a(f"s_mov_b32 s{d+1}, s{p+1}")
    a(f"s_mov_b32 s{d+2}, {size}")
    a(f"s_mov_b32 s{d+3}, 0x20000")


def wave_max_steps(vv):
    return [f"v_max_u32_dpp v{vv}, v{vv}, v{vv} row_shr:1 {DPPF}",
            f"v_max_u32_dpp v{vv}, v{vv}, v{vv} row_shr:2 {DPPF}",
            f"v_max_u32_dpp v{vv}, v{vv}, v{vv} row_shr:4 {DPPF}",
            f"v_max_u32_dpp v{vv}, v{vv}, v{vv} row_shr:8 {DPPF}",
            f"v_max_u32_dpp v{vv}, v{vv}, v{vv} row_bcast:15 row_mask:0xa bank_mask:0xf",
            f"v_max_u32_dpp v{vv}, v{vv}, v{vv} row_bcast:31 row_mask:0xc bank_mask:0xf"]


def sigmoid_f32(a, dst, src, t):
    a(f"v_mul_f32 v{t}, 0xbfb8aa3b, v{src}")
    a(f"v_exp_f32 v{t}, v{t}")
    a(f"v_add_f32 v{t}, 1.0, v{t}")
    a(f"v_rcp_f32 v{dst}, v{t}")


def rb(a, r):
    a(f"v_cvt_pk_bf16_f32 v{r}, v{r}, v{r}")
    a(f"v_and_b32 v{r}, 0xffff0000, v{r}")


def router(a):
    a.raw(".p2align 7")
    a.lab("ROUTER")
    X, W = 16, 52
    assert RDIR == 2
    a("v_lshrrev_b32 v5, 3, v2")
    a("v_and_b32 v6, 7, v2")
    a("v_lshlrev_b32 v9, 4, v6")
    a("v_lshl_add_u32 v5, s2, 3, v5")
    a("v_mul_u32_u24 v8, 1152, v5")
    a("v_add_u32 v8, v8, v9")
    if E("WPF", 1):
        a("v_min_u32 v10, 8, v2")
        a("v_lshlrev_b32 v10, 7, v10")
    a("s_waitcnt lgkmcnt(0)")
    a.fine(7)
    if E("WPF", 1):
        a(f"global_load_dword v90, v10, {sr(P_WR,2)}")
    for i in range(9):
        a(f"global_load_dwordx4 {vr(X+4*i,4)}, v8, {sr(P_U,2)} offset:{128*i}")
    a(f"s_load_dword s10, {sr(P_WS,2)}, {WS_BASE}")
    a("s_setprio 3")
    for i in range(9):
        a(f"global_load_dwordx4 {vr(W+4*i,4)}, v9, {sr(P_WR,2)} offset:{128*i}")
    a("v_lshlrev_b32 v7, 4, v2")
    a("v_min_u32 v10, 7, v2")
    a(f"s_mov_b32 m0, {GW}")
    a("v_lshlrev_b32 v10, 4, v10")
    a(f"global_load_lds_dwordx4 v7, {sr(P_GW,2)}")
    a(f"global_load_lds_dwordx4 v10, {sr(P_GW,2)} offset:1024")
    a.fine(6)
    a.stamp(21)
    a.b0()
    a("v_mov_b32 v11, 1")
    a(f"ds_write_b32 v1, v11 offset:{F_RI}")
    a("v_and_b32 v3, 15, v2")
    a("v_lshrrev_b32 v4, 4, v2")
    a("s_and_b32 s4, s2, 7")
    a(f"v_add_u32 v7, {XB}, v7")
    if KS == 32:
        a("s_lshl_b32 s8, s2, 5")
        a("v_lshl_add_u32 v15, v4, 3, s8")
    else:
        a(f"s_mul_i32 s8, s2, {KS}")
        a(f"s_add_u32 s8, s8, {WS_KEY2}")
        a("v_lshl_add_u32 v15, v4, 3, s8")
        a("v_lshl_add_u32 v15, v3, 5, v15")
    a("s_mov_b32 s11, 0xffff")
    for j in range(4):
        a(f"v_mov_b32 v{8+j}, 0")
    a("s_waitcnt lgkmcnt(0)")
    a.fine(8)
    a("s_add_u32 s10, s10, 1")
    a("s_addc_u32 s10, s10, 0")
    a("v_mov_b32 v14, s10")
    a("v_mov_b32 v13, s10")
    if RDIR:
        for i in range(9):
            a(f"s_waitcnt vmcnt({8-i+2})")
            for j in range(4):
                a(f"v_dot2c_f32_bf16 v{8+j}, v{X+4*i+j}, v{W+4*i+j}")
        a.stamp(1)
    else:
        a("s_waitcnt vmcnt(9)")
        a.stamp(1)
        if STAMP or PROBE:
            a("s_waitcnt lgkmcnt(0)")
        for i in range(9):
            a(f"ds_read_b128 {vr(X+4*i,4)}, v7 offset:{1024*i}")
        a(f"ds_write_b32 v1, v14 offset:{F_X}")
        for i in range(9):
            a(f"s_waitcnt vmcnt({8-i}) lgkmcnt({9-i})")
            for j in range(4):
                a(f"v_dot2c_f32_bf16 v{8+j}, v{X+4*i+j}, v{W+4*i+j}")
    a("v_add_f32 v8, v8, v9")
    a("v_add_f32 v10, v10, v11")
    a("v_add_f32 v8, v8, v10")
    a(f"v_add_f32_dpp v8, v8, v8 quad_perm:[1,0,3,2] {DPPF}")
    a(f"v_add_f32_dpp v8, v8, v8 quad_perm:[2,3,0,1] {DPPF}")
    a(f"v_add_f32_dpp v8, v8, v8 row_half_mirror {DPPF}")
    a("v_cvt_pk_bf16_f32 v8, v8, v8")
    a("v_ashrrev_i32 v9, 31, v8")
    a("v_or_b32 v9, 0x80008000, v9")
    a("v_xor_b32 v8, v8, v9")
    a(f"v_mov_b32_dpp v9, v8 row_ror:8 {DPPF}")
    km = {32: 0x00010001, 64: 0x00030003, 128: 0x000f000f}[KS]
    a(f"s_mov_b32 exec_lo, {km:#x}")
    a(f"s_mov_b32 exec_hi, {km:#x}")
    a("v_bfi_b32 v12, s11, v8, v9")
    a(f"global_store_dwordx2 v15, v[12:13], {sr(P_WS,2)} {PUBF}")
    a("s_mov_b64 exec, -1")
    a(f"ds_write_b32 v1, v14 offset:{F_NONCE}")
    a.stamp(2)
    if E("RLP", 1):
        a("s_setprio 0")
    if RDIR == 2:
        for i in range(9):
            a(f"ds_write_b128 v7, {vr(X+4*i,4)} offset:{1024*i}")
    if RDIR:
        a("s_waitcnt vmcnt(1)")
        a(f"ds_write_b32 v1, v14 offset:{F_X}")
    a(f"s_cmp_ge_u32 s5, {NJH}")
    a("s_cbranch_scc1 C_IO")
    a(f"s_cmp_lt_u32 s5, {NJF}")
    a("s_cbranch_scc1 SELECT")
    a.end()


def gate(a):
    a.lab("GATE")
    if E("GTP"):
        a(f"s_setprio {E('GTP')}")
    X, W, WL = 16, 34, 44
    a("s_lshl_b32 s8, s12, 9")
    a(f"s_add_u32 s8, s8, {XB}")
    a("v_lshl_add_u32 v5, v2, 2, s8")
    a("v_and_b32 v6, 31, v2")
    a("v_lshlrev_b32 v6, 2, v6")
    a(f"v_add_u32 v6, {GW}, v6")
    a("s_lshl_b32 s8, s2, 1")
    a("s_add_u32 s8, s8, s12")
    a("v_mov_b32 v8, 0")
    a("v_mov_b32 v9, 0")
    a("v_mov_b32 v10, 0x3f803f80")
    a("s_lshl_b32 s8, s8, 5")
    a(f"s_add_u32 s8, s8, {WS_G}")
    a("v_lshrrev_b32 v7, 5, v2")
    a("v_lshl_add_u32 v7, v7, 3, s8")
    a("v_and_b32 v11, 16, v2")
    a("v_add_u32 v7, v7, v11")
    a.b0()
    if E("GATED"):
        a(f"s_sleep {E('GATED')}")
    a.spin(F_X, 0, 13, op="lg", sleep=E("GSL", 1))
    a.auto(True)
    for i in range(5):
        a(f"ds_read2_b32 {vr(W+2*i,2)}, v6 offset0:{64*(i&3)} offset1:{64*(i&3)+32}" if i < 4 else f"ds_read_b32 v{W+8}, v6 offset:1024")
    for i in range(9):
        a(f"ds_read2st64_b32 {vr(X+2*i,2)}, v5 offset0:{4*i} offset1:{4*i+1}")
    for i in range(9):
        a(f"v_and_b32 v{WL+i}, 0xffff, v{W+i}")
        a(f"v_and_b32 v{W+i}, 0xffff0000, v{W+i}")
    for i in range(10):
        t = 56 + 4 * (i & 1)
        u = 56 + 4 * ((i - 1) & 1)
        for j in range(2):
            if i < 9:
                a(f"v_dot2_f32_bf16 v{t+2*j}, v{X+2*i+j}, v{WL+i}, 0")
                a(f"v_dot2_f32_bf16 v{t+2*j+1}, v{X+2*i+j}, v{W+i}, 0")
        if i:
            for j in range(2):
                a(f"v_cvt_pk_bf16_f32 v{u+2*j}, v{u+2*j}, v{u+2*j+1}")
            for j in range(2):
                a(f"v_dot2c_f32_bf16 v{8+j}, v{u+2*j}, v10")
    a.auto(False)
    a.signal(F_GD, 11)
    a("v_permlane16_swap_b32 v8, v9")
    a("v_add_f32 v8, v8, v9")
    for r in (8, 4, 2, 1):
        a(f"v_add_f32_dpp v8, v8, v8 row_ror:{r} {DPPF}")
    rb(a, 8)
    sigmoid_f32(a, 8, 8, 9)
    rb(a, 8)
    a("v_sub_f32 v9, 1.0, v8")
    a("v_cvt_pk_bf16_f32 v12, v8, v9")
    a("s_mov_b32 exec_lo, 0x00010001")
    a("s_mov_b32 exec_hi, 0x00010001")
    a(f"global_store_dwordx2 v7, v[12:13], {sr(P_WS,2)} sc1")
    a("s_mov_b64 exec, -1")
    a.stamp(1)
    a(f"s_cmp_lt_u32 s5, {NJF}")
    a("s_cbranch_scc1 F_COMP2")
    a(f"s_cmp_ge_u32 s5, {NJH}")
    a("s_cbranch_scc1 C_IO")
    a.end()


def stripe_pf(a):
    a("s_and_b32 s8, s13, 15" if PF2AT >= 0 else "s_mov_b32 s8, s13")
    a("s_mul_i32 s8, s8, 73728")
    a("s_lshl_b32 s9, s4, 7")
    a("s_add_u32 s8, s8, s9")
    a("v_mul_u32_u24 v9, 1152, v2")
    a("v_add_u32 v9, s8, v9")
    a("s_add_u32 s8, s13, 18")
    a("s_min_u32 s8, s8, 31")
    a("s_sub_u32 s8, s8, s13")
    a("s_mul_i32 s8, s8, 73728")
    a("v_add_u32 v8, s8, v9" if PF2AT < 0 else f"v_add_u32 v8, {16*73728}, v9")
    return [f"global_load_dword v10, v9, {sr(P_U,2)}", f"global_load_dword v11, v9, {sr(P_U,2)} offset:128",
            f"global_load_dword v10, v8, {sr(P_U,2)}", f"global_load_dword v11, v8, {sr(P_U,2)} offset:128"]


def prefetch(a, n, hold):
    a("v_mul_u32_u24 v5, 57, v2")
    a("v_lshrrev_b32 v5, 9, v5")
    a("v_mul_u32_u24 v6, 9, v5")
    a("v_sub_u32 v6, v2, v6")
    a("s_waitcnt lgkmcnt(0)")
    a("s_cmp_eq_u32 s12, 1")
    a(f"s_cselect_b32 s52, s{P_WU}, s{P_WG}")
    a(f"s_cselect_b32 s53, s{P_WU+1}, s{P_WG+1}")
    a("s_mov_b32 s54, 5308416")
    a("s_mov_b32 s55, 0x20000")
    a("v_mul_u32_u24 v5, 9216, v5")
    a("v_lshl_add_u32 v5, v6, 7, v5")
    a("s_mul_i32 s8, s4, 1152")
    if C3:
        a(f"s_sub_u32 s14, s13, {HPS}")
        a("s_lshr_b32 s9, s52, 7")
        a("s_add_u32 s9, s9, s4")
        a("s_sub_u32 s9, 3, s9")
        a("s_and_b32 s9, s9, 7")
        a("s_lshl_b32 s15, s9, 7")
        a("s_add_u32 s15, s15, s8")
        a(f"s_mul_i32 s14, s14, {9216*C3}")
        a("s_add_u32 s15, s15, s14")
        a(f"s_add_u32 s15, s15, {9216*(7*HPS - C3*PSTEP)}")
        a("s_cmp_eq_u32 s9, 0")
        a("s_cselect_b32 s9, 1024, 0")
        a("v_and_b32 v7, 31, v2")
        a(f"v_min_u32 v7, {C3-1}, v7")
        a("v_mul_u32_u24 v7, 9216, v7")
        a("v_lshrrev_b32 v9, 5, v2")
        a("v_mul_u32_u24 v9, s9, v9")
        a("v_add_u32 v7, v7, v9")
    a("s_mul_i32 s13, s13, 64512")
    a("s_add_u32 s13, s13, s8")
    if not E("HNG"):
        a.b0(13)
    if hold:
        a.spin(F_NONCE, 0, 13, op="lg", sleep=1)
    if C3:
        a("buffer_load_dword v8, v7, s[52:55], s15 offen")
    if E("HDX"):
        a(f"s_sub_u32 s8, s5, {NJF}")
        a("s_lshl_b32 s8, s8, 3")
        a("s_add_u32 s8, s8, s4")
        a("s_lshl_b32 s8, s8, 2")
        a("s_add_u32 s8, s8, s3")
        a("s_sub_u32 s8, s8, 2")
        a("s_lshl_b32 s8, s8, 15")
        a("v_lshl_add_u32 v9, v2, 7, s8")
        for k in range(4):
            a("s_waitcnt vmcnt(0)")
            a(f"global_load_dword v8, v9, {sr(P_WD,2)}")
            a("v_add_u32 v9, 8192, v9")
        n = 0
    for k in range(n):
        if k >= PFW or (C3 and E("C3W", 1)):
            a(f"s_waitcnt vmcnt({PFW-1})")
        a("buffer_load_dword v8, v5, s[52:55], s13 offen")
        a(f"s_add_u32 s13, s13, {64512*PSTEP}")


def bulk_gate(a, tv):
    a.b0(tv)
    if HOLD:
        a.spin(F_NONCE, 0, tv, op="lg", sleep=1)


def select(a):
    a.lab("SELECT")
    a("s_setprio 3")
    SX = 52
    srd(a, SX, P_U, 2359296)
    KD, IX, KY = 16, 48, 80
    M1, M2, T1, T2, VO, VK, CH = 8, 9, 10, 11, 12, 6, 5
    a("v_lshlrev_b32 v7, 4, v2")
    a("v_add_u32 v15, 0x1000, v7")
    if KS != 32:
        a("v_lshrrev_b32 v7, 1, v2")
        a(f"v_mul_u32_u24 v7, {KS}, v7")
        a("v_and_b32 v15, 1, v2")
        a("v_lshl_add_u32 v7, v15, 4, v7")
        for i in range(8):
            a(f"v_add_u32 v{120+i}, {WS_KEY2+32*KS*i}, v7")

    def polls():
        if KS != 32:
            for i in range(8):
                a(f"global_load_dwordx4 {vr(KD+4*i,4)}, v{120+i}, {sr(P_WS,2)} {POLLF}")
            return
        for i in range(8):
            a(f"global_load_dwordx4 {vr(KD+4*i,4)}, v{7 if i < 4 else 15}, {sr(P_WS,2)} offset:{1024*(i&3)} {POLLF}")
    assert WS_KEY == 0
    a("v_lshlrev_b32 v8, 2, v2")
    a("v_sub_u32 v8, 2047, v8")
    for i in range(8):
        for e in range(4):
            a(f"v_subrev_u32 v{IX+4*i+e}, {256*i+e}, v8")
    a("v_lshrrev_b32 v9, 3, v2")
    a("v_and_b32 v9, 6, v9")
    a("v_xor_b32 v9, v9, v2")
    a("v_and_b32 v9, 7, v9")
    a(f"v_lshlrev_b32 v{CH}, 4, v9")
    a(f"v_mov_b32 v{VO}, 0")
    a(f"v_mov_b32 v{VK}, 0")
    a("s_mov_b32 s11, 0xffff0000")
    a("s_mov_b32 s15, 0")
    a.spin(F_GD, 2, 13)
    a("s_mov_b32 s9, 0")
    a("s_waitcnt vmcnt(0)")
    if SELD:
        a(f"s_sleep {SELD}")
    a.stamp(8)
    a.lab("SEL_POLL")
    polls()
    if E("W1", 99) < 99:
        a(f"ds_write_b32 v1, v14 offset:{F_PI}")
    for i in range(8):
        a(f"s_waitcnt vmcnt({7-i})")
        if i == 0:
            a(f"v_xor_b32 v13, v{KD+1}, v14")
        else:
            a(f"v_bitop3_b32 v13, v13, v{KD+4*i+1}, v14 bitop3:0xf6")
        a(f"v_bitop3_b32 v13, v13, v{KD+4*i+3}, v14 bitop3:0xf6")
    a("v_cmp_ne_u32 vcc, 0, v13")
    a("s_add_u32 s9, s9, 1")
    a("s_cmp_eq_u64 vcc, 0")
    a("s_cbranch_scc1 SEL_GOT")
    a(f"s_cmp_lt_u32 s9, {SPIN}")
    a("s_cbranch_scc1 SEL_POLL")
    a.lab("SEL_GOT")
    if STAMP:
        a("s_mov_b32 s94, s9")
    a.stamp(6)
    for i in range(8):
        for h in range(2):
            a(f"v_lshl_or_b32 v{KY+4*i+2*h}, v{KD+4*i+2*h}, 16, v{IX+4*i+2*h}")
            a(f"v_and_or_b32 v{KY+4*i+2*h+1}, v{KD+4*i+2*h}, s11, v{IX+4*i+2*h+1}")
        ks = [KY + 4 * i + e for e in range(4)]
        if i == 0:
            a(f"v_min_u32 v{M2}, v{ks[0]}, v{ks[1]}")
            a(f"v_max_u32 v{M1}, v{ks[0]}, v{ks[1]}")
            ks = ks[2:]
        for k in ks:
            a(f"v_med3_u32 v{M2}, v{M1}, v{M2}, v{k}")
            a(f"v_max_u32 v{M1}, v{M1}, v{k}")
    a.stamp(3)

    def place(r):
        lo, hi = ((0xff << (8 * r)) & 0xffffffff, (0xff << (8 * r)) >> 32)
        return ["s_and_b32 s13, s12, 0x7ff", "s_sub_u32 s13, 2047, s13", "s_mul_i32 s13, s13, 1152",
                [f"s_mov_b32 exec_lo, {lo:#x}", f"s_mov_b32 exec_hi, {hi:#x}",
                 f"v_add_u32 v{VO}, s13, v{CH}", f"v_mov_b32 v{VK}, s12", "s_mov_b64 exec, -1"]]
    for r in range(8):
        if r == 0:
            a(f"v_mov_b32 v{T1}, v{M1}")
            fill = []
        else:
            a(f"v_subrev_u32 v{T1}, s12, v{M1}")
            a(f"v_subrev_u32 v{T2}, s12, v{M2}")
            a(f"v_max_u32 v{T1}, v{T1}, v{T2}")
            p = place(r - 1)
            fill = [p[0:2], [p[2]], p[3]]
        for st in wave_max_steps(T1):
            for x in (fill.pop(0) if fill else []):
                a(x)
            a(st)
        a(f"v_readlane_b32 s8, v{T1}, 63")
        a("s_add_u32 s12, s12, s8" if r else "s_mov_b32 s12, s8")
    p = place(7)
    for x in p[:3] + p[3]:
        a(x)
    a("s_mov_b32 s14, 0")
    a.lab("SEL_GATHER")
    for b in range(9):
        a(f"s_mov_b32 m0, {XB + 896*b}")
        a(f"buffer_load_dwordx4 v{VO}, {sr(SX,4)}, 0 offen offset:{128*b} lds")
    a.signal(F_D, 13)
    a.stamp(4)
    a("s_cmp_lg_u32 s14, 0")
    a("s_cbranch_scc1 SEL_OK")
    TK = KD
    for k in range(32):
        a(f"v_sub_u32 v{TK+k}, v{KY+k}, v{M2}")

    def tree():
        for j in range(10):
            a(f"v_max3_u32 v{TK+3*j}, v{TK+3*j}, v{TK+3*j+1}, v{TK+3*j+2}")
        a(f"v_max3_u32 v{TK}, v{TK}, v{TK+3}, v{TK+6}")
        a(f"v_max3_u32 v{TK+9}, v{TK+9}, v{TK+12}, v{TK+15}")
        a(f"v_max3_u32 v{TK+18}, v{TK+18}, v{TK+21}, v{TK+24}")
        a(f"v_max3_u32 v{TK+27}, v{TK+27}, v{TK+30}, v{TK+31}")
        a(f"v_max3_u32 v{TK}, v{TK}, v{TK+9}, v{TK+18}")
        a(f"v_max_u32 v{TK}, v{TK}, v{TK+27}")
    tree()
    a(f"v_add_u32 v{TK}, v{TK}, v{M2}")
    a(f"v_cmp_lt_u32 vcc, s12, v{TK}")
    if E("FORCESLOW"):
        a("s_mov_b64 vcc, 1")
    a("s_cmp_eq_u64 vcc, 0")
    a("s_cbranch_scc1 SEL_OK")
    a("s_waitcnt vmcnt(0)")
    a("s_mov_b32 s12, 0")
    a("s_mov_b64 s[56:57], 0xff")
    a.lab("SEL_SLOW")
    for k in range(32):
        a(f"v_subrev_u32 v{TK+k}, s12, v{KY+k}")
    tree()
    for st in wave_max_steps(TK):
        a(st)
    a(f"v_readlane_b32 s8, v{TK}, 63")
    a("s_add_u32 s12, s12, s8")
    for x in place(0)[:3]:
        a(x)
    a("s_mov_b64 exec, s[56:57]")
    a(f"v_add_u32 v{VO}, s13, v{CH}")
    a(f"v_mov_b32 v{VK}, s12")
    a("s_mov_b64 exec, -1")
    a("s_lshl_b64 s[56:57], s[56:57], 8")
    a("s_add_u32 s14, s14, 1")
    a("s_cmp_lt_u32 s14, 8")
    a("s_cbranch_scc1 SEL_SLOW")
    a("s_branch SEL_GATHER")
    a.lab("SEL_OK")
    a("s_cmp_lg_u32 s2, 0")
    a("s_cbranch_scc1 SEL_NOPUB")
    a(f"v_mov_b32 v{VK+1}, v14")
    a(f"v_add_u32 v8, {WS_SEL}, v2")
    a("s_mov_b32 exec_lo, 0x01010101")
    a("s_mov_b32 exec_hi, 0x01010101")
    a(f"global_store_dwordx2 v8, {vr(VK,2)}, {sr(P_WS,2)} sc1")
    a("s_mov_b64 exec, 1")
    a(f"global_store_dword v8, v14, {sr(P_WS,2)} offset:{WS_BASE-WS_SEL} sc1")
    a("s_mov_b64 exec, -1")
    a("s_waitcnt vmcnt(2)")
    a("s_branch SEL_END")
    a.lab("SEL_NOPUB")
    a("s_waitcnt vmcnt(0)")
    a.lab("SEL_END")
    a("v_mov_b32 v8, 3")
    a(f"ds_write_b32 v1, v8 offset:{F_XR}")
    a.stamp(5)
    a.end()


def ffn_loader(a):
    a.lab("F_LOAD")
    a("s_setprio 3")
    SG, SU, SD = 52, 56, 60
    a("s_sub_u32 s12, s3, 9")
    a("v_lshrrev_b32 v5, 3, v2")
    a("v_bfe_u32 v6, v2, 4, 1")
    a("v_xor_b32 v6, v6, v2")
    a("v_and_b32 v6, 7, v6")
    a("v_mul_u32_u24 v7, 9216, v5")
    a("v_lshl_add_u32 v8, v6, 4, v7")
    a("v_xor_b32 v9, 32, v8")
    a("v_xor_b32 v10, 64, v8")
    a("v_xor_b32 v11, 96, v8")
    a("s_mul_i32 s13, s12, 294912")
    a("s_lshl_b32 s8, s7, 7")
    a("s_add_u32 s13, s13, s8")
    a("s_lshl_b32 s15, s12, 13")
    a(f"s_add_u32 s15, s15, {WA}")
    for d in (SG, SU):
        a(f"s_mov_b32 s{d+2}, 5308416")
        a(f"s_mov_b32 s{d+3}, 0x20000")
    a("s_waitcnt lgkmcnt(0)")
    a(f"s_mov_b64 {sr(SG,2)}, {sr(P_WG,2)}")
    a(f"s_mov_b64 {sr(SU,2)}, {sr(P_WU,2)}")
    a.stamp(23)
    n = 0
    sig = 0

    def pre():
        nonlocal sig
        if n == E("NG", 2):
            bulk_gate(a, 14)
        if n == E("W1", 99):
            a.spin(F_PI, 1, 14, sleep=1)
        if n == E("W0", 99):
            a.spin(F_NONCE, 0, 14, op="lg", sleep=1)
        if n >= WIN_F:
            a(f"s_waitcnt vmcnt({WIN_F-1})")
        if sig < 6 and n - WIN_F + 1 >= 8 * (sig + 1):
            a.signal(F_L + 4 * sig, 14)
            if sig in (0, 2, 5):
                a.stamp(1 + sig // 2)
            sig += 1
    for c in range(6):
        if c >= 3:
            a.spin(F_AC + 4 * (c - 3), 4, 14)
        for R in range(4):
            for mu in range(2):
                pre()
                a(f"s_add_u32 m0, s15, {(c%3)*24576 + R*2048 + mu*1024}")
                if not NOW:
                    a(f"buffer_load_dwordx4 v{8+2*mu+(R&1)}, {sr(SU if mu else SG,4)}, s13 offen {WNT} lds")
                n += 1
            a(f"s_add_u32 s13, s13, {73728 if R < 3 else 73728*9}")
    a.signal(F_D, 14)
    a.stamp(4)
    while sig < 6:
        a(f"s_waitcnt vmcnt({48 - 8*(sig+1)})")
        a.signal(F_L + 4 * sig, 14)
        sig += 1
    a.stamp(3)
    a("s_cmp_eq_u32 s3, 9")
    a("s_cbranch_scc1 F_COMP2")
    a.end()


def ffn_comp(a):
    a.lab("F_COMP")
    a.b0()
    a.lab("F_COMP2")
    a("s_and_b32 s12, s3, 3")
    a("v_lshrrev_b32 v5, 2, v3")
    a("v_bfe_u32 v7, v3, 3, 1")
    a("v_and_b32 v13, 1, v4")
    a("v_lshl_or_b32 v14, v13, 1, v7")
    a("v_and_b32 v15, 7, v3")
    a(f"v_mul_u32_u24 v16, {HS}, v15")
    a(f"v_add_u32 v16, {HB}, v16")
    a("s_mov_b32 s56, 0xff00ff00")
    a("s_mov_b32 s57, 0xff00ff00")
    a("s_lshr_b32 s8, s3, 2")
    a("s_cmp_lg_u32 s8, 1")
    a("s_cbranch_scc1 F_DOWN")
    WF, AG = 24, 8
    a("v_bfe_u32 v6, v3, 1, 1")
    a("v_lshl_or_b32 v8, v6, 2, v14")
    a("v_xor_b32 v8, s12, v8")
    a("v_lshlrev_b32 v8, 4, v8")
    a("v_lshl_add_u32 v8, v5, 7, v8")
    a("v_lshl_add_u32 v8, v6, 10, v8")
    a("v_lshl_add_u32 v8, v4, 11, v8")
    a("v_and_b32 v9, 1, v3")
    a("v_lshl_add_u32 v8, v9, 3, v8")
    a("v_xor_b32 v9, 64, v8")
    a(f"v_add_u32 v10, {WA+49152}, v8")
    a(f"v_add_u32 v11, {WA+49152}, v9")
    a("v_lshlrev_b32 v6, 2, v13")
    a("v_lshrrev_b32 v5, 1, v4")
    a("v_add_u32 v6, v6, v5")
    a("v_lshl_add_u32 v6, v7, 5, v6")
    a("s_lshl_b32 s8, s12, 3")
    a("v_add_lshl_u32 v6, v6, s8, 1")
    a("v_add_u32 v5, v6, v16")
    a("v_and_b32 v6, 6, v3")
    a("v_xor_b32 v6, v6, v4")
    a("v_lshlrev_b32 v6, 4, v6")
    a("v_lshl_add_u32 v6, v15, 7, v6")
    a(f"v_add_u32 v6, {XB}, v6")
    a("v_xor_b32 v7, 64, v6")
    for c in range(6):
        a.spin(F_L + 4 * c, 3, 12, sleep=E("CSL", 1))
        if c in (2, 5):
            a.stamp(2 + c // 3)
        for s in range(3):
            for t in range(2):
                base, off = (8 + t, WA + (c % 3) * 24576 + s * 8192) if c % 3 < 2 else (10 + t, s * 8192)
                r = WF + 8 * (3 * c + s) + 4 * t
                a(f"ds_read_b64_tr_b16 {vr(r,2)}, v{base} offset:{off}")
                a(f"ds_read_b64_tr_b16 {vr(r+2,2)}, v{base} offset:{off+512}")
        if c < 3:
            a("s_waitcnt lgkmcnt(0)")
            a.signal(F_AC + 4 * c, 12)
    a("s_setprio 3")
    a.spin(F_XR, 1, 12)
    a.stamp(4)
    a.auto(True)
    xs = lambda s: 16 + 4 * s
    def xrd(s):
        a(f"ds_read_b128 {vr(xs(s),4)}, v{7 if s&1 else 6} offset:{1024*(s>>1)}")
    xrd(0); xrd(1)
    nx = 2
    for s in range(18):
        for t in range(2):
            a(f"v_mfma_f32_16x16x32_bf16 {vr(AG+4*t,4)}, {vr(WF+8*s+4*t,4)}, {vr(xs(s),4)}, {vr(AG+4*t,4) if s else 0}")
            if nx < 18 and xs(nx) + 4 <= WF + 8 * s + 4 * t + 4:
                xrd(nx); nx += 1
    a.auto(False)
    a.stamp(8)
    for r in range(4):
        a(f"v_cndmask_b32 v{AG+r}, v{AG+r}, v{AG+4+r}, s[56:57]")
    a(f"v_permlane32_swap_b32 v{AG}, v{AG+1}")
    a(f"v_permlane32_swap_b32 v{AG+2}, v{AG+3}")
    for op in ("v_cvt_pk_bf16_f32 v{u}, v{g}, v{u}", "v_lshlrev_b32 v{g}, 16, v{u}", "v_mul_f32 v{t}, 0xbfb8aa3b, v{g}", "v_exp_f32 v{t}, v{t}",
               "v_and_b32 v{u}, 0xffff0000, v{u}", "v_add_f32 v{t}, 1.0, v{t}", "v_rcp_f32 v{t}, v{t}", "v_mul_f32 v{g}, v{g}, v{t}",
               "v_cvt_pk_bf16_f32 v{g}, v{g}, v{g}", "v_and_b32 v{g}, 0xffff0000, v{g}", "v_mul_f32 v{g}, v{g}, v{u}"):
        for p in range(2):
            a(op.format(g=AG + 2 * p, u=AG + 2 * p + 1, t=AG + 4 + p))
    a(f"v_cvt_pk_bf16_f32 v{AG}, v{AG}, v{AG+2}")
    a(f"ds_write_b16 v5, v{AG}")
    a(f"ds_write_b16_d16_hi v5, v{AG} offset:4")
    a.signal(F_HR, 12)
    a.stamp(5)
    a.end()
    a.lab("F_DOWN")
    RW, DF, AC, HF = 24, 56, 120, 152
    a("v_lshl_add_u32 v10, v4, 4, v16")
    a(f"v_mov_b32 v18, {HB+8*HS}")
    a("v_cndmask_b32 v19, v18, v10, s[56:57]")
    a("v_cndmask_b32 v18, v10, v18, s[56:57]")
    a("v_and_b32 v20, 31, v2")
    a("v_lshlrev_b32 v20, 2, v20")
    a(f"v_add_u32 v20, {HB+8*HS}, v20")
    a("ds_write_b32 v20, v1")
    a("v_mul_u32_u24 v8, 9216, v4")
    a("s_mul_i32 s13, s7, 73728")
    for j in range(4):
        a(f"s_mov_b32 s{60+j}, {0x07060500+j:#x}")
    a("s_mov_b32 s64, 0x05040100")
    a("s_mov_b32 s65, 0x07060302")
    a("s_lshl_b32 s14, s7, 7")
    a(f"s_add_u32 s14, s14, {WS_MB}")
    a("v_lshl_add_u32 v11, v15, 4, s14")
    a("s_waitcnt lgkmcnt(0)")
    srd(a, 52, P_WS, WS_SIZE)
    srd(a, 68, P_WD, 5308416)
    a("s_cmp_eq_u32 s3, 9")
    a("s_cbranch_scc1 F_DN2")

    def down(nd):
        nf = 2 * nd
        raw = lambda q, e: (RW if q == 0 else 88) + nd * e
        frg = lambda q, j: (DF if q == 0 else RW) + 4 * j
        for q in range(2):
            for e in range(8):
                if nd == 4 and E("DE", 4) and 8 * q + e == E("DE", 4):
                    a.spin(F_D, 4, 12, sleep=1)
                if not NOW and not E("NOD"):
                    a(f"buffer_load_dword{'x4' if nd == 4 else 'x2'} {vr(raw(q,e),nd)}, v8, s[68:71], s13 offen offset:{1152*(e&3)}")
                if e & 3 == 3:
                    a(f"s_add_u32 s13, s13, {4608 if e == 3 else 36864-4608}")
        def perms(q, p):
            a(f"s_waitcnt vmcnt({14 - 8*q - 2*p})")
            for j in range(nf):
                a(f"v_perm_b32 v{frg(q,j)+p}, v{raw(q,2*p+1)+(j>>1)}, v{raw(q,2*p)+(j>>1)}, s{64+(j&1)}")

        def mms(q):
            for j in range(nf):
                if nd == 4:
                    c = vr(AC + 4 * (j & 3), 4)
                    a(f"v_mfma_f32_16x16x32_bf16 {c}, {vr(frg(q,j),4)}, {vr(HF+8*(j>>2)+4*q,4)}, {c if q or j > 3 else 0}")
                else:
                    a(f"v_mfma_f32_16x16x32_bf16 {vr(AC+4*j,4)}, {vr(frg(q,j),4)}, {vr(HF+4*q,4)}, {vr(AC+4*j,4) if q else 0}")
        for q, p in [(0, 0), (0, 1), (0, 2), (0, 3), (1, 0), (1, 1)]:
            perms(q, p)
        a.spin(F_HR, 4, 12)
        a.stamp(5)
        for q in range(2):
            if nd == 4:
                a(f"ds_read_b128 {vr(HF+4*q,4)}, v18 offset:{64*q}")
                a(f"ds_read_b128 {vr(HF+8+4*q,4)}, v19 offset:{64*q}")
            else:
                a(f"ds_read_b128 {vr(HF+4*q,4)}, v10 offset:{64*q}")
        a(f"s_waitcnt lgkmcnt({nd//2})")
        mms(0)
        a("s_waitcnt lgkmcnt(0)")
        perms(1, 2)
        perms(1, 3)
        a.stamp(4)
        mms(1)
        O = 88
        for r in range(nd):
            for j in range(4):
                if nd == 4:
                    a(f"v_perm_b32 v{O+4*r+j}, v{AC+4*j+r}, v17, s{60+j}")
                else:
                    a(f"v_cndmask_b32 v{O+4*r+j}, v{AC+4*j+2*r}, v{AC+4*j+2*r+1}, s[56:57]")
            if nd == 2:
                for j in range(4):
                    a(f"v_perm_b32 v{O+4*r+j}, v{O+4*r+j}, v17, s{60+j}")
            a(f"s_mov_b32 s12, {18432*r}")
            a(f"buffer_store_dwordx4 {vr(O+4*r,4)}, v11, s[52:55], s12 offen sc1")
        a.stamp(6)
        a.end()
    a("v_lshl_add_u32 v8, v3, 4, v8")
    a("s_lshl_b32 s8, s3, 8")
    a("s_add_u32 s13, s13, s8")
    a("s_lshl_b32 s8, s3, 5")
    a("v_lshl_add_u32 v6, v4, 3, v7")
    a("v_add_u32 v6, s8, v6")
    a("v_mul_u32_u24 v6, 9216, v6")
    a("v_add_u32 v11, v6, v11")
    a.spin(F_X, 0, 17, op="lg", sleep=2)
    a.spin(F_D, 3 if E("DE", 4) else 4, 12, sleep=1)
    a("s_setprio 2")
    down(4)
    a.lab("F_DN2")
    a("v_lshl_add_u32 v8, v3, 3, v8")
    a("s_add_u32 s13, s13, 1024")
    a("v_lshl_add_u32 v6, v4, 2, v7")
    a("v_add_u32 v6, 128, v6")
    a("v_mul_u32_u24 v6, 9216, v6")
    a("v_add_u32 v11, v6, v11")
    a.spin(F_X, 0, 17, op="lg")
    down(2)


def helper(a):
    a.lab("HELPER")
    if not HPN:
        a.end()
        return
    if E("TOUCH", 0):
        a(f"s_cmp_lg_u32 s3, {2+HPW}")
        a("s_cbranch_scc1 H_NT")
        a("v_lshlrev_b32 v5, 19, v3")
        a("v_min_u32 v6, 5308412, v5")
        a("v_min_u32 v5, 2359292, v5")
        a("s_waitcnt lgkmcnt(0)")
        a.b0(13)
        a(f"global_load_dword v8, v6, {sr(P_WD,2)}")
        a(f"global_load_dword v9, v5, {sr(P_OUT,2)}")
        a.lab("H_NT")
    a(f"s_cmp_ge_u32 s3, {2+HPW}")
    a("s_cbranch_scc1 K_END")
    a("s_and_b32 s12, s3, 1")
    a("s_sub_u32 s13, s3, 2")
    a("s_lshr_b32 s13, s13, 1")
    a("s_mul_i32 s13, s13, 5")
    a("s_add_u32 s13, s13, s5")
    a(f"s_add_u32 s13, s13, {(HPS-NJF) & 0xffffffff}")
    prefetch(a, HPN, E("HH", 0))
    if STAMP:
        a("s_waitcnt vmcnt(0)")
        a.stamp(1)
    a.end()


DSK, EXPN = 166, 167
PA, PB, A16, PC, PD, A32, E2, EF = 104, 108, 112, 116, 120, 124, 128, 152


def cmul(a, d, x, y):
    a(f"v_pk_mul_f32 {vr(d,2)}, {vr(x,2)}, {vr(y,2)} op_sel:[0,0] op_sel_hi:[0,1]")
    a(f"v_pk_fma_f32 {vr(d,2)}, {vr(x,2)}, {vr(y,2)}, {vr(d,2)} op_sel:[1,1,0] op_sel_hi:[1,0,1] neg_lo:[0,1,0]")


def kgen_head(a):
    a.lab("C_KGEN")
    a.fine(6)
    PR = 16
    a("s_and_b32 s4, s2, 7")
    a("s_mul_i32 s7, s4, 18")
    a("s_add_u32 s7, s7, s5")
    a(f"s_sub_u32 s7, s7, {NJH}")
    a("s_and_b32 s12, s3, 3")
    a("s_lshr_b32 s13, s3, 2")
    a("s_lshl2_add_u32 s8, s7, s12")
    a("s_lshl1_add_u32 s8, s8, s13")
    a("s_lshl_b32 s8, s8, 7")
    a("v_lshl_add_u32 v5, v2, 1, s8")
    for k in range(3):
        a(f"v_mov_b64 {vr(PR+2*k,2)}, 0")
    a("s_lshl_b32 s55, s7, 3")
    a("s_waitcnt lgkmcnt(0)")
    a.fine(7)
    a(f"s_load_dwordx2 s[58:59], {sr(P_LDT,2)}, s55")
    for k, p in enumerate([P_ARE, P_AIM, P_BRE, P_BIM, P_CRE, P_CIM]):
        a(f"global_load_short_d16_hi v{PR+k}, v5, {sr(p,2)}")
    a.stamp(22)
    a.b0()
    a("s_branch C_KBODY")


def kgen(a):
    a.lab("C_KBODY")
    PR = 16
    a(f"s_load_dwordx2 s[68:69], {sr(P_DSK,2)}, s55")
    a("s_setprio 2")
    a("v_and_b32 v3, 15, v2")
    a("v_lshrrev_b32 v4, 4, v2")
    a("s_and_b32 s4, s2, 7")
    a(f"s_mul_i32 s15, s3, {KTS}")
    a(f"s_add_u32 s15, s15, {KT}")
    a(f"s_mul_i32 s52, s12, {4*CS}")
    a(f"s_add_u32 s52, s52, {KC}")
    a(f"s_mul_i32 s53, s12, {US}")
    a(f"s_add_u32 s53, s53, {UP}")
    a(f"v_mul_u32_u24 v7, {TS}, v3")
    a("v_lshl_add_u32 v7, v4, 4, v7")
    a("v_add_u32 v7, s15, v7")
    a("s_mov_b32 m0, s15")
    a.lab("C_SETD")
    a.fine(8)
    a("s_waitcnt lgkmcnt(0)")
    a.auto(True)
    a("s_lshl_b32 s8, s12, 4")
    a("s_lshr_b64 s[58:59], s[58:59], s8")
    a("s_lshl_b32 s8, s58, 16")
    a("v_mov_b32 v44, s8")
    a(f"v_mul_f32 v45, {L2E:#x}, v44")
    a(f"v_mov_b32 v46, {L2E:#x}")
    a("v_fma_f32 v46, v44, v46, -v45")
    a(f"v_mov_b32 v47, {L2E_LO:#x}")
    a("v_fma_f32 v46, v44, v47, v46")
    a("v_exp_f32 v45, v45")
    a(f"v_mul_f32 v46, {LN2:#x}, v46")
    a("v_fma_f32 v45, v45, v46, v45")
    a("v_cvt_pk_bf16_f32 v45, v45, v45")
    DT, DTL, DTR = 36, 37, 38
    a(f"v_and_b32 v{DT}, 0xffff0000, v45")
    a(f"v_mul_f32 v{DTL}, {L2E:#x}, v{DT}")
    a(f"v_mul_f32 v{DTR}, {INV2PI:#x}, v{DT}")
    a("s_waitcnt vmcnt(0)")
    a.stamp(1)
    if STAMP and E("CLK2"):
        a("s_memtime s[90:91]")
    ZR, ZI, WR = 40, 41, 42
    a(f"v_mul_f32 v{ZR}, v{PR}, v{DTL}")
    a(f"v_mul_f32 v{ZI}, v{PR+1}, v{DTR}")
    T0 = 24

    def direct(dst, c):
        if c != 1:
            a(f"v_mul_f32 v{dst}, {fbits(c):#x}, v{ZR}")
            a(f"v_mul_f32 v{dst+1}, {fbits(c):#x}, v{ZI}")
        a(f"v_exp_f32 v{T0}, v{dst if c != 1 else ZR}")
        a(f"v_fract_f32 v{dst+1}, v{dst+1 if c != 1 else ZI}")
        a(f"v_cos_f32 v{dst}, v{dst+1}")
        a(f"v_sin_f32 v{dst+1}, v{dst+1}")
        a(f"v_mul_f32 v{dst}, v{T0}, v{dst}")
        a(f"v_mul_f32 v{dst+1}, v{T0}, v{dst+1}")
    PW, R1 = 46, 44
    pc = lambda c: PW + 2 * (c - 1)
    direct(pc(1), 1)
    a(f"v_mul_f32 v{PR+2}, v{PR+2}, v{DT}")
    a(f"v_mul_f32 v{PR+3}, v{PR+3}, v{DT}")
    cmul(a, WR, PR + 4, PR + 2)
    a(f"v_max_f32 v39, |v{WR}|, |v{WR+1}|")
    side = wave_max_steps(39) + ["v_readlane_b32 s8, v39, 63"]
    OT = [26, 27, 28, 29]
    cnt = [0]

    pend = []

    def flush():
        while pend:
            a(pend.pop(0))

    def emit(row, x):
        o = OT[cnt[0] % 4]
        cnt[0] += 1
        flush()
        a(f"v_cvt_pk_f16_f32 v{o}, v{x}, v{x+1}")
        pend.append(f"ds_write_addtid_b32 v{o} offset:{row*TS}")
    cmul(a, pc(2), pc(1), pc(1))
    cmul(a, pc(4), pc(2), pc(2))
    Q1, QA, QB = 60, 62, 64
    cmul(a, Q1, pc(4), pc(4))
    a(f"v_mov_b32 v30, 0x3c00")
    a(f"v_xor_b32 v{Q1+1}, 0x80000000, v{Q1+1}")
    a("ds_write_addtid_b32 v30")
    emit(1, Q1)
    cur, nxt = Q1, QA
    for b in range(2, 16):
        cmul(a, nxt, cur, Q1)
        if side:
            a(side.pop(0))
        emit(b, nxt)
        cur, nxt = nxt, (QB if nxt == QA else QA)
    a("s_lshr_b32 s8, s8, 23")
    a("s_sub_u32 s8, 258, s8")
    a("s_min_u32 s54, s8, 253")
    a("s_lshl_b32 s8, s54, 23")
    a(f"v_mul_f32 v{WR}, s8, v{WR}")
    a(f"v_mul_f32 v{WR+1}, s8, v{WR+1}")
    QF, PF, KA = 72, 88, 104
    flush()
    for ks in range(4):
        a(f"ds_read_b128 {vr(QF+4*ks,4)}, v7 offset:{64*ks}")
    direct(R1, 128)
    cmul(a, pc(3), pc(2), pc(1)); cmul(a, pc(5), pc(4), pc(1)); cmul(a, pc(6), pc(3), pc(3)); cmul(a, pc(7), pc(6), pc(1))
    CH = [66, 68]
    YC = [60, 62]
    state = {"cur": WR, "k": 0, "y": 0}

    def adv():
        n = CH[state["k"] & 1]
        cmul(a, n, state["cur"], R1)
        state["cur"] = n; state["k"] += 1

    def row(r, c):
        if c == 0:
            emit(r, state["cur"])
        else:
            y = YC[state["y"] & 1]; state["y"] += 1
            cmul(a, y, state["cur"], pc(c))
            emit(r, y)

    def rd():
        flush()
        for ks in range(4):
            a(f"ds_read_b128 {vr(PF+4*ks,4)}, v7 offset:{64*ks}")

    def mm(t, ks):
        a(f"v_mfma_f32_16x16x32_f16 {vr(KA+4*t,4)}, {vr(PF+4*ks,4)}, {vr(QF+4*ks,4)}, {vr(KA+4*t,4) if ks else 0}")
    for h in range(2):
        for c in range(8):
            row(8 * h + c, c)
        adv()
    rd()
    for h in range(2):
        for c in range(4):
            row(4 * h + c, 2 * c)
            if h == 1:
                mm(0, c)
        adv()
    for q in range(4):
        row(8 + 2 * q, 0); row(9 + 2 * q, 4)
        adv()
    rd()
    for q in range(9):
        row(q, 0)
        if q < 8:
            adv()
        if 4 <= q < 8:
            mm(1, q - 4)
    rd()
    a("v_lshl_add_u32 v8, v2, 4, s15")
    for ks in range(4):
        mm(2, ks)
    a.auto(False)
    a.stamp(2)
    if STAMP and E("CLK2"):
        a("s_memtime s[96:97]")
    a("s_lshl_b32 s8, s12, 2")
    a(f"s_add_u32 s8, s8, {F_PAIR}")
    a("v_mov_b32 v9, s8")
    a("s_cmp_eq_u32 s13, 0")
    a("s_cbranch_scc1 C_KA")
    for t in range(3):
        a(f"ds_write_b128 v8, {vr(KA+4*t,4)} offset:{1024*t}")
    a("v_mov_b32 v10, s54")
    a("ds_write_b32 v9, v10")
    a.stamp(3)
    a("s_setprio 0")
    a("v_and_b32 v14, 3, v3")
    a("v_sub_u32 v14, 3, v14")
    a(f"v_mul_u32_u24 v14, {CS}, v14")
    a("v_lshrrev_b32 v13, 2, v3")
    a("v_lshl_add_u32 v13, v4, 1, v13")
    a("v_lshl_add_u32 v14, v13, 3, v14")
    a("v_add3_u32 v5, v14, s52, 8")
    a("v_lshlrev_b32 v14, 1, v3")
    a("v_sub_u32 v14, v4, v14")
    a("v_lshlrev_b32 v14, 4, v14")
    a(f"s_add_u32 s8, s53, {4064-512*7}")
    a("v_add_u32 v6, s8, v14")
    a("v_lshl_add_u32 v14, v3, 2, v4")
    a(f"s_mul_i32 s8, s12, {OS}")
    a(f"s_add_u32 s8, s8, {OP+4088-512*7}")
    a("v_lshlrev_b32 v14, 3, v14")
    a("v_sub_u32 v7, s8, v14")
    a.spin(F_H, 1, 10, prio=E("BSP", 3), sleep=1)
    a.spin(f"v9 offset:{F_K-F_PAIR}", 0, 10, op="lg", sleep=E("BSS", 0))
    a.stamp(4)
    gphase(a, 0)
    a.lab("C_KA")
    a("s_setprio 1")
    a("v_and_b32 v14, 3, v3")
    a("v_sub_u32 v14, 3, v14")
    a(f"v_mul_u32_u24 v14, {CS}, v14")
    a("v_lshrrev_b32 v13, 2, v3")
    a("v_lshl_add_u32 v13, v4, 1, v13")
    a("v_lshl_add_u32 v14, v13, 3, v14")
    a("v_add3_u32 v5, v14, s52, 8")
    a("v_lshlrev_b32 v14, 1, v3")
    a("v_sub_u32 v14, v4, v14")
    a("v_lshlrev_b32 v14, 4, v14")
    a(f"s_add_u32 s8, s53, {4064-512*7}")
    a("v_add_u32 v6, s8, v14")
    a("v_lshl_add_u32 v14, v3, 2, v4")
    a(f"s_mul_i32 s8, s12, {OS}")
    a(f"s_add_u32 s8, s8, {OP+4088-512*7}")
    a("v_lshlrev_b32 v14, 3, v14")
    a("v_sub_u32 v7, s8, v14")
    a("v_lshrrev_b32 v11, 1, v4")
    a("v_and_b32 v12, 1, v4")
    a("v_lshlrev_b32 v11, 8, v11")
    a("v_lshl_add_u32 v11, v12, 3, v11")
    a("v_lshl_add_u32 v11, v3, 4, v11")
    a("v_add_u32 v11, s15, v11")
    a("v_cmp_gt_u32 vcc, 2, v4")
    a("v_lshlrev_b32 v12, 2, v3")
    a("v_lshlrev_b32 v13, 3, v3")
    a("v_cndmask_b32 v12, v12, v13, vcc")
    a("v_lshl_add_u32 v12, v4, 7, v12")
    a("v_add_u32 v12, s15, v12")
    a("v_mov_b32 v13, 64")
    a("v_cndmask_b32 v13, v13, 4, vcc")
    a("v_add_u32 v13, v13, v12")
    a("v_lshlrev_b32 v14, 1, v3")
    a("v_lshl_add_u32 v14, v4, 7, v14")
    a("v_add_u32 v14, s15, v14")
    a("v_lshlrev_b32 v15, 4, v2")
    a("v_lshlrev_b32 v16, 3, v2")
    a("v_add_u32 v16, 256, v16")
    a("v_min_u32 v15, v15, v16")
    a("v_add_u32 v15, s15, v15")
    EB, E2B = 2048, 3072
    a("v_min_u32 v16, 15, v2")
    a("v_lshl_add_u32 v16, v16, 2, s15")
    a("v_lshrrev_b32 v26, 5, v2")
    a("v_lshlrev_b32 v26, 8, v26")
    a("v_lshl_add_u32 v26, v2, 2, v26")
    a("v_add_u32 v26, s15, v26")
    a("v_lshlrev_b32 v17, 2, v4")
    a("v_sub_u32 v17, v3, v17")
    a("v_lshl_add_u32 v27, v17, 3, s15")
    a(f"v_add_u32 v27, {E2B+104}, v27")
    a("v_lshl_add_u32 v17, v17, 2, s15")
    a(f"v_add_u32 v17, {EB+52}, v17")
    a("v_lshl_add_u32 v19, v2, 4, s52")
    a("s_mov_b32 s56, 0x01000100")
    a("s_mov_b32 s57, 0x03020302")
    a("s_lshl_b32 s8, s12, 4")
    a("s_lshr_b64 s[68:69], s[68:69], s8")
    a("s_lshl_b32 s68, s68, 16")
    a("s_sub_u32 s58, 254, s54")
    a("s_lshl_b32 s58, s58, 23")
    for r in range(12):
        a(f"v_mul_f32 v{KA+r}, s58, v{KA+r}")
    a("s_mov_b64 exec, 1")
    a(f"v_add_f32 v{KA}, s68, v{KA}")
    a("s_mov_b64 exec, -1")
    for r in (3, 7, 10, 11, 14, 15):
        a(f"v_mov_b32 v{72+r}, 0")
    a("v_lshlrev_b32 v28, 4, v2")
    a(f"v_add_u32 v28, {PM}, v28")
    a.spin(F_PM, 2, 18)
    for k, r in ((2, PC), (3, PD), (4, A32)):
        a(f"ds_read_b128 {vr(r,4)}, v28 offset:{1024*k}")
    a.spin("v9", 0, 18, prio=2, op="lg")
    a("s_sub_u32 s60, 254, s8")
    a("s_lshl_b32 s60, s60, 23")
    a.auto(True)
    for t in range(3):
        a(f"ds_read_b128 {vr(PF+4*t,4)}, v8 offset:{4*KTS+1024*t}")
    for t in range(3):
        for p in range(2):
            r = 4 * t + 2 * p
            a(f"v_pk_fma_f32 {vr(KA+r,2)}, {vr(PF+r,2)}, s[60:61], {vr(KA+r,2)} op_sel_hi:[1,0,1]")
            a(f"v_cvt_pk_bf16_f32 v{20+2*t+p}, v{KA+r}, v{KA+r+1}")
        if t == 0:
            a("ds_write_b64 v11, v[20:21]")
        elif t == 1:
            a("ds_write_b32 v12, v22 offset:512")
            a("ds_write_b32 v13, v23 offset:512")
            S = 32
            for p in range(2):
                a(f"ds_read_b64 {vr(S+2*p,2)}, v15 offset:{8*p}")
    a("s_mov_b32 exec_lo, 0")
    a(f"v_alignbit_b32 v{S+3}, v{S+2}, v{S+1}, 16")
    a(f"v_perm_b32 v{S+2}, v{S+1}, v{S+1}, s56")
    a(f"v_alignbit_b32 v{S+1}, v{S+1}, v{S}, 16")
    a(f"v_perm_b32 v{S}, v{S}, v{S}, s56")
    a("s_mov_b32 exec_lo, -1")
    a(f"ds_write_b128 v19, {vr(S,4)} offset:32")
    a(f"v_mov_b32_dpp v{S-2}, v{S+2} wave_shr:1 {DPPF} bound_ctrl:0")
    a(f"v_mov_b32_dpp v{S-1}, v{S+3} wave_shr:1 {DPPF} bound_ctrl:0")
    C1, C2, C3 = 44, 52, 60
    for p in range(4):
        a(f"v_alignbit_b32 v{C1+p}, v{S+p}, v{S+p-1}, 16")
    a(f"ds_write_b128 v19, {vr(C1,4)} offset:{CS+32}")
    for p in range(4):
        a(f"v_mov_b32 v{C2+p}, v{S+p-1}")
    a(f"ds_write_b128 v19, {vr(C2,4)} offset:{2*CS+32}")
    for p in range(4):
        a(f"v_alignbit_b32 v{C3+p}, v{S+p-1}, v{S+p-2}, 16")
    a(f"ds_write_b128 v19, {vr(C3,4)} offset:{3*CS+32}")
    a("v_mov_b32 v10, 1")
    a(f"ds_write_b32 v9, v10 offset:{F_K-F_PAIR}")
    a.stamp(3)
    a(f"s_setprio {E('GPL', 3)}")
    TL = 72
    a(f"v_perm_b32 v{TL+1}, v{S+3}, v{S+3}, s57")
    a(f"v_alignbit_b32 v{TL}, v{S+3}, v{S+2}, 16")
    a(f"v_lshrrev_b32 v{TL+6}, 16, v{S+3}")
    a(f"v_mov_b32 v{TL+4}, v{S+3}")
    for r in (2, 5, 8, 9, 12):
        a(f"v_mov_b32 v{TL+r}, v{TL+1}")
    a(f"v_mov_b32 v{TL+13}, v{TL+6}")
    a("s_mov_b32 exec_lo, 0")
    for r in range(4):
        a(f"ds_write_b16{'_d16_hi' if r&1 else ''} v{12+(r>>1)}, v{22+(r>>1)} offset:{E2B-130+2*(r&1)}")
    a("s_mov_b32 exec_hi, 0x80000000")
    for j in range(4):
        a(f"ds_write_b128 v19, {vr(TL+4*(3-j),4)} offset:{j*CS+48}")
    a("s_mov_b64 exec, 1")
    a(f"ds_write_b16 v14, v24 offset:{E2B+382}")
    a("s_mov_b64 exec, -1")
    a(f"ds_write_b32 v26, v1 offset:{E2B}")
    for r in range(4):
        a(f"ds_write_b16{'_d16_hi' if r&1 else ''} v14, v{24+(r>>1)} offset:{EB+62+32*r}")
    a(f"ds_write_b32 v16, v1 offset:{EB}")
    a("v_readlane_b32 s59, v24, 0")
    a("v_mov_b32 v11, v27")
    a("v_mov_b32 v12, v17")
    a("v_mov_b32 v13, v28")
    a("s_pack_ll_b32_b16 s59, s59, s59")
    a.auto(False)
    a.spin(F_H, 2, 10, sleep=1)
    a.stamp(4)
    gphase(a, 1)


def gphase(a, isA):
    M = "v_mfma_f32_16x16x32_bf16"
    rdA = lambda m, d: [f"ds_read_b64 {vr(d,2)}, v5 offset:{64*m}", f"ds_read_b64 {vr(d+2,2)}, v5 offset:{64*m+8}"]
    rdB = lambda b, rho, d, extra=0: f"ds_read_b128 {vr(d,4)}, v6 offset:{512*(7-b)+64*rho+extra}"
    slot = lambda t: 1024 * (t - 2) if t < 6 else 4 * KTS + 1024 * (t - 6)

    def emit(main, fill=[], per=2, skip=0):
        for x in interleave(main, fill, per=per, skip=skip):
            a(x)
    if isA:
        a(f"s_setprio {E('GPA', 1)}")
        AC = 16
        acc = lambda t: vr(AC + 4 * (t - 2), 4)
        started = set()

        def mf(t, A, B):
            c = acc(t) if t in started else "0"
            started.add(t)
            return f"{M} {acc(t)}, {vr(A,4)}, {vr(B,4)}, {c}"
        U = lambda b: 40 + 8 * (b & 1)
        Z = lambda b: 56 + 24 * (b & 1)
        urd = lambda b: [rdB(b, 0, U(b)), rdB(b, 0, U(b) + 4, 16)]
        PL = [(0, PC), (0, PD), (1, PC), (1, PD), (0, PA), (1, PB)]
        pool2 = lambda b: [f"{M} {vr(Z(b)+4*k,4)}, {vr(U(b)+4*h,4)}, {vr(P,4)}, 0" for k, (h, P) in enumerate(PL) if k < 4] + [mf(b + 2, A16, U(b))]
        pool3 = lambda b: [f"{M} {vr(Z(b)+4*k,4)}, {vr(U(b)+4*h,4)}, {vr(P,4)}, 0" for k, (h, P) in enumerate(PL) if k >= 4] + [mf(b + 4, A32, U(b))] if b < 4 else []
        cvt = lambda b, fs: [f"v_cvt_pk_bf16_f32 v{Z(b)+8*f+r}, v{Z(b)+8*f+r}, v{Z(b)+8*f+4+r}" for f in fs for r in range(4)]
        use2 = lambda b, lo, hi: [mf(b + 2 + D, Z(b) + 8 * f, E2 + 8 * D + 4 * f) for D in range(3) if lo <= b + 2 + D < min(hi, 8) for f in range(2)]
        use3 = lambda b: [mf(t, Z(b) + 16, EF + 4 * (t - b - 4)) for t in range(b + 4, 8)]
        hand = lambda t: [f"ds_write_b128 v8, {acc(t)} offset:{slot(t)}", f"v_mov_b32 v10, {t}", f"ds_write_b32 v9, v10 offset:{F_I-F_PAIR}"]
        e2rd = lambda D: [x for f in range(2) for x in (f"ds_read2_b32 {vr(E2+8*D+4*f,2)}, v11 offset0:{32*D+6+f} offset1:{32*D+4+f}",
                                                        f"ds_read2_b32 {vr(E2+8*D+4*f+2,2)}, v11 offset0:{32*D+2+f} offset1:{32*D+f}")]
        efrd = [x for D in range(4) for x in (f"ds_read2_b32 {vr(EF+4*D,2)}, v12 offset0:{16*D+3} offset1:{16*D+2}",
                                              f"ds_read2_b32 {vr(EF+4*D+2,2)}, v12 offset0:{16*D+1} offset1:{16*D}")]
        a.auto(True)
        emit(urd(0) + urd(1) + rdA(16, A16) + e2rd(0))
        for p in range(4):
            a(f"v_and_b32 v{A32+p}, s59, v{A32+p}")
        emit(pool2(0), e2rd(1) + [f"ds_read_b128 {vr(PA,4)}, v13", f"ds_read_b128 {vr(PB,4)}, v13 offset:1024"], per=1)
        emit(pool2(1), cvt(0, (0, 1)))
        emit(use2(0, 2, 4), cvt(1, (0, 1)))
        emit(use2(1, 2, 4) + pool3(0) + pool3(1), e2rd(2) + hand(2) + efrd + hand(3), per=2)
        a.auto(False)
        a.spin(F_H, 4, 10, sleep=1)
        a(f"s_setprio {E('GPA2', 3)}")
        a.auto(True)
        emit(urd(2) + urd(3) + use2(0, 4, 8) + use2(1, 4, 8), cvt(0, (2,)) + cvt(1, (2,)))
        emit(pool2(2) + use3(0) + use3(1))
        emit(pool2(3) + pool3(2), cvt(2, (0, 1)))
        emit(use2(2, 4, 8) + pool3(3), cvt(3, (0, 1)) + cvt(2, (2,)) + hand(4))
        emit(use2(3, 4, 8) + use3(2), cvt(3, (2,)) + ["s_nop 0"] * 4 + hand(5))
        emit(use3(3))
        a.auto(False)
        a.stamp(5)
        a(f"s_setprio {E('GPA3', 3)}")
        a.spin(F_H, 6, 10, sleep=1)
        a.auto(True)
        emit(urd(4) + urd(5) + pool2(4))
        emit(pool2(5), cvt(4, (0, 1)))
        emit(use2(4, 4, 8), cvt(5, (0, 1)))
        emit(use2(5, 4, 8) + hand(6) + hand(7))
        a.auto(False)
        a.stamp(7)
        a.end()
        return
    a(f"s_setprio {E('GPB', 2)}")
    AF, BF, NB = 40, 104, 6
    acc = lambda t: 16 + 4 * (t % 3)
    a(f"v_subrev_u32 v8, {4*KTS}, v8")
    a("v_cmp_eq_u32 vcc, 0, v2")
    a(f"v_mov_b32 v13, {F_O}")
    a("v_cndmask_b32 v12, 0, 1, vcc")
    a("v_lshlrev_b32 v14, 2, v2")
    a(f"v_add_u32 v14, {PM+5120}, v14")
    a("v_cndmask_b32 v13, v14, v13, vcc")
    stage = {1: 0, 3: 1, 5: 2, 6: 3, 7: 4}

    PT = 32

    def yout(t):
        o = [f"v_add_f32 v{acc(t)+r}, v{acc(t)+r}, v{PT+r}" for r in range(4)] if t >= 2 else []
        o += [f"v_cvt_pk_bf16_f32 v30, v{acc(t)+3}, v{acc(t)+2}", f"v_cvt_pk_bf16_f32 v31, v{acc(t)+1}, v{acc(t)}",
              f"ds_write_b64 v7, v[30:31] offset:{512*(7-t)}"]
        if t in stage:
            o.append(f"ds_add_u32 v13, v12 offset:{4*stage[t]}")
        return o
    bf = lambda n: BF + 4 * (n % NB)
    rdn = lambda n: rdB(n >> 3, n & 7, bf(n))
    part = lambda t: [f"ds_read_b128 {vr(PT,4)}, v8 offset:{slot(t)}"] if t >= 2 else []
    a.auto(True)
    emit(rdA(0, AF) + [rdn(0)] + rdA(8, AF + 32) + [rdn(1)] + rdA(1, AF + 4) + rdA(9, AF + 36) + [rdn(2), rdn(3)])
    for b in range(8):
        y = yout(b - 1) if b else []
        for rho in range(8):
            n = 8 * b + rho
            f0, f1 = [], []
            if b == 0 and rho < 6:
                f0, f1 = rdA(rho + 2, AF + 4 * (rho + 2)), rdA(rho + 10, AF + 32 + 4 * (rho + 2))
            if b and rho in (2, 3):
                f0, f1, y = y[:2], y[2:4], y[4:]
            if rho == 4:
                f0 = f0 + [f"ds_read_b32 v28, v1 offset:{F_H}", f"ds_read_b32 v29, v9 offset:{F_I-F_PAIR}"]
            if rho == 5:
                f0 = f0 + part(b)
            if rho == 6:
                f1 = f1 + ["v_readfirstlane_b32 s9, v29"]
            if rho == 7:
                f0 = f0 + ["v_readfirstlane_b32 s8, v28", "s_add_u32 s9, s9, 2"]
                if b < 2:
                    f1 = f1 + [f"s_cmp_lt_u32 s8, {b+2}"]
                elif b < 7:
                    f1 = f1 + ["s_min_u32 s8, s8, s9", f"s_cmp_lt_u32 s8, {b+2}"]
                else:
                    f1 = f1 + ["s_cmp_lt_u32 s9, 9"]
            if n + 4 < 64:
                f1 = [rdn(n + 4)] + f1
            a(f"{M} {vr(acc(b),4)}, {vr(AF+4*rho,4)}, {vr(bf(n),4)}, {vr(acc(b),4) if n else 0}")
            emit(f0)
            if b < 7:
                a(f"{M} {vr(acc(b+1),4)}, {vr(AF+32+4*rho,4)}, {vr(bf(n),4)}, {vr(acc(b+1),4) if rho else 0}")
            emit(f1)
        a(f"s_cbranch_scc1 C_SLOW{b}")
        a.lab(f"KEEP_P{b}")
        if b == 3:
            a.stamp(5)
            if STAMP and E("CLK"):
                a("s_memtime s[82:83]")
    a.stamp(6)
    if STAMP and E("CLK"):
        a("s_memtime s[84:85]")
    emit(yout(7))
    a.auto(False)
    a.stamp(7)
    a(f"ds_read_b32 v10, v1 offset:{F_X}")
    a("s_cmp_eq_u32 s3, 4")
    a("s_cbranch_scc1 C_FIN")
    a.end()
    for b in range(8):
        a.lab(f"C_SLOW{b}")
        if b < 7:
            a.spin(F_H, b + 2, 28)
        if b >= 2:
            a.spin(f"v9 offset:{F_I-F_PAIR}", b, 28)
        for x in part(b) + ([rdn(8 * b + 8 + k) for k in range(4)] if b < 7 else []):
            a(x)
        a("s_waitcnt lgkmcnt(0)")
        a(f"s_branch KEEP_P{b}")


XD, GD = 40, 56
VX, VY, VG, VO = 72, 73, 74, 78


def epi_setup(a):
    srd(a, 60, P_OUT, 2359296)
    a("v_bfe_u32 v79, v2, 2, 2")
    a("v_and_b32 v80, 3, v2")
    a("v_lshl_add_u32 v80, v4, 2, v80")
    a("s_lshl_b32 s8, s12, 7")
    for d, base, stride in ((VX, UP, US), (VY, OP, OS)):
        a(f"v_mul_u32_u24 v{d}, {stride}, v79")
        a(f"v_lshl_add_u32 v{d}, v80, 3, v{d}")
        a(f"s_sub_u32 s9, {base+3968-512*7}, s8")
        a(f"v_add_u32 v{d}, s9, v{d}")
    a("v_xor_b32 v79, 63, v2")
    a("s_lshl_b32 s8, s12, 9")
    a(f"s_add_u32 s8, s8, {WS_G}")
    a(f"v_lshl_add_u32 v{VG}, v79, 3, s8")
    for k in range(1, 4):
        a(f"v_add_u32 v{VG+k}, {4096*k}, v{VG}")
    a(f"v_mul_u32_u24 v{VO}, 1152, v79")
    a(f"v_add_u32 v{VO}, s55, v{VO}")
    a("s_mul_i32 s68, s12, 73728")
    a("s_mov_b32 s70, 0x05040100")
    a("s_mov_b32 s71, 0x07060302")


def epi_x(a, ks):
    for k in ks:
        a(f"ds_read_b64_tr_b16 {vr(XD+2*k,2)}, v{VX} offset:{512*(7-k)}")


def epi_g(a):
    l = a.uid("GP")
    a("s_mov_b32 s9, 0")
    a.lab(l)
    a(f"v_xor_b32 v14, v{GD+1}, v10")
    for k in range(1, 8):
        a(f"v_bitop3_b32 v14, v14, v{GD+2*k+1}, v10 bitop3:0xf6")
    a("v_cmp_ne_u32 vcc, 0, v14")
    a("s_add_u32 s9, s9, 1")
    a("s_cmp_eq_u64 vcc, 0")
    a(f"s_cbranch_scc1 {l}_D")
    a(f"s_cmp_ge_u32 s9, {SPIN}")
    a(f"s_cbranch_scc1 {l}_D")
    epi_gl(a)
    a("s_waitcnt vmcnt(0)")
    a(f"s_branch {l}")
    a.lab(l + "_D")


def epi_gl(a):
    for k in range(8):
        a(f"global_load_dwordx2 {vr(GD+2*k,2)}, v{VG+(k>>1)}, {sr(P_WS,2)} offset:{2048*(k&1)} sc1")


TX = 120


def epi_unp(a, ks):
    for k in ks:
        if k < NF:
            for p in range(2):
                a(f"v_lshlrev_b32 v{TX+4*k+2*p}, 16, v{XD+2*k+p}")
                a(f"v_and_b32 v{TX+4*k+2*p+1}, 0xffff0000, v{XD+2*k+p}")


def epi_mul(a, ks):
    for k in ks:
        if k < NF:
            a(f"v_and_b32 v{16+(k&3)}, 0xffff0000, v{GD+2*k}")
            a(f"v_lshlrev_b32 v{GD+2*k+1}, 16, v{GD+2*k}")
            for c in range(4):
                a(f"v_mul_f32 v{TX+4*k+c}, v{TX+4*k+c}, v{16+(k&3)}")


def epi_fin(a, ks, stage):
    a.spin(F_O + 4 * stage, 4, 15, sleep=E("OSL", 1), prio=E("IOP", 3))
    a.auto(True)
    Y = 16
    for n, k in enumerate(ks):
        a(f"ds_read_b64_tr_b16 {vr(Y+2*n,2)}, v{VY} offset:{512*(7-k)}")
    for n0 in range(0, len(ks), 2):
        pr = [(n, ks[n], 24 + 4 * n) for n in (n0, n0 + 1) if n < len(ks)]
        if ks[n0] < NF:
            for n, k, R in pr:
                for p in range(2):
                    a(f"v_lshlrev_b32 v{R+2*p}, 16, v{Y+2*n+p}")
                    a(f"v_and_b32 v{R+2*p+1}, 0xffff0000, v{Y+2*n+p}")
                for c in range(4):
                    a(f"v_fma_f32 v{R+c}, v{R+c}, v{GD+2*k+1}, v{TX+4*k+c}")
        else:
            for n, k, R in pr:
                for c in range(4):
                    a(f"v_perm_b32 v{R+c}, v{XD+2*k+(c>>1)}, v{Y+2*n+(c>>1)}, s{70+(c&1)}")
            for n, k, R in pr:
                for c in range(4):
                    a(f"v_dot2_f32_bf16 v{R+c}, v{R+c}, v{GD+2*k}, 0")
        for n, k, R in pr:
            for p in range(2):
                a(f"v_cvt_pk_bf16_f32 v{XD+2*k+p}, v{R+2*p}, v{R+2*p+1}")
            if not E("NOST"):
                a(f"buffer_store_dwordx2 {vr(XD+2*k,2)}, v{VO}, s[60:63], s68 offen")
            a("s_add_u32 s68, s68, 294912")
    a.auto(False)


def burst_addr(a):
    a(f"s_sub_u32 s9, s5, {NJH}")
    if GORD:
        a("s_mul_i32 s9, s9, 3")
        a("s_min_u32 s8, s12, 2")
        a("s_add_u32 s9, s9, s8")
        a("s_mul_i32 s9, s9, 12288")
        a("s_mul_i32 s8, s4, 663552")
        a("s_add_u32 s8, s8, s9")
        a("v_lshl_add_u32 v88, v2, 7, s8")
        a("v_min_u32 v89, 31, v2")
        a("v_lshl_add_u32 v89, v89, 7, s8")
        a("v_add_u32 v89, 8192, v89")
        return
    a("s_lshl_b32 s9, s9, 2")
    a("s_add_u32 s9, s9, s12")
    a("s_mul_i32 s9, s9, 9216")
    a("s_mul_i32 s8, s4, 663552")
    a("s_add_u32 s8, s8, s9")
    if BL == 72:
        a("v_lshl_add_u32 v88, v2, 7, s8")
        a("v_min_u32 v89, 7, v2")
        a("v_lshl_add_u32 v89, v89, 7, s8")
        a("v_add_u32 v89, 8192, v89")
    else:
        a(f"s_add_u32 s8, s8, {128*(72-BL)}")
        a(f"v_min_u32 v88, {BL-1}, v2")
        a("v_lshl_add_u32 v88, v88, 7, s8")


def burst(a):
    if BSN:
        for k in range(NBI):
            a(f"global_load_dword v{96+k}, v{88+k}, {sr(P_WD,2)}")


def io_common(a):
    a("s_mul_i32 s7, s4, 18")
    a("s_add_u32 s7, s7, s5")
    a(f"s_sub_u32 s7, s7, {NJH}")
    a("s_lshl_b32 s55, s7, 3")
    a("s_sub_u32 s12, s3, 8")
    epi_setup(a)
    burst_addr(a)


def uloader(a):
    a.lab("C_LOAD")
    a("s_setprio 3")
    a(f"s_sub_u32 s13, s5, {NJH}")
    pf = stripe_pf(a)
    pf2 = []
    if PF2AT >= 0:
        pf, pf2 = pf[:2], [x.replace("v10,", "v98,").replace("v11,", "v99,") for x in pf[2:]]
    a("v_mul_u32_u24 v6, 4608, v2")
    a("s_lshl_b32 s8, s7, 3")
    a("v_add_u32 v6, s8, v6")
    a("v_lshlrev_b32 v7, 3, v2")
    a(f"v_sub_u32 v7, {UP+4088-512*7}, v7")
    a("s_mov_b32 s56, 0x05040100")
    a("s_mov_b32 s58, 0x07060302")
    a("s_mov_b32 s57, s13")
    a("s_waitcnt lgkmcnt(0)")
    if E("PFE", 0):
        for x in pf:
            a(x)
    srd(a, 72, P_U, 2359296)
    if not E("CNG"):
        a.b0(12)
    if E("CDL"):
        a(f"s_sleep {E('CDL')}")
    if E("PFX"):
        a.spin(F_X, 0, 12, op="lg")
    if not E("PFE", 0):
        for k, x in enumerate(pf):
            if k == 2 and E("PF2"):
                a("s_waitcnt vmcnt(0)")
            a(x)
    io_common(a)
    for j in range(4):
        a(f"v_mov_b32 v{24+j}, 0")
    a("v_lshrrev_b32 v28, 2, v2")
    a(f"v_mul_u32_u24 v28, {CS}, v28")
    a(f"v_add_u32 v28, {KC}, v28")
    a("v_and_b32 v29, 3, v2")
    a("v_lshl_add_u32 v30, v29, 4, v28")
    a("ds_write_b128 v30, v[24:27] offset:1072")
    a("v_and_b32 v29, 1, v2")
    a("v_lshl_add_u32 v30, v29, 4, v28")
    a("ds_write_b128 v30, v[24:27]")
    a("v_lshrrev_b32 v28, 5, v2")
    a(f"v_mul_u32_u24 v28, {US}, v28")
    a("v_and_b32 v29, 31, v2")
    a("v_lshl_add_u32 v30, v29, 4, v28")
    a(f"v_add_u32 v30, {UP+4096}, v30")
    a("ds_write_b128 v30, v[24:27]")
    a(f"ds_write_b128 v30, v[24:27] offset:{2*US}")
    a("s_mov_b32 s15, 0")
    if ROT:
        for k in range(4):
            a(f"s_add_u32 s8, s57, {k}")
            a("s_and_b32 s8, s8, 3")
            a(f"s_mul_i32 s{76+k}, s8, 294912")
            a(f"s_add_u32 s{64+k}, s{76+k}, {4*294912}")
            a("s_lshl_b32 s8, s8, 9")
            a(f"v_subrev_u32 v{32+k}, s8, v7")
    a("v_mov_b32 v12, 1")
    a(f"s_waitcnt vmcnt({E('UW', 2 if PF2AT < 0 else 0)})")
    a.stamp(7)
    U = 104

    def issue(i):
        if not NOU:
            so = f"s{(76 if i < 16 else 64) + ((i >> 2) & 3)}" if ROT else "s15"
            a(f"buffer_load_dwordx2 {vr(U+2*i,2)}, v6, s[72:75], {so} offen offset:{1152*(i&3)}")
        if i & 3 == 3:
            a("s_add_u32 s15, s15, 294912")
        if i == PF2AT:
            for x in pf2:
                a(x)
        if i == GAT:
            a(f"ds_write_b32 v1, v12 offset:{F_UI}")
            epi_gl(a)
        if i == BST:
            if GAT != BST:
                a(f"ds_write_b32 v1, v12 offset:{F_BU}")
            if not BLATE and not GORD:
                burst(a)
    a.auto(True)
    nis = 0
    for i in range(32):
        while nis < min(32, i + WIN_U):
            issue(nis); nis += 1
        a(f"@need {vr(U+2*i,2)}")
        if i & 3 == 3:
            while nis < min(32, i + 1 + WIN_U):
                issue(nis); nis += 1
            t, u, o = i >> 2, U + 2 * (i - 3), 16 + 8 * ((i >> 2) & 1)
            for ch in range(4):
                sel = "s58" if ch & 1 else "s56"
                a(f"v_perm_b32 v{o+2*ch}, v{u+4+(ch>>1)}, v{u+6+(ch>>1)}, {sel}")
                a(f"v_perm_b32 v{o+2*ch+1}, v{u+(ch>>1)}, v{u+2+(ch>>1)}, {sel}")
                if ROT:
                    a(f"ds_write_b64 v{32+(t&3)}, {vr(o+2*ch,2)} offset:{ch*US+512*(7-(t&4))}")
                else:
                    a(f"ds_write_b64 v7, {vr(o+2*ch,2)} offset:{ch*US+512*(7-t)}")
        if i == 3:
            a.stamp(8)
        if i & 3 == 3:
            a(f"v_mov_b32 v36, {(i>>2)+1}")
            a(f"ds_write_b32 v1, v36 offset:{F_H}")
        if i & 15 == 15:
            a.stamp(2 - (i >> 4))
    a.auto(False)
    epi_x(a, range(4))
    a.spin(F_X, 0, 10, op="lg")
    epi_unp(a, range(4))
    if GORD:
        a("s_waitcnt vmcnt(0)")
    a("s_branch C_IO3")
    a.lab("C_IO")
    io_common(a)
    a.spin(F_X, 0, 10, op="lg")
    if BST < GAT:
        a.spin(F_BU, 1, 12, prio=E("IOP", 3), sleep=1)
        burst(a)
    a.spin(F_H, 4, 12, prio=E("IOP", 3), sleep=E("OSL2", 2))
    epi_x(a, range(4))
    a("s_waitcnt lgkmcnt(0)")
    epi_unp(a, range(4))
    a.spin(F_UI, 1, 12, prio=E("IOP", 3), sleep=E("OSL2", 1))
    epi_gl(a)
    if BST < GAT:
        a("s_waitcnt vmcnt(0)")
    else:
        if GAT != BST:
            a.spin(F_BU, 1, 12, prio=3, sleep=1)
        if GORD:
            a.signal(F_GI, 12)
            a.spin(F_GI, 3, 12)
        if not BLATE:
            burst(a)
        if GORD:
            a(f"s_waitcnt vmcnt({NBI})")
    a.lab("C_IO3")
    a(f"s_waitcnt vmcnt({NBI if BSN and not BLATE else 0})")
    if BLATE == 1:
        burst(a)
    epi_g(a)
    epi_mul(a, range(4))
    a.stamp(3)
    epi_fin(a, [0, 1], 0)
    epi_fin(a, [2, 3], 1)
    a.spin(F_H, 8, 12)
    epi_x(a, range(4, 8))
    if NF > 4:
        a("s_waitcnt lgkmcnt(0)")
    epi_unp(a, range(4, 8))
    epi_mul(a, range(4, 8))
    a("s_lshl_b32 s8, s12, 8")
    a(f"s_sub_u32 s8, {OM+7936-1024*7}, s8")
    a("v_lshl_add_u32 v14, v2, 2, s8")
    for k in range(8):
        a(f"ds_write_b32 v14, v{GD+2*k} offset:{1024*(7-k)}")
    a.stamp(4)
    epi_fin(a, [4, 5], 2)
    a.stamp(5)
    if E("L2"):
        epi_fin(a, [6, 7], 4)
    else:
        epi_fin(a, [6], 3)
        epi_fin(a, [7], 4)
    a.signal(F_SI, 8)
    a.stamp(6)
    a("s_waitcnt vmcnt(0)")
    a.signal(F_ST, 8)
    a.end()
    a.lab("C_FIN")
    Z = 104
    a("s_setprio 0")
    a("v_and_b32 v8, 7, v2")
    a("v_lshlrev_b32 v8, 3, v8")
    a(f"v_add_u32 v8, {WS_SEL}, v8")
    a("s_mul_i32 s8, s7, 9216")
    a(f"s_add_u32 s8, s8, {WS_MB}")
    a("v_lshl_add_u32 v5, v2, 4, s8")
    a("v_add_u32 v6, 0x1000, v5")
    a("v_add_u32 v7, 0x2000, v5")
    a("v_and_b32 v19, 1, v4")
    a("v_lshrrev_b32 v20, 1, v4")
    a("v_lshl_or_b32 v19, v19, 1, v20")
    a(f"v_mul_u32_u24 v12, {US}, v19")
    a(f"v_add_u32 v12, {UP}, v12")
    a(f"v_mul_u32_u24 v13, {OS}, v19")
    a(f"v_add_u32 v13, {OP}, v13")
    a(f"s_add_u32 s8, s55, {2047*1152}")
    a("v_lshl_add_u32 v14, v19, 1, s8")
    a("s_waitcnt lgkmcnt(0)")
    for j in range(4):
        a(f"v_bfe_u32 v{Z+6+j}, v10, {8*j}, 8")
    MB = 120
    if FT:
        a.spin(F_O + 16, 4, 26, sleep=1, prio=3)
        if FT > 1:
            a(f"s_sleep {FT}")
    else:
        a.spin(F_SI, E("SI", 4), 26, sleep=1, prio=3)
    a.stamp(5)
    a("s_mov_b32 s9, 0")
    a.lab("C_MPOLL")
    a(f"global_load_dwordx2 v[16:17], v8, {sr(P_WS,2)} sc1")
    for i in range(9):
        a(f"global_load_dwordx4 {vr(MB+4*i,4)}, v{5+(i>>2)}, {sr(P_WS,2)} offset:{1024*(i&3)} sc1")
    a("s_waitcnt vmcnt(9)")
    a("v_and_b32 v22, 0x7ff, v16")
    a("v_lshl_add_u32 v23, v22, 1, v12")
    a(f"ds_read_u16 v{Z+1}, v23")
    a("v_lshl_add_u32 v23, v22, 1, v13")
    a(f"ds_read_u16 v{Z+3}, v23")
    a("v_lshlrev_b32 v23, 2, v22")
    a(f"v_add_u32 v23, {OM}, v23")
    if not (FT or E("SI", 4) < 4):
        a("ds_read_b32 v24, v23")
    a("v_and_b32 v20, 0xffff0000, v16")
    a("v_ashrrev_i32 v21, 31, v20")
    a("v_not_b32 v21, v21")
    a("v_or_b32 v21, 0x80000000, v21")
    a("v_and_b32 v21, 0xffff0000, v21")
    a("v_xor_b32 v20, v20, v21")
    sigmoid_f32(a, Z, 20, 21)
    rb(a, Z)
    a(f"v_mul_u32_u24 v{Z+4}, 1152, v22")
    a(f"v_sub_u32 v{Z+4}, v14, v{Z+4}")
    a("s_waitcnt lgkmcnt(0)")
    a(f"v_lshlrev_b32 v{Z+1}, 16, v{Z+1}")
    for i in range(9):
        a(f"s_waitcnt vmcnt({8-i})")
        for j in range(4):
            a(f"v_xor_b32 v{MB+4*i+j}, v{MB+4*i+j}, v{Z+6+j}")
        a(f"v_or3_b32 v26, v{MB+4*i}, v{MB+4*i+1}, {'v26' if i else '0'}")
        a(f"v_or3_b32 v26, v{MB+4*i+2}, v{MB+4*i+3}, v26")
        if i:
            for p in range(2):
                a(f"v_pk_add_f32 {vr(28+2*p,2)}, {vr(28+2*p if i > 1 else MB+2*p,2)}, {vr(MB+4*i+2*p,2)}")
    a("v_and_b32 v26, 0xff, v26")
    a("v_bitop3_b32 v26, v26, v17, v10 bitop3:0xf6")
    a("v_cmp_ne_u32 vcc, 0, v26")
    a("s_add_u32 s9, s9, 1")
    a("s_cmp_eq_u64 vcc, 0")
    a("s_cbranch_scc1 C_MOK")
    a(f"s_cmp_lt_u32 s9, {SPIN}")
    a("s_cbranch_scc1 C_MPOLL")
    a.lab("C_MOK")
    if STAMP:
        a("s_mov_b32 s82, s9")
    a.stamp(8)
    a("v_permlane32_swap_b32 v28, v29")
    a("v_permlane32_swap_b32 v30, v31")
    a("v_add_f32 v28, v28, v29")
    a("v_add_f32 v30, v30, v31")
    a("v_permlane16_swap_b32 v28, v30")
    a("v_add_f32 v28, v28, v30")
    a(f"v_add_f32_dpp v28, v28, v28 row_ror:8 {DPPF}")
    rb(a, 28)
    a(f"v_mul_f32 v28, v28, v{Z}")
    rb(a, 28)
    a(f"v_add_f32 v28, v28, v{Z+1}")
    rb(a, 28)
    a(f"v_or_b32 v28, v28, v{Z+3}")
    if FT or E("SI", 4) < 4:
        a.spin(F_SI, 4, 27)
        a("ds_read_b32 v24, v23")
        a("s_waitcnt lgkmcnt(0)")
    a("v_dot2_f32_bf16 v28, v28, v24, 0")
    a("v_cvt_pk_bf16_f32 v28, v28, v28")
    a.spin(F_ST, 4, 27)
    a("s_mov_b32 exec_lo, 0x00ff00ff")
    a("s_mov_b32 exec_hi, 0x00ff00ff")
    a(f"global_store_short v{Z+4}, v28, {sr(P_OUT,2)}")
    a("s_mov_b64 exec, -1")
    a.end()


def kernel(a):
    a.raw(".p2align 8")
    a.raw(".globl k1_kernel")
    a.raw(".type k1_kernel,@function")
    a.lab("k1_kernel")
    a.stamp(20)
    if STAMP == 3:
        a("s_memrealtime s[80:81]")
    a("v_and_b32 v2, 63, v0")
    a("v_mov_b32 v1, 0")
    a("v_lshlrev_b32 v3, 2, v2")
    a("ds_write_b32 v3, v1")
    a("s_lshr_b32 s5, s2, 3")
    if CODEPF:
        a("v_lshlrev_b32 v8, 7, v0")
        a(f"s_cmp_lg_u32 s5, {NJF}")
        a("s_cbranch_scc1 K_NOCPF")
        a("s_getpc_b64 s[8:9]")
        a("v_min_u32 v8, CODE_END-k1_kernel-64, v8")
        a("global_load_dword v160, v8, s[8:9]")
        a.lab("K_NOCPF")
    a("s_waitcnt lgkmcnt(0)")
    a("s_load_dwordx16 s[16:31], s[0:1], 0")
    a("s_load_dwordx16 s[32:47], s[0:1], 64")
    a("s_load_dwordx4 s[48:51], s[0:1], 128")
    if STAMP in (1, 2):
        for i in range(1, 10):
            a(f"s_mov_b32 s{80+2*i}, 0")
    if PROBE and PROBE != "kernel:20" and not os.environ.get("PW"):
        a("s_mov_b32 s98, 0")
    a.stamp(0)
    a("v_lshrrev_b32 v4, 6, v0")
    if STAMP == 3:
        a("s_barrier")
        a("v_readfirstlane_b32 s3, v4")
    else:
        a("s_cmp_ge_u32 s5, 32")
        a("v_readfirstlane_b32 s3, v4")
        a("s_cbranch_scc1 K_END")
        a("s_barrier")
    a("s_cmp_eq_u32 s3, 8")
    a("s_cbranch_scc1 ROUTER")
    a(f"s_cmp_lt_u32 s5, {NJH}")
    a("s_cbranch_scc1 K_OTHER")
    a("s_cmp_ge_u32 s3, 8")
    a("s_cbranch_scc1 K_CIO")
    kgen_head(a)
    router(a)
    a.raw(".p2align 7")
    a.lab("K_OTHER")
    a("v_and_b32 v3, 15, v2")
    a("v_lshrrev_b32 v4, 4, v2")
    a("s_and_b32 s4, s2, 7")
    a("s_mul_i32 s7, s4, 9")
    a("s_add_u32 s7, s7, s5")
    a("s_mov_b32 s12, s3")
    a("s_cmp_lt_u32 s3, 2")
    a("s_cbranch_scc1 GATE")
    a(f"s_cmp_ge_u32 s5, {NJF}")
    a("s_cbranch_scc1 HELPER")
    a("s_cmp_lt_u32 s3, 8")
    a("s_cbranch_scc1 F_COMP")
    ffn_loader(a)
    a.raw(".p2align 7")
    a.lab("K_CIO")
    a("v_and_b32 v3, 15, v2")
    a("v_lshrrev_b32 v4, 4, v2")
    a("s_and_b32 s4, s2, 7")
    a("s_mul_i32 s7, s4, 18")
    a("s_add_u32 s7, s7, s5")
    a(f"s_sub_u32 s7, s7, {NJH}")
    a("s_sub_u32 s12, s3, 9")
    a("s_cmp_lg_u32 s3, 11")
    a("s_cbranch_scc1 C_CONST")
    uloader(a)
    a.lab("C_CONST")
    a("v_lshl_add_u32 v14, v4, 3, v3")
    a("v_sub_u32 v14, 39, v14")
    a("s_lshl_b32 s8, s12, 11")
    a(f"s_add_u32 s8, s8, {PM}")
    a("v_lshl_add_u32 v15, v2, 4, s8")
    W = [(0x7f, 19), (0x1ff, 20), (0x7, 21), (0x1f, 18), (0x3, 21)]
    for k in range(3):
        a("s_cmp_eq_u32 s12, 0")
        a(f"s_cselect_b32 s8, {W[k][0]}, {W[k+2][0]}")
        a(f"s_cselect_b32 s9, {W[k][1]}, {W[k+2][1]}")
        a("s_movk_i32 s11, 0x3f80")
        if k == 2:
            a("s_cselect_b32 s11, s11, 0xffff")
        a("s_lshl_b32 s13, s11, 16")
        a("v_mov_b32 v10, s8")
        a("v_mov_b32 v11, 0")
        a("v_lshlrev_b64 v[10:11], v14, v[10:11]")
        a("v_alignbit_b32 v10, v11, v10, s9")
        for p in range(4):
            a(f"v_bfe_i32 v11, v10, {2*p}, 1")
            a(f"v_bfe_i32 v12, v10, {2*p+1}, 1")
            a("v_and_b32 v11, s11, v11")
            a(f"v_and_or_b32 v{16+4*k+p}, v12, s13, v11")
        a(f"ds_write_b128 v15, {vr(16+4*k,4)} offset:{1024*k}")
    a.signal(F_PM, 10)
    a("s_branch GATE")
    helper(a)
    gate(a)
    kgen(a)
    select(a)
    ffn_comp(a)
    if STAMP:
        a.lab("STAMP_OUT")
        a("s_memrealtime s[98:99]")
        a("s_waitcnt lgkmcnt(0)")
        a("s_lshl_b32 s8, s2, 4")
        a("s_add_u32 s8, s8, s3")
        a("s_lshl_b32 s8, s8, 6")
        a(f"s_add_u32 s8, s8, {WS_STAMP}")
        a("v_mov_b32 v5, s8")
        for i in ((0, 9) if STAMP == 3 else range(10)):
            a(f"v_mov_b32 v6, s{80+2*i}")
            a(f"global_store_dword v5, v6, {sr(P_WS,2)} offset:{4*i}")
    if PROBE:
        a.lab("PADTAIL")
        a("s_waitcnt vmcnt(0) lgkmcnt(0)")
        if E("PWB"):
            a("s_cmp_lg_u32 s3, 4")
            a("s_cbranch_scc1 PADNW")
            a("s_sleep 60")
            a("buffer_wbl2 sc1")
            a("s_waitcnt vmcnt(0)")
            a.lab("PADNW")
        if os.environ.get("PW"):
            wl, wh, jl, jh = map(int, os.environ["PW"].split(","))
            for r, lo, hi in (("s3", wl, wh), ("s5", jl, jh)):
                a(f"s_cmp_lt_u32 {r}, {lo}")
                a("s_cbranch_scc1 K_END")
                a(f"s_cmp_gt_u32 {r}, {hi}")
                a("s_cbranch_scc1 K_END")
        else:
            a("s_cmp_eq_u32 s98, 0")
            a("s_cbranch_scc1 K_END")
        a("s_setprio 0")
        a.lab("PADL")
        a("s_sleep 3")
        a("s_memrealtime s[96:97]")
        a("s_waitcnt lgkmcnt(0)")
        a("s_sub_u32 s96, s96, s98")
        a("s_cmp_lt_u32 s96, 2000")
        a("s_cbranch_scc1 PADL")
    a.lab("K_END")
    a("s_endpgm")
    a.lab("CODE_END")


def main():
    ref = open(os.path.join(HERE, NAME + ".s.ref")).read().splitlines()
    head = [l for l in ref if l.startswith(";") and "@launch" not in l and "Override" not in l and "grid=ceil" not in l]
    a = G()
    kernel(a)
    out = head + [
        f"; @launch kernel=k1_kernel grid=(256,1,1) block=(768,1,1) lds={LDS}",
        '.amdgcn_target "amdgcn-amd-amdhsa--gfx950"',
        ".text",
    ] + a.finish() + [
        '.section .rodata,"a"',
        ".p2align 6",
        ".amdhsa_kernel k1_kernel",
        "  .amdhsa_next_free_vgpr 168",
        "  .amdhsa_next_free_sgpr 102",
        "  .amdhsa_accum_offset 168",
        "  .amdhsa_group_segment_fixed_size 0",
        "  .amdhsa_kernarg_size 144",
        "  .amdhsa_user_sgpr_count 2",
        "  .amdhsa_user_sgpr_kernarg_segment_ptr 1",
        "  .amdhsa_system_sgpr_workgroup_id_x 1",
        ".end_amdhsa_kernel",
    ]
    path = sys.argv[1] if len(sys.argv) > 1 else os.path.join(HERE, NAME + ".s")
    open(path, "w").write("\n".join(out) + "\n")


if __name__ == "__main__":
    main()
```

```python
import sys, os
from asmlib import *

NAME = "gated_mix__ssm_conv_s4__moe_arch_mod__prompt"
HERE = os.path.dirname(os.path.abspath(__file__))
E = lambda k, d=0: int(os.environ.get(k, d))
STAMP = E("STAMP")
PROBE = os.environ.get("PROBE", "")
CODEPF = E("CODEPF", 1)
SELD = E("SELD", 16)
GORD = E("GORD", 1)
NF = E("NF", 4)
FT = E("FT", 0)
WBM = E("WBM", 0)
RDIR = E("RDIR", 2)
GAT = E("GAT", 31)
BL = E("BL", 72)
NBI = 2 if BL == 72 else 1
BLATE = E("BLATE", 0)
KS = E("KS", 32)
WS_KEY2 = 2 << 20
PF2AT = E("PF2AT", -1)
ROT = 0
C3 = E("C3", 28)
WNT = os.environ.get("WNT", "")
POLLF = os.environ.get("POLLF", "sc1").replace("_", " ")
PUBF = os.environ.get("PUBF", "sc1").replace("_", " ")
PFW = E("PFW", 1)
HPN = E("HPN", 3)
HPS = E("HPS", 53)
HPW = E("HPW", 4)
PSTEP = 5 * HPW // 2
BST = E("BST", 31)
BSN = E("BSN", 5)
WIN_U = E("WIN_U", 6)
WIN_F = E("WIN_F", 10)
HOLD = E("HOLD")
FINE = E("FINE")
NOU = E("NOU")
NOW = E("NOW")

WS_KEY, WS_SEL, WS_BASE, WS_G, WS_MB = 0, 8192, 8448, 16384, 32768
WS_STAMP = 4 << 20
WS_SIZE = 0x10000000

SMALL = E("SMALL")
LDS = 120320 if SMALL else 163840
F_NONCE, F_PAIR, F_ST, F_I, F_K, F_H, F_O = 0, 16, 40, 48, 64, 80, 96
F_L, F_D, F_AC, F_XR, F_HR, F_PI = 16, 40, 48, 84, 88, 92
KT = 256
KTS = 4608
TS = 288
OS = 4160
KC = KT + 8 * KTS
CS = 1216
UP = KC + 16 * CS
US = 4672
OM = UP + 4 * US
OP = OM + 8192
PM = OP + 4 * OS
assert PM + 5120 + 512 <= 147712 and OP % 16 == 0
WA = 256
WB = WA + 73728
XB = 106496 if SMALL else WB + 73728
assert PM + 5632 <= XB
HB = XB + 9216
HS = 144
GW = HB + 9 * HS
assert GW + 2048 <= LDS and GW % 16 == 0
F_X, F_GD, F_RI, F_SI, F_UI, F_BU, F_PM, F_GI = 8, 12, 4, 44, 88, 92, 32, 36

L2E = 0x3fb8aa3b
L2E_LO = 0x32a57060
LN2 = 0x3f317218
INV2PI = 0x3e22f983

P_U, P_ARE, P_AIM, P_BRE, P_BIM, P_CRE, P_CIM, P_LDT = 16, 18, 20, 22, 24, 26, 28, 30
P_DSK, P_BX, P_WR, P_WG, P_WU, P_WD, P_GW, P_OUT = 32, 34, 36, 38, 40, 42, 44, 46
P_DBG, P_WS = 48, 50
NJF, NJH = 9, 14
SPIN = 0x20000

DPPF = "row_mask:0xf bank_mask:0xf"


class G(Asm):
    nlab = 0

    def stamp(s, i):
        if PROBE:
            import inspect
            fn = inspect.stack()[1].function
            if fn == "pre":
                fn = "ffn_loader"
            if f"{fn}:{i}" == PROBE:
                s("s_memrealtime s[98:99]")
        if i >= 20 or STAMP == 3:
            return
        if STAMP == 2:
            import inspect
            fn = inspect.stack()[1].function
            if not (i == 0 or (fn, i) in (("down", 6), ("uloader", 5), ("uloader", 6), ("select", 5), ("gphase", 7))):
                return
        if STAMP and not (FINE and i >= 6):
            s(f"s_memrealtime s[{80+2*i}:{81+2*i}]")

    def fine(s, i):
        if STAMP and FINE:
            s(f"s_memrealtime s[{80+2*i}:{81+2*i}]")

    def b0(s, wait=None):
        if E("OLDB0"):
            s("s_barrier")
        elif wait is not None:
            s.spin(F_RI, 1, wait)

    def end(s):
        s("s_branch STAMP_OUT" if STAMP else "s_branch PADTAIL" if PROBE else "s_endpgm")

    def uid(s, p):
        G.nlab += 1
        return f"{p}_{G.nlab}"

    def spin(s, off, target, tv, sleep=0, op="ge", prio=None):
        l = s.uid("SP")
        if prio is not None:
            s(f"s_setprio {E('SPP', 3) if sleep else 0}")
        s("s_mov_b32 s9, 0")
        s.lab(l)
        s(f"ds_read_b32 v{tv}, v1 offset:{off}") if isinstance(off, int) else s(f"ds_read_b32 v{tv}, {off}")
        s("s_waitcnt lgkmcnt(0)")
        s(f"v_readfirstlane_b32 s8, v{tv}")
        s("s_add_u32 s9, s9, 1")
        s(f"s_cmp_{op}_u32 s8, {target}")
        s(f"s_cbranch_scc1 {l}_D")
        if sleep:
            s(f"s_sleep {sleep * E('SLM', 1)}")
        s(f"s_cmp_lt_u32 s9, {SPIN*4}")
        s(f"s_cbranch_scc1 {l}")
        s.lab(l + "_D")
        if prio is not None:
            s(f"s_setprio {prio}")

    def signal(s, off, tv):
        s(f"v_mov_b32 v{tv}, 1")
        s("s_mov_b64 exec, 1")
        s(f"ds_add_u32 v1, v{tv} offset:{off}") if isinstance(off, int) else s(f"ds_add_u32 {off}, v{tv}")
        s("s_mov_b64 exec, -1")


def srd(a, d, p, size):
    a(f"s_mov_b32 s{d}, s{p}")
    a(f"s_mov_b32 s{d+1}, s{p+1}")
    a(f"s_mov_b32 s{d+2}, {size}")
    a(f"s_mov_b32 s{d+3}, 0x20000")


def wave_max_steps(vv):
    return [f"v_max_u32_dpp v{vv}, v{vv}, v{vv} row_shr:1 {DPPF}",
            f"v_max_u32_dpp v{vv}, v{vv}, v{vv} row_shr:2 {DPPF}",
            f"v_max_u32_dpp v{vv}, v{vv}, v{vv} row_shr:4 {DPPF}",
            f"v_max_u32_dpp v{vv}, v{vv}, v{vv} row_shr:8 {DPPF}",
            f"v_max_u32_dpp v{vv}, v{vv}, v{vv} row_bcast:15 row_mask:0xa bank_mask:0xf",
            f"v_max_u32_dpp v{vv}, v{vv}, v{vv} row_bcast:31 row_mask:0xc bank_mask:0xf"]


def sigmoid_f32(a, dst, src, t):
    a(f"v_mul_f32 v{t}, 0xbfb8aa3b, v{src}")
    a(f"v_exp_f32 v{t}, v{t}")
    a(f"v_add_f32 v{t}, 1.0, v{t}")
    a(f"v_rcp_f32 v{dst}, v{t}")


def rb(a, r):
    a(f"v_cvt_pk_bf16_f32 v{r}, v{r}, v{r}")
    a(f"v_and_b32 v{r}, 0xffff0000, v{r}")


def router(a):
    a.raw(".p2align 7")
    a.lab("ROUTER")
    X, W = 16, 52
    assert RDIR == 2
    a("v_lshrrev_b32 v5, 3, v2")
    a("v_and_b32 v6, 7, v2")
    a("v_lshlrev_b32 v9, 4, v6")
    a("v_lshl_add_u32 v5, s2, 3, v5")
    a("v_mul_u32_u24 v8, 1152, v5")
    a("v_add_u32 v8, v8, v9")
    if E("WPF", 1):
        a("v_min_u32 v10, 8, v2")
        a("v_lshlrev_b32 v10, 7, v10")
    a("s_waitcnt lgkmcnt(0)")
    a.fine(7)
    if E("WPF", 1):
        a(f"global_load_dword v90, v10, {sr(P_WR,2)}")
    for i in range(9):
        a(f"global_load_dwordx4 {vr(X+4*i,4)}, v8, {sr(P_U,2)} offset:{128*i}")
    a(f"s_load_dword s10, {sr(P_WS,2)}, {WS_BASE}")
    a("s_setprio 3")
    for i in range(9):
        a(f"global_load_dwordx4 {vr(W+4*i,4)}, v9, {sr(P_WR,2)} offset:{128*i}")
    a("v_lshlrev_b32 v7, 4, v2")
    a("v_min_u32 v10, 7, v2")
    a(f"s_mov_b32 m0, {GW}")
    a("v_lshlrev_b32 v10, 4, v10")
    a(f"global_load_lds_dwordx4 v7, {sr(P_GW,2)}")
    a(f"global_load_lds_dwordx4 v10, {sr(P_GW,2)} offset:1024")
    a.fine(6)
    a.stamp(21)
    a.b0()
    a("v_mov_b32 v11, 1")
    a(f"ds_write_b32 v1, v11 offset:{F_RI}")
    a("v_and_b32 v3, 15, v2")
    a("v_lshrrev_b32 v4, 4, v2")
    a("s_and_b32 s4, s2, 7")
    a(f"v_add_u32 v7, {XB}, v7")
    if KS == 32:
        a("s_lshl_b32 s8, s2, 5")
        a("v_lshl_add_u32 v15, v4, 3, s8")
    else:
        a(f"s_mul_i32 s8, s2, {KS}")
        a(f"s_add_u32 s8, s8, {WS_KEY2}")
        a("v_lshl_add_u32 v15, v4, 3, s8")
        a("v_lshl_add_u32 v15, v3, 5, v15")
    a("s_mov_b32 s11, 0xffff")
    for j in range(4):
        a(f"v_mov_b32 v{8+j}, 0")
    a("s_waitcnt lgkmcnt(0)")
    a.fine(8)
    a("s_add_u32 s10, s10, 1")
    a("s_addc_u32 s10, s10, 0")
    a("v_mov_b32 v14, s10")
    a("v_mov_b32 v13, s10")
    if RDIR:
        for i in range(9):
            a(f"s_waitcnt vmcnt({8-i+2})")
            for j in range(4):
                a(f"v_dot2c_f32_bf16 v{8+j}, v{X+4*i+j}, v{W+4*i+j}")
        a.stamp(1)
    else:
        a("s_waitcnt vmcnt(9)")
        a.stamp(1)
        if STAMP or PROBE:
            a("s_waitcnt lgkmcnt(0)")
        for i in range(9):
            a(f"ds_read_b128 {vr(X+4*i,4)}, v7 offset:{1024*i}")
        a(f"ds_write_b32 v1, v14 offset:{F_X}")
        for i in range(9):
            a(f"s_waitcnt vmcnt({8-i}) lgkmcnt({9-i})")
            for j in range(4):
                a(f"v_dot2c_f32_bf16 v{8+j}, v{X+4*i+j}, v{W+4*i+j}")
    a("v_add_f32 v8, v8, v9")
    a("v_add_f32 v10, v10, v11")
    a("v_add_f32 v8, v8, v10")
    a(f"v_add_f32_dpp v8, v8, v8 quad_perm:[1,0,3,2] {DPPF}")
    a(f"v_add_f32_dpp v8, v8, v8 quad_perm:[2,3,0,1] {DPPF}")
    a(f"v_add_f32_dpp v8, v8, v8 row_half_mirror {DPPF}")
    a("v_cvt_pk_bf16_f32 v8, v8, v8")
    a("v_ashrrev_i32 v9, 31, v8")
    a("v_or_b32 v9, 0x80008000, v9")
    a("v_xor_b32 v8, v8, v9")
    a(f"v_mov_b32_dpp v9, v8 row_ror:8 {DPPF}")
    km = {32: 0x00010001, 64: 0x00030003, 128: 0x000f000f}[KS]
    a(f"s_mov_b32 exec_lo, {km:#x}")
    a(f"s_mov_b32 exec_hi, {km:#x}")
    a("v_bfi_b32 v12, s11, v8, v9")
    a(f"global_store_dwordx2 v15, v[12:13], {sr(P_WS,2)} {PUBF}")
    a("s_mov_b64 exec, -1")
    a(f"ds_write_b32 v1, v14 offset:{F_NONCE}")
    a.stamp(2)
    if E("RLP", 1):
        a("s_setprio 0")
    if RDIR == 2:
        for i in range(9):
            a(f"ds_write_b128 v7, {vr(X+4*i,4)} offset:{1024*i}")
    if RDIR:
        a("s_waitcnt vmcnt(1)")
        a(f"ds_write_b32 v1, v14 offset:{F_X}")
    a(f"s_cmp_ge_u32 s5, {NJH}")
    a("s_cbranch_scc1 C_IO")
    a(f"s_cmp_lt_u32 s5, {NJF}")
    a("s_cbranch_scc1 SELECT")
    a.end()


def gate(a):
    a.lab("GATE")
    if E("GTP"):
        a(f"s_setprio {E('GTP')}")
    X, W, WL = 16, 34, 44
    a("s_lshl_b32 s8, s12, 9")
    a(f"s_add_u32 s8, s8, {XB}")
    a("v_lshl_add_u32 v5, v2, 2, s8")
    a("v_and_b32 v6, 31, v2")
    a("v_lshlrev_b32 v6, 2, v6")
    a(f"v_add_u32 v6, {GW}, v6")
    a("s_lshl_b32 s8, s2, 1")
    a("s_add_u32 s8, s8, s12")
    a("v_mov_b32 v8, 0")
    a("v_mov_b32 v9, 0")
    a("v_mov_b32 v10, 0x3f803f80")
    a("s_lshl_b32 s8, s8, 5")
    a(f"s_add_u32 s8, s8, {WS_G}")
    a("v_lshrrev_b32 v7, 5, v2")
    a("v_lshl_add_u32 v7, v7, 3, s8")
    a("v_and_b32 v11, 16, v2")
    a("v_add_u32 v7, v7, v11")
    a.b0()
    if E("GATED"):
        a(f"s_sleep {E('GATED')}")
    a.spin(F_X, 0, 13, op="lg", sleep=E("GSL", 1))
    a.auto(True)
    for i in range(5):
        a(f"ds_read2_b32 {vr(W+2*i,2)}, v6 offset0:{64*(i&3)} offset1:{64*(i&3)+32}" if i < 4 else f"ds_read_b32 v{W+8}, v6 offset:1024")
    for i in range(9):
        a(f"ds_read2st64_b32 {vr(X+2*i,2)}, v5 offset0:{4*i} offset1:{4*i+1}")
    for i in range(9):
        a(f"v_and_b32 v{WL+i}, 0xffff, v{W+i}")
        a(f"v_and_b32 v{W+i}, 0xffff0000, v{W+i}")
    for i in range(10):
        t = 56 + 4 * (i & 1)
        u = 56 + 4 * ((i - 1) & 1)
        for j in range(2):
            if i < 9:
                a(f"v_dot2_f32_bf16 v{t+2*j}, v{X+2*i+j}, v{WL+i}, 0")
                a(f"v_dot2_f32_bf16 v{t+2*j+1}, v{X+2*i+j}, v{W+i}, 0")
        if i:
            for j in range(2):
                a(f"v_cvt_pk_bf16_f32 v{u+2*j}, v{u+2*j}, v{u+2*j+1}")
            for j in range(2):
                a(f"v_dot2c_f32_bf16 v{8+j}, v{u+2*j}, v10")
    a.auto(False)
    a.signal(F_GD, 11)
    a("v_permlane16_swap_b32 v8, v9")
    a("v_add_f32 v8, v8, v9")
    for r in (8, 4, 2, 1):
        a(f"v_add_f32_dpp v8, v8, v8 row_ror:{r} {DPPF}")
    rb(a, 8)
    sigmoid_f32(a, 8, 8, 9)
    rb(a, 8)
    a("v_sub_f32 v9, 1.0, v8")
    a("v_cvt_pk_bf16_f32 v12, v8, v9")
    a("s_mov_b32 exec_lo, 0x00010001")
    a("s_mov_b32 exec_hi, 0x00010001")
    a(f"global_store_dwordx2 v7, v[12:13], {sr(P_WS,2)} sc1")
    a("s_mov_b64 exec, -1")
    a.stamp(1)
    a(f"s_cmp_lt_u32 s5, {NJF}")
    a("s_cbranch_scc1 F_COMP2")
    a(f"s_cmp_ge_u32 s5, {NJH}")
    a("s_cbranch_scc1 C_IO")
    a.end()


def stripe_pf(a):
    a("s_and_b32 s8, s13, 15" if PF2AT >= 0 else "s_mov_b32 s8, s13")
    a("s_mul_i32 s8, s8, 73728")
    a("s_lshl_b32 s9, s4, 7")
    a("s_add_u32 s8, s8, s9")
    a("v_mul_u32_u24 v9, 1152, v2")
    a("v_add_u32 v9, s8, v9")
    a("s_add_u32 s8, s13, 18")
    a("s_min_u32 s8, s8, 31")
    a("s_sub_u32 s8, s8, s13")
    a("s_mul_i32 s8, s8, 73728")
    a("v_add_u32 v8, s8, v9" if PF2AT < 0 else f"v_add_u32 v8, {16*73728}, v9")
    return [f"global_load_dword v10, v9, {sr(P_U,2)}", f"global_load_dword v11, v9, {sr(P_U,2)} offset:128",
            f"global_load_dword v10, v8, {sr(P_U,2)}", f"global_load_dword v11, v8, {sr(P_U,2)} offset:128"]


def prefetch(a, n, hold):
    a("v_mul_u32_u24 v5, 57, v2")
    a("v_lshrrev_b32 v5, 9, v5")
    a("v_mul_u32_u24 v6, 9, v5")
    a("v_sub_u32 v6, v2, v6")
    a("s_waitcnt lgkmcnt(0)")
    a("s_cmp_eq_u32 s12, 1")
    a(f"s_cselect_b32 s52, s{P_WU}, s{P_WG}")
    a(f"s_cselect_b32 s53, s{P_WU+1}, s{P_WG+1}")
    a("s_mov_b32 s54, 5308416")
    a("s_mov_b32 s55, 0x20000")
    a("v_mul_u32_u24 v5, 9216, v5")
    a("v_lshl_add_u32 v5, v6, 7, v5")
    a("s_mul_i32 s8, s4, 1152")
    if C3:
        a(f"s_sub_u32 s14, s13, {HPS}")
        a("s_lshr_b32 s9, s52, 7")
        a("s_add_u32 s9, s9, s4")
        a("s_sub_u32 s9, 3, s9")
        a("s_and_b32 s9, s9, 7")
        a("s_lshl_b32 s15, s9, 7")
        a("s_add_u32 s15, s15, s8")
        a(f"s_mul_i32 s14, s14, {9216*C3}")
        a("s_add_u32 s15, s15, s14")
        a(f"s_add_u32 s15, s15, {9216*(7*HPS - C3*PSTEP)}")
        a("s_cmp_eq_u32 s9, 0")
        a("s_cselect_b32 s9, 1024, 0")
        a("v_and_b32 v7, 31, v2")
        a(f"v_min_u32 v7, {C3-1}, v7")
        a("v_mul_u32_u24 v7, 9216, v7")
        a("v_lshrrev_b32 v9, 5, v2")
        a("v_mul_u32_u24 v9, s9, v9")
        a("v_add_u32 v7, v7, v9")
    a("s_mul_i32 s13, s13, 64512")
    a("s_add_u32 s13, s13, s8")
    if not E("HNG"):
        a.b0(13)
    if hold:
        a.spin(F_NONCE, 0, 13, op="lg", sleep=1)
    if C3:
        a("buffer_load_dword v8, v7, s[52:55], s15 offen")
    if E("HDX"):
        a(f"s_sub_u32 s8, s5, {NJF}")
        a("s_lshl_b32 s8, s8, 3")
        a("s_add_u32 s8, s8, s4")
        a("s_lshl_b32 s8, s8, 2")
        a("s_add_u32 s8, s8, s3")
        a("s_sub_u32 s8, s8, 2")
        a("s_lshl_b32 s8, s8, 15")
        a("v_lshl_add_u32 v9, v2, 7, s8")
        for k in range(4):
            a("s_waitcnt vmcnt(0)")
            a(f"global_load_dword v8, v9, {sr(P_WD,2)}")
            a("v_add_u32 v9, 8192, v9")
        n = 0
    for k in range(n):
        if k >= PFW or (C3 and E("C3W", 1)):
            a(f"s_waitcnt vmcnt({PFW-1})")
        a("buffer_load_dword v8, v5, s[52:55], s13 offen")
        a(f"s_add_u32 s13, s13, {64512*PSTEP}")


def bulk_gate(a, tv):
    a.b0(tv)
    if HOLD:
        a.spin(F_NONCE, 0, tv, op="lg", sleep=1)


def select(a):
    a.lab("SELECT")
    a("s_setprio 3")
    SX = 52
    srd(a, SX, P_U, 2359296)
    KD, IX, KY = 16, 48, 80
    M1, M2, T1, T2, VO, VK, CH = 8, 9, 10, 11, 12, 6, 5
    a("v_lshlrev_b32 v7, 4, v2")
    a("v_add_u32 v15, 0x1000, v7")
    if KS != 32:
        a("v_lshrrev_b32 v7, 1, v2")
        a(f"v_mul_u32_u24 v7, {KS}, v7")
        a("v_and_b32 v15, 1, v2")
        a("v_lshl_add_u32 v7, v15, 4, v7")
        for i in range(8):
            a(f"v_add_u32 v{120+i}, {WS_KEY2+32*KS*i}, v7")

    def polls():
        if KS != 32:
            for i in range(8):
                a(f"global_load_dwordx4 {vr(KD+4*i,4)}, v{120+i}, {sr(P_WS,2)} {POLLF}")
            return
        for i in range(8):
            a(f"global_load_dwordx4 {vr(KD+4*i,4)}, v{7 if i < 4 else 15}, {sr(P_WS,2)} offset:{1024*(i&3)} {POLLF}")
    assert WS_KEY == 0
    a("v_lshlrev_b32 v8, 2, v2")
    a("v_sub_u32 v8, 2047, v8")
    for i in range(8):
        for e in range(4):
            a(f"v_subrev_u32 v{IX+4*i+e}, {256*i+e}, v8")
    a("v_lshrrev_b32 v9, 3, v2")
    a("v_and_b32 v9, 6, v9")
    a("v_xor_b32 v9, v9, v2")
    a("v_and_b32 v9, 7, v9")
    a(f"v_lshlrev_b32 v{CH}, 4, v9")
    a(f"v_mov_b32 v{VO}, 0")
    a(f"v_mov_b32 v{VK}, 0")
    a("s_mov_b32 s11, 0xffff0000")
    a("s_mov_b32 s15, 0")
    a.spin(F_GD, 2, 13)
    a("s_mov_b32 s9, 0")
    a("s_waitcnt vmcnt(0)")
    if SELD:
        a(f"s_sleep {SELD}")
    a.stamp(8)
    a.lab("SEL_POLL")
    polls()
    if E("W1", 99) < 99:
        a(f"ds_write_b32 v1, v14 offset:{F_PI}")
    for i in range(8):
        a(f"s_waitcnt vmcnt({7-i})")
        if i == 0:
            a(f"v_xor_b32 v13, v{KD+1}, v14")
        else:
            a(f"v_bitop3_b32 v13, v13, v{KD+4*i+1}, v14 bitop3:0xf6")
        a(f"v_bitop3_b32 v13, v13, v{KD+4*i+3}, v14 bitop3:0xf6")
    a("v_cmp_ne_u32 vcc, 0, v13")
    a("s_add_u32 s9, s9, 1")
    a("s_cmp_eq_u64 vcc, 0")
    a("s_cbranch_scc1 SEL_GOT")
    a(f"s_cmp_lt_u32 s9, {SPIN}")
    a("s_cbranch_scc1 SEL_POLL")
    a.lab("SEL_GOT")
    if STAMP:
        a("s_mov_b32 s94, s9")
    a.stamp(6)
    for i in range(8):
        for h in range(2):
            a(f"v_lshl_or_b32 v{KY+4*i+2*h}, v{KD+4*i+2*h}, 16, v{IX+4*i+2*h}")
            a(f"v_and_or_b32 v{KY+4*i+2*h+1}, v{KD+4*i+2*h}, s11, v{IX+4*i+2*h+1}")
        ks = [KY + 4 * i + e for e in range(4)]
        if i == 0:
            a(f"v_min_u32 v{M2}, v{ks[0]}, v{ks[1]}")
            a(f"v_max_u32 v{M1}, v{ks[0]}, v{ks[1]}")
            ks = ks[2:]
        for k in ks:
            a(f"v_med3_u32 v{M2}, v{M1}, v{M2}, v{k}")
            a(f"v_max_u32 v{M1}, v{M1}, v{k}")
    a.stamp(3)

    def place(r):
        lo, hi = ((0xff << (8 * r)) & 0xffffffff, (0xff << (8 * r)) >> 32)
        return ["s_and_b32 s13, s12, 0x7ff", "s_sub_u32 s13, 2047, s13", "s_mul_i32 s13, s13, 1152",
                [f"s_mov_b32 exec_lo, {lo:#x}", f"s_mov_b32 exec_hi, {hi:#x}",
                 f"v_add_u32 v{VO}, s13, v{CH}", f"v_mov_b32 v{VK}, s12", "s_mov_b64 exec, -1"]]
    for r in range(8):
        if r == 0:
            a(f"v_mov_b32 v{T1}, v{M1}")
            fill = []
        else:
            a(f"v_subrev_u32 v{T1}, s12, v{M1}")
            a(f"v_subrev_u32 v{T2}, s12, v{M2}")
            a(f"v_max_u32 v{T1}, v{T1}, v{T2}")
            p = place(r - 1)
            fill = [p[0:2], [p[2]], p[3]]
        for st in wave_max_steps(T1):
            for x in (fill.pop(0) if fill else []):
                a(x)
            a(st)
        a(f"v_readlane_b32 s8, v{T1}, 63")
        a("s_add_u32 s12, s12, s8" if r else "s_mov_b32 s12, s8")
    p = place(7)
    for x in p[:3] + p[3]:
        a(x)
    a("s_mov_b32 s14, 0")
    a.lab("SEL_GATHER")
    for b in range(9):
        a(f"s_mov_b32 m0, {XB + 896*b}")
        a(f"buffer_load_dwordx4 v{VO}, {sr(SX,4)}, 0 offen offset:{128*b} lds")
    a.signal(F_D, 13)
    a.stamp(4)
    a("s_cmp_lg_u32 s14, 0")
    a("s_cbranch_scc1 SEL_OK")
    TK = KD
    for k in range(32):
        a(f"v_sub_u32 v{TK+k}, v{KY+k}, v{M2}")

    def tree():
        for j in range(10):
            a(f"v_max3_u32 v{TK+3*j}, v{TK+3*j}, v{TK+3*j+1}, v{TK+3*j+2}")
        a(f"v_max3_u32 v{TK}, v{TK}, v{TK+3}, v{TK+6}")
        a(f"v_max3_u32 v{TK+9}, v{TK+9}, v{TK+12}, v{TK+15}")
        a(f"v_max3_u32 v{TK+18}, v{TK+18}, v{TK+21}, v{TK+24}")
        a(f"v_max3_u32 v{TK+27}, v{TK+27}, v{TK+30}, v{TK+31}")
        a(f"v_max3_u32 v{TK}, v{TK}, v{TK+9}, v{TK+18}")
        a(f"v_max_u32 v{TK}, v{TK}, v{TK+27}")
    tree()
    a(f"v_add_u32 v{TK}, v{TK}, v{M2}")
    a(f"v_cmp_lt_u32 vcc, s12, v{TK}")
    if E("FORCESLOW"):
        a("s_mov_b64 vcc, 1")
    a("s_cmp_eq_u64 vcc, 0")
    a("s_cbranch_scc1 SEL_OK")
    a("s_waitcnt vmcnt(0)")
    a("s_mov_b32 s12, 0")
    a("s_mov_b64 s[56:57], 0xff")
    a.lab("SEL_SLOW")
    for k in range(32):
        a(f"v_subrev_u32 v{TK+k}, s12, v{KY+k}")
    tree()
    for st in wave_max_steps(TK):
        a(st)
    a(f"v_readlane_b32 s8, v{TK}, 63")
    a("s_add_u32 s12, s12, s8")
    for x in place(0)[:3]:
        a(x)
    a("s_mov_b64 exec, s[56:57]")
    a(f"v_add_u32 v{VO}, s13, v{CH}")
    a(f"v_mov_b32 v{VK}, s12")
    a("s_mov_b64 exec, -1")
    a("s_lshl_b64 s[56:57], s[56:57], 8")
    a("s_add_u32 s14, s14, 1")
    a("s_cmp_lt_u32 s14, 8")
    a("s_cbranch_scc1 SEL_SLOW")
    a("s_branch SEL_GATHER")
    a.lab("SEL_OK")
    a("s_cmp_lg_u32 s2, 0")
    a("s_cbranch_scc1 SEL_NOPUB")
    a(f"v_mov_b32 v{VK+1}, v14")
    a(f"v_add_u32 v8, {WS_SEL}, v2")
    a("s_mov_b32 exec_lo, 0x01010101")
    a("s_mov_b32 exec_hi, 0x01010101")
    a(f"global_store_dwordx2 v8, {vr(VK,2)}, {sr(P_WS,2)} sc1")
    a("s_mov_b64 exec, 1")
    a(f"global_store_dword v8, v14, {sr(P_WS,2)} offset:{WS_BASE-WS_SEL} sc1")
    a("s_mov_b64 exec, -1")
    a("s_waitcnt vmcnt(2)")
    a("s_branch SEL_END")
    a.lab("SEL_NOPUB")
    a("s_waitcnt vmcnt(0)")
    a.lab("SEL_END")
    a("v_mov_b32 v8, 3")
    a(f"ds_write_b32 v1, v8 offset:{F_XR}")
    a.stamp(5)
    a.end()


def ffn_loader(a):
    a.lab("F_LOAD")
    a("s_setprio 3")
    SG, SU, SD = 52, 56, 60
    a("s_sub_u32 s12, s3, 9")
    a("v_lshrrev_b32 v5, 3, v2")
    a("v_bfe_u32 v6, v2, 4, 1")
    a("v_xor_b32 v6, v6, v2")
    a("v_and_b32 v6, 7, v6")
    a("v_mul_u32_u24 v7, 9216, v5")
    a("v_lshl_add_u32 v8, v6, 4, v7")
    a("v_xor_b32 v9, 32, v8")
    a("v_xor_b32 v10, 64, v8")
    a("v_xor_b32 v11, 96, v8")
    a("s_mul_i32 s13, s12, 294912")
    a("s_lshl_b32 s8, s7, 7")
    a("s_add_u32 s13, s13, s8")
    a("s_lshl_b32 s15, s12, 13")
    a(f"s_add_u32 s15, s15, {WA}")
    for d in (SG, SU):
        a(f"s_mov_b32 s{d+2}, 5308416")
        a(f"s_mov_b32 s{d+3}, 0x20000")
    a("s_waitcnt lgkmcnt(0)")
    a(f"s_mov_b64 {sr(SG,2)}, {sr(P_WG,2)}")
    a(f"s_mov_b64 {sr(SU,2)}, {sr(P_WU,2)}")
    a.stamp(23)
    n = 0
    sig = 0

    def pre():
        nonlocal sig
        if n == E("NG", 2):
            bulk_gate(a, 14)
        if n == E("W1", 99):
            a.spin(F_PI, 1, 14, sleep=1)
        if n == E("W0", 99):
            a.spin(F_NONCE, 0, 14, op="lg", sleep=1)
        if n >= WIN_F:
            a(f"s_waitcnt vmcnt({WIN_F-1})")
        if sig < 6 and n - WIN_F + 1 >= 8 * (sig + 1):
            a.signal(F_L + 4 * sig, 14)
            if sig in (0, 2, 5):
                a.stamp(1 + sig // 2)
            sig += 1
    for c in range(6):
        if c >= 3:
            a.spin(F_AC + 4 * (c - 3), 4, 14)
        for R in range(4):
            for mu in range(2):
                pre()
                a(f"s_add_u32 m0, s15, {(c%3)*24576 + R*2048 + mu*1024}")
                if not NOW:
                    a(f"buffer_load_dwordx4 v{8+2*mu+(R&1)}, {sr(SU if mu else SG,4)}, s13 offen {WNT} lds")
                n += 1
            a(f"s_add_u32 s13, s13, {73728 if R < 3 else 73728*9}")
    a.signal(F_D, 14)
    a.stamp(4)
    while sig < 6:
        a(f"s_waitcnt vmcnt({48 - 8*(sig+1)})")
        a.signal(F_L + 4 * sig, 14)
        sig += 1
    a.stamp(3)
    a("s_cmp_eq_u32 s3, 9")
    a("s_cbranch_scc1 F_COMP2")
    a.end()


def ffn_comp(a):
    a.lab("F_COMP")
    a.b0()
    a.lab("F_COMP2")
    a("s_and_b32 s12, s3, 3")
    a("v_lshrrev_b32 v5, 2, v3")
    a("v_bfe_u32 v7, v3, 3, 1")
    a("v_and_b32 v13, 1, v4")
    a("v_lshl_or_b32 v14, v13, 1, v7")
    a("v_and_b32 v15, 7, v3")
    a(f"v_mul_u32_u24 v16, {HS}, v15")
    a(f"v_add_u32 v16, {HB}, v16")
    a("s_mov_b32 s56, 0xff00ff00")
    a("s_mov_b32 s57, 0xff00ff00")
    a("s_lshr_b32 s8, s3, 2")
    a("s_cmp_lg_u32 s8, 1")
    a("s_cbranch_scc1 F_DOWN")
    WF, AG = 24, 8
    a("v_bfe_u32 v6, v3, 1, 1")
    a("v_lshl_or_b32 v8, v6, 2, v14")
    a("v_xor_b32 v8, s12, v8")
    a("v_lshlrev_b32 v8, 4, v8")
    a("v_lshl_add_u32 v8, v5, 7, v8")
    a("v_lshl_add_u32 v8, v6, 10, v8")
    a("v_lshl_add_u32 v8, v4, 11, v8")
    a("v_and_b32 v9, 1, v3")
    a("v_lshl_add_u32 v8, v9, 3, v8")
    a("v_xor_b32 v9, 64, v8")
    a(f"v_add_u32 v10, {WA+49152}, v8")
    a(f"v_add_u32 v11, {WA+49152}, v9")
    a("v_lshlrev_b32 v6, 2, v13")
    a("v_lshrrev_b32 v5, 1, v4")
    a("v_add_u32 v6, v6, v5")
    a("v_lshl_add_u32 v6, v7, 5, v6")
    a("s_lshl_b32 s8, s12, 3")
    a("v_add_lshl_u32 v6, v6, s8, 1")
    a("v_add_u32 v5, v6, v16")
    a("v_and_b32 v6, 6, v3")
    a("v_xor_b32 v6, v6, v4")
    a("v_lshlrev_b32 v6, 4, v6")
    a("v_lshl_add_u32 v6, v15, 7, v6")
    a(f"v_add_u32 v6, {XB}, v6")
    a("v_xor_b32 v7, 64, v6")
    for c in range(6):
        a.spin(F_L + 4 * c, 3, 12, sleep=E("CSL", 1))
        if c in (2, 5):
            a.stamp(2 + c // 3)
        for s in range(3):
            for t in range(2):
                base, off = (8 + t, WA + (c % 3) * 24576 + s * 8192) if c % 3 < 2 else (10 + t, s * 8192)
                r = WF + 8 * (3 * c + s) + 4 * t
                a(f"ds_read_b64_tr_b16 {vr(r,2)}, v{base} offset:{off}")
                a(f"ds_read_b64_tr_b16 {vr(r+2,2)}, v{base} offset:{off+512}")
        if c < 3:
            a("s_waitcnt lgkmcnt(0)")
            a.signal(F_AC + 4 * c, 12)
    a("s_setprio 3")
    a.spin(F_XR, 1, 12)
    a.stamp(4)
    a.auto(True)
    xs = lambda s: 16 + 4 * s
    def xrd(s):
        a(f"ds_read_b128 {vr(xs(s),4)}, v{7 if s&1 else 6} offset:{1024*(s>>1)}")
    xrd(0); xrd(1)
    nx = 2
    for s in range(18):
        for t in range(2):
            a(f"v_mfma_f32_16x16x32_bf16 {vr(AG+4*t,4)}, {vr(WF+8*s+4*t,4)}, {vr(xs(s),4)}, {vr(AG+4*t,4) if s else 0}")
            if nx < 18 and xs(nx) + 4 <= WF + 8 * s + 4 * t + 4:
                xrd(nx); nx += 1
    a.auto(False)
    a.stamp(8)
    for r in range(4):
        a(f"v_cndmask_b32 v{AG+r}, v{AG+r}, v{AG+4+r}, s[56:57]")
    a(f"v_permlane32_swap_b32 v{AG}, v{AG+1}")
    a(f"v_permlane32_swap_b32 v{AG+2}, v{AG+3}")
    for op in ("v_cvt_pk_bf16_f32 v{u}, v{g}, v{u}", "v_lshlrev_b32 v{g}, 16, v{u}", "v_mul_f32 v{t}, 0xbfb8aa3b, v{g}", "v_exp_f32 v{t}, v{t}",
               "v_and_b32 v{u}, 0xffff0000, v{u}", "v_add_f32 v{t}, 1.0, v{t}", "v_rcp_f32 v{t}, v{t}", "v_mul_f32 v{g}, v{g}, v{t}",
               "v_cvt_pk_bf16_f32 v{g}, v{g}, v{g}", "v_and_b32 v{g}, 0xffff0000, v{g}", "v_mul_f32 v{g}, v{g}, v{u}"):
        for p in range(2):
            a(op.format(g=AG + 2 * p, u=AG + 2 * p + 1, t=AG + 4 + p))
    a(f"v_cvt_pk_bf16_f32 v{AG}, v{AG}, v{AG+2}")
    a(f"ds_write_b16 v5, v{AG}")
    a(f"ds_write_b16_d16_hi v5, v{AG} offset:4")
    a.signal(F_HR, 12)
    a.stamp(5)
    a.end()
    a.lab("F_DOWN")
    RW, DF, AC, HF = 24, 56, 120, 152
    a("v_lshl_add_u32 v10, v4, 4, v16")
    a(f"v_mov_b32 v18, {HB+8*HS}")
    a("v_cndmask_b32 v19, v18, v10, s[56:57]")
    a("v_cndmask_b32 v18, v10, v18, s[56:57]")
    a("v_and_b32 v20, 31, v2")
    a("v_lshlrev_b32 v20, 2, v20")
    a(f"v_add_u32 v20, {HB+8*HS}, v20")
    a("ds_write_b32 v20, v1")
    a("v_mul_u32_u24 v8, 9216, v4")
    a("s_mul_i32 s13, s7, 73728")
    for j in range(4):
        a(f"s_mov_b32 s{60+j}, {0x07060500+j:#x}")
    a("s_mov_b32 s64, 0x05040100")
    a("s_mov_b32 s65, 0x07060302")
    a("s_lshl_b32 s14, s7, 7")
    a(f"s_add_u32 s14, s14, {WS_MB}")
    a("v_lshl_add_u32 v11, v15, 4, s14")
    a("s_waitcnt lgkmcnt(0)")
    srd(a, 52, P_WS, WS_SIZE)
    srd(a, 68, P_WD, 5308416)
    a("s_cmp_eq_u32 s3, 9")
    a("s_cbranch_scc1 F_DN2")

    def down(nd):
        nf = 2 * nd
        raw = lambda q, e: (RW if q == 0 else 88) + nd * e
        frg = lambda q, j: (DF if q == 0 else RW) + 4 * j
        for q in range(2):
            for e in range(8):
                if nd == 4 and E("DE", 4) and 8 * q + e == E("DE", 4):
                    a.spin(F_D, 4, 12, sleep=1)
                if not NOW and not E("NOD"):
                    a(f"buffer_load_dword{'x4' if nd == 4 else 'x2'} {vr(raw(q,e),nd)}, v8, s[68:71], s13 offen offset:{1152*(e&3)}")
                if e & 3 == 3:
                    a(f"s_add_u32 s13, s13, {4608 if e == 3 else 36864-4608}")
        def perms(q, p):
            a(f"s_waitcnt vmcnt({14 - 8*q - 2*p})")
            for j in range(nf):
                a(f"v_perm_b32 v{frg(q,j)+p}, v{raw(q,2*p+1)+(j>>1)}, v{raw(q,2*p)+(j>>1)}, s{64+(j&1)}")

        def mms(q):
            for j in range(nf):
                if nd == 4:
                    c = vr(AC + 4 * (j & 3), 4)
                    a(f"v_mfma_f32_16x16x32_bf16 {c}, {vr(frg(q,j),4)}, {vr(HF+8*(j>>2)+4*q,4)}, {c if q or j > 3 else 0}")
                else:
                    a(f"v_mfma_f32_16x16x32_bf16 {vr(AC+4*j,4)}, {vr(frg(q,j),4)}, {vr(HF+4*q,4)}, {vr(AC+4*j,4) if q else 0}")
        for q, p in [(0, 0), (0, 1), (0, 2), (0, 3), (1, 0), (1, 1)]:
            perms(q, p)
        a.spin(F_HR, 4, 12)
        a.stamp(5)
        for q in range(2):
            if nd == 4:
                a(f"ds_read_b128 {vr(HF+4*q,4)}, v18 offset:{64*q}")
                a(f"ds_read_b128 {vr(HF+8+4*q,4)}, v19 offset:{64*q}")
            else:
                a(f"ds_read_b128 {vr(HF+4*q,4)}, v10 offset:{64*q}")
        a(f"s_waitcnt lgkmcnt({nd//2})")
        mms(0)
        a("s_waitcnt lgkmcnt(0)")
        perms(1, 2)
        perms(1, 3)
        a.stamp(4)
        mms(1)
        O = 88
        for r in range(nd):
            for j in range(4):
                if nd == 4:
                    a(f"v_perm_b32 v{O+4*r+j}, v{AC+4*j+r}, v17, s{60+j}")
                else:
                    a(f"v_cndmask_b32 v{O+4*r+j}, v{AC+4*j+2*r}, v{AC+4*j+2*r+1}, s[56:57]")
            if nd == 2:
                for j in range(4):
                    a(f"v_perm_b32 v{O+4*r+j}, v{O+4*r+j}, v17, s{60+j}")
            a(f"s_mov_b32 s12, {18432*r}")
            a(f"buffer_store_dwordx4 {vr(O+4*r,4)}, v11, s[52:55], s12 offen sc1")
        a.stamp(6)
        a.end()
    a("v_lshl_add_u32 v8, v3, 4, v8")
    a("s_lshl_b32 s8, s3, 8")
    a("s_add_u32 s13, s13, s8")
    a("s_lshl_b32 s8, s3, 5")
    a("v_lshl_add_u32 v6, v4, 3, v7")
    a("v_add_u32 v6, s8, v6")
    a("v_mul_u32_u24 v6, 9216, v6")
    a("v_add_u32 v11, v6, v11")
    a.spin(F_X, 0, 17, op="lg", sleep=2)
    a.spin(F_D, 3 if E("DE", 4) else 4, 12, sleep=1)
    a("s_setprio 2")
    down(4)
    a.lab("F_DN2")
    a("v_lshl_add_u32 v8, v3, 3, v8")
    a("s_add_u32 s13, s13, 1024")
    a("v_lshl_add_u32 v6, v4, 2, v7")
    a("v_add_u32 v6, 128, v6")
    a("v_mul_u32_u24 v6, 9216, v6")
    a("v_add_u32 v11, v6, v11")
    a.spin(F_X, 0, 17, op="lg")
    down(2)


def helper(a):
    a.lab("HELPER")
    if not HPN:
        a.end()
        return
    if E("TOUCH", 0):
        a(f"s_cmp_lg_u32 s3, {2+HPW}")
        a("s_cbranch_scc1 H_NT")
        a("v_lshlrev_b32 v5, 19, v3")
        a("v_min_u32 v6, 5308412, v5")
        a("v_min_u32 v5, 2359292, v5")
        a("s_waitcnt lgkmcnt(0)")
        a.b0(13)
        a(f"global_load_dword v8, v6, {sr(P_WD,2)}")
        a(f"global_load_dword v9, v5, {sr(P_OUT,2)}")
        a.lab("H_NT")
    a(f"s_cmp_ge_u32 s3, {2+HPW}")
    a("s_cbranch_scc1 K_END")
    a("s_and_b32 s12, s3, 1")
    a("s_sub_u32 s13, s3, 2")
    a("s_lshr_b32 s13, s13, 1")
    a("s_mul_i32 s13, s13, 5")
    a("s_add_u32 s13, s13, s5")
    a(f"s_add_u32 s13, s13, {(HPS-NJF) & 0xffffffff}")
    prefetch(a, HPN, E("HH", 0))
    if STAMP:
        a("s_waitcnt vmcnt(0)")
        a.stamp(1)
    a.end()


DSK, EXPN = 166, 167
PA, PB, A16, PC, PD, A32, E2, EF = 104, 108, 112, 116, 120, 124, 128, 152


def cmul(a, d, x, y):
    a(f"v_pk_mul_f32 {vr(d,2)}, {vr(x,2)}, {vr(y,2)} op_sel:[0,0] op_sel_hi:[0,1]")
    a(f"v_pk_fma_f32 {vr(d,2)}, {vr(x,2)}, {vr(y,2)}, {vr(d,2)} op_sel:[1,1,0] op_sel_hi:[1,0,1] neg_lo:[0,1,0]")


def kgen_head(a):
    a.lab("C_KGEN")
    a.fine(6)
    PR = 16
    a("s_and_b32 s4, s2, 7")
    a("s_mul_i32 s7, s4, 18")
    a("s_add_u32 s7, s7, s5")
    a(f"s_sub_u32 s7, s7, {NJH}")
    a("s_and_b32 s12, s3, 3")
    a("s_lshr_b32 s13, s3, 2")
    a("s_lshl2_add_u32 s8, s7, s12")
    a("s_lshl1_add_u32 s8, s8, s13")
    a("s_lshl_b32 s8, s8, 7")
    a("v_lshl_add_u32 v5, v2, 1, s8")
    for k in range(3):
        a(f"v_mov_b64 {vr(PR+2*k,2)}, 0")
    a("s_lshl_b32 s55, s7, 3")
    a("s_waitcnt lgkmcnt(0)")
    a.fine(7)
    a(f"s_load_dwordx2 s[58:59], {sr(P_LDT,2)}, s55")
    for k, p in enumerate([P_ARE, P_AIM, P_BRE, P_BIM, P_CRE, P_CIM]):
        a(f"global_load_short_d16_hi v{PR+k}, v5, {sr(p,2)}")
    a.stamp(22)
    a.b0()
    a("s_branch C_KBODY")


def kgen(a):
    a.lab("C_KBODY")
    PR = 16
    a(f"s_load_dwordx2 s[68:69], {sr(P_DSK,2)}, s55")
    a("s_setprio 2")
    a("v_and_b32 v3, 15, v2")
    a("v_lshrrev_b32 v4, 4, v2")
    a("s_and_b32 s4, s2, 7")
    a(f"s_mul_i32 s15, s3, {KTS}")
    a(f"s_add_u32 s15, s15, {KT}")
    a(f"s_mul_i32 s52, s12, {4*CS}")
    a(f"s_add_u32 s52, s52, {KC}")
    a(f"s_mul_i32 s53, s12, {US}")
    a(f"s_add_u32 s53, s53, {UP}")
    a(f"v_mul_u32_u24 v7, {TS}, v3")
    a("v_lshl_add_u32 v7, v4, 4, v7")
    a("v_add_u32 v7, s15, v7")
    a("s_mov_b32 m0, s15")
    a.lab("C_SETD")
    a.fine(8)
    a("s_waitcnt lgkmcnt(0)")
    a.auto(True)
    a("s_lshl_b32 s8, s12, 4")
    a("s_lshr_b64 s[58:59], s[58:59], s8")
    a("s_lshl_b32 s8, s58, 16")
    a("v_mov_b32 v44, s8")
    a(f"v_mul_f32 v45, {L2E:#x}, v44")
    a(f"v_mov_b32 v46, {L2E:#x}")
    a("v_fma_f32 v46, v44, v46, -v45")
    a(f"v_mov_b32 v47, {L2E_LO:#x}")
    a("v_fma_f32 v46, v44, v47, v46")
    a("v_exp_f32 v45, v45")
    a(f"v_mul_f32 v46, {LN2:#x}, v46")
    a("v_fma_f32 v45, v45, v46, v45")
    a("v_cvt_pk_bf16_f32 v45, v45, v45")
    DT, DTL, DTR = 36, 37, 38
    a(f"v_and_b32 v{DT}, 0xffff0000, v45")
    a(f"v_mul_f32 v{DTL}, {L2E:#x}, v{DT}")
    a(f"v_mul_f32 v{DTR}, {INV2PI:#x}, v{DT}")
    a("s_waitcnt vmcnt(0)")
    a.stamp(1)
    if STAMP and E("CLK2"):
        a("s_memtime s[90:91]")
    ZR, ZI, WR = 40, 41, 42
    a(f"v_mul_f32 v{ZR}, v{PR}, v{DTL}")
    a(f"v_mul_f32 v{ZI}, v{PR+1}, v{DTR}")
    T0 = 24

    def direct(dst, c):
        if c != 1:
            a(f"v_mul_f32 v{dst}, {fbits(c):#x}, v{ZR}")
            a(f"v_mul_f32 v{dst+1}, {fbits(c):#x}, v{ZI}")
        a(f"v_exp_f32 v{T0}, v{dst if c != 1 else ZR}")
        a(f"v_fract_f32 v{dst+1}, v{dst+1 if c != 1 else ZI}")
        a(f"v_cos_f32 v{dst}, v{dst+1}")
        a(f"v_sin_f32 v{dst+1}, v{dst+1}")
        a(f"v_mul_f32 v{dst}, v{T0}, v{dst}")
        a(f"v_mul_f32 v{dst+1}, v{T0}, v{dst+1}")
    PW, R1 = 46, 44
    pc = lambda c: PW + 2 * (c - 1)
    direct(pc(1), 1)
    a(f"v_mul_f32 v{PR+2}, v{PR+2}, v{DT}")
    a(f"v_mul_f32 v{PR+3}, v{PR+3}, v{DT}")
    cmul(a, WR, PR + 4, PR + 2)
    a(f"v_max_f32 v39, |v{WR}|, |v{WR+1}|")
    side = wave_max_steps(39) + ["v_readlane_b32 s8, v39, 63"]
    OT = [26, 27, 28, 29]
    cnt = [0]

    pend = []

    def flush():
        while pend:
            a(pend.pop(0))

    def emit(row, x):
        o = OT[cnt[0] % 4]
        cnt[0] += 1
        flush()
        a(f"v_cvt_pk_f16_f32 v{o}, v{x}, v{x+1}")
        pend.append(f"ds_write_addtid_b32 v{o} offset:{row*TS}")
    cmul(a, pc(2), pc(1), pc(1))
    cmul(a, pc(4), pc(2), pc(2))
    Q1, QA, QB = 60, 62, 64
    cmul(a, Q1, pc(4), pc(4))
    a(f"v_mov_b32 v30, 0x3c00")
    a(f"v_xor_b32 v{Q1+1}, 0x80000000, v{Q1+1}")
    a("ds_write_addtid_b32 v30")
    emit(1, Q1)
    cur, nxt = Q1, QA
    for b in range(2, 16):
        cmul(a, nxt, cur, Q1)
        if side:
            a(side.pop(0))
        emit(b, nxt)
        cur, nxt = nxt, (QB if nxt == QA else QA)
    a("s_lshr_b32 s8, s8, 23")
    a("s_sub_u32 s8, 258, s8")
    a("s_min_u32 s54, s8, 253")
    a("s_lshl_b32 s8, s54, 23")
    a(f"v_mul_f32 v{WR}, s8, v{WR}")
    a(f"v_mul_f32 v{WR+1}, s8, v{WR+1}")
    QF, PF, KA = 72, 88, 104
    flush()
    for ks in range(4):
        a(f"ds_read_b128 {vr(QF+4*ks,4)}, v7 offset:{64*ks}")
    direct(R1, 128)
    cmul(a, pc(3), pc(2), pc(1)); cmul(a, pc(5), pc(4), pc(1)); cmul(a, pc(6), pc(3), pc(3)); cmul(a, pc(7), pc(6), pc(1))
    CH = [66, 68]
    YC = [60, 62]
    state = {"cur": WR, "k": 0, "y": 0}

    def adv():
        n = CH[state["k"] & 1]
        cmul(a, n, state["cur"], R1)
        state["cur"] = n; state["k"] += 1

    def row(r, c):
        if c == 0:
            emit(r, state["cur"])
        else:
            y = YC[state["y"] & 1]; state["y"] += 1
            cmul(a, y, state["cur"], pc(c))
            emit(r, y)

    def rd():
        flush()
        for ks in range(4):
            a(f"ds_read_b128 {vr(PF+4*ks,4)}, v7 offset:{64*ks}")

    def mm(t, ks):
        a(f"v_mfma_f32_16x16x32_f16 {vr(KA+4*t,4)}, {vr(PF+4*ks,4)}, {vr(QF+4*ks,4)}, {vr(KA+4*t,4) if ks else 0}")
    for h in range(2):
        for c in range(8):
            row(8 * h + c, c)
        adv()
    rd()
    for h in range(2):
        for c in range(4):
            row(4 * h + c, 2 * c)
            if h == 1:
                mm(0, c)
        adv()
    for q in range(4):
        row(8 + 2 * q, 0); row(9 + 2 * q, 4)
        adv()
    rd()
    for q in range(9):
        row(q, 0)
        if q < 8:
            adv()
        if 4 <= q < 8:
            mm(1, q - 4)
    rd()
    a("v_lshl_add_u32 v8, v2, 4, s15")
    for ks in range(4):
        mm(2, ks)
    a.auto(False)
    a.stamp(2)
    if STAMP and E("CLK2"):
        a("s_memtime s[96:97]")
    a("s_lshl_b32 s8, s12, 2")
    a(f"s_add_u32 s8, s8, {F_PAIR}")
    a("v_mov_b32 v9, s8")
    a("s_cmp_eq_u32 s13, 0")
    a("s_cbranch_scc1 C_KA")
    for t in range(3):
        a(f"ds_write_b128 v8, {vr(KA+4*t,4)} offset:{1024*t}")
    a("v_mov_b32 v10, s54")
    a("ds_write_b32 v9, v10")
    a.stamp(3)
    a("s_setprio 0")
    a("v_and_b32 v14, 3, v3")
    a("v_sub_u32 v14, 3, v14")
    a(f"v_mul_u32_u24 v14, {CS}, v14")
    a("v_lshrrev_b32 v13, 2, v3")
    a("v_lshl_add_u32 v13, v4, 1, v13")
    a("v_lshl_add_u32 v14, v13, 3, v14")
    a("v_add3_u32 v5, v14, s52, 8")
    a("v_lshlrev_b32 v14, 1, v3")
    a("v_sub_u32 v14, v4, v14")
    a("v_lshlrev_b32 v14, 4, v14")
    a(f"s_add_u32 s8, s53, {4064-512*7}")
    a("v_add_u32 v6, s8, v14")
    a("v_lshl_add_u32 v14, v3, 2, v4")
    a(f"s_mul_i32 s8, s12, {OS}")
    a(f"s_add_u32 s8, s8, {OP+4088-512*7}")
    a("v_lshlrev_b32 v14, 3, v14")
    a("v_sub_u32 v7, s8, v14")
    a.spin(F_H, 1, 10, prio=E("BSP", 3), sleep=1)
    a.spin(f"v9 offset:{F_K-F_PAIR}", 0, 10, op="lg", sleep=E("BSS", 0))
    a.stamp(4)
    gphase(a, 0)
    a.lab("C_KA")
    a("s_setprio 1")
    a("v_and_b32 v14, 3, v3")
    a("v_sub_u32 v14, 3, v14")
    a(f"v_mul_u32_u24 v14, {CS}, v14")
    a("v_lshrrev_b32 v13, 2, v3")
    a("v_lshl_add_u32 v13, v4, 1, v13")
    a("v_lshl_add_u32 v14, v13, 3, v14")
    a("v_add3_u32 v5, v14, s52, 8")
    a("v_lshlrev_b32 v14, 1, v3")
    a("v_sub_u32 v14, v4, v14")
    a("v_lshlrev_b32 v14, 4, v14")
    a(f"s_add_u32 s8, s53, {4064-512*7}")
    a("v_add_u32 v6, s8, v14")
    a("v_lshl_add_u32 v14, v3, 2, v4")
    a(f"s_mul_i32 s8, s12, {OS}")
    a(f"s_add_u32 s8, s8, {OP+4088-512*7}")
    a("v_lshlrev_b32 v14, 3, v14")
    a("v_sub_u32 v7, s8, v14")
    a("v_lshrrev_b32 v11, 1, v4")
    a("v_and_b32 v12, 1, v4")
    a("v_lshlrev_b32 v11, 8, v11")
    a("v_lshl_add_u32 v11, v12, 3, v11")
    a("v_lshl_add_u32 v11, v3, 4, v11")
    a("v_add_u32 v11, s15, v11")
    a("v_cmp_gt_u32 vcc, 2, v4")
    a("v_lshlrev_b32 v12, 2, v3")
    a("v_lshlrev_b32 v13, 3, v3")
    a("v_cndmask_b32 v12, v12, v13, vcc")
    a("v_lshl_add_u32 v12, v4, 7, v12")
    a("v_add_u32 v12, s15, v12")
    a("v_mov_b32 v13, 64")
    a("v_cndmask_b32 v13, v13, 4, vcc")
    a("v_add_u32 v13, v13, v12")
    a("v_lshlrev_b32 v14, 1, v3")
    a("v_lshl_add_u32 v14, v4, 7, v14")
    a("v_add_u32 v14, s15, v14")
    a("v_lshlrev_b32 v15, 4, v2")
    a("v_lshlrev_b32 v16, 3, v2")
    a("v_add_u32 v16, 256, v16")
    a("v_min_u32 v15, v15, v16")
    a("v_add_u32 v15, s15, v15")
    EB, E2B = 2048, 3072
    a("v_min_u32 v16, 15, v2")
    a("v_lshl_add_u32 v16, v16, 2, s15")
    a("v_lshrrev_b32 v26, 5, v2")
    a("v_lshlrev_b32 v26, 8, v26")
    a("v_lshl_add_u32 v26, v2, 2, v26")
    a("v_add_u32 v26, s15, v26")
    a("v_lshlrev_b32 v17, 2, v4")
    a("v_sub_u32 v17, v3, v17")
    a("v_lshl_add_u32 v27, v17, 3, s15")
    a(f"v_add_u32 v27, {E2B+104}, v27")
    a("v_lshl_add_u32 v17, v17, 2, s15")
    a(f"v_add_u32 v17, {EB+52}, v17")
    a("v_lshl_add_u32 v19, v2, 4, s52")
    a("s_mov_b32 s56, 0x01000100")
    a("s_mov_b32 s57, 0x03020302")
    a("s_lshl_b32 s8, s12, 4")
    a("s_lshr_b64 s[68:69], s[68:69], s8")
    a("s_lshl_b32 s68, s68, 16")
    a("s_sub_u32 s58, 254, s54")
    a("s_lshl_b32 s58, s58, 23")
    for r in range(12):
        a(f"v_mul_f32 v{KA+r}, s58, v{KA+r}")
    a("s_mov_b64 exec, 1")
    a(f"v_add_f32 v{KA}, s68, v{KA}")
    a("s_mov_b64 exec, -1")
    for r in (3, 7, 10, 11, 14, 15):
        a(f"v_mov_b32 v{72+r}, 0")
    a("v_lshlrev_b32 v28, 4, v2")
    a(f"v_add_u32 v28, {PM}, v28")
    a.spin(F_PM, 2, 18)
    for k, r in ((2, PC), (3, PD), (4, A32)):
        a(f"ds_read_b128 {vr(r,4)}, v28 offset:{1024*k}")
    a.spin("v9", 0, 18, prio=2, op="lg")
    a("s_sub_u32 s60, 254, s8")
    a("s_lshl_b32 s60, s60, 23")
    a.auto(True)
    for t in range(3):
        a(f"ds_read_b128 {vr(PF+4*t,4)}, v8 offset:{4*KTS+1024*t}")
    for t in range(3):
        for p in range(2):
            r = 4 * t + 2 * p
            a(f"v_pk_fma_f32 {vr(KA+r,2)}, {vr(PF+r,2)}, s[60:61], {vr(KA+r,2)} op_sel_hi:[1,0,1]")
            a(f"v_cvt_pk_bf16_f32 v{20+2*t+p}, v{KA+r}, v{KA+r+1}")
        if t == 0:
            a("ds_write_b64 v11, v[20:21]")
        elif t == 1:
            a("ds_write_b32 v12, v22 offset:512")
            a("ds_write_b32 v13, v23 offset:512")
            S = 32
            for p in range(2):
                a(f"ds_read_b64 {vr(S+2*p,2)}, v15 offset:{8*p}")
    a("s_mov_b32 exec_lo, 0")
    a(f"v_alignbit_b32 v{S+3}, v{S+2}, v{S+1}, 16")
    a(f"v_perm_b32 v{S+2}, v{S+1}, v{S+1}, s56")
    a(f"v_alignbit_b32 v{S+1}, v{S+1}, v{S}, 16")
    a(f"v_perm_b32 v{S}, v{S}, v{S}, s56")
    a("s_mov_b32 exec_lo, -1")
    a(f"ds_write_b128 v19, {vr(S,4)} offset:32")
    a(f"v_mov_b32_dpp v{S-2}, v{S+2} wave_shr:1 {DPPF} bound_ctrl:0")
    a(f"v_mov_b32_dpp v{S-1}, v{S+3} wave_shr:1 {DPPF} bound_ctrl:0")
    C1, C2, C3 = 44, 52, 60
    for p in range(4):
        a(f"v_alignbit_b32 v{C1+p}, v{S+p}, v{S+p-1}, 16")
    a(f"ds_write_b128 v19, {vr(C1,4)} offset:{CS+32}")
    for p in range(4):
        a(f"v_mov_b32 v{C2+p}, v{S+p-1}")
    a(f"ds_write_b128 v19, {vr(C2,4)} offset:{2*CS+32}")
    for p in range(4):
        a(f"v_alignbit_b32 v{C3+p}, v{S+p-1}, v{S+p-2}, 16")
    a(f"ds_write_b128 v19, {vr(C3,4)} offset:{3*CS+32}")
    a("v_mov_b32 v10, 1")
    a(f"ds_write_b32 v9, v10 offset:{F_K-F_PAIR}")
    a.stamp(3)
    a(f"s_setprio {E('GPL', 3)}")
    TL = 72
    a(f"v_perm_b32 v{TL+1}, v{S+3}, v{S+3}, s57")
    a(f"v_alignbit_b32 v{TL}, v{S+3}, v{S+2}, 16")
    a(f"v_lshrrev_b32 v{TL+6}, 16, v{S+3}")
    a(f"v_mov_b32 v{TL+4}, v{S+3}")
    for r in (2, 5, 8, 9, 12):
        a(f"v_mov_b32 v{TL+r}, v{TL+1}")
    a(f"v_mov_b32 v{TL+13}, v{TL+6}")
    a("s_mov_b32 exec_lo, 0")
    for r in range(4):
        a(f"ds_write_b16{'_d16_hi' if r&1 else ''} v{12+(r>>1)}, v{22+(r>>1)} offset:{E2B-130+2*(r&1)}")
    a("s_mov_b32 exec_hi, 0x80000000")
    for j in range(4):
        a(f"ds_write_b128 v19, {vr(TL+4*(3-j),4)} offset:{j*CS+48}")
    a("s_mov_b64 exec, 1")
    a(f"ds_write_b16 v14, v24 offset:{E2B+382}")
    a("s_mov_b64 exec, -1")
    a(f"ds_write_b32 v26, v1 offset:{E2B}")
    for r in range(4):
        a(f"ds_write_b16{'_d16_hi' if r&1 else ''} v14, v{24+(r>>1)} offset:{EB+62+32*r}")
    a(f"ds_write_b32 v16, v1 offset:{EB}")
    a("v_readlane_b32 s59, v24, 0")
    a("v_mov_b32 v11, v27")
    a("v_mov_b32 v12, v17")
    a("v_mov_b32 v13, v28")
    a("s_pack_ll_b32_b16 s59, s59, s59")
    a.auto(False)
    a.spin(F_H, 2, 10, sleep=1)
    a.stamp(4)
    gphase(a, 1)


def gphase(a, isA):
    M = "v_mfma_f32_16x16x32_bf16"
    rdA = lambda m, d: [f"ds_read_b64 {vr(d,2)}, v5 offset:{64*m}", f"ds_read_b64 {vr(d+2,2)}, v5 offset:{64*m+8}"]
    rdB = lambda b, rho, d, extra=0: f"ds_read_b128 {vr(d,4)}, v6 offset:{512*(7-b)+64*rho+extra}"
    slot = lambda t: 1024 * (t - 2) if t < 6 else 4 * KTS + 1024 * (t - 6)

    def emit(main, fill=[], per=2, skip=0):
        for x in interleave(main, fill, per=per, skip=skip):
            a(x)
    if isA:
        a(f"s_setprio {E('GPA', 1)}")
        AC = 16
        acc = lambda t: vr(AC + 4 * (t - 2), 4)
        started = set()

        def mf(t, A, B):
            c = acc(t) if t in started else "0"
            started.add(t)
            return f"{M} {acc(t)}, {vr(A,4)}, {vr(B,4)}, {c}"
        U = lambda b: 40 + 8 * (b & 1)
        Z = lambda b: 56 + 24 * (b & 1)
        urd = lambda b: [rdB(b, 0, U(b)), rdB(b, 0, U(b) + 4, 16)]
        PL = [(0, PC), (0, PD), (1, PC), (1, PD), (0, PA), (1, PB)]
        pool2 = lambda b: [f"{M} {vr(Z(b)+4*k,4)}, {vr(U(b)+4*h,4)}, {vr(P,4)}, 0" for k, (h, P) in enumerate(PL) if k < 4] + [mf(b + 2, A16, U(b))]
        pool3 = lambda b: [f"{M} {vr(Z(b)+4*k,4)}, {vr(U(b)+4*h,4)}, {vr(P,4)}, 0" for k, (h, P) in enumerate(PL) if k >= 4] + [mf(b + 4, A32, U(b))] if b < 4 else []
        cvt = lambda b, fs: [f"v_cvt_pk_bf16_f32 v{Z(b)+8*f+r}, v{Z(b)+8*f+r}, v{Z(b)+8*f+4+r}" for f in fs for r in range(4)]
        use2 = lambda b, lo, hi: [mf(b + 2 + D, Z(b) + 8 * f, E2 + 8 * D + 4 * f) for D in range(3) if lo <= b + 2 + D < min(hi, 8) for f in range(2)]
        use3 = lambda b: [mf(t, Z(b) + 16, EF + 4 * (t - b - 4)) for t in range(b + 4, 8)]
        hand = lambda t: [f"ds_write_b128 v8, {acc(t)} offset:{slot(t)}", f"v_mov_b32 v10, {t}", f"ds_write_b32 v9, v10 offset:{F_I-F_PAIR}"]
        e2rd = lambda D: [x for f in range(2) for x in (f"ds_read2_b32 {vr(E2+8*D+4*f,2)}, v11 offset0:{32*D+6+f} offset1:{32*D+4+f}",
                                                        f"ds_read2_b32 {vr(E2+8*D+4*f+2,2)}, v11 offset0:{32*D+2+f} offset1:{32*D+f}")]
        efrd = [x for D in range(4) for x in (f"ds_read2_b32 {vr(EF+4*D,2)}, v12 offset0:{16*D+3} offset1:{16*D+2}",
                                              f"ds_read2_b32 {vr(EF+4*D+2,2)}, v12 offset0:{16*D+1} offset1:{16*D}")]
        a.auto(True)
        emit(urd(0) + urd(1) + rdA(16, A16) + e2rd(0))
        for p in range(4):
            a(f"v_and_b32 v{A32+p}, s59, v{A32+p}")
        emit(pool2(0), e2rd(1) + [f"ds_read_b128 {vr(PA,4)}, v13", f"ds_read_b128 {vr(PB,4)}, v13 offset:1024"], per=1)
        emit(pool2(1), cvt(0, (0, 1)))
        emit(use2(0, 2, 4), cvt(1, (0, 1)))
        emit(use2(1, 2, 4) + pool3(0) + pool3(1), e2rd(2) + hand(2) + efrd + hand(3), per=2)
        a.auto(False)
        a.spin(F_H, 4, 10, sleep=1)
        a(f"s_setprio {E('GPA2', 3)}")
        a.auto(True)
        emit(urd(2) + urd(3) + use2(0, 4, 8) + use2(1, 4, 8), cvt(0, (2,)) + cvt(1, (2,)))
        emit(pool2(2) + use3(0) + use3(1))
        emit(pool2(3) + pool3(2), cvt(2, (0, 1)))
        emit(use2(2, 4, 8) + pool3(3), cvt(3, (0, 1)) + cvt(2, (2,)) + hand(4))
        emit(use2(3, 4, 8) + use3(2), cvt(3, (2,)) + ["s_nop 0"] * 4 + hand(5))
        emit(use3(3))
        a.auto(False)
        a.stamp(5)
        a(f"s_setprio {E('GPA3', 3)}")
        a.spin(F_H, 6, 10, sleep=1)
        a.auto(True)
        emit(urd(4) + urd(5) + pool2(4))
        emit(pool2(5), cvt(4, (0, 1)))
        emit(use2(4, 4, 8), cvt(5, (0, 1)))
        emit(use2(5, 4, 8) + hand(6) + hand(7))
        a.auto(False)
        a.stamp(7)
        a.end()
        return
    a(f"s_setprio {E('GPB', 2)}")
    AF, BF, NB = 40, 104, 6
    acc = lambda t: 16 + 4 * (t % 3)
    a(f"v_subrev_u32 v8, {4*KTS}, v8")
    a("v_cmp_eq_u32 vcc, 0, v2")
    a(f"v_mov_b32 v13, {F_O}")
    a("v_cndmask_b32 v12, 0, 1, vcc")
    a("v_lshlrev_b32 v14, 2, v2")
    a(f"v_add_u32 v14, {PM+5120}, v14")
    a("v_cndmask_b32 v13, v14, v13, vcc")
    stage = {1: 0, 3: 1, 5: 2, 6: 3, 7: 4}

    PT = 32

    def yout(t):
        o = [f"v_add_f32 v{acc(t)+r}, v{acc(t)+r}, v{PT+r}" for r in range(4)] if t >= 2 else []
        o += [f"v_cvt_pk_bf16_f32 v30, v{acc(t)+3}, v{acc(t)+2}", f"v_cvt_pk_bf16_f32 v31, v{acc(t)+1}, v{acc(t)}",
              f"ds_write_b64 v7, v[30:31] offset:{512*(7-t)}"]
        if t in stage:
            o.append(f"ds_add_u32 v13, v12 offset:{4*stage[t]}")
        return o
    bf = lambda n: BF + 4 * (n % NB)
    rdn = lambda n: rdB(n >> 3, n & 7, bf(n))
    part = lambda t: [f"ds_read_b128 {vr(PT,4)}, v8 offset:{slot(t)}"] if t >= 2 else []
    a.auto(True)
    emit(rdA(0, AF) + [rdn(0)] + rdA(8, AF + 32) + [rdn(1)] + rdA(1, AF + 4) + rdA(9, AF + 36) + [rdn(2), rdn(3)])
    for b in range(8):
        y = yout(b - 1) if b else []
        for rho in range(8):
            n = 8 * b + rho
            f0, f1 = [], []
            if b == 0 and rho < 6:
                f0, f1 = rdA(rho + 2, AF + 4 * (rho + 2)), rdA(rho + 10, AF + 32 + 4 * (rho + 2))
            if b and rho in (2, 3):
                f0, f1, y = y[:2], y[2:4], y[4:]
            if rho == 4:
                f0 = f0 + [f"ds_read_b32 v28, v1 offset:{F_H}", f"ds_read_b32 v29, v9 offset:{F_I-F_PAIR}"]
            if rho == 5:
                f0 = f0 + part(b)
            if rho == 6:
                f1 = f1 + ["v_readfirstlane_b32 s9, v29"]
            if rho == 7:
                f0 = f0 + ["v_readfirstlane_b32 s8, v28", "s_add_u32 s9, s9, 2"]
                if b < 2:
                    f1 = f1 + [f"s_cmp_lt_u32 s8, {b+2}"]
                elif b < 7:
                    f1 = f1 + ["s_min_u32 s8, s8, s9", f"s_cmp_lt_u32 s8, {b+2}"]
                else:
                    f1 = f1 + ["s_cmp_lt_u32 s9, 9"]
            if n + 4 < 64:
                f1 = [rdn(n + 4)] + f1
            a(f"{M} {vr(acc(b),4)}, {vr(AF+4*rho,4)}, {vr(bf(n),4)}, {vr(acc(b),4) if n else 0}")
            emit(f0)
            if b < 7:
                a(f"{M} {vr(acc(b+1),4)}, {vr(AF+32+4*rho,4)}, {vr(bf(n),4)}, {vr(acc(b+1),4) if rho else 0}")
            emit(f1)
        a(f"s_cbranch_scc1 C_SLOW{b}")
        a.lab(f"KEEP_P{b}")
        if b == 3:
            a.stamp(5)
            if STAMP and E("CLK"):
                a("s_memtime s[82:83]")
    a.stamp(6)
    if STAMP and E("CLK"):
        a("s_memtime s[84:85]")
    emit(yout(7))
    a.auto(False)
    a.stamp(7)
    a(f"ds_read_b32 v10, v1 offset:{F_X}")
    a("s_cmp_eq_u32 s3, 4")
    a("s_cbranch_scc1 C_FIN")
    if WBM:
        a("s_cmp_lg_u32 s3, 5")
        a("s_cbranch_scc1 C_NOWB")
        if WBM == 2:
            a("s_and_b32 s8, s5, 3")
            a("s_cmp_lg_u32 s8, 0")
            a("s_cbranch_scc1 C_NOWB")
        a.spin(F_ST, 4, 10, sleep=1)
        if E("WBD"):
            a(f"s_sleep {E('WBD')}")
        a("buffer_wbl2 sc1")
        a("s_waitcnt vmcnt(0)")
        a.lab("C_NOWB")
    a.end()
    for b in range(8):
        a.lab(f"C_SLOW{b}")
        if b < 7:
            a.spin(F_H, b + 2, 28)
        if b >= 2:
            a.spin(f"v9 offset:{F_I-F_PAIR}", b, 28)
        for x in part(b) + ([rdn(8 * b + 8 + k) for k in range(4)] if b < 7 else []):
            a(x)
        a("s_waitcnt lgkmcnt(0)")
        a(f"s_branch KEEP_P{b}")


XD, GD = 40, 56
VX, VY, VG, VO = 72, 73, 74, 78


def epi_setup(a):
    srd(a, 60, P_OUT, 2359296)
    a("v_bfe_u32 v79, v2, 2, 2")
    a("v_and_b32 v80, 3, v2")
    a("v_lshl_add_u32 v80, v4, 2, v80")
    a("s_lshl_b32 s8, s12, 7")
    for d, base, stride in ((VX, UP, US), (VY, OP, OS)):
        a(f"v_mul_u32_u24 v{d}, {stride}, v79")
        a(f"v_lshl_add_u32 v{d}, v80, 3, v{d}")
        a(f"s_sub_u32 s9, {base+3968-512*7}, s8")
        a(f"v_add_u32 v{d}, s9, v{d}")
    a("v_xor_b32 v79, 63, v2")
    a("s_lshl_b32 s8, s12, 9")
    a(f"s_add_u32 s8, s8, {WS_G}")
    a(f"v_lshl_add_u32 v{VG}, v79, 3, s8")
    for k in range(1, 4):
        a(f"v_add_u32 v{VG+k}, {4096*k}, v{VG}")
    a(f"v_mul_u32_u24 v{VO}, 1152, v79")
    a(f"v_add_u32 v{VO}, s55, v{VO}")
    a("s_mul_i32 s68, s12, 73728")
    a("s_mov_b32 s70, 0x05040100")
    a("s_mov_b32 s71, 0x07060302")


def epi_x(a, ks):
    for k in ks:
        a(f"ds_read_b64_tr_b16 {vr(XD+2*k,2)}, v{VX} offset:{512*(7-k)}")


def epi_g(a):
    l = a.uid("GP")
    a("s_mov_b32 s9, 0")
    a.lab(l)
    a(f"v_xor_b32 v14, v{GD+1}, v10")
    for k in range(1, 8):
        a(f"v_bitop3_b32 v14, v14, v{GD+2*k+1}, v10 bitop3:0xf6")
    a("v_cmp_ne_u32 vcc, 0, v14")
    a("s_add_u32 s9, s9, 1")
    a("s_cmp_eq_u64 vcc, 0")
    a(f"s_cbranch_scc1 {l}_D")
    a(f"s_cmp_ge_u32 s9, {SPIN}")
    a(f"s_cbranch_scc1 {l}_D")
    epi_gl(a)
    a("s_waitcnt vmcnt(0)")
    a(f"s_branch {l}")
    a.lab(l + "_D")


def epi_gl(a):
    for k in range(8):
        a(f"global_load_dwordx2 {vr(GD+2*k,2)}, v{VG+(k>>1)}, {sr(P_WS,2)} offset:{2048*(k&1)} sc1")


TX = 120


def epi_unp(a, ks):
    for k in ks:
        if k < NF:
            for p in range(2):
                a(f"v_lshlrev_b32 v{TX+4*k+2*p}, 16, v{XD+2*k+p}")
                a(f"v_and_b32 v{TX+4*k+2*p+1}, 0xffff0000, v{XD+2*k+p}")


def epi_mul(a, ks):
    for k in ks:
        if k < NF:
            a(f"v_and_b32 v{16+(k&3)}, 0xffff0000, v{GD+2*k}")
            a(f"v_lshlrev_b32 v{GD+2*k+1}, 16, v{GD+2*k}")
            for c in range(4):
                a(f"v_mul_f32 v{TX+4*k+c}, v{TX+4*k+c}, v{16+(k&3)}")


def epi_fin(a, ks, stage):
    a.spin(F_O + 4 * stage, 4, 15, sleep=E("OSL", 1), prio=E("IOP", 3))
    a.auto(True)
    Y = 16
    for n, k in enumerate(ks):
        a(f"ds_read_b64_tr_b16 {vr(Y+2*n,2)}, v{VY} offset:{512*(7-k)}")
    for n0 in range(0, len(ks), 2):
        pr = [(n, ks[n], 24 + 4 * n) for n in (n0, n0 + 1) if n < len(ks)]
        if ks[n0] < NF:
            for n, k, R in pr:
                for p in range(2):
                    a(f"v_lshlrev_b32 v{R+2*p}, 16, v{Y+2*n+p}")
                    a(f"v_and_b32 v{R+2*p+1}, 0xffff0000, v{Y+2*n+p}")
                for c in range(4):
                    a(f"v_fma_f32 v{R+c}, v{R+c}, v{GD+2*k+1}, v{TX+4*k+c}")
        else:
            for n, k, R in pr:
                for c in range(4):
                    a(f"v_perm_b32 v{R+c}, v{XD+2*k+(c>>1)}, v{Y+2*n+(c>>1)}, s{70+(c&1)}")
            for n, k, R in pr:
                for c in range(4):
                    a(f"v_dot2_f32_bf16 v{R+c}, v{R+c}, v{GD+2*k}, 0")
        for n, k, R in pr:
            for p in range(2):
                a(f"v_cvt_pk_bf16_f32 v{XD+2*k+p}, v{R+2*p}, v{R+2*p+1}")
            if not E("NOST"):
                a(f"buffer_store_dwordx2 {vr(XD+2*k,2)}, v{VO}, s[60:63], s68 offen")
            a("s_add_u32 s68, s68, 294912")
    a.auto(False)


def burst_addr(a):
    a(f"s_sub_u32 s9, s5, {NJH}")
    if GORD:
        a("s_mul_i32 s9, s9, 3")
        a("s_min_u32 s8, s12, 2")
        a("s_add_u32 s9, s9, s8")
        a("s_mul_i32 s9, s9, 12288")
        a("s_mul_i32 s8, s4, 663552")
        a("s_add_u32 s8, s8, s9")
        a("v_lshl_add_u32 v88, v2, 7, s8")
        a("v_min_u32 v89, 31, v2")
        a("v_lshl_add_u32 v89, v89, 7, s8")
        a("v_add_u32 v89, 8192, v89")
        return
    a("s_lshl_b32 s9, s9, 2")
    a("s_add_u32 s9, s9, s12")
    a("s_mul_i32 s9, s9, 9216")
    a("s_mul_i32 s8, s4, 663552")
    a("s_add_u32 s8, s8, s9")
    if BL == 72:
        a("v_lshl_add_u32 v88, v2, 7, s8")
        a("v_min_u32 v89, 7, v2")
        a("v_lshl_add_u32 v89, v89, 7, s8")
        a("v_add_u32 v89, 8192, v89")
    else:
        a(f"s_add_u32 s8, s8, {128*(72-BL)}")
        a(f"v_min_u32 v88, {BL-1}, v2")
        a("v_lshl_add_u32 v88, v88, 7, s8")


def burst(a):
    if BSN:
        for k in range(NBI):
            a(f"global_load_dword v{96+k}, v{88+k}, {sr(P_WD,2)}")


def io_common(a):
    a("s_mul_i32 s7, s4, 18")
    a("s_add_u32 s7, s7, s5")
    a(f"s_sub_u32 s7, s7, {NJH}")
    a("s_lshl_b32 s55, s7, 3")
    a("s_sub_u32 s12, s3, 8")
    epi_setup(a)
    burst_addr(a)


def uloader(a):
    a.lab("C_LOAD")
    a("s_setprio 3")
    a(f"s_sub_u32 s13, s5, {NJH}")
    pf = stripe_pf(a)
    pf2 = []
    if PF2AT >= 0:
        pf, pf2 = pf[:2], [x.replace("v10,", "v98,").replace("v11,", "v99,") for x in pf[2:]]
    a("v_mul_u32_u24 v6, 4608, v2")
    a("s_lshl_b32 s8, s7, 3")
    a("v_add_u32 v6, s8, v6")
    a("v_lshlrev_b32 v7, 3, v2")
    a(f"v_sub_u32 v7, {UP+4088-512*7}, v7")
    a("s_mov_b32 s56, 0x05040100")
    a("s_mov_b32 s58, 0x07060302")
    a("s_mov_b32 s57, s13")
    a("s_waitcnt lgkmcnt(0)")
    if E("PFE", 0):
        for x in pf:
            a(x)
    srd(a, 72, P_U, 2359296)
    if not E("CNG"):
        a.b0(12)
    if E("CDL"):
        a(f"s_sleep {E('CDL')}")
    if E("PFX"):
        a.spin(F_X, 0, 12, op="lg")
    if not E("PFE", 0):
        for k, x in enumerate(pf):
            if k == 2 and E("PF2"):
                a("s_waitcnt vmcnt(0)")
            a(x)
    io_common(a)
    for j in range(4):
        a(f"v_mov_b32 v{24+j}, 0")
    a("v_lshrrev_b32 v28, 2, v2")
    a(f"v_mul_u32_u24 v28, {CS}, v28")
    a(f"v_add_u32 v28, {KC}, v28")
    a("v_and_b32 v29, 3, v2")
    a("v_lshl_add_u32 v30, v29, 4, v28")
    a("ds_write_b128 v30, v[24:27] offset:1072")
    a("v_and_b32 v29, 1, v2")
    a("v_lshl_add_u32 v30, v29, 4, v28")
    a("ds_write_b128 v30, v[24:27]")
    a("v_lshrrev_b32 v28, 5, v2")
    a(f"v_mul_u32_u24 v28, {US}, v28")
    a("v_and_b32 v29, 31, v2")
    a("v_lshl_add_u32 v30, v29, 4, v28")
    a(f"v_add_u32 v30, {UP+4096}, v30")
    a("ds_write_b128 v30, v[24:27]")
    a(f"ds_write_b128 v30, v[24:27] offset:{2*US}")
    a("s_mov_b32 s15, 0")
    if ROT:
        for k in range(4):
            a(f"s_add_u32 s8, s57, {k}")
            a("s_and_b32 s8, s8, 3")
            a(f"s_mul_i32 s{76+k}, s8, 294912")
            a(f"s_add_u32 s{64+k}, s{76+k}, {4*294912}")
            a("s_lshl_b32 s8, s8, 9")
            a(f"v_subrev_u32 v{32+k}, s8, v7")
    a("v_mov_b32 v12, 1")
    a(f"s_waitcnt vmcnt({E('UW', 2 if PF2AT < 0 else 0)})")
    a.stamp(7)
    U = 104

    def issue(i):
        if not NOU:
            so = f"s{(76 if i < 16 else 64) + ((i >> 2) & 3)}" if ROT else "s15"
            a(f"buffer_load_dwordx2 {vr(U+2*i,2)}, v6, s[72:75], {so} offen offset:{1152*(i&3)}")
        if i & 3 == 3:
            a("s_add_u32 s15, s15, 294912")
        if i == PF2AT:
            for x in pf2:
                a(x)
        if i == GAT:
            a(f"ds_write_b32 v1, v12 offset:{F_UI}")
            epi_gl(a)
        if i == BST:
            if GAT != BST:
                a(f"ds_write_b32 v1, v12 offset:{F_BU}")
            if not BLATE and not GORD:
                burst(a)
    a.auto(True)
    nis = 0
    for i in range(32):
        while nis < min(32, i + WIN_U):
            issue(nis); nis += 1
        a(f"@need {vr(U+2*i,2)}")
        if i & 3 == 3:
            while nis < min(32, i + 1 + WIN_U):
                issue(nis); nis += 1
            t, u, o = i >> 2, U + 2 * (i - 3), 16 + 8 * ((i >> 2) & 1)
            for ch in range(4):
                sel = "s58" if ch & 1 else "s56"
                a(f"v_perm_b32 v{o+2*ch}, v{u+4+(ch>>1)}, v{u+6+(ch>>1)}, {sel}")
                a(f"v_perm_b32 v{o+2*ch+1}, v{u+(ch>>1)}, v{u+2+(ch>>1)}, {sel}")
                if ROT:
                    a(f"ds_write_b64 v{32+(t&3)}, {vr(o+2*ch,2)} offset:{ch*US+512*(7-(t&4))}")
                else:
                    a(f"ds_write_b64 v7, {vr(o+2*ch,2)} offset:{ch*US+512*(7-t)}")
        if i == 3:
            a.stamp(8)
        if i & 3 == 3:
            a(f"v_mov_b32 v36, {(i>>2)+1}")
            a(f"ds_write_b32 v1, v36 offset:{F_H}")
        if i & 15 == 15:
            a.stamp(2 - (i >> 4))
    a.auto(False)
    epi_x(a, range(4))
    a.spin(F_X, 0, 10, op="lg")
    epi_unp(a, range(4))
    if GORD:
        a("s_waitcnt vmcnt(0)")
    a("s_branch C_IO3")
    a.lab("C_IO")
    io_common(a)
    a.spin(F_X, 0, 10, op="lg")
    if BST < GAT:
        a.spin(F_BU, 1, 12, prio=E("IOP", 3), sleep=1)
        burst(a)
    a.spin(F_H, 4, 12, prio=E("IOP", 3), sleep=E("OSL2", 2))
    epi_x(a, range(4))
    a("s_waitcnt lgkmcnt(0)")
    epi_unp(a, range(4))
    a.spin(F_UI, 1, 12, prio=E("IOP", 3), sleep=E("OSL2", 1))
    epi_gl(a)
    if BST < GAT:
        a("s_waitcnt vmcnt(0)")
    else:
        if GAT != BST:
            a.spin(F_BU, 1, 12, prio=3, sleep=1)
        if GORD:
            a.signal(F_GI, 12)
            a.spin(F_GI, 3, 12)
        if not BLATE:
            burst(a)
        if GORD:
            a(f"s_waitcnt vmcnt({NBI})")
    a.lab("C_IO3")
    a(f"s_waitcnt vmcnt({NBI if BSN and not BLATE else 0})")
    if BLATE == 1:
        burst(a)
    epi_g(a)
    epi_mul(a, range(4))
    a.stamp(3)
    epi_fin(a, [0, 1], 0)
    epi_fin(a, [2, 3], 1)
    a.spin(F_H, 8, 12)
    epi_x(a, range(4, 8))
    if NF > 4:
        a("s_waitcnt lgkmcnt(0)")
    epi_unp(a, range(4, 8))
    epi_mul(a, range(4, 8))
    a("s_lshl_b32 s8, s12, 8")
    a(f"s_sub_u32 s8, {OM+7936-1024*7}, s8")
    a("v_lshl_add_u32 v14, v2, 2, s8")
    for k in range(8):
        a(f"ds_write_b32 v14, v{GD+2*k} offset:{1024*(7-k)}")
    a.stamp(4)
    epi_fin(a, [4, 5], 2)
    a.stamp(5)
    if E("L2"):
        epi_fin(a, [6, 7], 4)
    else:
        epi_fin(a, [6], 3)
        epi_fin(a, [7], 4)
    a.signal(F_SI, 8)
    a.stamp(6)
    a("s_waitcnt vmcnt(0)")
    a.signal(F_ST, 8)
    a.end()
    a.lab("C_FIN")
    Z = 104
    a("s_setprio 0")
    a("v_and_b32 v8, 7, v2")
    a("v_lshlrev_b32 v8, 3, v8")
    a(f"v_add_u32 v8, {WS_SEL}, v8")
    a("s_mul_i32 s8, s7, 9216")
    a(f"s_add_u32 s8, s8, {WS_MB}")
    a("v_lshl_add_u32 v5, v2, 4, s8")
    a("v_add_u32 v6, 0x1000, v5")
    a("v_add_u32 v7, 0x2000, v5")
    a("v_and_b32 v19, 1, v4")
    a("v_lshrrev_b32 v20, 1, v4")
    a("v_lshl_or_b32 v19, v19, 1, v20")
    a(f"v_mul_u32_u24 v12, {US}, v19")
    a(f"v_add_u32 v12, {UP}, v12")
    a(f"v_mul_u32_u24 v13, {OS}, v19")
    a(f"v_add_u32 v13, {OP}, v13")
    a(f"s_add_u32 s8, s55, {2047*1152}")
    a("v_lshl_add_u32 v14, v19, 1, s8")
    a("s_waitcnt lgkmcnt(0)")
    for j in range(4):
        a(f"v_bfe_u32 v{Z+6+j}, v10, {8*j}, 8")
    MB = 120
    if FT:
        a.spin(F_O + 16, 4, 26, sleep=1, prio=3)
        if FT > 1:
            a(f"s_sleep {FT}")
    else:
        a.spin(F_SI, E("SI", 4), 26, sleep=1, prio=3)
    a.stamp(5)
    a("s_mov_b32 s9, 0")
    a.lab("C_MPOLL")
    a(f"global_load_dwordx2 v[16:17], v8, {sr(P_WS,2)} sc1")
    for i in range(9):
        a(f"global_load_dwordx4 {vr(MB+4*i,4)}, v{5+(i>>2)}, {sr(P_WS,2)} offset:{1024*(i&3)} sc1")
    a("s_waitcnt vmcnt(9)")
    a("v_and_b32 v22, 0x7ff, v16")
    a("v_lshl_add_u32 v23, v22, 1, v12")
    a(f"ds_read_u16 v{Z+1}, v23")
    a("v_lshl_add_u32 v23, v22, 1, v13")
    a(f"ds_read_u16 v{Z+3}, v23")
    a("v_lshlrev_b32 v23, 2, v22")
    a(f"v_add_u32 v23, {OM}, v23")
    if not (FT or E("SI", 4) < 4):
        a("ds_read_b32 v24, v23")
    a("v_and_b32 v20, 0xffff0000, v16")
    a("v_ashrrev_i32 v21, 31, v20")
    a("v_not_b32 v21, v21")
    a("v_or_b32 v21, 0x80000000, v21")
    a("v_and_b32 v21, 0xffff0000, v21")
    a("v_xor_b32 v20, v20, v21")
    sigmoid_f32(a, Z, 20, 21)
    rb(a, Z)
    a(f"v_mul_u32_u24 v{Z+4}, 1152, v22")
    a(f"v_sub_u32 v{Z+4}, v14, v{Z+4}")
    a("s_waitcnt lgkmcnt(0)")
    a(f"v_lshlrev_b32 v{Z+1}, 16, v{Z+1}")
    for i in range(9):
        a(f"s_waitcnt vmcnt({8-i})")
        for j in range(4):
            a(f"v_xor_b32 v{MB+4*i+j}, v{MB+4*i+j}, v{Z+6+j}")
        a(f"v_or3_b32 v26, v{MB+4*i}, v{MB+4*i+1}, {'v26' if i else '0'}")
        a(f"v_or3_b32 v26, v{MB+4*i+2}, v{MB+4*i+3}, v26")
        if i:
            for p in range(2):
                a(f"v_pk_add_f32 {vr(28+2*p,2)}, {vr(28+2*p if i > 1 else MB+2*p,2)}, {vr(MB+4*i+2*p,2)}")
    a("v_and_b32 v26, 0xff, v26")
    a("v_bitop3_b32 v26, v26, v17, v10 bitop3:0xf6")
    a("v_cmp_ne_u32 vcc, 0, v26")
    a("s_add_u32 s9, s9, 1")
    a("s_cmp_eq_u64 vcc, 0")
    a("s_cbranch_scc1 C_MOK")
    a(f"s_cmp_lt_u32 s9, {SPIN}")
    a("s_cbranch_scc1 C_MPOLL")
    a.lab("C_MOK")
    if STAMP:
        a("s_mov_b32 s82, s9")
    a.stamp(8)
    a("v_permlane32_swap_b32 v28, v29")
    a("v_permlane32_swap_b32 v30, v31")
    a("v_add_f32 v28, v28, v29")
    a("v_add_f32 v30, v30, v31")
    a("v_permlane16_swap_b32 v28, v30")
    a("v_add_f32 v28, v28, v30")
    a(f"v_add_f32_dpp v28, v28, v28 row_ror:8 {DPPF}")
    rb(a, 28)
    a(f"v_mul_f32 v28, v28, v{Z}")
    rb(a, 28)
    a(f"v_add_f32 v28, v28, v{Z+1}")
    rb(a, 28)
    a(f"v_or_b32 v28, v28, v{Z+3}")
    if FT or E("SI", 4) < 4:
        a.spin(F_SI, 4, 27)
        a("ds_read_b32 v24, v23")
        a("s_waitcnt lgkmcnt(0)")
    a("v_dot2_f32_bf16 v28, v28, v24, 0")
    a("v_cvt_pk_bf16_f32 v28, v28, v28")
    a.spin(F_ST, 4, 27)
    a("s_mov_b32 exec_lo, 0x00ff00ff")
    a("s_mov_b32 exec_hi, 0x00ff00ff")
    a(f"global_store_short v{Z+4}, v28, {sr(P_OUT,2)}{' sc1' if WBM else ''}")
    a("s_mov_b64 exec, -1")
    a.end()


def kernel(a):
    a.raw(".p2align 8")
    a.raw(".globl k1_kernel")
    a.raw(".type k1_kernel,@function")
    a.lab("k1_kernel")
    a.stamp(20)
    if STAMP == 3:
        a("s_memrealtime s[80:81]")
    a("v_and_b32 v2, 63, v0")
    a("v_mov_b32 v1, 0")
    a("v_lshlrev_b32 v3, 2, v2")
    a("ds_write_b32 v3, v1")
    a("s_lshr_b32 s5, s2, 3")
    if CODEPF:
        a("v_lshlrev_b32 v8, 7, v0")
        a(f"s_cmp_lg_u32 s5, {NJF}")
        a("s_cbranch_scc1 K_NOCPF")
        a("s_getpc_b64 s[8:9]")
        a("v_min_u32 v8, CODE_END-k1_kernel-64, v8")
        a("global_load_dword v160, v8, s[8:9]")
        a.lab("K_NOCPF")
    a("s_waitcnt lgkmcnt(0)")
    a("s_load_dwordx16 s[16:31], s[0:1], 0")
    a("s_load_dwordx16 s[32:47], s[0:1], 64")
    a("s_load_dwordx4 s[48:51], s[0:1], 128")
    if STAMP in (1, 2):
        for i in range(1, 10):
            a(f"s_mov_b32 s{80+2*i}, 0")
    if PROBE and PROBE != "kernel:20" and not os.environ.get("PW"):
        a("s_mov_b32 s98, 0")
    a.stamp(0)
    a("v_lshrrev_b32 v4, 6, v0")
    if STAMP == 3:
        a("s_barrier")
        a("v_readfirstlane_b32 s3, v4")
    else:
        a("s_cmp_ge_u32 s5, 32")
        a("v_readfirstlane_b32 s3, v4")
        a("s_cbranch_scc1 K_END")
        a("s_barrier")
    a("s_cmp_eq_u32 s3, 8")
    a("s_cbranch_scc1 ROUTER")
    a(f"s_cmp_lt_u32 s5, {NJH}")
    a("s_cbranch_scc1 K_OTHER")
    a("s_cmp_ge_u32 s3, 8")
    a("s_cbranch_scc1 K_CIO")
    kgen_head(a)
    router(a)
    a.raw(".p2align 7")
    a.lab("K_OTHER")
    a("v_and_b32 v3, 15, v2")
    a("v_lshrrev_b32 v4, 4, v2")
    a("s_and_b32 s4, s2, 7")
    a("s_mul_i32 s7, s4, 9")
    a("s_add_u32 s7, s7, s5")
    a("s_mov_b32 s12, s3")
    a("s_cmp_lt_u32 s3, 2")
    a("s_cbranch_scc1 GATE")
    a(f"s_cmp_ge_u32 s5, {NJF}")
    a("s_cbranch_scc1 HELPER")
    a("s_cmp_lt_u32 s3, 8")
    a("s_cbranch_scc1 F_COMP")
    ffn_loader(a)
    a.raw(".p2align 7")
    a.lab("K_CIO")
    a("v_and_b32 v3, 15, v2")
    a("v_lshrrev_b32 v4, 4, v2")
    a("s_and_b32 s4, s2, 7")
    a("s_mul_i32 s7, s4, 18")
    a("s_add_u32 s7, s7, s5")
    a(f"s_sub_u32 s7, s7, {NJH}")
    a("s_sub_u32 s12, s3, 9")
    a("s_cmp_lg_u32 s3, 11")
    a("s_cbranch_scc1 C_CONST")
    uloader(a)
    a.lab("C_CONST")
    a("v_lshl_add_u32 v14, v4, 3, v3")
    a("v_sub_u32 v14, 39, v14")
    a("s_lshl_b32 s8, s12, 11")
    a(f"s_add_u32 s8, s8, {PM}")
    a("v_lshl_add_u32 v15, v2, 4, s8")
    W = [(0x7f, 19), (0x1ff, 20), (0x7, 21), (0x1f, 18), (0x3, 21)]
    for k in range(3):
        a("s_cmp_eq_u32 s12, 0")
        a(f"s_cselect_b32 s8, {W[k][0]}, {W[k+2][0]}")
        a(f"s_cselect_b32 s9, {W[k][1]}, {W[k+2][1]}")
        a("s_movk_i32 s11, 0x3f80")
        if k == 2:
            a("s_cselect_b32 s11, s11, 0xffff")
        a("s_lshl_b32 s13, s11, 16")
        a("v_mov_b32 v10, s8")
        a("v_mov_b32 v11, 0")
        a("v_lshlrev_b64 v[10:11], v14, v[10:11]")
        a("v_alignbit_b32 v10, v11, v10, s9")
        for p in range(4):
            a(f"v_bfe_i32 v11, v10, {2*p}, 1")
            a(f"v_bfe_i32 v12, v10, {2*p+1}, 1")
            a("v_and_b32 v11, s11, v11")
            a(f"v_and_or_b32 v{16+4*k+p}, v12, s13, v11")
        a(f"ds_write_b128 v15, {vr(16+4*k,4)} offset:{1024*k}")
    a.signal(F_PM, 10)
    a("s_branch GATE")
    helper(a)
    gate(a)
    kgen(a)
    select(a)
    ffn_comp(a)
    if STAMP:
        a.lab("STAMP_OUT")
        a("s_memrealtime s[98:99]")
        a("s_waitcnt lgkmcnt(0)")
        a("s_lshl_b32 s8, s2, 4")
        a("s_add_u32 s8, s8, s3")
        a("s_lshl_b32 s8, s8, 6")
        a(f"s_add_u32 s8, s8, {WS_STAMP}")
        a("v_mov_b32 v5, s8")
        for i in ((0, 9) if STAMP == 3 else range(10)):
            a(f"v_mov_b32 v6, s{80+2*i}")
            a(f"global_store_dword v5, v6, {sr(P_WS,2)} offset:{4*i}")
    if PROBE:
        a.lab("PADTAIL")
        a("s_waitcnt vmcnt(0) lgkmcnt(0)")
        if os.environ.get("PCL"):
            op = os.environ["PCL"].replace("_", " ")
            a("s_cmp_lg_u32 s3, 5")
            a("s_cbranch_scc1 PADNC")
            a(f"s_sub_u32 s8, s5, {NJH}")
            a("s_cmp_ge_u32 s8, 16")
            a("s_cbranch_scc1 PADNC")
            a("s_sleep 100")
            a("s_mul_i32 s8, s8, 147456")
            a("s_mul_i32 s9, s4, 144")
            a("s_add_u32 s8, s8, s9")
            a("v_mul_u32_u24 v5, 1152, v2")
            a("v_add_u32 v5, s8, v5")
            a("v_add_u32 v6, 73728, v5")
            a("v_mov_b32 v12, 0")
            for k, (v, off) in enumerate(((5, 0), (5, 140), (6, 0), (6, 140))):
                if op.startswith("ld"):
                    a(f"global_load_dword v{8+k}, v{v}, {sr(P_OUT,2)} offset:{off} {op[2:]}")
                elif op.startswith("st"):
                    a(f"global_load_dword v{8+k}, v{v}, {sr(P_OUT,2)} offset:{off} sc1")
                    a("s_waitcnt vmcnt(0)")
                    a(f"global_store_dword v{v}, v{8+k}, {sr(P_OUT,2)} offset:{off} {op[2:]}")
                else:
                    a(f"global_atomic_or v{v}, v12, {sr(P_OUT,2)} offset:{off} {op[2:]}")
            a("s_waitcnt vmcnt(0)")
            a.lab("PADNC")
        if E("PWB"):
            a("s_cmp_lg_u32 s3, 4")
            a("s_cbranch_scc1 PADNW")
            a("s_sleep 60")
            a("buffer_wbl2 sc1")
            a("s_waitcnt vmcnt(0)")
            a.lab("PADNW")
        if os.environ.get("PW"):
            wl, wh, jl, jh = map(int, os.environ["PW"].split(","))
            for r, lo, hi in (("s3", wl, wh), ("s5", jl, jh)):
                a(f"s_cmp_lt_u32 {r}, {lo}")
                a("s_cbranch_scc1 K_END")
                a(f"s_cmp_gt_u32 {r}, {hi}")
                a("s_cbranch_scc1 K_END")
        else:
            a("s_cmp_eq_u32 s98, 0")
            a("s_cbranch_scc1 K_END")
        a("s_setprio 0")
        a.lab("PADL")
        a("s_sleep 3")
        a("s_memrealtime s[96:97]")
        a("s_waitcnt lgkmcnt(0)")
        a("s_sub_u32 s96, s96, s98")
        a("s_cmp_lt_u32 s96, 2000")
        a("s_cbranch_scc1 PADL")
    a.lab("K_END")
    a("s_endpgm")
    a.lab("CODE_END")


def main():
    ref = open(os.path.join(HERE, NAME + ".s.ref")).read().splitlines()
    head = [l for l in ref if l.startswith(";") and "@launch" not in l and "Override" not in l and "grid=ceil" not in l]
    a = G()
    kernel(a)
    out = head + [
        f"; @launch kernel=k1_kernel grid=(256,1,1) block=(768,1,1) lds={LDS}",
        '.amdgcn_target "amdgcn-amd-amdhsa--gfx950"',
        ".text",
    ] + a.finish() + [
        '.section .rodata,"a"',
        ".p2align 6",
        ".amdhsa_kernel k1_kernel",
        "  .amdhsa_next_free_vgpr 168",
        "  .amdhsa_next_free_sgpr 102",
        "  .amdhsa_accum_offset 168",
        "  .amdhsa_group_segment_fixed_size 0",
        "  .amdhsa_kernarg_size 144",
        "  .amdhsa_user_sgpr_count 2",
        "  .amdhsa_user_sgpr_kernarg_segment_ptr 1",
        "  .amdhsa_system_sgpr_workgroup_id_x 1",
        ".end_amdhsa_kernel",
    ]
    path = sys.argv[1] if len(sys.argv) > 1 else os.path.join(HERE, NAME + ".s")
    open(path, "w").write("\n".join(out) + "\n")


if __name__ == "__main__":
    main()
```

```python
import sys, os
from asmlib import *

NAME = "gated_mix__ssm_conv_s4__moe_arch_mod__prompt"
HERE = os.path.dirname(os.path.abspath(__file__))
E = lambda k, d=0: int(os.environ.get(k, d))
STAMP = E("STAMP")
PROBE = os.environ.get("PROBE", "")
CODEPF = E("CODEPF", 1)
SELD = E("SELD", 16)
GORD = E("GORD", 1)
NF = E("NF", 4)
FT = E("FT", 0)
WBM = E("WBM", 0)
RS = os.environ.get("RS", "").replace("_", " ")
RSL = E("RSL", 1)
CLN = E("CLN", 0)
RDIR = E("RDIR", 2)
GAT = E("GAT", 31)
BL = E("BL", 72)
NBI = 2 if BL == 72 else 1
BLATE = E("BLATE", 0)
KS = E("KS", 32)
WS_KEY2 = 2 << 20
PF2AT = E("PF2AT", -1)
ROT = 0
C3 = E("C3", 28)
WNT = os.environ.get("WNT", "")
POLLF = os.environ.get("POLLF", "sc1").replace("_", " ")
PUBF = os.environ.get("PUBF", "sc1").replace("_", " ")
PFW = E("PFW", 1)
HPN = E("HPN", 3)
HPS = E("HPS", 53)
HPW = E("HPW", 4)
PSTEP = 5 * HPW // 2
BST = E("BST", 31)
BSN = E("BSN", 5)
WIN_U = E("WIN_U", 6)
WIN_F = E("WIN_F", 10)
HOLD = E("HOLD")
FINE = E("FINE")
NOU = E("NOU")
NOW = E("NOW")

WS_KEY, WS_SEL, WS_BASE, WS_G, WS_MB = 0, 8192, 8448, 16384, 32768
WS_STAMP = 4 << 20
WS_SIZE = 0x10000000

SMALL = E("SMALL")
LDS = 120320 if SMALL else 163840
F_NONCE, F_PAIR, F_ST, F_I, F_K, F_H, F_O = 0, 16, 40, 48, 64, 80, 96
F_L, F_D, F_AC, F_XR, F_HR, F_PI = 16, 40, 48, 84, 88, 92
KT = 256
KTS = 4608
TS = 288
OS = 4160
KC = KT + 8 * KTS
CS = 1216
UP = KC + 16 * CS
US = 4672
OM = UP + 4 * US
OP = OM + 8192
PM = OP + 4 * OS
assert PM + 5120 + 512 <= 147712 and OP % 16 == 0
WA = 256
WB = WA + 73728
XB = 106496 if SMALL else WB + 73728
assert PM + 5632 <= XB
HB = XB + 9216
HS = 144
GW = HB + 9 * HS
assert GW + 2048 <= LDS and GW % 16 == 0
F_X, F_GD, F_RI, F_SI, F_UI, F_BU, F_PM, F_GI, F_SG = 8, 12, 4, 44, 88, 92, 32, 36, 120

L2E = 0x3fb8aa3b
L2E_LO = 0x32a57060
LN2 = 0x3f317218
INV2PI = 0x3e22f983

P_U, P_ARE, P_AIM, P_BRE, P_BIM, P_CRE, P_CIM, P_LDT = 16, 18, 20, 22, 24, 26, 28, 30
P_DSK, P_BX, P_WR, P_WG, P_WU, P_WD, P_GW, P_OUT = 32, 34, 36, 38, 40, 42, 44, 46
P_DBG, P_WS = 48, 50
NJF, NJH = 9, 14
SPIN = 0x20000

DPPF = "row_mask:0xf bank_mask:0xf"


class G(Asm):
    nlab = 0

    def stamp(s, i):
        if PROBE:
            import inspect
            fn = inspect.stack()[1].function
            if fn == "pre":
                fn = "ffn_loader"
            if f"{fn}:{i}" == PROBE:
                s("s_memrealtime s[98:99]")
        if i >= 20 or STAMP == 3:
            return
        if STAMP == 2:
            import inspect
            fn = inspect.stack()[1].function
            if not (i == 0 or (fn, i) in (("down", 6), ("uloader", 5), ("uloader", 6), ("select", 5), ("gphase", 7))):
                return
        if STAMP and not (FINE and i >= 6):
            s(f"s_memrealtime s[{80+2*i}:{81+2*i}]")

    def fine(s, i):
        if STAMP and FINE:
            s(f"s_memrealtime s[{80+2*i}:{81+2*i}]")

    def b0(s, wait=None):
        if E("OLDB0"):
            s("s_barrier")
        elif wait is not None:
            s.spin(F_RI, 1, wait)

    def end(s):
        s("s_branch STAMP_OUT" if STAMP else "s_branch PADTAIL" if PROBE else "s_endpgm")

    def uid(s, p):
        G.nlab += 1
        return f"{p}_{G.nlab}"

    def spin(s, off, target, tv, sleep=0, op="ge", prio=None):
        l = s.uid("SP")
        if prio is not None:
            s(f"s_setprio {E('SPP', 3) if sleep else 0}")
        s("s_mov_b32 s9, 0")
        s.lab(l)
        s(f"ds_read_b32 v{tv}, v1 offset:{off}") if isinstance(off, int) else s(f"ds_read_b32 v{tv}, {off}")
        s("s_waitcnt lgkmcnt(0)")
        s(f"v_readfirstlane_b32 s8, v{tv}")
        s("s_add_u32 s9, s9, 1")
        s(f"s_cmp_{op}_u32 s8, {target}")
        s(f"s_cbranch_scc1 {l}_D")
        if sleep:
            s(f"s_sleep {sleep * E('SLM', 1)}")
        s(f"s_cmp_lt_u32 s9, {SPIN*4}")
        s(f"s_cbranch_scc1 {l}")
        s.lab(l + "_D")
        if prio is not None:
            s(f"s_setprio {prio}")

    def signal(s, off, tv):
        s(f"v_mov_b32 v{tv}, 1")
        s("s_mov_b64 exec, 1")
        s(f"ds_add_u32 v1, v{tv} offset:{off}") if isinstance(off, int) else s(f"ds_add_u32 {off}, v{tv}")
        s("s_mov_b64 exec, -1")


def srd(a, d, p, size):
    a(f"s_mov_b32 s{d}, s{p}")
    a(f"s_mov_b32 s{d+1}, s{p+1}")
    a(f"s_mov_b32 s{d+2}, {size}")
    a(f"s_mov_b32 s{d+3}, 0x20000")


def wave_max_steps(vv):
    return [f"v_max_u32_dpp v{vv}, v{vv}, v{vv} row_shr:1 {DPPF}",
            f"v_max_u32_dpp v{vv}, v{vv}, v{vv} row_shr:2 {DPPF}",
            f"v_max_u32_dpp v{vv}, v{vv}, v{vv} row_shr:4 {DPPF}",
            f"v_max_u32_dpp v{vv}, v{vv}, v{vv} row_shr:8 {DPPF}",
            f"v_max_u32_dpp v{vv}, v{vv}, v{vv} row_bcast:15 row_mask:0xa bank_mask:0xf",
            f"v_max_u32_dpp v{vv}, v{vv}, v{vv} row_bcast:31 row_mask:0xc bank_mask:0xf"]


def sigmoid_f32(a, dst, src, t):
    a(f"v_mul_f32 v{t}, 0xbfb8aa3b, v{src}")
    a(f"v_exp_f32 v{t}, v{t}")
    a(f"v_add_f32 v{t}, 1.0, v{t}")
    a(f"v_rcp_f32 v{dst}, v{t}")


def rb(a, r):
    a(f"v_cvt_pk_bf16_f32 v{r}, v{r}, v{r}")
    a(f"v_and_b32 v{r}, 0xffff0000, v{r}")


def router(a):
    a.raw(".p2align 7")
    a.lab("ROUTER")
    X, W = 16, 52
    assert RDIR == 2
    a("v_lshrrev_b32 v5, 3, v2")
    a("v_and_b32 v6, 7, v2")
    a("v_lshlrev_b32 v9, 4, v6")
    a("v_lshl_add_u32 v5, s2, 3, v5")
    a("v_mul_u32_u24 v8, 1152, v5")
    a("v_add_u32 v8, v8, v9")
    if E("WPF", 1):
        a("v_min_u32 v10, 8, v2")
        a("v_lshlrev_b32 v10, 7, v10")
    a("s_waitcnt lgkmcnt(0)")
    a.fine(7)
    if E("WPF", 1):
        a(f"global_load_dword v90, v10, {sr(P_WR,2)}")
    for i in range(9):
        a(f"global_load_dwordx4 {vr(X+4*i,4)}, v8, {sr(P_U,2)} offset:{128*i}")
    a(f"s_load_dword s10, {sr(P_WS,2)}, {WS_BASE}")
    a("s_setprio 3")
    for i in range(9):
        a(f"global_load_dwordx4 {vr(W+4*i,4)}, v9, {sr(P_WR,2)} offset:{128*i}")
    a("v_lshlrev_b32 v7, 4, v2")
    a("v_min_u32 v10, 7, v2")
    a(f"s_mov_b32 m0, {GW}")
    a("v_lshlrev_b32 v10, 4, v10")
    a(f"global_load_lds_dwordx4 v7, {sr(P_GW,2)}")
    a(f"global_load_lds_dwordx4 v10, {sr(P_GW,2)} offset:1024")
    a.fine(6)
    a.stamp(21)
    a.b0()
    a("v_mov_b32 v11, 1")
    a(f"ds_write_b32 v1, v11 offset:{F_RI}")
    a("v_and_b32 v3, 15, v2")
    a("v_lshrrev_b32 v4, 4, v2")
    a("s_and_b32 s4, s2, 7")
    a(f"v_add_u32 v7, {XB}, v7")
    if KS == 32:
        a("s_lshl_b32 s8, s2, 5")
        a("v_lshl_add_u32 v15, v4, 3, s8")
    else:
        a(f"s_mul_i32 s8, s2, {KS}")
        a(f"s_add_u32 s8, s8, {WS_KEY2}")
        a("v_lshl_add_u32 v15, v4, 3, s8")
        a("v_lshl_add_u32 v15, v3, 5, v15")
    a("s_mov_b32 s11, 0xffff")
    for j in range(4):
        a(f"v_mov_b32 v{8+j}, 0")
    a("s_waitcnt lgkmcnt(0)")
    a.fine(8)
    a("s_add_u32 s10, s10, 1")
    a("s_addc_u32 s10, s10, 0")
    a("v_mov_b32 v14, s10")
    a("v_mov_b32 v13, s10")
    if RDIR:
        for i in range(9):
            a(f"s_waitcnt vmcnt({8-i+2})")
            for j in range(4):
                a(f"v_dot2c_f32_bf16 v{8+j}, v{X+4*i+j}, v{W+4*i+j}")
        a.stamp(1)
    else:
        a("s_waitcnt vmcnt(9)")
        a.stamp(1)
        if STAMP or PROBE:
            a("s_waitcnt lgkmcnt(0)")
        for i in range(9):
            a(f"ds_read_b128 {vr(X+4*i,4)}, v7 offset:{1024*i}")
        a(f"ds_write_b32 v1, v14 offset:{F_X}")
        for i in range(9):
            a(f"s_waitcnt vmcnt({8-i}) lgkmcnt({9-i})")
            for j in range(4):
                a(f"v_dot2c_f32_bf16 v{8+j}, v{X+4*i+j}, v{W+4*i+j}")
    a("v_add_f32 v8, v8, v9")
    a("v_add_f32 v10, v10, v11")
    a("v_add_f32 v8, v8, v10")
    a(f"v_add_f32_dpp v8, v8, v8 quad_perm:[1,0,3,2] {DPPF}")
    a(f"v_add_f32_dpp v8, v8, v8 quad_perm:[2,3,0,1] {DPPF}")
    a(f"v_add_f32_dpp v8, v8, v8 row_half_mirror {DPPF}")
    a("v_cvt_pk_bf16_f32 v8, v8, v8")
    a("v_ashrrev_i32 v9, 31, v8")
    a("v_or_b32 v9, 0x80008000, v9")
    a("v_xor_b32 v8, v8, v9")
    a(f"v_mov_b32_dpp v9, v8 row_ror:8 {DPPF}")
    km = {32: 0x00010001, 64: 0x00030003, 128: 0x000f000f}[KS]
    a(f"s_mov_b32 exec_lo, {km:#x}")
    a(f"s_mov_b32 exec_hi, {km:#x}")
    a("v_bfi_b32 v12, s11, v8, v9")
    a(f"global_store_dwordx2 v15, v[12:13], {sr(P_WS,2)} {PUBF}")
    a("s_mov_b64 exec, -1")
    a(f"ds_write_b32 v1, v14 offset:{F_NONCE}")
    a.stamp(2)
    if E("RLP", 1):
        a("s_setprio 0")
    if RDIR == 2:
        for i in range(9):
            a(f"ds_write_b128 v7, {vr(X+4*i,4)} offset:{1024*i}")
    if RDIR:
        a("s_waitcnt vmcnt(1)")
        a(f"ds_write_b32 v1, v14 offset:{F_X}")
    a(f"s_cmp_ge_u32 s5, {NJH}")
    a("s_cbranch_scc1 C_IO")
    a(f"s_cmp_lt_u32 s5, {NJF}")
    a("s_cbranch_scc1 SELECT")
    a.end()


def gate(a):
    a.lab("GATE")
    if E("GTP"):
        a(f"s_setprio {E('GTP')}")
    X, W, WL = 16, 34, 44
    a("s_lshl_b32 s8, s12, 9")
    a(f"s_add_u32 s8, s8, {XB}")
    a("v_lshl_add_u32 v5, v2, 2, s8")
    a("v_and_b32 v6, 31, v2")
    a("v_lshlrev_b32 v6, 2, v6")
    a(f"v_add_u32 v6, {GW}, v6")
    a("s_lshl_b32 s8, s2, 1")
    a("s_add_u32 s8, s8, s12")
    a("v_mov_b32 v8, 0")
    a("v_mov_b32 v9, 0")
    a("v_mov_b32 v10, 0x3f803f80")
    a("s_lshl_b32 s8, s8, 5")
    a(f"s_add_u32 s8, s8, {WS_G}")
    a("v_lshrrev_b32 v7, 5, v2")
    a("v_lshl_add_u32 v7, v7, 3, s8")
    a("v_and_b32 v11, 16, v2")
    a("v_add_u32 v7, v7, v11")
    a.b0()
    if E("GATED"):
        a(f"s_sleep {E('GATED')}")
    a.spin(F_X, 0, 13, op="lg", sleep=E("GSL", 1))
    a.auto(True)
    for i in range(5):
        a(f"ds_read2_b32 {vr(W+2*i,2)}, v6 offset0:{64*(i&3)} offset1:{64*(i&3)+32}" if i < 4 else f"ds_read_b32 v{W+8}, v6 offset:1024")
    for i in range(9):
        a(f"ds_read2st64_b32 {vr(X+2*i,2)}, v5 offset0:{4*i} offset1:{4*i+1}")
    for i in range(9):
        a(f"v_and_b32 v{WL+i}, 0xffff, v{W+i}")
        a(f"v_and_b32 v{W+i}, 0xffff0000, v{W+i}")
    for i in range(10):
        t = 56 + 4 * (i & 1)
        u = 56 + 4 * ((i - 1) & 1)
        for j in range(2):
            if i < 9:
                a(f"v_dot2_f32_bf16 v{t+2*j}, v{X+2*i+j}, v{WL+i}, 0")
                a(f"v_dot2_f32_bf16 v{t+2*j+1}, v{X+2*i+j}, v{W+i}, 0")
        if i:
            for j in range(2):
                a(f"v_cvt_pk_bf16_f32 v{u+2*j}, v{u+2*j}, v{u+2*j+1}")
            for j in range(2):
                a(f"v_dot2c_f32_bf16 v{8+j}, v{u+2*j}, v10")
    a.auto(False)
    a.signal(F_GD, 11)
    a("v_permlane16_swap_b32 v8, v9")
    a("v_add_f32 v8, v8, v9")
    for r in (8, 4, 2, 1):
        a(f"v_add_f32_dpp v8, v8, v8 row_ror:{r} {DPPF}")
    rb(a, 8)
    sigmoid_f32(a, 8, 8, 9)
    rb(a, 8)
    a("v_sub_f32 v9, 1.0, v8")
    a("v_cvt_pk_bf16_f32 v12, v8, v9")
    a("s_mov_b32 exec_lo, 0x00010001")
    a("s_mov_b32 exec_hi, 0x00010001")
    a(f"global_store_dwordx2 v7, v[12:13], {sr(P_WS,2)} sc1")
    a("s_mov_b64 exec, -1")
    a.stamp(1)
    a(f"s_cmp_lt_u32 s5, {NJF}")
    a("s_cbranch_scc1 F_COMP2")
    a(f"s_cmp_ge_u32 s5, {NJH}")
    a("s_cbranch_scc1 C_IO")
    a.end()


def stripe_pf(a):
    a("s_and_b32 s8, s13, 15" if PF2AT >= 0 else "s_mov_b32 s8, s13")
    a("s_mul_i32 s8, s8, 73728")
    a("s_lshl_b32 s9, s4, 7")
    a("s_add_u32 s8, s8, s9")
    a("v_mul_u32_u24 v9, 1152, v2")
    a("v_add_u32 v9, s8, v9")
    a("s_add_u32 s8, s13, 18")
    a("s_min_u32 s8, s8, 31")
    a("s_sub_u32 s8, s8, s13")
    a("s_mul_i32 s8, s8, 73728")
    a("v_add_u32 v8, s8, v9" if PF2AT < 0 else f"v_add_u32 v8, {16*73728}, v9")
    return [f"global_load_dword v10, v9, {sr(P_U,2)}", f"global_load_dword v11, v9, {sr(P_U,2)} offset:128",
            f"global_load_dword v10, v8, {sr(P_U,2)}", f"global_load_dword v11, v8, {sr(P_U,2)} offset:128"]


def prefetch(a, n, hold):
    a("v_mul_u32_u24 v5, 57, v2")
    a("v_lshrrev_b32 v5, 9, v5")
    a("v_mul_u32_u24 v6, 9, v5")
    a("v_sub_u32 v6, v2, v6")
    a("s_waitcnt lgkmcnt(0)")
    a("s_cmp_eq_u32 s12, 1")
    a(f"s_cselect_b32 s52, s{P_WU}, s{P_WG}")
    a(f"s_cselect_b32 s53, s{P_WU+1}, s{P_WG+1}")
    a("s_mov_b32 s54, 5308416")
    a("s_mov_b32 s55, 0x20000")
    a("v_mul_u32_u24 v5, 9216, v5")
    a("v_lshl_add_u32 v5, v6, 7, v5")
    a("s_mul_i32 s8, s4, 1152")
    if C3:
        a(f"s_sub_u32 s14, s13, {HPS}")
        a("s_lshr_b32 s9, s52, 7")
        a("s_add_u32 s9, s9, s4")
        a("s_sub_u32 s9, 3, s9")
        a("s_and_b32 s9, s9, 7")
        a("s_lshl_b32 s15, s9, 7")
        a("s_add_u32 s15, s15, s8")
        a(f"s_mul_i32 s14, s14, {9216*C3}")
        a("s_add_u32 s15, s15, s14")
        a(f"s_add_u32 s15, s15, {9216*(7*HPS - C3*PSTEP)}")
        a("s_cmp_eq_u32 s9, 0")
        a("s_cselect_b32 s9, 1024, 0")
        a("v_and_b32 v7, 31, v2")
        a(f"v_min_u32 v7, {C3-1}, v7")
        a("v_mul_u32_u24 v7, 9216, v7")
        a("v_lshrrev_b32 v9, 5, v2")
        a("v_mul_u32_u24 v9, s9, v9")
        a("v_add_u32 v7, v7, v9")
    a("s_mul_i32 s13, s13, 64512")
    a("s_add_u32 s13, s13, s8")
    if not E("HNG"):
        a.b0(13)
    if hold:
        a.spin(F_NONCE, 0, 13, op="lg", sleep=1)
    if C3:
        a("buffer_load_dword v8, v7, s[52:55], s15 offen")
    if E("HDX"):
        a(f"s_sub_u32 s8, s5, {NJF}")
        a("s_lshl_b32 s8, s8, 3")
        a("s_add_u32 s8, s8, s4")
        a("s_lshl_b32 s8, s8, 2")
        a("s_add_u32 s8, s8, s3")
        a("s_sub_u32 s8, s8, 2")
        a("s_lshl_b32 s8, s8, 15")
        a("v_lshl_add_u32 v9, v2, 7, s8")
        for k in range(4):
            a("s_waitcnt vmcnt(0)")
            a(f"global_load_dword v8, v9, {sr(P_WD,2)}")
            a("v_add_u32 v9, 8192, v9")
        n = 0
    for k in range(n):
        if k >= PFW or (C3 and E("C3W", 1)):
            a(f"s_waitcnt vmcnt({PFW-1})")
        a("buffer_load_dword v8, v5, s[52:55], s13 offen")
        a(f"s_add_u32 s13, s13, {64512*PSTEP}")


def bulk_gate(a, tv):
    a.b0(tv)
    if HOLD:
        a.spin(F_NONCE, 0, tv, op="lg", sleep=1)


def select(a):
    a.lab("SELECT")
    a("s_setprio 3")
    SX = 52
    srd(a, SX, P_U, 2359296)
    KD, IX, KY = 16, 48, 80
    M1, M2, T1, T2, VO, VK, CH = 8, 9, 10, 11, 12, 6, 5
    a("v_lshlrev_b32 v7, 4, v2")
    a("v_add_u32 v15, 0x1000, v7")
    if KS != 32:
        a("v_lshrrev_b32 v7, 1, v2")
        a(f"v_mul_u32_u24 v7, {KS}, v7")
        a("v_and_b32 v15, 1, v2")
        a("v_lshl_add_u32 v7, v15, 4, v7")
        for i in range(8):
            a(f"v_add_u32 v{120+i}, {WS_KEY2+32*KS*i}, v7")

    def polls():
        if KS != 32:
            for i in range(8):
                a(f"global_load_dwordx4 {vr(KD+4*i,4)}, v{120+i}, {sr(P_WS,2)} {POLLF}")
            return
        for i in range(8):
            a(f"global_load_dwordx4 {vr(KD+4*i,4)}, v{7 if i < 4 else 15}, {sr(P_WS,2)} offset:{1024*(i&3)} {POLLF}")
    assert WS_KEY == 0
    a("v_lshlrev_b32 v8, 2, v2")
    a("v_sub_u32 v8, 2047, v8")
    for i in range(8):
        for e in range(4):
            a(f"v_subrev_u32 v{IX+4*i+e}, {256*i+e}, v8")
    a("v_lshrrev_b32 v9, 3, v2")
    a("v_and_b32 v9, 6, v9")
    a("v_xor_b32 v9, v9, v2")
    a("v_and_b32 v9, 7, v9")
    a(f"v_lshlrev_b32 v{CH}, 4, v9")
    a(f"v_mov_b32 v{VO}, 0")
    a(f"v_mov_b32 v{VK}, 0")
    a("s_mov_b32 s11, 0xffff0000")
    a("s_mov_b32 s15, 0")
    a.spin(F_GD, 2, 13)
    a("s_mov_b32 s9, 0")
    a("s_waitcnt vmcnt(0)")
    if SELD:
        a(f"s_sleep {SELD}")
    a.stamp(8)
    a.lab("SEL_POLL")
    polls()
    if E("W1", 99) < 99:
        a(f"ds_write_b32 v1, v14 offset:{F_PI}")
    for i in range(8):
        a(f"s_waitcnt vmcnt({7-i})")
        if i == 0:
            a(f"v_xor_b32 v13, v{KD+1}, v14")
        else:
            a(f"v_bitop3_b32 v13, v13, v{KD+4*i+1}, v14 bitop3:0xf6")
        a(f"v_bitop3_b32 v13, v13, v{KD+4*i+3}, v14 bitop3:0xf6")
    a("v_cmp_ne_u32 vcc, 0, v13")
    a("s_add_u32 s9, s9, 1")
    a("s_cmp_eq_u64 vcc, 0")
    a("s_cbranch_scc1 SEL_GOT")
    a(f"s_cmp_lt_u32 s9, {SPIN}")
    a("s_cbranch_scc1 SEL_POLL")
    a.lab("SEL_GOT")
    if STAMP:
        a("s_mov_b32 s94, s9")
    a.stamp(6)
    for i in range(8):
        for h in range(2):
            a(f"v_lshl_or_b32 v{KY+4*i+2*h}, v{KD+4*i+2*h}, 16, v{IX+4*i+2*h}")
            a(f"v_and_or_b32 v{KY+4*i+2*h+1}, v{KD+4*i+2*h}, s11, v{IX+4*i+2*h+1}")
        ks = [KY + 4 * i + e for e in range(4)]
        if i == 0:
            a(f"v_min_u32 v{M2}, v{ks[0]}, v{ks[1]}")
            a(f"v_max_u32 v{M1}, v{ks[0]}, v{ks[1]}")
            ks = ks[2:]
        for k in ks:
            a(f"v_med3_u32 v{M2}, v{M1}, v{M2}, v{k}")
            a(f"v_max_u32 v{M1}, v{M1}, v{k}")
    a.stamp(3)

    def place(r):
        lo, hi = ((0xff << (8 * r)) & 0xffffffff, (0xff << (8 * r)) >> 32)
        return ["s_and_b32 s13, s12, 0x7ff", "s_sub_u32 s13, 2047, s13", "s_mul_i32 s13, s13, 1152",
                [f"s_mov_b32 exec_lo, {lo:#x}", f"s_mov_b32 exec_hi, {hi:#x}",
                 f"v_add_u32 v{VO}, s13, v{CH}", f"v_mov_b32 v{VK}, s12", "s_mov_b64 exec, -1"]]
    for r in range(8):
        if r == 0:
            a(f"v_mov_b32 v{T1}, v{M1}")
            fill = []
        else:
            a(f"v_subrev_u32 v{T1}, s12, v{M1}")
            a(f"v_subrev_u32 v{T2}, s12, v{M2}")
            a(f"v_max_u32 v{T1}, v{T1}, v{T2}")
            p = place(r - 1)
            fill = [p[0:2], [p[2]], p[3]]
        for st in wave_max_steps(T1):
            for x in (fill.pop(0) if fill else []):
                a(x)
            a(st)
        a(f"v_readlane_b32 s8, v{T1}, 63")
        a("s_add_u32 s12, s12, s8" if r else "s_mov_b32 s12, s8")
    p = place(7)
    for x in p[:3] + p[3]:
        a(x)
    a("s_mov_b32 s14, 0")
    a.lab("SEL_GATHER")
    for b in range(9):
        a(f"s_mov_b32 m0, {XB + 896*b}")
        a(f"buffer_load_dwordx4 v{VO}, {sr(SX,4)}, 0 offen offset:{128*b} lds")
    a.signal(F_D, 13)
    a.stamp(4)
    a("s_cmp_lg_u32 s14, 0")
    a("s_cbranch_scc1 SEL_OK")
    TK = KD
    for k in range(32):
        a(f"v_sub_u32 v{TK+k}, v{KY+k}, v{M2}")

    def tree():
        for j in range(10):
            a(f"v_max3_u32 v{TK+3*j}, v{TK+3*j}, v{TK+3*j+1}, v{TK+3*j+2}")
        a(f"v_max3_u32 v{TK}, v{TK}, v{TK+3}, v{TK+6}")
        a(f"v_max3_u32 v{TK+9}, v{TK+9}, v{TK+12}, v{TK+15}")
        a(f"v_max3_u32 v{TK+18}, v{TK+18}, v{TK+21}, v{TK+24}")
        a(f"v_max3_u32 v{TK+27}, v{TK+27}, v{TK+30}, v{TK+31}")
        a(f"v_max3_u32 v{TK}, v{TK}, v{TK+9}, v{TK+18}")
        a(f"v_max_u32 v{TK}, v{TK}, v{TK+27}")
    tree()
    a(f"v_add_u32 v{TK}, v{TK}, v{M2}")
    a(f"v_cmp_lt_u32 vcc, s12, v{TK}")
    if E("FORCESLOW"):
        a("s_mov_b64 vcc, 1")
    a("s_cmp_eq_u64 vcc, 0")
    a("s_cbranch_scc1 SEL_OK")
    a("s_waitcnt vmcnt(0)")
    a("s_mov_b32 s12, 0")
    a("s_mov_b64 s[56:57], 0xff")
    a.lab("SEL_SLOW")
    for k in range(32):
        a(f"v_subrev_u32 v{TK+k}, s12, v{KY+k}")
    tree()
    for st in wave_max_steps(TK):
        a(st)
    a(f"v_readlane_b32 s8, v{TK}, 63")
    a("s_add_u32 s12, s12, s8")
    for x in place(0)[:3]:
        a(x)
    a("s_mov_b64 exec, s[56:57]")
    a(f"v_add_u32 v{VO}, s13, v{CH}")
    a(f"v_mov_b32 v{VK}, s12")
    a("s_mov_b64 exec, -1")
    a("s_lshl_b64 s[56:57], s[56:57], 8")
    a("s_add_u32 s14, s14, 1")
    a("s_cmp_lt_u32 s14, 8")
    a("s_cbranch_scc1 SEL_SLOW")
    a("s_branch SEL_GATHER")
    a.lab("SEL_OK")
    a("s_cmp_lg_u32 s2, 0")
    a("s_cbranch_scc1 SEL_NOPUB")
    a(f"v_mov_b32 v{VK+1}, v14")
    a(f"v_add_u32 v8, {WS_SEL}, v2")
    a("s_mov_b32 exec_lo, 0x01010101")
    a("s_mov_b32 exec_hi, 0x01010101")
    a(f"global_store_dwordx2 v8, {vr(VK,2)}, {sr(P_WS,2)} sc1")
    a("s_mov_b64 exec, 1")
    a(f"global_store_dword v8, v14, {sr(P_WS,2)} offset:{WS_BASE-WS_SEL} sc1")
    a("s_mov_b64 exec, -1")
    a("s_waitcnt vmcnt(2)")
    a("s_branch SEL_END")
    a.lab("SEL_NOPUB")
    a("s_waitcnt vmcnt(0)")
    a.lab("SEL_END")
    a("v_mov_b32 v8, 3")
    a(f"ds_write_b32 v1, v8 offset:{F_XR}")
    a.stamp(5)
    a.end()


def ffn_loader(a):
    a.lab("F_LOAD")
    a("s_setprio 3")
    SG, SU, SD = 52, 56, 60
    a("s_sub_u32 s12, s3, 9")
    a("v_lshrrev_b32 v5, 3, v2")
    a("v_bfe_u32 v6, v2, 4, 1")
    a("v_xor_b32 v6, v6, v2")
    a("v_and_b32 v6, 7, v6")
    a("v_mul_u32_u24 v7, 9216, v5")
    a("v_lshl_add_u32 v8, v6, 4, v7")
    a("v_xor_b32 v9, 32, v8")
    a("v_xor_b32 v10, 64, v8")
    a("v_xor_b32 v11, 96, v8")
    a("s_mul_i32 s13, s12, 294912")
    a("s_lshl_b32 s8, s7, 7")
    a("s_add_u32 s13, s13, s8")
    a("s_lshl_b32 s15, s12, 13")
    a(f"s_add_u32 s15, s15, {WA}")
    for d in (SG, SU):
        a(f"s_mov_b32 s{d+2}, 5308416")
        a(f"s_mov_b32 s{d+3}, 0x20000")
    a("s_waitcnt lgkmcnt(0)")
    a(f"s_mov_b64 {sr(SG,2)}, {sr(P_WG,2)}")
    a(f"s_mov_b64 {sr(SU,2)}, {sr(P_WU,2)}")
    a.stamp(23)
    n = 0
    sig = 0

    def pre():
        nonlocal sig
        if n == E("NG", 2):
            bulk_gate(a, 14)
        if n == E("W1", 99):
            a.spin(F_PI, 1, 14, sleep=1)
        if n == E("W0", 99):
            a.spin(F_NONCE, 0, 14, op="lg", sleep=1)
        if n >= WIN_F:
            a(f"s_waitcnt vmcnt({WIN_F-1})")
        if sig < 6 and n - WIN_F + 1 >= 8 * (sig + 1):
            a.signal(F_L + 4 * sig, 14)
            if sig in (0, 2, 5):
                a.stamp(1 + sig // 2)
            sig += 1
    for c in range(6):
        if c >= 3:
            a.spin(F_AC + 4 * (c - 3), 4, 14)
        for R in range(4):
            for mu in range(2):
                pre()
                a(f"s_add_u32 m0, s15, {(c%3)*24576 + R*2048 + mu*1024}")
                if not NOW:
                    a(f"buffer_load_dwordx4 v{8+2*mu+(R&1)}, {sr(SU if mu else SG,4)}, s13 offen {WNT} lds")
                n += 1
            a(f"s_add_u32 s13, s13, {73728 if R < 3 else 73728*9}")
    a.signal(F_D, 14)
    a.stamp(4)
    while sig < 6:
        a(f"s_waitcnt vmcnt({48 - 8*(sig+1)})")
        a.signal(F_L + 4 * sig, 14)
        sig += 1
    a.stamp(3)
    a("s_cmp_eq_u32 s3, 9")
    a("s_cbranch_scc1 F_COMP2")
    a.end()


def ffn_comp(a):
    a.lab("F_COMP")
    a.b0()
    a.lab("F_COMP2")
    a("s_and_b32 s12, s3, 3")
    a("v_lshrrev_b32 v5, 2, v3")
    a("v_bfe_u32 v7, v3, 3, 1")
    a("v_and_b32 v13, 1, v4")
    a("v_lshl_or_b32 v14, v13, 1, v7")
    a("v_and_b32 v15, 7, v3")
    a(f"v_mul_u32_u24 v16, {HS}, v15")
    a(f"v_add_u32 v16, {HB}, v16")
    a("s_mov_b32 s56, 0xff00ff00")
    a("s_mov_b32 s57, 0xff00ff00")
    a("s_lshr_b32 s8, s3, 2")
    a("s_cmp_lg_u32 s8, 1")
    a("s_cbranch_scc1 F_DOWN")
    WF, AG = 24, 8
    a("v_bfe_u32 v6, v3, 1, 1")
    a("v_lshl_or_b32 v8, v6, 2, v14")
    a("v_xor_b32 v8, s12, v8")
    a("v_lshlrev_b32 v8, 4, v8")
    a("v_lshl_add_u32 v8, v5, 7, v8")
    a("v_lshl_add_u32 v8, v6, 10, v8")
    a("v_lshl_add_u32 v8, v4, 11, v8")
    a("v_and_b32 v9, 1, v3")
    a("v_lshl_add_u32 v8, v9, 3, v8")
    a("v_xor_b32 v9, 64, v8")
    a(f"v_add_u32 v10, {WA+49152}, v8")
    a(f"v_add_u32 v11, {WA+49152}, v9")
    a("v_lshlrev_b32 v6, 2, v13")
    a("v_lshrrev_b32 v5, 1, v4")
    a("v_add_u32 v6, v6, v5")
    a("v_lshl_add_u32 v6, v7, 5, v6")
    a("s_lshl_b32 s8, s12, 3")
    a("v_add_lshl_u32 v6, v6, s8, 1")
    a("v_add_u32 v5, v6, v16")
    a("v_and_b32 v6, 6, v3")
    a("v_xor_b32 v6, v6, v4")
    a("v_lshlrev_b32 v6, 4, v6")
    a("v_lshl_add_u32 v6, v15, 7, v6")
    a(f"v_add_u32 v6, {XB}, v6")
    a("v_xor_b32 v7, 64, v6")
    for c in range(6):
        a.spin(F_L + 4 * c, 3, 12, sleep=E("CSL", 1))
        if c in (2, 5):
            a.stamp(2 + c // 3)
        for s in range(3):
            for t in range(2):
                base, off = (8 + t, WA + (c % 3) * 24576 + s * 8192) if c % 3 < 2 else (10 + t, s * 8192)
                r = WF + 8 * (3 * c + s) + 4 * t
                a(f"ds_read_b64_tr_b16 {vr(r,2)}, v{base} offset:{off}")
                a(f"ds_read_b64_tr_b16 {vr(r+2,2)}, v{base} offset:{off+512}")
        if c < 3:
            a("s_waitcnt lgkmcnt(0)")
            a.signal(F_AC + 4 * c, 12)
    a("s_setprio 3")
    a.spin(F_XR, 1, 12)
    a.stamp(4)
    a.auto(True)
    xs = lambda s: 16 + 4 * s
    def xrd(s):
        a(f"ds_read_b128 {vr(xs(s),4)}, v{7 if s&1 else 6} offset:{1024*(s>>1)}")
    xrd(0); xrd(1)
    nx = 2
    for s in range(18):
        for t in range(2):
            a(f"v_mfma_f32_16x16x32_bf16 {vr(AG+4*t,4)}, {vr(WF+8*s+4*t,4)}, {vr(xs(s),4)}, {vr(AG+4*t,4) if s else 0}")
            if nx < 18 and xs(nx) + 4 <= WF + 8 * s + 4 * t + 4:
                xrd(nx); nx += 1
    a.auto(False)
    a.stamp(8)
    for r in range(4):
        a(f"v_cndmask_b32 v{AG+r}, v{AG+r}, v{AG+4+r}, s[56:57]")
    a(f"v_permlane32_swap_b32 v{AG}, v{AG+1}")
    a(f"v_permlane32_swap_b32 v{AG+2}, v{AG+3}")
    for op in ("v_cvt_pk_bf16_f32 v{u}, v{g}, v{u}", "v_lshlrev_b32 v{g}, 16, v{u}", "v_mul_f32 v{t}, 0xbfb8aa3b, v{g}", "v_exp_f32 v{t}, v{t}",
               "v_and_b32 v{u}, 0xffff0000, v{u}", "v_add_f32 v{t}, 1.0, v{t}", "v_rcp_f32 v{t}, v{t}", "v_mul_f32 v{g}, v{g}, v{t}",
               "v_cvt_pk_bf16_f32 v{g}, v{g}, v{g}", "v_and_b32 v{g}, 0xffff0000, v{g}", "v_mul_f32 v{g}, v{g}, v{u}"):
        for p in range(2):
            a(op.format(g=AG + 2 * p, u=AG + 2 * p + 1, t=AG + 4 + p))
    a(f"v_cvt_pk_bf16_f32 v{AG}, v{AG}, v{AG+2}")
    a(f"ds_write_b16 v5, v{AG}")
    a(f"ds_write_b16_d16_hi v5, v{AG} offset:4")
    a.signal(F_HR, 12)
    a.stamp(5)
    a.end()
    a.lab("F_DOWN")
    RW, DF, AC, HF = 24, 56, 120, 152
    a("v_lshl_add_u32 v10, v4, 4, v16")
    a(f"v_mov_b32 v18, {HB+8*HS}")
    a("v_cndmask_b32 v19, v18, v10, s[56:57]")
    a("v_cndmask_b32 v18, v10, v18, s[56:57]")
    a("v_and_b32 v20, 31, v2")
    a("v_lshlrev_b32 v20, 2, v20")
    a(f"v_add_u32 v20, {HB+8*HS}, v20")
    a("ds_write_b32 v20, v1")
    a("v_mul_u32_u24 v8, 9216, v4")
    a("s_mul_i32 s13, s7, 73728")
    for j in range(4):
        a(f"s_mov_b32 s{60+j}, {0x07060500+j:#x}")
    a("s_mov_b32 s64, 0x05040100")
    a("s_mov_b32 s65, 0x07060302")
    a("s_lshl_b32 s14, s7, 7")
    a(f"s_add_u32 s14, s14, {WS_MB}")
    a("v_lshl_add_u32 v11, v15, 4, s14")
    a("s_waitcnt lgkmcnt(0)")
    srd(a, 52, P_WS, WS_SIZE)
    srd(a, 68, P_WD, 5308416)
    a("s_cmp_eq_u32 s3, 9")
    a("s_cbranch_scc1 F_DN2")

    def down(nd):
        nf = 2 * nd
        raw = lambda q, e: (RW if q == 0 else 88) + nd * e
        frg = lambda q, j: (DF if q == 0 else RW) + 4 * j
        for q in range(2):
            for e in range(8):
                if nd == 4 and E("DE", 4) and 8 * q + e == E("DE", 4):
                    a.spin(F_D, 4, 12, sleep=1)
                if not NOW and not E("NOD"):
                    a(f"buffer_load_dword{'x4' if nd == 4 else 'x2'} {vr(raw(q,e),nd)}, v8, s[68:71], s13 offen offset:{1152*(e&3)}")
                if e & 3 == 3:
                    a(f"s_add_u32 s13, s13, {4608 if e == 3 else 36864-4608}")
        def perms(q, p):
            a(f"s_waitcnt vmcnt({14 - 8*q - 2*p})")
            for j in range(nf):
                a(f"v_perm_b32 v{frg(q,j)+p}, v{raw(q,2*p+1)+(j>>1)}, v{raw(q,2*p)+(j>>1)}, s{64+(j&1)}")

        def mms(q):
            for j in range(nf):
                if nd == 4:
                    c = vr(AC + 4 * (j & 3), 4)
                    a(f"v_mfma_f32_16x16x32_bf16 {c}, {vr(frg(q,j),4)}, {vr(HF+8*(j>>2)+4*q,4)}, {c if q or j > 3 else 0}")
                else:
                    a(f"v_mfma_f32_16x16x32_bf16 {vr(AC+4*j,4)}, {vr(frg(q,j),4)}, {vr(HF+4*q,4)}, {vr(AC+4*j,4) if q else 0}")
        for q, p in [(0, 0), (0, 1), (0, 2), (0, 3), (1, 0), (1, 1)]:
            perms(q, p)
        a.spin(F_HR, 4, 12)
        a.stamp(5)
        for q in range(2):
            if nd == 4:
                a(f"ds_read_b128 {vr(HF+4*q,4)}, v18 offset:{64*q}")
                a(f"ds_read_b128 {vr(HF+8+4*q,4)}, v19 offset:{64*q}")
            else:
                a(f"ds_read_b128 {vr(HF+4*q,4)}, v10 offset:{64*q}")
        a(f"s_waitcnt lgkmcnt({nd//2})")
        mms(0)
        a("s_waitcnt lgkmcnt(0)")
        perms(1, 2)
        perms(1, 3)
        a.stamp(4)
        mms(1)
        O = 88
        for r in range(nd):
            for j in range(4):
                if nd == 4:
                    a(f"v_perm_b32 v{O+4*r+j}, v{AC+4*j+r}, v17, s{60+j}")
                else:
                    a(f"v_cndmask_b32 v{O+4*r+j}, v{AC+4*j+2*r}, v{AC+4*j+2*r+1}, s[56:57]")
            if nd == 2:
                for j in range(4):
                    a(f"v_perm_b32 v{O+4*r+j}, v{O+4*r+j}, v17, s{60+j}")
            a(f"s_mov_b32 s12, {18432*r}")
            a(f"buffer_store_dwordx4 {vr(O+4*r,4)}, v11, s[52:55], s12 offen sc1")
        a.stamp(6)
        a.end()
    a("v_lshl_add_u32 v8, v3, 4, v8")
    a("s_lshl_b32 s8, s3, 8")
    a("s_add_u32 s13, s13, s8")
    a("s_lshl_b32 s8, s3, 5")
    a("v_lshl_add_u32 v6, v4, 3, v7")
    a("v_add_u32 v6, s8, v6")
    a("v_mul_u32_u24 v6, 9216, v6")
    a("v_add_u32 v11, v6, v11")
    a.spin(F_X, 0, 17, op="lg", sleep=2)
    a.spin(F_D, 3 if E("DE", 4) else 4, 12, sleep=1)
    a("s_setprio 2")
    down(4)
    a.lab("F_DN2")
    a("v_lshl_add_u32 v8, v3, 3, v8")
    a("s_add_u32 s13, s13, 1024")
    a("v_lshl_add_u32 v6, v4, 2, v7")
    a("v_add_u32 v6, 128, v6")
    a("v_mul_u32_u24 v6, 9216, v6")
    a("v_add_u32 v11, v6, v11")
    a.spin(F_X, 0, 17, op="lg")
    down(2)


def helper(a):
    a.lab("HELPER")
    if not HPN:
        a.end()
        return
    if E("TOUCH", 0):
        a(f"s_cmp_lg_u32 s3, {2+HPW}")
        a("s_cbranch_scc1 H_NT")
        a("v_lshlrev_b32 v5, 19, v3")
        a("v_min_u32 v6, 5308412, v5")
        a("v_min_u32 v5, 2359292, v5")
        a("s_waitcnt lgkmcnt(0)")
        a.b0(13)
        a(f"global_load_dword v8, v6, {sr(P_WD,2)}")
        a(f"global_load_dword v9, v5, {sr(P_OUT,2)}")
        a.lab("H_NT")
    a(f"s_cmp_ge_u32 s3, {2+HPW}")
    a("s_cbranch_scc1 K_END")
    a("s_and_b32 s12, s3, 1")
    a("s_sub_u32 s13, s3, 2")
    a("s_lshr_b32 s13, s13, 1")
    a("s_mul_i32 s13, s13, 5")
    a("s_add_u32 s13, s13, s5")
    a(f"s_add_u32 s13, s13, {(HPS-NJF) & 0xffffffff}")
    prefetch(a, HPN, E("HH", 0))
    if STAMP:
        a("s_waitcnt vmcnt(0)")
        a.stamp(1)
    a.end()


DSK, EXPN = 166, 167
PA, PB, A16, PC, PD, A32, E2, EF = 104, 108, 112, 116, 120, 124, 128, 152


def cmul(a, d, x, y):
    a(f"v_pk_mul_f32 {vr(d,2)}, {vr(x,2)}, {vr(y,2)} op_sel:[0,0] op_sel_hi:[0,1]")
    a(f"v_pk_fma_f32 {vr(d,2)}, {vr(x,2)}, {vr(y,2)}, {vr(d,2)} op_sel:[1,1,0] op_sel_hi:[1,0,1] neg_lo:[0,1,0]")


def kgen_head(a):
    a.lab("C_KGEN")
    a.fine(6)
    PR = 16
    a("s_and_b32 s4, s2, 7")
    a("s_mul_i32 s7, s4, 18")
    a("s_add_u32 s7, s7, s5")
    a(f"s_sub_u32 s7, s7, {NJH}")
    a("s_and_b32 s12, s3, 3")
    a("s_lshr_b32 s13, s3, 2")
    a("s_lshl2_add_u32 s8, s7, s12")
    a("s_lshl1_add_u32 s8, s8, s13")
    a("s_lshl_b32 s8, s8, 7")
    a("v_lshl_add_u32 v5, v2, 1, s8")
    for k in range(3):
        a(f"v_mov_b64 {vr(PR+2*k,2)}, 0")
    a("s_lshl_b32 s55, s7, 3")
    a("s_waitcnt lgkmcnt(0)")
    a.fine(7)
    a(f"s_load_dwordx2 s[58:59], {sr(P_LDT,2)}, s55")
    for k, p in enumerate([P_ARE, P_AIM, P_BRE, P_BIM, P_CRE, P_CIM]):
        a(f"global_load_short_d16_hi v{PR+k}, v5, {sr(p,2)}")
    a.stamp(22)
    a.b0()
    a("s_branch C_KBODY")


def kgen(a):
    a.lab("C_KBODY")
    PR = 16
    a(f"s_load_dwordx2 s[68:69], {sr(P_DSK,2)}, s55")
    a("s_setprio 2")
    a("v_and_b32 v3, 15, v2")
    a("v_lshrrev_b32 v4, 4, v2")
    a("s_and_b32 s4, s2, 7")
    a(f"s_mul_i32 s15, s3, {KTS}")
    a(f"s_add_u32 s15, s15, {KT}")
    a(f"s_mul_i32 s52, s12, {4*CS}")
    a(f"s_add_u32 s52, s52, {KC}")
    a(f"s_mul_i32 s53, s12, {US}")
    a(f"s_add_u32 s53, s53, {UP}")
    a(f"v_mul_u32_u24 v7, {TS}, v3")
    a("v_lshl_add_u32 v7, v4, 4, v7")
    a("v_add_u32 v7, s15, v7")
    a("s_mov_b32 m0, s15")
    a.lab("C_SETD")
    a.fine(8)
    a("s_waitcnt lgkmcnt(0)")
    a.auto(True)
    a("s_lshl_b32 s8, s12, 4")
    a("s_lshr_b64 s[58:59], s[58:59], s8")
    a("s_lshl_b32 s8, s58, 16")
    a("v_mov_b32 v44, s8")
    a(f"v_mul_f32 v45, {L2E:#x}, v44")
    a(f"v_mov_b32 v46, {L2E:#x}")
    a("v_fma_f32 v46, v44, v46, -v45")
    a(f"v_mov_b32 v47, {L2E_LO:#x}")
    a("v_fma_f32 v46, v44, v47, v46")
    a("v_exp_f32 v45, v45")
    a(f"v_mul_f32 v46, {LN2:#x}, v46")
    a("v_fma_f32 v45, v45, v46, v45")
    a("v_cvt_pk_bf16_f32 v45, v45, v45")
    DT, DTL, DTR = 36, 37, 38
    a(f"v_and_b32 v{DT}, 0xffff0000, v45")
    a(f"v_mul_f32 v{DTL}, {L2E:#x}, v{DT}")
    a(f"v_mul_f32 v{DTR}, {INV2PI:#x}, v{DT}")
    a("s_waitcnt vmcnt(0)")
    a.stamp(1)
    if STAMP and E("CLK2"):
        a("s_memtime s[90:91]")
    ZR, ZI, WR = 40, 41, 42
    a(f"v_mul_f32 v{ZR}, v{PR}, v{DTL}")
    a(f"v_mul_f32 v{ZI}, v{PR+1}, v{DTR}")
    T0 = 24

    def direct(dst, c):
        if c != 1:
            a(f"v_mul_f32 v{dst}, {fbits(c):#x}, v{ZR}")
            a(f"v_mul_f32 v{dst+1}, {fbits(c):#x}, v{ZI}")
        a(f"v_exp_f32 v{T0}, v{dst if c != 1 else ZR}")
        a(f"v_fract_f32 v{dst+1}, v{dst+1 if c != 1 else ZI}")
        a(f"v_cos_f32 v{dst}, v{dst+1}")
        a(f"v_sin_f32 v{dst+1}, v{dst+1}")
        a(f"v_mul_f32 v{dst}, v{T0}, v{dst}")
        a(f"v_mul_f32 v{dst+1}, v{T0}, v{dst+1}")
    PW, R1 = 46, 44
    pc = lambda c: PW + 2 * (c - 1)
    direct(pc(1), 1)
    a(f"v_mul_f32 v{PR+2}, v{PR+2}, v{DT}")
    a(f"v_mul_f32 v{PR+3}, v{PR+3}, v{DT}")
    cmul(a, WR, PR + 4, PR + 2)
    a(f"v_max_f32 v39, |v{WR}|, |v{WR+1}|")
    side = wave_max_steps(39) + ["v_readlane_b32 s8, v39, 63"]
    OT = [26, 27, 28, 29]
    cnt = [0]

    pend = []

    def flush():
        while pend:
            a(pend.pop(0))

    def emit(row, x):
        o = OT[cnt[0] % 4]
        cnt[0] += 1
        flush()
        a(f"v_cvt_pk_f16_f32 v{o}, v{x}, v{x+1}")
        pend.append(f"ds_write_addtid_b32 v{o} offset:{row*TS}")
    cmul(a, pc(2), pc(1), pc(1))
    cmul(a, pc(4), pc(2), pc(2))
    Q1, QA, QB = 60, 62, 64
    cmul(a, Q1, pc(4), pc(4))
    a(f"v_mov_b32 v30, 0x3c00")
    a(f"v_xor_b32 v{Q1+1}, 0x80000000, v{Q1+1}")
    a("ds_write_addtid_b32 v30")
    emit(1, Q1)
    cur, nxt = Q1, QA
    for b in range(2, 16):
        cmul(a, nxt, cur, Q1)
        if side:
            a(side.pop(0))
        emit(b, nxt)
        cur, nxt = nxt, (QB if nxt == QA else QA)
    a("s_lshr_b32 s8, s8, 23")
    a("s_sub_u32 s8, 258, s8")
    a("s_min_u32 s54, s8, 253")
    a("s_lshl_b32 s8, s54, 23")
    a(f"v_mul_f32 v{WR}, s8, v{WR}")
    a(f"v_mul_f32 v{WR+1}, s8, v{WR+1}")
    QF, PF, KA = 72, 88, 104
    flush()
    for ks in range(4):
        a(f"ds_read_b128 {vr(QF+4*ks,4)}, v7 offset:{64*ks}")
    direct(R1, 128)
    cmul(a, pc(3), pc(2), pc(1)); cmul(a, pc(5), pc(4), pc(1)); cmul(a, pc(6), pc(3), pc(3)); cmul(a, pc(7), pc(6), pc(1))
    CH = [66, 68]
    YC = [60, 62]
    state = {"cur": WR, "k": 0, "y": 0}

    def adv():
        n = CH[state["k"] & 1]
        cmul(a, n, state["cur"], R1)
        state["cur"] = n; state["k"] += 1

    def row(r, c):
        if c == 0:
            emit(r, state["cur"])
        else:
            y = YC[state["y"] & 1]; state["y"] += 1
            cmul(a, y, state["cur"], pc(c))
            emit(r, y)

    def rd():
        flush()
        for ks in range(4):
            a(f"ds_read_b128 {vr(PF+4*ks,4)}, v7 offset:{64*ks}")

    def mm(t, ks):
        a(f"v_mfma_f32_16x16x32_f16 {vr(KA+4*t,4)}, {vr(PF+4*ks,4)}, {vr(QF+4*ks,4)}, {vr(KA+4*t,4) if ks else 0}")
    for h in range(2):
        for c in range(8):
            row(8 * h + c, c)
        adv()
    rd()
    for h in range(2):
        for c in range(4):
            row(4 * h + c, 2 * c)
            if h == 1:
                mm(0, c)
        adv()
    for q in range(4):
        row(8 + 2 * q, 0); row(9 + 2 * q, 4)
        adv()
    rd()
    for q in range(9):
        row(q, 0)
        if q < 8:
            adv()
        if 4 <= q < 8:
            mm(1, q - 4)
    rd()
    a("v_lshl_add_u32 v8, v2, 4, s15")
    for ks in range(4):
        mm(2, ks)
    a.auto(False)
    a.stamp(2)
    if STAMP and E("CLK2"):
        a("s_memtime s[96:97]")
    a("s_lshl_b32 s8, s12, 2")
    a(f"s_add_u32 s8, s8, {F_PAIR}")
    a("v_mov_b32 v9, s8")
    a("s_cmp_eq_u32 s13, 0")
    a("s_cbranch_scc1 C_KA")
    for t in range(3):
        a(f"ds_write_b128 v8, {vr(KA+4*t,4)} offset:{1024*t}")
    a("v_mov_b32 v10, s54")
    a("ds_write_b32 v9, v10")
    a.stamp(3)
    a("s_setprio 0")
    a("v_and_b32 v14, 3, v3")
    a("v_sub_u32 v14, 3, v14")
    a(f"v_mul_u32_u24 v14, {CS}, v14")
    a("v_lshrrev_b32 v13, 2, v3")
    a("v_lshl_add_u32 v13, v4, 1, v13")
    a("v_lshl_add_u32 v14, v13, 3, v14")
    a("v_add3_u32 v5, v14, s52, 8")
    a("v_lshlrev_b32 v14, 1, v3")
    a("v_sub_u32 v14, v4, v14")
    a("v_lshlrev_b32 v14, 4, v14")
    a(f"s_add_u32 s8, s53, {4064-512*7}")
    a("v_add_u32 v6, s8, v14")
    a("v_lshl_add_u32 v14, v3, 2, v4")
    a(f"s_mul_i32 s8, s12, {OS}")
    a(f"s_add_u32 s8, s8, {OP+4088-512*7}")
    a("v_lshlrev_b32 v14, 3, v14")
    a("v_sub_u32 v7, s8, v14")
    a.spin(F_H, 1, 10, prio=E("BSP", 3), sleep=1)
    a.spin(f"v9 offset:{F_K-F_PAIR}", 0, 10, op="lg", sleep=E("BSS", 0))
    a.stamp(4)
    gphase(a, 0)
    a.lab("C_KA")
    a("s_setprio 1")
    a("v_and_b32 v14, 3, v3")
    a("v_sub_u32 v14, 3, v14")
    a(f"v_mul_u32_u24 v14, {CS}, v14")
    a("v_lshrrev_b32 v13, 2, v3")
    a("v_lshl_add_u32 v13, v4, 1, v13")
    a("v_lshl_add_u32 v14, v13, 3, v14")
    a("v_add3_u32 v5, v14, s52, 8")
    a("v_lshlrev_b32 v14, 1, v3")
    a("v_sub_u32 v14, v4, v14")
    a("v_lshlrev_b32 v14, 4, v14")
    a(f"s_add_u32 s8, s53, {4064-512*7}")
    a("v_add_u32 v6, s8, v14")
    a("v_lshl_add_u32 v14, v3, 2, v4")
    a(f"s_mul_i32 s8, s12, {OS}")
    a(f"s_add_u32 s8, s8, {OP+4088-512*7}")
    a("v_lshlrev_b32 v14, 3, v14")
    a("v_sub_u32 v7, s8, v14")
    a("v_lshrrev_b32 v11, 1, v4")
    a("v_and_b32 v12, 1, v4")
    a("v_lshlrev_b32 v11, 8, v11")
    a("v_lshl_add_u32 v11, v12, 3, v11")
    a("v_lshl_add_u32 v11, v3, 4, v11")
    a("v_add_u32 v11, s15, v11")
    a("v_cmp_gt_u32 vcc, 2, v4")
    a("v_lshlrev_b32 v12, 2, v3")
    a("v_lshlrev_b32 v13, 3, v3")
    a("v_cndmask_b32 v12, v12, v13, vcc")
    a("v_lshl_add_u32 v12, v4, 7, v12")
    a("v_add_u32 v12, s15, v12")
    a("v_mov_b32 v13, 64")
    a("v_cndmask_b32 v13, v13, 4, vcc")
    a("v_add_u32 v13, v13, v12")
    a("v_lshlrev_b32 v14, 1, v3")
    a("v_lshl_add_u32 v14, v4, 7, v14")
    a("v_add_u32 v14, s15, v14")
    a("v_lshlrev_b32 v15, 4, v2")
    a("v_lshlrev_b32 v16, 3, v2")
    a("v_add_u32 v16, 256, v16")
    a("v_min_u32 v15, v15, v16")
    a("v_add_u32 v15, s15, v15")
    EB, E2B = 2048, 3072
    a("v_min_u32 v16, 15, v2")
    a("v_lshl_add_u32 v16, v16, 2, s15")
    a("v_lshrrev_b32 v26, 5, v2")
    a("v_lshlrev_b32 v26, 8, v26")
    a("v_lshl_add_u32 v26, v2, 2, v26")
    a("v_add_u32 v26, s15, v26")
    a("v_lshlrev_b32 v17, 2, v4")
    a("v_sub_u32 v17, v3, v17")
    a("v_lshl_add_u32 v27, v17, 3, s15")
    a(f"v_add_u32 v27, {E2B+104}, v27")
    a("v_lshl_add_u32 v17, v17, 2, s15")
    a(f"v_add_u32 v17, {EB+52}, v17")
    a("v_lshl_add_u32 v19, v2, 4, s52")
    a("s_mov_b32 s56, 0x01000100")
    a("s_mov_b32 s57, 0x03020302")
    a("s_lshl_b32 s8, s12, 4")
    a("s_lshr_b64 s[68:69], s[68:69], s8")
    a("s_lshl_b32 s68, s68, 16")
    a("s_sub_u32 s58, 254, s54")
    a("s_lshl_b32 s58, s58, 23")
    for r in range(12):
        a(f"v_mul_f32 v{KA+r}, s58, v{KA+r}")
    a("s_mov_b64 exec, 1")
    a(f"v_add_f32 v{KA}, s68, v{KA}")
    a("s_mov_b64 exec, -1")
    for r in (3, 7, 10, 11, 14, 15):
        a(f"v_mov_b32 v{72+r}, 0")
    a("v_lshlrev_b32 v28, 4, v2")
    a(f"v_add_u32 v28, {PM}, v28")
    a.spin(F_PM, 2, 18)
    for k, r in ((2, PC), (3, PD), (4, A32)):
        a(f"ds_read_b128 {vr(r,4)}, v28 offset:{1024*k}")
    a.spin("v9", 0, 18, prio=2, op="lg")
    a("s_sub_u32 s60, 254, s8")
    a("s_lshl_b32 s60, s60, 23")
    a.auto(True)
    for t in range(3):
        a(f"ds_read_b128 {vr(PF+4*t,4)}, v8 offset:{4*KTS+1024*t}")
    for t in range(3):
        for p in range(2):
            r = 4 * t + 2 * p
            a(f"v_pk_fma_f32 {vr(KA+r,2)}, {vr(PF+r,2)}, s[60:61], {vr(KA+r,2)} op_sel_hi:[1,0,1]")
            a(f"v_cvt_pk_bf16_f32 v{20+2*t+p}, v{KA+r}, v{KA+r+1}")
        if t == 0:
            a("ds_write_b64 v11, v[20:21]")
        elif t == 1:
            a("ds_write_b32 v12, v22 offset:512")
            a("ds_write_b32 v13, v23 offset:512")
            S = 32
            for p in range(2):
                a(f"ds_read_b64 {vr(S+2*p,2)}, v15 offset:{8*p}")
    a("s_mov_b32 exec_lo, 0")
    a(f"v_alignbit_b32 v{S+3}, v{S+2}, v{S+1}, 16")
    a(f"v_perm_b32 v{S+2}, v{S+1}, v{S+1}, s56")
    a(f"v_alignbit_b32 v{S+1}, v{S+1}, v{S}, 16")
    a(f"v_perm_b32 v{S}, v{S}, v{S}, s56")
    a("s_mov_b32 exec_lo, -1")
    a(f"ds_write_b128 v19, {vr(S,4)} offset:32")
    a(f"v_mov_b32_dpp v{S-2}, v{S+2} wave_shr:1 {DPPF} bound_ctrl:0")
    a(f"v_mov_b32_dpp v{S-1}, v{S+3} wave_shr:1 {DPPF} bound_ctrl:0")
    C1, C2, C3 = 44, 52, 60
    for p in range(4):
        a(f"v_alignbit_b32 v{C1+p}, v{S+p}, v{S+p-1}, 16")
    a(f"ds_write_b128 v19, {vr(C1,4)} offset:{CS+32}")
    for p in range(4):
        a(f"v_mov_b32 v{C2+p}, v{S+p-1}")
    a(f"ds_write_b128 v19, {vr(C2,4)} offset:{2*CS+32}")
    for p in range(4):
        a(f"v_alignbit_b32 v{C3+p}, v{S+p-1}, v{S+p-2}, 16")
    a(f"ds_write_b128 v19, {vr(C3,4)} offset:{3*CS+32}")
    a("v_mov_b32 v10, 1")
    a(f"ds_write_b32 v9, v10 offset:{F_K-F_PAIR}")
    a.stamp(3)
    a(f"s_setprio {E('GPL', 3)}")
    TL = 72
    a(f"v_perm_b32 v{TL+1}, v{S+3}, v{S+3}, s57")
    a(f"v_alignbit_b32 v{TL}, v{S+3}, v{S+2}, 16")
    a(f"v_lshrrev_b32 v{TL+6}, 16, v{S+3}")
    a(f"v_mov_b32 v{TL+4}, v{S+3}")
    for r in (2, 5, 8, 9, 12):
        a(f"v_mov_b32 v{TL+r}, v{TL+1}")
    a(f"v_mov_b32 v{TL+13}, v{TL+6}")
    a("s_mov_b32 exec_lo, 0")
    for r in range(4):
        a(f"ds_write_b16{'_d16_hi' if r&1 else ''} v{12+(r>>1)}, v{22+(r>>1)} offset:{E2B-130+2*(r&1)}")
    a("s_mov_b32 exec_hi, 0x80000000")
    for j in range(4):
        a(f"ds_write_b128 v19, {vr(TL+4*(3-j),4)} offset:{j*CS+48}")
    a("s_mov_b64 exec, 1")
    a(f"ds_write_b16 v14, v24 offset:{E2B+382}")
    a("s_mov_b64 exec, -1")
    a(f"ds_write_b32 v26, v1 offset:{E2B}")
    for r in range(4):
        a(f"ds_write_b16{'_d16_hi' if r&1 else ''} v14, v{24+(r>>1)} offset:{EB+62+32*r}")
    a(f"ds_write_b32 v16, v1 offset:{EB}")
    a("v_readlane_b32 s59, v24, 0")
    a("v_mov_b32 v11, v27")
    a("v_mov_b32 v12, v17")
    a("v_mov_b32 v13, v28")
    a("s_pack_ll_b32_b16 s59, s59, s59")
    a.auto(False)
    a.spin(F_H, 2, 10, sleep=1)
    a.stamp(4)
    gphase(a, 1)


def gphase(a, isA):
    M = "v_mfma_f32_16x16x32_bf16"
    rdA = lambda m, d: [f"ds_read_b64 {vr(d,2)}, v5 offset:{64*m}", f"ds_read_b64 {vr(d+2,2)}, v5 offset:{64*m+8}"]
    rdB = lambda b, rho, d, extra=0: f"ds_read_b128 {vr(d,4)}, v6 offset:{512*(7-b)+64*rho+extra}"
    slot = lambda t: 1024 * (t - 2) if t < 6 else 4 * KTS + 1024 * (t - 6)

    def emit(main, fill=[], per=2, skip=0):
        for x in interleave(main, fill, per=per, skip=skip):
            a(x)
    if isA:
        a(f"s_setprio {E('GPA', 1)}")
        AC = 16
        acc = lambda t: vr(AC + 4 * (t - 2), 4)
        started = set()

        def mf(t, A, B):
            c = acc(t) if t in started else "0"
            started.add(t)
            return f"{M} {acc(t)}, {vr(A,4)}, {vr(B,4)}, {c}"
        U = lambda b: 40 + 8 * (b & 1)
        Z = lambda b: 56 + 24 * (b & 1)
        urd = lambda b: [rdB(b, 0, U(b)), rdB(b, 0, U(b) + 4, 16)]
        PL = [(0, PC), (0, PD), (1, PC), (1, PD), (0, PA), (1, PB)]
        pool2 = lambda b: [f"{M} {vr(Z(b)+4*k,4)}, {vr(U(b)+4*h,4)}, {vr(P,4)}, 0" for k, (h, P) in enumerate(PL) if k < 4] + [mf(b + 2, A16, U(b))]
        pool3 = lambda b: [f"{M} {vr(Z(b)+4*k,4)}, {vr(U(b)+4*h,4)}, {vr(P,4)}, 0" for k, (h, P) in enumerate(PL) if k >= 4] + [mf(b + 4, A32, U(b))] if b < 4 else []
        cvt = lambda b, fs: [f"v_cvt_pk_bf16_f32 v{Z(b)+8*f+r}, v{Z(b)+8*f+r}, v{Z(b)+8*f+4+r}" for f in fs for r in range(4)]
        use2 = lambda b, lo, hi: [mf(b + 2 + D, Z(b) + 8 * f, E2 + 8 * D + 4 * f) for D in range(3) if lo <= b + 2 + D < min(hi, 8) for f in range(2)]
        use3 = lambda b: [mf(t, Z(b) + 16, EF + 4 * (t - b - 4)) for t in range(b + 4, 8)]
        hand = lambda t: [f"ds_write_b128 v8, {acc(t)} offset:{slot(t)}", f"v_mov_b32 v10, {t}", f"ds_write_b32 v9, v10 offset:{F_I-F_PAIR}"]
        e2rd = lambda D: [x for f in range(2) for x in (f"ds_read2_b32 {vr(E2+8*D+4*f,2)}, v11 offset0:{32*D+6+f} offset1:{32*D+4+f}",
                                                        f"ds_read2_b32 {vr(E2+8*D+4*f+2,2)}, v11 offset0:{32*D+2+f} offset1:{32*D+f}")]
        efrd = [x for D in range(4) for x in (f"ds_read2_b32 {vr(EF+4*D,2)}, v12 offset0:{16*D+3} offset1:{16*D+2}",
                                              f"ds_read2_b32 {vr(EF+4*D+2,2)}, v12 offset0:{16*D+1} offset1:{16*D}")]
        a.auto(True)
        emit(urd(0) + urd(1) + rdA(16, A16) + e2rd(0))
        for p in range(4):
            a(f"v_and_b32 v{A32+p}, s59, v{A32+p}")
        emit(pool2(0), e2rd(1) + [f"ds_read_b128 {vr(PA,4)}, v13", f"ds_read_b128 {vr(PB,4)}, v13 offset:1024"], per=1)
        emit(pool2(1), cvt(0, (0, 1)))
        emit(use2(0, 2, 4), cvt(1, (0, 1)))
        emit(use2(1, 2, 4) + pool3(0) + pool3(1), e2rd(2) + hand(2) + efrd + hand(3), per=2)
        a.auto(False)
        a.spin(F_H, 4, 10, sleep=1)
        a(f"s_setprio {E('GPA2', 3)}")
        a.auto(True)
        emit(urd(2) + urd(3) + use2(0, 4, 8) + use2(1, 4, 8), cvt(0, (2,)) + cvt(1, (2,)))
        emit(pool2(2) + use3(0) + use3(1))
        emit(pool2(3) + pool3(2), cvt(2, (0, 1)))
        emit(use2(2, 4, 8) + pool3(3), cvt(3, (0, 1)) + cvt(2, (2,)) + hand(4))
        emit(use2(3, 4, 8) + use3(2), cvt(3, (2,)) + ["s_nop 0"] * 4 + hand(5))
        emit(use3(3))
        a.auto(False)
        a.stamp(5)
        a(f"s_setprio {E('GPA3', 3)}")
        a.spin(F_H, 6, 10, sleep=1)
        a.auto(True)
        emit(urd(4) + urd(5) + pool2(4))
        emit(pool2(5), cvt(4, (0, 1)))
        emit(use2(4, 4, 8), cvt(5, (0, 1)))
        emit(use2(5, 4, 8) + hand(6) + hand(7))
        a.auto(False)
        a.stamp(7)
        if CLN:
            a("s_setprio 0")
            a(f"s_sub_u32 s13, s5, {NJH}")
            a("s_cmp_ge_u32 s13, 16")
            a("s_cbranch_scc1 C_NOCL")
            a(f"s_cmp_ge_u32 s12, {CLN}")
            a("s_cbranch_scc1 C_NOCL")
            a("s_lshl4_add_u32 s13, s12, s13")
            a("s_mul_i32 s13, s13, 36864")
            a("s_mul_i32 s14, s4, 144")
            a("s_add_u32 s13, s13, s14")
            a("v_lshrrev_b32 v5, 1, v2")
            a("v_mul_u32_u24 v5, 1152, v5")
            a("v_and_b32 v6, 1, v2")
            a("v_mul_u32_u24 v6, 140, v6")
            a("v_add3_u32 v5, v5, v6, s13")
            a("s_lshl_b32 s14, s12, 2")
            a(f"s_add_u32 s14, s14, {E('CLO', 8)}")
            a("s_min_u32 s14, s14, 20")
            a.spin(F_SG, "s14", 10, sleep=2)
            if E("CLD"):
                a(f"s_sleep {E('CLD')}")
            a(f"global_atomic_or v5, v1, {sr(P_OUT,2)} sc1")
            a.lab("C_NOCL")
        a.end()
        return
    a(f"s_setprio {E('GPB', 2)}")
    AF, BF, NB = 40, 104, 6
    acc = lambda t: 16 + 4 * (t % 3)
    a(f"v_subrev_u32 v8, {4*KTS}, v8")
    a("v_cmp_eq_u32 vcc, 0, v2")
    a(f"v_mov_b32 v13, {F_O}")
    a("v_cndmask_b32 v12, 0, 1, vcc")
    a("v_lshlrev_b32 v14, 2, v2")
    a(f"v_add_u32 v14, {PM+5120}, v14")
    a("v_cndmask_b32 v13, v14, v13, vcc")
    stage = {1: 0, 3: 1, 5: 2, 6: 3, 7: 4}

    PT = 32

    def yout(t):
        o = [f"v_add_f32 v{acc(t)+r}, v{acc(t)+r}, v{PT+r}" for r in range(4)] if t >= 2 else []
        o += [f"v_cvt_pk_bf16_f32 v30, v{acc(t)+3}, v{acc(t)+2}", f"v_cvt_pk_bf16_f32 v31, v{acc(t)+1}, v{acc(t)}",
              f"ds_write_b64 v7, v[30:31] offset:{512*(7-t)}"]
        if t in stage:
            o.append(f"ds_add_u32 v13, v12 offset:{4*stage[t]}")
        return o
    bf = lambda n: BF + 4 * (n % NB)
    rdn = lambda n: rdB(n >> 3, n & 7, bf(n))
    part = lambda t: [f"ds_read_b128 {vr(PT,4)}, v8 offset:{slot(t)}"] if t >= 2 else []
    a.auto(True)
    emit(rdA(0, AF) + [rdn(0)] + rdA(8, AF + 32) + [rdn(1)] + rdA(1, AF + 4) + rdA(9, AF + 36) + [rdn(2), rdn(3)])
    for b in range(8):
        y = yout(b - 1) if b else []
        for rho in range(8):
            n = 8 * b + rho
            f0, f1 = [], []
            if b == 0 and rho < 6:
                f0, f1 = rdA(rho + 2, AF + 4 * (rho + 2)), rdA(rho + 10, AF + 32 + 4 * (rho + 2))
            if b and rho in (2, 3):
                f0, f1, y = y[:2], y[2:4], y[4:]
            if rho == 4:
                f0 = f0 + [f"ds_read_b32 v28, v1 offset:{F_H}", f"ds_read_b32 v29, v9 offset:{F_I-F_PAIR}"]
            if rho == 5:
                f0 = f0 + part(b)
            if rho == 6:
                f1 = f1 + ["v_readfirstlane_b32 s9, v29"]
            if rho == 7:
                f0 = f0 + ["v_readfirstlane_b32 s8, v28", "s_add_u32 s9, s9, 2"]
                if b < 2:
                    f1 = f1 + [f"s_cmp_lt_u32 s8, {b+2}"]
                elif b < 7:
                    f1 = f1 + ["s_min_u32 s8, s8, s9", f"s_cmp_lt_u32 s8, {b+2}"]
                else:
                    f1 = f1 + ["s_cmp_lt_u32 s9, 9"]
            if n + 4 < 64:
                f1 = [rdn(n + 4)] + f1
            a(f"{M} {vr(acc(b),4)}, {vr(AF+4*rho,4)}, {vr(bf(n),4)}, {vr(acc(b),4) if n else 0}")
            emit(f0)
            if b < 7:
                a(f"{M} {vr(acc(b+1),4)}, {vr(AF+32+4*rho,4)}, {vr(bf(n),4)}, {vr(acc(b+1),4) if rho else 0}")
            emit(f1)
        a(f"s_cbranch_scc1 C_SLOW{b}")
        a.lab(f"KEEP_P{b}")
        if b == 3:
            a.stamp(5)
            if STAMP and E("CLK"):
                a("s_memtime s[82:83]")
    a.stamp(6)
    if STAMP and E("CLK"):
        a("s_memtime s[84:85]")
    emit(yout(7))
    a.auto(False)
    a.stamp(7)
    a(f"ds_read_b32 v10, v1 offset:{F_X}")
    a("s_cmp_eq_u32 s3, 4")
    a("s_cbranch_scc1 C_FIN")
    if WBM:
        a("s_cmp_lg_u32 s3, 5")
        a("s_cbranch_scc1 C_NOWB")
        if WBM == 2:
            a("s_and_b32 s8, s5, 3")
            a("s_cmp_lg_u32 s8, 0")
            a("s_cbranch_scc1 C_NOWB")
        a.spin(F_ST, 4, 10, sleep=1)
        if E("WBD"):
            a(f"s_sleep {E('WBD')}")
        a("buffer_wbl2 sc1")
        a("s_waitcnt vmcnt(0)")
        a.lab("C_NOWB")
    a.end()
    for b in range(8):
        a.lab(f"C_SLOW{b}")
        if b < 7:
            a.spin(F_H, b + 2, 28)
        if b >= 2:
            a.spin(f"v9 offset:{F_I-F_PAIR}", b, 28)
        for x in part(b) + ([rdn(8 * b + 8 + k) for k in range(4)] if b < 7 else []):
            a(x)
        a("s_waitcnt lgkmcnt(0)")
        a(f"s_branch KEEP_P{b}")


XD, GD = 40, 56
VX, VY, VG, VO = 72, 73, 74, 78


def epi_setup(a):
    srd(a, 60, P_OUT, 2359296)
    a("v_bfe_u32 v79, v2, 2, 2")
    a("v_and_b32 v80, 3, v2")
    a("v_lshl_add_u32 v80, v4, 2, v80")
    a("s_lshl_b32 s8, s12, 7")
    for d, base, stride in ((VX, UP, US), (VY, OP, OS)):
        a(f"v_mul_u32_u24 v{d}, {stride}, v79")
        a(f"v_lshl_add_u32 v{d}, v80, 3, v{d}")
        a(f"s_sub_u32 s9, {base+3968-512*7}, s8")
        a(f"v_add_u32 v{d}, s9, v{d}")
    a("v_xor_b32 v79, 63, v2")
    a("s_lshl_b32 s8, s12, 9")
    a(f"s_add_u32 s8, s8, {WS_G}")
    a(f"v_lshl_add_u32 v{VG}, v79, 3, s8")
    for k in range(1, 4):
        a(f"v_add_u32 v{VG+k}, {4096*k}, v{VG}")
    a(f"v_mul_u32_u24 v{VO}, 1152, v79")
    a(f"v_add_u32 v{VO}, s55, v{VO}")
    a("s_mul_i32 s68, s12, 73728")
    if RS:
        a(f"s_sub_u32 s8, s5, {NJH}")
        a("s_lshl_b32 s9, s4, 1")
        a("s_sub_u32 s13, 16, s9")
        a("s_cmp_lt_u32 s8, s13")
        a("s_cselect_b32 s14, 0, s13")
        a("s_sub_u32 s8, s8, s14")
        a("s_add_u32 s9, s9, 2")
        a("s_cmp_eq_u32 s14, 0")
        a("s_cselect_b32 s13, s13, s9")
        a("v_cvt_f32_u32 v85, s13")
        a("v_rcp_f32 v85, v85")
        a("v_cvt_f32_u32 v86, v2")
        a("v_add_f32 v86, 0.5, v86")
        a("v_mul_f32 v85, v85, v86")
        a("v_cvt_u32_f32 v85, v85")
        a("v_mul_u32_u24 v85, s13, v85")
        a("v_sub_u32 v85, v2, v85")
        a("v_cmp_eq_u32 s[66:67], s8, v85")
        a("s_mov_b32 s69, s68")
    a("s_mov_b32 s70, 0x05040100")
    a("s_mov_b32 s71, 0x07060302")


def epi_x(a, ks):
    for k in ks:
        a(f"ds_read_b64_tr_b16 {vr(XD+2*k,2)}, v{VX} offset:{512*(7-k)}")


def epi_g(a):
    l = a.uid("GP")
    a("s_mov_b32 s9, 0")
    a.lab(l)
    a(f"v_xor_b32 v14, v{GD+1}, v10")
    for k in range(1, 8):
        a(f"v_bitop3_b32 v14, v14, v{GD+2*k+1}, v10 bitop3:0xf6")
    a("v_cmp_ne_u32 vcc, 0, v14")
    a("s_add_u32 s9, s9, 1")
    a("s_cmp_eq_u64 vcc, 0")
    a(f"s_cbranch_scc1 {l}_D")
    a(f"s_cmp_ge_u32 s9, {SPIN}")
    a(f"s_cbranch_scc1 {l}_D")
    epi_gl(a)
    a("s_waitcnt vmcnt(0)")
    a(f"s_branch {l}")
    a.lab(l + "_D")


def epi_gl(a):
    for k in range(8):
        a(f"global_load_dwordx2 {vr(GD+2*k,2)}, v{VG+(k>>1)}, {sr(P_WS,2)} offset:{2048*(k&1)} sc1")


TX = 120


def epi_unp(a, ks):
    for k in ks:
        if k < NF:
            for p in range(2):
                a(f"v_lshlrev_b32 v{TX+4*k+2*p}, 16, v{XD+2*k+p}")
                a(f"v_and_b32 v{TX+4*k+2*p+1}, 0xffff0000, v{XD+2*k+p}")


def epi_mul(a, ks):
    for k in ks:
        if k < NF:
            a(f"v_and_b32 v{16+(k&3)}, 0xffff0000, v{GD+2*k}")
            a(f"v_lshlrev_b32 v{GD+2*k+1}, 16, v{GD+2*k}")
            for c in range(4):
                a(f"v_mul_f32 v{TX+4*k+c}, v{TX+4*k+c}, v{16+(k&3)}")


def restore(a, ks):
    if not RS:
        return
    a("s_mov_b64 exec, s[66:67]")
    for k in ks:
        a(f"buffer_store_dwordx2 {vr(XD+2*k,2)}, v{VO}, s[60:63], s69 offen {RS}")
        a("s_add_u32 s69, s69, 294912")
    a("s_mov_b64 exec, -1")


def epi_fin(a, ks, stage):
    a.spin(F_O + 4 * stage, 4, 15, sleep=E("OSL", 1), prio=E("IOP", 3))
    a.auto(True)
    Y = 16
    for n, k in enumerate(ks):
        a(f"ds_read_b64_tr_b16 {vr(Y+2*n,2)}, v{VY} offset:{512*(7-k)}")
    for n0 in range(0, len(ks), 2):
        pr = [(n, ks[n], 24 + 4 * n) for n in (n0, n0 + 1) if n < len(ks)]
        if ks[n0] < NF:
            for n, k, R in pr:
                for p in range(2):
                    a(f"v_lshlrev_b32 v{R+2*p}, 16, v{Y+2*n+p}")
                    a(f"v_and_b32 v{R+2*p+1}, 0xffff0000, v{Y+2*n+p}")
                for c in range(4):
                    a(f"v_fma_f32 v{R+c}, v{R+c}, v{GD+2*k+1}, v{TX+4*k+c}")
        else:
            for n, k, R in pr:
                for c in range(4):
                    a(f"v_perm_b32 v{R+c}, v{XD+2*k+(c>>1)}, v{Y+2*n+(c>>1)}, s{70+(c&1)}")
            for n, k, R in pr:
                for c in range(4):
                    a(f"v_dot2_f32_bf16 v{R+c}, v{R+c}, v{GD+2*k}, 0")
        for n, k, R in pr:
            for p in range(2):
                a(f"v_cvt_pk_bf16_f32 v{XD+2*k+p}, v{R+2*p}, v{R+2*p+1}")
            if not E("NOST"):
                a(f"buffer_store_dwordx2 {vr(XD+2*k,2)}, v{VO}, s[60:63], s68 offen")
            a("s_add_u32 s68, s68, 294912")
    a.auto(False)


def burst_addr(a):
    a(f"s_sub_u32 s9, s5, {NJH}")
    if GORD:
        a("s_mul_i32 s9, s9, 3")
        a("s_min_u32 s8, s12, 2")
        a("s_add_u32 s9, s9, s8")
        a("s_mul_i32 s9, s9, 12288")
        a("s_mul_i32 s8, s4, 663552")
        a("s_add_u32 s8, s8, s9")
        a("v_lshl_add_u32 v88, v2, 7, s8")
        a("v_min_u32 v89, 31, v2")
        a("v_lshl_add_u32 v89, v89, 7, s8")
        a("v_add_u32 v89, 8192, v89")
        return
    a("s_lshl_b32 s9, s9, 2")
    a("s_add_u32 s9, s9, s12")
    a("s_mul_i32 s9, s9, 9216")
    a("s_mul_i32 s8, s4, 663552")
    a("s_add_u32 s8, s8, s9")
    if BL == 72:
        a("v_lshl_add_u32 v88, v2, 7, s8")
        a("v_min_u32 v89, 7, v2")
        a("v_lshl_add_u32 v89, v89, 7, s8")
        a("v_add_u32 v89, 8192, v89")
    else:
        a(f"s_add_u32 s8, s8, {128*(72-BL)}")
        a(f"v_min_u32 v88, {BL-1}, v2")
        a("v_lshl_add_u32 v88, v88, 7, s8")


def burst(a):
    if BSN:
        for k in range(NBI):
            a(f"global_load_dword v{96+k}, v{88+k}, {sr(P_WD,2)}")


def io_common(a):
    a("s_mul_i32 s7, s4, 18")
    a("s_add_u32 s7, s7, s5")
    a(f"s_sub_u32 s7, s7, {NJH}")
    a("s_lshl_b32 s55, s7, 3")
    a("s_sub_u32 s12, s3, 8")
    epi_setup(a)
    burst_addr(a)


def uloader(a):
    a.lab("C_LOAD")
    a("s_setprio 3")
    a(f"s_sub_u32 s13, s5, {NJH}")
    pf = stripe_pf(a)
    pf2 = []
    if PF2AT >= 0:
        pf, pf2 = pf[:2], [x.replace("v10,", "v98,").replace("v11,", "v99,") for x in pf[2:]]
    a("v_mul_u32_u24 v6, 4608, v2")
    a("s_lshl_b32 s8, s7, 3")
    a("v_add_u32 v6, s8, v6")
    a("v_lshlrev_b32 v7, 3, v2")
    a(f"v_sub_u32 v7, {UP+4088-512*7}, v7")
    a("s_mov_b32 s56, 0x05040100")
    a("s_mov_b32 s58, 0x07060302")
    a("s_mov_b32 s57, s13")
    a("s_waitcnt lgkmcnt(0)")
    if E("PFE", 0):
        for x in pf:
            a(x)
    srd(a, 72, P_U, 2359296)
    if not E("CNG"):
        a.b0(12)
    if E("CDL"):
        a(f"s_sleep {E('CDL')}")
    if E("PFX"):
        a.spin(F_X, 0, 12, op="lg")
    if not E("PFE", 0):
        for k, x in enumerate(pf):
            if k == 2 and E("PF2"):
                a("s_waitcnt vmcnt(0)")
            a(x)
    io_common(a)
    for j in range(4):
        a(f"v_mov_b32 v{24+j}, 0")
    a("v_lshrrev_b32 v28, 2, v2")
    a(f"v_mul_u32_u24 v28, {CS}, v28")
    a(f"v_add_u32 v28, {KC}, v28")
    a("v_and_b32 v29, 3, v2")
    a("v_lshl_add_u32 v30, v29, 4, v28")
    a("ds_write_b128 v30, v[24:27] offset:1072")
    a("v_and_b32 v29, 1, v2")
    a("v_lshl_add_u32 v30, v29, 4, v28")
    a("ds_write_b128 v30, v[24:27]")
    a("v_lshrrev_b32 v28, 5, v2")
    a(f"v_mul_u32_u24 v28, {US}, v28")
    a("v_and_b32 v29, 31, v2")
    a("v_lshl_add_u32 v30, v29, 4, v28")
    a(f"v_add_u32 v30, {UP+4096}, v30")
    a("ds_write_b128 v30, v[24:27]")
    a(f"ds_write_b128 v30, v[24:27] offset:{2*US}")
    a("s_mov_b32 s15, 0")
    if ROT:
        for k in range(4):
            a(f"s_add_u32 s8, s57, {k}")
            a("s_and_b32 s8, s8, 3")
            a(f"s_mul_i32 s{76+k}, s8, 294912")
            a(f"s_add_u32 s{64+k}, s{76+k}, {4*294912}")
            a("s_lshl_b32 s8, s8, 9")
            a(f"v_subrev_u32 v{32+k}, s8, v7")
    a("v_mov_b32 v12, 1")
    a(f"s_waitcnt vmcnt({E('UW', 2 if PF2AT < 0 else 0)})")
    a.stamp(7)
    U = 104

    def issue(i):
        if not NOU:
            so = f"s{(76 if i < 16 else 64) + ((i >> 2) & 3)}" if ROT else "s15"
            a(f"buffer_load_dwordx2 {vr(U+2*i,2)}, v6, s[72:75], {so} offen offset:{1152*(i&3)}")
        if i & 3 == 3:
            a("s_add_u32 s15, s15, 294912")
        if i == PF2AT:
            for x in pf2:
                a(x)
        if i == GAT:
            a(f"ds_write_b32 v1, v12 offset:{F_UI}")
            epi_gl(a)
        if i == BST:
            if GAT != BST:
                a(f"ds_write_b32 v1, v12 offset:{F_BU}")
            if not BLATE and not GORD:
                burst(a)
    a.auto(True)
    nis = 0
    for i in range(32):
        while nis < min(32, i + WIN_U):
            issue(nis); nis += 1
        a(f"@need {vr(U+2*i,2)}")
        if i & 3 == 3:
            while nis < min(32, i + 1 + WIN_U):
                issue(nis); nis += 1
            t, u, o = i >> 2, U + 2 * (i - 3), 16 + 8 * ((i >> 2) & 1)
            for ch in range(4):
                sel = "s58" if ch & 1 else "s56"
                a(f"v_perm_b32 v{o+2*ch}, v{u+4+(ch>>1)}, v{u+6+(ch>>1)}, {sel}")
                a(f"v_perm_b32 v{o+2*ch+1}, v{u+(ch>>1)}, v{u+2+(ch>>1)}, {sel}")
                if ROT:
                    a(f"ds_write_b64 v{32+(t&3)}, {vr(o+2*ch,2)} offset:{ch*US+512*(7-(t&4))}")
                else:
                    a(f"ds_write_b64 v7, {vr(o+2*ch,2)} offset:{ch*US+512*(7-t)}")
        if i == 3:
            a.stamp(8)
        if i & 3 == 3:
            a(f"v_mov_b32 v36, {(i>>2)+1}")
            a(f"ds_write_b32 v1, v36 offset:{F_H}")
        if i & 15 == 15:
            a.stamp(2 - (i >> 4))
    a.auto(False)
    epi_x(a, range(4))
    a.spin(F_X, 0, 10, op="lg")
    epi_unp(a, range(4))
    if GORD:
        a("s_waitcnt vmcnt(0)")
    a("s_branch C_IO3")
    a.lab("C_IO")
    io_common(a)
    a.spin(F_X, 0, 10, op="lg")
    if BST < GAT:
        a.spin(F_BU, 1, 12, prio=E("IOP", 3), sleep=1)
        burst(a)
    a.spin(F_H, 4, 12, prio=E("IOP", 3), sleep=E("OSL2", 2))
    epi_x(a, range(4))
    a("s_waitcnt lgkmcnt(0)")
    epi_unp(a, range(4))
    a.spin(F_UI, 1, 12, prio=E("IOP", 3), sleep=E("OSL2", 1))
    epi_gl(a)
    if BST < GAT:
        a("s_waitcnt vmcnt(0)")
    else:
        if GAT != BST:
            a.spin(F_BU, 1, 12, prio=3, sleep=1)
        if GORD:
            a.signal(F_GI, 12)
            a.spin(F_GI, 3, 12)
        if not BLATE:
            burst(a)
        if GORD:
            a(f"s_waitcnt vmcnt({NBI})")
    a.lab("C_IO3")
    a(f"s_waitcnt vmcnt({NBI if BSN and not BLATE else 0})")
    if BLATE == 1:
        burst(a)
    epi_g(a)
    epi_mul(a, range(4))
    a.stamp(3)
    epi_fin(a, [0, 1], 0)
    if CLN:
        a.signal(F_SG, 8)
    epi_fin(a, [2, 3], 1)
    if CLN:
        a.signal(F_SG, 8)
    a.spin(F_H, 8, 12)
    epi_x(a, range(4, 8))
    if NF > 4:
        a("s_waitcnt lgkmcnt(0)")
    epi_unp(a, range(4, 8))
    epi_mul(a, range(4, 8))
    a("s_lshl_b32 s8, s12, 8")
    a(f"s_sub_u32 s8, {OM+7936-1024*7}, s8")
    a("v_lshl_add_u32 v14, v2, 2, s8")
    for k in range(8):
        a(f"ds_write_b32 v14, v{GD+2*k} offset:{1024*(7-k)}")
    a.stamp(4)
    epi_fin(a, [4, 5], 2)
    if RSL == 1:
        restore(a, [0, 1])
    if CLN:
        a.signal(F_SG, 8)
    a.stamp(5)
    if E("L2"):
        epi_fin(a, [6, 7], 4)
    else:
        epi_fin(a, [6], 3)
        epi_fin(a, [7], 4)
    if RSL == 1:
        restore(a, [2, 3][:E("RSN", 8)-2])
    if RSL == 2:
        restore(a, list(range(E("RSN", 8)))[:4])
    a.signal(F_SI, 8)
    if CLN:
        a.signal(F_SG, 8)
    a.stamp(6)
    a("s_waitcnt vmcnt(0)")
    if RS and RSL == 0:
        a("s_sleep 80")
        restore(a, range(8))
        a("s_waitcnt vmcnt(0)")
    elif RS and E("RSN", 8) > 4:
        restore(a, range(4, E("RSN", 8)))
        a("s_waitcnt vmcnt(0)")
    a.signal(F_ST, 8)
    if CLN:
        a.signal(F_SG, 8)
    a.end()
    a.lab("C_FIN")
    Z = 104
    a("s_setprio 0")
    a("v_and_b32 v8, 7, v2")
    a("v_lshlrev_b32 v8, 3, v8")
    a(f"v_add_u32 v8, {WS_SEL}, v8")
    a("s_mul_i32 s8, s7, 9216")
    a(f"s_add_u32 s8, s8, {WS_MB}")
    a("v_lshl_add_u32 v5, v2, 4, s8")
    a("v_add_u32 v6, 0x1000, v5")
    a("v_add_u32 v7, 0x2000, v5")
    a("v_and_b32 v19, 1, v4")
    a("v_lshrrev_b32 v20, 1, v4")
    a("v_lshl_or_b32 v19, v19, 1, v20")
    a(f"v_mul_u32_u24 v12, {US}, v19")
    a(f"v_add_u32 v12, {UP}, v12")
    a(f"v_mul_u32_u24 v13, {OS}, v19")
    a(f"v_add_u32 v13, {OP}, v13")
    a(f"s_add_u32 s8, s55, {2047*1152}")
    a("v_lshl_add_u32 v14, v19, 1, s8")
    a("s_waitcnt lgkmcnt(0)")
    for j in range(4):
        a(f"v_bfe_u32 v{Z+6+j}, v10, {8*j}, 8")
    MB = 120
    if FT:
        a.spin(F_O + 16, 4, 26, sleep=1, prio=3)
        if FT > 1:
            a(f"s_sleep {FT}")
    else:
        a.spin(F_SI, E("SI", 4), 26, sleep=1, prio=3)
    a.stamp(5)
    a("s_mov_b32 s9, 0")
    a.lab("C_MPOLL")
    a(f"global_load_dwordx2 v[16:17], v8, {sr(P_WS,2)} sc1")
    for i in range(9):
        a(f"global_load_dwordx4 {vr(MB+4*i,4)}, v{5+(i>>2)}, {sr(P_WS,2)} offset:{1024*(i&3)} sc1")
    a("s_waitcnt vmcnt(9)")
    a("v_and_b32 v22, 0x7ff, v16")
    a("v_lshl_add_u32 v23, v22, 1, v12")
    a(f"ds_read_u16 v{Z+1}, v23")
    a("v_lshl_add_u32 v23, v22, 1, v13")
    a(f"ds_read_u16 v{Z+3}, v23")
    a("v_lshlrev_b32 v23, 2, v22")
    a(f"v_add_u32 v23, {OM}, v23")
    if not (FT or E("SI", 4) < 4):
        a("ds_read_b32 v24, v23")
    a("v_and_b32 v20, 0xffff0000, v16")
    a("v_ashrrev_i32 v21, 31, v20")
    a("v_not_b32 v21, v21")
    a("v_or_b32 v21, 0x80000000, v21")
    a("v_and_b32 v21, 0xffff0000, v21")
    a("v_xor_b32 v20, v20, v21")
    sigmoid_f32(a, Z, 20, 21)
    rb(a, Z)
    a(f"v_mul_u32_u24 v{Z+4}, 1152, v22")
    a(f"v_sub_u32 v{Z+4}, v14, v{Z+4}")
    a("s_waitcnt lgkmcnt(0)")
    a(f"v_lshlrev_b32 v{Z+1}, 16, v{Z+1}")
    for i in range(9):
        a(f"s_waitcnt vmcnt({8-i})")
        for j in range(4):
            a(f"v_xor_b32 v{MB+4*i+j}, v{MB+4*i+j}, v{Z+6+j}")
        a(f"v_or3_b32 v26, v{MB+4*i}, v{MB+4*i+1}, {'v26' if i else '0'}")
        a(f"v_or3_b32 v26, v{MB+4*i+2}, v{MB+4*i+3}, v26")
        if i:
            for p in range(2):
                a(f"v_pk_add_f32 {vr(28+2*p,2)}, {vr(28+2*p if i > 1 else MB+2*p,2)}, {vr(MB+4*i+2*p,2)}")
    a("v_and_b32 v26, 0xff, v26")
    a("v_bitop3_b32 v26, v26, v17, v10 bitop3:0xf6")
    a("v_cmp_ne_u32 vcc, 0, v26")
    a("s_add_u32 s9, s9, 1")
    a("s_cmp_eq_u64 vcc, 0")
    a("s_cbranch_scc1 C_MOK")
    a(f"s_cmp_lt_u32 s9, {SPIN}")
    a("s_cbranch_scc1 C_MPOLL")
    a.lab("C_MOK")
    if STAMP:
        a("s_mov_b32 s82, s9")
    a.stamp(8)
    a("v_permlane32_swap_b32 v28, v29")
    a("v_permlane32_swap_b32 v30, v31")
    a("v_add_f32 v28, v28, v29")
    a("v_add_f32 v30, v30, v31")
    a("v_permlane16_swap_b32 v28, v30")
    a("v_add_f32 v28, v28, v30")
    a(f"v_add_f32_dpp v28, v28, v28 row_ror:8 {DPPF}")
    rb(a, 28)
    a(f"v_mul_f32 v28, v28, v{Z}")
    rb(a, 28)
    a(f"v_add_f32 v28, v28, v{Z+1}")
    rb(a, 28)
    a(f"v_or_b32 v28, v28, v{Z+3}")
    if FT or E("SI", 4) < 4:
        a.spin(F_SI, 4, 27)
        a("ds_read_b32 v24, v23")
        a("s_waitcnt lgkmcnt(0)")
    a("v_dot2_f32_bf16 v28, v28, v24, 0")
    a("v_cvt_pk_bf16_f32 v28, v28, v28")
    a.spin(F_ST, 4, 27)
    a("s_mov_b32 exec_lo, 0x00ff00ff")
    a("s_mov_b32 exec_hi, 0x00ff00ff")
    a(f"global_store_short v{Z+4}, v28, {sr(P_OUT,2)}{' sc1' if WBM or CLN or RS else ''}")
    a("s_mov_b64 exec, -1")
    a.end()


def kernel(a):
    a.raw(".p2align 8")
    a.raw(".globl k1_kernel")
    a.raw(".type k1_kernel,@function")
    a.lab("k1_kernel")
    a.stamp(20)
    if STAMP == 3:
        a("s_memrealtime s[80:81]")
    a("v_and_b32 v2, 63, v0")
    a("v_mov_b32 v1, 0")
    a("v_lshlrev_b32 v3, 2, v2")
    a("ds_write_b32 v3, v1")
    a("s_lshr_b32 s5, s2, 3")
    if CODEPF:
        a("v_lshlrev_b32 v8, 7, v0")
        a(f"s_cmp_lg_u32 s5, {NJF}")
        a("s_cbranch_scc1 K_NOCPF")
        a("s_getpc_b64 s[8:9]")
        a("v_min_u32 v8, CODE_END-k1_kernel-64, v8")
        a("global_load_dword v160, v8, s[8:9]")
        a.lab("K_NOCPF")
    a("s_waitcnt lgkmcnt(0)")
    a("s_load_dwordx16 s[16:31], s[0:1], 0")
    a("s_load_dwordx16 s[32:47], s[0:1], 64")
    a("s_load_dwordx4 s[48:51], s[0:1], 128")
    if STAMP in (1, 2):
        for i in range(1, 10):
            a(f"s_mov_b32 s{80+2*i}, 0")
    if PROBE and PROBE != "kernel:20" and not os.environ.get("PW"):
        a("s_mov_b32 s98, 0")
    a.stamp(0)
    a("v_lshrrev_b32 v4, 6, v0")
    if STAMP == 3:
        a("s_barrier")
        a("v_readfirstlane_b32 s3, v4")
    else:
        a("s_cmp_ge_u32 s5, 32")
        a("v_readfirstlane_b32 s3, v4")
        a("s_cbranch_scc1 K_END")
        a("s_barrier")
    a("s_cmp_eq_u32 s3, 8")
    a("s_cbranch_scc1 ROUTER")
    a(f"s_cmp_lt_u32 s5, {NJH}")
    a("s_cbranch_scc1 K_OTHER")
    a("s_cmp_ge_u32 s3, 8")
    a("s_cbranch_scc1 K_CIO")
    kgen_head(a)
    router(a)
    a.raw(".p2align 7")
    a.lab("K_OTHER")
    a("v_and_b32 v3, 15, v2")
    a("v_lshrrev_b32 v4, 4, v2")
    a("s_and_b32 s4, s2, 7")
    a("s_mul_i32 s7, s4, 9")
    a("s_add_u32 s7, s7, s5")
    a("s_mov_b32 s12, s3")
    a("s_cmp_lt_u32 s3, 2")
    a("s_cbranch_scc1 GATE")
    a(f"s_cmp_ge_u32 s5, {NJF}")
    a("s_cbranch_scc1 HELPER")
    a("s_cmp_lt_u32 s3, 8")
    a("s_cbranch_scc1 F_COMP")
    ffn_loader(a)
    a.raw(".p2align 7")
    a.lab("K_CIO")
    a("v_and_b32 v3, 15, v2")
    a("v_lshrrev_b32 v4, 4, v2")
    a("s_and_b32 s4, s2, 7")
    a("s_mul_i32 s7, s4, 18")
    a("s_add_u32 s7, s7, s5")
    a(f"s_sub_u32 s7, s7, {NJH}")
    a("s_sub_u32 s12, s3, 9")
    a("s_cmp_lg_u32 s3, 11")
    a("s_cbranch_scc1 C_CONST")
    uloader(a)
    a.lab("C_CONST")
    a("v_lshl_add_u32 v14, v4, 3, v3")
    a("v_sub_u32 v14, 39, v14")
    a("s_lshl_b32 s8, s12, 11")
    a(f"s_add_u32 s8, s8, {PM}")
    a("v_lshl_add_u32 v15, v2, 4, s8")
    W = [(0x7f, 19), (0x1ff, 20), (0x7, 21), (0x1f, 18), (0x3, 21)]
    for k in range(3):
        a("s_cmp_eq_u32 s12, 0")
        a(f"s_cselect_b32 s8, {W[k][0]}, {W[k+2][0]}")
        a(f"s_cselect_b32 s9, {W[k][1]}, {W[k+2][1]}")
        a("s_movk_i32 s11, 0x3f80")
        if k == 2:
            a("s_cselect_b32 s11, s11, 0xffff")
        a("s_lshl_b32 s13, s11, 16")
        a("v_mov_b32 v10, s8")
        a("v_mov_b32 v11, 0")
        a("v_lshlrev_b64 v[10:11], v14, v[10:11]")
        a("v_alignbit_b32 v10, v11, v10, s9")
        for p in range(4):
            a(f"v_bfe_i32 v11, v10, {2*p}, 1")
            a(f"v_bfe_i32 v12, v10, {2*p+1}, 1")
            a("v_and_b32 v11, s11, v11")
            a(f"v_and_or_b32 v{16+4*k+p}, v12, s13, v11")
        a(f"ds_write_b128 v15, {vr(16+4*k,4)} offset:{1024*k}")
    a.signal(F_PM, 10)
    a("s_branch GATE")
    helper(a)
    gate(a)
    kgen(a)
    select(a)
    ffn_comp(a)
    if STAMP:
        a.lab("STAMP_OUT")
        a("s_memrealtime s[98:99]")
        a("s_waitcnt lgkmcnt(0)")
        a("s_lshl_b32 s8, s2, 4")
        a("s_add_u32 s8, s8, s3")
        a("s_lshl_b32 s8, s8, 6")
        a(f"s_add_u32 s8, s8, {WS_STAMP}")
        a("v_mov_b32 v5, s8")
        for i in ((0, 9) if STAMP == 3 else range(10)):
            a(f"v_mov_b32 v6, s{80+2*i}")
            a(f"global_store_dword v5, v6, {sr(P_WS,2)} offset:{4*i}")
    if PROBE:
        a.lab("PADTAIL")
        a("s_waitcnt vmcnt(0) lgkmcnt(0)")
        if os.environ.get("PCL"):
            op = os.environ["PCL"].replace("_", " ")
            a("s_cmp_lg_u32 s3, 5")
            a("s_cbranch_scc1 PADNC")
            a(f"s_sub_u32 s8, s5, {NJH}")
            a("s_cmp_ge_u32 s8, 16")
            a("s_cbranch_scc1 PADNC")
            a("s_sleep 100")
            a("s_mul_i32 s8, s8, 147456")
            a("s_mul_i32 s9, s4, 144")
            a("s_add_u32 s8, s8, s9")
            a("v_mul_u32_u24 v5, 1152, v2")
            a("v_add_u32 v5, s8, v5")
            a("v_add_u32 v6, 73728, v5")
            a("v_mov_b32 v12, 0")
            for k, (v, off) in enumerate(((5, 0), (5, 140), (6, 0), (6, 140))):
                if op.startswith("ld"):
                    a(f"global_load_dword v{8+k}, v{v}, {sr(P_OUT,2)} offset:{off} {op[2:]}")
                elif op.startswith("st"):
                    a(f"global_load_dword v{8+k}, v{v}, {sr(P_OUT,2)} offset:{off} sc1")
                    a("s_waitcnt vmcnt(0)")
                    a(f"global_store_dword v{v}, v{8+k}, {sr(P_OUT,2)} offset:{off} {op[2:]}")
                else:
                    a(f"global_atomic_or v{v}, v12, {sr(P_OUT,2)} offset:{off} {op[2:]}")
            a("s_waitcnt vmcnt(0)")
            a.lab("PADNC")
        if E("PWB"):
            a("s_cmp_lg_u32 s3, 4")
            a("s_cbranch_scc1 PADNW")
            a("s_sleep 60")
            a("buffer_wbl2 sc1")
            a("s_waitcnt vmcnt(0)")
            a.lab("PADNW")
        if os.environ.get("PW"):
            wl, wh, jl, jh = map(int, os.environ["PW"].split(","))
            for r, lo, hi in (("s3", wl, wh), ("s5", jl, jh)):
                a(f"s_cmp_lt_u32 {r}, {lo}")
                a("s_cbranch_scc1 K_END")
                a(f"s_cmp_gt_u32 {r}, {hi}")
                a("s_cbranch_scc1 K_END")
        else:
            a("s_cmp_eq_u32 s98, 0")
            a("s_cbranch_scc1 K_END")
        a("s_setprio 0")
        a.lab("PADL")
        a("s_sleep 3")
        a("s_memrealtime s[96:97]")
        a("s_waitcnt lgkmcnt(0)")
        a("s_sub_u32 s96, s96, s98")
        a("s_cmp_lt_u32 s96, 2000")
        a("s_cbranch_scc1 PADL")
    a.lab("K_END")
    a("s_endpgm")
    a.lab("CODE_END")


def main():
    ref = open(os.path.join(HERE, NAME + ".s.ref")).read().splitlines()
    head = [l for l in ref if l.startswith(";") and "@launch" not in l and "Override" not in l and "grid=ceil" not in l]
    a = G()
    kernel(a)
    out = head + [
        f"; @launch kernel=k1_kernel grid=(256,1,1) block=(768,1,1) lds={LDS}",
        '.amdgcn_target "amdgcn-amd-amdhsa--gfx950"',
        ".text",
    ] + a.finish() + [
        '.section .rodata,"a"',
        ".p2align 6",
        ".amdhsa_kernel k1_kernel",
        "  .amdhsa_next_free_vgpr 168",
        "  .amdhsa_next_free_sgpr 102",
        "  .amdhsa_accum_offset 168",
        "  .amdhsa_group_segment_fixed_size 0",
        "  .amdhsa_kernarg_size 144",
        "  .amdhsa_user_sgpr_count 2",
        "  .amdhsa_user_sgpr_kernarg_segment_ptr 1",
        "  .amdhsa_system_sgpr_workgroup_id_x 1",
        ".end_amdhsa_kernel",
    ]
    path = sys.argv[1] if len(sys.argv) > 1 else os.path.join(HERE, NAME + ".s")
    open(path, "w").write("\n".join(out) + "\n")


if __name__ == "__main__":
    main()
```

```python
import sys, os
from asmlib import *

NAME = "gated_mix__ssm_conv_s4__moe_arch_mod__prompt"
HERE = os.path.dirname(os.path.abspath(__file__))
E = lambda k, d=0: int(os.environ.get(k, d))
STAMP = E("STAMP")
PROBE = os.environ.get("PROBE", "")
CODEPF = E("CODEPF", 1)
SELD = E("SELD", 16)
GORD = E("GORD", 1)
NF = E("NF", 4)
FT = E("FT", 0)
RDIR = E("RDIR", 2)
GAT = E("GAT", 31)
BL = E("BL", 72)
NBI = 2 if BL == 72 else 1
BLATE = E("BLATE", 0)
KS = E("KS", 32)
WS_KEY2 = 2 << 20
PF2AT = E("PF2AT", -1)
ROT = 0
C3 = E("C3", 28)
WNT = os.environ.get("WNT", "")
POLLF = os.environ.get("POLLF", "sc1").replace("_", " ")
PUBF = os.environ.get("PUBF", "sc1").replace("_", " ")
PFW = E("PFW", 1)
HPN = E("HPN", 3)
HPS = E("HPS", 53)
HPW = E("HPW", 4)
PSTEP = 5 * HPW // 2
BST = E("BST", 31)
BSN = E("BSN", 5)
WIN_U = E("WIN_U", 6)
WIN_F = E("WIN_F", 10)
HOLD = E("HOLD")
FINE = E("FINE")
NOU = E("NOU")
NOW = E("NOW")

WS_KEY, WS_SEL, WS_BASE, WS_G, WS_MB = 0, 8192, 8448, 16384, 32768
WS_STAMP = 4 << 20
WS_SIZE = 0x10000000

SMALL = E("SMALL")
LDS = 120320 if SMALL else 163840
F_NONCE, F_PAIR, F_ST, F_I, F_K, F_H, F_O = 0, 16, 40, 48, 64, 80, 96
F_L, F_D, F_AC, F_XR, F_HR, F_PI = 16, 40, 48, 84, 88, 92
KT = 256
KTS = 4608
TS = 288
OS = 4160
KC = KT + 8 * KTS
CS = 1216
UP = KC + 16 * CS
US = 4672
OM = UP + 4 * US
OP = OM + 8192
PM = OP + 4 * OS
assert PM + 5120 + 512 <= 147712 and OP % 16 == 0
WA = 256
WB = WA + 73728
XB = 106496 if SMALL else WB + 73728
assert PM + 5632 <= XB
HB = XB + 9216
HS = 144
GW = HB + 9 * HS
assert GW + 2048 <= LDS and GW % 16 == 0
F_X, F_GD, F_RI, F_SI, F_UI, F_BU, F_PM, F_GI = 8, 12, 4, 44, 88, 92, 32, 36

L2E = 0x3fb8aa3b
L2E_LO = 0x32a57060
LN2 = 0x3f317218
INV2PI = 0x3e22f983

P_U, P_ARE, P_AIM, P_BRE, P_BIM, P_CRE, P_CIM, P_LDT = 16, 18, 20, 22, 24, 26, 28, 30
P_DSK, P_BX, P_WR, P_WG, P_WU, P_WD, P_GW, P_OUT = 32, 34, 36, 38, 40, 42, 44, 46
P_DBG, P_WS = 48, 50
NJF, NJH = 9, 14
SPIN = 0x20000

DPPF = "row_mask:0xf bank_mask:0xf"


class G(Asm):
    nlab = 0

    def stamp(s, i):
        if PROBE:
            import inspect
            fn = inspect.stack()[1].function
            if fn == "pre":
                fn = "ffn_loader"
            if f"{fn}:{i}" == PROBE:
                s("s_memrealtime s[98:99]")
        if i >= 20 or STAMP == 3:
            return
        if STAMP == 2:
            import inspect
            fn = inspect.stack()[1].function
            if not (i == 0 or (fn, i) in (("down", 6), ("uloader", 5), ("uloader", 6), ("select", 5), ("gphase", 7))):
                return
        if STAMP and not (FINE and i >= 6):
            s(f"s_memrealtime s[{80+2*i}:{81+2*i}]")

    def fine(s, i):
        if STAMP and FINE:
            s(f"s_memrealtime s[{80+2*i}:{81+2*i}]")

    def b0(s, wait=None):
        if E("OLDB0"):
            s("s_barrier")
        elif wait is not None:
            s.spin(F_RI, 1, wait)

    def end(s):
        s("s_branch STAMP_OUT" if STAMP else "s_branch PADTAIL" if PROBE else "s_endpgm")

    def uid(s, p):
        G.nlab += 1
        return f"{p}_{G.nlab}"

    def spin(s, off, target, tv, sleep=0, op="ge", prio=None):
        l = s.uid("SP")
        if prio is not None:
            s(f"s_setprio {E('SPP', 3) if sleep else 0}")
        s("s_mov_b32 s9, 0")
        s.lab(l)
        s(f"ds_read_b32 v{tv}, v1 offset:{off}") if isinstance(off, int) else s(f"ds_read_b32 v{tv}, {off}")
        s("s_waitcnt lgkmcnt(0)")
        s(f"v_readfirstlane_b32 s8, v{tv}")
        s("s_add_u32 s9, s9, 1")
        s(f"s_cmp_{op}_u32 s8, {target}")
        s(f"s_cbranch_scc1 {l}_D")
        if sleep:
            s(f"s_sleep {sleep * E('SLM', 1)}")
        s(f"s_cmp_lt_u32 s9, {SPIN*4}")
        s(f"s_cbranch_scc1 {l}")
        s.lab(l + "_D")
        if prio is not None:
            s(f"s_setprio {prio}")

    def signal(s, off, tv):
        s(f"v_mov_b32 v{tv}, 1")
        s("s_mov_b64 exec, 1")
        s(f"ds_add_u32 v1, v{tv} offset:{off}") if isinstance(off, int) else s(f"ds_add_u32 {off}, v{tv}")
        s("s_mov_b64 exec, -1")


def srd(a, d, p, size):
    a(f"s_mov_b32 s{d}, s{p}")
    a(f"s_mov_b32 s{d+1}, s{p+1}")
    a(f"s_mov_b32 s{d+2}, {size}")
    a(f"s_mov_b32 s{d+3}, 0x20000")


def wave_max_steps(vv):
    return [f"v_max_u32_dpp v{vv}, v{vv}, v{vv} row_shr:1 {DPPF}",
            f"v_max_u32_dpp v{vv}, v{vv}, v{vv} row_shr:2 {DPPF}",
            f"v_max_u32_dpp v{vv}, v{vv}, v{vv} row_shr:4 {DPPF}",
            f"v_max_u32_dpp v{vv}, v{vv}, v{vv} row_shr:8 {DPPF}",
            f"v_max_u32_dpp v{vv}, v{vv}, v{vv} row_bcast:15 row_mask:0xa bank_mask:0xf",
            f"v_max_u32_dpp v{vv}, v{vv}, v{vv} row_bcast:31 row_mask:0xc bank_mask:0xf"]


def sigmoid_f32(a, dst, src, t):
    a(f"v_mul_f32 v{t}, 0xbfb8aa3b, v{src}")
    a(f"v_exp_f32 v{t}, v{t}")
    a(f"v_add_f32 v{t}, 1.0, v{t}")
    a(f"v_rcp_f32 v{dst}, v{t}")


def rb(a, r):
    a(f"v_cvt_pk_bf16_f32 v{r}, v{r}, v{r}")
    a(f"v_and_b32 v{r}, 0xffff0000, v{r}")


def router(a):
    a.raw(".p2align 7")
    a.lab("ROUTER")
    X, W = 16, 52
    assert RDIR == 2
    a("v_lshrrev_b32 v5, 3, v2")
    a("v_and_b32 v6, 7, v2")
    a("v_lshlrev_b32 v9, 4, v6")
    a("v_lshl_add_u32 v5, s2, 3, v5")
    a("v_mul_u32_u24 v8, 1152, v5")
    a("v_add_u32 v8, v8, v9")
    if E("WPF", 1):
        a("v_min_u32 v10, 8, v2")
        a("v_lshlrev_b32 v10, 7, v10")
    a("s_waitcnt lgkmcnt(0)")
    a.fine(7)
    if E("WPF", 1):
        a(f"global_load_dword v90, v10, {sr(P_WR,2)}")
    for i in range(9):
        a(f"global_load_dwordx4 {vr(X+4*i,4)}, v8, {sr(P_U,2)} offset:{128*i}")
    a(f"s_load_dword s10, {sr(P_WS,2)}, {WS_BASE}")
    a("s_setprio 3")
    for i in range(9):
        a(f"global_load_dwordx4 {vr(W+4*i,4)}, v9, {sr(P_WR,2)} offset:{128*i}")
    a("v_lshlrev_b32 v7, 4, v2")
    a("v_min_u32 v10, 7, v2")
    a(f"s_mov_b32 m0, {GW}")
    a("v_lshlrev_b32 v10, 4, v10")
    a(f"global_load_lds_dwordx4 v7, {sr(P_GW,2)}")
    a(f"global_load_lds_dwordx4 v10, {sr(P_GW,2)} offset:1024")
    a.fine(6)
    a.stamp(21)
    a.b0()
    a("v_mov_b32 v11, 1")
    a(f"ds_write_b32 v1, v11 offset:{F_RI}")
    a("v_and_b32 v3, 15, v2")
    a("v_lshrrev_b32 v4, 4, v2")
    a("s_and_b32 s4, s2, 7")
    a(f"v_add_u32 v7, {XB}, v7")
    if KS == 32:
        a("s_lshl_b32 s8, s2, 5")
        a("v_lshl_add_u32 v15, v4, 3, s8")
    else:
        a(f"s_mul_i32 s8, s2, {KS}")
        a(f"s_add_u32 s8, s8, {WS_KEY2}")
        a("v_lshl_add_u32 v15, v4, 3, s8")
        a("v_lshl_add_u32 v15, v3, 5, v15")
    a("s_mov_b32 s11, 0xffff")
    for j in range(4):
        a(f"v_mov_b32 v{8+j}, 0")
    a("s_waitcnt lgkmcnt(0)")
    a.fine(8)
    a("s_add_u32 s10, s10, 1")
    a("s_addc_u32 s10, s10, 0")
    a("v_mov_b32 v14, s10")
    a("v_mov_b32 v13, s10")
    if RDIR:
        for i in range(9):
            a(f"s_waitcnt vmcnt({8-i+2})")
            for j in range(4):
                a(f"v_dot2c_f32_bf16 v{8+j}, v{X+4*i+j}, v{W+4*i+j}")
        a.stamp(1)
    else:
        a("s_waitcnt vmcnt(9)")
        a.stamp(1)
        if STAMP or PROBE:
            a("s_waitcnt lgkmcnt(0)")
        for i in range(9):
            a(f"ds_read_b128 {vr(X+4*i,4)}, v7 offset:{1024*i}")
        a(f"ds_write_b32 v1, v14 offset:{F_X}")
        for i in range(9):
            a(f"s_waitcnt vmcnt({8-i}) lgkmcnt({9-i})")
            for j in range(4):
                a(f"v_dot2c_f32_bf16 v{8+j}, v{X+4*i+j}, v{W+4*i+j}")
    a("v_add_f32 v8, v8, v9")
    a("v_add_f32 v10, v10, v11")
    a("v_add_f32 v8, v8, v10")
    a(f"v_add_f32_dpp v8, v8, v8 quad_perm:[1,0,3,2] {DPPF}")
    a(f"v_add_f32_dpp v8, v8, v8 quad_perm:[2,3,0,1] {DPPF}")
    a(f"v_add_f32_dpp v8, v8, v8 row_half_mirror {DPPF}")
    a("v_cvt_pk_bf16_f32 v8, v8, v8")
    a("v_ashrrev_i32 v9, 31, v8")
    a("v_or_b32 v9, 0x80008000, v9")
    a("v_xor_b32 v8, v8, v9")
    a(f"v_mov_b32_dpp v9, v8 row_ror:8 {DPPF}")
    km = {32: 0x00010001, 64: 0x00030003, 128: 0x000f000f}[KS]
    a(f"s_mov_b32 exec_lo, {km:#x}")
    a(f"s_mov_b32 exec_hi, {km:#x}")
    a("v_bfi_b32 v12, s11, v8, v9")
    a(f"global_store_dwordx2 v15, v[12:13], {sr(P_WS,2)} {PUBF}")
    a("s_mov_b64 exec, -1")
    a(f"ds_write_b32 v1, v14 offset:{F_NONCE}")
    a.stamp(2)
    if E("RLP", 1):
        a("s_setprio 0")
    if RDIR == 2:
        for i in range(9):
            a(f"ds_write_b128 v7, {vr(X+4*i,4)} offset:{1024*i}")
    if RDIR:
        a("s_waitcnt vmcnt(1)")
        a(f"ds_write_b32 v1, v14 offset:{F_X}")
    a(f"s_cmp_ge_u32 s5, {NJH}")
    a("s_cbranch_scc1 C_IO")
    a(f"s_cmp_lt_u32 s5, {NJF}")
    a("s_cbranch_scc1 SELECT")
    a.end()


def gate(a):
    a.lab("GATE")
    if E("GTP"):
        a(f"s_setprio {E('GTP')}")
    X, W, WL = 16, 34, 44
    a("s_lshl_b32 s8, s12, 9")
    a(f"s_add_u32 s8, s8, {XB}")
    a("v_lshl_add_u32 v5, v2, 2, s8")
    a("v_and_b32 v6, 31, v2")
    a("v_lshlrev_b32 v6, 2, v6")
    a(f"v_add_u32 v6, {GW}, v6")
    a("s_lshl_b32 s8, s2, 1")
    a("s_add_u32 s8, s8, s12")
    a("v_mov_b32 v8, 0")
    a("v_mov_b32 v9, 0")
    a("v_mov_b32 v10, 0x3f803f80")
    a("s_lshl_b32 s8, s8, 5")
    a(f"s_add_u32 s8, s8, {WS_G}")
    a("v_lshrrev_b32 v7, 5, v2")
    a("v_lshl_add_u32 v7, v7, 3, s8")
    a("v_and_b32 v11, 16, v2")
    a("v_add_u32 v7, v7, v11")
    a.b0()
    if E("GATED"):
        a(f"s_sleep {E('GATED')}")
    a.spin(F_X, 0, 13, op="lg", sleep=E("GSL", 1))
    a.auto(True)
    for i in range(5):
        a(f"ds_read2_b32 {vr(W+2*i,2)}, v6 offset0:{64*(i&3)} offset1:{64*(i&3)+32}" if i < 4 else f"ds_read_b32 v{W+8}, v6 offset:1024")
    for i in range(9):
        a(f"ds_read2st64_b32 {vr(X+2*i,2)}, v5 offset0:{4*i} offset1:{4*i+1}")
    for i in range(9):
        a(f"v_and_b32 v{WL+i}, 0xffff, v{W+i}")
        a(f"v_and_b32 v{W+i}, 0xffff0000, v{W+i}")
    for i in range(10):
        t = 56 + 4 * (i & 1)
        u = 56 + 4 * ((i - 1) & 1)
        for j in range(2):
            if i < 9:
                a(f"v_dot2_f32_bf16 v{t+2*j}, v{X+2*i+j}, v{WL+i}, 0")
                a(f"v_dot2_f32_bf16 v{t+2*j+1}, v{X+2*i+j}, v{W+i}, 0")
        if i:
            for j in range(2):
                a(f"v_cvt_pk_bf16_f32 v{u+2*j}, v{u+2*j}, v{u+2*j+1}")
            for j in range(2):
                a(f"v_dot2c_f32_bf16 v{8+j}, v{u+2*j}, v10")
    a.auto(False)
    a.signal(F_GD, 11)
    a("v_permlane16_swap_b32 v8, v9")
    a("v_add_f32 v8, v8, v9")
    for r in (8, 4, 2, 1):
        a(f"v_add_f32_dpp v8, v8, v8 row_ror:{r} {DPPF}")
    rb(a, 8)
    sigmoid_f32(a, 8, 8, 9)
    rb(a, 8)
    a("v_sub_f32 v9, 1.0, v8")
    a("v_cvt_pk_bf16_f32 v12, v8, v9")
    a("s_mov_b32 exec_lo, 0x00010001")
    a("s_mov_b32 exec_hi, 0x00010001")
    a(f"global_store_dwordx2 v7, v[12:13], {sr(P_WS,2)} sc1")
    a("s_mov_b64 exec, -1")
    a.stamp(1)
    a(f"s_cmp_lt_u32 s5, {NJF}")
    a("s_cbranch_scc1 F_COMP2")
    a(f"s_cmp_ge_u32 s5, {NJH}")
    a("s_cbranch_scc1 C_IO")
    a.end()


def stripe_pf(a):
    a("s_and_b32 s8, s13, 15" if PF2AT >= 0 else "s_mov_b32 s8, s13")
    a("s_mul_i32 s8, s8, 73728")
    a("s_lshl_b32 s9, s4, 7")
    a("s_add_u32 s8, s8, s9")
    a("v_mul_u32_u24 v9, 1152, v2")
    a("v_add_u32 v9, s8, v9")
    a("s_add_u32 s8, s13, 18")
    a("s_min_u32 s8, s8, 31")
    a("s_sub_u32 s8, s8, s13")
    a("s_mul_i32 s8, s8, 73728")
    a("v_add_u32 v8, s8, v9" if PF2AT < 0 else f"v_add_u32 v8, {16*73728}, v9")
    return [f"global_load_dword v10, v9, {sr(P_U,2)}", f"global_load_dword v11, v9, {sr(P_U,2)} offset:128",
            f"global_load_dword v10, v8, {sr(P_U,2)}", f"global_load_dword v11, v8, {sr(P_U,2)} offset:128"]


def prefetch(a, n, hold):
    a("v_mul_u32_u24 v5, 57, v2")
    a("v_lshrrev_b32 v5, 9, v5")
    a("v_mul_u32_u24 v6, 9, v5")
    a("v_sub_u32 v6, v2, v6")
    a("s_waitcnt lgkmcnt(0)")
    a("s_cmp_eq_u32 s12, 1")
    a(f"s_cselect_b32 s52, s{P_WU}, s{P_WG}")
    a(f"s_cselect_b32 s53, s{P_WU+1}, s{P_WG+1}")
    a("s_mov_b32 s54, 5308416")
    a("s_mov_b32 s55, 0x20000")
    a("v_mul_u32_u24 v5, 9216, v5")
    a("v_lshl_add_u32 v5, v6, 7, v5")
    a("s_mul_i32 s8, s4, 1152")
    if C3:
        a(f"s_sub_u32 s14, s13, {HPS}")
        a("s_lshr_b32 s9, s52, 7")
        a("s_add_u32 s9, s9, s4")
        a("s_sub_u32 s9, 3, s9")
        a("s_and_b32 s9, s9, 7")
        a("s_lshl_b32 s15, s9, 7")
        a("s_add_u32 s15, s15, s8")
        a(f"s_mul_i32 s14, s14, {9216*C3}")
        a("s_add_u32 s15, s15, s14")
        a(f"s_add_u32 s15, s15, {9216*(7*HPS - C3*PSTEP)}")
        a("s_cmp_eq_u32 s9, 0")
        a("s_cselect_b32 s9, 1024, 0")
        a("v_and_b32 v7, 31, v2")
        a(f"v_min_u32 v7, {C3-1}, v7")
        a("v_mul_u32_u24 v7, 9216, v7")
        a("v_lshrrev_b32 v9, 5, v2")
        a("v_mul_u32_u24 v9, s9, v9")
        a("v_add_u32 v7, v7, v9")
    a("s_mul_i32 s13, s13, 64512")
    a("s_add_u32 s13, s13, s8")
    if not E("HNG"):
        a.b0(13)
    if hold:
        a.spin(F_NONCE, 0, 13, op="lg", sleep=1)
    if C3:
        a("buffer_load_dword v8, v7, s[52:55], s15 offen")
    if E("HDX"):
        a(f"s_sub_u32 s8, s5, {NJF}")
        a("s_lshl_b32 s8, s8, 3")
        a("s_add_u32 s8, s8, s4")
        a("s_lshl_b32 s8, s8, 2")
        a("s_add_u32 s8, s8, s3")
        a("s_sub_u32 s8, s8, 2")
        a("s_lshl_b32 s8, s8, 15")
        a("v_lshl_add_u32 v9, v2, 7, s8")
        for k in range(4):
            a("s_waitcnt vmcnt(0)")
            a(f"global_load_dword v8, v9, {sr(P_WD,2)}")
            a("v_add_u32 v9, 8192, v9")
        n = 0
    for k in range(n):
        if k >= PFW or (C3 and E("C3W", 1)):
            a(f"s_waitcnt vmcnt({PFW-1})")
        a("buffer_load_dword v8, v5, s[52:55], s13 offen")
        a(f"s_add_u32 s13, s13, {64512*PSTEP}")


def bulk_gate(a, tv):
    a.b0(tv)
    if HOLD:
        a.spin(F_NONCE, 0, tv, op="lg", sleep=1)


def select(a):
    a.lab("SELECT")
    a("s_setprio 3")
    SX = 52
    srd(a, SX, P_U, 2359296)
    KD, IX, KY = 16, 48, 80
    M1, M2, T1, T2, VO, VK, CH = 8, 9, 10, 11, 12, 6, 5
    a("v_lshlrev_b32 v7, 4, v2")
    a("v_add_u32 v15, 0x1000, v7")
    if KS != 32:
        a("v_lshrrev_b32 v7, 1, v2")
        a(f"v_mul_u32_u24 v7, {KS}, v7")
        a("v_and_b32 v15, 1, v2")
        a("v_lshl_add_u32 v7, v15, 4, v7")
        for i in range(8):
            a(f"v_add_u32 v{120+i}, {WS_KEY2+32*KS*i}, v7")

    def polls():
        if KS != 32:
            for i in range(8):
                a(f"global_load_dwordx4 {vr(KD+4*i,4)}, v{120+i}, {sr(P_WS,2)} {POLLF}")
            return
        for i in range(8):
            a(f"global_load_dwordx4 {vr(KD+4*i,4)}, v{7 if i < 4 else 15}, {sr(P_WS,2)} offset:{1024*(i&3)} {POLLF}")
    assert WS_KEY == 0
    a("v_lshlrev_b32 v8, 2, v2")
    a("v_sub_u32 v8, 2047, v8")
    for i in range(8):
        for e in range(4):
            a(f"v_subrev_u32 v{IX+4*i+e}, {256*i+e}, v8")
    a("v_lshrrev_b32 v9, 3, v2")
    a("v_and_b32 v9, 6, v9")
    a("v_xor_b32 v9, v9, v2")
    a("v_and_b32 v9, 7, v9")
    a(f"v_lshlrev_b32 v{CH}, 4, v9")
    a(f"v_mov_b32 v{VO}, 0")
    a(f"v_mov_b32 v{VK}, 0")
    a("s_mov_b32 s11, 0xffff0000")
    a("s_mov_b32 s15, 0")
    a.spin(F_GD, 2, 13)
    a("s_mov_b32 s9, 0")
    a("s_waitcnt vmcnt(0)")
    if SELD:
        a(f"s_sleep {SELD}")
    a.stamp(8)
    a.lab("SEL_POLL")
    polls()
    if E("W1", 99) < 99:
        a(f"ds_write_b32 v1, v14 offset:{F_PI}")
    for i in range(8):
        a(f"s_waitcnt vmcnt({7-i})")
        if i == 0:
            a(f"v_xor_b32 v13, v{KD+1}, v14")
        else:
            a(f"v_bitop3_b32 v13, v13, v{KD+4*i+1}, v14 bitop3:0xf6")
        a(f"v_bitop3_b32 v13, v13, v{KD+4*i+3}, v14 bitop3:0xf6")
    a("v_cmp_ne_u32 vcc, 0, v13")
    a("s_add_u32 s9, s9, 1")
    a("s_cmp_eq_u64 vcc, 0")
    a("s_cbranch_scc1 SEL_GOT")
    a(f"s_cmp_lt_u32 s9, {SPIN}")
    a("s_cbranch_scc1 SEL_POLL")
    a.lab("SEL_GOT")
    if STAMP:
        a("s_mov_b32 s94, s9")
    a.stamp(6)
    for i in range(8):
        for h in range(2):
            a(f"v_lshl_or_b32 v{KY+4*i+2*h}, v{KD+4*i+2*h}, 16, v{IX+4*i+2*h}")
            a(f"v_and_or_b32 v{KY+4*i+2*h+1}, v{KD+4*i+2*h}, s11, v{IX+4*i+2*h+1}")
        ks = [KY + 4 * i + e for e in range(4)]
        if i == 0:
            a(f"v_min_u32 v{M2}, v{ks[0]}, v{ks[1]}")
            a(f"v_max_u32 v{M1}, v{ks[0]}, v{ks[1]}")
            ks = ks[2:]
        for k in ks:
            a(f"v_med3_u32 v{M2}, v{M1}, v{M2}, v{k}")
            a(f"v_max_u32 v{M1}, v{M1}, v{k}")
    a.stamp(3)

    def place(r):
        lo, hi = ((0xff << (8 * r)) & 0xffffffff, (0xff << (8 * r)) >> 32)
        return ["s_and_b32 s13, s12, 0x7ff", "s_sub_u32 s13, 2047, s13", "s_mul_i32 s13, s13, 1152",
                [f"s_mov_b32 exec_lo, {lo:#x}", f"s_mov_b32 exec_hi, {hi:#x}",
                 f"v_add_u32 v{VO}, s13, v{CH}", f"v_mov_b32 v{VK}, s12", "s_mov_b64 exec, -1"]]
    for r in range(8):
        if r == 0:
            a(f"v_mov_b32 v{T1}, v{M1}")
            fill = []
        else:
            a(f"v_subrev_u32 v{T1}, s12, v{M1}")
            a(f"v_subrev_u32 v{T2}, s12, v{M2}")
            a(f"v_max_u32 v{T1}, v{T1}, v{T2}")
            p = place(r - 1)
            fill = [p[0:2], [p[2]], p[3]]
        for st in wave_max_steps(T1):
            for x in (fill.pop(0) if fill else []):
                a(x)
            a(st)
        a(f"v_readlane_b32 s8, v{T1}, 63")
        a("s_add_u32 s12, s12, s8" if r else "s_mov_b32 s12, s8")
    p = place(7)
    for x in p[:3] + p[3]:
        a(x)
    a("s_mov_b32 s14, 0")
    a.lab("SEL_GATHER")
    for b in range(9):
        a(f"s_mov_b32 m0, {XB + 896*b}")
        a(f"buffer_load_dwordx4 v{VO}, {sr(SX,4)}, 0 offen offset:{128*b} lds")
    a.signal(F_D, 13)
    a.stamp(4)
    a("s_cmp_lg_u32 s14, 0")
    a("s_cbranch_scc1 SEL_OK")
    TK = KD
    for k in range(32):
        a(f"v_sub_u32 v{TK+k}, v{KY+k}, v{M2}")

    def tree():
        for j in range(10):
            a(f"v_max3_u32 v{TK+3*j}, v{TK+3*j}, v{TK+3*j+1}, v{TK+3*j+2}")
        a(f"v_max3_u32 v{TK}, v{TK}, v{TK+3}, v{TK+6}")
        a(f"v_max3_u32 v{TK+9}, v{TK+9}, v{TK+12}, v{TK+15}")
        a(f"v_max3_u32 v{TK+18}, v{TK+18}, v{TK+21}, v{TK+24}")
        a(f"v_max3_u32 v{TK+27}, v{TK+27}, v{TK+30}, v{TK+31}")
        a(f"v_max3_u32 v{TK}, v{TK}, v{TK+9}, v{TK+18}")
        a(f"v_max_u32 v{TK}, v{TK}, v{TK+27}")
    tree()
    a(f"v_add_u32 v{TK}, v{TK}, v{M2}")
    a(f"v_cmp_lt_u32 vcc, s12, v{TK}")
    if E("FORCESLOW"):
        a("s_mov_b64 vcc, 1")
    a("s_cmp_eq_u64 vcc, 0")
    a("s_cbranch_scc1 SEL_OK")
    a("s_waitcnt vmcnt(0)")
    a("s_mov_b32 s12, 0")
    a("s_mov_b64 s[56:57], 0xff")
    a.lab("SEL_SLOW")
    for k in range(32):
        a(f"v_subrev_u32 v{TK+k}, s12, v{KY+k}")
    tree()
    for st in wave_max_steps(TK):
        a(st)
    a(f"v_readlane_b32 s8, v{TK}, 63")
    a("s_add_u32 s12, s12, s8")
    for x in place(0)[:3]:
        a(x)
    a("s_mov_b64 exec, s[56:57]")
    a(f"v_add_u32 v{VO}, s13, v{CH}")
    a(f"v_mov_b32 v{VK}, s12")
    a("s_mov_b64 exec, -1")
    a("s_lshl_b64 s[56:57], s[56:57], 8")
    a("s_add_u32 s14, s14, 1")
    a("s_cmp_lt_u32 s14, 8")
    a("s_cbranch_scc1 SEL_SLOW")
    a("s_branch SEL_GATHER")
    a.lab("SEL_OK")
    a("s_cmp_lg_u32 s2, 0")
    a("s_cbranch_scc1 SEL_NOPUB")
    a(f"v_mov_b32 v{VK+1}, v14")
    a(f"v_add_u32 v8, {WS_SEL}, v2")
    a("s_mov_b32 exec_lo, 0x01010101")
    a("s_mov_b32 exec_hi, 0x01010101")
    a(f"global_store_dwordx2 v8, {vr(VK,2)}, {sr(P_WS,2)} sc1")
    a("s_mov_b64 exec, 1")
    a(f"global_store_dword v8, v14, {sr(P_WS,2)} offset:{WS_BASE-WS_SEL} sc1")
    a("s_mov_b64 exec, -1")
    a("s_waitcnt vmcnt(2)")
    a("s_branch SEL_END")
    a.lab("SEL_NOPUB")
    a("s_waitcnt vmcnt(0)")
    a.lab("SEL_END")
    a("v_mov_b32 v8, 3")
    a(f"ds_write_b32 v1, v8 offset:{F_XR}")
    a.stamp(5)
    a.end()


def ffn_loader(a):
    a.lab("F_LOAD")
    a("s_setprio 3")
    SG, SU, SD = 52, 56, 60
    a("s_sub_u32 s12, s3, 9")
    a("v_lshrrev_b32 v5, 3, v2")
    a("v_bfe_u32 v6, v2, 4, 1")
    a("v_xor_b32 v6, v6, v2")
    a("v_and_b32 v6, 7, v6")
    a("v_mul_u32_u24 v7, 9216, v5")
    a("v_lshl_add_u32 v8, v6, 4, v7")
    a("v_xor_b32 v9, 32, v8")
    a("v_xor_b32 v10, 64, v8")
    a("v_xor_b32 v11, 96, v8")
    a("s_mul_i32 s13, s12, 294912")
    a("s_lshl_b32 s8, s7, 7")
    a("s_add_u32 s13, s13, s8")
    a("s_lshl_b32 s15, s12, 13")
    a(f"s_add_u32 s15, s15, {WA}")
    for d in (SG, SU):
        a(f"s_mov_b32 s{d+2}, 5308416")
        a(f"s_mov_b32 s{d+3}, 0x20000")
    a("s_waitcnt lgkmcnt(0)")
    a(f"s_mov_b64 {sr(SG,2)}, {sr(P_WG,2)}")
    a(f"s_mov_b64 {sr(SU,2)}, {sr(P_WU,2)}")
    a.stamp(23)
    n = 0
    sig = 0

    def pre():
        nonlocal sig
        if n == E("NG", 2):
            bulk_gate(a, 14)
        if n == E("W1", 99):
            a.spin(F_PI, 1, 14, sleep=1)
        if n == E("W0", 99):
            a.spin(F_NONCE, 0, 14, op="lg", sleep=1)
        if n >= WIN_F:
            a(f"s_waitcnt vmcnt({WIN_F-1})")
        if sig < 6 and n - WIN_F + 1 >= 8 * (sig + 1):
            a.signal(F_L + 4 * sig, 14)
            if sig in (0, 2, 5):
                a.stamp(1 + sig // 2)
            sig += 1
    for c in range(6):
        if c >= 3:
            a.spin(F_AC + 4 * (c - 3), 4, 14)
        for R in range(4):
            for mu in range(2):
                pre()
                a(f"s_add_u32 m0, s15, {(c%3)*24576 + R*2048 + mu*1024}")
                if not NOW:
                    a(f"buffer_load_dwordx4 v{8+2*mu+(R&1)}, {sr(SU if mu else SG,4)}, s13 offen {WNT} lds")
                n += 1
            a(f"s_add_u32 s13, s13, {73728 if R < 3 else 73728*9}")
    a.signal(F_D, 14)
    a.stamp(4)
    while sig < 6:
        a(f"s_waitcnt vmcnt({48 - 8*(sig+1)})")
        a.signal(F_L + 4 * sig, 14)
        sig += 1
    a.stamp(3)
    a("s_cmp_eq_u32 s3, 9")
    a("s_cbranch_scc1 F_COMP2")
    a.end()


def ffn_comp(a):
    a.lab("F_COMP")
    a.b0()
    a.lab("F_COMP2")
    a("s_and_b32 s12, s3, 3")
    a("v_lshrrev_b32 v5, 2, v3")
    a("v_bfe_u32 v7, v3, 3, 1")
    a("v_and_b32 v13, 1, v4")
    a("v_lshl_or_b32 v14, v13, 1, v7")
    a("v_and_b32 v15, 7, v3")
    a(f"v_mul_u32_u24 v16, {HS}, v15")
    a(f"v_add_u32 v16, {HB}, v16")
    a("s_mov_b32 s56, 0xff00ff00")
    a("s_mov_b32 s57, 0xff00ff00")
    a("s_lshr_b32 s8, s3, 2")
    a("s_cmp_lg_u32 s8, 1")
    a("s_cbranch_scc1 F_DOWN")
    WF, AG = 24, 8
    a("v_bfe_u32 v6, v3, 1, 1")
    a("v_lshl_or_b32 v8, v6, 2, v14")
    a("v_xor_b32 v8, s12, v8")
    a("v_lshlrev_b32 v8, 4, v8")
    a("v_lshl_add_u32 v8, v5, 7, v8")
    a("v_lshl_add_u32 v8, v6, 10, v8")
    a("v_lshl_add_u32 v8, v4, 11, v8")
    a("v_and_b32 v9, 1, v3")
    a("v_lshl_add_u32 v8, v9, 3, v8")
    a("v_xor_b32 v9, 64, v8")
    a(f"v_add_u32 v10, {WA+49152}, v8")
    a(f"v_add_u32 v11, {WA+49152}, v9")
    a("v_lshlrev_b32 v6, 2, v13")
    a("v_lshrrev_b32 v5, 1, v4")
    a("v_add_u32 v6, v6, v5")
    a("v_lshl_add_u32 v6, v7, 5, v6")
    a("s_lshl_b32 s8, s12, 3")
    a("v_add_lshl_u32 v6, v6, s8, 1")
    a("v_add_u32 v5, v6, v16")
    a("v_and_b32 v6, 6, v3")
    a("v_xor_b32 v6, v6, v4")
    a("v_lshlrev_b32 v6, 4, v6")
    a("v_lshl_add_u32 v6, v15, 7, v6")
    a(f"v_add_u32 v6, {XB}, v6")
    a("v_xor_b32 v7, 64, v6")
    for c in range(6):
        a.spin(F_L + 4 * c, 3, 12, sleep=E("CSL", 1))
        if c in (2, 5):
            a.stamp(2 + c // 3)
        for s in range(3):
            for t in range(2):
                base, off = (8 + t, WA + (c % 3) * 24576 + s * 8192) if c % 3 < 2 else (10 + t, s * 8192)
                r = WF + 8 * (3 * c + s) + 4 * t
                a(f"ds_read_b64_tr_b16 {vr(r,2)}, v{base} offset:{off}")
                a(f"ds_read_b64_tr_b16 {vr(r+2,2)}, v{base} offset:{off+512}")
        if c < 3:
            a("s_waitcnt lgkmcnt(0)")
            a.signal(F_AC + 4 * c, 12)
    a("s_setprio 3")
    a.spin(F_XR, 1, 12)
    a.stamp(4)
    a.auto(True)
    xs = lambda s: 16 + 4 * s
    def xrd(s):
        a(f"ds_read_b128 {vr(xs(s),4)}, v{7 if s&1 else 6} offset:{1024*(s>>1)}")
    xrd(0); xrd(1)
    nx = 2
    for s in range(18):
        for t in range(2):
            a(f"v_mfma_f32_16x16x32_bf16 {vr(AG+4*t,4)}, {vr(WF+8*s+4*t,4)}, {vr(xs(s),4)}, {vr(AG+4*t,4) if s else 0}")
            if nx < 18 and xs(nx) + 4 <= WF + 8 * s + 4 * t + 4:
                xrd(nx); nx += 1
    a.auto(False)
    a.stamp(8)
    for r in range(4):
        a(f"v_cndmask_b32 v{AG+r}, v{AG+r}, v{AG+4+r}, s[56:57]")
    a(f"v_permlane32_swap_b32 v{AG}, v{AG+1}")
    a(f"v_permlane32_swap_b32 v{AG+2}, v{AG+3}")
    for op in ("v_cvt_pk_bf16_f32 v{u}, v{g}, v{u}", "v_lshlrev_b32 v{g}, 16, v{u}", "v_mul_f32 v{t}, 0xbfb8aa3b, v{g}", "v_exp_f32 v{t}, v{t}",
               "v_and_b32 v{u}, 0xffff0000, v{u}", "v_add_f32 v{t}, 1.0, v{t}", "v_rcp_f32 v{t}, v{t}", "v_mul_f32 v{g}, v{g}, v{t}",
               "v_cvt_pk_bf16_f32 v{g}, v{g}, v{g}", "v_and_b32 v{g}, 0xffff0000, v{g}", "v_mul_f32 v{g}, v{g}, v{u}"):
        for p in range(2):
            a(op.format(g=AG + 2 * p, u=AG + 2 * p + 1, t=AG + 4 + p))
    a(f"v_cvt_pk_bf16_f32 v{AG}, v{AG}, v{AG+2}")
    a(f"ds_write_b16 v5, v{AG}")
    a(f"ds_write_b16_d16_hi v5, v{AG} offset:4")
    a.signal(F_HR, 12)
    a.stamp(5)
    a.end()
    a.lab("F_DOWN")
    RW, DF, AC, HF = 24, 56, 120, 152
    a("v_lshl_add_u32 v10, v4, 4, v16")
    a(f"v_mov_b32 v18, {HB+8*HS}")
    a("v_cndmask_b32 v19, v18, v10, s[56:57]")
    a("v_cndmask_b32 v18, v10, v18, s[56:57]")
    a("v_and_b32 v20, 31, v2")
    a("v_lshlrev_b32 v20, 2, v20")
    a(f"v_add_u32 v20, {HB+8*HS}, v20")
    a("ds_write_b32 v20, v1")
    a("v_mul_u32_u24 v8, 9216, v4")
    a("s_mul_i32 s13, s7, 73728")
    for j in range(4):
        a(f"s_mov_b32 s{60+j}, {0x07060500+j:#x}")
    a("s_mov_b32 s64, 0x05040100")
    a("s_mov_b32 s65, 0x07060302")
    a("s_lshl_b32 s14, s7, 7")
    a(f"s_add_u32 s14, s14, {WS_MB}")
    a("v_lshl_add_u32 v11, v15, 4, s14")
    a("s_waitcnt lgkmcnt(0)")
    srd(a, 52, P_WS, WS_SIZE)
    srd(a, 68, P_WD, 5308416)
    a("s_cmp_eq_u32 s3, 9")
    a("s_cbranch_scc1 F_DN2")

    def down(nd):
        nf = 2 * nd
        raw = lambda q, e: (RW if q == 0 else 88) + nd * e
        frg = lambda q, j: (DF if q == 0 else RW) + 4 * j
        for q in range(2):
            for e in range(8):
                if nd == 4 and E("DE", 4) and 8 * q + e == E("DE", 4):
                    a.spin(F_D, 4, 12, sleep=1)
                if not NOW and not E("NOD"):
                    a(f"buffer_load_dword{'x4' if nd == 4 else 'x2'} {vr(raw(q,e),nd)}, v8, s[68:71], s13 offen offset:{1152*(e&3)}")
                if e & 3 == 3:
                    a(f"s_add_u32 s13, s13, {4608 if e == 3 else 36864-4608}")
        def perms(q, p):
            a(f"s_waitcnt vmcnt({14 - 8*q - 2*p})")
            for j in range(nf):
                a(f"v_perm_b32 v{frg(q,j)+p}, v{raw(q,2*p+1)+(j>>1)}, v{raw(q,2*p)+(j>>1)}, s{64+(j&1)}")

        def mms(q):
            for j in range(nf):
                if nd == 4:
                    c = vr(AC + 4 * (j & 3), 4)
                    a(f"v_mfma_f32_16x16x32_bf16 {c}, {vr(frg(q,j),4)}, {vr(HF+8*(j>>2)+4*q,4)}, {c if q or j > 3 else 0}")
                else:
                    a(f"v_mfma_f32_16x16x32_bf16 {vr(AC+4*j,4)}, {vr(frg(q,j),4)}, {vr(HF+4*q,4)}, {vr(AC+4*j,4) if q else 0}")
        for q, p in [(0, 0), (0, 1), (0, 2), (0, 3), (1, 0), (1, 1)]:
            perms(q, p)
        a.spin(F_HR, 4, 12)
        a.stamp(5)
        for q in range(2):
            if nd == 4:
                a(f"ds_read_b128 {vr(HF+4*q,4)}, v18 offset:{64*q}")
                a(f"ds_read_b128 {vr(HF+8+4*q,4)}, v19 offset:{64*q}")
            else:
                a(f"ds_read_b128 {vr(HF+4*q,4)}, v10 offset:{64*q}")
        a(f"s_waitcnt lgkmcnt({nd//2})")
        mms(0)
        a("s_waitcnt lgkmcnt(0)")
        perms(1, 2)
        perms(1, 3)
        a.stamp(4)
        mms(1)
        O = 88
        for r in range(nd):
            for j in range(4):
                if nd == 4:
                    a(f"v_perm_b32 v{O+4*r+j}, v{AC+4*j+r}, v17, s{60+j}")
                else:
                    a(f"v_cndmask_b32 v{O+4*r+j}, v{AC+4*j+2*r}, v{AC+4*j+2*r+1}, s[56:57]")
            if nd == 2:
                for j in range(4):
                    a(f"v_perm_b32 v{O+4*r+j}, v{O+4*r+j}, v17, s{60+j}")
            a(f"s_mov_b32 s12, {18432*r}")
            a(f"buffer_store_dwordx4 {vr(O+4*r,4)}, v11, s[52:55], s12 offen sc1")
        a.stamp(6)
        a.end()
    a("v_lshl_add_u32 v8, v3, 4, v8")
    a("s_lshl_b32 s8, s3, 8")
    a("s_add_u32 s13, s13, s8")
    a("s_lshl_b32 s8, s3, 5")
    a("v_lshl_add_u32 v6, v4, 3, v7")
    a("v_add_u32 v6, s8, v6")
    a("v_mul_u32_u24 v6, 9216, v6")
    a("v_add_u32 v11, v6, v11")
    a.spin(F_X, 0, 17, op="lg", sleep=2)
    a.spin(F_D, 3 if E("DE", 4) else 4, 12, sleep=1)
    a("s_setprio 2")
    down(4)
    a.lab("F_DN2")
    a("v_lshl_add_u32 v8, v3, 3, v8")
    a("s_add_u32 s13, s13, 1024")
    a("v_lshl_add_u32 v6, v4, 2, v7")
    a("v_add_u32 v6, 128, v6")
    a("v_mul_u32_u24 v6, 9216, v6")
    a("v_add_u32 v11, v6, v11")
    a.spin(F_X, 0, 17, op="lg")
    down(2)


def helper(a):
    a.lab("HELPER")
    if not HPN:
        a.end()
        return
    if E("TOUCH", 0):
        a(f"s_cmp_lg_u32 s3, {2+HPW}")
        a("s_cbranch_scc1 H_NT")
        a("v_lshlrev_b32 v5, 19, v3")
        a("v_min_u32 v6, 5308412, v5")
        a("v_min_u32 v5, 2359292, v5")
        a("s_waitcnt lgkmcnt(0)")
        a.b0(13)
        a(f"global_load_dword v8, v6, {sr(P_WD,2)}")
        a(f"global_load_dword v9, v5, {sr(P_OUT,2)}")
        a.lab("H_NT")
    a(f"s_cmp_ge_u32 s3, {2+HPW}")
    a("s_cbranch_scc1 K_END")
    a("s_and_b32 s12, s3, 1")
    a("s_sub_u32 s13, s3, 2")
    a("s_lshr_b32 s13, s13, 1")
    a("s_mul_i32 s13, s13, 5")
    a("s_add_u32 s13, s13, s5")
    a(f"s_add_u32 s13, s13, {(HPS-NJF) & 0xffffffff}")
    prefetch(a, HPN, E("HH", 0))
    if STAMP:
        a("s_waitcnt vmcnt(0)")
        a.stamp(1)
    a.end()


DSK, EXPN = 166, 167
PA, PB, A16, PC, PD, A32, E2, EF = 104, 108, 112, 116, 120, 124, 128, 152


def cmul(a, d, x, y):
    a(f"v_pk_mul_f32 {vr(d,2)}, {vr(x,2)}, {vr(y,2)} op_sel:[0,0] op_sel_hi:[0,1]")
    a(f"v_pk_fma_f32 {vr(d,2)}, {vr(x,2)}, {vr(y,2)}, {vr(d,2)} op_sel:[1,1,0] op_sel_hi:[1,0,1] neg_lo:[0,1,0]")


def kgen_head(a):
    a.lab("C_KGEN")
    a.fine(6)
    PR = 16
    a("s_and_b32 s4, s2, 7")
    a("s_mul_i32 s7, s4, 18")
    a("s_add_u32 s7, s7, s5")
    a(f"s_sub_u32 s7, s7, {NJH}")
    a("s_and_b32 s12, s3, 3")
    a("s_lshr_b32 s13, s3, 2")
    a("s_lshl2_add_u32 s8, s7, s12")
    a("s_lshl1_add_u32 s8, s8, s13")
    a("s_lshl_b32 s8, s8, 7")
    a("v_lshl_add_u32 v5, v2, 1, s8")
    for k in range(3):
        a(f"v_mov_b64 {vr(PR+2*k,2)}, 0")
    a("s_lshl_b32 s55, s7, 3")
    a("s_waitcnt lgkmcnt(0)")
    a.fine(7)
    a(f"s_load_dwordx2 s[58:59], {sr(P_LDT,2)}, s55")
    for k, p in enumerate([P_ARE, P_AIM, P_BRE, P_BIM, P_CRE, P_CIM]):
        a(f"global_load_short_d16_hi v{PR+k}, v5, {sr(p,2)}")
    a.stamp(22)
    a.b0()
    a("s_branch C_KBODY")


def kgen(a):
    a.lab("C_KBODY")
    PR = 16
    a(f"s_load_dwordx2 s[68:69], {sr(P_DSK,2)}, s55")
    a("s_setprio 2")
    a("v_and_b32 v3, 15, v2")
    a("v_lshrrev_b32 v4, 4, v2")
    a("s_and_b32 s4, s2, 7")
    a(f"s_mul_i32 s15, s3, {KTS}")
    a(f"s_add_u32 s15, s15, {KT}")
    a(f"s_mul_i32 s52, s12, {4*CS}")
    a(f"s_add_u32 s52, s52, {KC}")
    a(f"s_mul_i32 s53, s12, {US}")
    a(f"s_add_u32 s53, s53, {UP}")
    a(f"v_mul_u32_u24 v7, {TS}, v3")
    a("v_lshl_add_u32 v7, v4, 4, v7")
    a("v_add_u32 v7, s15, v7")
    a("s_mov_b32 m0, s15")
    a.lab("C_SETD")
    a.fine(8)
    a("s_waitcnt lgkmcnt(0)")
    a.auto(True)
    a("s_lshl_b32 s8, s12, 4")
    a("s_lshr_b64 s[58:59], s[58:59], s8")
    a("s_lshl_b32 s8, s58, 16")
    a("v_mov_b32 v44, s8")
    a(f"v_mul_f32 v45, {L2E:#x}, v44")
    a(f"v_mov_b32 v46, {L2E:#x}")
    a("v_fma_f32 v46, v44, v46, -v45")
    a(f"v_mov_b32 v47, {L2E_LO:#x}")
    a("v_fma_f32 v46, v44, v47, v46")
    a("v_exp_f32 v45, v45")
    a(f"v_mul_f32 v46, {LN2:#x}, v46")
    a("v_fma_f32 v45, v45, v46, v45")
    a("v_cvt_pk_bf16_f32 v45, v45, v45")
    DT, DTL, DTR = 36, 37, 38
    a(f"v_and_b32 v{DT}, 0xffff0000, v45")
    a(f"v_mul_f32 v{DTL}, {L2E:#x}, v{DT}")
    a(f"v_mul_f32 v{DTR}, {INV2PI:#x}, v{DT}")
    a("s_waitcnt vmcnt(0)")
    a.stamp(1)
    if STAMP and E("CLK2"):
        a("s_memtime s[90:91]")
    ZR, ZI, WR = 40, 41, 42
    a(f"v_mul_f32 v{ZR}, v{PR}, v{DTL}")
    a(f"v_mul_f32 v{ZI}, v{PR+1}, v{DTR}")
    T0 = 24

    def direct(dst, c):
        if c != 1:
            a(f"v_mul_f32 v{dst}, {fbits(c):#x}, v{ZR}")
            a(f"v_mul_f32 v{dst+1}, {fbits(c):#x}, v{ZI}")
        a(f"v_exp_f32 v{T0}, v{dst if c != 1 else ZR}")
        a(f"v_fract_f32 v{dst+1}, v{dst+1 if c != 1 else ZI}")
        a(f"v_cos_f32 v{dst}, v{dst+1}")
        a(f"v_sin_f32 v{dst+1}, v{dst+1}")
        a(f"v_mul_f32 v{dst}, v{T0}, v{dst}")
        a(f"v_mul_f32 v{dst+1}, v{T0}, v{dst+1}")
    PW, R1 = 46, 44
    pc = lambda c: PW + 2 * (c - 1)
    direct(pc(1), 1)
    a(f"v_mul_f32 v{PR+2}, v{PR+2}, v{DT}")
    a(f"v_mul_f32 v{PR+3}, v{PR+3}, v{DT}")
    cmul(a, WR, PR + 4, PR + 2)
    a(f"v_max_f32 v39, |v{WR}|, |v{WR+1}|")
    side = wave_max_steps(39) + ["v_readlane_b32 s8, v39, 63"]
    OT = [26, 27, 28, 29]
    cnt = [0]

    pend = []

    def flush():
        while pend:
            a(pend.pop(0))

    def emit(row, x):
        o = OT[cnt[0] % 4]
        cnt[0] += 1
        flush()
        a(f"v_cvt_pk_f16_f32 v{o}, v{x}, v{x+1}")
        pend.append(f"ds_write_addtid_b32 v{o} offset:{row*TS}")
    cmul(a, pc(2), pc(1), pc(1))
    cmul(a, pc(4), pc(2), pc(2))
    Q1, QA, QB = 60, 62, 64
    cmul(a, Q1, pc(4), pc(4))
    a(f"v_mov_b32 v30, 0x3c00")
    a(f"v_xor_b32 v{Q1+1}, 0x80000000, v{Q1+1}")
    a("ds_write_addtid_b32 v30")
    emit(1, Q1)
    cur, nxt = Q1, QA
    for b in range(2, 16):
        cmul(a, nxt, cur, Q1)
        if side:
            a(side.pop(0))
        emit(b, nxt)
        cur, nxt = nxt, (QB if nxt == QA else QA)
    a("s_lshr_b32 s8, s8, 23")
    a("s_sub_u32 s8, 258, s8")
    a("s_min_u32 s54, s8, 253")
    a("s_lshl_b32 s8, s54, 23")
    a(f"v_mul_f32 v{WR}, s8, v{WR}")
    a(f"v_mul_f32 v{WR+1}, s8, v{WR+1}")
    QF, PF, KA = 72, 88, 104
    flush()
    for ks in range(4):
        a(f"ds_read_b128 {vr(QF+4*ks,4)}, v7 offset:{64*ks}")
    direct(R1, 128)
    cmul(a, pc(3), pc(2), pc(1)); cmul(a, pc(5), pc(4), pc(1)); cmul(a, pc(6), pc(3), pc(3)); cmul(a, pc(7), pc(6), pc(1))
    CH = [66, 68]
    YC = [60, 62]
    state = {"cur": WR, "k": 0, "y": 0}

    def adv():
        n = CH[state["k"] & 1]
        cmul(a, n, state["cur"], R1)
        state["cur"] = n; state["k"] += 1

    def row(r, c):
        if c == 0:
            emit(r, state["cur"])
        else:
            y = YC[state["y"] & 1]; state["y"] += 1
            cmul(a, y, state["cur"], pc(c))
            emit(r, y)

    def rd():
        flush()
        for ks in range(4):
            a(f"ds_read_b128 {vr(PF+4*ks,4)}, v7 offset:{64*ks}")

    def mm(t, ks):
        a(f"v_mfma_f32_16x16x32_f16 {vr(KA+4*t,4)}, {vr(PF+4*ks,4)}, {vr(QF+4*ks,4)}, {vr(KA+4*t,4) if ks else 0}")
    for h in range(2):
        for c in range(8):
            row(8 * h + c, c)
        adv()
    rd()
    for h in range(2):
        for c in range(4):
            row(4 * h + c, 2 * c)
            if h == 1:
                mm(0, c)
        adv()
    for q in range(4):
        row(8 + 2 * q, 0); row(9 + 2 * q, 4)
        adv()
    rd()
    for q in range(9):
        row(q, 0)
        if q < 8:
            adv()
        if 4 <= q < 8:
            mm(1, q - 4)
    rd()
    a("v_lshl_add_u32 v8, v2, 4, s15")
    for ks in range(4):
        mm(2, ks)
    a.auto(False)
    a.stamp(2)
    if STAMP and E("CLK2"):
        a("s_memtime s[96:97]")
    a("s_lshl_b32 s8, s12, 2")
    a(f"s_add_u32 s8, s8, {F_PAIR}")
    a("v_mov_b32 v9, s8")
    a("s_cmp_eq_u32 s13, 0")
    a("s_cbranch_scc1 C_KA")
    for t in range(3):
        a(f"ds_write_b128 v8, {vr(KA+4*t,4)} offset:{1024*t}")
    a("v_mov_b32 v10, s54")
    a("ds_write_b32 v9, v10")
    a.stamp(3)
    a("s_setprio 0")
    a("v_and_b32 v14, 3, v3")
    a("v_sub_u32 v14, 3, v14")
    a(f"v_mul_u32_u24 v14, {CS}, v14")
    a("v_lshrrev_b32 v13, 2, v3")
    a("v_lshl_add_u32 v13, v4, 1, v13")
    a("v_lshl_add_u32 v14, v13, 3, v14")
    a("v_add3_u32 v5, v14, s52, 8")
    a("v_lshlrev_b32 v14, 1, v3")
    a("v_sub_u32 v14, v4, v14")
    a("v_lshlrev_b32 v14, 4, v14")
    a(f"s_add_u32 s8, s53, {4064-512*7}")
    a("v_add_u32 v6, s8, v14")
    a("v_lshl_add_u32 v14, v3, 2, v4")
    a(f"s_mul_i32 s8, s12, {OS}")
    a(f"s_add_u32 s8, s8, {OP+4088-512*7}")
    a("v_lshlrev_b32 v14, 3, v14")
    a("v_sub_u32 v7, s8, v14")
    a.spin(F_H, 1, 10, prio=E("BSP", 3), sleep=1)
    a.spin(f"v9 offset:{F_K-F_PAIR}", 0, 10, op="lg", sleep=E("BSS", 0))
    a.stamp(4)
    gphase(a, 0)
    a.lab("C_KA")
    a("s_setprio 1")
    a("v_and_b32 v14, 3, v3")
    a("v_sub_u32 v14, 3, v14")
    a(f"v_mul_u32_u24 v14, {CS}, v14")
    a("v_lshrrev_b32 v13, 2, v3")
    a("v_lshl_add_u32 v13, v4, 1, v13")
    a("v_lshl_add_u32 v14, v13, 3, v14")
    a("v_add3_u32 v5, v14, s52, 8")
    a("v_lshlrev_b32 v14, 1, v3")
    a("v_sub_u32 v14, v4, v14")
    a("v_lshlrev_b32 v14, 4, v14")
    a(f"s_add_u32 s8, s53, {4064-512*7}")
    a("v_add_u32 v6, s8, v14")
    a("v_lshl_add_u32 v14, v3, 2, v4")
    a(f"s_mul_i32 s8, s12, {OS}")
    a(f"s_add_u32 s8, s8, {OP+4088-512*7}")
    a("v_lshlrev_b32 v14, 3, v14")
    a("v_sub_u32 v7, s8, v14")
    a("v_lshrrev_b32 v11, 1, v4")
    a("v_and_b32 v12, 1, v4")
    a("v_lshlrev_b32 v11, 8, v11")
    a("v_lshl_add_u32 v11, v12, 3, v11")
    a("v_lshl_add_u32 v11, v3, 4, v11")
    a("v_add_u32 v11, s15, v11")
    a("v_cmp_gt_u32 vcc, 2, v4")
    a("v_lshlrev_b32 v12, 2, v3")
    a("v_lshlrev_b32 v13, 3, v3")
    a("v_cndmask_b32 v12, v12, v13, vcc")
    a("v_lshl_add_u32 v12, v4, 7, v12")
    a("v_add_u32 v12, s15, v12")
    a("v_mov_b32 v13, 64")
    a("v_cndmask_b32 v13, v13, 4, vcc")
    a("v_add_u32 v13, v13, v12")
    a("v_lshlrev_b32 v14, 1, v3")
    a("v_lshl_add_u32 v14, v4, 7, v14")
    a("v_add_u32 v14, s15, v14")
    a("v_lshlrev_b32 v15, 4, v2")
    a("v_lshlrev_b32 v16, 3, v2")
    a("v_add_u32 v16, 256, v16")
    a("v_min_u32 v15, v15, v16")
    a("v_add_u32 v15, s15, v15")
    EB, E2B = 2048, 3072
    a("v_min_u32 v16, 15, v2")
    a("v_lshl_add_u32 v16, v16, 2, s15")
    a("v_lshrrev_b32 v26, 5, v2")
    a("v_lshlrev_b32 v26, 8, v26")
    a("v_lshl_add_u32 v26, v2, 2, v26")
    a("v_add_u32 v26, s15, v26")
    a("v_lshlrev_b32 v17, 2, v4")
    a("v_sub_u32 v17, v3, v17")
    a("v_lshl_add_u32 v27, v17, 3, s15")
    a(f"v_add_u32 v27, {E2B+104}, v27")
    a("v_lshl_add_u32 v17, v17, 2, s15")
    a(f"v_add_u32 v17, {EB+52}, v17")
    a("v_lshl_add_u32 v19, v2, 4, s52")
    a("s_mov_b32 s56, 0x01000100")
    a("s_mov_b32 s57, 0x03020302")
    a("s_lshl_b32 s8, s12, 4")
    a("s_lshr_b64 s[68:69], s[68:69], s8")
    a("s_lshl_b32 s68, s68, 16")
    a("s_sub_u32 s58, 254, s54")
    a("s_lshl_b32 s58, s58, 23")
    for r in range(12):
        a(f"v_mul_f32 v{KA+r}, s58, v{KA+r}")
    a("s_mov_b64 exec, 1")
    a(f"v_add_f32 v{KA}, s68, v{KA}")
    a("s_mov_b64 exec, -1")
    for r in (3, 7, 10, 11, 14, 15):
        a(f"v_mov_b32 v{72+r}, 0")
    a("v_lshlrev_b32 v28, 4, v2")
    a(f"v_add_u32 v28, {PM}, v28")
    a.spin(F_PM, 2, 18)
    for k, r in ((2, PC), (3, PD), (4, A32)):
        a(f"ds_read_b128 {vr(r,4)}, v28 offset:{1024*k}")
    a.spin("v9", 0, 18, prio=2, op="lg")
    a("s_sub_u32 s60, 254, s8")
    a("s_lshl_b32 s60, s60, 23")
    a.auto(True)
    for t in range(3):
        a(f"ds_read_b128 {vr(PF+4*t,4)}, v8 offset:{4*KTS+1024*t}")
    for t in range(3):
        for p in range(2):
            r = 4 * t + 2 * p
            a(f"v_pk_fma_f32 {vr(KA+r,2)}, {vr(PF+r,2)}, s[60:61], {vr(KA+r,2)} op_sel_hi:[1,0,1]")
            a(f"v_cvt_pk_bf16_f32 v{20+2*t+p}, v{KA+r}, v{KA+r+1}")
        if t == 0:
            a("ds_write_b64 v11, v[20:21]")
        elif t == 1:
            a("ds_write_b32 v12, v22 offset:512")
            a("ds_write_b32 v13, v23 offset:512")
            S = 32
            for p in range(2):
                a(f"ds_read_b64 {vr(S+2*p,2)}, v15 offset:{8*p}")
    a("s_mov_b32 exec_lo, 0")
    a(f"v_alignbit_b32 v{S+3}, v{S+2}, v{S+1}, 16")
    a(f"v_perm_b32 v{S+2}, v{S+1}, v{S+1}, s56")
    a(f"v_alignbit_b32 v{S+1}, v{S+1}, v{S}, 16")
    a(f"v_perm_b32 v{S}, v{S}, v{S}, s56")
    a("s_mov_b32 exec_lo, -1")
    a(f"ds_write_b128 v19, {vr(S,4)} offset:32")
    a(f"v_mov_b32_dpp v{S-2}, v{S+2} wave_shr:1 {DPPF} bound_ctrl:0")
    a(f"v_mov_b32_dpp v{S-1}, v{S+3} wave_shr:1 {DPPF} bound_ctrl:0")
    C1, C2, C3 = 44, 52, 60
    for p in range(4):
        a(f"v_alignbit_b32 v{C1+p}, v{S+p}, v{S+p-1}, 16")
    a(f"ds_write_b128 v19, {vr(C1,4)} offset:{CS+32}")
    for p in range(4):
        a(f"v_mov_b32 v{C2+p}, v{S+p-1}")
    a(f"ds_write_b128 v19, {vr(C2,4)} offset:{2*CS+32}")
    for p in range(4):
        a(f"v_alignbit_b32 v{C3+p}, v{S+p-1}, v{S+p-2}, 16")
    a(f"ds_write_b128 v19, {vr(C3,4)} offset:{3*CS+32}")
    a("v_mov_b32 v10, 1")
    a(f"ds_write_b32 v9, v10 offset:{F_K-F_PAIR}")
    a.stamp(3)
    a(f"s_setprio {E('GPL', 3)}")
    TL = 72
    a(f"v_perm_b32 v{TL+1}, v{S+3}, v{S+3}, s57")
    a(f"v_alignbit_b32 v{TL}, v{S+3}, v{S+2}, 16")
    a(f"v_lshrrev_b32 v{TL+6}, 16, v{S+3}")
    a(f"v_mov_b32 v{TL+4}, v{S+3}")
    for r in (2, 5, 8, 9, 12):
        a(f"v_mov_b32 v{TL+r}, v{TL+1}")
    a(f"v_mov_b32 v{TL+13}, v{TL+6}")
    a("s_mov_b32 exec_lo, 0")
    for r in range(4):
        a(f"ds_write_b16{'_d16_hi' if r&1 else ''} v{12+(r>>1)}, v{22+(r>>1)} offset:{E2B-130+2*(r&1)}")
    a("s_mov_b32 exec_hi, 0x80000000")
    for j in range(4):
        a(f"ds_write_b128 v19, {vr(TL+4*(3-j),4)} offset:{j*CS+48}")
    a("s_mov_b64 exec, 1")
    a(f"ds_write_b16 v14, v24 offset:{E2B+382}")
    a("s_mov_b64 exec, -1")
    a(f"ds_write_b32 v26, v1 offset:{E2B}")
    for r in range(4):
        a(f"ds_write_b16{'_d16_hi' if r&1 else ''} v14, v{24+(r>>1)} offset:{EB+62+32*r}")
    a(f"ds_write_b32 v16, v1 offset:{EB}")
    a("v_readlane_b32 s59, v24, 0")
    a("v_mov_b32 v11, v27")
    a("v_mov_b32 v12, v17")
    a("v_mov_b32 v13, v28")
    a("s_pack_ll_b32_b16 s59, s59, s59")
    a.auto(False)
    a.spin(F_H, 2, 10, sleep=1)
    a.stamp(4)
    gphase(a, 1)


def gphase(a, isA):
    M = "v_mfma_f32_16x16x32_bf16"
    rdA = lambda m, d: [f"ds_read_b64 {vr(d,2)}, v5 offset:{64*m}", f"ds_read_b64 {vr(d+2,2)}, v5 offset:{64*m+8}"]
    rdB = lambda b, rho, d, extra=0: f"ds_read_b128 {vr(d,4)}, v6 offset:{512*(7-b)+64*rho+extra}"
    slot = lambda t: 1024 * (t - 2) if t < 6 else 4 * KTS + 1024 * (t - 6)

    def emit(main, fill=[], per=2, skip=0):
        for x in interleave(main, fill, per=per, skip=skip):
            a(x)
    if isA:
        a(f"s_setprio {E('GPA', 1)}")
        AC = 16
        acc = lambda t: vr(AC + 4 * (t - 2), 4)
        started = set()

        def mf(t, A, B):
            c = acc(t) if t in started else "0"
            started.add(t)
            return f"{M} {acc(t)}, {vr(A,4)}, {vr(B,4)}, {c}"
        U = lambda b: 40 + 8 * (b & 1)
        Z = lambda b: 56 + 24 * (b & 1)
        urd = lambda b: [rdB(b, 0, U(b)), rdB(b, 0, U(b) + 4, 16)]
        PL = [(0, PC), (0, PD), (1, PC), (1, PD), (0, PA), (1, PB)]
        pool2 = lambda b: [f"{M} {vr(Z(b)+4*k,4)}, {vr(U(b)+4*h,4)}, {vr(P,4)}, 0" for k, (h, P) in enumerate(PL) if k < 4] + [mf(b + 2, A16, U(b))]
        pool3 = lambda b: [f"{M} {vr(Z(b)+4*k,4)}, {vr(U(b)+4*h,4)}, {vr(P,4)}, 0" for k, (h, P) in enumerate(PL) if k >= 4] + [mf(b + 4, A32, U(b))] if b < 4 else []
        cvt = lambda b, fs: [f"v_cvt_pk_bf16_f32 v{Z(b)+8*f+r}, v{Z(b)+8*f+r}, v{Z(b)+8*f+4+r}" for f in fs for r in range(4)]
        use2 = lambda b, lo, hi: [mf(b + 2 + D, Z(b) + 8 * f, E2 + 8 * D + 4 * f) for D in range(3) if lo <= b + 2 + D < min(hi, 8) for f in range(2)]
        use3 = lambda b: [mf(t, Z(b) + 16, EF + 4 * (t - b - 4)) for t in range(b + 4, 8)]
        hand = lambda t: [f"ds_write_b128 v8, {acc(t)} offset:{slot(t)}", f"v_mov_b32 v10, {t}", f"ds_write_b32 v9, v10 offset:{F_I-F_PAIR}"]
        e2rd = lambda D: [x for f in range(2) for x in (f"ds_read2_b32 {vr(E2+8*D+4*f,2)}, v11 offset0:{32*D+6+f} offset1:{32*D+4+f}",
                                                        f"ds_read2_b32 {vr(E2+8*D+4*f+2,2)}, v11 offset0:{32*D+2+f} offset1:{32*D+f}")]
        efrd = [x for D in range(4) for x in (f"ds_read2_b32 {vr(EF+4*D,2)}, v12 offset0:{16*D+3} offset1:{16*D+2}",
                                              f"ds_read2_b32 {vr(EF+4*D+2,2)}, v12 offset0:{16*D+1} offset1:{16*D}")]
        a.auto(True)
        emit(urd(0) + urd(1) + rdA(16, A16) + e2rd(0))
        for p in range(4):
            a(f"v_and_b32 v{A32+p}, s59, v{A32+p}")
        emit(pool2(0), e2rd(1) + [f"ds_read_b128 {vr(PA,4)}, v13", f"ds_read_b128 {vr(PB,4)}, v13 offset:1024"], per=1)
        emit(pool2(1), cvt(0, (0, 1)))
        emit(use2(0, 2, 4), cvt(1, (0, 1)))
        emit(use2(1, 2, 4) + pool3(0) + pool3(1), e2rd(2) + hand(2) + efrd + hand(3), per=2)
        a.auto(False)
        a.spin(F_H, 4, 10, sleep=1)
        a(f"s_setprio {E('GPA2', 3)}")
        a.auto(True)
        emit(urd(2) + urd(3) + use2(0, 4, 8) + use2(1, 4, 8), cvt(0, (2,)) + cvt(1, (2,)))
        emit(pool2(2) + use3(0) + use3(1))
        emit(pool2(3) + pool3(2), cvt(2, (0, 1)))
        emit(use2(2, 4, 8) + pool3(3), cvt(3, (0, 1)) + cvt(2, (2,)) + hand(4))
        emit(use2(3, 4, 8) + use3(2), cvt(3, (2,)) + ["s_nop 0"] * 4 + hand(5))
        emit(use3(3))
        a.auto(False)
        a.stamp(5)
        a(f"s_setprio {E('GPA3', 3)}")
        a.spin(F_H, 6, 10, sleep=1)
        a.auto(True)
        emit(urd(4) + urd(5) + pool2(4))
        emit(pool2(5), cvt(4, (0, 1)))
        emit(use2(4, 4, 8), cvt(5, (0, 1)))
        emit(use2(5, 4, 8) + hand(6) + hand(7))
        a.auto(False)
        a.stamp(7)
        a.end()
        return
    a(f"s_setprio {E('GPB', 2)}")
    AF, BF, NB = 40, 104, 6
    acc = lambda t: 16 + 4 * (t % 3)
    a(f"v_subrev_u32 v8, {4*KTS}, v8")
    a("v_cmp_eq_u32 vcc, 0, v2")
    a(f"v_mov_b32 v13, {F_O}")
    a("v_cndmask_b32 v12, 0, 1, vcc")
    a("v_lshlrev_b32 v14, 2, v2")
    a(f"v_add_u32 v14, {PM+5120}, v14")
    a("v_cndmask_b32 v13, v14, v13, vcc")
    stage = {1: 0, 3: 1, 5: 2, 6: 3, 7: 4}

    PT = 32

    def yout(t):
        o = [f"v_add_f32 v{acc(t)+r}, v{acc(t)+r}, v{PT+r}" for r in range(4)] if t >= 2 else []
        o += [f"v_cvt_pk_bf16_f32 v30, v{acc(t)+3}, v{acc(t)+2}", f"v_cvt_pk_bf16_f32 v31, v{acc(t)+1}, v{acc(t)}",
              f"ds_write_b64 v7, v[30:31] offset:{512*(7-t)}"]
        if t in stage:
            o.append(f"ds_add_u32 v13, v12 offset:{4*stage[t]}")
        return o
    bf = lambda n: BF + 4 * (n % NB)
    rdn = lambda n: rdB(n >> 3, n & 7, bf(n))
    part = lambda t: [f"ds_read_b128 {vr(PT,4)}, v8 offset:{slot(t)}"] if t >= 2 else []
    a.auto(True)
    emit(rdA(0, AF) + [rdn(0)] + rdA(8, AF + 32) + [rdn(1)] + rdA(1, AF + 4) + rdA(9, AF + 36) + [rdn(2), rdn(3)])
    for b in range(8):
        y = yout(b - 1) if b else []
        for rho in range(8):
            n = 8 * b + rho
            f0, f1 = [], []
            if b == 0 and rho < 6:
                f0, f1 = rdA(rho + 2, AF + 4 * (rho + 2)), rdA(rho + 10, AF + 32 + 4 * (rho + 2))
            if b and rho in (2, 3):
                f0, f1, y = y[:2], y[2:4], y[4:]
            if rho == 4:
                f0 = f0 + [f"ds_read_b32 v28, v1 offset:{F_H}", f"ds_read_b32 v29, v9 offset:{F_I-F_PAIR}"]
            if rho == 5:
                f0 = f0 + part(b)
            if rho == 6:
                f1 = f1 + ["v_readfirstlane_b32 s9, v29"]
            if rho == 7:
                f0 = f0 + ["v_readfirstlane_b32 s8, v28", "s_add_u32 s9, s9, 2"]
                if b < 2:
                    f1 = f1 + [f"s_cmp_lt_u32 s8, {b+2}"]
                elif b < 7:
                    f1 = f1 + ["s_min_u32 s8, s8, s9", f"s_cmp_lt_u32 s8, {b+2}"]
                else:
                    f1 = f1 + ["s_cmp_lt_u32 s9, 9"]
            if n + 4 < 64:
                f1 = [rdn(n + 4)] + f1
            a(f"{M} {vr(acc(b),4)}, {vr(AF+4*rho,4)}, {vr(bf(n),4)}, {vr(acc(b),4) if n else 0}")
            emit(f0)
            if b < 7:
                a(f"{M} {vr(acc(b+1),4)}, {vr(AF+32+4*rho,4)}, {vr(bf(n),4)}, {vr(acc(b+1),4) if rho else 0}")
            emit(f1)
        a(f"s_cbranch_scc1 C_SLOW{b}")
        a.lab(f"KEEP_P{b}")
        if b == 3:
            a.stamp(5)
            if STAMP and E("CLK"):
                a("s_memtime s[82:83]")
    a.stamp(6)
    if STAMP and E("CLK"):
        a("s_memtime s[84:85]")
    emit(yout(7))
    a.auto(False)
    a.stamp(7)
    a(f"ds_read_b32 v10, v1 offset:{F_X}")
    a("s_cmp_eq_u32 s3, 4")
    a("s_cbranch_scc1 C_FIN")
    a.end()
    for b in range(8):
        a.lab(f"C_SLOW{b}")
        if b < 7:
            a.spin(F_H, b + 2, 28)
        if b >= 2:
            a.spin(f"v9 offset:{F_I-F_PAIR}", b, 28)
        for x in part(b) + ([rdn(8 * b + 8 + k) for k in range(4)] if b < 7 else []):
            a(x)
        a("s_waitcnt lgkmcnt(0)")
        a(f"s_branch KEEP_P{b}")


XD, GD = 40, 56
VX, VY, VG, VO = 72, 73, 74, 78


def epi_setup(a):
    srd(a, 60, P_OUT, 2359296)
    a("v_bfe_u32 v79, v2, 2, 2")
    a("v_and_b32 v80, 3, v2")
    a("v_lshl_add_u32 v80, v4, 2, v80")
    a("s_lshl_b32 s8, s12, 7")
    for d, base, stride in ((VX, UP, US), (VY, OP, OS)):
        a(f"v_mul_u32_u24 v{d}, {stride}, v79")
        a(f"v_lshl_add_u32 v{d}, v80, 3, v{d}")
        a(f"s_sub_u32 s9, {base+3968-512*7}, s8")
        a(f"v_add_u32 v{d}, s9, v{d}")
    a("v_xor_b32 v79, 63, v2")
    a("s_lshl_b32 s8, s12, 9")
    a(f"s_add_u32 s8, s8, {WS_G}")
    a(f"v_lshl_add_u32 v{VG}, v79, 3, s8")
    for k in range(1, 4):
        a(f"v_add_u32 v{VG+k}, {4096*k}, v{VG}")
    a(f"v_mul_u32_u24 v{VO}, 1152, v79")
    a(f"v_add_u32 v{VO}, s55, v{VO}")
    a("s_mul_i32 s68, s12, 73728")
    a("s_mov_b32 s70, 0x05040100")
    a("s_mov_b32 s71, 0x07060302")


def epi_x(a, ks):
    for k in ks:
        a(f"ds_read_b64_tr_b16 {vr(XD+2*k,2)}, v{VX} offset:{512*(7-k)}")


def epi_g(a):
    l = a.uid("GP")
    a("s_mov_b32 s9, 0")
    a.lab(l)
    a(f"v_xor_b32 v14, v{GD+1}, v10")
    for k in range(1, 8):
        a(f"v_bitop3_b32 v14, v14, v{GD+2*k+1}, v10 bitop3:0xf6")
    a("v_cmp_ne_u32 vcc, 0, v14")
    a("s_add_u32 s9, s9, 1")
    a("s_cmp_eq_u64 vcc, 0")
    a(f"s_cbranch_scc1 {l}_D")
    a(f"s_cmp_ge_u32 s9, {SPIN}")
    a(f"s_cbranch_scc1 {l}_D")
    epi_gl(a)
    a("s_waitcnt vmcnt(0)")
    a(f"s_branch {l}")
    a.lab(l + "_D")


def epi_gl(a):
    for k in range(8):
        a(f"global_load_dwordx2 {vr(GD+2*k,2)}, v{VG+(k>>1)}, {sr(P_WS,2)} offset:{2048*(k&1)} sc1")


TX = 120


def epi_unp(a, ks):
    for k in ks:
        if k < NF:
            for p in range(2):
                a(f"v_lshlrev_b32 v{TX+4*k+2*p}, 16, v{XD+2*k+p}")
                a(f"v_and_b32 v{TX+4*k+2*p+1}, 0xffff0000, v{XD+2*k+p}")


def epi_mul(a, ks):
    for k in ks:
        if k < NF:
            a(f"v_and_b32 v{16+(k&3)}, 0xffff0000, v{GD+2*k}")
            a(f"v_lshlrev_b32 v{GD+2*k+1}, 16, v{GD+2*k}")
            for c in range(4):
                a(f"v_mul_f32 v{TX+4*k+c}, v{TX+4*k+c}, v{16+(k&3)}")


def epi_fin(a, ks, stage):
    a.spin(F_O + 4 * stage, 4, 15, sleep=E("OSL", 1), prio=E("IOP", 3))
    a.auto(True)
    Y = 16
    for n, k in enumerate(ks):
        a(f"ds_read_b64_tr_b16 {vr(Y+2*n,2)}, v{VY} offset:{512*(7-k)}")
    for n0 in range(0, len(ks), 2):
        pr = [(n, ks[n], 24 + 4 * n) for n in (n0, n0 + 1) if n < len(ks)]
        if ks[n0] < NF:
            for n, k, R in pr:
                for p in range(2):
                    a(f"v_lshlrev_b32 v{R+2*p}, 16, v{Y+2*n+p}")
                    a(f"v_and_b32 v{R+2*p+1}, 0xffff0000, v{Y+2*n+p}")
                for c in range(4):
                    a(f"v_fma_f32 v{R+c}, v{R+c}, v{GD+2*k+1}, v{TX+4*k+c}")
        else:
            for n, k, R in pr:
                for c in range(4):
                    a(f"v_perm_b32 v{R+c}, v{XD+2*k+(c>>1)}, v{Y+2*n+(c>>1)}, s{70+(c&1)}")
            for n, k, R in pr:
                for c in range(4):
                    a(f"v_dot2_f32_bf16 v{R+c}, v{R+c}, v{GD+2*k}, 0")
        for n, k, R in pr:
            for p in range(2):
                a(f"v_cvt_pk_bf16_f32 v{XD+2*k+p}, v{R+2*p}, v{R+2*p+1}")
            if not E("NOST"):
                a(f"buffer_store_dwordx2 {vr(XD+2*k,2)}, v{VO}, s[60:63], s68 offen")
            a("s_add_u32 s68, s68, 294912")
    a.auto(False)


def burst_addr(a):
    a(f"s_sub_u32 s9, s5, {NJH}")
    if GORD:
        a("s_mul_i32 s9, s9, 3")
        a("s_min_u32 s8, s12, 2")
        a("s_add_u32 s9, s9, s8")
        a("s_mul_i32 s9, s9, 12288")
        a("s_mul_i32 s8, s4, 663552")
        a("s_add_u32 s8, s8, s9")
        a("v_lshl_add_u32 v88, v2, 7, s8")
        a("v_min_u32 v89, 31, v2")
        a("v_lshl_add_u32 v89, v89, 7, s8")
        a("v_add_u32 v89, 8192, v89")
        return
    a("s_lshl_b32 s9, s9, 2")
    a("s_add_u32 s9, s9, s12")
    a("s_mul_i32 s9, s9, 9216")
    a("s_mul_i32 s8, s4, 663552")
    a("s_add_u32 s8, s8, s9")
    if BL == 72:
        a("v_lshl_add_u32 v88, v2, 7, s8")
        a("v_min_u32 v89, 7, v2")
        a("v_lshl_add_u32 v89, v89, 7, s8")
        a("v_add_u32 v89, 8192, v89")
    else:
        a(f"s_add_u32 s8, s8, {128*(72-BL)}")
        a(f"v_min_u32 v88, {BL-1}, v2")
        a("v_lshl_add_u32 v88, v88, 7, s8")


def burst(a):
    if BSN:
        for k in range(NBI):
            a(f"global_load_dword v{96+k}, v{88+k}, {sr(P_WD,2)}")


def io_common(a):
    a("s_mul_i32 s7, s4, 18")
    a("s_add_u32 s7, s7, s5")
    a(f"s_sub_u32 s7, s7, {NJH}")
    a("s_lshl_b32 s55, s7, 3")
    a("s_sub_u32 s12, s3, 8")
    epi_setup(a)
    burst_addr(a)


def uloader(a):
    a.lab("C_LOAD")
    a("s_setprio 3")
    a(f"s_sub_u32 s13, s5, {NJH}")
    pf = stripe_pf(a)
    pf2 = []
    if PF2AT >= 0:
        pf, pf2 = pf[:2], [x.replace("v10,", "v98,").replace("v11,", "v99,") for x in pf[2:]]
    a("v_mul_u32_u24 v6, 4608, v2")
    a("s_lshl_b32 s8, s7, 3")
    a("v_add_u32 v6, s8, v6")
    a("v_lshlrev_b32 v7, 3, v2")
    a(f"v_sub_u32 v7, {UP+4088-512*7}, v7")
    a("s_mov_b32 s56, 0x05040100")
    a("s_mov_b32 s58, 0x07060302")
    a("s_mov_b32 s57, s13")
    a("s_waitcnt lgkmcnt(0)")
    if E("PFE", 0):
        for x in pf:
            a(x)
    srd(a, 72, P_U, 2359296)
    if not E("CNG"):
        a.b0(12)
    if E("CDL"):
        a(f"s_sleep {E('CDL')}")
    if E("PFX"):
        a.spin(F_X, 0, 12, op="lg")
    if not E("PFE", 0):
        for k, x in enumerate(pf):
            if k == 2 and E("PF2"):
                a("s_waitcnt vmcnt(0)")
            a(x)
    io_common(a)
    for j in range(4):
        a(f"v_mov_b32 v{24+j}, 0")
    a("v_lshrrev_b32 v28, 2, v2")
    a(f"v_mul_u32_u24 v28, {CS}, v28")
    a(f"v_add_u32 v28, {KC}, v28")
    a("v_and_b32 v29, 3, v2")
    a("v_lshl_add_u32 v30, v29, 4, v28")
    a("ds_write_b128 v30, v[24:27] offset:1072")
    a("v_and_b32 v29, 1, v2")
    a("v_lshl_add_u32 v30, v29, 4, v28")
    a("ds_write_b128 v30, v[24:27]")
    a("v_lshrrev_b32 v28, 5, v2")
    a(f"v_mul_u32_u24 v28, {US}, v28")
    a("v_and_b32 v29, 31, v2")
    a("v_lshl_add_u32 v30, v29, 4, v28")
    a(f"v_add_u32 v30, {UP+4096}, v30")
    a("ds_write_b128 v30, v[24:27]")
    a(f"ds_write_b128 v30, v[24:27] offset:{2*US}")
    a("s_mov_b32 s15, 0")
    if ROT:
        for k in range(4):
            a(f"s_add_u32 s8, s57, {k}")
            a("s_and_b32 s8, s8, 3")
            a(f"s_mul_i32 s{76+k}, s8, 294912")
            a(f"s_add_u32 s{64+k}, s{76+k}, {4*294912}")
            a("s_lshl_b32 s8, s8, 9")
            a(f"v_subrev_u32 v{32+k}, s8, v7")
    a("v_mov_b32 v12, 1")
    a(f"s_waitcnt vmcnt({E('UW', 2 if PF2AT < 0 else 0)})")
    a.stamp(7)
    U = 104

    def issue(i):
        if not NOU:
            so = f"s{(76 if i < 16 else 64) + ((i >> 2) & 3)}" if ROT else "s15"
            a(f"buffer_load_dwordx2 {vr(U+2*i,2)}, v6, s[72:75], {so} offen offset:{1152*(i&3)}")
        if i & 3 == 3:
            a("s_add_u32 s15, s15, 294912")
        if i == PF2AT:
            for x in pf2:
                a(x)
        if i == GAT:
            a(f"ds_write_b32 v1, v12 offset:{F_UI}")
            epi_gl(a)
        if i == BST:
            if GAT != BST:
                a(f"ds_write_b32 v1, v12 offset:{F_BU}")
            if not BLATE and not GORD:
                burst(a)
    a.auto(True)
    nis = 0
    for i in range(32):
        while nis < min(32, i + WIN_U):
            issue(nis); nis += 1
        a(f"@need {vr(U+2*i,2)}")
        if i & 3 == 3:
            while nis < min(32, i + 1 + WIN_U):
                issue(nis); nis += 1
            t, u, o = i >> 2, U + 2 * (i - 3), 16 + 8 * ((i >> 2) & 1)
            for ch in range(4):
                sel = "s58" if ch & 1 else "s56"
                a(f"v_perm_b32 v{o+2*ch}, v{u+4+(ch>>1)}, v{u+6+(ch>>1)}, {sel}")
                a(f"v_perm_b32 v{o+2*ch+1}, v{u+(ch>>1)}, v{u+2+(ch>>1)}, {sel}")
                if ROT:
                    a(f"ds_write_b64 v{32+(t&3)}, {vr(o+2*ch,2)} offset:{ch*US+512*(7-(t&4))}")
                else:
                    a(f"ds_write_b64 v7, {vr(o+2*ch,2)} offset:{ch*US+512*(7-t)}")
        if i == 3:
            a.stamp(8)
        if i & 3 == 3:
            a(f"v_mov_b32 v36, {(i>>2)+1}")
            a(f"ds_write_b32 v1, v36 offset:{F_H}")
        if i & 15 == 15:
            a.stamp(2 - (i >> 4))
    a.auto(False)
    epi_x(a, range(4))
    a.spin(F_X, 0, 10, op="lg")
    epi_unp(a, range(4))
    if GORD:
        a("s_waitcnt vmcnt(0)")
    a("s_branch C_IO3")
    a.lab("C_IO")
    io_common(a)
    a.spin(F_X, 0, 10, op="lg")
    if BST < GAT:
        a.spin(F_BU, 1, 12, prio=E("IOP", 3), sleep=1)
        burst(a)
    a.spin(F_H, 4, 12, prio=E("IOP", 3), sleep=E("OSL2", 2))
    epi_x(a, range(4))
    a("s_waitcnt lgkmcnt(0)")
    epi_unp(a, range(4))
    a.spin(F_UI, 1, 12, prio=E("IOP", 3), sleep=E("OSL2", 1))
    epi_gl(a)
    if BST < GAT:
        a("s_waitcnt vmcnt(0)")
    else:
        if GAT != BST:
            a.spin(F_BU, 1, 12, prio=3, sleep=1)
        if GORD:
            a.signal(F_GI, 12)
            a.spin(F_GI, 3, 12)
        if not BLATE:
            burst(a)
        if GORD:
            a(f"s_waitcnt vmcnt({NBI})")
    a.lab("C_IO3")
    a(f"s_waitcnt vmcnt({NBI if BSN and not BLATE else 0})")
    if BLATE == 1:
        burst(a)
    epi_g(a)
    epi_mul(a, range(4))
    a.stamp(3)
    epi_fin(a, [0, 1], 0)
    epi_fin(a, [2, 3], 1)
    a.spin(F_H, 8, 12)
    epi_x(a, range(4, 8))
    if NF > 4:
        a("s_waitcnt lgkmcnt(0)")
    epi_unp(a, range(4, 8))
    epi_mul(a, range(4, 8))
    a("s_lshl_b32 s8, s12, 8")
    a(f"s_sub_u32 s8, {OM+7936-1024*7}, s8")
    a("v_lshl_add_u32 v14, v2, 2, s8")
    for k in range(8):
        a(f"ds_write_b32 v14, v{GD+2*k} offset:{1024*(7-k)}")
    a.stamp(4)
    epi_fin(a, [4, 5], 2)
    a.stamp(5)
    if E("L2"):
        epi_fin(a, [6, 7], 4)
    else:
        epi_fin(a, [6], 3)
        epi_fin(a, [7], 4)
    a.signal(F_SI, 8)
    a.stamp(6)
    a("s_waitcnt vmcnt(0)")
    a.signal(F_ST, 8)
    a.end()
    a.lab("C_FIN")
    Z = 104
    a("s_setprio 0")
    a("v_and_b32 v8, 7, v2")
    a("v_lshlrev_b32 v8, 3, v8")
    a(f"v_add_u32 v8, {WS_SEL}, v8")
    a("s_mul_i32 s8, s7, 9216")
    a(f"s_add_u32 s8, s8, {WS_MB}")
    a("v_lshl_add_u32 v5, v2, 4, s8")
    a("v_add_u32 v6, 0x1000, v5")
    a("v_add_u32 v7, 0x2000, v5")
    a("v_and_b32 v19, 1, v4")
    a("v_lshrrev_b32 v20, 1, v4")
    a("v_lshl_or_b32 v19, v19, 1, v20")
    a(f"v_mul_u32_u24 v12, {US}, v19")
    a(f"v_add_u32 v12, {UP}, v12")
    a(f"v_mul_u32_u24 v13, {OS}, v19")
    a(f"v_add_u32 v13, {OP}, v13")
    a(f"s_add_u32 s8, s55, {2047*1152}")
    a("v_lshl_add_u32 v14, v19, 1, s8")
    a("s_waitcnt lgkmcnt(0)")
    for j in range(4):
        a(f"v_bfe_u32 v{Z+6+j}, v10, {8*j}, 8")
    MB = 120
    if FT:
        a.spin(F_O + 16, 4, 26, sleep=1, prio=3)
        if FT > 1:
            a(f"s_sleep {FT}")
    else:
        a.spin(F_SI, E("SI", 4), 26, sleep=1, prio=3)
    a.stamp(5)
    a("s_mov_b32 s9, 0")
    a.lab("C_MPOLL")
    a(f"global_load_dwordx2 v[16:17], v8, {sr(P_WS,2)} sc1")
    for i in range(9):
        a(f"global_load_dwordx4 {vr(MB+4*i,4)}, v{5+(i>>2)}, {sr(P_WS,2)} offset:{1024*(i&3)} sc1")
    a("s_waitcnt vmcnt(9)")
    a("v_and_b32 v22, 0x7ff, v16")
    a("v_lshl_add_u32 v23, v22, 1, v12")
    a(f"ds_read_u16 v{Z+1}, v23")
    a("v_lshl_add_u32 v23, v22, 1, v13")
    a(f"ds_read_u16 v{Z+3}, v23")
    a("v_lshlrev_b32 v23, 2, v22")
    a(f"v_add_u32 v23, {OM}, v23")
    if not (FT or E("SI", 4) < 4):
        a("ds_read_b32 v24, v23")
    a("v_and_b32 v20, 0xffff0000, v16")
    a("v_ashrrev_i32 v21, 31, v20")
    a("v_not_b32 v21, v21")
    a("v_or_b32 v21, 0x80000000, v21")
    a("v_and_b32 v21, 0xffff0000, v21")
    a("v_xor_b32 v20, v20, v21")
    sigmoid_f32(a, Z, 20, 21)
    rb(a, Z)
    a(f"v_mul_u32_u24 v{Z+4}, 1152, v22")
    a(f"v_sub_u32 v{Z+4}, v14, v{Z+4}")
    a("s_waitcnt lgkmcnt(0)")
    a(f"v_lshlrev_b32 v{Z+1}, 16, v{Z+1}")
    for i in range(9):
        a(f"s_waitcnt vmcnt({8-i})")
        for j in range(4):
            a(f"v_xor_b32 v{MB+4*i+j}, v{MB+4*i+j}, v{Z+6+j}")
        a(f"v_or3_b32 v26, v{MB+4*i}, v{MB+4*i+1}, {'v26' if i else '0'}")
        a(f"v_or3_b32 v26, v{MB+4*i+2}, v{MB+4*i+3}, v26")
        if i:
            for p in range(2):
                a(f"v_pk_add_f32 {vr(28+2*p,2)}, {vr(28+2*p if i > 1 else MB+2*p,2)}, {vr(MB+4*i+2*p,2)}")
    a("v_and_b32 v26, 0xff, v26")
    a("v_bitop3_b32 v26, v26, v17, v10 bitop3:0xf6")
    a("v_cmp_ne_u32 vcc, 0, v26")
    a("s_add_u32 s9, s9, 1")
    a("s_cmp_eq_u64 vcc, 0")
    a("s_cbranch_scc1 C_MOK")
    a(f"s_cmp_lt_u32 s9, {SPIN}")
    a("s_cbranch_scc1 C_MPOLL")
    a.lab("C_MOK")
    if STAMP:
        a("s_mov_b32 s82, s9")
    a.stamp(8)
    a("v_permlane32_swap_b32 v28, v29")
    a("v_permlane32_swap_b32 v30, v31")
    a("v_add_f32 v28, v28, v29")
    a("v_add_f32 v30, v30, v31")
    a("v_permlane16_swap_b32 v28, v30")
    a("v_add_f32 v28, v28, v30")
    a(f"v_add_f32_dpp v28, v28, v28 row_ror:8 {DPPF}")
    rb(a, 28)
    a(f"v_mul_f32 v28, v28, v{Z}")
    rb(a, 28)
    a(f"v_add_f32 v28, v28, v{Z+1}")
    rb(a, 28)
    a(f"v_or_b32 v28, v28, v{Z+3}")
    if FT or E("SI", 4) < 4:
        a.spin(F_SI, 4, 27)
        a("ds_read_b32 v24, v23")
        a("s_waitcnt lgkmcnt(0)")
    a("v_dot2_f32_bf16 v28, v28, v24, 0")
    a("v_cvt_pk_bf16_f32 v28, v28, v28")
    a.spin(F_ST, 4, 27)
    a("s_mov_b32 exec_lo, 0x00ff00ff")
    a("s_mov_b32 exec_hi, 0x00ff00ff")
    a(f"global_store_short v{Z+4}, v28, {sr(P_OUT,2)}")
    a("s_mov_b64 exec, -1")
    a.end()


def kernel(a):
    a.raw(".p2align 8")
    a.raw(".globl k1_kernel")
    a.raw(".type k1_kernel,@function")
    a.lab("k1_kernel")
    a.stamp(20)
    if STAMP == 3:
        a("s_memrealtime s[80:81]")
    a("v_and_b32 v2, 63, v0")
    a("v_mov_b32 v1, 0")
    a("v_lshlrev_b32 v3, 2, v2")
    a("ds_write_b32 v3, v1")
    a("s_lshr_b32 s5, s2, 3")
    if CODEPF:
        a("v_lshlrev_b32 v8, 7, v0")
        a(f"s_cmp_lg_u32 s5, {NJF}")
        a("s_cbranch_scc1 K_NOCPF")
        a("s_getpc_b64 s[8:9]")
        a("v_min_u32 v8, CODE_END-k1_kernel-64, v8")
        a("global_load_dword v160, v8, s[8:9]")
        a.lab("K_NOCPF")
    a("s_waitcnt lgkmcnt(0)")
    a("s_load_dwordx16 s[16:31], s[0:1], 0")
    a("s_load_dwordx16 s[32:47], s[0:1], 64")
    a("s_load_dwordx4 s[48:51], s[0:1], 128")
    if STAMP in (1, 2):
        for i in range(1, 10):
            a(f"s_mov_b32 s{80+2*i}, 0")
    if PROBE and PROBE != "kernel:20" and not os.environ.get("PW"):
        a("s_mov_b32 s98, 0")
    a.stamp(0)
    a("v_lshrrev_b32 v4, 6, v0")
    if STAMP == 3:
        a("s_barrier")
        a("v_readfirstlane_b32 s3, v4")
    else:
        a("s_cmp_ge_u32 s5, 32")
        a("v_readfirstlane_b32 s3, v4")
        a("s_cbranch_scc1 K_END")
        a("s_barrier")
    a("s_cmp_eq_u32 s3, 8")
    a("s_cbranch_scc1 ROUTER")
    a(f"s_cmp_lt_u32 s5, {NJH}")
    a("s_cbranch_scc1 K_OTHER")
    a("s_cmp_ge_u32 s3, 8")
    a("s_cbranch_scc1 K_CIO")
    kgen_head(a)
    router(a)
    a.raw(".p2align 7")
    a.lab("K_OTHER")
    a("v_and_b32 v3, 15, v2")
    a("v_lshrrev_b32 v4, 4, v2")
    a("s_and_b32 s4, s2, 7")
    a("s_mul_i32 s7, s4, 9")
    a("s_add_u32 s7, s7, s5")
    a("s_mov_b32 s12, s3")
    a("s_cmp_lt_u32 s3, 2")
    a("s_cbranch_scc1 GATE")
    a(f"s_cmp_ge_u32 s5, {NJF}")
    a("s_cbranch_scc1 HELPER")
    a("s_cmp_lt_u32 s3, 8")
    a("s_cbranch_scc1 F_COMP")
    ffn_loader(a)
    a.raw(".p2align 7")
    a.lab("K_CIO")
    a("v_and_b32 v3, 15, v2")
    a("v_lshrrev_b32 v4, 4, v2")
    a("s_and_b32 s4, s2, 7")
    a("s_mul_i32 s7, s4, 18")
    a("s_add_u32 s7, s7, s5")
    a(f"s_sub_u32 s7, s7, {NJH}")
    a("s_sub_u32 s12, s3, 9")
    a("s_cmp_lg_u32 s3, 11")
    a("s_cbranch_scc1 C_CONST")
    uloader(a)
    a.lab("C_CONST")
    a("v_lshl_add_u32 v14, v4, 3, v3")
    a("v_sub_u32 v14, 39, v14")
    a("s_lshl_b32 s8, s12, 11")
    a(f"s_add_u32 s8, s8, {PM}")
    a("v_lshl_add_u32 v15, v2, 4, s8")
    W = [(0x7f, 19), (0x1ff, 20), (0x7, 21), (0x1f, 18), (0x3, 21)]
    for k in range(3):
        a("s_cmp_eq_u32 s12, 0")
        a(f"s_cselect_b32 s8, {W[k][0]}, {W[k+2][0]}")
        a(f"s_cselect_b32 s9, {W[k][1]}, {W[k+2][1]}")
        a("s_movk_i32 s11, 0x3f80")
        if k == 2:
            a("s_cselect_b32 s11, s11, 0xffff")
        a("s_lshl_b32 s13, s11, 16")
        a("v_mov_b32 v10, s8")
        a("v_mov_b32 v11, 0")
        a("v_lshlrev_b64 v[10:11], v14, v[10:11]")
        a("v_alignbit_b32 v10, v11, v10, s9")
        for p in range(4):
            a(f"v_bfe_i32 v11, v10, {2*p}, 1")
            a(f"v_bfe_i32 v12, v10, {2*p+1}, 1")
            a("v_and_b32 v11, s11, v11")
            a(f"v_and_or_b32 v{16+4*k+p}, v12, s13, v11")
        a(f"ds_write_b128 v15, {vr(16+4*k,4)} offset:{1024*k}")
    a.signal(F_PM, 10)
    a("s_branch GATE")
    helper(a)
    gate(a)
    kgen(a)
    select(a)
    ffn_comp(a)
    if STAMP:
        a.lab("STAMP_OUT")
        a("s_memrealtime s[98:99]")
        a("s_waitcnt lgkmcnt(0)")
        a("s_lshl_b32 s8, s2, 4")
        a("s_add_u32 s8, s8, s3")
        a("s_lshl_b32 s8, s8, 6")
        a(f"s_add_u32 s8, s8, {WS_STAMP}")
        a("v_mov_b32 v5, s8")
        for i in ((0, 9) if STAMP == 3 else range(10)):
            a(f"v_mov_b32 v6, s{80+2*i}")
            a(f"global_store_dword v5, v6, {sr(P_WS,2)} offset:{4*i}")
    if PROBE:
        a.lab("PADTAIL")
        a("s_waitcnt vmcnt(0) lgkmcnt(0)")
        if os.environ.get("PW"):
            wl, wh, jl, jh = map(int, os.environ["PW"].split(","))
            for r, lo, hi in (("s3", wl, wh), ("s5", jl, jh)):
                a(f"s_cmp_lt_u32 {r}, {lo}")
                a("s_cbranch_scc1 K_END")
                a(f"s_cmp_gt_u32 {r}, {hi}")
                a("s_cbranch_scc1 K_END")
        else:
            a("s_cmp_eq_u32 s98, 0")
            a("s_cbranch_scc1 K_END")
        a("s_setprio 0")
        a.lab("PADL")
        a("s_sleep 3")
        a("s_memrealtime s[96:97]")
        a("s_waitcnt lgkmcnt(0)")
        a("s_sub_u32 s96, s96, s98")
        a("s_cmp_lt_u32 s96, 2000")
        a("s_cbranch_scc1 PADL")
    a.lab("K_END")
    a("s_endpgm")
    a.lab("CODE_END")


def main():
    ref = open(os.path.join(HERE, NAME + ".s.ref")).read().splitlines()
    head = [l for l in ref if l.startswith(";") and "@launch" not in l and "Override" not in l and "grid=ceil" not in l]
    a = G()
    kernel(a)
    out = head + [
        f"; @launch kernel=k1_kernel grid=(256,1,1) block=(768,1,1) lds={LDS}",
        '.amdgcn_target "amdgcn-amd-amdhsa--gfx950"',
        ".text",
    ] + a.finish() + [
        '.section .rodata,"a"',
        ".p2align 6",
        ".amdhsa_kernel k1_kernel",
        "  .amdhsa_next_free_vgpr 168",
        "  .amdhsa_next_free_sgpr 102",
        "  .amdhsa_accum_offset 168",
        "  .amdhsa_group_segment_fixed_size 0",
        "  .amdhsa_kernarg_size 144",
        "  .amdhsa_user_sgpr_count 2",
        "  .amdhsa_user_sgpr_kernarg_segment_ptr 1",
        "  .amdhsa_system_sgpr_workgroup_id_x 1",
        ".end_amdhsa_kernel",
    ]
    path = sys.argv[1] if len(sys.argv) > 1 else os.path.join(HERE, NAME + ".s")
    open(path, "w").write("\n".join(out) + "\n")


if __name__ == "__main__":
    main()
```
